```python
import torch

def _softmax(x, axis=-1):
    return torch.softmax(x, dim=axis)
def _gelu(x):
    return torch.nn.functional.gelu(x, approximate="tanh")
def _silu(x):
    return torch.nn.functional.silu(x)
def _sigmoid(x):
    return torch.sigmoid(x)
def _layernorm(x, axis=-1, eps=1e-5):
    m = x.mean(dim=axis, keepdim=True)
    v = x.var(dim=axis, keepdim=True, unbiased=False)
    return (x - m) / torch.sqrt(v + eps)
def _scatter_add(tgt, idx, src, axis=0):
    return tgt.clone().index_add_(axis, idx, src)
def _segment_sum(src, seg, n):
    out = torch.zeros((n,) + src.shape[1:], dtype=src.dtype)
    return out.index_add_(0, seg, src)
def _pad(x, pw):
    flat = tuple(v for pair in reversed(pw) for v in pair)
    return torch.nn.functional.pad(x, flat)

kernel_name = 'parallel_sum__grouped_kv_mqa__swiglu_ffn__prompt'

def setup_inputs():

    _w = (lambda a: (lambda t: t.to(torch.bfloat16) if t.is_floating_point() else t)(torch.as_tensor(a)))
    def _A_setup():
        B, S, D, H = 1, 2048, 640, 32
        Dh = D // H
        return {
            "x": _w((lambda *s: torch.randn(*s, dtype=torch.bfloat16) * 0.05)(B, S, D)),
            "wq": _w((lambda *s: torch.randn(*s, dtype=torch.bfloat16) * 0.2)(D, H * Dh)),
            "wk": _w((lambda *s: torch.randn(*s, dtype=torch.bfloat16) * 0.2)(D, Dh)),
            "wv": _w((lambda *s: torch.randn(*s, dtype=torch.bfloat16) * 0.1)(D, Dh)),
            "wo": _w((lambda *s: torch.randn(*s, dtype=torch.bfloat16) * 0.1)(H * Dh, D)),
        }
    _A_in = _A_setup()

    def _B_setup():
        B, S, D, F = 1, 2048, 640, 1536
        return {
            "x": _w((lambda *s: torch.randn(*s, dtype=torch.bfloat16) * 0.05)(B, S, D)),
            "w_gate": _w((lambda *s: torch.randn(*s, dtype=torch.bfloat16) * 0.1)(D, F)),
            "w_up": _w((lambda *s: torch.randn(*s, dtype=torch.bfloat16) * 0.1)(D, F)),
            "w_down": _w((lambda *s: torch.randn(*s, dtype=torch.bfloat16) * 0.1)(F, D)),
        }
    _B_in = _B_setup()

    return {
        "A_x": _A_in["x"],
        "A_wq": _A_in["wq"],
        "A_wk": _A_in["wk"],
        "A_wv": _A_in["wv"],
        "A_wo": _A_in["wo"],
        "B_x": _B_in["x"],
        "B_w_gate": _B_in["w_gate"],
        "B_w_up": _B_in["w_up"],
        "B_w_down": _B_in["w_down"],
    }

def reference(A_x, A_wq, A_wk, A_wv, A_wo, B_x, B_w_gate, B_w_up, B_w_down):
    def _A_ref(x, wq, wk, wv, wo):
        B, S, D = x.shape
        H = 32
        Dh = D // H
        q = (lambda x, *d: x.permute(*d))((x @ wq).reshape(B, S, H, Dh), 0, 2, 1, 3)
        k = x @ wk
        v = x @ wv
        scores = torch.einsum("bhqd,bkd->bhqk", q, k) * (Dh ** -0.5)
        p = _softmax(scores, axis=-1)
        o = torch.einsum("bhqk,bkd->bhqd", p, v)
        return (lambda x, *d: x.permute(*d))(o, 0, 2, 1, 3).reshape(B, S, H * Dh) @ wo

    def _B_ref(x, w_gate, w_up, w_down):
        g = _silu(x @ w_gate)
        u = x @ w_up
        return (g * u) @ w_down

    x = A_x
    xn = _layernorm(x, axis=-1)
    return x + _A_ref(xn, A_wq, A_wk, A_wv, A_wo) + _B_ref(xn, B_w_gate, B_w_up, B_w_down)
```

```python
import re

REG_RE = re.compile(r"\b([vsa])(\d+)\b|\b([vsa])\[(\d+):(\d+)\]|\b(vcc|exec|m0|vcc_lo|vcc_hi|exec_lo|exec_hi)\b")
TRANS = ("v_exp_", "v_log_", "v_rcp_", "v_rsq_", "v_sqrt_", "v_sin_", "v_cos_")

def regs_of(op):
    out = []
    for m in REG_RE.finditer(op):
        if m.group(1):
            out.append((m.group(1), int(m.group(2))))
        elif m.group(3):
            out += [(m.group(3), i) for i in range(int(m.group(4)), int(m.group(5)) + 1)]
        else:
            n = m.group(6)
            out.append((n.split("_")[0], 0))
    return out

def split_ops(s):
    ops, depth, cur = [], 0, ""
    for ch in s:
        if ch in "[(": depth += 1
        if ch in "])": depth -= 1
        if ch == "," and depth == 0:
            ops.append(cur.strip()); cur = ""
        else:
            cur += ch
    if cur.strip(): ops.append(cur.strip())
    return ops

class Ins:
    def __init__(self, text):
        self.text = text.strip()
        t = self.text.split(";")[0].strip()
        parts = t.split(None, 1)
        self.op = op = parts[0]
        rest = parts[1] if len(parts) > 1 else ""
        ops = split_ops(rest)
        self.mods = ""
        if ops:
            last = ops[-1].split(None, 1)
            if len(last) > 1 and not last[0].startswith("hwreg"):
                ops[-1] = last[0]; self.mods = last[1]
        self.ops = ops
        self.label = None
        self.w, self.r = [], []
        self.srcC = []; self.srcAB = []
        self.kind = "other"; self.passes = 0; self.target = None
        R = [regs_of(o) for o in ops]
        allr = [x for l in R for x in l]
        if op.startswith("v_mfma"):
            self.kind = "mfma"
            self.passes = 8 if "32x32x16" in op else 4 if "16x16x32" in op else None
            assert self.passes, op
            self.w = R[0]; self.srcAB = R[1] + R[2]; self.srcC = R[3]; self.r = self.srcAB + self.srcC
        elif op.startswith("v_"):
            self.kind = "valu"
            if op.startswith("v_cmp"):
                self.w = R[0]; self.r = [x for l in R[1:] for x in l]
            elif op.startswith("v_permlane") and "swap" in op:
                self.w = allr; self.r = allr
            elif op.startswith(("v_add_co", "v_sub_co", "v_addc_co", "v_subb_co")):
                self.w = R[0] + R[1]; self.r = [x for l in R[2:] for x in l]
            else:
                self.w = R[0]; self.r = [x for l in R[1:] for x in l]
                if op.startswith(("v_fmac", "v_dot2c", "v_writelane")) or "UNUSED_PRESERVE" in self.mods or "_dpp" in op:
                    self.r = self.r + R[0]
        elif op.startswith(("buffer_", "global_")):
            self.kind = "vmem"
            lds = " lds" in (" " + self.mods)
            if op.startswith(("buffer_wbl2", "buffer_inv")):
                pass
            elif "load" in op and not lds:
                self.w = R[0]; self.r = [x for l in R[1:] for x in l]
            elif "atomic" in op and "sc0" in self.mods:
                if op.startswith("buffer_"):
                    self.w = R[0]; self.r = allr
                else:
                    self.w = R[0]; self.r = [x for l in R[1:] for x in l]
            else:
                self.r = allr
                if lds: self.r = self.r + [("m0", 0)]
            self.lds = lds
        elif op.startswith("ds_"):
            self.kind = "ds"
            if op.startswith(("ds_read", "ds_bpermute", "ds_permute", "ds_swizzle")) or "rtn" in op:
                self.w = R[0]; self.r = [x for l in R[1:] for x in l]
            else:
                self.r = allr
        elif op.startswith(("s_load", "s_memtime", "s_memrealtime", "s_buffer_load")):
            self.kind = "smem"; self.w = R[0]; self.r = [x for l in R[1:] for x in l]
        elif op in ("s_waitcnt", "s_nop", "s_barrier", "s_endpgm", "s_setprio", "s_sleep"):
            self.kind = "ctl"
        elif op.startswith(("s_branch", "s_cbranch")):
            self.kind = "branch"; self.target = ops[0]
        elif op.startswith("s_"):
            self.kind = "salu"
            if op.startswith("s_cmp") or op.startswith("s_bitcmp"):
                self.r = allr
            else:
                self.w = R[0] if R else []; self.r = [x for l in R[1:] for x in l]
                if "saveexec" in op: self.w = self.w + [("exec", 0)]
        else:
            raise ValueError("unknown instr " + text)
        self.trans = op.startswith(TRANS)
        self.dot = op.startswith("v_dot")
        self.wset, self.rset = set(self.w), set(self.r)
    def states(self):
        if self.op == "s_nop": return int(self.ops[0], 0) + 1
        return 1

class Label:
    def __init__(self, name, align=None): self.name = name; self.align = align

def need(p, c):
    n = 0
    vw = lambda s: {x for x in s if x[0] in "va"}
    sw = lambda s: {x for x in s if x[0] in ("s", "vcc")}
    if p.kind == "valu":
        pw = vw(p.wset)
        if c.kind == "mfma" and pw & c.rset: n = max(n, 2)
        if c.kind == "valu":
            if p.trans and not c.trans and pw & c.rset: n = max(n, 1)
            if c.op.startswith(("v_readlane", "v_readfirstlane")) and pw & c.rset: n = max(n, 1)
            if ("_dpp" in c.op or c.op.startswith("v_permlane")) and pw & c.rset: n = max(n, 2)
            if ("sdwa" in p.op or "op_sel" in p.mods) and pw & (c.rset | c.wset): n = max(n, 1)
            if p.dot and pw & (c.rset | c.wset):
                if not (c.op == p.op and pw & set(regs_of(c.ops[-1])) and not (pw & set(regs_of(c.ops[1]) + regs_of(c.ops[2])))) and not (c.op == p.op and "dot2c" in c.op and not (pw & set(regs_of(c.ops[1]) + regs_of(c.ops[2])))):
                    n = max(n, 3)
            ps = sw(p.wset)
            if ps & c.rset:
                n = max(n, 4 if c.op.startswith(("v_readlane", "v_writelane", "v_div_fmas")) else 2)
        if c.kind in ("vmem", "ds"):
            if p.trans and pw & c.rset: n = max(n, 1)
            if p.dot and pw & c.rset: n = max(n, 3)
            if sw(p.wset) & c.rset: n = max(n, 5)
        if c.kind in ("salu", "smem") and sw(p.wset) & c.rset: n = max(n, 1)
        if c.kind == "mfma" and p.dot and pw & c.rset: n = max(n, 3)
    if p.kind == "mfma":
        P = p.passes
        if c.kind == "mfma":
            if p.wset & set(c.srcAB): n = max(n, P + 4)
            if p.wset & set(c.srcC):
                if not (p.w == c.srcC and p.passes == c.passes): n = max(n, P + 2)
            elif p.wset & c.wset and p.passes != c.passes: n = max(n, P + 4)
        elif c.kind == "valu":
            if p.wset & (c.rset | c.wset): n = max(n, P + 4)
            if set(p.srcC) & c.wset: n = max(n, P - 1)
        elif c.kind in ("vmem", "ds"):
            if p.wset & (c.rset | c.wset): n = max(n, P + 4)
            if set(p.srcC) & c.wset: n = max(n, P - 1)
    if p.kind == "salu" and ("m0", 0) in p.wset and ("m0", 0) in c.rset and c.kind in ("vmem", "ds"): n = max(n, 1)
    if p.kind == "vmem" and ("store" in p.op) and ("x3" in p.op or "x4" in p.op):
        data = set(regs_of(p.ops[0] if p.op.startswith("buffer") else p.ops[1]))
        if data & c.wset: n = max(n, 2 if c.kind in ("valu", "mfma") else 1)
    return n

class Kernel:
    def __init__(self, name):
        self.name = name; self.items = []; self.nlab = 0
    def e(self, text):
        for line in text.strip().split("\n"):
            line = line.strip()
            if not line or line.startswith(";"): continue
            if line.endswith(":"): self.items.append(Label(line[:-1]))
            else: self.items.append(Ins(line))
    def label(self, name, align=None): self.items.append(Label(name, align))
    def newlabel(self, base="L"):
        self.nlab += 1; return f"{self.name}_{base}{self.nlab}"

    def _preds(self):
        items = self.items
        lab = {it.name: i for i, it in enumerate(items) if isinstance(it, Label)}
        br = {}
        for i, it in enumerate(items):
            if isinstance(it, Ins) and it.kind == "branch":
                br.setdefault(lab[it.target], []).append(i)
        return lab, br

    def pad_hazards(self, maxd=14):
        changed = True; total = 0
        while changed:
            changed = False
            items = self.items
            lab, br = self._preds()
            i = 0
            for i, c in enumerate(items):
                if not isinstance(c, Ins) or c.kind in ("ctl", "branch"): continue
                worst = 0
                stack = [(i - 1, 0)]; seen = set()
                while stack:
                    j, d = stack.pop()
                    if j < 0 or d >= maxd or (j, d) in seen: continue
                    seen.add((j, d))
                    p = items[j]
                    if isinstance(p, Label):
                        for b in br.get(j, []): stack.append((b, d))
                        k = j - 1
                        while k >= 0 and isinstance(items[k], Label):
                            for b in br.get(k, []): stack.append((b, d))
                            k -= 1
                        if k >= 0 and items[k].op not in ("s_branch", "s_endpgm"): stack.append((k, d))
                        continue
                    nd = need(p, c)
                    if nd > d: worst = max(worst, nd - d)
                    stack.append((j - 1, d + p.states()) if not (False) else None)
                if worst:
                    self.items.insert(i, Ins(f"s_nop {worst-1}"))
                    total += worst; changed = True
                    break
        return total

    def check_waits(self):
        items = self.items
        lab = {it.name: i for i, it in enumerate(items) if isinstance(it, Label)}
        taken = set(); vm = []; lg = []; i = 0; errs = []; steps = 0
        while i < len(items):
            steps += 1
            it = items[i]
            if isinstance(it, Label): i += 1; continue
            if it.op == "s_waitcnt":
                t = it.text
                m = re.search(r"vmcnt\((\d+)\)", t)
                if m: n = int(m.group(1)); vm = vm[len(vm) - n:] if n < len(vm) and n > 0 else ([] if n == 0 else vm)
                m = re.search(r"lgkmcnt\((\d+)\)", t)
                if m:
                    n = int(m.group(1))
                    if n == 0: lg = []
                    else:
                        if any(k == "smem" for k, _ in lg): pass
                        elif n < len(lg): lg = lg[len(lg) - n:]
            else:
                touched = it.rset | it.wset
                for q, nm in ((vm, "vmcnt"), (lg, "lgkmcnt")):
                    for k, ws in q:
                        if ws & touched and not (it.kind == k and not (ws & it.rset)):
                            errs.append(f"{nm} hazard at [{i}] {it.text}: {sorted(ws & touched)[:4]}")
                if it.kind == "vmem": vm.append(("vmem", it.wset))
                if it.kind == "ds": lg.append(("ds", it.wset))
                if it.kind == "smem": lg.append(("smem", it.wset))
            if it.kind == "branch":
                t = lab[it.target]
                if it.op == "s_branch":
                    if t <= i and i in taken: i += 1; continue
                    taken.add(i); i = t; continue
                if t <= i and i not in taken:
                    taken.add(i); i = t; continue
            i += 1
        return errs

    def maxreg(self, kind):
        m = -1
        for it in self.items:
            if isinstance(it, Ins):
                for k, n in it.rset | it.wset:
                    if k == kind: m = max(m, n)
        return m

    def text(self):
        out = [f".globl {self.name}", ".p2align 8", f".type {self.name},@function", f"{self.name}:"]
        for it in self.items:
            if isinstance(it, Label):
                if it.align: out.append(f".p2align {it.align}")
                out.append(f"{it.name}:")
            else: out.append("  " + it.text)
        return "\n".join(out) + "\n"

    def descriptor(self, vgpr=None):
        nv = self.maxreg("v") + 1; na = self.maxreg("a") + 1; ns = self.maxreg("s") + 1
        acc = (nv + 3) // 4 * 4
        tot = acc + na if na else nv
        if vgpr: assert tot <= vgpr, (tot, vgpr);
        return f""".p2align 6
.amdhsa_kernel {self.name}
  .amdhsa_next_free_vgpr {tot}
  .amdhsa_next_free_sgpr {max(ns, 16)}
  .amdhsa_accum_offset {acc}
  .amdhsa_group_segment_fixed_size 0
  .amdhsa_kernarg_size 96
  .amdhsa_user_sgpr_count 2
  .amdhsa_user_sgpr_kernarg_segment_ptr 1
  .amdhsa_system_sgpr_workgroup_id_x 1
  .amdhsa_float_denorm_mode_32 3
.end_amdhsa_kernel
"""

def vr(a, n=1): return f"v{a}" if n == 1 else f"v[{a}:{a+n-1}]"
def sr(a, n=1): return f"s{a}" if n == 1 else f"s[{a}:{a+n-1}]"
def ar(a, n=1): return f"a{a}" if n == 1 else f"a[{a}:{a+n-1}]"
```

```python
from asmgen import *
import struct, math

KA = dict(x=0, wq=8, wk=16, wv=24, wo=32, bx=40, wg=48, wu=56, wd=64, out=72, dbg=80, ws=88)
NBYTES = dict(x=2048*640*2, wq=640*640*2, wk=640*20*2, wv=640*20*2, wo=640*640*2, wg=640*1536*2, wu=640*1536*2,
              wd=1536*640*2, out=2048*640*2)
XN_OFF = 0;            XN_BYTES = 64*40*1024
KV_OFF = 0x280000;     KV_BYTES = 64*3072
AF_OFF = 0x300000;     AF_BYTES = 64*136*1024

def f32bits(x): return struct.unpack("<I", struct.pack("<f", x))[0]

def srd_from(k, dst, src, nbytes, off=0):
    if off:
        k.e(f"s_add_u32 s{dst}, s{src}, {hex(off)}")
        k.e(f"s_addc_u32 s{dst+1}, s{src+1}, 0")
    else:
        k.e(f"s_mov_b32 s{dst}, s{src}")
        k.e(f"s_mov_b32 s{dst+1}, s{src+1}")
    k.e(f"s_mov_b32 s{dst+2}, {hex(nbytes)}")
    k.e(f"s_mov_b32 s{dst+3}, 0x20000")
```

```python
from common import *

def gen_k0(name="k0_kernel"):
    k = Kernel(name)
    e = k.e
    L_end = k.newlabel("end")
    e(f"s_cmp_ge_u32 s2, 128\ns_cbranch_scc1 {L_end}")
    e(f"s_load_dwordx2 s[4:5], s[0:1], {KA['x']}")
    e(f"s_load_dwordx4 s[8:11], s[0:1], {KA['wk']}")
    e(f"s_load_dwordx2 s[6:7], s[0:1], {KA['ws']}")
    e("v_and_b32 v1, 63, v0")
    e("v_lshrrev_b32 v2, 6, v0")
    e("v_readfirstlane_b32 s3, v2")
    e("v_and_b32 v3, 15, v1")
    e("v_lshrrev_b32 v4, 4, v1")
    e("s_mul_i32 s12, s2, 20480")
    e("s_mul_i32 s13, s3, 320")
    e("s_add_u32 s12, s12, s13")
    e("v_mul_u32_u24 v5, 1280, v3")
    e("v_lshl_add_u32 v5, v4, 4, v5")
    e("v_lshlrev_b32 v6, 4, v1")
    e("s_waitcnt lgkmcnt(0)")
    srd_from(k, 16, 4, NBYTES['x'])
    srd_from(k, 20, 8, NBYTES['wk'])
    srd_from(k, 24, 10, NBYTES['wv'])
    srd_from(k, 28, 6, XN_BYTES, XN_OFF)
    srd_from(k, 32, 6, KV_BYTES, KV_OFF)
    X = 16
    for i in range(5):
        e(f"buffer_load_dwordx4 {vr(X+4*i,4)}, v5, s[16:19], s12 offen offset:{64*i}")
    e("s_mul_i32 s14, s3, 6400")
    e("s_mul_i32 s15, s3, 14336")
    for m, srd in ((0, 20), (1, 24)):
        for j in range(7):
            if j % 4 == 0:
                e(f"s_add_u32 s36, s15, {m*7168 + j*1024}")
                e(f"s_mov_b32 m0, s36")
                e(f"s_add_u32 s37, s14, {j*1024}")
            e(f"buffer_load_dwordx4 v6, s[{srd}:{srd+3}], s37 offen offset:{(j%4)*1024} lds")
    e("v_mov_b32 v8, 0\nv_mov_b32 v9, 0\nv_mov_b32 v10, 0\nv_mov_b32 v11, 0")
    e("s_mov_b32 s38, 0x3f803f80")
    e("s_waitcnt vmcnt(14)")
    for d in range(20):
        a = 8 + (d & 1); q = 10 + (d & 1)
        e(f"v_dot2_f32_bf16 v{a}, v{X+d}, s38, v{a}")
        e(f"v_dot2_f32_bf16 v{q}, v{X+d}, v{X+d}, v{q}")
    e("v_add_f32 v8, v8, v9\nv_add_f32 v9, v10, v11")
    for sw in ("v_permlane32_swap_b32", "v_permlane16_swap_b32"):
        e("v_mov_b32 v10, v8\nv_mov_b32 v11, v9")
        e(f"{sw} v8, v10\n{sw} v9, v11")
        e("v_add_f32 v8, v8, v10\nv_add_f32 v9, v9, v11")
    STAT = 57344; RED = STAT + 512
    e(f"s_lshl_b32 s39, s3, 7\ns_add_u32 s39, s39, {STAT}")
    e("v_lshl_add_u32 v12, v3, 3, s39")
    e("ds_write_b64 v12, v[8:9]")
    e(f"v_lshlrev_b32 v12, 3, v3")
    e("s_waitcnt lgkmcnt(0)\ns_barrier")
    for w in range(4):
        e(f"ds_read_b64 {vr(36+2*w,2)}, v12 offset:{STAT+128*w}")
    e("s_waitcnt lgkmcnt(0)")
    e("v_add_f32 v8, v36, v38\nv_add_f32 v9, v37, v39\nv_add_f32 v10, v40, v42\nv_add_f32 v11, v41, v43")
    e("v_add_f32 v8, v8, v10\nv_add_f32 v9, v9, v11")
    inv = hex(f32bits(1.0/640))
    e(f"v_mul_f32 v8, {inv}, v8\nv_mul_f32 v9, {inv}, v9")
    e("v_fma_f32 v9, -v8, v8, v9")
    e("v_max_f32 v9, 0, v9")
    e("v_cvt_pk_bf16_f32 v10, v8, v9")
    e("v_lshlrev_b32 v8, 16, v10")
    e("v_and_b32 v9, 0xffff0000, v10")
    e(f"v_add_f32 v9, {hex(f32bits(1e-5))}, v9")
    e("v_cvt_pk_bf16_f32 v9, v9, v9\nv_and_b32 v9, 0xffff0000, v9")
    e("v_sqrt_f32 v9, v9")
    e("v_cvt_pk_bf16_f32 v9, v9, v9\nv_and_b32 v9, 0xffff0000, v9")
    e("v_rcp_f32 v10, v9")
    for d in range(20):
        t = 36 + 2*(d & 3)
        e(f"v_lshlrev_b32 v{t}, 16, v{X+d}")
        e(f"v_and_b32 v{t+1}, 0xffff0000, v{X+d}")
        e(f"v_sub_f32 v{t}, v{t}, v8\nv_sub_f32 v{t+1}, v{t+1}, v8")
        e(f"v_cvt_pk_bf16_f32 v{X+d}, v{t}, v{t+1}")
        e(f"v_lshlrev_b32 v{t}, 16, v{X+d}")
        e(f"v_and_b32 v{t+1}, 0xffff0000, v{X+d}")
        e(f"v_mul_f32 v{t}, v{t}, v10\nv_mul_f32 v{t+1}, v{t+1}, v10")
        e(f"v_cvt_pk_bf16_f32 v{X+d}, v{t}, v{t+1}")
    e("s_lshr_b32 s40, s2, 1\ns_mul_i32 s41, s40, 40960")
    e("s_and_b32 s42, s2, 1")
    e("s_lshl_b32 s43, s42, 8\ns_add_u32 s41, s41, s43")
    e("s_mul_i32 s43, s3, 10240\ns_add_u32 s41, s41, s43")
    e("v_lshlrev_b32 v13, 9, v4\nv_lshl_add_u32 v13, v3, 4, v13")
    for i in range(5):
        if i in (2, 4): e("s_add_u32 s41, s41, 4096")
        e(f"buffer_store_dwordx4 {vr(X+4*i,4)}, v13, s[28:31], s41 offen offset:{(i%2)*2048}")
    e("v_lshrrev_b32 v14, 2, v3\nv_lshl_add_u32 v14, v4, 3, v14\nv_mul_u32_u24 v14, 40, v14")
    e("v_and_b32 v15, 3, v1\nv_lshl_add_u32 v14, v15, 3, v14\nv_add_u32 v14, s15, v14")
    ACC = 44
    W = 60
    e("s_waitcnt vmcnt(5)")
    def rd(i, buf):
        for tl in range(4):
            m, n0 = tl >> 1, (tl & 1) * 16
            for u in range(2):
                e(f"ds_read_b64_tr_b16 {vr(W+16*buf+4*tl+2*u,2)}, v14 offset:{m*7168 + i*1280 + u*160 + n0*2}")
    rd(0, 0)
    for i in range(5):
        if i < 4:
            rd(i+1, (i+1) & 1)
            e("s_waitcnt lgkmcnt(8)")
        else:
            e("s_waitcnt lgkmcnt(0)")
        for tl in range(4):
            wf = vr(W+16*(i & 1)+4*tl, 4); xf = vr(X+4*i, 4); acc = vr(ACC+4*tl, 4)
            a, b = (wf, xf) if tl < 2 else (xf, wf)
            e(f"v_mfma_f32_16x16x32_bf16 {acc}, {a}, {b}, {'0' if i == 0 else acc}")
    e(f"s_lshl_b32 s39, s3, 12\ns_add_u32 s39, s39, {RED}\nv_add_u32 v12, s39, v6")
    for tl in range(4):
        e(f"ds_write_b128 v12, {vr(ACC+4*tl,4)} offset:{tl*1024}")
    e(f"s_lshl_b32 s39, s3, 10\ns_add_u32 s39, s39, {RED}\nv_add_u32 v12, s39, v6")
    e("s_waitcnt lgkmcnt(0)\ns_barrier")
    for w in range(4):
        e(f"ds_read_b128 {vr(W+4*w,4)}, v12 offset:{w*4096}")
    e("s_mul_i32 s44, s40, 3072")
    Lk1, Lv0, Lv1, Lst = (k.newlabel(x) for x in ("k1", "v0", "v1", "st"))
    e("v_lshl_add_u32 v7, s42, 4, v3")
    e("v_and_b32 v15, 1, v4\nv_lshrrev_b32 v2, 1, v4")
    e("s_waitcnt lgkmcnt(0)")
    for j in range(4):
        e(f"v_add_f32 v{W+j}, v{W+j}, v{W+4+j}\nv_add_f32 v{W+8+j}, v{W+8+j}, v{W+12+j}\nv_add_f32 v{W+j}, v{W+j}, v{W+8+j}")
    e(f"v_cvt_pk_bf16_f32 v8, v{W}, v{W+1}\nv_cvt_pk_bf16_f32 v9, v{W+2}, v{W+3}")
    e(f"s_cmp_eq_u32 s3, 1\ns_cbranch_scc1 {Lk1}")
    e(f"s_cmp_eq_u32 s3, 2\ns_cbranch_scc1 {Lv0}")
    e(f"s_cmp_eq_u32 s3, 3\ns_cbranch_scc1 {Lv1}")
    e("v_lshl_add_u32 v12, v2, 5, v7\nv_lshlrev_b32 v12, 4, v12\nv_lshl_add_u32 v12, v15, 3, v12")
    e(f"s_branch {Lst}")
    k.label(Lk1)
    e("v_lshlrev_b32 v12, 3, v7\nv_add_u32 v12, 1024, v12")
    e("v_cmp_ne_u32 vcc, 0, v4\nv_mov_b32 v13, 0x7fffffff\nv_cndmask_b32 v12, v12, v13, vcc")
    e(f"s_branch {Lst}")
    k.label(Lv1)
    e("v_add_u32 v3, 16, v3")
    e("v_cmp_eq_u32 vcc, 20, v3\nv_mov_b32 v13, 0x3f803f80\nv_cndmask_b32 v8, v8, v13, vcc\nv_cndmask_b32 v9, v9, v13, vcc")
    e("v_cmp_lt_u32 vcc, 20, v3\nv_mov_b32 v13, 0x1000000\nv_cndmask_b32 v3, v3, v13, vcc")
    k.label(Lv0)
    e("s_mul_i32 s45, s42, 768\ns_add_u32 s45, s45, 1536")
    e("v_mul_u32_u24 v12, 384, v15\nv_lshl_add_u32 v12, v3, 4, v12\nv_lshl_add_u32 v12, v2, 3, v12\nv_add_u32 v12, s45, v12")
    k.label(Lst)
    e("buffer_store_dwordx2 v[8:9], v12, s[32:35], s44 offen")
    k.label(L_end)
    e("s_endpgm")
    k.lds = RED + 16384
    k.grid = 128; k.block = 256
    return k
```

```python
from common import *

QSCALE = (20 ** -0.5) * math.log2(math.e)
OFFS = 40.0

def gen_attn_body(k, wg="s2"):
    e = k.e
    KVSLOT = 24576
    QB = KVSLOT
    QW = 64*160; QS = QW + 8192
    e(f"s_load_dwordx2 s[4:5], s[0:1], {KA['ws']}")
    e(f"s_load_dwordx2 s[6:7], s[0:1], {KA['wq']}")
    e("v_and_b32 v1, 63, v0\nv_lshrrev_b32 v2, 6, v0\nv_readfirstlane_b32 s3, v2")
    e(f"s_lshr_b32 s8, {wg}, 3\ns_and_b32 s9, {wg}, 7")
    e("s_lshr_b32 s10, s3, 1\ns_and_b32 s11, s3, 1")
    e("v_lshlrev_b32 v2, 4, v1")
    e("v_mul_u32_u24 v3, 205, v1\nv_lshrrev_b32 v3, 11, v3")
    e("v_mul_u32_u24 v4, 10, v3\nv_sub_u32 v4, v1, v4")
    e("v_mul_u32_u24 v3, 1280, v3\nv_lshl_add_u32 v3, v4, 4, v3")
    e("s_waitcnt lgkmcnt(0)")
    srd_from(k, 16, 4, XN_BYTES, XN_OFF)
    srd_from(k, 20, 6, NBYTES['wq'])
    srd_from(k, 24, 4, KV_BYTES, KV_OFF)
    srd_from(k, 28, 4, AF_BYTES, AF_OFF)
    e("s_mul_i32 s12, s3, 10240\ns_mul_i32 s32, s9, 160\ns_add_u32 s12, s12, s32")
    e("s_lshr_b32 s32, s3, 2\ns_lshl_b32 s33, s8, 1\ns_add_u32 s32, s32, s33\ns_mul_i32 s13, s32, 40960")
    e("s_and_b32 s32, s3, 3\ns_lshl_b32 s32, s32, 10\ns_add_u32 s13, s13, s32")
    e(f"s_mul_i32 s14, s3, 1280\ns_lshl_b32 s15, s3, 10")
    e("s_mov_b32 s34, -1\ns_mov_b32 s35, 0xff")
    def q_issue(c):
        sb = QB + (c % 3) * QS
        e(f"s_add_u32 m0, s15, {sb + QW}")
        e(f"s_add_u32 s32, s13, {c*4096}")
        e(f"buffer_load_dwordx4 v2, s[16:19], s32 offen lds")
        e("s_mov_b64 exec, s[34:35]")
        for u in range(2):
            e(f"s_add_u32 m0, s14, {sb + u*640}")
            e(f"s_add_u32 s32, s12, {(64*c + 4*u)*1280}")
            e(f"buffer_load_dwordx4 v3, s[20:23], s32 offen lds")
        e("s_mov_b64 exec, -1")
    e("s_mul_i32 s36, s3, 3072")
    def kv_issue(chunk_soff, slot_base):
        e(f"s_add_u32 m0, s36, {slot_base}")
        e(f"s_add_u32 s32, s36, {chunk_soff}")
        for j in range(3):
            e(f"buffer_load_dwordx4 v2, s[24:27], s32 offen offset:{j*1024} lds")
    q_issue(0); q_issue(1)
    kv_issue(0, 0)
    e("v_lshrrev_b32 v6, 5, v1")
    e("v_bfe_u32 v7, v1, 2, 2\nv_lshl_add_u32 v7, v6, 3, v7\nv_mul_u32_u24 v4, 160, v7")
    e("v_and_b32 v7, 1, v1\nv_lshlrev_b32 v7, 4, v7")
    e("v_bfe_u32 v8, v1, 1, 1\nv_lshl_add_u32 v7, v8, 3, v7")
    e("v_and_b32 v8, 16, v1\nv_cmp_ne_u32 vcc, 0, v8\nv_mov_b32 v8, 32\nv_cndmask_b32 v7, v7, v8, vcc")
    e("v_add_u32 v4, v4, v7\ns_mul_i32 s32, s10, 40\nv_add_u32 v4, s32, v4")
    e(f"v_add_u32 v4, {QB}, v4")
    e(f"s_lshl_b32 s32, s11, 12\ns_add_u32 s32, s32, {QB + QW}\nv_add_u32 v5, s32, v2")
    Q1, Q2, O, S0, S1, P, KL, KH, V0, V1 = 8+8, 12+8, 24, 40, 56, 72, 80, 84, 88, 92
    Q1, Q2 = 16, 20
    FA, FB = 72, 88
    QA = S0
    for c in range(10):
        if c == 0: e("s_waitcnt vmcnt(6)")
        elif c == 1: e("s_waitcnt vmcnt(6)")
        elif c < 9: e("s_waitcnt vmcnt(3)")
        else: e("s_waitcnt vmcnt(0)")
        e("s_barrier")
        if c + 2 < 10: q_issue(c + 2)
        so = (c % 3) * QS
        for ks in range(4):
            for u in range(2):
                e(f"ds_read_b64_tr_b16 {vr(FA+4*ks+2*u,2)}, v4 offset:{so + (16*ks + 4*u)*160}")
            e(f"ds_read_b128 {vr(FB+4*ks,4)}, v5 offset:{so + ks*1024}")
        for ks in range(4):
            e(f"s_waitcnt lgkmcnt({9 - 3*ks})")
            e(f"v_mfma_f32_32x32x16_bf16 {vr(QA,16)}, {vr(FA+4*ks,4)}, {vr(FB+4*ks,4)}, {'0' if (c == 0 and ks == 0) else vr(QA,16)}")
    e("s_barrier")
    kv_issue(KVSLOT, KVSLOT)
    e(f"s_mov_b32 s33, {hex(f32bits(QSCALE))}")
    for j in range(6):
        t = S1 + 2*(j & 1)
        dst = Q1 + j
        e(f"v_cvt_pk_bf16_f32 v{dst}, v{QA+2*j}, v{QA+2*j+1}")
        e(f"v_lshlrev_b32 v{t}, 16, v{dst}\nv_and_b32 v{t+1}, 0xffff0000, v{dst}")
        e(f"v_mul_f32 v{t}, s33, v{t}\nv_mul_f32 v{t+1}, s33, v{t+1}")
        e(f"v_cvt_pk_bf16_f32 v{dst}, v{t}, v{t+1}")
    e("v_cmp_ne_u32 vcc, 0, v6")
    e(f"v_cndmask_b32 v{Q2}, v{Q2}, 0, vcc\nv_cndmask_b32 v{Q2+1}, v{Q2+1}, 0, vcc".replace(f"v{Q2}, v{Q2}, 0, vcc", f"v{Q2}, v{Q2}, 0, vcc"))
    e(f"v_mov_b32 v{Q2+2}, 0\nv_mov_b32 v{Q2+3}, 0")
    e(f"v_mov_b32 v{KH+2}, 0x3f80\nv_mov_b32 v{KH+3}, 0")
    AKL, AKH, AV = 8, 9, 10
    BKH, BV = 11, 12
    e(f"v_and_b32 v7, 31, v1\nv_lshlrev_b32 v{BKH}, 3, v7\nv_add_u32 v{BKH}, 1024, v{BKH}")
    e(f"v_mul_u32_u24 v{BV}, 24, v6\nv_add_u32 v{BV}, v{BV}, v7")
    e("v_cmp_le_u32 vcc, 28, v7\nv_cndmask_b32 v13, 0, 1, vcc\nv_xor_b32 v13, v13, v6\nv_mul_u32_u24 v13, 24, v13\nv_add_u32 v13, 20, v13")
    e(f"v_cmp_le_u32 vcc, 20, v7\nv_cndmask_b32 v{BV}, v{BV}, v13, vcc")
    e(f"v_lshlrev_b32 v{BV}, 4, v{BV}\nv_add_u32 v{BV}, 1536, v{BV}")
    MX = 13
    for t in range(4):
        e(f"ds_read_b128 {vr(KL,4)}, v2 offset:{t*3072}")
        e(f"ds_read_b64 {vr(KH,2)}, v{BKH} offset:{t*3072}")
        e("s_waitcnt lgkmcnt(0)")
        S = S0 if t % 2 == 0 else S1
        e(f"v_mfma_f32_32x32x16_bf16 {vr(S,16)}, {vr(KL,4)}, {vr(Q1,4)}, 0")
        e(f"v_mfma_f32_32x32x16_bf16 {vr(S,16)}, {vr(KH,4)}, {vr(Q2,4)}, {vr(S,16)}")
        if t == 0:
            e(f"v_max3_f32 v{MX}, v{S}, v{S+1}, v{S+2}\nv_max_f32 v{MX}, v{MX}, v{S+3}")
            rng = range(4, 16, 2)
        else:
            rng = range(0, 16, 2)
        for j in rng:
            e(f"v_max3_f32 v{MX}, v{MX}, v{S+j}, v{S+j+1}")
    e(f"v_mov_b32 v14, v{MX}\nv_permlane32_swap_b32 v{MX}, v14\nv_max_f32 v{MX}, v{MX}, v14")
    e(f"v_add_f32 v{MX}, {hex(f32bits(OFFS))}, v{MX}")
    e(f"v_cvt_pk_bf16_f32 v{MX}, -v{MX}, 0")
    e("v_cmp_ne_u32 vcc, 0, v6")
    e(f"v_cndmask_b32 v{Q2+2}, v{MX}, 0, vcc")
    for j in range(16): e(f"v_mov_b32 v{O+j}, 0")
    for j in range(4): e(f"v_mov_b32 v{P+4+j}, 0\nv_mov_b32 v{V1+j}, 0")
    e(f"ds_read_b128 {vr(KL,4)}, v2\nds_read_b64 {vr(KH,2)}, v{BKH}\ns_waitcnt lgkmcnt(0)")
    e(f"v_mfma_f32_32x32x16_bf16 {vr(S0,16)}, {vr(KL,4)}, {vr(Q1,4)}, 0")
    e(f"v_mfma_f32_32x32x16_bf16 {vr(S0,16)}, {vr(KH,4)}, {vr(Q2,4)}, {vr(S0,16)}")
    e(f"ds_read_b128 {vr(KL,4)}, v2 offset:3072\nds_read_b64 {vr(KH,2)}, v{BKH} offset:3072")
    e(f"ds_read_b128 {vr(V0,4)}, v{BV}")
    e(f"v_mov_b32 v{AKL}, v2\nv_mov_b32 v{AKH}, v{BKH}\nv_mov_b32 v{AV}, v{BV}")
    e("s_waitcnt lgkmcnt(0)")
    e(f"s_mov_b32 s40, 0\ns_mov_b32 s41, {KVSLOT}\ns_mov_b32 s42, {2*KVSLOT}\ns_mov_b32 s43, {2*KVSLOT}")
    Lloop = k.newlabel("att")
    k.label(Lloop, 6)
    def softmax4(S, base, pdst):
        for j in range(4): e(f"v_exp_f32 v{S+base+j}, v{S+base+j}")
        e(f"v_cvt_pk_bf16_f32 v{pdst}, v{S+base}, v{S+base+1}")
        e(f"v_cvt_pk_bf16_f32 v{pdst+1}, v{S+base+2}, v{S+base+3}")
    for jj in range(8):
        Sc, Sn = (S0, S1) if jj % 2 == 0 else (S1, S0)
        if jj == 4:
            e("s_waitcnt vmcnt(0)\ns_barrier")
            kv_issue("s43", "s42")
        if jj == 6:
            e(f"v_add_u32 v{AKL}, s41, v2\nv_add_u32 v{AKH}, s41, v{BKH}")
        ko = ((jj + 2) % 8) * 3072
        e("s_waitcnt lgkmcnt(2)")
        e(f"v_mfma_f32_32x32x16_bf16 {vr(Sn,16)}, {vr(KL,4)}, {vr(Q1,4)}, 0")
        e(f"ds_read_b128 {vr(KL,4)}, v{AKL} offset:{ko}")
        softmax4(Sc, 0, P)
        e(f"v_mfma_f32_32x32x16_bf16 {vr(Sn,16)}, {vr(KH,4)}, {vr(Q2,4)}, {vr(Sn,16)}")
        e(f"ds_read_b64 {vr(KH,2)}, v{AKH} offset:{ko}")
        softmax4(Sc, 4, P+2)
        e("s_waitcnt lgkmcnt(2)")
        e(f"v_mfma_f32_32x32x16_bf16 {vr(O,16)}, {vr(V1,4)}, {vr(P+4,4)}, {vr(O,16)}")
        e(f"ds_read_b128 {vr(V1,4)}, v{AV} offset:{jj*3072 + 768}")
        softmax4(Sc, 8, P+4)
        if jj == 7:
            e(f"v_add_u32 v{AV}, s41, v{BV}")
        e(f"v_mfma_f32_32x32x16_bf16 {vr(O,16)}, {vr(V0,4)}, {vr(P,4)}, {vr(O,16)}")
        e(f"ds_read_b128 {vr(V0,4)}, v{AV} offset:{((jj+1)%8)*3072}")
        softmax4(Sc, 12, P+6)
    e(f"s_mov_b32 s41, s42\ns_add_u32 s42, s42, {KVSLOT}\ns_cmp_eq_u32 s42, {3*KVSLOT}\ns_cselect_b32 s42, 0, s42")
    e(f"s_add_u32 s43, s43, {KVSLOT}")
    e(f"s_add_u32 s40, s40, 1\ns_cmp_lt_u32 s40, 8\ns_cbranch_scc1 {Lloop}")
    e("s_waitcnt lgkmcnt(0)")
    e(f"v_mfma_f32_32x32x16_bf16 {vr(O,16)}, {vr(V1,4)}, {vr(P+4,4)}, {vr(O,16)}")
    e("s_lshl_b32 s32, s9, 2\ns_add_u32 s32, s32, s10\ns_mul_i32 s32, s32, 20")
    e(f"s_lshl_b32 s33, s8, 1\ns_add_u32 s33, s33, s11\ns_mul_i32 s33, s33, {136*1024}")
    e("v_and_b32 v7, 31, v1\nv_lshlrev_b32 v7, 4, v7")
    for j in range(3):
        a = S0 + j
        e(f"v_lshl_add_u32 v{a}, v6, 2, s32\nv_add_u32 v{a}, {8*j}, v{a}")
        e(f"v_lshrrev_b32 v{S1}, 3, v{a}\nv_lshl_add_u32 v{S1}, v{S1}, 9, v7")
        e(f"v_and_b32 v{a}, 4, v{a}\nv_lshl_add_u32 v{a}, v{a}, 1, v{S1}")
    e(f"v_cmp_ne_u32 vcc, 0, v6\nv_mov_b32 v{S1}, 0x7fffffff\nv_cndmask_b32 v{S0+2}, v{S0+2}, v{S1}, vcc")
    e(f"v_rcp_f32 v{S1+1}, v{O+12}")
    for j in range(12): e(f"v_mul_f32 v{O+j}, v{O+j}, v{S1+1}")
    for j in range(6): e(f"v_cvt_pk_bf16_f32 v{P+j}, v{O+2*j}, v{O+2*j+1}")
    for j in range(3):
        e(f"buffer_store_dwordx2 {vr(P+2*j,2)}, v{S0+j}, s[28:31], s33 offen")
    e("s_endpgm")

def gen_k1a(name="k1a_kernel"):
    k = Kernel(name)
    L = k.newlabel("go")
    k.e(f"s_cmp_lt_u32 s2, 256\ns_cbranch_scc1 {L}\ns_endpgm")
    k.label(L)
    gen_attn_body(k)
    k.lds = 81920; k.grid = 256; k.block = 512
    return k
```

```python
from common import *

def gen_gateup_body(k, wg="s2", end=True):
    e = k.e
    SLOT = 20480; NS = 4
    e(f"s_load_dwordx2 s[4:5], s[0:1], {KA['ws']}")
    e(f"s_load_dwordx4 s[8:11], s[0:1], {KA['wg']}")
    e("v_and_b32 v1, 63, v0\nv_lshrrev_b32 v2, 6, v0\nv_readfirstlane_b32 s3, v2")
    e(f"s_and_b32 s6, {wg}, 15\ns_lshr_b32 s7, {wg}, 4")
    e("v_lshlrev_b32 v2, 4, v1")
    e("v_mul_u32_u24 v3, 171, v1\nv_lshrrev_b32 v3, 11, v3")
    e("v_mul_u32_u24 v4, 12, v3\nv_sub_u32 v4, v1, v4")
    e("v_mul_u32_u24 v3, 3072, v3\nv_xor_b32 v5, 2, v4")
    e("v_lshl_add_u32 v4, v4, 4, v3\nv_lshl_add_u32 v5, v5, 4, v3")
    e("s_waitcnt lgkmcnt(0)")
    srd_from(k, 16, 4, XN_BYTES, XN_OFF)
    srd_from(k, 20, 8, NBYTES['wg'])
    srd_from(k, 24, 10, NBYTES['wu'])
    srd_from(k, 28, 4, AF_BYTES, AF_OFF)
    e("s_mul_i32 s12, s3, 12288\ns_mul_i32 s32, s6, 192\ns_add_u32 s12, s12, s32")
    e("s_lshr_b32 s32, s3, 1\ns_lshl_b32 s33, s7, 2\ns_add_u32 s32, s32, s33\ns_mul_i32 s13, s32, 40960")
    e("s_and_b32 s32, s3, 1\ns_lshl_b32 s32, s32, 10\ns_add_u32 s13, s13, s32")
    e("s_mul_i32 s14, s3, 768\ns_lshl_b32 s15, s3, 10\ns_add_u32 s15, s15, 12288")
    e("s_mov_b32 s34, -1\ns_mov_b32 s35, 0xffff")
    e("s_mov_b32 s36, 0")
    def issue():
        e("s_add_u32 m0, s15, s36")
        e("s_add_u32 s37, s14, s36")
        e("buffer_load_dwordx4 v2, s[16:19], s13 offen lds")
        e("s_mov_b64 exec, s[34:35]")
        e("s_mov_b32 m0, s37")
        e("s_add_u32 s13, s13, 2048")
        e("buffer_load_dwordx4 v4, s[20:23], s12 offen lds")
        e("s_add_u32 m0, s37, 6144")
        e(f"s_add_u32 s36, s36, {SLOT}")
        e("buffer_load_dwordx4 v5, s[24:27], s12 offen lds")
        e("s_mov_b64 exec, -1")
        e(f"s_add_u32 s12, s12, {32*3072}")
        e(f"s_cmp_eq_u32 s36, {NS*SLOT}\ns_cselect_b32 s36, 0, s36")
    for c in range(NS - 1): issue()
    e("v_lshrrev_b32 v6, 5, v1\nv_bfe_u32 v7, v1, 2, 2\nv_lshl_add_u32 v7, v6, 3, v7\nv_mul_u32_u24 v7, 192, v7")
    e("v_and_b32 v8, 1, v1\nv_lshl_add_u32 v7, v8, 4, v7\nv_bfe_u32 v8, v1, 1, 1\nv_lshl_add_u32 v7, v8, 3, v7")
    e("v_bfe_u32 v8, v1, 4, 1\nv_mul_u32_u24 v9, 6144, v8\nv_add_u32 v7, v7, v9")
    e("s_lshr_b32 s38, s3, 2\ns_mul_i32 s38, s38, 3")
    for a in range(3):
        e(f"s_add_u32 s32, s38, {a}\nv_xor_b32 v9, s32, v8\nv_lshl_add_u32 v{10+a}, v9, 5, v7")
    e("s_and_b32 s39, s3, 3\ns_lshl_b32 s32, s39, 11\ns_add_u32 s32, s32, 12288\nv_add_u32 v13, s32, v2")
    ACC = 32; FA = 80; FB = 104
    for j in range(48): e(f"v_mov_b32 v{ACC+j}, 0")
    e("s_mov_b32 s40, 0\ns_mov_b32 s41, 0")
    L = k.newlabel("gu")
    k.label(L, 6)
    e(f"s_waitcnt vmcnt({3*(NS-2)})\ns_barrier")
    e(f"s_cmp_ge_u32 s40, {20-(NS-1)}\ns_cselect_b32 s13, 0x7ff00000, s13")
    issue()
    for a in range(3): e(f"v_add_u32 v{14+a}, s41, v{10+a}")
    e("v_add_u32 v17, s41, v13")
    for ks in range(2):
        e(f"ds_read_b128 {vr(FB+4*ks,4)}, v17 offset:{ks*1024}")
        for a in range(3):
            for u in range(2):
                e(f"ds_read_b64_tr_b16 {vr(FA+12*ks+4*a+2*u,2)}, v{14+a} offset:{(16*ks+4*u)*192}")
    n = 14
    for ks in range(2):
        for a in range(3):
            done = 7*ks + 1 + 2*(a+1)
            e(f"s_waitcnt lgkmcnt({14-done})")
            e(f"v_mfma_f32_32x32x16_bf16 {vr(ACC+16*a,16)}, {vr(FA+12*ks+4*a,4)}, {vr(FB+4*ks,4)}, {vr(ACC+16*a,16)}")
    e(f"s_add_u32 s41, s41, {SLOT}\ns_cmp_eq_u32 s41, {NS*SLOT}\ns_cselect_b32 s41, 0, s41")
    e(f"s_add_u32 s40, s40, 1\ns_cmp_lt_u32 s40, 20\ns_cbranch_scc1 {L}")
    e(f"s_mov_b32 s33, {hex(f32bits(-math.log2(math.e)))}")
    e(f"s_lshl_b32 s32, s7, 2\ns_add_u32 s32, s32, s39\ns_mul_i32 s32, s32, 136\ns_mul_i32 s42, s6, 6")
    e("s_add_u32 s32, s32, s42\ns_add_u32 s32, s32, s38\ns_add_u32 s32, s32, 40\ns_lshl_b32 s32, s32, 10")
    T = 80
    for a in range(3):
        g = ACC + 16*a; u = g + 8
        for j in range(8): e(f"v_mul_f32 v{T+j}, s33, v{g+j}")
        for j in range(8): e(f"v_exp_f32 v{T+j}, v{T+j}")
        for j in range(8): e(f"v_mul_f32 v{g+j}, v{g+j}, v{u+j}")
        for j in range(8): e(f"v_add_f32 v{T+j}, 1.0, v{T+j}")
        for j in range(8): e(f"v_rcp_f32 v{T+j}, v{T+j}")
        for j in range(8): e(f"v_mul_f32 v{g+j}, v{g+j}, v{T+j}")
        for j in range(4): e(f"v_cvt_pk_bf16_f32 v{u+j}, v{g+2*j}, v{g+2*j+1}")
        e(f"buffer_store_dwordx4 {vr(u,4)}, v2, s[28:31], s32 offen offset:{a*1024}")
    if end: e("s_endpgm")

def gen_k1b(name="k1b_kernel"):
    k = Kernel(name)
    L = k.newlabel("go")
    k.e(f"s_cmp_lt_u32 s2, 256\ns_cbranch_scc1 {L}\ns_endpgm")
    k.label(L)
    gen_gateup_body(k)
    k.lds = 81920; k.grid = 256; k.block = 512
    return k
```

```python
from common import *

def gen_k2(name="k2_kernel"):
    k = Kernel(name); e = k.e
    L = k.newlabel("go")
    e(f"s_cmp_lt_u32 s2, 256\ns_cbranch_scc1 {L}\ns_endpgm")
    k.label(L)
    SLOT = 20480; NS = 4; WB = 12288; NCH = 34
    e(f"s_load_dwordx2 s[4:5], s[0:1], {KA['ws']}")
    e(f"s_load_dwordx2 s[6:7], s[0:1], {KA['wo']}")
    e(f"s_load_dwordx4 s[8:11], s[0:1], {KA['wd']}")
    e(f"s_load_dwordx2 s[44:45], s[0:1], {KA['x']}")
    e("v_and_b32 v1, 63, v0\nv_lshrrev_b32 v2, 6, v0\nv_readfirstlane_b32 s3, v2")
    e("s_lshr_b32 s46, s2, 3\ns_and_b32 s47, s2, 7")
    e("v_lshlrev_b32 v2, 4, v1")
    e("v_mul_u32_u24 v3, 171, v1\nv_lshrrev_b32 v3, 11, v3")
    e("v_mul_u32_u24 v4, 12, v3\nv_sub_u32 v4, v1, v4")
    e("v_mul_u32_u24 v3, 1280, v3\nv_lshl_add_u32 v3, v4, 4, v3")
    e("s_waitcnt lgkmcnt(0)")
    srd_from(k, 16, 4, AF_BYTES, AF_OFF)
    srd_from(k, 20, 6, NBYTES['wo'])
    srd_from(k, 24, 10, NBYTES['out'])
    srd_from(k, 28, 44, NBYTES['x'])
    e("s_mul_i32 s48, s3, 10240\ns_mul_i32 s32, s47, 160\ns_add_u32 s48, s48, s32\ns_mov_b32 s12, s48")
    e(f"s_lshr_b32 s32, s3, 2\ns_lshl_b32 s33, s46, 1\ns_add_u32 s32, s32, s33\ns_mul_i32 s13, s32, {136*1024}")
    e("s_and_b32 s32, s3, 3\ns_lshl_b32 s32, s32, 10\ns_add_u32 s13, s13, s32")
    e(f"s_mul_i32 s14, s3, 1536\ns_lshl_b32 s15, s3, 10\ns_add_u32 s15, s15, {WB}")
    mask = sum(0x3ff << (12*i) for i in range(4))
    e(f"s_mov_b32 s34, {hex(mask & 0xffffffff)}\ns_mov_b32 s35, {hex(mask >> 32)}")
    e("s_mov_b32 s36, 0")
    def issue():
        e("s_add_u32 m0, s15, s36")
        e("s_add_u32 s37, s14, s36")
        e("buffer_load_dwordx4 v2, s[16:19], s13 offen lds")
        e("s_mov_b64 exec, s[34:35]")
        e("s_mov_b32 m0, s37")
        e("s_add_u32 s13, s13, 4096")
        e("buffer_load_dwordx4 v3, s[20:23], s12 offen lds")
        e("s_add_u32 m0, s37, 768")
        e("s_add_u32 s38, s12, 5120")
        e("buffer_load_dwordx4 v3, s[20:23], s38 offen lds")
        e("s_mov_b64 exec, -1")
        e(f"s_add_u32 s12, s12, {64*1280}")
        e(f"s_add_u32 s36, s36, {SLOT}\ns_cmp_eq_u32 s36, {NS*SLOT}\ns_cselect_b32 s36, 0, s36")
    for c in range(NS - 1): issue()
    e("s_and_b32 s50, s3, 1\ns_lshr_b32 s51, s3, 1")
    e("v_lshrrev_b32 v6, 5, v1\nv_bfe_u32 v7, v1, 2, 2\nv_lshl_add_u32 v7, v6, 3, v7\ns_lshl_b32 s32, s51, 4\nv_add_u32 v7, s32, v7\nv_mul_u32_u24 v7, 192, v7")
    e("v_and_b32 v8, 1, v1\nv_bfe_u32 v9, v1, 1, 1\nv_bfe_u32 v12, v1, 4, 1")
    e("v_lshl_add_u32 v10, v8, 5, v7\nv_lshl_add_u32 v10, v9, 3, v10\nv_lshl_add_u32 v10, v12, 4, v10")
    e("v_lshl_add_u32 v11, v8, 4, v7\nv_lshl_add_u32 v11, v9, 3, v11\nv_add_u32 v11, 128, v11")
    e(f"s_lshl_b32 s32, s50, 2\ns_add_u32 s32, s32, s51\ns_lshl_b32 s32, s32, 10\ns_add_u32 s32, s32, {WB}\nv_add_u32 v13, s32, v2")
    ACC = 32; FA = 80; FB = 92
    for j in range(48): e(f"v_mov_b32 v{ACC+j}, 0")
    e("s_mov_b32 s40, 0\ns_mov_b32 s41, 0")
    Lp = k.newlabel("loop")
    k.label(Lp, 6)
    e(f"s_waitcnt vmcnt({3*(NS-2)})\ns_barrier")
    e(f"s_cmp_eq_u32 s40, {10-(NS-1)}")
    e(f"s_cselect_b32 s20, s8, s20\ns_cselect_b32 s21, s9, s21\ns_cselect_b32 s22, {hex(NBYTES['wd'])}, s22\ns_cselect_b32 s12, s48, s12")
    e(f"s_cmp_ge_u32 s40, {NCH-(NS-1)}\ns_cselect_b32 s13, 0x7ff00000, s13")
    issue()
    e("v_add_u32 v14, s41, v10\nv_add_u32 v15, s41, v11\nv_add_u32 v16, s41, v13")
    e(f"ds_read_b128 {vr(FB,4)}, v16")
    for a in range(3):
        for u in range(2):
            ad, off = ("v14", a*64) if a < 2 else ("v15", 0)
            e(f"ds_read_b64_tr_b16 {vr(FA+4*a+2*u,2)}, {ad} offset:{off + 4*u*192}")
    for a in range(3):
        e(f"s_waitcnt lgkmcnt({4-2*a})")
        e(f"v_mfma_f32_32x32x16_bf16 {vr(ACC+16*a,16)}, {vr(FA+4*a,4)}, {vr(FB,4)}, {vr(ACC+16*a,16)}")
    e(f"s_add_u32 s41, s41, {SLOT}\ns_cmp_eq_u32 s41, {NS*SLOT}\ns_cselect_b32 s41, 0, s41")
    e(f"s_add_u32 s40, s40, 1\ns_cmp_lt_u32 s40, {NCH}\ns_cbranch_scc1 {Lp}")
    e("s_lshl_b32 s32, s46, 1\ns_add_u32 s32, s32, s50\ns_mul_i32 s32, s32, 40960\ns_mul_i32 s33, s47, 160\ns_add_u32 s52, s32, s33")
    e("v_and_b32 v7, 31, v1\nv_mul_u32_u24 v7, 1280, v7")
    e("v_lshl_add_u32 v9, v6, 4, v7\nv_add_u32 v9, 128, v9")
    e("s_lshr_b32 s32, s51, 1\ns_lshl_b32 s32, s32, 6\ns_and_b32 s33, s51, 1\ns_lshl_b32 s33, s33, 4\ns_add_u32 s32, s32, s33")
    e("v_lshl_add_u32 v8, v6, 5, v7\nv_add_u32 v8, s32, v8")
    e("s_waitcnt vmcnt(0)")
    e(f"buffer_load_dwordx4 {vr(20,4)}, v8, s[28:31], s52 offen")
    e(f"buffer_load_dwordx4 {vr(24,4)}, v9, s[28:31], s52 offen")
    e("s_barrier")
    e("s_mul_i32 s32, s3, 10240\nv_add_u32 v14, s32, v2")
    for q in range(10):
        e(f"ds_write_b128 v14, {vr(ACC+4*q,4)} offset:{q*1024}")
    e("s_mul_i32 s32, s50, 10240\ns_lshl_b32 s33, s51, 11\ns_add_u32 s33, s33, s32\nv_add_u32 v15, s33, v2\nv_add_u32 v16, s32, v2")
    e("s_waitcnt lgkmcnt(0)\ns_barrier")
    def fin(addr, qoff, xr, voff):
        for w in range(4):
            for hq in range(2):
                e(f"ds_read_b128 {vr(ACC+8*w+4*hq,4)}, {addr} offset:{w*20480 + qoff + hq*1024}")
        e("s_waitcnt lgkmcnt(0) vmcnt(0)")
        for j in range(8):
            e(f"v_add_f32 v{ACC+j}, v{ACC+j}, v{ACC+8+j}\nv_add_f32 v{ACC+16+j}, v{ACC+16+j}, v{ACC+24+j}")
        for j in range(4):
            e(f"v_lshlrev_b32 v{ACC+8+2*j}, 16, v{xr+j}\nv_and_b32 v{ACC+9+2*j}, 0xffff0000, v{xr+j}")
        for j in range(8):
            e(f"v_add_f32 v{ACC+j}, v{ACC+j}, v{ACC+16+j}\nv_add_f32 v{ACC+j}, v{ACC+j}, v{ACC+8+j}")
        for j in range(4):
            e(f"v_cvt_pk_bf16_f32 v{xr+j}, v{ACC+2*j}, v{ACC+2*j+1}")
        e(f"buffer_store_dwordx4 {vr(xr,4)}, {voff}, s[24:27], s52 offen")
    fin("v15", 0, 20, "v8")
    Le = k.newlabel("end")
    e(f"s_cmp_lg_u32 s51, 0\ns_cbranch_scc1 {Le}")
    e("v_add_u32 v16, 8192, v16")
    fin("v16", 0, 24, "v9")
    k.label(Le)
    e("s_endpgm")
    k.lds = 81920; k.grid = 256; k.block = 512
    return k
```

```python
import sys, importlib
from common import *
HEAD = open("parallel_sum__grouped_kv_mqa__swiglu_ffn__prompt.s.ref").read().split("; Override launch")[0]
DOC = """; ---------------------------------------------------------------------------------------------------------
; ---------------------------------------------------------------------------------------------------------"""
def emit(kernels, path):
    out = [HEAD.rstrip("\n")]
    for k in kernels:
        if os.environ.get("PLAIN"): out.append(f"; @launch grid=({k.grid},1,1) block=({k.block},1,1) lds={k.lds}")
        else: out.append(f"; @launch kernel={k.name} grid=({k.grid},1,1) block=({k.block},1,1) lds={k.lds}")
    out.append('.amdgcn_target "amdgcn-amd-amdhsa--gfx950"\n.text')
    out.append(DOC)
    seen = []
    for k in kernels:
        if k in seen: continue
        seen.append(k)
        n = k.pad_hazards()
        errs = k.check_waits()
        for x in errs[:20]: print("WAIT-ERR", k.name, x)
        print(f"{k.name}: {sum(1 for i in k.items if isinstance(i, Ins))} instrs, padded {n} states, vgpr {k.maxreg('v')+1}, sgpr {k.maxreg('s')+1}")
        out.append(k.text())
    out.append('.section .rodata,"a"')
    for k in seen: out.append(k.descriptor())
    open(path, "w").write("\n".join(out))
if __name__ == "__main__":
    from k0 import gen_k0
    from k1a import gen_k1a
    from k1b import gen_k1b
    from k2 import gen_k2
    emit([gen_k0(), gen_k1a(), gen_k1b(), gen_k2()], sys.argv[1] if len(sys.argv) > 1 else "parallel_sum__grouped_kv_mqa__swiglu_ffn__prompt.s")
```

```python
from asmgen import *
import struct, math

KA = dict(x=0, wq=8, wk=16, wv=24, wo=32, bx=40, wg=48, wu=56, wd=64, out=72, dbg=80, ws=88)
NBYTES = dict(x=2048*640*2, wq=640*640*2, wk=640*20*2, wv=640*20*2, wo=640*640*2, wg=640*1536*2, wu=640*1536*2,
              wd=1536*640*2, out=2048*640*2)
XN_OFF = 0;            XN_BYTES = 64*40*1024
KV_OFF = 0x280000;     KV_BYTES = 64*3072
AF_OFF = 0x300000;     AF_BYTES = 64*136*1024

def f32bits(x): return struct.unpack("<I", struct.pack("<f", x))[0]

def srd_from(k, dst, src, nbytes, off=0):
    if off:
        k.e(f"s_add_u32 s{dst}, s{src}, {hex(off)}")
        k.e(f"s_addc_u32 s{dst+1}, s{src+1}, 0")
    else:
        k.e(f"s_mov_b32 s{dst}, s{src}")
        k.e(f"s_mov_b32 s{dst+1}, s{src+1}")
    k.e(f"s_mov_b32 s{dst+2}, {hex(nbytes)}")
    k.e(f"s_mov_b32 s{dst+3}, 0x20000")

import os
STAMPS = os.environ.get("STAMPS") == "1"
STAMP_OFF = 0x1000000
def stamp(k, i):
    if not STAMPS: return
    k.e(f"s_waitcnt lgkmcnt(0)\ns_memtime s[{70+2*i}:{71+2*i}]\ns_waitcnt lgkmcnt(0)")
    if i == 0: k.e("s_memrealtime s[96:97]\ns_waitcnt lgkmcnt(0)")
def stamp_dump(k, kid, n, wg="s2", wsp=4):
    if not STAMPS: return
    e = k.e
    e("s_waitcnt vmcnt(0) lgkmcnt(0)")
    e(f"s_memtime s[{70+2*n}:{71+2*n}]\ns_memrealtime s[98:99]\ns_waitcnt lgkmcnt(0)")
    e(f"s_lshl_b32 s64, {wg}, 4\ns_add_u32 s64, s64, s3\ns_lshl_b32 s64, s64, 6\ns_add_u32 s64, s64, {hex(STAMP_OFF + kid*0x100000)}")
    e(f"s_add_u32 s66, s{wsp}, s64\ns_addc_u32 s67, s{wsp+1}, 0")
    e("v_mov_b32 v0, 0")
    for i in range(n + 1):
        e(f"v_mov_b32 v1, s{70+2*i}\nglobal_store_dword v0, v1, s[66:67] offset:{4*i}")
    e("v_mov_b32 v1, s96\nglobal_store_dword v0, v1, s[66:67] offset:56")
    e("v_mov_b32 v1, s98\nglobal_store_dword v0, v1, s[66:67] offset:60")
```

```python
from common import *

def gen_k0(name="k0_kernel"):
    k = Kernel(name)
    e = k.e
    L_end = k.newlabel("end")
    e(f"s_cmp_ge_u32 s2, 128\ns_cbranch_scc1 {L_end}")
    stamp(k, 0)
    e(f"s_load_dwordx2 s[4:5], s[0:1], {KA['x']}")
    e(f"s_load_dwordx4 s[8:11], s[0:1], {KA['wk']}")
    e(f"s_load_dwordx2 s[6:7], s[0:1], {KA['ws']}")
    e("v_and_b32 v1, 63, v0")
    e("v_lshrrev_b32 v2, 6, v0")
    e("v_readfirstlane_b32 s3, v2")
    e("v_and_b32 v3, 15, v1")
    e("v_lshrrev_b32 v4, 4, v1")
    e("s_mul_i32 s12, s2, 20480")
    e("s_mul_i32 s13, s3, 320")
    e("s_add_u32 s12, s12, s13")
    e("v_mul_u32_u24 v5, 1280, v3")
    e("v_lshl_add_u32 v5, v4, 4, v5")
    e("v_lshlrev_b32 v6, 4, v1")
    e("s_waitcnt lgkmcnt(0)")
    srd_from(k, 16, 4, NBYTES['x'])
    srd_from(k, 20, 8, NBYTES['wk'])
    srd_from(k, 24, 10, NBYTES['wv'])
    srd_from(k, 28, 6, XN_BYTES, XN_OFF)
    srd_from(k, 32, 6, KV_BYTES, KV_OFF)
    X = 16
    for i in range(5):
        e(f"buffer_load_dwordx4 {vr(X+4*i,4)}, v5, s[16:19], s12 offen offset:{64*i}")
    e("s_mul_i32 s14, s3, 6400")
    e("s_mul_i32 s15, s3, 14336")
    for m, srd in ((0, 20), (1, 24)):
        for j in range(7):
            if j % 4 == 0:
                e(f"s_add_u32 s36, s15, {m*7168 + j*1024}")
                e(f"s_mov_b32 m0, s36")
                e(f"s_add_u32 s37, s14, {j*1024}")
            e(f"buffer_load_dwordx4 v6, s[{srd}:{srd+3}], s37 offen offset:{(j%4)*1024} lds")
    e("v_mov_b32 v8, 0\nv_mov_b32 v9, 0\nv_mov_b32 v10, 0\nv_mov_b32 v11, 0")
    e("s_mov_b32 s38, 0x3f803f80")
    e("s_waitcnt vmcnt(14)")
    stamp(k, 1)
    for d in range(20):
        a = 8 + (d & 1); q = 10 + (d & 1)
        e(f"v_dot2_f32_bf16 v{a}, v{X+d}, s38, v{a}")
        e(f"v_dot2_f32_bf16 v{q}, v{X+d}, v{X+d}, v{q}")
    e("v_add_f32 v8, v8, v9\nv_add_f32 v9, v10, v11")
    for sw in ("v_permlane32_swap_b32", "v_permlane16_swap_b32"):
        e("v_mov_b32 v10, v8\nv_mov_b32 v11, v9")
        e(f"{sw} v8, v10\n{sw} v9, v11")
        e("v_add_f32 v8, v8, v10\nv_add_f32 v9, v9, v11")
    STAT = 57344; RED = STAT + 512
    e(f"s_lshl_b32 s39, s3, 7\ns_add_u32 s39, s39, {STAT}")
    e("v_lshl_add_u32 v12, v3, 3, s39")
    e("ds_write_b64 v12, v[8:9]")
    e(f"v_lshlrev_b32 v12, 3, v3")
    e("s_waitcnt lgkmcnt(0)\ns_barrier")
    for w in range(4):
        e(f"ds_read_b64 {vr(36+2*w,2)}, v12 offset:{STAT+128*w}")
    e("s_waitcnt lgkmcnt(0)")
    e("v_add_f32 v8, v36, v38\nv_add_f32 v9, v37, v39\nv_add_f32 v10, v40, v42\nv_add_f32 v11, v41, v43")
    e("v_add_f32 v8, v8, v10\nv_add_f32 v9, v9, v11")
    inv = hex(f32bits(1.0/640))
    e(f"v_mul_f32 v8, {inv}, v8\nv_mul_f32 v9, {inv}, v9")
    e("v_fma_f32 v9, -v8, v8, v9")
    e("v_max_f32 v9, 0, v9")
    e("v_cvt_pk_bf16_f32 v10, v8, v9")
    e("v_lshlrev_b32 v8, 16, v10")
    e("v_and_b32 v9, 0xffff0000, v10")
    e(f"v_add_f32 v9, {hex(f32bits(1e-5))}, v9")
    e("v_cvt_pk_bf16_f32 v9, v9, v9\nv_and_b32 v9, 0xffff0000, v9")
    e("v_sqrt_f32 v9, v9")
    e("v_cvt_pk_bf16_f32 v9, v9, v9\nv_and_b32 v9, 0xffff0000, v9")
    e("v_rcp_f32 v10, v9")
    for d in range(20):
        t = 36 + 2*(d & 3)
        e(f"v_lshlrev_b32 v{t}, 16, v{X+d}")
        e(f"v_and_b32 v{t+1}, 0xffff0000, v{X+d}")
        e(f"v_sub_f32 v{t}, v{t}, v8\nv_sub_f32 v{t+1}, v{t+1}, v8")
        e(f"v_cvt_pk_bf16_f32 v{X+d}, v{t}, v{t+1}")
        e(f"v_lshlrev_b32 v{t}, 16, v{X+d}")
        e(f"v_and_b32 v{t+1}, 0xffff0000, v{X+d}")
        e(f"v_mul_f32 v{t}, v{t}, v10\nv_mul_f32 v{t+1}, v{t+1}, v10")
        e(f"v_cvt_pk_bf16_f32 v{X+d}, v{t}, v{t+1}")
    stamp(k, 2)
    e("s_lshr_b32 s40, s2, 1\ns_mul_i32 s41, s40, 40960")
    e("s_and_b32 s42, s2, 1")
    e("s_lshl_b32 s43, s42, 8\ns_add_u32 s41, s41, s43")
    e("s_mul_i32 s43, s3, 10240\ns_add_u32 s41, s41, s43")
    e("v_lshlrev_b32 v13, 9, v4\nv_lshl_add_u32 v13, v3, 4, v13")
    for i in range(5):
        if i in (2, 4): e("s_add_u32 s41, s41, 4096")
        e(f"buffer_store_dwordx4 {vr(X+4*i,4)}, v13, s[28:31], s41 offen offset:{(i%2)*2048}")
    e("v_lshrrev_b32 v14, 2, v3\nv_lshl_add_u32 v14, v4, 3, v14\nv_mul_u32_u24 v14, 40, v14")
    e("v_and_b32 v15, 3, v1\nv_lshl_add_u32 v14, v15, 3, v14\nv_add_u32 v14, s15, v14")
    ACC = 44
    W = 60
    e("s_waitcnt vmcnt(5)")
    def rd(i, buf):
        for tl in range(4):
            m, n0 = tl >> 1, (tl & 1) * 16
            for u in range(2):
                e(f"ds_read_b64_tr_b16 {vr(W+16*buf+4*tl+2*u,2)}, v14 offset:{m*7168 + i*1280 + u*160 + n0*2}")
    rd(0, 0)
    for i in range(5):
        if i < 4:
            rd(i+1, (i+1) & 1)
            e("s_waitcnt lgkmcnt(8)")
        else:
            e("s_waitcnt lgkmcnt(0)")
        for tl in range(4):
            wf = vr(W+16*(i & 1)+4*tl, 4); xf = vr(X+4*i, 4); acc = vr(ACC+4*tl, 4)
            a, b = (wf, xf) if tl < 2 else (xf, wf)
            e(f"v_mfma_f32_16x16x32_bf16 {acc}, {a}, {b}, {'0' if i == 0 else acc}")
    stamp(k, 3)
    e(f"s_lshl_b32 s39, s3, 12\ns_add_u32 s39, s39, {RED}\nv_add_u32 v12, s39, v6")
    for tl in range(4):
        e(f"ds_write_b128 v12, {vr(ACC+4*tl,4)} offset:{tl*1024}")
    e(f"s_lshl_b32 s39, s3, 10\ns_add_u32 s39, s39, {RED}\nv_add_u32 v12, s39, v6")
    e("s_waitcnt lgkmcnt(0)\ns_barrier")
    for w in range(4):
        e(f"ds_read_b128 {vr(W+4*w,4)}, v12 offset:{w*4096}")
    e("s_mul_i32 s44, s40, 3072")
    Lk1, Lv0, Lv1, Lst = (k.newlabel(x) for x in ("k1", "v0", "v1", "st"))
    e("v_lshl_add_u32 v7, s42, 4, v3")
    e("v_and_b32 v15, 1, v4\nv_lshrrev_b32 v2, 1, v4")
    e("s_waitcnt lgkmcnt(0)")
    for j in range(4):
        e(f"v_add_f32 v{W+j}, v{W+j}, v{W+4+j}\nv_add_f32 v{W+8+j}, v{W+8+j}, v{W+12+j}\nv_add_f32 v{W+j}, v{W+j}, v{W+8+j}")
    e(f"v_cvt_pk_bf16_f32 v8, v{W}, v{W+1}\nv_cvt_pk_bf16_f32 v9, v{W+2}, v{W+3}")
    e(f"s_cmp_eq_u32 s3, 1\ns_cbranch_scc1 {Lk1}")
    e(f"s_cmp_eq_u32 s3, 2\ns_cbranch_scc1 {Lv0}")
    e(f"s_cmp_eq_u32 s3, 3\ns_cbranch_scc1 {Lv1}")
    e("v_lshl_add_u32 v12, v2, 5, v7\nv_lshlrev_b32 v12, 4, v12\nv_lshl_add_u32 v12, v15, 3, v12")
    e(f"s_branch {Lst}")
    k.label(Lk1)
    e("v_lshlrev_b32 v12, 3, v7\nv_add_u32 v12, 1024, v12")
    e("v_cmp_ne_u32 vcc, 0, v4\nv_mov_b32 v13, 0x7fffffff\nv_cndmask_b32 v12, v12, v13, vcc")
    e(f"s_branch {Lst}")
    k.label(Lv1)
    e("v_add_u32 v3, 16, v3")
    e("v_cmp_eq_u32 vcc, 20, v3\nv_mov_b32 v13, 0x3f803f80\nv_cndmask_b32 v8, v8, v13, vcc\nv_cndmask_b32 v9, v9, v13, vcc")
    e("v_cmp_lt_u32 vcc, 20, v3\nv_mov_b32 v13, 0x1000000\nv_cndmask_b32 v3, v3, v13, vcc")
    k.label(Lv0)
    e("s_mul_i32 s45, s42, 768\ns_add_u32 s45, s45, 1536")
    e("v_mul_u32_u24 v12, 384, v15\nv_lshl_add_u32 v12, v3, 4, v12\nv_lshl_add_u32 v12, v2, 3, v12\nv_add_u32 v12, s45, v12")
    k.label(Lst)
    e("buffer_store_dwordx2 v[8:9], v12, s[32:35], s44 offen")
    stamp_dump(k, 0, 4, "s2", 6)
    k.label(L_end)
    e("s_endpgm")
    k.lds = RED + 16384
    k.grid = 128; k.block = 256
    return k
```

```python
from common import *

QSCALE = (20 ** -0.5) * math.log2(math.e)
OFFS = float(os.environ.get('OFFS', 40.0))

def gen_attn_body(k, wg="s2"):
    e = k.e
    KVSLOT = 24576
    QB = KVSLOT
    QW = 64*160; QS = QW + 8192
    stamp(k, 0)
    e(f"s_load_dwordx2 s[4:5], s[0:1], {KA['ws']}")
    e(f"s_load_dwordx2 s[6:7], s[0:1], {KA['wq']}")
    e("v_and_b32 v1, 63, v0\nv_lshrrev_b32 v2, 6, v0\nv_readfirstlane_b32 s3, v2")
    e(f"s_lshr_b32 s8, {wg}, 3\ns_and_b32 s9, {wg}, 7")
    e("s_lshr_b32 s10, s3, 1\ns_and_b32 s11, s3, 1")
    e("v_lshlrev_b32 v2, 4, v1")
    e("v_mul_u32_u24 v3, 205, v1\nv_lshrrev_b32 v3, 11, v3")
    e("v_mul_u32_u24 v4, 10, v3\nv_sub_u32 v4, v1, v4")
    e("v_mul_u32_u24 v3, 1280, v3\nv_lshl_add_u32 v3, v4, 4, v3")
    e("s_waitcnt lgkmcnt(0)")
    srd_from(k, 16, 4, XN_BYTES, XN_OFF)
    srd_from(k, 20, 6, NBYTES['wq'])
    srd_from(k, 24, 4, KV_BYTES, KV_OFF)
    srd_from(k, 28, 4, AF_BYTES, AF_OFF)
    e("s_mul_i32 s12, s3, 10240\ns_mul_i32 s32, s9, 160\ns_add_u32 s12, s12, s32")
    e("s_lshr_b32 s32, s3, 2\ns_lshl_b32 s33, s8, 1\ns_add_u32 s32, s32, s33\ns_mul_i32 s13, s32, 40960")
    e("s_and_b32 s32, s3, 3\ns_lshl_b32 s32, s32, 10\ns_add_u32 s13, s13, s32")
    e(f"s_mul_i32 s14, s3, 1280\ns_lshl_b32 s15, s3, 10")
    e("s_mov_b32 s34, -1\ns_mov_b32 s35, 0xff")
    def q_issue(c):
        sb = QB + (c % 3) * QS
        e(f"s_add_u32 m0, s15, {sb + QW}")
        e(f"s_add_u32 s32, s13, {c*4096}")
        e(f"buffer_load_dwordx4 v2, s[16:19], s32 offen lds")
        e("s_mov_b64 exec, s[34:35]")
        for u in range(2):
            e(f"s_add_u32 m0, s14, {sb + u*640}")
            e(f"s_add_u32 s32, s12, {(64*c + 4*u)*1280}")
            e(f"buffer_load_dwordx4 v3, s[20:23], s32 offen lds")
        e("s_mov_b64 exec, -1")
    e("s_mul_i32 s36, s3, 3072")
    def kv_issue(chunk_soff, slot_base):
        e(f"s_add_u32 m0, s36, {slot_base}")
        e(f"s_add_u32 s32, s36, {chunk_soff}")
        for j in range(3):
            e(f"buffer_load_dwordx4 v2, s[24:27], s32 offen offset:{j*1024} lds")
    q_issue(0); q_issue(1)
    kv_issue(0, 0)
    e("v_lshrrev_b32 v6, 5, v1")
    e("v_bfe_u32 v7, v1, 2, 2\nv_lshl_add_u32 v7, v6, 3, v7\nv_mul_u32_u24 v4, 160, v7")
    e("v_and_b32 v7, 1, v1\nv_lshlrev_b32 v7, 4, v7")
    e("v_bfe_u32 v8, v1, 1, 1\nv_lshl_add_u32 v7, v8, 3, v7")
    e("v_and_b32 v8, 16, v1\nv_cmp_ne_u32 vcc, 0, v8\nv_mov_b32 v8, 32\nv_cndmask_b32 v7, v7, v8, vcc")
    e("v_add_u32 v4, v4, v7\ns_mul_i32 s32, s10, 40\nv_add_u32 v4, s32, v4")
    e(f"v_add_u32 v4, {QB}, v4")
    e(f"s_lshl_b32 s32, s11, 12\ns_add_u32 s32, s32, {QB + QW}\nv_add_u32 v5, s32, v2")
    Q1, Q2, O, S0, S1, P, KL, KH, V0, V1 = 8+8, 12+8, 24, 40, 56, 72, 80, 84, 88, 92
    Q1, Q2 = 16, 20
    FA, FB = 72, 88
    QA = S0
    for c in range(10):
        if c == 0: e("s_waitcnt vmcnt(6)")
        elif c == 1: e("s_waitcnt vmcnt(6)")
        elif c < 9: e("s_waitcnt vmcnt(3)")
        else: e("s_waitcnt vmcnt(0)")
        e("s_barrier")
        if c == 0: stamp(k, 1)
        if c + 2 < 10: q_issue(c + 2)
        so = (c % 3) * QS
        for ks in range(4):
            for u in range(2):
                e(f"ds_read_b64_tr_b16 {vr(FA+4*ks+2*u,2)}, v4 offset:{so + (16*ks + 4*u)*160}")
            e(f"ds_read_b128 {vr(FB+4*ks,4)}, v5 offset:{so + ks*1024}")
        for ks in range(4):
            e(f"s_waitcnt lgkmcnt({9 - 3*ks})")
            e(f"v_mfma_f32_32x32x16_bf16 {vr(QA,16)}, {vr(FA+4*ks,4)}, {vr(FB+4*ks,4)}, {'0' if (c == 0 and ks == 0) else vr(QA,16)}")
    e("s_barrier")
    stamp(k, 2)
    kv_issue(KVSLOT, KVSLOT)
    e(f"s_mov_b32 s33, {hex(f32bits(QSCALE))}")
    for j in range(6):
        t = S1 + 2*(j & 1)
        dst = Q1 + j
        e(f"v_cvt_pk_bf16_f32 v{dst}, v{QA+2*j}, v{QA+2*j+1}")
        e(f"v_lshlrev_b32 v{t}, 16, v{dst}\nv_and_b32 v{t+1}, 0xffff0000, v{dst}")
        e(f"v_mul_f32 v{t}, s33, v{t}\nv_mul_f32 v{t+1}, s33, v{t+1}")
        e(f"v_cvt_pk_bf16_f32 v{dst}, v{t}, v{t+1}")
    e("v_cmp_ne_u32 vcc, 0, v6")
    e(f"v_cndmask_b32 v{Q2}, v{Q2}, 0, vcc\nv_cndmask_b32 v{Q2+1}, v{Q2+1}, 0, vcc".replace(f"v{Q2}, v{Q2}, 0, vcc", f"v{Q2}, v{Q2}, 0, vcc"))
    e(f"v_mov_b32 v{Q2+2}, 0\nv_mov_b32 v{Q2+3}, 0")
    e(f"v_mov_b32 v{KH+2}, 0x3f80\nv_mov_b32 v{KH+3}, 0")
    AKL, AKH, AV = 8, 9, 10
    BKH, BV = 11, 12
    e(f"v_and_b32 v7, 31, v1\nv_lshlrev_b32 v{BKH}, 3, v7\nv_add_u32 v{BKH}, 1024, v{BKH}")
    e(f"v_mul_u32_u24 v{BV}, 24, v6\nv_add_u32 v{BV}, v{BV}, v7")
    e("v_cmp_le_u32 vcc, 28, v7\nv_cndmask_b32 v13, 0, 1, vcc\nv_xor_b32 v13, v13, v6\nv_mul_u32_u24 v13, 24, v13\nv_add_u32 v13, 20, v13")
    e(f"v_cmp_le_u32 vcc, 20, v7\nv_cndmask_b32 v{BV}, v{BV}, v13, vcc")
    e(f"v_lshlrev_b32 v{BV}, 4, v{BV}\nv_add_u32 v{BV}, 1536, v{BV}")
    MX = 13
    for t in range(4):
        e(f"ds_read_b128 {vr(KL,4)}, v2 offset:{t*3072}")
        e(f"ds_read_b64 {vr(KH,2)}, v{BKH} offset:{t*3072}")
        e("s_waitcnt lgkmcnt(0)")
        S = S0 if t % 2 == 0 else S1
        e(f"v_mfma_f32_32x32x16_bf16 {vr(S,16)}, {vr(KL,4)}, {vr(Q1,4)}, 0")
        e(f"v_mfma_f32_32x32x16_bf16 {vr(S,16)}, {vr(KH,4)}, {vr(Q2,4)}, {vr(S,16)}")
        if t == 0:
            e(f"v_max3_f32 v{MX}, v{S}, v{S+1}, v{S+2}\nv_max_f32 v{MX}, v{MX}, v{S+3}")
            rng = range(4, 16, 2)
        else:
            rng = range(0, 16, 2)
        for j in rng:
            e(f"v_max3_f32 v{MX}, v{MX}, v{S+j}, v{S+j+1}")
    e(f"v_mov_b32 v14, v{MX}\nv_permlane32_swap_b32 v{MX}, v14\nv_max_f32 v{MX}, v{MX}, v14")
    e(f"v_add_f32 v{MX}, {hex(f32bits(OFFS))}, v{MX}")
    e(f"v_cvt_pk_bf16_f32 v{MX}, -v{MX}, 0")
    e("v_cmp_ne_u32 vcc, 0, v6")
    e(f"v_cndmask_b32 v{Q2+2}, v{MX}, 0, vcc")
    for j in range(16): e(f"v_mov_b32 v{O+j}, 0")
    for j in range(4): e(f"v_mov_b32 v{P+4+j}, 0\nv_mov_b32 v{V1+j}, 0")
    e(f"ds_read_b128 {vr(KL,4)}, v2\nds_read_b64 {vr(KH,2)}, v{BKH}\ns_waitcnt lgkmcnt(0)")
    e(f"v_mfma_f32_32x32x16_bf16 {vr(S0,16)}, {vr(KL,4)}, {vr(Q1,4)}, 0")
    e(f"v_mfma_f32_32x32x16_bf16 {vr(S0,16)}, {vr(KH,4)}, {vr(Q2,4)}, {vr(S0,16)}")
    e(f"ds_read_b128 {vr(KL,4)}, v2 offset:3072\nds_read_b64 {vr(KH,2)}, v{BKH} offset:3072")
    e(f"ds_read_b128 {vr(V0,4)}, v{BV}")
    e(f"v_mov_b32 v{AKL}, v2\nv_mov_b32 v{AKH}, v{BKH}\nv_mov_b32 v{AV}, v{BV}")
    e("s_waitcnt lgkmcnt(0)")
    e(f"s_mov_b32 s40, 0\ns_mov_b32 s41, {KVSLOT}\ns_mov_b32 s42, {2*KVSLOT}\ns_mov_b32 s43, {2*KVSLOT}")
    stamp(k, 3)
    Lloop = k.newlabel("att")
    k.label(Lloop, 6)
    def softmax4(S, base, pdst):
        for j in range(4): e(f"v_exp_f32 v{S+base+j}, v{S+base+j}")
        e(f"v_cvt_pk_bf16_f32 v{pdst}, v{S+base}, v{S+base+1}")
        e(f"v_cvt_pk_bf16_f32 v{pdst+1}, v{S+base+2}, v{S+base+3}")
    for jj in range(8):
        Sc, Sn = (S0, S1) if jj % 2 == 0 else (S1, S0)
        if jj == 4:
            e("s_waitcnt vmcnt(0)\ns_barrier")
            kv_issue("s43", "s42")
        if jj == 6:
            e(f"v_add_u32 v{AKL}, s41, v2\nv_add_u32 v{AKH}, s41, v{BKH}")
        ko = ((jj + 2) % 8) * 3072
        e("s_waitcnt lgkmcnt(2)")
        e(f"v_mfma_f32_32x32x16_bf16 {vr(Sn,16)}, {vr(KL,4)}, {vr(Q1,4)}, 0")
        e(f"ds_read_b128 {vr(KL,4)}, v{AKL} offset:{ko}")
        softmax4(Sc, 0, P)
        e(f"v_mfma_f32_32x32x16_bf16 {vr(Sn,16)}, {vr(KH,4)}, {vr(Q2,4)}, {vr(Sn,16)}")
        e(f"ds_read_b64 {vr(KH,2)}, v{AKH} offset:{ko}")
        softmax4(Sc, 4, P+2)
        e("s_waitcnt lgkmcnt(2)")
        e(f"v_mfma_f32_32x32x16_bf16 {vr(O,16)}, {vr(V1,4)}, {vr(P+4,4)}, {vr(O,16)}")
        e(f"ds_read_b128 {vr(V1,4)}, v{AV} offset:{jj*3072 + 768}")
        softmax4(Sc, 8, P+4)
        if jj == 7:
            e(f"v_add_u32 v{AV}, s41, v{BV}")
        e(f"v_mfma_f32_32x32x16_bf16 {vr(O,16)}, {vr(V0,4)}, {vr(P,4)}, {vr(O,16)}")
        e(f"ds_read_b128 {vr(V0,4)}, v{AV} offset:{((jj+1)%8)*3072}")
        softmax4(Sc, 12, P+6)
    e(f"s_mov_b32 s41, s42\ns_add_u32 s42, s42, {KVSLOT}\ns_cmp_eq_u32 s42, {3*KVSLOT}\ns_cselect_b32 s42, 0, s42")
    e(f"s_add_u32 s43, s43, {KVSLOT}")
    e(f"s_add_u32 s40, s40, 1\ns_cmp_lt_u32 s40, 8\ns_cbranch_scc1 {Lloop}")
    e("s_waitcnt lgkmcnt(0)")
    e(f"v_mfma_f32_32x32x16_bf16 {vr(O,16)}, {vr(V1,4)}, {vr(P+4,4)}, {vr(O,16)}")
    stamp(k, 4)
    e("s_lshl_b32 s32, s9, 2\ns_add_u32 s32, s32, s10\ns_mul_i32 s32, s32, 20")
    e(f"s_lshl_b32 s33, s8, 1\ns_add_u32 s33, s33, s11\ns_mul_i32 s33, s33, {136*1024}")
    e("v_and_b32 v7, 31, v1\nv_lshlrev_b32 v7, 4, v7")
    for j in range(3):
        a = S0 + j
        e(f"v_lshl_add_u32 v{a}, v6, 2, s32\nv_add_u32 v{a}, {8*j}, v{a}")
        e(f"v_lshrrev_b32 v{S1}, 3, v{a}\nv_lshl_add_u32 v{S1}, v{S1}, 9, v7")
        e(f"v_and_b32 v{a}, 4, v{a}\nv_lshl_add_u32 v{a}, v{a}, 1, v{S1}")
    e(f"v_cmp_ne_u32 vcc, 0, v6\nv_mov_b32 v{S1}, 0x7fffffff\nv_cndmask_b32 v{S0+2}, v{S0+2}, v{S1}, vcc")
    e(f"v_rcp_f32 v{S1+1}, v{O+12}")
    for j in range(12): e(f"v_mul_f32 v{O+j}, v{O+j}, v{S1+1}")
    for j in range(6): e(f"v_cvt_pk_bf16_f32 v{P+j}, v{O+2*j}, v{O+2*j+1}")
    for j in range(3):
        e(f"buffer_store_dwordx2 {vr(P+2*j,2)}, v{S0+j}, s[28:31], s33 offen")
    stamp_dump(k, 1, 5, wg)
    e("s_endpgm")

def gen_k1a(name="k1a_kernel"):
    k = Kernel(name)
    L = k.newlabel("go")
    k.e(f"s_cmp_lt_u32 s2, 256\ns_cbranch_scc1 {L}\ns_endpgm")
    k.label(L)
    gen_attn_body(k)
    k.lds = 81920; k.grid = 256; k.block = 512
    return k
```

```python
from common import *

def gen_gateup_body(k, wg="s2", end=True):
    e = k.e
    SLOT = 20480; NS = 4
    stamp(k, 0)
    e(f"s_load_dwordx2 s[4:5], s[0:1], {KA['ws']}")
    e(f"s_load_dwordx4 s[8:11], s[0:1], {KA['wg']}")
    e("v_and_b32 v1, 63, v0\nv_lshrrev_b32 v2, 6, v0\nv_readfirstlane_b32 s3, v2")
    e(f"s_and_b32 s6, {wg}, 15\ns_lshr_b32 s7, {wg}, 4")
    e("v_lshlrev_b32 v2, 4, v1")
    e("v_mul_u32_u24 v3, 171, v1\nv_lshrrev_b32 v3, 11, v3")
    e("v_mul_u32_u24 v4, 12, v3\nv_sub_u32 v4, v1, v4")
    e("v_mul_u32_u24 v3, 3072, v3\nv_xor_b32 v5, 2, v4")
    e("v_lshl_add_u32 v4, v4, 4, v3\nv_lshl_add_u32 v5, v5, 4, v3")
    e("s_waitcnt lgkmcnt(0)")
    srd_from(k, 16, 4, XN_BYTES, XN_OFF)
    srd_from(k, 20, 8, NBYTES['wg'])
    srd_from(k, 24, 10, NBYTES['wu'])
    srd_from(k, 28, 4, AF_BYTES, AF_OFF)
    e("s_mul_i32 s12, s3, 12288\ns_mul_i32 s32, s6, 192\ns_add_u32 s12, s12, s32")
    e("s_lshr_b32 s32, s3, 1\ns_lshl_b32 s33, s7, 2\ns_add_u32 s32, s32, s33\ns_mul_i32 s13, s32, 40960")
    e("s_and_b32 s32, s3, 1\ns_lshl_b32 s32, s32, 10\ns_add_u32 s13, s13, s32")
    e("s_mul_i32 s14, s3, 768\ns_lshl_b32 s15, s3, 10\ns_add_u32 s15, s15, 12288")
    e("s_mov_b32 s34, -1\ns_mov_b32 s35, 0xffff")
    e("s_mov_b32 s36, 0")
    def issue():
        e("s_add_u32 m0, s15, s36")
        e("s_add_u32 s37, s14, s36")
        e("buffer_load_dwordx4 v2, s[16:19], s13 offen lds")
        e("s_mov_b64 exec, s[34:35]")
        e("s_mov_b32 m0, s37")
        e("s_add_u32 s13, s13, 2048")
        e("buffer_load_dwordx4 v4, s[20:23], s12 offen lds")
        e("s_add_u32 m0, s37, 6144")
        e(f"s_add_u32 s36, s36, {SLOT}")
        e("buffer_load_dwordx4 v5, s[24:27], s12 offen lds")
        e("s_mov_b64 exec, -1")
        e(f"s_add_u32 s12, s12, {32*3072}")
        e(f"s_cmp_eq_u32 s36, {NS*SLOT}\ns_cselect_b32 s36, 0, s36")
    for c in range(NS - 1): issue()
    e("v_lshrrev_b32 v6, 5, v1\nv_bfe_u32 v7, v1, 2, 2\nv_lshl_add_u32 v7, v6, 3, v7\nv_mul_u32_u24 v7, 192, v7")
    e("v_and_b32 v8, 1, v1\nv_lshl_add_u32 v7, v8, 4, v7\nv_bfe_u32 v8, v1, 1, 1\nv_lshl_add_u32 v7, v8, 3, v7")
    e("v_bfe_u32 v8, v1, 4, 1\nv_mul_u32_u24 v9, 6144, v8\nv_add_u32 v7, v7, v9")
    e("s_lshr_b32 s38, s3, 2\ns_mul_i32 s38, s38, 3")
    for a in range(3):
        e(f"s_add_u32 s32, s38, {a}\nv_xor_b32 v9, s32, v8\nv_lshl_add_u32 v{10+a}, v9, 5, v7")
    e("s_and_b32 s39, s3, 3\ns_lshl_b32 s32, s39, 11\ns_add_u32 s32, s32, 12288\nv_add_u32 v13, s32, v2")
    ACC = 32; FA = 80; FB = 104
    for j in range(48): e(f"v_mov_b32 v{ACC+j}, 0")
    e("s_mov_b32 s40, 0\ns_mov_b32 s41, 0")
    if STAMPS: e(f"s_waitcnt vmcnt({3*(NS-2)})\ns_barrier")
    stamp(k, 1)
    L = k.newlabel("gu")
    k.label(L, 6)
    e(f"s_waitcnt vmcnt({3*(NS-2)})\ns_barrier")
    e(f"s_cmp_ge_u32 s40, {20-(NS-1)}\ns_cselect_b32 s13, 0x7ff00000, s13")
    issue()
    for a in range(3): e(f"v_add_u32 v{14+a}, s41, v{10+a}")
    e("v_add_u32 v17, s41, v13")
    for ks in range(2):
        e(f"ds_read_b128 {vr(FB+4*ks,4)}, v17 offset:{ks*1024}")
        for a in range(3):
            for u in range(2):
                e(f"ds_read_b64_tr_b16 {vr(FA+12*ks+4*a+2*u,2)}, v{14+a} offset:{(16*ks+4*u)*192}")
    n = 14
    for ks in range(2):
        for a in range(3):
            done = 7*ks + 1 + 2*(a+1)
            e(f"s_waitcnt lgkmcnt({14-done})")
            e(f"v_mfma_f32_32x32x16_bf16 {vr(ACC+16*a,16)}, {vr(FA+12*ks+4*a,4)}, {vr(FB+4*ks,4)}, {vr(ACC+16*a,16)}")
    e(f"s_add_u32 s41, s41, {SLOT}\ns_cmp_eq_u32 s41, {NS*SLOT}\ns_cselect_b32 s41, 0, s41")
    e(f"s_add_u32 s40, s40, 1\ns_cmp_lt_u32 s40, 20\ns_cbranch_scc1 {L}")
    stamp(k, 2)
    e(f"s_mov_b32 s33, {hex(f32bits(-math.log2(math.e)))}")
    e(f"s_lshl_b32 s32, s7, 2\ns_add_u32 s32, s32, s39\ns_mul_i32 s32, s32, 136\ns_mul_i32 s42, s6, 6")
    e("s_add_u32 s32, s32, s42\ns_add_u32 s32, s32, s38\ns_add_u32 s32, s32, 40\ns_lshl_b32 s32, s32, 10")
    T = 80
    for a in range(3):
        g = ACC + 16*a; u = g + 8
        for j in range(8): e(f"v_mul_f32 v{T+j}, s33, v{g+j}")
        for j in range(8): e(f"v_exp_f32 v{T+j}, v{T+j}")
        for j in range(8): e(f"v_mul_f32 v{g+j}, v{g+j}, v{u+j}")
        for j in range(8): e(f"v_add_f32 v{T+j}, 1.0, v{T+j}")
        for j in range(8): e(f"v_rcp_f32 v{T+j}, v{T+j}")
        for j in range(8): e(f"v_mul_f32 v{g+j}, v{g+j}, v{T+j}")
        for j in range(4): e(f"v_cvt_pk_bf16_f32 v{u+j}, v{g+2*j}, v{g+2*j+1}")
        e(f"buffer_store_dwordx4 {vr(u,4)}, v2, s[28:31], s32 offen offset:{a*1024}")
    stamp_dump(k, 2, 3, wg)
    if end: e("s_endpgm")

def gen_k1b(name="k1b_kernel"):
    k = Kernel(name)
    L = k.newlabel("go")
    k.e(f"s_cmp_lt_u32 s2, 256\ns_cbranch_scc1 {L}\ns_endpgm")
    k.label(L)
    gen_gateup_body(k)
    k.lds = 81920; k.grid = 256; k.block = 512
    return k
```

```python
from common import *

def gen_k2(name="k2_kernel"):
    k = Kernel(name); e = k.e
    L = k.newlabel("go")
    e(f"s_cmp_lt_u32 s2, 256\ns_cbranch_scc1 {L}\ns_endpgm")
    k.label(L)
    SLOT = 20480; NS = 4; WB = 12288; NCH = 34
    stamp(k, 0)
    e(f"s_load_dwordx2 s[4:5], s[0:1], {KA['ws']}")
    e(f"s_load_dwordx2 s[6:7], s[0:1], {KA['wo']}")
    e(f"s_load_dwordx4 s[8:11], s[0:1], {KA['wd']}")
    e(f"s_load_dwordx2 s[44:45], s[0:1], {KA['x']}")
    e("v_and_b32 v1, 63, v0\nv_lshrrev_b32 v2, 6, v0\nv_readfirstlane_b32 s3, v2")
    e("s_lshr_b32 s46, s2, 3\ns_and_b32 s47, s2, 7")
    e("v_lshlrev_b32 v2, 4, v1")
    e("v_mul_u32_u24 v3, 171, v1\nv_lshrrev_b32 v3, 11, v3")
    e("v_mul_u32_u24 v4, 12, v3\nv_sub_u32 v4, v1, v4")
    e("v_mul_u32_u24 v3, 1280, v3\nv_lshl_add_u32 v3, v4, 4, v3")
    e("s_waitcnt lgkmcnt(0)")
    srd_from(k, 16, 4, AF_BYTES, AF_OFF)
    srd_from(k, 20, 6, NBYTES['wo'])
    srd_from(k, 24, 10, NBYTES['out'])
    srd_from(k, 28, 44, NBYTES['x'])
    e("s_mul_i32 s48, s3, 10240\ns_mul_i32 s32, s47, 160\ns_add_u32 s48, s48, s32\ns_mov_b32 s12, s48")
    e(f"s_lshr_b32 s32, s3, 2\ns_lshl_b32 s33, s46, 1\ns_add_u32 s32, s32, s33\ns_mul_i32 s13, s32, {136*1024}")
    e("s_and_b32 s32, s3, 3\ns_lshl_b32 s32, s32, 10\ns_add_u32 s13, s13, s32")
    e(f"s_mul_i32 s14, s3, 1536\ns_lshl_b32 s15, s3, 10\ns_add_u32 s15, s15, {WB}")
    mask = sum(0x3ff << (12*i) for i in range(4))
    e(f"s_mov_b32 s34, {hex(mask & 0xffffffff)}\ns_mov_b32 s35, {hex(mask >> 32)}")
    e("s_mov_b32 s36, 0")
    def issue():
        e("s_add_u32 m0, s15, s36")
        e("s_add_u32 s37, s14, s36")
        e("buffer_load_dwordx4 v2, s[16:19], s13 offen lds")
        e("s_mov_b64 exec, s[34:35]")
        e("s_mov_b32 m0, s37")
        e("s_add_u32 s13, s13, 4096")
        e("buffer_load_dwordx4 v3, s[20:23], s12 offen lds")
        e("s_add_u32 m0, s37, 768")
        e("s_add_u32 s38, s12, 5120")
        e("buffer_load_dwordx4 v3, s[20:23], s38 offen lds")
        e("s_mov_b64 exec, -1")
        e(f"s_add_u32 s12, s12, {64*1280}")
        e(f"s_add_u32 s36, s36, {SLOT}\ns_cmp_eq_u32 s36, {NS*SLOT}\ns_cselect_b32 s36, 0, s36")
    for c in range(NS - 1): issue()
    e("s_and_b32 s50, s3, 1\ns_lshr_b32 s51, s3, 1")
    e("v_lshrrev_b32 v6, 5, v1\nv_bfe_u32 v7, v1, 2, 2\nv_lshl_add_u32 v7, v6, 3, v7\ns_lshl_b32 s32, s51, 4\nv_add_u32 v7, s32, v7\nv_mul_u32_u24 v7, 192, v7")
    e("v_and_b32 v8, 1, v1\nv_bfe_u32 v9, v1, 1, 1\nv_bfe_u32 v12, v1, 4, 1")
    e("v_lshl_add_u32 v10, v8, 5, v7\nv_lshl_add_u32 v10, v9, 3, v10\nv_lshl_add_u32 v10, v12, 4, v10")
    e("v_lshl_add_u32 v11, v8, 4, v7\nv_lshl_add_u32 v11, v9, 3, v11\nv_add_u32 v11, 128, v11")
    e(f"s_lshl_b32 s32, s50, 2\ns_add_u32 s32, s32, s51\ns_lshl_b32 s32, s32, 10\ns_add_u32 s32, s32, {WB}\nv_add_u32 v13, s32, v2")
    ACC = 32; FA = 80; FB = 92
    for j in range(48): e(f"v_mov_b32 v{ACC+j}, 0")
    e("s_mov_b32 s40, 0\ns_mov_b32 s41, 0")
    if STAMPS: e(f"s_waitcnt vmcnt({3*(NS-2)})\ns_barrier")
    stamp(k, 1)
    Lp = k.newlabel("loop")
    k.label(Lp, 6)
    e(f"s_waitcnt vmcnt({3*(NS-2)})\ns_barrier")
    e(f"s_cmp_eq_u32 s40, {10-(NS-1)}")
    e(f"s_cselect_b32 s20, s8, s20\ns_cselect_b32 s21, s9, s21\ns_cselect_b32 s22, {hex(NBYTES['wd'])}, s22\ns_cselect_b32 s12, s48, s12")
    e(f"s_cmp_ge_u32 s40, {NCH-(NS-1)}\ns_cselect_b32 s13, 0x7ff00000, s13")
    issue()
    e("v_add_u32 v14, s41, v10\nv_add_u32 v15, s41, v11\nv_add_u32 v16, s41, v13")
    e(f"ds_read_b128 {vr(FB,4)}, v16")
    for a in range(3):
        for u in range(2):
            ad, off = ("v14", a*64) if a < 2 else ("v15", 0)
            e(f"ds_read_b64_tr_b16 {vr(FA+4*a+2*u,2)}, {ad} offset:{off + 4*u*192}")
    for a in range(3):
        e(f"s_waitcnt lgkmcnt({4-2*a})")
        e(f"v_mfma_f32_32x32x16_bf16 {vr(ACC+16*a,16)}, {vr(FA+4*a,4)}, {vr(FB,4)}, {vr(ACC+16*a,16)}")
    e(f"s_add_u32 s41, s41, {SLOT}\ns_cmp_eq_u32 s41, {NS*SLOT}\ns_cselect_b32 s41, 0, s41")
    e(f"s_add_u32 s40, s40, 1\ns_cmp_lt_u32 s40, {NCH}\ns_cbranch_scc1 {Lp}")
    stamp(k, 2)
    e("s_lshl_b32 s32, s46, 1\ns_add_u32 s32, s32, s50\ns_mul_i32 s32, s32, 40960\ns_mul_i32 s33, s47, 160\ns_add_u32 s52, s32, s33")
    e("v_and_b32 v7, 31, v1\nv_mul_u32_u24 v7, 1280, v7")
    e("v_lshl_add_u32 v9, v6, 4, v7\nv_add_u32 v9, 128, v9")
    e("s_lshr_b32 s32, s51, 1\ns_lshl_b32 s32, s32, 6\ns_and_b32 s33, s51, 1\ns_lshl_b32 s33, s33, 4\ns_add_u32 s32, s32, s33")
    e("v_lshl_add_u32 v8, v6, 5, v7\nv_add_u32 v8, s32, v8")
    e("s_waitcnt vmcnt(0)")
    e(f"buffer_load_dwordx4 {vr(20,4)}, v8, s[28:31], s52 offen")
    e(f"buffer_load_dwordx4 {vr(24,4)}, v9, s[28:31], s52 offen")
    e("s_barrier")
    e("s_mul_i32 s32, s3, 10240\nv_add_u32 v14, s32, v2")
    for q in range(10):
        e(f"ds_write_b128 v14, {vr(ACC+4*q,4)} offset:{q*1024}")
    e("s_mul_i32 s32, s50, 10240\ns_lshl_b32 s33, s51, 11\ns_add_u32 s33, s33, s32\nv_add_u32 v15, s33, v2\nv_add_u32 v16, s32, v2")
    e("s_waitcnt lgkmcnt(0)\ns_barrier")
    def fin(addr, qoff, xr, voff):
        for w in range(4):
            for hq in range(2):
                e(f"ds_read_b128 {vr(ACC+8*w+4*hq,4)}, {addr} offset:{w*20480 + qoff + hq*1024}")
        e("s_waitcnt lgkmcnt(0) vmcnt(0)")
        for j in range(8):
            e(f"v_add_f32 v{ACC+j}, v{ACC+j}, v{ACC+8+j}\nv_add_f32 v{ACC+16+j}, v{ACC+16+j}, v{ACC+24+j}")
        for j in range(4):
            e(f"v_lshlrev_b32 v{ACC+8+2*j}, 16, v{xr+j}\nv_and_b32 v{ACC+9+2*j}, 0xffff0000, v{xr+j}")
        for j in range(8):
            e(f"v_add_f32 v{ACC+j}, v{ACC+j}, v{ACC+16+j}\nv_add_f32 v{ACC+j}, v{ACC+j}, v{ACC+8+j}")
        for j in range(4):
            e(f"v_cvt_pk_bf16_f32 v{xr+j}, v{ACC+2*j}, v{ACC+2*j+1}")
        e(f"buffer_store_dwordx4 {vr(xr,4)}, {voff}, s[24:27], s52 offen")
    fin("v15", 0, 20, "v8")
    Le = k.newlabel("end")
    e(f"s_cmp_lg_u32 s51, 0\ns_cbranch_scc1 {Le}")
    e("v_add_u32 v16, 8192, v16")
    fin("v16", 0, 24, "v9")
    k.label(Le)
    stamp_dump(k, 3, 3)
    e("s_endpgm")
    k.lds = 81920; k.grid = 256; k.block = 512
    return k
```

```python
from build import *
from k0 import gen_k0
from k1a import gen_k1a
from k1b import gen_k1b
from k2 import gen_k2
def nopk():
    k = Kernel("nop_kernel"); k.e("v_mov_b32 v1, 0\ns_endpgm"); k.lds = 0; k.grid = 256; k.block = 64
    return k
n = nopk()
emit([n]*4 + [gen_k0(), gen_k1a(), gen_k1b(), gen_k2()], "varB.s")
n = nopk()
emit([gen_k0(), gen_k1a(), gen_k1b(), gen_k2()] + [n]*4, "varC.s")
```

```python
from asmgen import *
import struct, math

KA = dict(x=0, wq=8, wk=16, wv=24, wo=32, bx=40, wg=48, wu=56, wd=64, out=72, dbg=80, ws=88)
NBYTES = dict(x=2048*640*2, wq=640*640*2, wk=640*20*2, wv=640*20*2, wo=640*640*2, wg=640*1536*2, wu=640*1536*2,
              wd=1536*640*2, out=2048*640*2)
XN_OFF = 0;            XN_BYTES = 64*40*1024
KV_OFF = 0x280000;     KV_BYTES = 64*3072
AF_OFF = 0x300000;     AF_BYTES = 64*136*1024

def f32bits(x): return struct.unpack("<I", struct.pack("<f", x))[0]

def srd_from(k, dst, src, nbytes, off=0):
    if off:
        k.e(f"s_add_u32 s{dst}, s{src}, {hex(off)}")
        k.e(f"s_addc_u32 s{dst+1}, s{src+1}, 0")
    else:
        k.e(f"s_mov_b32 s{dst}, s{src}")
        k.e(f"s_mov_b32 s{dst+1}, s{src+1}")
    k.e(f"s_mov_b32 s{dst+2}, {hex(nbytes)}")
    k.e(f"s_mov_b32 s{dst+3}, 0x20000")

import os
STAMPS = os.environ.get("STAMPS") == "1"
STAMP_OFF = 0x1000000
def stamp(k, i):
    if not STAMPS: return
    k.e(f"s_waitcnt lgkmcnt(0)\ns_memtime s[96:97]\ns_memrealtime s[98:99]\ns_waitcnt lgkmcnt(0)\ns_mov_b32 s{76+i}, s96\ns_mov_b32 s{86+i}, s98")
def stamp_dump(k, kid, n, wg="s2", wsp=4):
    if not STAMPS: return
    e = k.e
    e("s_waitcnt vmcnt(0) lgkmcnt(0)")
    stamp(k, n)
    e(f"s_lshl_b32 s96, {wg}, 4\ns_add_u32 s96, s96, s3\ns_lshl_b32 s96, s96, 7\ns_add_u32 s96, s96, {hex(STAMP_OFF + kid*0x100000)}")
    e(f"s_add_u32 s100, s{wsp}, s96\ns_addc_u32 s101, s{wsp+1}, 0")
    e("v_mov_b32 v0, 0")
    for i in range(n + 1):
        e(f"v_mov_b32 v1, s{76+i}\nglobal_store_dword v0, v1, s[100:101] offset:{4*i}")
        e(f"v_mov_b32 v1, s{86+i}\nglobal_store_dword v0, v1, s[100:101] offset:{64+4*i}")
```

```python
from asmgen import *
import common
from common import KA, NBYTES, f32bits, srd_from, stamp, stamp_dump, STAMPS
import math, os

MF = "v_mfma_f32_32x32x16_bf16"
QSCALE = (20 ** -0.5) * math.log2(math.e)
OFFS = float(os.environ.get('OFFS', 96.0))
PATTERN = [int(x) for x in os.environ.get('APAT', '2,6,9,13').split(',')]
XNF = 0x1000; KVF = 0x5000; HF = 0x9000; OF = 0x11000; FL_BYTES = 0x19000
KV_OFF = 0x20000;  KV_BYTES = 64*3072
XN_OFF = 0x80000;  XN_BYTES = 64*40*1024
AF_OFF = 0x300000; AF_BYTES = 64*136*1024
PX, PWQ, PWK, PWV, PWO, PWG, PWU, PWD, POUT, PWS = 48, 50, 52, 54, 56, 60, 62, 64, 66, 70
TAG = "s73"; BUD = "s74"
FLS = 44
SC = "sc1"
PREF = int(os.environ.get("PREF", 1))
RDM = int(os.environ.get("RDM", 1))
WQP = int(os.environ.get("WQP", 0))
AMAP = int(os.environ.get("AMAP", 1))
TV = int(os.environ.get("TV", 2))
XNT = os.environ.get("XNT", "nt")

BST = int(os.environ.get("BST", 0))
def bstamp(k, name):
    m0 = dict(start=0, xl=1, xs=2, xf=3, p0=4, gu0=5, gu1=6, dn0=7, dn1=8)
    m1 = dict(start=0, p0=1, gu0=2, gu1=3, dn0=4, dn1=5, of=6, mm=7, rd=8)
    m = m1 if BST else m0
    if name in m: stamp(k, m[name])

def poll(k, voff, soff, vt, nloads=1, pre_issued=False, x2=False):
    e = k.e
    Lp = k.newlabel("poll"); Ld = k.newlabel("pdone"); Lc = k.newlabel("pchk")
    def loads():
        if x2:
            e(f"buffer_load_dwordx2 {vr(vt,2)}, {voff}, s[{FLS}:{FLS+3}], {soff} offen {SC}"); return
        for i in range(nloads):
            if i == 0: e(f"buffer_load_dword v{vt}, {voff}, s[{FLS}:{FLS+3}], {soff} offen {SC}")
            else:
                e(f"s_add_u32 s75, {soff}, {8192*i}")
                e(f"buffer_load_dword v{vt+i}, {voff}, s[{FLS}:{FLS+3}], s75 offen {SC}")
    if pre_issued == "issue":
        loads(); return
    if pre_issued: e(f"s_branch {Lc}")
    k.label(Lp)
    loads()
    k.label(Lc)
    e("s_waitcnt vmcnt(0)")
    for i in range(1, nloads):
        e(f"v_xor_b32 v{vt+i}, {TAG}, v{vt+i}")
    e(f"v_xor_b32 v{vt}, {TAG}, v{vt}")
    for i in range(1, nloads): e(f"v_or_b32 v{vt}, v{vt}, v{vt+i}")
    e(f"v_cmp_ne_u32 vcc, 0, v{vt}")
    e(f"s_cmp_eq_u64 vcc, 0\ns_cbranch_scc1 {Ld}")
    e(f"s_sub_u32 {BUD}, {BUD}, 1\ns_cbranch_scc1 {Ld}")
    e(f"s_sleep 1\ns_branch {Lp}")
    k.label(Ld)

def setflag(k, soff, vt):
    e = k.e
    L = k.newlabel("nofl")
    e(f"s_cmp_lg_u32 s3, 0\ns_cbranch_scc1 {L}")
    e(f"v_mov_b32 v{vt}, {TAG}\nv_mov_b32 v{vt+1}, 0\ns_mov_b64 exec, 1")
    e(f"buffer_store_dword v{vt}, v{vt+1}, s[{FLS}:{FLS+3}], {soff} offen {SC}")
    e("s_mov_b64 exec, -1")
    k.label(L)

def w160_voffs(k, dst, t):
    e = k.e
    for i in range(5):
        e(f"v_add_u32 v{t}, {64*i}, v1\nv_mul_u32_u24 v{t+1}, 6554, v{t}\nv_lshrrev_b32 v{t+1}, 16, v{t+1}")
        e(f"v_mul_u32_u24 v{t+2}, 10, v{t+1}\nv_sub_u32 v{t+2}, v{t}, v{t+2}")
        e(f"v_and_b32 v{t}, 24, v{t+1}\nv_bfe_u32 v{t+3}, v{t+1}, 1, 2\nv_add_u32 v{t}, v{t}, v{t+3}\nv_and_b32 v{t+3}, 1, v{t+1}\nv_lshl_add_u32 v{t}, v{t+3}, 2, v{t}")
        e(f"v_mul_u32_u24 v{t}, 1280, v{t}\nv_lshl_add_u32 v{dst+i}, v{t+2}, 4, v{t}")

def touch(k, bufs, vdst):
    if not PREF: return
    e = k.e
    Lnp = k.newlabel("nopf")
    tot = sum(n for _, n in bufs)
    e(f"s_cmp_ge_u32 s10, {tot}\ns_cbranch_scc1 {Lnp}")
    e(f"s_mov_b32 s34, s{bufs[0][0]}\ns_mov_b32 s35, s{bufs[0][0]+1}\ns_mov_b32 s32, s10")
    lo = bufs[0][1]
    for p, n in bufs[1:]:
        e(f"s_sub_u32 s33, s10, {lo}")
        e(f"s_cselect_b32 s34, s34, s{p}\ns_cselect_b32 s35, s35, s{p+1}\ns_cselect_b32 s32, s32, s33")
        lo += n
    e("s_lshl_b32 s32, s32, 13\ns_add_u32 s34, s34, s32\ns_addc_u32 s35, s35, 0")
    e(f"global_load_dword v{vdst}, v9, s[34:35]")
    k.label(Lnp)

def stouch(k):
    e = k.e
    e("s_sub_u32 s10, s2, 128\ns_lshl_b32 s10, s10, 2\ns_add_u32 s10, s10, s3\ns_lshl_b32 s10, s10, 7")
    for j, p in enumerate((PWG, PWU, PWD, PWO)):
        e(f"s_add_u32 s{16+2*j}, s{p}, s10\ns_addc_u32 s{17+2*j}, s{p+1}, 0")
    seq = []
    for i in range(30): seq += [(0, i), (1, i)]
    NT = int(os.environ.get("NT2", 30))
    for i in range(NT): seq += [(2, i)]
    for i in range(min(NT, 12)): seq += [(3, i)]
    n = 0
    adv = [0, 0, 0, 0]
    for j, i in seq:
        off = (i - adv[j]) * 65536
        if off >= 0x100000:
            e(f"s_add_u32 s{16+2*j}, s{16+2*j}, {hex(off)}\ns_addc_u32 s{17+2*j}, s{17+2*j}, 0"); adv[j] = i; off = 0
        e(f"s_load_dword s{24 + n % 12}, s[{16+2*j}:{17+2*j}], {hex(off)}")
        n += 1
    e("s_waitcnt lgkmcnt(0)")

def tag_setup(k):
    k.e(f"s_load_dword s72, s[{PWS}:{PWS+1}], 0")
    srd_from(k, FLS, PWS, FL_BYTES)
    k.e(f"s_mov_b32 {BUD}, 200000")
def tag_finish(k):
    k.e(f"s_waitcnt lgkmcnt(0)\ns_mul_i32 {TAG}, s72, 1664525\ns_add_u32 {TAG}, {TAG}, 1013904223")

def phase0(k):
    e = k.e
    e("v_and_b32 v3, 15, v1\nv_lshrrev_b32 v4, 4, v1")
    e("s_mul_i32 s12, s4, 20480\ns_mul_i32 s13, s3, 320\ns_add_u32 s12, s12, s13")
    e("v_mul_u32_u24 v5, 1280, v3\nv_lshl_add_u32 v5, v4, 4, v5")
    e("s_mul_i32 s14, s3, 6400\ns_mul_i32 s15, s3, 14336")
    e("s_waitcnt lgkmcnt(0)")
    srd_from(k, 16, PX, NBYTES['x'])
    X = 16
    for i in range(5):
        e(f"buffer_load_dwordx4 {vr(X+4*i,4)}, v5, s[16:19], s12 offen offset:{64*i} {XNT}")
    srd_from(k, 20, PWK, NBYTES['wk'])
    srd_from(k, 24, PWV, NBYTES['wv'])
    for m, srd in ((0, 20), (1, 24)):
        for j in range(7):
            if j % 4 == 0:
                e(f"s_add_u32 m0, s15, {m*7168 + j*1024}")
                e(f"s_add_u32 s37, s14, {j*1024}")
            e(f"buffer_load_dwordx4 v2, s[{srd}:{srd+3}], s37 offen offset:{(j%4)*1024} lds")
    tag_setup(k)
    srd_from(k, 28, PWS, XN_BYTES, XN_OFF)
    srd_from(k, 32, PWS, KV_BYTES, KV_OFF)
    e("v_mov_b32 v8, 0\nv_mov_b32 v9, 0\nv_mov_b32 v10, 0\nv_mov_b32 v11, 0")
    e("s_mov_b32 s38, 0x3f803f80")
    STAT = 57344; RED = STAT + 512
    e(f"s_lshl_b32 s39, s3, 7\ns_add_u32 s39, s39, {STAT}")
    e("v_lshl_add_u32 v12, v3, 3, s39\nv_lshlrev_b32 v13, 3, v3")
    tag_finish(k)
    for i in range(5):
        e(f"s_waitcnt vmcnt({18-i})")
        for d in range(4*i, 4*i+4):
            a = 8 + (d & 1); q = 10 + (d & 1)
            e(f"v_dot2_f32_bf16 v{a}, v{X+d}, s38, v{a}")
            e(f"v_dot2_f32_bf16 v{q}, v{X+d}, v{X+d}, v{q}")
    bstamp(k, "xl")
    e("v_add_f32 v8, v8, v9\nv_add_f32 v9, v10, v11")
    for sw in ("v_permlane32_swap_b32", "v_permlane16_swap_b32"):
        e("v_mov_b32 v10, v8\nv_mov_b32 v11, v9")
        e(f"{sw} v8, v10\n{sw} v9, v11")
        e("v_add_f32 v8, v8, v10\nv_add_f32 v9, v9, v11")
    e("ds_write_b64 v12, v[8:9]")
    U = 96
    for d in range(20):
        e(f"v_lshlrev_b32 v{U+2*d}, 16, v{X+d}\nv_and_b32 v{U+2*d+1}, 0xffff0000, v{X+d}")
        if d == 1: e("s_waitcnt lgkmcnt(0)\ns_barrier")
        if d == 1:
            for w in range(4): e(f"ds_read_b64 {vr(36+2*w,2)}, v13 offset:{STAT+128*w}")
    e("s_waitcnt lgkmcnt(0)")
    e("v_add_f32 v8, v36, v38\nv_add_f32 v9, v37, v39\nv_add_f32 v10, v40, v42\nv_add_f32 v11, v41, v43")
    e("v_add_f32 v8, v8, v10\nv_add_f32 v9, v9, v11")
    inv = hex(f32bits(1.0/640))
    e(f"v_mul_f32 v8, {inv}, v8\nv_mul_f32 v9, {inv}, v9")
    e("v_fma_f32 v9, -v8, v8, v9\nv_max_f32 v9, 0, v9")
    e("v_cvt_pk_bf16_f32 v10, v8, v9")
    e("v_lshlrev_b32 v8, 16, v10\nv_and_b32 v9, 0xffff0000, v10")
    e(f"v_add_f32 v9, {hex(f32bits(1e-5))}, v9")
    e("v_cvt_pk_bf16_f32 v9, v9, v9\nv_and_b32 v9, 0xffff0000, v9")
    e("v_sqrt_f32 v9, v9")
    e("v_cvt_pk_bf16_f32 v9, v9, v9\nv_and_b32 v9, 0xffff0000, v9")
    e("v_rcp_f32 v10, v9")
    e("s_lshr_b32 s40, s4, 1\ns_mul_i32 s41, s40, 40960\ns_and_b32 s42, s4, 1")
    e("s_lshl_b32 s43, s42, 8\ns_add_u32 s41, s41, s43\ns_mul_i32 s43, s3, 10240\ns_add_u32 s41, s41, s43")
    e("v_lshlrev_b32 v13, 9, v4\nv_lshl_add_u32 v13, v3, 4, v13")
    for d in range(20):
        u = U + 2*d
        e(f"v_pk_add_f32 {vr(u,2)}, {vr(u,2)}, v[8:9] op_sel_hi:[1,0] neg_lo:[0,1] neg_hi:[0,1]")
    for d in range(20):
        u = U + 2*d
        e(f"v_cvt_pk_bf16_f32 v{X+d}, v{u}, v{u+1}")
    for i in range(5):
        for d in range(4*i, 4*i+4):
            u = U + 2*d
            e(f"v_lshlrev_b32 v{u}, 16, v{X+d}\nv_and_b32 v{u+1}, 0xffff0000, v{X+d}")
        for d in range(4*i, 4*i+4):
            u = U + 2*d
            e(f"v_pk_mul_f32 {vr(u,2)}, {vr(u,2)}, v[10:11] op_sel_hi:[1,0]")
        for d in range(4*i, 4*i+4):
            u = U + 2*d
            e(f"v_cvt_pk_bf16_f32 v{X+d}, v{u}, v{u+1}")
        if i in (2, 4): e("s_add_u32 s41, s41, 4096")
        e(f"buffer_store_dwordx4 {vr(X+4*i,4)}, v13, s[28:31], s41 offen offset:{(i%2)*2048} {SC}")
    bstamp(k, "xs")
    e("v_lshrrev_b32 v14, 2, v3\nv_lshl_add_u32 v14, v4, 3, v14\nv_mul_u32_u24 v14, 40, v14")
    e("v_and_b32 v15, 3, v1\nv_lshl_add_u32 v14, v15, 3, v14\nv_add_u32 v14, s15, v14")
    ACC = 44; W = 136
    e("s_waitcnt vmcnt(5)")
    for i in range(5):
        for tl in range(4):
            m, n0 = tl >> 1, (tl & 1) * 16
            for u in range(2):
                e(f"ds_read_b64_tr_b16 {vr(W+16*i+4*tl+2*u,2)}, v14 offset:{m*7168 + i*1280 + u*160 + n0*2}")
        if i >= 1:
            e("s_waitcnt lgkmcnt(8)")
            for tl in range(4):
                wf = vr(W+16*(i-1)+4*tl, 4); xf = vr(X+4*(i-1), 4); acc = vr(ACC+4*tl, 4)
                a, b = (wf, xf) if tl < 2 else (xf, wf)
                e(f"v_mfma_f32_16x16x32_bf16 {acc}, {a}, {b}, {'0' if i == 1 else acc}")
    e("s_waitcnt lgkmcnt(0)")
    for tl in range(4):
        wf = vr(W+64+4*tl, 4); xf = vr(X+16, 4); acc = vr(ACC+4*tl, 4)
        a, b = (wf, xf) if tl < 2 else (xf, wf)
        e(f"v_mfma_f32_16x16x32_bf16 {acc}, {a}, {b}, {acc}")
    e(f"s_lshl_b32 s39, s3, 12\ns_add_u32 s39, s39, {RED}\nv_add_u32 v12, s39, v2")
    e(f"s_lshl_b32 s39, s3, 10\ns_add_u32 s39, s39, {RED}\nv_add_u32 v6, s39, v2")
    e(f"s_lshl_b32 s36, s4, 7\ns_add_u32 s36, s36, {XNF}\ns_lshl_b32 s37, s4, 2\ns_add_u32 s37, s37, {KVF}")
    for tl in range(4):
        e(f"ds_write_b128 v12, {vr(ACC+4*tl,4)} offset:{tl*1024}")
    e("s_waitcnt lgkmcnt(0) vmcnt(0)\ns_barrier")
    R = 60
    for w in range(4):
        e(f"ds_read_b128 {vr(R+4*w,4)}, v6 offset:{w*4096}")
    setflag(k, "s36", 10)
    bstamp(k, "xf")
    e("s_mul_i32 s39, s40, 3072")
    Lk1, Lv0, Lv1, Lst = (k.newlabel(x) for x in ("k1", "v0", "v1", "st"))
    e("v_lshl_add_u32 v7, s42, 4, v3")
    e("v_and_b32 v15, 1, v4\nv_lshrrev_b32 v5, 1, v4")
    e("s_waitcnt lgkmcnt(0)")
    for j in range(4):
        e(f"v_add_f32 v{R+j}, v{R+j}, v{R+4+j}\nv_add_f32 v{R+8+j}, v{R+8+j}, v{R+12+j}\nv_add_f32 v{R+j}, v{R+j}, v{R+8+j}")
    e(f"v_cvt_pk_bf16_f32 v8, v{R}, v{R+1}\nv_cvt_pk_bf16_f32 v9, v{R+2}, v{R+3}")
    e(f"s_cmp_eq_u32 s3, 1\ns_cbranch_scc1 {Lk1}")
    e(f"s_cmp_eq_u32 s3, 2\ns_cbranch_scc1 {Lv0}")
    e(f"s_cmp_eq_u32 s3, 3\ns_cbranch_scc1 {Lv1}")
    e("v_lshl_add_u32 v12, v5, 5, v7\nv_lshlrev_b32 v12, 4, v12\nv_lshl_add_u32 v12, v15, 3, v12")
    e(f"s_branch {Lst}")
    k.label(Lk1)
    e("v_lshlrev_b32 v12, 3, v7\nv_add_u32 v12, 1024, v12")
    e("v_cmp_ne_u32 vcc, 0, v4\nv_mov_b32 v13, 0x7fffffff\nv_cndmask_b32 v12, v12, v13, vcc")
    e(f"s_branch {Lst}")
    k.label(Lv1)
    e("v_add_u32 v3, 16, v3")
    e("v_cmp_eq_u32 vcc, 20, v3\nv_mov_b32 v13, 0x3f803f80\nv_cndmask_b32 v8, v8, v13, vcc\nv_cndmask_b32 v9, v9, v13, vcc")
    e("v_cmp_lt_u32 vcc, 20, v3\nv_mov_b32 v13, 0x1000000\nv_cndmask_b32 v3, v3, v13, vcc")
    k.label(Lv0)
    e("s_mul_i32 s38, s42, 768\ns_add_u32 s38, s38, 1536")
    e("v_mul_u32_u24 v12, 384, v15\nv_lshl_add_u32 v12, v3, 4, v12\nv_lshl_add_u32 v12, v5, 3, v12\nv_add_u32 v12, s38, v12")
    k.label(Lst)
    e(f"buffer_store_dwordx2 v[8:9], v12, s[32:35], s39 offen {SC}")
    e("s_waitcnt vmcnt(0)\ns_barrier")
    setflag(k, "s37", 10)

def roleB(k):
    e = k.e
    SLOT = 20480
    Lgu = k.newlabel("gu0"); Lnp = k.newlabel("nop0")
    bstamp(k, "start")
    e("s_and_b32 s5, s2, 7\ns_lshr_b32 s6, s2, 3")
    e(f"s_cmp_ge_u32 s6, 16\ns_cbranch_scc1 {Lnp}")
    e("s_lshl_b32 s4, s5, 4\ns_add_u32 s4, s4, s6")
    phase0(k)
    e(f"s_branch {Lgu}")
    k.label(Lnp)
    if PREF:
        Lc = k.newlabel("nocp"); Lh = k.newlabel("here")
        e(f"s_cmp_lg_u32 s6, 31\ns_cbranch_scc1 {Lc}")
        e("s_getpc_b64 s[34:35]")
        k.label(Lh)
        e(f"s_sub_u32 s34, s34, {Lh}-{k.name}\ns_subb_u32 s35, s35, 0")
        e(f"v_lshlrev_b32 v9, 7, v0\nv_min_u32 v9, {k.name}_end-{k.name}-4, v9")
        e("global_load_dword v15, v9, s[34:35]")
        k.label(Lc)
    e("s_waitcnt lgkmcnt(0)")
    tag_setup(k)
    tag_finish(k)
    if TV >= 1:
        e("s_sub_u32 s10, s2, 128\ns_lshl_b32 s10, s10, 2\ns_add_u32 s10, s10, s3\nv_lshlrev_b32 v9, 7, v1")
        if TV == 2:
            e(f"s_lshl_b32 s32, s10, 12\ns_add_u32 s34, s{PWD}, s32\ns_addc_u32 s35, s{PWD+1}, 0\ns_cmp_lt_u32 s10, 480\ns_cselect_b32 s34, s34, s{PWD}\ns_cselect_b32 s35, s35, s{PWD+1}")
            e("v_mov_b32 v16, 0\nglobal_load_dword v15, v16, s[34:35]\ns_waitcnt vmcnt(0)")
        touch(k, [(PWG, 240), (PWU, 240)], 15)
        e("s_waitcnt vmcnt(0)")
    if STAMPS:
        for n in ("xl", "xs", "xf"): bstamp(k, n)
    k.label(Lgu)
    bstamp(k, "p0")
    e("s_lshr_b32 s7, s5, 1\ns_lshl_b32 s7, s7, 2\ns_lshr_b32 s8, s6, 3\ns_add_u32 s7, s7, s8")
    e("s_and_b32 s8, s5, 1\ns_lshl_b32 s8, s8, 3\ns_and_b32 s32, s6, 7\ns_add_u32 s8, s8, s32")
    e("s_lshr_b32 s38, s3, 1\ns_and_b32 s39, s3, 1")
    e("s_lshl_b32 s32, s38, 1")
    for i in range(3):
        e(f"v_add_u32 v6, {64*i}, v1\nv_mul_u32_u24 v7, 5462, v6\nv_lshrrev_b32 v7, 16, v7")
        e("v_mul_u32_u24 v8, 12, v7\nv_sub_u32 v8, v6, v8\nv_xor_b32 v8, s32, v8")
        e(f"v_mul_u32_u24 v7, 3072, v7\nv_lshl_add_u32 v{3+i}, v8, 4, v7")
    srd_from(k, 16, PWS, XN_BYTES, XN_OFF)
    e(f"s_cmp_eq_u32 s38, 0\ns_cselect_b32 s20, s{PWG}, s{PWU}\ns_cselect_b32 s21, s{PWG+1}, s{PWU+1}")
    e(f"s_mov_b32 s22, {hex(NBYTES['wg'])}\ns_mov_b32 s23, 0x20000")
    srd_from(k, 28, PWS, AF_BYTES, AF_OFF)
    e("s_mul_i32 s12, s39, 49152\ns_mul_i32 s32, s8, 192\ns_add_u32 s12, s12, s32")
    e("s_lshl_b32 s32, s7, 2\ns_add_u32 s32, s32, s3\ns_mul_i32 s13, s32, 40960")
    e("s_mul_i32 s14, s3, 3072\ns_lshl_b32 s15, s3, 11\ns_add_u32 s15, s15, 12288")
    def issueW(sl):
        return [[f"s_add_u32 m0, s14, {sl*SLOT}"],
                ["buffer_load_dwordx4 v3, s[20:23], s12 offen lds", "s_add_u32 m0, m0, 1024"],
                ["buffer_load_dwordx4 v4, s[20:23], s12 offen lds", "s_add_u32 m0, m0, 1024"],
                ["buffer_load_dwordx4 v5, s[20:23], s12 offen lds", f"s_add_u32 s12, s12, {32*3072}"]]
    def issueX(sl):
        return [[f"s_add_u32 m0, s15, {sl*SLOT}"],
                [f"buffer_load_dwordx4 v2, s[16:19], s13 offen {SC} lds"],
                [f"buffer_load_dwordx4 v2, s[16:19], s13 offen offset:1024 {SC} lds", "s_add_u32 s13, s13, 2048"]]
    for c in range(4):
        for g in issueW(c):
            for x in g: e(x)
    e("v_lshrrev_b32 v6, 5, v1\nv_bfe_u32 v7, v1, 2, 2\nv_lshl_add_u32 v7, v6, 3, v7\nv_mul_u32_u24 v7, 192, v7")
    e("v_and_b32 v8, 1, v1\nv_lshl_add_u32 v7, v8, 4, v7\nv_bfe_u32 v8, v1, 1, 1\nv_lshl_add_u32 v7, v8, 3, v7")
    e("v_bfe_u32 v8, v1, 4, 1\nv_mul_u32_u24 v9, 6144, v8\nv_add_u32 v7, v7, v9")
    e("s_mul_i32 s40, s38, 3")
    for a in range(3):
        e(f"s_add_u32 s32, s40, {a}\nv_xor_b32 v9, s32, v8\nv_lshl_add_u32 v{10+a}, v9, 5, v7")
    e("s_lshl_b32 s32, s39, 12\ns_add_u32 s32, s32, 12288\nv_add_u32 v13, s32, v2")
    ACC = 32; FR = [128, 148]
    for j in range(96): e(f"v_mov_b32 v{ACC+j}, 0")
    e("v_and_b32 v14, 1, v1\nv_lshlrev_b32 v14, 7, v14")
    e(f"s_lshl_b32 s32, s7, 2\ns_add_u32 s32, s32, s3\ns_lshl_b32 s32, s32, 8\ns_add_u32 s32, s32, {XNF}")
    poll(k, "v14", "s32", 15)
    for c in range(4):
        for g in issueX(c):
            for x in g: e(x)
    def reads(fs, sl, ks):
        L = [f"ds_read_b128 {vr(FR[fs]+12,4)}, v13 offset:{sl*SLOT + ks*1024}"]
        for a in range(3):
            for u in range(2):
                L.append(f"ds_read_b64_tr_b16 {vr(FR[fs]+4*a+2*u,2)}, v{10+a} offset:{sl*SLOT + (16*ks+4*u)*192}")
            if a == 0: L.append(f"ds_read_b128 {vr(FR[fs]+16,4)}, v13 offset:{sl*SLOT + 2048 + ks*1024}")
        return L
    def mfmas(fs):
        return [f"{MF} {vr(ACC+16*(2*a+b),16)}, {vr(FR[fs]+4*a,4)}, {vr(FR[fs]+12+4*b,4)}, {vr(ACC+16*(2*a+b),16)}" for a in range(3) for b in range(2)]
    e("s_mov_b32 s42, 0\ns_setprio 0")
    e("s_lshl_b32 s10, s3, 8\ns_add_u32 s10, s10, s2\nv_lshlrev_b32 v9, 7, v1")
    e("s_waitcnt vmcnt(0)\ns_barrier")
    bstamp(k, "gu0")
    for x in reads(0, 0, 0): e(x)
    L = k.newlabel("gu")
    k.label(L, 6)
    for sl in range(4):
        e("s_waitcnt lgkmcnt(0)")
        rd = reads(1, sl, 1); mf = mfmas(0)
        sh = [rd[0:2], rd[2:4], rd[4:6], rd[6:8], [], []]
        if sl == 0: sh[4] = ["s_cmp_ge_u32 s42, 4", "s_cselect_b32 s13, 0x7ff00000, s13"]
        for i in range(6):
            e(mf[i])
            for x in sh[i]: e(x)
        if sl == 1 and TV >= 1:
            Lt = k.newlabel("nt2")
            e(f"s_cmp_lg_u32 s42, 2\ns_cbranch_scc1 {Lt}")
            touch(k, [(PWD, 240), (PWO, 100)], 15)
            k.label(Lt)
        e("s_waitcnt vmcnt(10) lgkmcnt(0)\ns_barrier")
        rd = reads(0, (sl+1) % 4, 0); mf = mfmas(1)
        iw = issueW(sl); ix = issueX(sl)
        sh = [rd[0:2] + iw[0], rd[2:4] + iw[1], rd[4:6] + iw[2], rd[6:8] + iw[3] + ix[0], ix[1], ix[2]]
        if sl == 3: sh[5] = sh[5] + ["s_add_u32 s42, s42, 1", "s_cmp_lt_u32 s42, 5"]
        for i in range(6):
            e(mf[i])
            for x in sh[i]: e(x)
    e(f"s_cbranch_scc1 {L}")
    e("s_setprio 2")
    e("s_lshl_b32 s9, s5, 2\ns_lshr_b32 s10, s6, 3\ns_add_u32 s9, s9, s10\ns_and_b32 s10, s6, 7")
    w160_voffs(k, 3, 16)
    srd_from(k, 20, PWD, NBYTES['wd'])
    e(f"s_mul_i32 s12, s3, {384*1280}\ns_mul_i32 s33, s10, 160\ns_add_u32 s12, s12, s33")
    e(f"s_mul_i32 s11, s3, {160*1280}\ns_add_u32 s11, s11, s33")
    e(f"s_mul_i32 s14, s3, {SLOT}")
    e("s_waitcnt vmcnt(0) lgkmcnt(0)\ns_barrier")
    bstamp(k, "gu1")
    def issueW2(sl):
        L = []
        for i in range(5):
            L.append([f"s_add_u32 m0, s14, {sl*5120 + i*1024}", f"buffer_load_dwordx4 v{3+i}, s[20:23], s12 offen lds"])
        L[4].append(f"s_add_u32 s12, s12, {32*1280}")
        return L
    for g in range(4):
        for x in issueW2(g):
            for y in x: e(y)
    e(f"s_mov_b32 s33, {hex(f32bits(-math.log2(math.e)))}")
    e(f"s_lshl_b32 s32, s7, 1\ns_add_u32 s32, s32, s39\ns_mul_i32 s32, s32, 272\ns_mul_i32 s43, s8, 6")
    e("s_add_u32 s32, s32, s43\ns_add_u32 s32, s32, s40\ns_add_u32 s32, s32, 40\ns_lshl_b32 s32, s32, 10")
    e(f"s_add_u32 s34, s32, {136*1024}")
    T = 128
    for a in range(3):
        for b in range(2):
            g = ACC + 16*(2*a+b); u = g + 8
            for j in range(8): e(f"v_mul_f32 v{T+j}, s33, v{g+j}")
            for j in range(8): e(f"v_exp_f32 v{T+j}, v{T+j}")
            for j in range(0, 8, 2): e(f"v_pk_mul_f32 {vr(g+j,2)}, {vr(g+j,2)}, {vr(u+j,2)}")
            for j in range(0, 8, 2): e(f"v_pk_add_f32 {vr(T+j,2)}, {vr(T+j,2)}, 1.0 op_sel_hi:[1,0]")
            for j in range(8): e(f"v_rcp_f32 v{T+j}, v{T+j}")
            for j in range(0, 8, 2): e(f"v_pk_mul_f32 {vr(g+j,2)}, {vr(g+j,2)}, {vr(T+j,2)}")
            for j in range(4): e(f"v_cvt_pk_bf16_f32 v{u+j}, v{g+2*j}, v{g+2*j+1}")
            e(f"buffer_store_dwordx4 {vr(u,4)}, v2, s[28:31], {'s34' if b else 's32'} offen offset:{a*1024} {SC}")
    e("v_lshrrev_b32 v8, 5, v1\nv_bfe_u32 v9, v1, 2, 2\nv_lshl_add_u32 v9, v8, 2, v9\nv_mul_u32_u24 v9, 320, v9\nv_add_u32 v9, s14, v9")
    e("v_and_b32 v16, 1, v1\nv_bfe_u32 v17, v1, 1, 1\nv_bfe_u32 v18, v1, 4, 1")
    e("v_lshl_add_u32 v10, v16, 5, v9\nv_lshl_add_u32 v10, v17, 3, v10\nv_lshl_add_u32 v10, v18, 4, v10")
    e("v_lshl_add_u32 v11, v16, 4, v9\nv_lshl_add_u32 v11, v17, 3, v11\nv_add_u32 v11, 128, v11\nv_lshl_add_u32 v11, v18, 18, v11")
    e(f"s_lshl_b32 s35, s7, 4\ns_add_u32 s36, s35, s8\ns_lshl_b32 s36, s36, 7\ns_add_u32 s36, s36, {HF}")
    e("s_waitcnt vmcnt(0)\ns_barrier")
    setflag(k, "s36", 16)
    for j in range(96): e(f"v_mov_b32 v{ACC+j}, 0")
    e(f"s_mul_i32 s24, s9, {272*1024}\ns_mul_i32 s32, s3, {24*1024}\ns_add_u32 s26, s24, s32\ns_add_u32 s26, s26, {40*1024}\ns_add_u32 s27, s26, {136*1024}")
    e("v_and_b32 v14, 3, v1\nv_lshlrev_b32 v14, 7, v14")
    e(f"s_lshr_b32 s35, s9, 1\ns_lshl_b32 s35, s35, 4\ns_lshl_b32 s32, s3, 2\ns_add_u32 s32, s32, s35\ns_lshl_b32 s32, s32, 7\ns_add_u32 s32, s32, {HF}")
    poll(k, "v14", "s32", 16)
    XR = 128; FA = [208, 220]
    def issueX2(rs):
        L = []
        for ks in range(2):
            for b in range(2):
                L.append([f"buffer_load_dwordx4 {vr(XR+16*rs+8*ks+4*b,4)}, v2, s[28:31], s{26+b} offen offset:{ks*1024} {SC}"])
        L[3] += ["s_add_u32 s26, s26, 2048", "s_add_u32 s27, s27, 2048"]
        return L
    for g in range(4):
        for x in issueX2(g):
            for y in x: e(y)
    def reads2(fs, sl, ks):
        L = []
        for a in range(3):
            for u in range(2):
                ad, off = ("v10", a*64) if a < 2 else ("v11", 0)
                L.append(f"ds_read_b64_tr_b16 {vr(FA[fs]+4*a+2*u,2)}, {ad} offset:{sl*5120 + ks*2560 + u*160 + off}")
        return L
    def mfmas2(fs, rs, ks):
        return [f"{MF} {vr(ACC+16*(3*b+a),16)}, {vr(FA[fs]+4*a,4)}, {vr(XR+16*rs+8*ks+4*b,4)}, {vr(ACC+16*(3*b+a),16)}" for a in range(3) for b in range(2)]
    e("s_mov_b32 s42, 0\ns_setprio 0")
    for x in reads2(0, 0, 0): e(x)
    e("s_waitcnt vmcnt(0)")
    bstamp(k, "dn0")
    L = k.newlabel("dn")
    k.label(L, 6)
    for sl in range(4):
        e("s_waitcnt lgkmcnt(0)")
        rd = reads2(1, sl, 1); mf = mfmas2(0, sl, 0)
        sh = [rd[0:2], rd[2:4], rd[4:6], [], [], []]
        if sl == 0:
            sh[3] = ["s_cmp_eq_u32 s42, 2", f"s_cselect_b32 s20, s{PWO}, s20", f"s_cselect_b32 s21, s{PWO+1}, s21"]
            sh[4] = [f"s_cselect_b32 s22, {hex(NBYTES['wo'])}, s22", "s_cselect_b32 s12, s11, s12"]
            sh[5] = ["s_cselect_b32 s26, 0x7ff00000, s26", "s_cselect_b32 s27, 0x7ff00000, s27"]
        for i in range(6):
            e(mf[i])
            for x in sh[i]: e(x)
        e("s_waitcnt vmcnt(18) lgkmcnt(0)")
        rd = reads2(0, (sl+1) % 4, 0); mf = mfmas2(1, sl, 1)
        iw = issueW2(sl); ix = issueX2(sl)
        sh = [rd[0:2] + iw[0], rd[2:4] + iw[1], rd[4:6] + iw[2], iw[3], iw[4], ix[0] + ix[1] + ix[2] + ix[3]]
        if sl == 3: sh[5] = sh[5] + ["s_add_u32 s42, s42, 1", "s_cmp_lt_u32 s42, 3"]
        for i in range(6):
            e(mf[i])
            for x in sh[i]: e(x)
    e(f"s_cbranch_scc1 {L}")
    e("s_setprio 2")
    for x in reads2(1, 0, 1): e(x)
    e("s_waitcnt lgkmcnt(0)")
    for x in issueW2(0):
        for y in x: e(y)
    srd_from(k, 16, PX, NBYTES['x'])
    srd_from(k, 36, POUT, NBYTES['out'])
    e("s_lshr_b32 s40, s3, 1\ns_and_b32 s41, s3, 1")
    e("s_lshl_b32 s32, s9, 1\ns_add_u32 s32, s32, s40\ns_mul_i32 s32, s32, 40960\ns_mul_i32 s33, s10, 160\ns_add_u32 s43, s32, s33")
    e("v_and_b32 v16, 31, v1\nv_mul_u32_u24 v16, 1280, v16")
    e("s_lshl_b32 s32, s41, 6\nv_lshl_add_u32 v12, v8, 5, v16\nv_add_u32 v12, s32, v12")
    e("s_lshl_b32 s32, s41, 3\ns_add_u32 s32, s32, 128\nv_lshl_add_u32 v13, v8, 4, v16\nv_add_u32 v13, s32, v13")
    XS = 232
    e(f"buffer_load_dwordx4 {vr(XS,4)}, v12, s[16:19], s43 offen")
    e(f"buffer_load_dwordx4 {vr(XS+4,4)}, v12, s[16:19], s43 offen offset:16")
    e(f"buffer_load_dwordx2 {vr(XS+8,2)}, v13, s[16:19], s43 offen")
    e(f"s_mul_i32 s32, s3, {10*1024}\ns_add_u32 s26, s24, s32\ns_add_u32 s27, s26, {136*1024}")
    e("v_and_b32 v14, 1, v1\nv_lshlrev_b32 v14, 7, v14")
    e(f"s_lshl_b32 s32, s9, 3\ns_lshl_b32 s33, s3, 1\ns_add_u32 s32, s32, s33\ns_lshl_b32 s32, s32, 7\ns_add_u32 s32, s32, {OF}")
    bstamp(k, "dn1")
    poll(k, "v14", "s32", 16)
    bstamp(k, "of")
    for g in range(5):
        for x in issueX2(g):
            for y in x: e(y)
    for t in range(10):
        g, ks = t >> 1, t & 1
        e(f"s_waitcnt vmcnt({18 - 2*t}) lgkmcnt({6 if t < 9 else 0})")
        mf = mfmas2(t & 1, g, ks)
        for i in range(6): e(mf[i])
        if t + 2 < 10:
            g2, ks2 = (t+2) >> 1, (t+2) & 1
            for x in reads2(t & 1, g2 % 4, ks2): e(x)
    bstamp(k, "mm")
    e("v_add_u32 v14, s14, v2")
    for b in range(2):
        for q in range(10):
            e(f"ds_write_b128 v14, {vr(ACC+48*b+4*q,4)} offset:{(10*b+q)*1024}")
    e("s_mul_i32 s32, s40, 10240\ns_lshl_b32 s33, s41, 12\ns_add_u32 s33, s33, s32\nv_add_u32 v15, s33, v2")
    e("s_lshl_b32 s33, s41, 10\ns_add_u32 s33, s33, s32\ns_add_u32 s33, s33, 8192\nv_add_u32 v16, s33, v2")
    e("s_waitcnt lgkmcnt(0)\ns_barrier")
    R = 128
    for w in range(4):
        for q in range(4):
            e(f"ds_read_b128 {vr(R+20*w+4*q,4)}, v15 offset:{w*SLOT + q*1024}")
        e(f"ds_read_b128 {vr(R+20*w+16,4)}, v16 offset:{w*SLOT}")
    for j in range(10):
        e(f"v_lshlrev_b32 v{ACC+2*j}, 16, v{XS+j}\nv_and_b32 v{ACC+2*j+1}, 0xffff0000, v{XS+j}")
    for w in range(4):
        e(f"s_waitcnt lgkmcnt({15-5*w})")
        for j in range(0, 20, 2):
            e(f"v_pk_add_f32 {vr(ACC+j,2)}, {vr(ACC+j,2)}, {vr(R+20*w+j,2)}")
    for j in range(10):
        e(f"v_cvt_pk_bf16_f32 v{XS+j}, v{ACC+2*j}, v{ACC+2*j+1}")
    bstamp(k, "rd")
    e(f"buffer_store_dwordx4 {vr(XS,4)}, v12, s[36:39], s43 offen")
    e(f"buffer_store_dwordx4 {vr(XS+4,4)}, v12, s[36:39], s43 offen offset:16")
    e(f"buffer_store_dwordx2 {vr(XS+8,2)}, v13, s[36:39], s43 offen")
    stamp_dump(k, 0, 9, "s2", PWS)
    e("s_endpgm")

def roleA(k):
    e = k.e
    KVSLOT = 24576
    stamp(k, 0)
    if AMAP == 0:
        e("s_and_b32 s8, s2, 7\ns_lshl_b32 s8, s8, 2\ns_lshr_b32 s9, s2, 6\ns_add_u32 s8, s8, s9")
        e("s_lshr_b32 s9, s2, 3\ns_and_b32 s9, s9, 7")
    else:
        e("s_bfe_u32 s8, s2, 0x20001\ns_lshl_b32 s8, s8, 3\ns_lshr_b32 s9, s2, 5\ns_add_u32 s8, s8, s9")
        e("s_and_b32 s9, s2, 1\ns_lshl_b32 s9, s9, 2\ns_bfe_u32 s32, s2, 0x20003\ns_add_u32 s9, s9, s32")
    e("s_add_u32 s11, s8, s9\ns_mul_i32 s32, s11, 52\ns_lshr_b32 s32, s32, 8\ns_mul_i32 s32, s32, 5\ns_sub_u32 s11, s11, s32")
    w160_voffs(k, 10, 3)
    e("s_mul_i32 s12, s3, 40960\ns_mul_i32 s32, s9, 160\ns_add_u32 s12, s12, s32")
    e("s_mul_i32 s14, s3, 5120")
    e("s_lshl_b32 s10, s2, 2\ns_add_u32 s10, s10, s3\nv_lshlrev_b32 v9, 7, v1")
    e("s_waitcnt lgkmcnt(0)")
    if os.environ.get("AS1") == "pre": stamp(k, 1)
    srd_from(k, 20, PWQ, NBYTES['wq'])
    if WQP:
        e("s_lshr_b32 s32, s2, 3\ns_lshl_b32 s32, s32, 2\ns_add_u32 s32, s32, s3\ns_mul_i32 s32, s32, 6400")
        e("v_min_u32 v9, 49, v1\nv_lshlrev_b32 v9, 7, v9")
        e("buffer_load_dword v15, v9, s[20:23], s32 offen")
    def rot_first(dst, base, step):
        e(f"s_mul_i32 {dst}, s11, {step}\ns_add_u32 {dst}, {dst}, {base}\ns_add_u32 s33, {base}, {5*step}")
    def rot_next(dst, base, step):
        e(f"s_add_u32 {dst}, {dst}, {step}\ns_cmp_eq_u32 {dst}, s33\ns_cselect_b32 {dst}, {base}, {dst}")
    ST = 64
    rot_first("s32", "s12", 4*40960)
    for r in range(5):
        for i in range(5):
            if r < 4:
                e(f"s_add_u32 m0, s14, {r*20480 + i*1024}")
                e(f"buffer_load_dwordx4 v{10+i}, s[20:23], s32 offen lds")
            else:
                e(f"buffer_load_dwordx4 {vr(ST+4*i,4)}, v{10+i}, s[20:23], s32 offen")
        if r < 4: rot_next("s32", "s12", 4*40960)
    if os.environ.get("AS1") != "pre": stamp(k, 1)
    tag_setup(k)
    srd_from(k, 16, PWS, XN_BYTES, XN_OFF)
    srd_from(k, 24, PWS, KV_BYTES, KV_OFF)
    srd_from(k, 28, PWS, AF_BYTES, AF_OFF)
    e("v_lshrrev_b32 v6, 5, v1")
    e("v_bfe_u32 v7, v1, 2, 2\nv_lshl_add_u32 v7, v6, 2, v7\nv_mul_u32_u24 v4, 320, v7")
    e("v_and_b32 v7, 1, v1\nv_lshlrev_b32 v7, 4, v7")
    e("v_bfe_u32 v8, v1, 1, 1\nv_lshl_add_u32 v7, v8, 3, v7")
    e("v_and_b32 v8, 16, v1\nv_cmp_ne_u32 vcc, 0, v8\nv_mov_b32 v8, 32\nv_cndmask_b32 v7, v7, v8, vcc")
    e("v_add_u32 v4, v4, v7\ns_mul_i32 s32, s3, 40\nv_add_u32 v4, s32, v4")
    e("v_and_b32 v8, 19, v1\nv_cmp_lt_u32 vcc, 16, v8\nv_mov_b32 v8, 0x40000\nv_cndmask_b32 v4, v4, v8, vcc")
    e("v_add_u32 v5, 40960, v4")
    WQ = 96
    tag_finish(k)
    e("s_waitcnt vmcnt(5)\ns_barrier")
    stamp(k, 2)
    def wq_read(ks, lks):
        for u in range(2):
            off = lks*2560 + u*160
            ad = "v4"
            if off >= 40960: ad = "v5"; off -= 40960
            e(f"ds_read_b64_tr_b16 {vr(WQ+4*ks+2*u,2)}, {ad} offset:{off}")
    for ks in range(32): wq_read(ks, ks)
    e("v_add_u32 v3, s14, v2")
    e("s_waitcnt lgkmcnt(0) vmcnt(0)\ns_barrier")
    for i in range(5):
        e(f"ds_write_b128 v3, {vr(ST+4*i,4)} offset:{i*1024}")
    e("s_waitcnt lgkmcnt(0)\ns_barrier")
    for ks in range(32, 40): wq_read(ks, ks - 32)
    e("s_lshr_b32 s32, s3, 1\ns_lshl_b32 s33, s8, 1\ns_add_u32 s37, s32, s33\ns_mul_i32 s13, s37, 40960")
    e("s_and_b32 s32, s3, 1\ns_lshl_b32 s32, s32, 12\ns_add_u32 s13, s13, s32")
    e("s_lshl_b32 s15, s3, 12")
    e("s_waitcnt lgkmcnt(0)\ns_barrier")
    stamp(k, 3)
    e("v_and_b32 v14, 1, v1\nv_lshlrev_b32 v14, 7, v14\nv_lshlrev_b32 v13, 3, v1")
    e(f"s_lshl_b32 s32, s37, 8\ns_add_u32 s32, s32, {XNF}")
    poll(k, "v14", "s32", 16)
    stamp(k, 4)
    rot_first("s32", "s13", 8192)
    for s in range(5):
        e(f"s_add_u32 m0, s15, {s*16384}")
        for i in range(4):
            e(f"buffer_load_dwordx4 v2, s[16:19], s32 offen offset:{i*1024} {SC} lds")
        if s < 4: rot_next("s32", "s13", 8192)
    e("s_mul_i32 s36, s3, 6144")
    def kv_issue(chunk_soff, slot_base):
        for half in range(2):
            e(f"s_add_u32 m0, s36, {slot_base + half*3072}")
            e(f"s_add_u32 s32, s36, {chunk_soff + half*3072}")
            for j in range(3):
                e(f"buffer_load_dwordx4 v2, s[24:27], s32 offen offset:{j*1024} {SC} lds")
    S0, S1 = 32, 48
    FB = 64
    e("v_add_u32 v5, 49152, v2")
    e(f"s_mov_b32 s38, {KVF}")
    def xrd(s, i):
        off = s*16384 + (i & 1)*8192 + (i >> 1)*1024
        ad = "v2"
        if off >= 49152: ad = "v5"; off -= 49152
        return f"ds_read_b128 {vr(FB+4*(i&7),4)}, {ad} offset:{off}"
    for s in range(5):
        e(f"s_waitcnt vmcnt({16-4*s})\ns_barrier")
        if s == 4: poll(k, "v13", "s38", 16, nloads=2, pre_issued="issue", x2=True)
        for i in range(8): e(xrd(s, i))
        for i in range(16):
            ks = 8*s + (i >> 1); b = i & 1
            e(f"s_waitcnt lgkmcnt({7 if i < 9 else 15-i})")
            acc = vr(S0+16*b, 16)
            e(f"{MF} {acc}, {vr(WQ+4*ks,4)}, {vr(FB+4*(i&7),4)}, {'0' if ks == 0 else acc}")
            if i < 8: e(xrd(s, i+8))
    stamp(k, 5)
    poll(k, "v13", "s38", 16, nloads=2, pre_issued=True, x2=True)
    kv_issue(0, 0)
    kv_issue(KVSLOT, KVSLOT)
    stamp(k, 6)
    Q = [16, 24]; O = [64, 80]; P = [96, 104]; KVB = [112, 128]
    KL = lambda s: KVB[s]; KH = lambda s: KVB[s]+4; V0 = lambda s: KVB[s]+8; V1 = lambda s: KVB[s]+12
    T = 144
    e(f"s_mov_b32 s33, {hex(f32bits(QSCALE))}")
    for b in range(2):
        for j in range(6):
            t = T + 2*(j & 1); dst = Q[b] + j; src = S0 + 16*b + 2*j
            e(f"v_cvt_pk_bf16_f32 v{dst}, v{src}, v{src+1}")
            e(f"v_lshlrev_b32 v{t}, 16, v{dst}\nv_and_b32 v{t+1}, 0xffff0000, v{dst}")
            e(f"v_mul_f32 v{t}, s33, v{t}\nv_mul_f32 v{t+1}, s33, v{t+1}")
            e(f"v_cvt_pk_bf16_f32 v{dst}, v{t}, v{t+1}")
        e(f"v_mov_b32 v{Q[b]+6}, 0\nv_mov_b32 v{Q[b]+7}, 0")
    for s in range(2):
        e(f"v_mov_b32 v{KH(s)+2}, 0x3f80\nv_mov_b32 v{KH(s)+3}, 0")
    AKL, AKH, AV, BKH, BV = 8, 9, 10, 11, 12
    e(f"v_and_b32 v7, 31, v1\nv_lshlrev_b32 v{BKH}, 3, v7\nv_add_u32 v{BKH}, 1024, v{BKH}\nv_lshl_add_u32 v{BKH}, v6, 18, v{BKH}")
    e(f"v_mul_u32_u24 v{BV}, 24, v6\nv_add_u32 v{BV}, v{BV}, v7")
    e("v_cmp_le_u32 vcc, 28, v7\nv_cndmask_b32 v13, 0, 1, vcc\nv_xor_b32 v13, v13, v6\nv_mul_u32_u24 v13, 24, v13\nv_add_u32 v13, 20, v13")
    e("v_and_b32 v15, 27, v7\nv_cmp_ne_u32 vcc, 24, v15\nv_mov_b32 v15, 0x4000\nv_cndmask_b32 v13, v13, v15, vcc")
    e(f"v_cmp_le_u32 vcc, 20, v7\nv_cndmask_b32 v{BV}, v{BV}, v13, vcc")
    e(f"v_lshlrev_b32 v{BV}, 4, v{BV}\nv_add_u32 v{BV}, 1536, v{BV}")
    KT = 160
    for t in range(4): e(f"v_mov_b32 v{KT+8*t+6}, 0\nv_mov_b32 v{KT+8*t+7}, 0")
    for j in range(8): e(f"v_mov_b32 v{P[1]+j}, 0\nv_mov_b32 v{V0(1)+j}, 0")
    e(f"v_mov_b32 v{AKL}, v2\nv_mov_b32 v{AKH}, v{BKH}\nv_mov_b32 v{AV}, v{BV}")
    e("s_waitcnt vmcnt(6)\ns_barrier")
    for t in range(4):
        e(f"ds_read_b128 {vr(KT+8*t,4)}, v2 offset:{t*3072}")
        e(f"ds_read_b64 {vr(KT+8*t+4,2)}, v{BKH} offset:{t*3072}")
    for s in range(2):
        e(f"ds_read_b128 {vr(KL(s),4)}, v2 offset:{s*3072}\nds_read_b64 {vr(KH(s),2)}, v{BKH} offset:{s*3072}")
    e(f"ds_read_b128 {vr(V0(0),4)}, v{BV}\nds_read_b128 {vr(V1(0),4)}, v{BV} offset:768")
    SX = [32, 48, 64, 80, 192, 208, 224, 240]
    MX = [13, 14]
    for i in range(8):
        t = i >> 1; b = i & 1
        if b == 0: e(f"s_waitcnt lgkmcnt({12 - 2*t})")
        e(f"{MF} {vr(SX[i],16)}, {vr(KT+8*t,4)}, {vr(Q[b],4)}, 0")
        e(f"{MF} {vr(SX[i],16)}, {vr(KT+8*t+4,4)}, {vr(Q[b]+4,4)}, {vr(SX[i],16)}")
        if i >= 2:
            ii = i - 2; S = SX[ii]; bb = ii & 1
            if ii < 2:
                e(f"v_max3_f32 v{MX[bb]}, v{S}, v{S+1}, v{S+2}\nv_max_f32 v{MX[bb]}, v{MX[bb]}, v{S+3}"); rng = range(4, 16, 2)
            else: rng = range(0, 16, 2)
            for j in rng: e(f"v_max3_f32 v{MX[bb]}, v{MX[bb]}, v{S+j}, v{S+j+1}")
    for j in range(32): e(f"v_mov_b32 v{O[0]+j}, 0")
    for j in range(4): e(f"v_mov_b32 v{S1+12+j}, 0")
    for ii in (6, 7):
        S = SX[ii]; bb = ii & 1
        for j in range(0, 16, 2): e(f"v_max3_f32 v{MX[bb]}, v{MX[bb]}, v{S+j}, v{S+j+1}")
    e("v_cmp_ne_u32 vcc, 0, v6")
    for b in range(2):
        e(f"v_mov_b32 v15, v{MX[b]}\nv_permlane32_swap_b32 v{MX[b]}, v15\nv_max_f32 v{MX[b]}, v{MX[b]}, v15")
        e(f"v_add_f32 v{MX[b]}, {hex(f32bits(OFFS))}, v{MX[b]}")
        e(f"v_cvt_pk_bf16_f32 v{MX[b]}, -v{MX[b]}, 0")
        e(f"v_cndmask_b32 v{Q[b]+6}, v{MX[b]}, 0, vcc")
    e("s_waitcnt lgkmcnt(0)")
    e(f"{MF} {vr(S0,16)}, {vr(KL(0),4)}, {vr(Q[0],4)}, 0")
    e(f"{MF} {vr(S0,16)}, {vr(KH(0),4)}, {vr(Q[0]+4,4)}, {vr(S0,16)}")
    e(f"s_mov_b32 s40, 0\ns_mov_b32 s41, {KVSLOT}\ns_add_u32 s42, s36, {2*KVSLOT}\ns_add_u32 s43, s36, {2*KVSLOT}\ns_add_u32 s39, s36, {3*KVSLOT}")
    dma = lambda so, off: f"buffer_load_dwordx4 v2, s[24:27], {so} offen offset:{off} {SC} lds"
    if RDM == 0:
        extra = {(2, 0): ["s_mov_b32 m0, s42"], (2, 1): ["s_add_u32 s38, s43, 4096"], (2, 2): ["s_waitcnt vmcnt(0)", "s_barrier"],
             (3, 0): [dma("s43", 0), dma("s43", 1024)], (3, 2): [dma("s43", 2048), dma("s43", 3072)],
             (4, 0): ["s_add_u32 m0, s42, 4096"], (4, 1): [dma("s38", 0), dma("s38", 1024)],
             (5, 1): [f"s_add_u32 s43, s43, {KVSLOT}"], (5, 2): ["s_add_u32 s40, s40, 1"],
             (7, 0): ["s_sub_u32 s41, s42, s36", f"s_add_u32 s42, s42, {KVSLOT}"], (7, 1): ["s_cmp_eq_u32 s42, s39", "s_cselect_b32 s42, s36, s42"],
             (7, 2): ["s_cmp_lt_u32 s40, 8"]}
    else:
        extra = {(1, 0): ["s_mov_b32 m0, s42"], (1, 1): ["s_add_u32 s38, s43, 4096"], (1, 3): ["s_waitcnt vmcnt(0)", "s_barrier"],
             (2, 3): [dma("s43", 0), dma("s43", 1024)], (3, 3): [dma("s43", 2048), dma("s43", 3072)],
             (4, 0): ["s_add_u32 m0, s42, 4096"], (4, 3): [dma("s38", 0), dma("s38", 1024)],
             (5, 0): [f"s_add_u32 s43, s43, {KVSLOT}"], (5, 1): ["s_add_u32 s40, s40, 1"], (5, 2): [f"s_add_u32 s37, s42, {KVSLOT}"],
             (6, 0): ["s_cmp_eq_u32 s37, s39"], (6, 1): ["s_cselect_b32 s37, s36, s37"],
             (7, 0): ["s_sub_u32 s41, s42, s36"], (7, 1): ["s_mov_b32 s42, s37"],
             (7, 2): ["s_cmp_lt_u32 s40, 8"]}
    stamp(k, 7)
    e("s_nop 8")
    Lloop = k.newlabel("att")
    k.label(Lloop, 6)
    for jj in range(8):
        for blk in range(2):
            Sc, Sn = (S0, S1) if blk == 0 else (S1, S0)
            valu = []
            def cv(S, Pb, g):
                return [f"v_cvt_pk_bf16_f32 v{Pb+2*g}, v{S+4*g}, v{S+4*g+1}", f"v_cvt_pk_bf16_f32 v{Pb+2*g+1}, v{S+4*g+2}, v{S+4*g+3}"]
            for g in range(4):
                for j in range(4): valu.append(f"v_exp_f32 v{Sc+4*g+j}, v{Sc+4*g+j}")
                valu += cv(Sn, P[1-blk], 3) if g == 0 else cv(Sc, P[blk], g-1)
            ks = (jj + blk) & 1; vs = (jj - 1 + blk) & 1; nb = 1 - blk
            ko = ((jj + 2) % 8) * 3072; vo = ((jj + 1) % 8) * 3072
            mf = [[f"{MF} {vr(Sn,16)}, {vr(KL(ks),4)}, {vr(Q[nb],4)}, 0"],
                  [f"{MF} {vr(Sn,16)}, {vr(KH(ks),4)}, {vr(Q[nb]+4,4)}, {vr(Sn,16)}"],
                  [f"{MF} {vr(O[nb],16)}, {vr(V0(vs),4)}, {vr(P[nb],4)}, {vr(O[nb],16)}"],
                  [f"{MF} {vr(O[nb],16)}, {vr(V1(vs),4)}, {vr(P[nb]+4,4)}, {vr(O[nb],16)}"]]
            if RDM == 0:
                if blk == 0:
                    mf[0].append(f"ds_read_b128 {vr(KL(ks),4)}, v{AKL} offset:{ko}")
                    mf[1].append(f"ds_read_b64 {vr(KH(ks),2)}, v{AKH} offset:{ko}")
                    mf[2].append(f"ds_read_b128 {vr(V0(vs),4)}, v{AV} offset:{vo}")
                    mf[3].append(f"ds_read_b128 {vr(V1(vs),4)}, v{AV} offset:{vo+768}")
                else:
                    mf[3].append("s_waitcnt lgkmcnt(0)")
            else:
                if blk == 0:
                    mf[1].append("s_waitcnt lgkmcnt(0)")
                    mf[3].append(f"ds_read_b128 {vr(KL(ks),4)}, v{AKL} offset:{ko}")
                    mf[3].append(f"ds_read_b64 {vr(KH(ks),2)}, v{AKH} offset:{ko}")
                else:
                    mf[3].append(f"ds_read_b128 {vr(V0(1-vs),4)}, v{AV} offset:{vo}")
                    mf[3].append(f"ds_read_b128 {vr(V1(1-vs),4)}, v{AV} offset:{vo+768}")
            if blk == 1:
                if jj == 5: valu.append(f"v_add_u32 v{AKL}, s41, v2"); valu.append(f"v_add_u32 v{AKH}, s41, v{BKH}")
                if jj == 6: valu.append(f"v_add_u32 v{AV}, s41, v{BV}")
            mf = [mf[2], mf[0], mf[1], mf[3]]
            if blk == 1:
                for m in range(4): mf[m] += extra.get((jj, m), [])
            for i, v in enumerate(valu):
                for m in range(4):
                    if PATTERN[m] == i:
                        for x in mf[m]: e(x)
                e(v)
    e(f"s_cbranch_scc1 {Lloop}")
    e(f"v_cvt_pk_bf16_f32 v{P[1]+6}, v{S1+12}, v{S1+13}\nv_cvt_pk_bf16_f32 v{P[1]+7}, v{S1+14}, v{S1+15}")
    e(f"{MF} {vr(O[1],16)}, {vr(V0(1),4)}, {vr(P[1],4)}, {vr(O[1],16)}")
    e(f"{MF} {vr(O[1],16)}, {vr(V1(1),4)}, {vr(P[1]+4,4)}, {vr(O[1],16)}")
    e("s_waitcnt lgkmcnt(0)")
    stamp(k, 8)
    e("s_lshl_b32 s32, s9, 2\ns_add_u32 s32, s32, s3\ns_mul_i32 s32, s32, 20")
    e(f"s_mul_i32 s33, s8, {2*136*1024}")
    e("v_and_b32 v7, 31, v1\nv_lshlrev_b32 v7, 4, v7")
    A0 = 144
    for j in range(3):
        a = A0 + j
        e(f"v_lshl_add_u32 v{a}, v6, 2, s32\nv_add_u32 v{a}, {8*j}, v{a}")
        e(f"v_lshrrev_b32 v{A0+3}, 3, v{a}\nv_lshl_add_u32 v{A0+3}, v{A0+3}, 9, v7")
        e(f"v_and_b32 v{a}, 4, v{a}\nv_lshl_add_u32 v{a}, v{a}, 1, v{A0+3}")
    e(f"v_cmp_ne_u32 vcc, 0, v6\nv_mov_b32 v{A0+3}, 0x7fffffff\nv_cndmask_b32 v{A0+2}, v{A0+2}, v{A0+3}, vcc")
    for b in range(2):
        e(f"v_rcp_f32 v{A0+4+b}, v{O[b]+12}")
        for j in range(12): e(f"v_mul_f32 v{O[b]+j}, v{O[b]+j}, v{A0+4+b}")
        for j in range(6): e(f"v_cvt_pk_bf16_f32 v{S0+8*b+j}, v{O[b]+2*j}, v{O[b]+2*j+1}")
        for j in range(3):
            e(f"buffer_store_dwordx2 {vr(S0+8*b+2*j,2)}, v{A0+j}, s[28:31], s33 offen {SC}")
        if b == 0: e(f"s_add_u32 s33, s33, {136*1024}")
    e(f"s_lshl_b32 s32, s8, 3\ns_add_u32 s32, s32, s9\ns_lshl_b32 s32, s32, 7\ns_add_u32 s32, s32, {OF}")
    e("s_waitcnt vmcnt(0)\ns_barrier")
    setflag(k, "s32", 16)
    Lx = k.newlabel("axit")
    e(f"s_or_b32 s32, s2, s3\ns_cmp_lg_u32 s32, 0\ns_cbranch_scc1 {Lx}")
    e(f"v_lshlrev_b32 v13, 7, v1\ns_mov_b32 s38, {HF}")
    poll(k, "v13", "s38", 16, nloads=8)
    setflag(k, "0", 16)
    k.label(Lx)
    stamp_dump(k, 1, 9, "s2", PWS)
    e("s_endpgm")

def gen_mega(name="parallel_sum__grouped_kv_mqa__swiglu_ffn__prompt_kernel"):
    k = Kernel(name); e = k.e
    LA = k.newlabel("roleA"); LB = k.newlabel("roleB")
    e("s_load_dwordx16 s[48:63], s[0:1], 0\ns_load_dwordx8 s[64:71], s[0:1], 64")
    e("v_and_b32 v1, 63, v0\nv_lshrrev_b32 v2, 6, v0\nv_readfirstlane_b32 s3, v2\nv_lshlrev_b32 v2, 4, v1")
    e(f"s_cmp_lt_u32 s2, 256\ns_cbranch_scc1 {LB}\ns_cmp_lt_u32 s2, 512\ns_cbranch_scc1 {LA}\ns_endpgm")
    k.label(LB)
    e("s_setprio 2")
    roleB(k)
    k.label(LA, 6)
    e("s_sub_u32 s2, s2, 256\ns_setprio 1")
    roleA(k)
    k.label(f"{k.name}_end")
    k.lds = 81920; k.grid = 512; k.block = 256
    return k

if __name__ == "__main__":
    import sys
    from build import emit
    emit([gen_mega()], sys.argv[1] if len(sys.argv) > 1 else "parallel_sum__grouped_kv_mqa__swiglu_ffn__prompt.s")
```

```python
from asmgen import *
import struct, math

KA = dict(x=0, wq=8, wk=16, wv=24, wo=32, bx=40, wg=48, wu=56, wd=64, out=72, dbg=80, ws=88)
NBYTES = dict(x=2048*640*2, wq=640*640*2, wk=640*20*2, wv=640*20*2, wo=640*640*2, wg=640*1536*2, wu=640*1536*2,
              wd=1536*640*2, out=2048*640*2)
XN_OFF = 0;            XN_BYTES = 64*40*1024
KV_OFF = 0x280000;     KV_BYTES = 64*3072
AF_OFF = 0x300000;     AF_BYTES = 64*136*1024

def f32bits(x): return struct.unpack("<I", struct.pack("<f", x))[0]

def srd_from(k, dst, src, nbytes, off=0):
    if off:
        k.e(f"s_add_u32 s{dst}, s{src}, {hex(off)}")
        k.e(f"s_addc_u32 s{dst+1}, s{src+1}, 0")
    else:
        k.e(f"s_mov_b32 s{dst}, s{src}")
        k.e(f"s_mov_b32 s{dst+1}, s{src+1}")
    k.e(f"s_mov_b32 s{dst+2}, {hex(nbytes)}")
    k.e(f"s_mov_b32 s{dst+3}, 0x20000")

import os
STAMPS = os.environ.get("STAMPS") == "1"
STAMP_OFF = 0x1000000
def stamp(k, i):
    if not STAMPS: return
    k.e(f"s_waitcnt lgkmcnt(0)\ns_memtime s[96:97]\ns_memrealtime s[98:99]\ns_waitcnt lgkmcnt(0)\ns_mov_b32 s{76+i}, s96\ns_mov_b32 s{86+i}, s98")
    if i == 0 and os.environ.get("EARLY0"): k.e("s_mov_b32 s86, s85")
def stamp_dump(k, kid, n, wg="s2", wsp=4):
    if not STAMPS or os.environ.get("LEAK"): return
    if os.environ.get("DBGST") == "1":
        return dbg_dump(k, n, 0 if kid == 1 else 10) if kid == 1 else dbg_tail(k, n)
    e = k.e
    e("s_waitcnt vmcnt(0) lgkmcnt(0)")
    stamp(k, n)
    e(f"s_lshl_b32 s96, {wg}, 4\ns_add_u32 s96, s96, s3\ns_lshl_b32 s96, s96, 7\ns_add_u32 s96, s96, {hex(STAMP_OFF + kid*0x100000)}")
    e(f"s_add_u32 s100, s{wsp}, s96\ns_addc_u32 s101, s{wsp+1}, 0")
    e("v_mov_b32 v0, 0")
    for i in range(n + 1):
        e(f"v_mov_b32 v1, s{76+i}\nglobal_store_dword v0, v1, s[100:101] offset:{4*i}")
        e(f"v_mov_b32 v1, s{86+i}\nglobal_store_dword v0, v1, s[100:101] offset:{64+4*i}")

DBGST = os.environ.get("DBGST") == "1"
def dbg_dump(k, n, base, dbgp=68):
    if not DBGST: return
    e = k.e
    e("s_waitcnt vmcnt(0) lgkmcnt(0)")
    stamp(k, n)
    L = k.newlabel("nodbg")
    e(f"s_cmp_lg_u32 s3, 0\ns_cbranch_scc1 {L}")
    e("s_mov_b64 exec, 1\nv_mov_b32 v0, 0\ns_not_b32 s86, s86")
    for j, i in enumerate(n if isinstance(n, list) else range(n + 1)):
        e(f"v_mov_b32 v1, s{86+i}\nglobal_atomic_umax v0, v1, s[{dbgp}:{dbgp+1}] offset:{4*(base+j)}")
    k.label(L)

def dbg_tail(k, n, dbgp=68):
    e = k.e
    e("s_waitcnt vmcnt(0) lgkmcnt(0)")
    stamp(k, n)
    L = k.newlabel("nodbg")
    e(f"s_cmp_lg_u32 s3, 0\ns_cbranch_scc1 {L}")
    e("s_mov_b64 exec, 1\nv_mov_b32 v0, 0\ns_not_b32 s86, s86")
    for j, i in enumerate([0, 1, 4, 6, 8, n]):
        e(f"v_mov_b32 v1, s{86+i}\nglobal_atomic_umax v0, v1, s[{dbgp}:{dbgp+1}] offset:{4*(10+j)}")
    k.label(L)
```

```python
from asmgen import *
import common
from common import KA, NBYTES, f32bits, srd_from, stamp, stamp_dump, STAMPS
import math, os

MF = "v_mfma_f32_32x32x16_bf16"
QSCALE = (20 ** -0.5) * math.log2(math.e)
OFFS = float(os.environ.get('OFFS', 96.0))
PATTERN = [int(x) for x in os.environ.get('APAT', '2,6,9,13').split(',')]
XNF = 0x1000; KVF = 0x5000; HF = 0x9000; OF = 0x11000; FL_BYTES = 0x19000
KV_OFF = 0x20000;  KV_BYTES = 64*3072
XN_OFF = 0x80000;  XN_BYTES = 64*40*1024
AF_OFF = 0x300000; AF_BYTES = 64*136*1024
PX, PWQ, PWK, PWV, PWO, PWG, PWU, PWD, POUT, PWS = 48, 50, 52, 54, 56, 60, 62, 64, 66, 70
TAG = "s73"; BUD = "s74"
FLS = 44
SC = "sc1"
PREF = int(os.environ.get("PREF", 1))
RDM = int(os.environ.get("RDM", 1))
GP0 = int(os.environ.get("GP0", 0)); GP1 = int(os.environ.get("GP1", 2)); GSW = int(os.environ.get("GSW", -1)); DP = int(os.environ.get("DP", 0))
WQP = int(os.environ.get("WQP", 0))
AMAP = int(os.environ.get("AMAP", 1))
TV = int(os.environ.get("TV", 2))
XNT = os.environ.get("XNT", "nt")

BST = int(os.environ.get("BST", 0))
def bstamp(k, name):
    m0 = dict(start=0, xl=1, xs=2, xf=3, p0=4, gu0=5, gu1=6, dn0=7, dn1=8)
    m1 = dict(start=0, p0=1, gu0=2, gu1=3, dn0=4, dn1=5, of=6, mm=7, rd=8)
    m = m1 if BST else m0
    if name in m: stamp(k, m[name])

def poll(k, voff, soff, vt, nloads=1, pre_issued=False, x2=False):
    e = k.e
    Lp = k.newlabel("poll"); Ld = k.newlabel("pdone"); Lc = k.newlabel("pchk")
    def loads():
        if x2:
            e(f"buffer_load_dwordx2 {vr(vt,2)}, {voff}, s[{FLS}:{FLS+3}], {soff} offen {SC}"); return
        for i in range(nloads):
            if i == 0: e(f"buffer_load_dword v{vt}, {voff}, s[{FLS}:{FLS+3}], {soff} offen {SC}")
            else:
                e(f"s_add_u32 s75, {soff}, {8192*i}")
                e(f"buffer_load_dword v{vt+i}, {voff}, s[{FLS}:{FLS+3}], s75 offen {SC}")
    if pre_issued == "issue":
        loads(); return
    if pre_issued: e(f"s_branch {Lc}")
    k.label(Lp)
    loads()
    k.label(Lc)
    e("s_waitcnt vmcnt(0)")
    for i in range(1, nloads):
        e(f"v_xor_b32 v{vt+i}, {TAG}, v{vt+i}")
    e(f"v_xor_b32 v{vt}, {TAG}, v{vt}")
    for i in range(1, nloads): e(f"v_or_b32 v{vt}, v{vt}, v{vt+i}")
    e(f"v_cmp_ne_u32 vcc, 0, v{vt}")
    e(f"s_cmp_eq_u64 vcc, 0\ns_cbranch_scc1 {Ld}")
    e(f"s_sub_u32 {BUD}, {BUD}, 1\ns_cbranch_scc1 {Ld}")
    e(f"s_sleep 1\ns_branch {Lp}")
    k.label(Ld)

def setflag(k, soff, vt):
    e = k.e
    L = k.newlabel("nofl")
    e(f"s_cmp_lg_u32 s3, 0\ns_cbranch_scc1 {L}")
    e(f"v_mov_b32 v{vt}, {TAG}\nv_mov_b32 v{vt+1}, 0\ns_mov_b64 exec, 1")
    e(f"buffer_store_dword v{vt}, v{vt+1}, s[{FLS}:{FLS+3}], {soff} offen {SC}")
    e("s_mov_b64 exec, -1")
    k.label(L)

def w160_voffs(k, dst, t):
    e = k.e
    for i in range(5):
        e(f"v_add_u32 v{t}, {64*i}, v1\nv_mul_u32_u24 v{t+1}, 6554, v{t}\nv_lshrrev_b32 v{t+1}, 16, v{t+1}")
        e(f"v_mul_u32_u24 v{t+2}, 10, v{t+1}\nv_sub_u32 v{t+2}, v{t}, v{t+2}")
        e(f"v_and_b32 v{t}, 24, v{t+1}\nv_bfe_u32 v{t+3}, v{t+1}, 1, 2\nv_add_u32 v{t}, v{t}, v{t+3}\nv_and_b32 v{t+3}, 1, v{t+1}\nv_lshl_add_u32 v{t}, v{t+3}, 2, v{t}")
        e(f"v_mul_u32_u24 v{t}, 1280, v{t}\nv_lshl_add_u32 v{dst+i}, v{t+2}, 4, v{t}")

def touch(k, bufs, vdst):
    if not PREF: return
    e = k.e
    Lnp = k.newlabel("nopf")
    tot = sum(n for _, n in bufs)
    e(f"s_cmp_ge_u32 s10, {tot}\ns_cbranch_scc1 {Lnp}")
    e(f"s_mov_b32 s34, s{bufs[0][0]}\ns_mov_b32 s35, s{bufs[0][0]+1}\ns_mov_b32 s32, s10")
    lo = bufs[0][1]
    for p, n in bufs[1:]:
        e(f"s_sub_u32 s33, s10, {lo}")
        e(f"s_cselect_b32 s34, s34, s{p}\ns_cselect_b32 s35, s35, s{p+1}\ns_cselect_b32 s32, s32, s33")
        lo += n
    e("s_lshl_b32 s32, s32, 13\ns_add_u32 s34, s34, s32\ns_addc_u32 s35, s35, 0")
    e(f"global_load_dword v{vdst}, v9, s[34:35]")
    k.label(Lnp)

def stouch(k):
    e = k.e
    e("s_sub_u32 s10, s2, 128\ns_lshl_b32 s10, s10, 2\ns_add_u32 s10, s10, s3\ns_lshl_b32 s10, s10, 7")
    for j, p in enumerate((PWG, PWU, PWD, PWO)):
        e(f"s_add_u32 s{16+2*j}, s{p}, s10\ns_addc_u32 s{17+2*j}, s{p+1}, 0")
    seq = []
    for i in range(30): seq += [(0, i), (1, i)]
    NT = int(os.environ.get("NT2", 30))
    for i in range(NT): seq += [(2, i)]
    for i in range(min(NT, 12)): seq += [(3, i)]
    n = 0
    adv = [0, 0, 0, 0]
    for j, i in seq:
        off = (i - adv[j]) * 65536
        if off >= 0x100000:
            e(f"s_add_u32 s{16+2*j}, s{16+2*j}, {hex(off)}\ns_addc_u32 s{17+2*j}, s{17+2*j}, 0"); adv[j] = i; off = 0
        e(f"s_load_dword s{24 + n % 12}, s[{16+2*j}:{17+2*j}], {hex(off)}")
        n += 1
    e("s_waitcnt lgkmcnt(0)")

def tag_setup(k):
    k.e(f"s_load_dword s72, s[{PWS}:{PWS+1}], 0")
    srd_from(k, FLS, PWS, FL_BYTES)
    k.e(f"s_mov_b32 {BUD}, 200000")
def tag_finish(k):
    k.e(f"s_waitcnt lgkmcnt(0)\ns_mul_i32 {TAG}, s72, 1664525\ns_add_u32 {TAG}, {TAG}, 1013904223")

def phase0(k):
    e = k.e
    e("v_and_b32 v3, 15, v1\nv_lshrrev_b32 v4, 4, v1")
    e("s_mul_i32 s12, s4, 20480\ns_mul_i32 s13, s3, 320\ns_add_u32 s12, s12, s13")
    e("v_mul_u32_u24 v5, 1280, v3\nv_lshl_add_u32 v5, v4, 4, v5")
    e("s_mul_i32 s14, s3, 6400\ns_mul_i32 s15, s3, 14336")
    e("s_waitcnt lgkmcnt(0)")
    srd_from(k, 16, PX, NBYTES['x'])
    X = 16
    for i in range(5):
        e(f"buffer_load_dwordx4 {vr(X+4*i,4)}, v5, s[16:19], s12 offen offset:{64*i} {XNT}")
    srd_from(k, 20, PWK, NBYTES['wk'])
    srd_from(k, 24, PWV, NBYTES['wv'])
    for m, srd in ((0, 20), (1, 24)):
        for j in range(7):
            if j % 4 == 0:
                e(f"s_add_u32 m0, s15, {m*7168 + j*1024}")
                e(f"s_add_u32 s37, s14, {j*1024}")
            e(f"buffer_load_dwordx4 v2, s[{srd}:{srd+3}], s37 offen offset:{(j%4)*1024} lds")
    tag_setup(k)
    srd_from(k, 28, PWS, XN_BYTES, XN_OFF)
    srd_from(k, 32, PWS, KV_BYTES, KV_OFF)
    e("v_mov_b32 v8, 0\nv_mov_b32 v9, 0\nv_mov_b32 v10, 0\nv_mov_b32 v11, 0")
    e("s_mov_b32 s38, 0x3f803f80")
    STAT = 57344; RED = STAT + 512
    e(f"s_lshl_b32 s39, s3, 7\ns_add_u32 s39, s39, {STAT}")
    e("v_lshl_add_u32 v12, v3, 3, s39\nv_lshlrev_b32 v13, 3, v3")
    tag_finish(k)
    for i in range(5):
        e(f"s_waitcnt vmcnt({18-i})")
        for d in range(4*i, 4*i+4):
            a = 8 + (d & 1); q = 10 + (d & 1)
            e(f"v_dot2_f32_bf16 v{a}, v{X+d}, s38, v{a}")
            e(f"v_dot2_f32_bf16 v{q}, v{X+d}, v{X+d}, v{q}")
    bstamp(k, "xl")
    e("v_add_f32 v8, v8, v9\nv_add_f32 v9, v10, v11")
    for sw in ("v_permlane32_swap_b32", "v_permlane16_swap_b32"):
        e("v_mov_b32 v10, v8\nv_mov_b32 v11, v9")
        e(f"{sw} v8, v10\n{sw} v9, v11")
        e("v_add_f32 v8, v8, v10\nv_add_f32 v9, v9, v11")
    e("ds_write_b64 v12, v[8:9]")
    U = 96
    for d in range(20):
        e(f"v_lshlrev_b32 v{U+2*d}, 16, v{X+d}\nv_and_b32 v{U+2*d+1}, 0xffff0000, v{X+d}")
        if d == 1: e("s_waitcnt lgkmcnt(0)\ns_barrier")
        if d == 1:
            for w in range(4): e(f"ds_read_b64 {vr(36+2*w,2)}, v13 offset:{STAT+128*w}")
    e("s_waitcnt lgkmcnt(0)")
    e("v_add_f32 v8, v36, v38\nv_add_f32 v9, v37, v39\nv_add_f32 v10, v40, v42\nv_add_f32 v11, v41, v43")
    e("v_add_f32 v8, v8, v10\nv_add_f32 v9, v9, v11")
    inv = hex(f32bits(1.0/640))
    e(f"v_mul_f32 v8, {inv}, v8\nv_mul_f32 v9, {inv}, v9")
    e("v_fma_f32 v9, -v8, v8, v9\nv_max_f32 v9, 0, v9")
    e("v_cvt_pk_bf16_f32 v10, v8, v9")
    e("v_lshlrev_b32 v8, 16, v10\nv_and_b32 v9, 0xffff0000, v10")
    e(f"v_add_f32 v9, {hex(f32bits(1e-5))}, v9")
    e("v_cvt_pk_bf16_f32 v9, v9, v9\nv_and_b32 v9, 0xffff0000, v9")
    e("v_sqrt_f32 v9, v9")
    e("v_cvt_pk_bf16_f32 v9, v9, v9\nv_and_b32 v9, 0xffff0000, v9")
    e("v_rcp_f32 v10, v9")
    e("s_lshr_b32 s40, s4, 1\ns_mul_i32 s41, s40, 40960\ns_and_b32 s42, s4, 1")
    e("s_lshl_b32 s43, s42, 8\ns_add_u32 s41, s41, s43\ns_mul_i32 s43, s3, 10240\ns_add_u32 s41, s41, s43")
    e("v_lshlrev_b32 v13, 9, v4\nv_lshl_add_u32 v13, v3, 4, v13")
    for d in range(20):
        u = U + 2*d
        e(f"v_pk_add_f32 {vr(u,2)}, {vr(u,2)}, v[8:9] op_sel_hi:[1,0] neg_lo:[0,1] neg_hi:[0,1]")
    for d in range(20):
        u = U + 2*d
        e(f"v_cvt_pk_bf16_f32 v{X+d}, v{u}, v{u+1}")
    for i in range(5):
        for d in range(4*i, 4*i+4):
            u = U + 2*d
            e(f"v_lshlrev_b32 v{u}, 16, v{X+d}\nv_and_b32 v{u+1}, 0xffff0000, v{X+d}")
        for d in range(4*i, 4*i+4):
            u = U + 2*d
            e(f"v_pk_mul_f32 {vr(u,2)}, {vr(u,2)}, v[10:11] op_sel_hi:[1,0]")
        for d in range(4*i, 4*i+4):
            u = U + 2*d
            e(f"v_cvt_pk_bf16_f32 v{X+d}, v{u}, v{u+1}")
        if i in (2, 4): e("s_add_u32 s41, s41, 4096")
        e(f"buffer_store_dwordx4 {vr(X+4*i,4)}, v13, s[28:31], s41 offen offset:{(i%2)*2048} {SC}")
    bstamp(k, "xs")
    e("v_lshrrev_b32 v14, 2, v3\nv_lshl_add_u32 v14, v4, 3, v14\nv_mul_u32_u24 v14, 40, v14")
    e("v_and_b32 v15, 3, v1\nv_lshl_add_u32 v14, v15, 3, v14\nv_add_u32 v14, s15, v14")
    ACC = 44; W = 136
    e("s_waitcnt vmcnt(5)")
    for i in range(5):
        for tl in range(4):
            m, n0 = tl >> 1, (tl & 1) * 16
            for u in range(2):
                e(f"ds_read_b64_tr_b16 {vr(W+16*i+4*tl+2*u,2)}, v14 offset:{m*7168 + i*1280 + u*160 + n0*2}")
        if i >= 1:
            e("s_waitcnt lgkmcnt(8)")
            for tl in range(4):
                wf = vr(W+16*(i-1)+4*tl, 4); xf = vr(X+4*(i-1), 4); acc = vr(ACC+4*tl, 4)
                a, b = (wf, xf) if tl < 2 else (xf, wf)
                e(f"v_mfma_f32_16x16x32_bf16 {acc}, {a}, {b}, {'0' if i == 1 else acc}")
    e("s_waitcnt lgkmcnt(0)")
    for tl in range(4):
        wf = vr(W+64+4*tl, 4); xf = vr(X+16, 4); acc = vr(ACC+4*tl, 4)
        a, b = (wf, xf) if tl < 2 else (xf, wf)
        e(f"v_mfma_f32_16x16x32_bf16 {acc}, {a}, {b}, {acc}")
    e(f"s_lshl_b32 s39, s3, 12\ns_add_u32 s39, s39, {RED}\nv_add_u32 v12, s39, v2")
    e(f"s_lshl_b32 s39, s3, 10\ns_add_u32 s39, s39, {RED}\nv_add_u32 v6, s39, v2")
    e(f"s_lshl_b32 s36, s4, 7\ns_add_u32 s36, s36, {XNF}\ns_lshl_b32 s37, s4, 2\ns_add_u32 s37, s37, {KVF}")
    for tl in range(4):
        e(f"ds_write_b128 v12, {vr(ACC+4*tl,4)} offset:{tl*1024}")
    e("s_waitcnt lgkmcnt(0) vmcnt(0)\ns_barrier")
    R = 60
    for w in range(4):
        e(f"ds_read_b128 {vr(R+4*w,4)}, v6 offset:{w*4096}")
    setflag(k, "s36", 10)
    bstamp(k, "xf")
    e("s_mul_i32 s39, s40, 3072")
    Lk1, Lv0, Lv1, Lst = (k.newlabel(x) for x in ("k1", "v0", "v1", "st"))
    e("v_lshl_add_u32 v7, s42, 4, v3")
    e("v_and_b32 v15, 1, v4\nv_lshrrev_b32 v5, 1, v4")
    e("s_waitcnt lgkmcnt(0)")
    for j in range(4):
        e(f"v_add_f32 v{R+j}, v{R+j}, v{R+4+j}\nv_add_f32 v{R+8+j}, v{R+8+j}, v{R+12+j}\nv_add_f32 v{R+j}, v{R+j}, v{R+8+j}")
    e(f"v_cvt_pk_bf16_f32 v8, v{R}, v{R+1}\nv_cvt_pk_bf16_f32 v9, v{R+2}, v{R+3}")
    e(f"s_cmp_eq_u32 s3, 1\ns_cbranch_scc1 {Lk1}")
    e(f"s_cmp_eq_u32 s3, 2\ns_cbranch_scc1 {Lv0}")
    e(f"s_cmp_eq_u32 s3, 3\ns_cbranch_scc1 {Lv1}")
    e("v_lshl_add_u32 v12, v5, 5, v7\nv_lshlrev_b32 v12, 4, v12\nv_lshl_add_u32 v12, v15, 3, v12")
    e(f"s_branch {Lst}")
    k.label(Lk1)
    e("v_lshlrev_b32 v12, 3, v7\nv_add_u32 v12, 1024, v12")
    e("v_cmp_ne_u32 vcc, 0, v4\nv_mov_b32 v13, 0x7fffffff\nv_cndmask_b32 v12, v12, v13, vcc")
    e(f"s_branch {Lst}")
    k.label(Lv1)
    e("v_add_u32 v3, 16, v3")
    e("v_cmp_eq_u32 vcc, 20, v3\nv_mov_b32 v13, 0x3f803f80\nv_cndmask_b32 v8, v8, v13, vcc\nv_cndmask_b32 v9, v9, v13, vcc")
    e("v_cmp_lt_u32 vcc, 20, v3\nv_mov_b32 v13, 0x1000000\nv_cndmask_b32 v3, v3, v13, vcc")
    k.label(Lv0)
    e("s_mul_i32 s38, s42, 768\ns_add_u32 s38, s38, 1536")
    e("v_mul_u32_u24 v12, 384, v15\nv_lshl_add_u32 v12, v3, 4, v12\nv_lshl_add_u32 v12, v5, 3, v12\nv_add_u32 v12, s38, v12")
    k.label(Lst)
    e(f"buffer_store_dwordx2 v[8:9], v12, s[32:35], s39 offen {SC}")
    e("s_waitcnt vmcnt(0)\ns_barrier")
    setflag(k, "s37", 10)

def roleB(k):
    e = k.e
    SLOT = 20480
    Lgu = k.newlabel("gu0"); Lnp = k.newlabel("nop0")
    bstamp(k, "start")
    e("s_and_b32 s5, s2, 7\ns_lshr_b32 s6, s2, 3")
    e(f"s_cmp_ge_u32 s6, 16\ns_cbranch_scc1 {Lnp}")
    e("s_lshl_b32 s4, s5, 4\ns_add_u32 s4, s4, s6")
    phase0(k)
    e(f"s_branch {Lgu}")
    k.label(Lnp)
    if PREF:
        Lc = k.newlabel("nocp"); Lh = k.newlabel("here")
        e(f"s_cmp_lg_u32 s6, 31\ns_cbranch_scc1 {Lc}")
        e("s_getpc_b64 s[34:35]")
        k.label(Lh)
        e(f"s_sub_u32 s34, s34, {Lh}-{k.name}\ns_subb_u32 s35, s35, 0")
        e(f"v_lshlrev_b32 v9, 7, v0\nv_min_u32 v9, {k.name}_end-{k.name}-4, v9")
        e("global_load_dword v15, v9, s[34:35]")
        k.label(Lc)
    e("s_waitcnt lgkmcnt(0)")
    tag_setup(k)
    tag_finish(k)
    if TV >= 1:
        e("s_sub_u32 s10, s2, 128\ns_lshl_b32 s10, s10, 2\ns_add_u32 s10, s10, s3\nv_lshlrev_b32 v9, 7, v1")
        if TV == 2:
            e(f"s_lshl_b32 s32, s10, 12\ns_add_u32 s34, s{PWD}, s32\ns_addc_u32 s35, s{PWD+1}, 0\ns_cmp_lt_u32 s10, 480\ns_cselect_b32 s34, s34, s{PWD}\ns_cselect_b32 s35, s35, s{PWD+1}")
            e("v_mov_b32 v16, 0\nglobal_load_dword v15, v16, s[34:35]\ns_waitcnt vmcnt(0)")
        touch(k, [(PWG, 240), (PWU, 240)], 15)
        e("s_waitcnt vmcnt(0)")
    if STAMPS:
        for n in ("xl", "xs", "xf"): bstamp(k, n)
    k.label(Lgu)
    bstamp(k, "p0")
    if os.environ.get("ONLY") == "A":
        stamp_dump(k, 0, 5, "s2", PWS); e("s_endpgm")
    e("s_lshr_b32 s7, s5, 1\ns_lshl_b32 s7, s7, 2\ns_lshr_b32 s8, s6, 3\ns_add_u32 s7, s7, s8")
    e("s_and_b32 s8, s5, 1\ns_lshl_b32 s8, s8, 3\ns_and_b32 s32, s6, 7\ns_add_u32 s8, s8, s32")
    e("s_lshr_b32 s38, s3, 1\ns_and_b32 s39, s3, 1")
    e("s_lshl_b32 s32, s38, 1")
    for i in range(3):
        e(f"v_add_u32 v6, {64*i}, v1\nv_mul_u32_u24 v7, 5462, v6\nv_lshrrev_b32 v7, 16, v7")
        e("v_mul_u32_u24 v8, 12, v7\nv_sub_u32 v8, v6, v8\nv_xor_b32 v8, s32, v8")
        e(f"v_mul_u32_u24 v7, 3072, v7\nv_lshl_add_u32 v{3+i}, v8, 4, v7")
    srd_from(k, 16, PWS, XN_BYTES, XN_OFF)
    e(f"s_cmp_eq_u32 s38, 0\ns_cselect_b32 s20, s{PWG}, s{PWU}\ns_cselect_b32 s21, s{PWG+1}, s{PWU+1}")
    e(f"s_mov_b32 s22, {hex(NBYTES['wg'])}\ns_mov_b32 s23, 0x20000")
    srd_from(k, 28, PWS, AF_BYTES, AF_OFF)
    e("s_mul_i32 s12, s39, 49152\ns_mul_i32 s32, s8, 192\ns_add_u32 s12, s12, s32")
    e("s_lshl_b32 s32, s7, 2\ns_add_u32 s32, s32, s3\ns_mul_i32 s13, s32, 40960")
    e("s_mul_i32 s14, s3, 3072\ns_lshl_b32 s15, s3, 11\ns_add_u32 s15, s15, 12288")
    def issueW(sl):
        return [[f"s_add_u32 m0, s14, {sl*SLOT}"],
                ["buffer_load_dwordx4 v3, s[20:23], s12 offen lds", "s_add_u32 m0, m0, 1024"],
                ["buffer_load_dwordx4 v4, s[20:23], s12 offen lds", "s_add_u32 m0, m0, 1024"],
                ["buffer_load_dwordx4 v5, s[20:23], s12 offen lds", f"s_add_u32 s12, s12, {32*3072}"]]
    def issueX(sl):
        return [[f"s_add_u32 m0, s15, {sl*SLOT}"],
                [f"buffer_load_dwordx4 v2, s[16:19], s13 offen {SC} lds"],
                [f"buffer_load_dwordx4 v2, s[16:19], s13 offen offset:1024 {SC} lds", "s_add_u32 s13, s13, 2048"]]
    for c in range(4):
        for g in issueW(c):
            for x in g: e(x)
    e("v_lshrrev_b32 v6, 5, v1\nv_bfe_u32 v7, v1, 2, 2\nv_lshl_add_u32 v7, v6, 3, v7\nv_mul_u32_u24 v7, 192, v7")
    e("v_and_b32 v8, 1, v1\nv_lshl_add_u32 v7, v8, 4, v7\nv_bfe_u32 v8, v1, 1, 1\nv_lshl_add_u32 v7, v8, 3, v7")
    e("v_bfe_u32 v8, v1, 4, 1\nv_mul_u32_u24 v9, 6144, v8\nv_add_u32 v7, v7, v9")
    e("s_mul_i32 s40, s38, 3")
    for a in range(3):
        e(f"s_add_u32 s32, s40, {a}\nv_xor_b32 v9, s32, v8\nv_lshl_add_u32 v{10+a}, v9, 5, v7")
    e("s_lshl_b32 s32, s39, 12\ns_add_u32 s32, s32, 12288\nv_add_u32 v13, s32, v2")
    ACC = 32; FR = [128, 148]
    for j in range(96): e(f"v_mov_b32 v{ACC+j}, 0")
    e("v_and_b32 v14, 1, v1\nv_lshlrev_b32 v14, 7, v14")
    e(f"s_lshl_b32 s32, s7, 2\ns_add_u32 s32, s32, s3\ns_lshl_b32 s32, s32, 8\ns_add_u32 s32, s32, {XNF}")
    poll(k, "v14", "s32", 15)
    for c in range(4):
        for g in issueX(c):
            for x in g: e(x)
    def reads(fs, sl, ks):
        L = [f"ds_read_b128 {vr(FR[fs]+12,4)}, v13 offset:{sl*SLOT + ks*1024}"]
        for a in range(3):
            for u in range(2):
                L.append(f"ds_read_b64_tr_b16 {vr(FR[fs]+4*a+2*u,2)}, v{10+a} offset:{sl*SLOT + (16*ks+4*u)*192}")
            if a == 0: L.append(f"ds_read_b128 {vr(FR[fs]+16,4)}, v13 offset:{sl*SLOT + 2048 + ks*1024}")
        return L
    def mfmas(fs):
        return [f"{MF} {vr(ACC+16*(2*a+b),16)}, {vr(FR[fs]+4*a,4)}, {vr(FR[fs]+12+4*b,4)}, {vr(ACC+16*(2*a+b),16)}" for a in range(3) for b in range(2)]
    e(f"s_mov_b32 s42, 0\ns_setprio {GP0}")
    e("s_lshl_b32 s10, s3, 8\ns_add_u32 s10, s10, s2\nv_lshlrev_b32 v9, 7, v1")
    e("s_waitcnt vmcnt(0)\ns_barrier")
    bstamp(k, "gu0")
    for x in reads(0, 0, 0): e(x)
    L = k.newlabel("gu")
    k.label(L, 6)
    for sl in range(4):
        e("s_waitcnt lgkmcnt(0)")
        rd = reads(1, sl, 1); mf = mfmas(0)
        sh = [rd[0:2], rd[2:4], rd[4:6], rd[6:8], [], []]
        if sl == 0: sh[4] = ["s_cmp_ge_u32 s42, 4", "s_cselect_b32 s13, 0x7ff00000, s13"]
        for i in range(6):
            e(mf[i])
            for x in sh[i]: e(x)
        if sl == 2 and GSW >= 0:
            Lt = k.newlabel("gsw")
            e(f"s_cmp_lg_u32 s42, {GSW}\ns_cbranch_scc1 {Lt}\ns_setprio {GP1}")
            k.label(Lt)
        if sl == 1 and TV >= 1:
            Lt = k.newlabel("nt2")
            e(f"s_cmp_lg_u32 s42, 2\ns_cbranch_scc1 {Lt}")
            touch(k, [(PWD, 240), (PWO, 100)], 15)
            k.label(Lt)
        e("s_waitcnt vmcnt(10) lgkmcnt(0)\ns_barrier")
        rd = reads(0, (sl+1) % 4, 0); mf = mfmas(1)
        iw = issueW(sl); ix = issueX(sl)
        sh = [rd[0:2] + iw[0], rd[2:4] + iw[1], rd[4:6] + iw[2], rd[6:8] + iw[3] + ix[0], ix[1], ix[2]]
        if sl == 3: sh[5] = sh[5] + ["s_add_u32 s42, s42, 1", "s_cmp_lt_u32 s42, 5"]
        for i in range(6):
            e(mf[i])
            for x in sh[i]: e(x)
    e(f"s_cbranch_scc1 {L}")
    e("s_setprio 2")
    e("s_lshl_b32 s9, s5, 2\ns_lshr_b32 s10, s6, 3\ns_add_u32 s9, s9, s10\ns_and_b32 s10, s6, 7")
    w160_voffs(k, 3, 16)
    srd_from(k, 20, PWD, NBYTES['wd'])
    e(f"s_mul_i32 s12, s3, {384*1280}\ns_mul_i32 s33, s10, 160\ns_add_u32 s12, s12, s33")
    e(f"s_mul_i32 s11, s3, {160*1280}\ns_add_u32 s11, s11, s33")
    e(f"s_mul_i32 s14, s3, {SLOT}")
    e("s_waitcnt vmcnt(0) lgkmcnt(0)\ns_barrier")
    bstamp(k, "gu1")
    def issueW2(sl):
        L = []
        for i in range(5):
            L.append([f"s_add_u32 m0, s14, {sl*5120 + i*1024}", f"buffer_load_dwordx4 v{3+i}, s[20:23], s12 offen lds"])
        L[4].append(f"s_add_u32 s12, s12, {32*1280}")
        return L
    for g in range(4):
        for x in issueW2(g):
            for y in x: e(y)
    e(f"s_mov_b32 s33, {hex(f32bits(-math.log2(math.e)))}")
    e(f"s_lshl_b32 s32, s7, 1\ns_add_u32 s32, s32, s39\ns_mul_i32 s32, s32, 272\ns_mul_i32 s43, s8, 6")
    e("s_add_u32 s32, s32, s43\ns_add_u32 s32, s32, s40\ns_add_u32 s32, s32, 40\ns_lshl_b32 s32, s32, 10")
    e(f"s_add_u32 s34, s32, {136*1024}")
    T = 128
    for a in range(3):
        for b in range(2):
            g = ACC + 16*(2*a+b); u = g + 8
            for j in range(8): e(f"v_mul_f32 v{T+j}, s33, v{g+j}")
            for j in range(8): e(f"v_exp_f32 v{T+j}, v{T+j}")
            for j in range(0, 8, 2): e(f"v_pk_mul_f32 {vr(g+j,2)}, {vr(g+j,2)}, {vr(u+j,2)}")
            for j in range(0, 8, 2): e(f"v_pk_add_f32 {vr(T+j,2)}, {vr(T+j,2)}, 1.0 op_sel_hi:[1,0]")
            for j in range(8): e(f"v_rcp_f32 v{T+j}, v{T+j}")
            for j in range(0, 8, 2): e(f"v_pk_mul_f32 {vr(g+j,2)}, {vr(g+j,2)}, {vr(T+j,2)}")
            for j in range(4): e(f"v_cvt_pk_bf16_f32 v{u+j}, v{g+2*j}, v{g+2*j+1}")
            e(f"buffer_store_dwordx4 {vr(u,4)}, v2, s[28:31], {'s34' if b else 's32'} offen offset:{a*1024} {SC}")
    e("v_lshrrev_b32 v8, 5, v1\nv_bfe_u32 v9, v1, 2, 2\nv_lshl_add_u32 v9, v8, 2, v9\nv_mul_u32_u24 v9, 320, v9\nv_add_u32 v9, s14, v9")
    e("v_and_b32 v16, 1, v1\nv_bfe_u32 v17, v1, 1, 1\nv_bfe_u32 v18, v1, 4, 1")
    e("v_lshl_add_u32 v10, v16, 5, v9\nv_lshl_add_u32 v10, v17, 3, v10\nv_lshl_add_u32 v10, v18, 4, v10")
    e("v_lshl_add_u32 v11, v16, 4, v9\nv_lshl_add_u32 v11, v17, 3, v11\nv_add_u32 v11, 128, v11\nv_lshl_add_u32 v11, v18, 18, v11")
    e(f"s_lshl_b32 s35, s7, 4\ns_add_u32 s36, s35, s8\ns_lshl_b32 s36, s36, 7\ns_add_u32 s36, s36, {HF}")
    e("s_waitcnt vmcnt(0)\ns_barrier")
    setflag(k, "s36", 16)
    for j in range(96): e(f"v_mov_b32 v{ACC+j}, 0")
    e(f"s_mul_i32 s24, s9, {272*1024}\ns_mul_i32 s32, s3, {24*1024}\ns_add_u32 s26, s24, s32\ns_add_u32 s26, s26, {40*1024}\ns_add_u32 s27, s26, {136*1024}")
    e("v_and_b32 v14, 3, v1\nv_lshlrev_b32 v14, 7, v14")
    e(f"s_lshr_b32 s35, s9, 1\ns_lshl_b32 s35, s35, 4\ns_lshl_b32 s32, s3, 2\ns_add_u32 s32, s32, s35\ns_lshl_b32 s32, s32, 7\ns_add_u32 s32, s32, {HF}")
    poll(k, "v14", "s32", 16)
    XR = 128; FA = [208, 220]
    def issueX2(rs):
        L = []
        for ks in range(2):
            for b in range(2):
                L.append([f"buffer_load_dwordx4 {vr(XR+16*rs+8*ks+4*b,4)}, v2, s[28:31], s{26+b} offen offset:{ks*1024} {SC}"])
        L[3] += ["s_add_u32 s26, s26, 2048", "s_add_u32 s27, s27, 2048"]
        return L
    for g in range(4):
        for x in issueX2(g):
            for y in x: e(y)
    def reads2(fs, sl, ks):
        L = []
        for a in range(3):
            for u in range(2):
                ad, off = ("v10", a*64) if a < 2 else ("v11", 0)
                L.append(f"ds_read_b64_tr_b16 {vr(FA[fs]+4*a+2*u,2)}, {ad} offset:{sl*5120 + ks*2560 + u*160 + off}")
        return L
    def mfmas2(fs, rs, ks):
        return [f"{MF} {vr(ACC+16*(3*b+a),16)}, {vr(FA[fs]+4*a,4)}, {vr(XR+16*rs+8*ks+4*b,4)}, {vr(ACC+16*(3*b+a),16)}" for a in range(3) for b in range(2)]
    e(f"s_mov_b32 s42, 0\ns_setprio {DP}")
    for x in reads2(0, 0, 0): e(x)
    e("s_waitcnt vmcnt(0)")
    bstamp(k, "dn0")
    L = k.newlabel("dn")
    k.label(L, 6)
    for sl in range(4):
        e("s_waitcnt lgkmcnt(0)")
        rd = reads2(1, sl, 1); mf = mfmas2(0, sl, 0)
        sh = [rd[0:2], rd[2:4], rd[4:6], [], [], []]
        if sl == 0:
            sh[3] = ["s_cmp_eq_u32 s42, 2", f"s_cselect_b32 s20, s{PWO}, s20", f"s_cselect_b32 s21, s{PWO+1}, s21"]
            sh[4] = [f"s_cselect_b32 s22, {hex(NBYTES['wo'])}, s22", "s_cselect_b32 s12, s11, s12"]
            sh[5] = ["s_cselect_b32 s26, 0x7ff00000, s26", "s_cselect_b32 s27, 0x7ff00000, s27"]
        for i in range(6):
            e(mf[i])
            for x in sh[i]: e(x)
        e("s_waitcnt vmcnt(18) lgkmcnt(0)")
        rd = reads2(0, (sl+1) % 4, 0); mf = mfmas2(1, sl, 1)
        iw = issueW2(sl); ix = issueX2(sl)
        sh = [rd[0:2] + iw[0], rd[2:4] + iw[1], rd[4:6] + iw[2], iw[3], iw[4], ix[0] + ix[1] + ix[2] + ix[3]]
        if sl == 3: sh[5] = sh[5] + ["s_add_u32 s42, s42, 1", "s_cmp_lt_u32 s42, 3"]
        for i in range(6):
            e(mf[i])
            for x in sh[i]: e(x)
    e(f"s_cbranch_scc1 {L}")
    e("s_setprio 2")
    for x in reads2(1, 0, 1): e(x)
    e("s_waitcnt lgkmcnt(0)")
    for x in issueW2(0):
        for y in x: e(y)
    srd_from(k, 16, PX, NBYTES['x'])
    srd_from(k, 36, POUT, NBYTES['out'])
    e("s_lshr_b32 s40, s3, 1\ns_and_b32 s41, s3, 1")
    e("s_lshl_b32 s32, s9, 1\ns_add_u32 s32, s32, s40\ns_mul_i32 s32, s32, 40960\ns_mul_i32 s33, s10, 160\ns_add_u32 s43, s32, s33")
    e("v_and_b32 v16, 31, v1\nv_mul_u32_u24 v16, 1280, v16")
    e("s_lshl_b32 s32, s41, 6\nv_lshl_add_u32 v12, v8, 5, v16\nv_add_u32 v12, s32, v12")
    e("s_lshl_b32 s32, s41, 3\ns_add_u32 s32, s32, 128\nv_lshl_add_u32 v13, v8, 4, v16\nv_add_u32 v13, s32, v13")
    XS = 232
    e(f"buffer_load_dwordx4 {vr(XS,4)}, v12, s[16:19], s43 offen")
    e(f"buffer_load_dwordx4 {vr(XS+4,4)}, v12, s[16:19], s43 offen offset:16")
    e(f"buffer_load_dwordx2 {vr(XS+8,2)}, v13, s[16:19], s43 offen")
    e(f"s_mul_i32 s32, s3, {10*1024}\ns_add_u32 s26, s24, s32\ns_add_u32 s27, s26, {136*1024}")
    e("v_and_b32 v14, 1, v1\nv_lshlrev_b32 v14, 7, v14")
    e(f"s_lshl_b32 s32, s9, 3\ns_lshl_b32 s33, s3, 1\ns_add_u32 s32, s32, s33\ns_lshl_b32 s32, s32, 7\ns_add_u32 s32, s32, {OF}")
    bstamp(k, "dn1")
    if os.environ.get("ONLY") != "B": poll(k, "v14", "s32", 16)
    else: e("s_waitcnt vmcnt(0)")
    bstamp(k, "of")
    for g in range(5):
        for x in issueX2(g):
            for y in x: e(y)
    for t in range(10):
        g, ks = t >> 1, t & 1
        e(f"s_waitcnt vmcnt({18 - 2*t}) lgkmcnt({6 if t < 9 else 0})")
        mf = mfmas2(t & 1, g, ks)
        for i in range(6): e(mf[i])
        if t + 2 < 10:
            g2, ks2 = (t+2) >> 1, (t+2) & 1
            for x in reads2(t & 1, g2 % 4, ks2): e(x)
    bstamp(k, "mm")
    e("v_add_u32 v14, s14, v2")
    for b in range(2):
        for q in range(10):
            e(f"ds_write_b128 v14, {vr(ACC+48*b+4*q,4)} offset:{(10*b+q)*1024}")
    e("s_mul_i32 s32, s40, 10240\ns_lshl_b32 s33, s41, 12\ns_add_u32 s33, s33, s32\nv_add_u32 v15, s33, v2")
    e("s_lshl_b32 s33, s41, 10\ns_add_u32 s33, s33, s32\ns_add_u32 s33, s33, 8192\nv_add_u32 v16, s33, v2")
    e("s_waitcnt lgkmcnt(0)\ns_barrier")
    R = 128
    for w in range(4):
        for q in range(4):
            e(f"ds_read_b128 {vr(R+20*w+4*q,4)}, v15 offset:{w*SLOT + q*1024}")
        e(f"ds_read_b128 {vr(R+20*w+16,4)}, v16 offset:{w*SLOT}")
    for j in range(10):
        e(f"v_lshlrev_b32 v{ACC+2*j}, 16, v{XS+j}\nv_and_b32 v{ACC+2*j+1}, 0xffff0000, v{XS+j}")
    for w in range(4):
        e(f"s_waitcnt lgkmcnt({15-5*w})")
        for j in range(0, 20, 2):
            e(f"v_pk_add_f32 {vr(ACC+j,2)}, {vr(ACC+j,2)}, {vr(R+20*w+j,2)}")
    for j in range(10):
        e(f"v_cvt_pk_bf16_f32 v{XS+j}, v{ACC+2*j}, v{ACC+2*j+1}")
    bstamp(k, "rd")
    e(f"buffer_store_dwordx4 {vr(XS,4)}, v12, s[36:39], s43 offen")
    e(f"buffer_store_dwordx4 {vr(XS+4,4)}, v12, s[36:39], s43 offen offset:16")
    e(f"buffer_store_dwordx2 {vr(XS+8,2)}, v13, s[36:39], s43 offen")
    stamp_dump(k, 0, 9, "s2", PWS)
    e("s_endpgm")

def roleA(k):
    e = k.e
    KVSLOT = 24576; KV0 = 8192
    WQ = 96; S0, S1 = 32, 48; FB = 64
    Q = [16, 24]; O = [144, 160]; P = [96, 104]; KVB = [112, 128]; KT = 176
    KL = lambda s: KVB[s]; KH = lambda s: KVB[s]+4; V0 = lambda s: KVB[s]+8; V1 = lambda s: KVB[s]+12
    AKL, AKH, AV, BKH, BV = 8, 9, 10, 11, 12
    WV = 16
    stamp(k, 0)
    e("s_bfe_u32 s8, s2, 0x20001\ns_lshl_b32 s8, s8, 3\ns_lshr_b32 s9, s2, 5\ns_add_u32 s8, s8, s9")
    e("s_and_b32 s9, s2, 1\ns_lshl_b32 s9, s9, 2\ns_bfe_u32 s32, s2, 0x20003\ns_add_u32 s9, s9, s32")
    e("s_add_u32 s11, s8, s9\ns_mul_i32 s32, s11, 52\ns_lshr_b32 s32, s32, 8\ns_mul_i32 s32, s32, 5\ns_sub_u32 s11, s11, s32")
    w160_voffs(k, WV, 3)
    e("s_mul_i32 s12, s3, 40960\ns_mul_i32 s32, s9, 160\ns_add_u32 s12, s12, s32")
    e("s_mul_i32 s14, s3, 5120")
    def rot_first(dst, base, step, lim):
        e(f"s_mul_i32 {dst}, s11, {step}\ns_add_u32 {dst}, {dst}, {base}\ns_add_u32 {lim}, {base}, {5*step}")
    def rot_next(dst, base, step, lim):
        e(f"s_add_u32 {dst}, {dst}, {step}\ns_cmp_eq_u32 {dst}, {lim}\ns_cselect_b32 {dst}, {base}, {dst}")
    rot_first("s34", "s12", 4*40960, "s35")
    e("s_waitcnt lgkmcnt(0)")
    srd_from(k, 20, PWQ, NBYTES['wq'])
    def wq_issue(slot):
        for i in range(5):
            e(f"s_add_u32 m0, s14, {slot*20480 + i*1024}")
            e(f"buffer_load_dwordx4 v{WV+i}, s[20:23], s34 offen lds")
        rot_next("s34", "s12", 4*40960, "s35")
    wq_issue(0)
    tag_setup(k)
    srd_from(k, 16, PWS, XN_BYTES, XN_OFF)
    srd_from(k, 24, PWS, KV_BYTES, KV_OFF)
    srd_from(k, 28, PWS, AF_BYTES, AF_OFF)
    e("v_lshrrev_b32 v6, 5, v1")
    e("v_bfe_u32 v7, v1, 2, 2\nv_lshl_add_u32 v7, v6, 2, v7\nv_mul_u32_u24 v4, 320, v7")
    e("v_and_b32 v7, 1, v1\nv_lshlrev_b32 v7, 4, v7")
    e("v_bfe_u32 v8, v1, 1, 1\nv_lshl_add_u32 v7, v8, 3, v7")
    e("v_and_b32 v8, 16, v1\nv_cmp_ne_u32 vcc, 0, v8\nv_mov_b32 v8, 32\nv_cndmask_b32 v7, v7, v8, vcc")
    e("v_add_u32 v4, v4, v7\ns_mul_i32 s32, s3, 40\nv_add_u32 v4, s32, v4")
    e("v_and_b32 v8, 19, v1\nv_cmp_lt_u32 vcc, 16, v8\nv_mov_b32 v8, 0x40000\nv_cndmask_b32 v4, v4, v8, vcc")
    e("v_add_u32 v5, 40960, v4")
    e(f"v_and_b32 v7, 31, v1\nv_lshlrev_b32 v{BKH}, 3, v7\nv_add_u32 v{BKH}, 1024, v{BKH}\nv_lshl_add_u32 v{BKH}, v6, 18, v{BKH}")
    e(f"v_mul_u32_u24 v{BV}, 24, v6\nv_add_u32 v{BV}, v{BV}, v7")
    e("v_cmp_le_u32 vcc, 28, v7\nv_cndmask_b32 v13, 0, 1, vcc\nv_xor_b32 v13, v13, v6\nv_mul_u32_u24 v13, 24, v13\nv_add_u32 v13, 20, v13")
    e("v_and_b32 v15, 27, v7\nv_cmp_ne_u32 vcc, 24, v15\nv_mov_b32 v15, 0x4000\nv_cndmask_b32 v13, v13, v15, vcc")
    e(f"v_cmp_le_u32 vcc, 20, v7\nv_cndmask_b32 v{BV}, v{BV}, v13, vcc")
    e(f"v_lshlrev_b32 v{BV}, 4, v{BV}\nv_add_u32 v{BV}, 1536, v{BV}")
    c0 = KV0 + KVSLOT
    e(f"v_add_u32 v{AKL}, {c0}, v2\nv_add_u32 v{AKH}, {c0}, v{BKH}\nv_add_u32 v{AV}, {c0}, v{BV}")
    e("v_and_b32 v14, 1, v1\nv_lshlrev_b32 v14, 7, v14\nv_lshlrev_b32 v13, 3, v1\nv_add_u32 v3, 49152, v2")
    e("s_lshr_b32 s32, s3, 1\ns_lshl_b32 s33, s8, 1\ns_add_u32 s37, s32, s33\ns_mul_i32 s13, s37, 40960")
    e("s_and_b32 s32, s3, 1\ns_lshl_b32 s32, s32, 12\ns_add_u32 s13, s13, s32")
    e(f"s_lshl_b32 s15, s3, 12\ns_lshl_b32 s39, s37, 8\ns_add_u32 s39, s39, {XNF}\ns_mov_b32 s38, {KVF}\ns_mul_i32 s36, s3, 6144")
    rot_first("s40", "s13", 8192, "s41")
    for r in range(1, 4): wq_issue(r)
    tag_finish(k)
    stamp(k, 1)
    def wq_read(ks, lks):
        for u in range(2):
            off = lks*2560 + u*160
            ad = "v4"
            if off >= 40960: ad = "v5"; off -= 40960
            e(f"ds_read_b64_tr_b16 {vr(WQ+4*ks+2*u,2)}, {ad} offset:{off}")
    e("s_waitcnt vmcnt(15)\ns_barrier")
    for ks in range(8): wq_read(ks, ks)
    e("s_waitcnt lgkmcnt(0)\ns_barrier")
    wq_issue(0)
    poll(k, "v14", "s39", 22, pre_issued="issue")
    e("s_waitcnt vmcnt(6)\ns_barrier")
    stamp(k, 2)
    for ks in range(8, 32): wq_read(ks, ks)
    poll(k, "v14", "s39", 22, pre_issued=True)
    e("s_waitcnt lgkmcnt(0)\ns_barrier")
    stamp(k, 3)
    reg = lambda s: ((s + 2) % 5) * 16384
    def x_list(s):
        L = [[f"s_add_u32 m0, s15, {reg(s)}"]]
        for i in range(4):
            L.append([f"buffer_load_dwordx4 v2, s[16:19], s40 offen offset:{i*1024} {SC} lds"])
        if s < 4: L.append(["s_add_u32 s40, s40, 8192", "s_cmp_eq_u32 s40, s41", "s_cselect_b32 s40, s13, s40"])
        return L
    for s in range(2):
        for g in x_list(s):
            for x in g: e(x)
    for ks in range(32, 40): wq_read(ks, ks - 32)
    stamp(k, 4)
    def kv_issue(chunk_soff, slot_base):
        L = []
        for half in range(2):
            L.append([f"s_add_u32 m0, s36, {slot_base + half*3072}", f"s_add_u32 s32, s36, {chunk_soff + half*3072}"])
            for j in range(3):
                L.append([f"buffer_load_dwordx4 v2, s[24:27], s32 offen offset:{j*1024} {SC} lds"])
        return L
    def xrd(f):
        s, i = f >> 4, f & 15
        off = reg(s) + (i & 1)*8192 + (i >> 1)*1024
        ad = "v2"
        if off >= 49152: ad = "v3"; off -= 49152
        return f"ds_read_b128 {vr(FB+4*(f&7),4)}, {ad} offset:{off}"
    inits = []
    for j in range(8): inits += [(P[1]+j, "0"), (V0(1)+j, "0")]
    for s_ in range(2): inits += [(KH(s_)+2, "0x3f80"), (KH(s_)+3, "0")]
    for j in range(32): inits += [(O[0]+j, "0")]
    for t in range(4): inits += [(KT+8*t+6, "0"), (KT+8*t+7, "0")]
    inits.sort()
    sh = {}
    kv0 = kv_issue(0, KV0 + KVSLOT); kv1 = kv_issue(KVSLOT, KV0 + 2*KVSLOT)
    for i, x in enumerate(kv0): sh.setdefault(41 + i, []).extend(x)
    for i, x in enumerate(kv1): sh.setdefault(57 + i, []).extend(x)
    for i, x in enumerate(x_list(2)): sh.setdefault(0 + i, []).extend(x)
    for i, x in enumerate(x_list(3)): sh.setdefault(8 + i, []).extend(x)
    for i, x in enumerate(x_list(4)): sh.setdefault(14 + i, []).extend(x)
    sh.setdefault(20, []).append(f"buffer_load_dwordx2 v[22:23], v13, s[{FLS}:{FLS+3}], s38 offen {SC}")
    e("s_waitcnt vmcnt(4) lgkmcnt(0)\ns_barrier")
    for f in range(8): e(xrd(f))
    for f in range(80):
        ks = f >> 1; b = f & 1
        if f + 8 < 80 and (f + 8) % 16 == 0:
            s = (f + 8) >> 4
            if s == 3: poll(k, "v13", "s38", 22, nloads=2, pre_issued=True, x2=True)
            elif s < 3: e(f"s_waitcnt vmcnt({4 if s == 1 else 9})")
            e("s_barrier")
        e(f"s_waitcnt lgkmcnt({min(7, 79-f)})")
        acc = vr(S0+16*b, 16)
        e(f"{MF} {acc}, {vr(WQ+4*ks,4)}, {vr(FB+4*(f&7),4)}, {'0' if ks == 0 else acc}")
        if f + 8 < 80: e(xrd(f + 8))
        for x in sh.get(f, []): e(x)
        n = 0
        while inits and n < 3 and inits[0][0] < WQ + 4*ks:
            r, v = inits.pop(0); e(f"v_mov_b32 v{r}, {v}"); n += 1
    assert not inits
    stamp(k, 5)
    e(f"s_mov_b32 s33, {hex(f32bits(QSCALE))}")
    e("s_waitcnt vmcnt(6)\ns_barrier")
    for t in range(4):
        e(f"ds_read_b128 {vr(KT+8*t,4)}, v{AKL} offset:{t*3072}")
        e(f"ds_read_b64 {vr(KT+8*t+4,2)}, v{AKH} offset:{t*3072}")
    for s in range(2):
        e(f"ds_read_b128 {vr(KL(s),4)}, v{AKL} offset:{s*3072}\nds_read_b64 {vr(KH(s),2)}, v{AKH} offset:{s*3072}")
    e(f"ds_read_b128 {vr(V0(0),4)}, v{AV}\nds_read_b128 {vr(V1(0),4)}, v{AV} offset:768")
    T = 240
    def qepi(b):
        L = []
        for j in range(6): L.append(f"v_cvt_pk_bf16_f32 v{Q[b]+j}, v{S0+16*b+2*j}, v{S0+16*b+2*j+1}")
        for j in range(6): L += [f"v_lshlrev_b32 v{T+2*j}, 16, v{Q[b]+j}", f"v_and_b32 v{T+2*j+1}, 0xffff0000, v{Q[b]+j}"]
        for j in range(12): L.append(f"v_mul_f32 v{T+j}, s33, v{T+j}")
        for j in range(6): L.append(f"v_cvt_pk_bf16_f32 v{Q[b]+j}, v{T+2*j}, v{T+2*j+1}")
        L += [f"v_mov_b32 v{Q[b]+6}, 0", f"v_mov_b32 v{Q[b]+7}, 0"]
        return L
    MX = [13, 14]
    SX = [[64, 80, 208, 224], [32, 48, 64, 80]]
    def mx(b, t):
        S = SX[b][t]
        L = [f"v_max3_f32 v{MX[b]}, v{S}, v{S+1}, v{S+2}", f"v_max_f32 v{MX[b]}, v{MX[b]}, v{S+3}"] if t == 0 else []
        for j in range(4 if t == 0 else 0, 16, 2): L.append(f"v_max3_f32 v{MX[b]}, v{MX[b]}, v{S+j}, v{S+j+1}")
        return L
    def qk(b, t):
        S = SX[b][t]
        return [f"{MF} {vr(S,16)}, {vr(KT+8*t,4)}, {vr(Q[b],4)}, 0", f"{MF} {vr(S,16)}, {vr(KT+8*t+4,4)}, {vr(Q[b]+4,4)}, {vr(S,16)}"]
    def fin(b, offs):
        L = [f"v_mov_b32 v15, v{MX[b]}", f"v_permlane32_swap_b32 v{MX[b]}, v15", f"v_max_f32 v{MX[b]}, v{MX[b]}, v15"]
        if offs: L.append(f"v_add_f32 v{MX[b]}, {hex(f32bits(offs))}, v{MX[b]}")
        L += [f"v_cvt_pk_bf16_f32 v{MX[b]}, -v{MX[b]}, 0", "v_cmp_ne_u32 vcc, 0, v6", f"v_cndmask_b32 v{Q[b]+6}, v{MX[b]}, 0, vcc"]
        return L
    def weave(mfs, vals, per):
        for m in mfs:
            e(m)
            for _ in range(per):
                if vals: e(vals.pop(0))
        for v in vals: e(v)
    for x in qepi(0): e(x)
    e("s_waitcnt lgkmcnt(6)")
    weave([m for t in range(4) for m in qk(0, t)], qepi(1), 5)
    v0 = mx(0, 0) + mx(0, 1)
    weave(qk(1, 0) + qk(1, 1), v0, 4)
    weave(qk(1, 2) + qk(1, 3), mx(0, 2) + mx(0, 3) + fin(0, OFFS), 6)
    for x in mx(1, 0): e(x)
    e("s_waitcnt lgkmcnt(0)")
    weave([f"{MF} {vr(S0,16)}, {vr(KL(0),4)}, {vr(Q[0],4)}, 0", f"{MF} {vr(S0,16)}, {vr(KH(0),4)}, {vr(Q[0]+4,4)}, {vr(S0,16)}"],
          mx(1, 1) + [f"v_mov_b32 v{S1+12+j}, 0" for j in range(4)] + mx(1, 2) + mx(1, 3) + fin(1, OFFS), 6)
    e(f"s_mov_b32 s40, 0\ns_mov_b32 s41, {KV0+2*KVSLOT}\ns_add_u32 s35, s36, {KV0}\ns_mov_b32 s42, s35\ns_add_u32 s43, s36, {2*KVSLOT}\ns_add_u32 s39, s35, {3*KVSLOT}")
    dma = lambda so, off: f"buffer_load_dwordx4 v2, s[24:27], {so} offen offset:{off} {SC} lds"
    extra = {(1, 0): ["s_mov_b32 m0, s42"], (1, 1): ["s_add_u32 s38, s43, 4096"], (1, 3): ["s_waitcnt vmcnt(0)", "s_barrier"],
             (2, 3): [dma("s43", 0), dma("s43", 1024)], (3, 3): [dma("s43", 2048), dma("s43", 3072)],
             (4, 0): ["s_add_u32 m0, s42, 4096"], (4, 3): [dma("s38", 0), dma("s38", 1024)],
             (5, 0): [f"s_add_u32 s43, s43, {KVSLOT}"], (5, 1): ["s_add_u32 s40, s40, 1"], (5, 2): [f"s_add_u32 s37, s42, {KVSLOT}"],
             (6, 0): ["s_cmp_eq_u32 s37, s39"], (6, 1): ["s_cselect_b32 s37, s35, s37"],
             (7, 0): ["s_sub_u32 s41, s42, s36"], (7, 1): ["s_mov_b32 s42, s37"],
             (7, 2): ["s_cmp_lt_u32 s40, 8"]}
    A0 = 208
    e("s_lshl_b32 s32, s9, 2\ns_add_u32 s32, s32, s3\ns_mul_i32 s32, s32, 20")
    e(f"s_mul_i32 s12, s8, {2*136*1024}\ns_add_u32 s13, s12, {136*1024}")
    e(f"s_lshl_b32 s14, s8, 3\ns_add_u32 s14, s14, s9\ns_lshl_b32 s14, s14, 7\ns_add_u32 s14, s14, {OF}")
    stamp(k, 6)
    stamp(k, 7)
    e("s_nop 4")
    Lloop = k.newlabel("att")
    k.label(Lloop, 6)
    def cv(S, Pb, g):
        return [f"v_cvt_pk_bf16_f32 v{Pb+2*g}, v{S+4*g}, v{S+4*g+1}", f"v_cvt_pk_bf16_f32 v{Pb+2*g+1}, v{S+4*g+2}, v{S+4*g+3}"]
    for jj in range(8):
        for blk in range(2):
            Sc, Sn = (S0, S1) if blk == 0 else (S1, S0)
            valu = []
            for g in range(4):
                for j in range(4): valu.append(f"v_exp_f32 v{Sc+4*g+j}, v{Sc+4*g+j}")
                valu += cv(Sn, P[1-blk], 3) if g == 0 else cv(Sc, P[blk], g-1)
            ks = (jj + blk) & 1; vs = (jj - 1 + blk) & 1; nb = 1 - blk
            ko = ((jj + 2) % 8) * 3072; vo = ((jj + 1) % 8) * 3072
            mf = [[f"{MF} {vr(O[nb],16)}, {vr(V0(vs),4)}, {vr(P[nb],4)}, {vr(O[nb],16)}"],
                  [f"{MF} {vr(Sn,16)}, {vr(KL(ks),4)}, {vr(Q[nb],4)}, 0"],
                  [f"{MF} {vr(Sn,16)}, {vr(KH(ks),4)}, {vr(Q[nb]+4,4)}, {vr(Sn,16)}"],
                  [f"{MF} {vr(O[nb],16)}, {vr(V1(vs),4)}, {vr(P[nb]+4,4)}, {vr(O[nb],16)}"]]
            if blk == 0:
                mf[2].append("s_waitcnt lgkmcnt(0)")
                mf[3].append(f"ds_read_b128 {vr(KL(ks),4)}, v{AKL} offset:{ko}")
                mf[3].append(f"ds_read_b64 {vr(KH(ks),2)}, v{AKH} offset:{ko}")
            else:
                mf[3].append(f"ds_read_b128 {vr(V0(1-vs),4)}, v{AV} offset:{vo}")
                mf[3].append(f"ds_read_b128 {vr(V1(1-vs),4)}, v{AV} offset:{vo+768}")
                if jj == 5: valu.append(f"v_add_u32 v{AKL}, s41, v2"); valu.append(f"v_add_u32 v{AKH}, s41, v{BKH}")
                if jj == 6: valu.append(f"v_add_u32 v{AV}, s41, v{BV}")
                for m in range(4): mf[m] += extra.get((jj, m), [])
            for i, v in enumerate(valu):
                for m in range(4):
                    if PATTERN[m] == i:
                        for x in mf[m]: e(x)
                e(v)
    e(f"s_cbranch_scc1 {Lloop}")
    for x in cv(S1, P[1], 3): e(x)
    e(f"{MF} {vr(O[1],16)}, {vr(V0(1),4)}, {vr(P[1],4)}, {vr(O[1],16)}")
    e(f"{MF} {vr(O[1],16)}, {vr(V1(1),4)}, {vr(P[1]+4,4)}, {vr(O[1],16)}")
    stamp(k, 8)
    e("s_mov_b32 s40, 0")
    e("v_and_b32 v7, 31, v1\nv_lshlrev_b32 v7, 4, v7")
    for j in range(3):
        a = A0 + j
        e(f"v_lshl_add_u32 v{a}, v6, 2, s32\nv_add_u32 v{a}, {8*j}, v{a}")
        e(f"v_lshrrev_b32 v{A0+3}, 3, v{a}\nv_lshl_add_u32 v{A0+3}, v{A0+3}, 9, v7")
        e(f"v_and_b32 v{a}, 4, v{a}\nv_lshl_add_u32 v{a}, v{a}, 1, v{A0+3}")
    e(f"v_cmp_ne_u32 vcc, 0, v6\nv_mov_b32 v{A0+3}, 0x7fffffff\nv_cndmask_b32 v{A0+2}, v{A0+2}, v{A0+3}, vcc")
    Lout = k.newlabel("out"); Lslow = k.newlabel("slow"); Lpub = k.newlabel("pub")
    k.label(Lout)
    PK = 224
    for b in range(2):
        e(f"v_rcp_f32 v{A0+4+b}, v{O[b]+12}")
        for j in range(12): e(f"v_mul_f32 v{O[b]+j}, v{O[b]+j}, v{A0+4+b}")
        for j in range(6): e(f"v_cvt_pk_bf16_f32 v{PK+8*b+j}, v{O[b]+2*j}, v{O[b]+2*j+1}")
        for j in range(3):
            e(f"buffer_store_dwordx2 {vr(PK+8*b+2*j,2)}, v{A0+j}, s[28:31], s{12+b} offen {SC}")
    e(f"v_mul_f32 v{A0+6}, 0, v{O[0]+12}\nv_mul_f32 v{A0+7}, 0, v{O[1]+12}")
    for j in range(12):
        for b in range(2): e(f"v_fma_f32 v{A0+6+b}, v{O[b]+j}, 0, v{A0+6+b}")
    e(f"v_cmp_u_f32 vcc, v{A0+6}, v{A0+7}")
    e(f"s_cmp_lg_u32 s40, 0\ns_cbranch_scc1 {Lpub}")
    e(f"s_cmp_lg_u64 vcc, 0\ns_cbranch_scc1 {Lslow}")
    k.label(Lpub)
    e("s_waitcnt vmcnt(0)\ns_barrier")
    setflag(k, "s14", 16)
    Lx = k.newlabel("axit")
    e(f"s_or_b32 s32, s2, s3\ns_cmp_lg_u32 s32, 0\ns_cbranch_scc1 {Lx}")
    e(f"v_lshlrev_b32 v13, 7, v1\ns_mov_b32 s38, {HF}")
    if not os.environ.get("ONLY"): poll(k, "v13", "s38", 16, nloads=8)
    setflag(k, "0", 16)
    k.label(Lx)
    stamp_dump(k, 1, 9, "s2", PWS)
    e("s_endpgm")
    k.label(Lslow)
    e("s_waitcnt vmcnt(0) lgkmcnt(0)")
    e(f"s_mov_b32 s40, 1\ns_mov_b32 s41, 0\nv_mov_b32 v{Q[0]+6}, 0\nv_mov_b32 v{Q[1]+6}, 0")
    e(f"v_mov_b32 v{MX[0]}, 0xff800000\nv_mov_b32 v{MX[1]}, 0xff800000")
    def kload():
        e(f"buffer_load_dwordx4 {vr(KL(0),4)}, v2, s[24:27], s41 offen {SC}")
        e(f"buffer_load_dwordx2 {vr(KH(0),2)}, v{BKH}, s[24:27], s41 offen {SC}")
    def qk2():
        for b in range(2):
            S = S0 + 16*b
            e(f"{MF} {vr(S,16)}, {vr(KL(0),4)}, {vr(Q[b],4)}, 0\n{MF} {vr(S,16)}, {vr(KH(0),4)}, {vr(Q[b]+4,4)}, {vr(S,16)}")
    L1 = k.newlabel("sl1"); k.label(L1)
    kload(); e("s_waitcnt vmcnt(0)"); qk2()
    for b in range(2):
        for j in range(0, 16, 2): e(f"v_max3_f32 v{MX[b]}, v{MX[b]}, v{S0+16*b+j}, v{S0+16*b+j+1}")
    e(f"s_add_u32 s41, s41, 3072\ns_cmp_lt_u32 s41, {KV_BYTES}\ns_cbranch_scc1 {L1}")
    for b in range(2):
        for x in fin(b, 0): e(x)
    for j in range(32): e(f"v_mov_b32 v{O[0]+j}, 0")
    e("s_mov_b32 s41, 0")
    L2 = k.newlabel("sl2"); k.label(L2)
    kload()
    e(f"buffer_load_dwordx4 {vr(V0(0),4)}, v{BV}, s[24:27], s41 offen {SC}")
    e(f"buffer_load_dwordx4 {vr(V1(0),4)}, v{BV}, s[24:27], s41 offen offset:768 {SC}")
    e("s_waitcnt vmcnt(0)"); qk2()
    for b in range(2):
        S = S0 + 16*b
        for j in range(16): e(f"v_exp_f32 v{S+j}, v{S+j}")
        for g in range(4):
            for x in cv(S, P[b], g): e(x)
        e(f"{MF} {vr(O[b],16)}, {vr(V0(0),4)}, {vr(P[b],4)}, {vr(O[b],16)}")
        e(f"{MF} {vr(O[b],16)}, {vr(V1(0),4)}, {vr(P[b]+4,4)}, {vr(O[b],16)}")
    e(f"s_add_u32 s41, s41, 3072\ns_cmp_lt_u32 s41, {KV_BYTES}\ns_cbranch_scc1 {L2}")
    e("s_nop 12")
    e(f"s_branch {Lout}")

def gen_mega(name="parallel_sum__grouped_kv_mqa__swiglu_ffn__prompt_kernel"):
    k = Kernel(name); e = k.e
    LA = k.newlabel("roleA"); LB = k.newlabel("roleB")
    e("s_load_dwordx16 s[48:63], s[0:1], 0\ns_load_dwordx8 s[64:71], s[0:1], 64")
    e("v_and_b32 v1, 63, v0\nv_lshrrev_b32 v2, 6, v0\nv_readfirstlane_b32 s3, v2\nv_lshlrev_b32 v2, 4, v1")
    e(f"s_cmp_lt_u32 s2, 256\ns_cbranch_scc1 {LB}\ns_cmp_lt_u32 s2, 512\ns_cbranch_scc1 {LA}\ns_endpgm")
    k.label(LB)
    e("s_setprio 2")
    roleB(k)
    k.label(LA, 6)
    if os.environ.get("ONLY") == "B": e("s_endpgm")
    e("s_sub_u32 s2, s2, 256\ns_setprio 1")
    roleA(k)
    k.label(f"{k.name}_end")
    k.lds = 81920; k.grid = 512; k.block = 256
    return k

if __name__ == "__main__":
    import sys
    from build import emit
    emit([gen_mega()], sys.argv[1] if len(sys.argv) > 1 else "parallel_sum__grouped_kv_mqa__swiglu_ffn__prompt.s")
```

```python
from asmgen import *
import common
from common import KA, NBYTES, f32bits, srd_from, stamp, stamp_dump, STAMPS
import math, os

MF = "v_mfma_f32_32x32x16_bf16"
QSCALE = (20 ** -0.5) * math.log2(math.e)
OFFS = float(os.environ.get('OFFS', 96.0))
PATTERN = [int(x) for x in os.environ.get('APAT', '2,6,9,13').split(',')]
XNF = 0x1000; KVF = 0x5000; HF = 0x9000; OF = 0x11000; FL_BYTES = 0x19000
KV_OFF = 0x20000;  KV_BYTES = 64*3072
XN_OFF = 0x80000;  XN_BYTES = 64*40*1024
AF_OFF = 0x300000; AF_BYTES = 64*136*1024
PX, PWQ, PWK, PWV, PWO, PWG, PWU, PWD, POUT, PWS = 48, 50, 52, 54, 56, 60, 62, 64, 66, 70
TAG = "s73"; BUD = "s74"
FLS = 44
SC = "sc1"
PREF = int(os.environ.get("PREF", 1))
RDM = int(os.environ.get("RDM", 1))
GP0 = int(os.environ.get("GP0", 0)); GP1 = int(os.environ.get("GP1", 2)); GSW = int(os.environ.get("GSW", -1)); DP = int(os.environ.get("DP", 0))
WQP = int(os.environ.get("WQP", 0))
AMAP = int(os.environ.get("AMAP", 1))
TV = int(os.environ.get("TV", 2))
XNT = os.environ.get("XNT", "nt")

BST = int(os.environ.get("BST", 0))
def bstamp(k, name):
    m0 = dict(start=0, xl=1, xs=2, xf=3, p0=4, gu0=5, gu1=6, dn0=7, dn1=8)
    m1 = dict(start=0, p0=1, gu0=2, gu1=3, dn0=4, dn1=5, of=6, mm=7, rd=8)
    m = m1 if BST else m0
    if name in m: stamp(k, m[name])

def poll(k, voff, soff, vt, nloads=1, pre_issued=False, x2=False):
    e = k.e
    Lp = k.newlabel("poll"); Ld = k.newlabel("pdone"); Lc = k.newlabel("pchk")
    def loads():
        if x2:
            e(f"buffer_load_dwordx2 {vr(vt,2)}, {voff}, s[{FLS}:{FLS+3}], {soff} offen {SC}"); return
        for i in range(nloads):
            if i == 0: e(f"buffer_load_dword v{vt}, {voff}, s[{FLS}:{FLS+3}], {soff} offen {SC}")
            else:
                e(f"s_add_u32 s75, {soff}, {8192*i}")
                e(f"buffer_load_dword v{vt+i}, {voff}, s[{FLS}:{FLS+3}], s75 offen {SC}")
    if pre_issued == "issue":
        loads(); return
    if pre_issued: e(f"s_branch {Lc}")
    k.label(Lp)
    loads()
    k.label(Lc)
    e("s_waitcnt vmcnt(0)")
    for i in range(1, nloads):
        e(f"v_xor_b32 v{vt+i}, {TAG}, v{vt+i}")
    e(f"v_xor_b32 v{vt}, {TAG}, v{vt}")
    for i in range(1, nloads): e(f"v_or_b32 v{vt}, v{vt}, v{vt+i}")
    e(f"v_cmp_ne_u32 vcc, 0, v{vt}")
    e(f"s_cmp_eq_u64 vcc, 0\ns_cbranch_scc1 {Ld}")
    e(f"s_sub_u32 {BUD}, {BUD}, 1\ns_cbranch_scc1 {Ld}")
    e(f"s_sleep 1\ns_branch {Lp}")
    k.label(Ld)

def setflag(k, soff, vt):
    e = k.e
    L = k.newlabel("nofl")
    e(f"s_cmp_lg_u32 s3, 0\ns_cbranch_scc1 {L}")
    e(f"v_mov_b32 v{vt}, {TAG}\nv_mov_b32 v{vt+1}, 0\ns_mov_b64 exec, 1")
    e(f"buffer_store_dword v{vt}, v{vt+1}, s[{FLS}:{FLS+3}], {soff} offen {SC}")
    e("s_mov_b64 exec, -1")
    k.label(L)

def w160_voffs(k, dst, t):
    e = k.e
    for i in range(5):
        e(f"v_add_u32 v{t}, {64*i}, v1\nv_mul_u32_u24 v{t+1}, 6554, v{t}\nv_lshrrev_b32 v{t+1}, 16, v{t+1}")
        e(f"v_mul_u32_u24 v{t+2}, 10, v{t+1}\nv_sub_u32 v{t+2}, v{t}, v{t+2}")
        e(f"v_and_b32 v{t}, 24, v{t+1}\nv_bfe_u32 v{t+3}, v{t+1}, 1, 2\nv_add_u32 v{t}, v{t}, v{t+3}\nv_and_b32 v{t+3}, 1, v{t+1}\nv_lshl_add_u32 v{t}, v{t+3}, 2, v{t}")
        e(f"v_mul_u32_u24 v{t}, 1280, v{t}\nv_lshl_add_u32 v{dst+i}, v{t+2}, 4, v{t}")

def touch(k, bufs, vdst):
    if not PREF: return
    e = k.e
    Lnp = k.newlabel("nopf")
    tot = sum(n for _, n in bufs)
    e(f"s_cmp_ge_u32 s10, {tot}\ns_cbranch_scc1 {Lnp}")
    e(f"s_mov_b32 s34, s{bufs[0][0]}\ns_mov_b32 s35, s{bufs[0][0]+1}\ns_mov_b32 s32, s10")
    lo = bufs[0][1]
    for p, n in bufs[1:]:
        e(f"s_sub_u32 s33, s10, {lo}")
        e(f"s_cselect_b32 s34, s34, s{p}\ns_cselect_b32 s35, s35, s{p+1}\ns_cselect_b32 s32, s32, s33")
        lo += n
    e("s_lshl_b32 s32, s32, 13\ns_add_u32 s34, s34, s32\ns_addc_u32 s35, s35, 0")
    e(f"global_load_dword v{vdst}, v9, s[34:35]")
    k.label(Lnp)

def stouch(k):
    e = k.e
    e("s_sub_u32 s10, s2, 128\ns_lshl_b32 s10, s10, 2\ns_add_u32 s10, s10, s3\ns_lshl_b32 s10, s10, 7")
    for j, p in enumerate((PWG, PWU, PWD, PWO)):
        e(f"s_add_u32 s{16+2*j}, s{p}, s10\ns_addc_u32 s{17+2*j}, s{p+1}, 0")
    seq = []
    for i in range(30): seq += [(0, i), (1, i)]
    NT = int(os.environ.get("NT2", 30))
    for i in range(NT): seq += [(2, i)]
    for i in range(min(NT, 12)): seq += [(3, i)]
    n = 0
    adv = [0, 0, 0, 0]
    for j, i in seq:
        off = (i - adv[j]) * 65536
        if off >= 0x100000:
            e(f"s_add_u32 s{16+2*j}, s{16+2*j}, {hex(off)}\ns_addc_u32 s{17+2*j}, s{17+2*j}, 0"); adv[j] = i; off = 0
        e(f"s_load_dword s{24 + n % 12}, s[{16+2*j}:{17+2*j}], {hex(off)}")
        n += 1
    e("s_waitcnt lgkmcnt(0)")

def tag_setup(k):
    k.e(f"s_load_dword s72, s[{PWS}:{PWS+1}], 0")
    srd_from(k, FLS, PWS, FL_BYTES)
    k.e(f"s_mov_b32 {BUD}, 200000")
def tag_finish(k):
    k.e(f"s_waitcnt lgkmcnt(0)\ns_mul_i32 {TAG}, s72, 1664525\ns_add_u32 {TAG}, {TAG}, 1013904223")

def phase0(k):
    e = k.e
    e("v_and_b32 v3, 15, v1\nv_lshrrev_b32 v4, 4, v1")
    e("s_mul_i32 s12, s4, 20480\ns_mul_i32 s13, s3, 320\ns_add_u32 s12, s12, s13")
    e("v_mul_u32_u24 v5, 1280, v3\nv_lshl_add_u32 v5, v4, 4, v5")
    e("s_mul_i32 s14, s3, 6400\ns_mul_i32 s15, s3, 14336")
    e("s_waitcnt lgkmcnt(0)")
    srd_from(k, 16, PX, NBYTES['x'])
    X = 16
    for i in range(5):
        e(f"buffer_load_dwordx4 {vr(X+4*i,4)}, v5, s[16:19], s12 offen offset:{64*i} {XNT}")
    srd_from(k, 20, PWK, NBYTES['wk'])
    srd_from(k, 24, PWV, NBYTES['wv'])
    for m, srd in ((0, 20), (1, 24)):
        for j in range(7):
            if j % 4 == 0:
                e(f"s_add_u32 m0, s15, {m*7168 + j*1024}")
                e(f"s_add_u32 s37, s14, {j*1024}")
            e(f"buffer_load_dwordx4 v2, s[{srd}:{srd+3}], s37 offen offset:{(j%4)*1024} lds")
    tag_setup(k)
    srd_from(k, 28, PWS, XN_BYTES, XN_OFF)
    srd_from(k, 32, PWS, KV_BYTES, KV_OFF)
    e("v_mov_b32 v8, 0\nv_mov_b32 v9, 0\nv_mov_b32 v10, 0\nv_mov_b32 v11, 0")
    e("s_mov_b32 s38, 0x3f803f80")
    STAT = 57344; RED = STAT + 512
    e(f"s_lshl_b32 s39, s3, 7\ns_add_u32 s39, s39, {STAT}")
    e("v_lshl_add_u32 v12, v3, 3, s39\nv_lshlrev_b32 v13, 3, v3")
    tag_finish(k)
    for i in range(5):
        e(f"s_waitcnt vmcnt({18-i})")
        for d in range(4*i, 4*i+4):
            a = 8 + (d & 1); q = 10 + (d & 1)
            e(f"v_dot2_f32_bf16 v{a}, v{X+d}, s38, v{a}")
            e(f"v_dot2_f32_bf16 v{q}, v{X+d}, v{X+d}, v{q}")
    bstamp(k, "xl")
    e("v_add_f32 v8, v8, v9\nv_add_f32 v9, v10, v11")
    for sw in ("v_permlane32_swap_b32", "v_permlane16_swap_b32"):
        e("v_mov_b32 v10, v8\nv_mov_b32 v11, v9")
        e(f"{sw} v8, v10\n{sw} v9, v11")
        e("v_add_f32 v8, v8, v10\nv_add_f32 v9, v9, v11")
    e("ds_write_b64 v12, v[8:9]")
    U = 96
    for d in range(20):
        e(f"v_lshlrev_b32 v{U+2*d}, 16, v{X+d}\nv_and_b32 v{U+2*d+1}, 0xffff0000, v{X+d}")
        if d == 1: e("s_waitcnt lgkmcnt(0)\ns_barrier")
        if d == 1:
            for w in range(4): e(f"ds_read_b64 {vr(36+2*w,2)}, v13 offset:{STAT+128*w}")
    e("s_waitcnt lgkmcnt(0)")
    e("v_add_f32 v8, v36, v38\nv_add_f32 v9, v37, v39\nv_add_f32 v10, v40, v42\nv_add_f32 v11, v41, v43")
    e("v_add_f32 v8, v8, v10\nv_add_f32 v9, v9, v11")
    inv = hex(f32bits(1.0/640))
    e(f"v_mul_f32 v8, {inv}, v8\nv_mul_f32 v9, {inv}, v9")
    e("v_fma_f32 v9, -v8, v8, v9\nv_max_f32 v9, 0, v9")
    e("v_cvt_pk_bf16_f32 v10, v8, v9")
    e("v_lshlrev_b32 v8, 16, v10\nv_and_b32 v9, 0xffff0000, v10")
    e(f"v_add_f32 v9, {hex(f32bits(1e-5))}, v9")
    e("v_cvt_pk_bf16_f32 v9, v9, v9\nv_and_b32 v9, 0xffff0000, v9")
    e("v_sqrt_f32 v9, v9")
    e("v_cvt_pk_bf16_f32 v9, v9, v9\nv_and_b32 v9, 0xffff0000, v9")
    e("v_rcp_f32 v10, v9")
    e("s_lshr_b32 s40, s4, 1\ns_mul_i32 s41, s40, 40960\ns_and_b32 s42, s4, 1")
    e("s_lshl_b32 s43, s42, 8\ns_add_u32 s41, s41, s43\ns_mul_i32 s43, s3, 10240\ns_add_u32 s41, s41, s43")
    e("v_lshlrev_b32 v13, 9, v4\nv_lshl_add_u32 v13, v3, 4, v13")
    for d in range(20):
        u = U + 2*d
        e(f"v_pk_add_f32 {vr(u,2)}, {vr(u,2)}, v[8:9] op_sel_hi:[1,0] neg_lo:[0,1] neg_hi:[0,1]")
    for d in range(20):
        u = U + 2*d
        e(f"v_cvt_pk_bf16_f32 v{X+d}, v{u}, v{u+1}")
    for i in range(5):
        for d in range(4*i, 4*i+4):
            u = U + 2*d
            e(f"v_lshlrev_b32 v{u}, 16, v{X+d}\nv_and_b32 v{u+1}, 0xffff0000, v{X+d}")
        for d in range(4*i, 4*i+4):
            u = U + 2*d
            e(f"v_pk_mul_f32 {vr(u,2)}, {vr(u,2)}, v[10:11] op_sel_hi:[1,0]")
        for d in range(4*i, 4*i+4):
            u = U + 2*d
            e(f"v_cvt_pk_bf16_f32 v{X+d}, v{u}, v{u+1}")
        if i in (2, 4): e("s_add_u32 s41, s41, 4096")
        e(f"buffer_store_dwordx4 {vr(X+4*i,4)}, v13, s[28:31], s41 offen offset:{(i%2)*2048} {SC}")
    bstamp(k, "xs")
    e("v_lshrrev_b32 v14, 2, v3\nv_lshl_add_u32 v14, v4, 3, v14\nv_mul_u32_u24 v14, 40, v14")
    e("v_and_b32 v15, 3, v1\nv_lshl_add_u32 v14, v15, 3, v14\nv_add_u32 v14, s15, v14")
    ACC = 44; W = 136
    e("s_waitcnt vmcnt(5)")
    for i in range(5):
        for tl in range(4):
            m, n0 = tl >> 1, (tl & 1) * 16
            for u in range(2):
                e(f"ds_read_b64_tr_b16 {vr(W+16*i+4*tl+2*u,2)}, v14 offset:{m*7168 + i*1280 + u*160 + n0*2}")
        if i >= 1:
            e("s_waitcnt lgkmcnt(8)")
            for tl in range(4):
                wf = vr(W+16*(i-1)+4*tl, 4); xf = vr(X+4*(i-1), 4); acc = vr(ACC+4*tl, 4)
                a, b = (wf, xf) if tl < 2 else (xf, wf)
                e(f"v_mfma_f32_16x16x32_bf16 {acc}, {a}, {b}, {'0' if i == 1 else acc}")
    e("s_waitcnt lgkmcnt(0)")
    for tl in range(4):
        wf = vr(W+64+4*tl, 4); xf = vr(X+16, 4); acc = vr(ACC+4*tl, 4)
        a, b = (wf, xf) if tl < 2 else (xf, wf)
        e(f"v_mfma_f32_16x16x32_bf16 {acc}, {a}, {b}, {acc}")
    e(f"s_lshl_b32 s39, s3, 12\ns_add_u32 s39, s39, {RED}\nv_add_u32 v12, s39, v2")
    e(f"s_lshl_b32 s39, s3, 10\ns_add_u32 s39, s39, {RED}\nv_add_u32 v6, s39, v2")
    e(f"s_lshl_b32 s36, s4, 7\ns_add_u32 s36, s36, {XNF}\ns_lshl_b32 s37, s4, 2\ns_add_u32 s37, s37, {KVF}")
    for tl in range(4):
        e(f"ds_write_b128 v12, {vr(ACC+4*tl,4)} offset:{tl*1024}")
    e("s_waitcnt lgkmcnt(0) vmcnt(0)\ns_barrier")
    R = 60
    for w in range(4):
        e(f"ds_read_b128 {vr(R+4*w,4)}, v6 offset:{w*4096}")
    setflag(k, "s36", 10)
    bstamp(k, "xf")
    e("s_mul_i32 s39, s40, 3072")
    Lk1, Lv0, Lv1, Lst = (k.newlabel(x) for x in ("k1", "v0", "v1", "st"))
    e("v_lshl_add_u32 v7, s42, 4, v3")
    e("v_and_b32 v15, 1, v4\nv_lshrrev_b32 v5, 1, v4")
    e("s_waitcnt lgkmcnt(0)")
    for j in range(4):
        e(f"v_add_f32 v{R+j}, v{R+j}, v{R+4+j}\nv_add_f32 v{R+8+j}, v{R+8+j}, v{R+12+j}\nv_add_f32 v{R+j}, v{R+j}, v{R+8+j}")
    e(f"v_cvt_pk_bf16_f32 v8, v{R}, v{R+1}\nv_cvt_pk_bf16_f32 v9, v{R+2}, v{R+3}")
    e(f"s_cmp_eq_u32 s3, 1\ns_cbranch_scc1 {Lk1}")
    e(f"s_cmp_eq_u32 s3, 2\ns_cbranch_scc1 {Lv0}")
    e(f"s_cmp_eq_u32 s3, 3\ns_cbranch_scc1 {Lv1}")
    e("v_lshl_add_u32 v12, v5, 5, v7\nv_lshlrev_b32 v12, 4, v12\nv_lshl_add_u32 v12, v15, 3, v12")
    e(f"s_branch {Lst}")
    k.label(Lk1)
    e("v_lshlrev_b32 v12, 3, v7\nv_add_u32 v12, 1024, v12")
    e("v_cmp_ne_u32 vcc, 0, v4\nv_mov_b32 v13, 0x7fffffff\nv_cndmask_b32 v12, v12, v13, vcc")
    e(f"s_branch {Lst}")
    k.label(Lv1)
    e("v_add_u32 v3, 16, v3")
    e("v_cmp_eq_u32 vcc, 20, v3\nv_mov_b32 v13, 0x3f803f80\nv_cndmask_b32 v8, v8, v13, vcc\nv_cndmask_b32 v9, v9, v13, vcc")
    e("v_cmp_lt_u32 vcc, 20, v3\nv_mov_b32 v13, 0x1000000\nv_cndmask_b32 v3, v3, v13, vcc")
    k.label(Lv0)
    e("s_mul_i32 s38, s42, 768\ns_add_u32 s38, s38, 1536")
    e("v_mul_u32_u24 v12, 384, v15\nv_lshl_add_u32 v12, v3, 4, v12\nv_lshl_add_u32 v12, v5, 3, v12\nv_add_u32 v12, s38, v12")
    k.label(Lst)
    e(f"buffer_store_dwordx2 v[8:9], v12, s[32:35], s39 offen {SC}")
    e("s_waitcnt vmcnt(0)\ns_barrier")
    setflag(k, "s37", 10)

def roleB(k):
    e = k.e
    SLOT = 20480
    Lgu = k.newlabel("gu0"); Lnp = k.newlabel("nop0")
    bstamp(k, "start")
    e("s_and_b32 s5, s2, 7\ns_lshr_b32 s6, s2, 3")
    e(f"s_cmp_ge_u32 s6, 16\ns_cbranch_scc1 {Lnp}")
    e("s_lshl_b32 s4, s5, 4\ns_add_u32 s4, s4, s6")
    phase0(k)
    e(f"s_branch {Lgu}")
    k.label(Lnp)
    if PREF:
        Lc = k.newlabel("nocp"); Lh = k.newlabel("here")
        e(f"s_cmp_lg_u32 s6, 31\ns_cbranch_scc1 {Lc}")
        e("s_getpc_b64 s[34:35]")
        k.label(Lh)
        e(f"s_sub_u32 s34, s34, {Lh}-{k.name}\ns_subb_u32 s35, s35, 0")
        e(f"v_lshlrev_b32 v9, 7, v0\nv_min_u32 v9, {k.name}_end-{k.name}-4, v9")
        e("global_load_dword v15, v9, s[34:35]")
        k.label(Lc)
    e("s_waitcnt lgkmcnt(0)")
    tag_setup(k)
    tag_finish(k)
    if TV >= 1:
        e("s_sub_u32 s10, s2, 128\ns_lshl_b32 s10, s10, 2\ns_add_u32 s10, s10, s3\nv_lshlrev_b32 v9, 7, v1")
        if TV == 2:
            e(f"s_lshl_b32 s32, s10, 12\ns_add_u32 s34, s{PWD}, s32\ns_addc_u32 s35, s{PWD+1}, 0\ns_cmp_lt_u32 s10, 480\ns_cselect_b32 s34, s34, s{PWD}\ns_cselect_b32 s35, s35, s{PWD+1}")
            e("v_mov_b32 v16, 0\nglobal_load_dword v15, v16, s[34:35]\ns_waitcnt vmcnt(0)")
        touch(k, [(PWG, 240), (PWU, 240)], 15)
        e("s_waitcnt vmcnt(0)")
    if STAMPS:
        for n in ("xl", "xs", "xf"): bstamp(k, n)
    k.label(Lgu)
    bstamp(k, "p0")
    if os.environ.get("ONLY") == "A":
        stamp_dump(k, 0, 5, "s2", PWS); e("s_endpgm")
    e("s_lshr_b32 s7, s5, 1\ns_lshl_b32 s7, s7, 2\ns_lshr_b32 s8, s6, 3\ns_add_u32 s7, s7, s8")
    e("s_and_b32 s8, s5, 1\ns_lshl_b32 s8, s8, 3\ns_and_b32 s32, s6, 7\ns_add_u32 s8, s8, s32")
    e("s_lshr_b32 s38, s3, 1\ns_and_b32 s39, s3, 1")
    e("s_lshl_b32 s32, s38, 1")
    for i in range(3):
        e(f"v_add_u32 v6, {64*i}, v1\nv_mul_u32_u24 v7, 5462, v6\nv_lshrrev_b32 v7, 16, v7")
        e("v_mul_u32_u24 v8, 12, v7\nv_sub_u32 v8, v6, v8\nv_xor_b32 v8, s32, v8")
        e(f"v_mul_u32_u24 v7, 3072, v7\nv_lshl_add_u32 v{3+i}, v8, 4, v7")
    srd_from(k, 16, PWS, XN_BYTES, XN_OFF)
    e(f"s_cmp_eq_u32 s38, 0\ns_cselect_b32 s20, s{PWG}, s{PWU}\ns_cselect_b32 s21, s{PWG+1}, s{PWU+1}")
    e(f"s_mov_b32 s22, {hex(NBYTES['wg'])}\ns_mov_b32 s23, 0x20000")
    srd_from(k, 28, PWS, AF_BYTES, AF_OFF)
    e("s_mul_i32 s12, s39, 49152\ns_mul_i32 s32, s8, 192\ns_add_u32 s12, s12, s32")
    e("s_lshl_b32 s32, s7, 2\ns_add_u32 s32, s32, s3\ns_mul_i32 s13, s32, 40960")
    e("s_mul_i32 s14, s3, 3072\ns_lshl_b32 s15, s3, 11\ns_add_u32 s15, s15, 12288")
    def issueW(sl):
        return [[f"s_add_u32 m0, s14, {sl*SLOT}"],
                ["buffer_load_dwordx4 v3, s[20:23], s12 offen lds", "s_add_u32 m0, m0, 1024"],
                ["buffer_load_dwordx4 v4, s[20:23], s12 offen lds", "s_add_u32 m0, m0, 1024"],
                ["buffer_load_dwordx4 v5, s[20:23], s12 offen lds", f"s_add_u32 s12, s12, {32*3072}"]]
    def issueX(sl):
        return [[f"s_add_u32 m0, s15, {sl*SLOT}"],
                [f"buffer_load_dwordx4 v2, s[16:19], s13 offen {SC} lds"],
                [f"buffer_load_dwordx4 v2, s[16:19], s13 offen offset:1024 {SC} lds", "s_add_u32 s13, s13, 2048"]]
    for c in range(4):
        for g in issueW(c):
            for x in g: e(x)
    e("v_lshrrev_b32 v6, 5, v1\nv_bfe_u32 v7, v1, 2, 2\nv_lshl_add_u32 v7, v6, 3, v7\nv_mul_u32_u24 v7, 192, v7")
    e("v_and_b32 v8, 1, v1\nv_lshl_add_u32 v7, v8, 4, v7\nv_bfe_u32 v8, v1, 1, 1\nv_lshl_add_u32 v7, v8, 3, v7")
    e("v_bfe_u32 v8, v1, 4, 1\nv_mul_u32_u24 v9, 6144, v8\nv_add_u32 v7, v7, v9")
    e("s_mul_i32 s40, s38, 3")
    for a in range(3):
        e(f"s_add_u32 s32, s40, {a}\nv_xor_b32 v9, s32, v8\nv_lshl_add_u32 v{10+a}, v9, 5, v7")
    e("s_lshl_b32 s32, s39, 12\ns_add_u32 s32, s32, 12288\nv_add_u32 v13, s32, v2")
    ACC = 32; FR = [128, 148]
    for j in range(96): e(f"v_mov_b32 v{ACC+j}, 0")
    e("v_and_b32 v14, 1, v1\nv_lshlrev_b32 v14, 7, v14")
    e(f"s_lshl_b32 s32, s7, 2\ns_add_u32 s32, s32, s3\ns_lshl_b32 s32, s32, 8\ns_add_u32 s32, s32, {XNF}")
    poll(k, "v14", "s32", 15)
    for c in range(4):
        for g in issueX(c):
            for x in g: e(x)
    def reads(fs, sl, ks):
        L = [f"ds_read_b128 {vr(FR[fs]+12,4)}, v13 offset:{sl*SLOT + ks*1024}"]
        for a in range(3):
            for u in range(2):
                L.append(f"ds_read_b64_tr_b16 {vr(FR[fs]+4*a+2*u,2)}, v{10+a} offset:{sl*SLOT + (16*ks+4*u)*192}")
            if a == 0: L.append(f"ds_read_b128 {vr(FR[fs]+16,4)}, v13 offset:{sl*SLOT + 2048 + ks*1024}")
        return L
    def mfmas(fs):
        return [f"{MF} {vr(ACC+16*(2*a+b),16)}, {vr(FR[fs]+4*a,4)}, {vr(FR[fs]+12+4*b,4)}, {vr(ACC+16*(2*a+b),16)}" for a in range(3) for b in range(2)]
    e(f"s_mov_b32 s42, 0\ns_setprio {GP0}")
    e("s_lshl_b32 s10, s3, 8\ns_add_u32 s10, s10, s2\nv_lshlrev_b32 v9, 7, v1")
    e("s_waitcnt vmcnt(0)\ns_barrier")
    bstamp(k, "gu0")
    for x in reads(0, 0, 0): e(x)
    L = k.newlabel("gu")
    k.label(L, 6)
    for sl in range(4):
        e("s_waitcnt lgkmcnt(0)")
        rd = reads(1, sl, 1); mf = mfmas(0)
        sh = [rd[0:2], rd[2:4], rd[4:6], rd[6:8], [], []]
        if sl == 0: sh[4] = ["s_cmp_ge_u32 s42, 4", "s_cselect_b32 s13, 0x7ff00000, s13"]
        for i in range(6):
            e(mf[i])
            for x in sh[i]: e(x)
        if sl == 2 and GSW >= 0:
            Lt = k.newlabel("gsw")
            e(f"s_cmp_lg_u32 s42, {GSW}\ns_cbranch_scc1 {Lt}\ns_setprio {GP1}")
            k.label(Lt)
        if sl == 1 and TV >= 1:
            Lt = k.newlabel("nt2")
            e(f"s_cmp_lg_u32 s42, 2\ns_cbranch_scc1 {Lt}")
            touch(k, [(PWD, 240), (PWO, 100)], 15)
            k.label(Lt)
        e("s_waitcnt vmcnt(10) lgkmcnt(0)\ns_barrier")
        rd = reads(0, (sl+1) % 4, 0); mf = mfmas(1)
        iw = issueW(sl); ix = issueX(sl)
        sh = [rd[0:2] + iw[0], rd[2:4] + iw[1], rd[4:6] + iw[2], rd[6:8] + iw[3] + ix[0], ix[1], ix[2]]
        if sl == 3: sh[5] = sh[5] + ["s_add_u32 s42, s42, 1", "s_cmp_lt_u32 s42, 5"]
        for i in range(6):
            e(mf[i])
            for x in sh[i]: e(x)
    e(f"s_cbranch_scc1 {L}")
    e("s_setprio 2")
    e("s_lshl_b32 s9, s5, 2\ns_lshr_b32 s10, s6, 3\ns_add_u32 s9, s9, s10\ns_and_b32 s10, s6, 7")
    w160_voffs(k, 3, 16)
    srd_from(k, 20, PWD, NBYTES['wd'])
    e(f"s_mul_i32 s12, s3, {384*1280}\ns_mul_i32 s33, s10, 160\ns_add_u32 s12, s12, s33")
    e(f"s_mul_i32 s11, s3, {160*1280}\ns_add_u32 s11, s11, s33")
    e(f"s_mul_i32 s14, s3, {SLOT}")
    e("s_waitcnt vmcnt(0) lgkmcnt(0)\ns_barrier")
    bstamp(k, "gu1")
    def issueW2(sl):
        L = []
        for i in range(5):
            L.append([f"s_add_u32 m0, s14, {sl*5120 + i*1024}", f"buffer_load_dwordx4 v{3+i}, s[20:23], s12 offen lds"])
        L[4].append(f"s_add_u32 s12, s12, {32*1280}")
        return L
    for g in range(4):
        for x in issueW2(g):
            for y in x: e(y)
    e(f"s_mov_b32 s33, {hex(f32bits(-math.log2(math.e)))}")
    e(f"s_lshl_b32 s32, s7, 1\ns_add_u32 s32, s32, s39\ns_mul_i32 s32, s32, 272\ns_mul_i32 s43, s8, 6")
    e("s_add_u32 s32, s32, s43\ns_add_u32 s32, s32, s40\ns_add_u32 s32, s32, 40\ns_lshl_b32 s32, s32, 10")
    e(f"s_add_u32 s34, s32, {136*1024}")
    T = 128
    for a in range(3):
        for b in range(2):
            g = ACC + 16*(2*a+b); u = g + 8
            for j in range(8): e(f"v_mul_f32 v{T+j}, s33, v{g+j}")
            for j in range(8): e(f"v_exp_f32 v{T+j}, v{T+j}")
            for j in range(0, 8, 2): e(f"v_pk_mul_f32 {vr(g+j,2)}, {vr(g+j,2)}, {vr(u+j,2)}")
            for j in range(0, 8, 2): e(f"v_pk_add_f32 {vr(T+j,2)}, {vr(T+j,2)}, 1.0 op_sel_hi:[1,0]")
            for j in range(8): e(f"v_rcp_f32 v{T+j}, v{T+j}")
            for j in range(0, 8, 2): e(f"v_pk_mul_f32 {vr(g+j,2)}, {vr(g+j,2)}, {vr(T+j,2)}")
            for j in range(4): e(f"v_cvt_pk_bf16_f32 v{u+j}, v{g+2*j}, v{g+2*j+1}")
            e(f"buffer_store_dwordx4 {vr(u,4)}, v2, s[28:31], {'s34' if b else 's32'} offen offset:{a*1024} {SC}")
    e("v_lshrrev_b32 v8, 5, v1\nv_bfe_u32 v9, v1, 2, 2\nv_lshl_add_u32 v9, v8, 2, v9\nv_mul_u32_u24 v9, 320, v9\nv_add_u32 v9, s14, v9")
    e("v_and_b32 v16, 1, v1\nv_bfe_u32 v17, v1, 1, 1\nv_bfe_u32 v18, v1, 4, 1")
    e("v_lshl_add_u32 v10, v16, 5, v9\nv_lshl_add_u32 v10, v17, 3, v10\nv_lshl_add_u32 v10, v18, 4, v10")
    e("v_lshl_add_u32 v11, v16, 4, v9\nv_lshl_add_u32 v11, v17, 3, v11\nv_add_u32 v11, 128, v11\nv_lshl_add_u32 v11, v18, 18, v11")
    e(f"s_lshl_b32 s35, s7, 4\ns_add_u32 s36, s35, s8\ns_lshl_b32 s36, s36, 7\ns_add_u32 s36, s36, {HF}")
    e("s_waitcnt vmcnt(0)\ns_barrier")
    setflag(k, "s36", 16)
    for j in range(96): e(f"v_mov_b32 v{ACC+j}, 0")
    e(f"s_mul_i32 s24, s9, {272*1024}\ns_mul_i32 s32, s3, {24*1024}\ns_add_u32 s26, s24, s32\ns_add_u32 s26, s26, {40*1024}\ns_add_u32 s27, s26, {136*1024}")
    e("v_and_b32 v14, 3, v1\nv_lshlrev_b32 v14, 7, v14")
    e(f"s_lshr_b32 s35, s9, 1\ns_lshl_b32 s35, s35, 4\ns_lshl_b32 s32, s3, 2\ns_add_u32 s32, s32, s35\ns_lshl_b32 s32, s32, 7\ns_add_u32 s32, s32, {HF}")
    poll(k, "v14", "s32", 16)
    XR = 128; FA = [208, 220]
    def issueX2(rs):
        L = []
        for ks in range(2):
            for b in range(2):
                L.append([f"buffer_load_dwordx4 {vr(XR+16*rs+8*ks+4*b,4)}, v2, s[28:31], s{26+b} offen offset:{ks*1024} {SC}"])
        L[3] += ["s_add_u32 s26, s26, 2048", "s_add_u32 s27, s27, 2048"]
        return L
    for g in range(4):
        for x in issueX2(g):
            for y in x: e(y)
    def reads2(fs, sl, ks):
        L = []
        for a in range(3):
            for u in range(2):
                ad, off = ("v10", a*64) if a < 2 else ("v11", 0)
                L.append(f"ds_read_b64_tr_b16 {vr(FA[fs]+4*a+2*u,2)}, {ad} offset:{sl*5120 + ks*2560 + u*160 + off}")
        return L
    def mfmas2(fs, rs, ks):
        return [f"{MF} {vr(ACC+16*(3*b+a),16)}, {vr(FA[fs]+4*a,4)}, {vr(XR+16*rs+8*ks+4*b,4)}, {vr(ACC+16*(3*b+a),16)}" for a in range(3) for b in range(2)]
    e(f"s_mov_b32 s42, 0\ns_setprio {DP}")
    for x in reads2(0, 0, 0): e(x)
    e("s_waitcnt vmcnt(0)")
    bstamp(k, "dn0")
    L = k.newlabel("dn")
    k.label(L, 6)
    for sl in range(4):
        e("s_waitcnt lgkmcnt(0)")
        rd = reads2(1, sl, 1); mf = mfmas2(0, sl, 0)
        sh = [rd[0:2], rd[2:4], rd[4:6], [], [], []]
        if sl == 0:
            sh[3] = ["s_cmp_eq_u32 s42, 2", f"s_cselect_b32 s20, s{PWO}, s20", f"s_cselect_b32 s21, s{PWO+1}, s21"]
            sh[4] = [f"s_cselect_b32 s22, {hex(NBYTES['wo'])}, s22", "s_cselect_b32 s12, s11, s12"]
            sh[5] = ["s_cselect_b32 s26, 0x7ff00000, s26", "s_cselect_b32 s27, 0x7ff00000, s27"]
        for i in range(6):
            e(mf[i])
            for x in sh[i]: e(x)
        e("s_waitcnt vmcnt(18) lgkmcnt(0)")
        rd = reads2(0, (sl+1) % 4, 0); mf = mfmas2(1, sl, 1)
        iw = issueW2(sl); ix = issueX2(sl)
        sh = [rd[0:2] + iw[0], rd[2:4] + iw[1], rd[4:6] + iw[2], iw[3], iw[4], ix[0] + ix[1] + ix[2] + ix[3]]
        if sl == 3: sh[5] = sh[5] + ["s_add_u32 s42, s42, 1", "s_cmp_lt_u32 s42, 3"]
        for i in range(6):
            e(mf[i])
            for x in sh[i]: e(x)
    e(f"s_cbranch_scc1 {L}")
    e("s_setprio 2")
    for x in reads2(1, 0, 1): e(x)
    e("s_waitcnt lgkmcnt(0)")
    for x in issueW2(0):
        for y in x: e(y)
    srd_from(k, 16, PX, NBYTES['x'])
    srd_from(k, 36, POUT, NBYTES['out'])
    e("s_lshr_b32 s40, s3, 1\ns_and_b32 s41, s3, 1")
    e("s_lshl_b32 s32, s9, 1\ns_add_u32 s32, s32, s40\ns_mul_i32 s32, s32, 40960\ns_mul_i32 s33, s10, 160\ns_add_u32 s43, s32, s33")
    e("v_and_b32 v16, 31, v1\nv_mul_u32_u24 v16, 1280, v16")
    e("s_lshl_b32 s32, s41, 6\nv_lshl_add_u32 v12, v8, 5, v16\nv_add_u32 v12, s32, v12")
    e("s_lshl_b32 s32, s41, 3\ns_add_u32 s32, s32, 128\nv_lshl_add_u32 v13, v8, 4, v16\nv_add_u32 v13, s32, v13")
    XS = 232
    e(f"buffer_load_dwordx4 {vr(XS,4)}, v12, s[16:19], s43 offen")
    e(f"buffer_load_dwordx4 {vr(XS+4,4)}, v12, s[16:19], s43 offen offset:16")
    e(f"buffer_load_dwordx2 {vr(XS+8,2)}, v13, s[16:19], s43 offen")
    e(f"s_mul_i32 s32, s3, {10*1024}\ns_add_u32 s26, s24, s32\ns_add_u32 s27, s26, {136*1024}")
    e("v_and_b32 v14, 1, v1\nv_lshlrev_b32 v14, 7, v14")
    e(f"s_lshl_b32 s32, s9, 3\ns_lshl_b32 s33, s3, 1\ns_add_u32 s32, s32, s33\ns_lshl_b32 s32, s32, 7\ns_add_u32 s32, s32, {OF}")
    bstamp(k, "dn1")
    if os.environ.get("ONLY") != "B": poll(k, "v14", "s32", 16)
    else: e("s_waitcnt vmcnt(0)")
    bstamp(k, "of")
    for g in range(5):
        for x in issueX2(g):
            for y in x: e(y)
    for t in range(10):
        g, ks = t >> 1, t & 1
        e(f"s_waitcnt vmcnt({18 - 2*t}) lgkmcnt({6 if t < 9 else 0})")
        mf = mfmas2(t & 1, g, ks)
        for i in range(6): e(mf[i])
        if t + 2 < 10:
            g2, ks2 = (t+2) >> 1, (t+2) & 1
            for x in reads2(t & 1, g2 % 4, ks2): e(x)
    bstamp(k, "mm")
    e("v_add_u32 v14, s14, v2")
    for b in range(2):
        for q in range(10):
            e(f"ds_write_b128 v14, {vr(ACC+48*b+4*q,4)} offset:{(10*b+q)*1024}")
    e("s_mul_i32 s32, s40, 10240\ns_lshl_b32 s33, s41, 12\ns_add_u32 s33, s33, s32\nv_add_u32 v15, s33, v2")
    e("s_lshl_b32 s33, s41, 10\ns_add_u32 s33, s33, s32\ns_add_u32 s33, s33, 8192\nv_add_u32 v16, s33, v2")
    e("s_waitcnt lgkmcnt(0)\ns_barrier")
    R = 128
    for w in range(4):
        for q in range(4):
            e(f"ds_read_b128 {vr(R+20*w+4*q,4)}, v15 offset:{w*SLOT + q*1024}")
        e(f"ds_read_b128 {vr(R+20*w+16,4)}, v16 offset:{w*SLOT}")
    for j in range(10):
        e(f"v_lshlrev_b32 v{ACC+2*j}, 16, v{XS+j}\nv_and_b32 v{ACC+2*j+1}, 0xffff0000, v{XS+j}")
    for w in range(4):
        e(f"s_waitcnt lgkmcnt({15-5*w})")
        for j in range(0, 20, 2):
            e(f"v_pk_add_f32 {vr(ACC+j,2)}, {vr(ACC+j,2)}, {vr(R+20*w+j,2)}")
    for j in range(10):
        e(f"v_cvt_pk_bf16_f32 v{XS+j}, v{ACC+2*j}, v{ACC+2*j+1}")
    bstamp(k, "rd")
    e(f"buffer_store_dwordx4 {vr(XS,4)}, v12, s[36:39], s43 offen")
    e(f"buffer_store_dwordx4 {vr(XS+4,4)}, v12, s[36:39], s43 offen offset:16")
    e(f"buffer_store_dwordx2 {vr(XS+8,2)}, v13, s[36:39], s43 offen")
    stamp_dump(k, 0, 9, "s2", PWS)
    e("s_endpgm")

def roleA(k):
    e = k.e
    KVSLOT = 24576; KV0 = 8192
    WQ = 96; S0, S1 = 32, 48; FB = 64
    Q = [16, 24]; O = [144, 160]; P = [96, 104]; KVB = [112, 128]; KT = 176
    KL = lambda s: KVB[s]; KH = lambda s: KVB[s]+4; V0 = lambda s: KVB[s]+8; V1 = lambda s: KVB[s]+12
    AKL, AKH, AV, BKH, BV = 8, 9, 10, 11, 12
    WV = 16
    stamp(k, 0)
    e("s_bfe_u32 s8, s2, 0x20001\ns_lshl_b32 s8, s8, 3\ns_lshr_b32 s9, s2, 5\ns_add_u32 s8, s8, s9")
    e("s_and_b32 s9, s2, 1\ns_lshl_b32 s9, s9, 2\ns_bfe_u32 s32, s2, 0x20003\ns_add_u32 s9, s9, s32")
    e("s_add_u32 s11, s8, s9\ns_mul_i32 s32, s11, 52\ns_lshr_b32 s32, s32, 8\ns_mul_i32 s32, s32, 5\ns_sub_u32 s11, s11, s32")
    w160_voffs(k, WV, 3)
    e("s_mul_i32 s12, s3, 40960\ns_mul_i32 s32, s9, 160\ns_add_u32 s12, s12, s32")
    e("s_mul_i32 s14, s3, 5120")
    def rot_first(dst, base, step, lim):
        e(f"s_mul_i32 {dst}, s11, {step}\ns_add_u32 {dst}, {dst}, {base}\ns_add_u32 {lim}, {base}, {5*step}")
    def rot_next(dst, base, step, lim):
        e(f"s_add_u32 {dst}, {dst}, {step}\ns_cmp_eq_u32 {dst}, {lim}\ns_cselect_b32 {dst}, {base}, {dst}")
    rot_first("s34", "s12", 4*40960, "s35")
    e("s_waitcnt lgkmcnt(0)")
    srd_from(k, 20, PWQ, NBYTES['wq'])
    def wq_issue(slot):
        for i in range(5):
            e(f"s_add_u32 m0, s14, {slot*20480 + i*1024}")
            e(f"buffer_load_dwordx4 v{WV+i}, s[20:23], s34 offen lds")
        rot_next("s34", "s12", 4*40960, "s35")
    wq_issue(0)
    tag_setup(k)
    srd_from(k, 16, PWS, XN_BYTES, XN_OFF)
    srd_from(k, 24, PWS, KV_BYTES, KV_OFF)
    srd_from(k, 28, PWS, AF_BYTES, AF_OFF)
    e("v_lshrrev_b32 v6, 5, v1")
    e("v_bfe_u32 v7, v1, 2, 2\nv_lshl_add_u32 v7, v6, 2, v7\nv_mul_u32_u24 v4, 320, v7")
    e("v_and_b32 v7, 1, v1\nv_lshlrev_b32 v7, 4, v7")
    e("v_bfe_u32 v8, v1, 1, 1\nv_lshl_add_u32 v7, v8, 3, v7")
    e("v_and_b32 v8, 16, v1\nv_cmp_ne_u32 vcc, 0, v8\nv_mov_b32 v8, 32\nv_cndmask_b32 v7, v7, v8, vcc")
    e("v_add_u32 v4, v4, v7\ns_mul_i32 s32, s3, 40\nv_add_u32 v4, s32, v4")
    e("v_and_b32 v8, 19, v1\nv_cmp_lt_u32 vcc, 16, v8\nv_mov_b32 v8, 0x40000\nv_cndmask_b32 v4, v4, v8, vcc")
    e("v_add_u32 v5, 40960, v4")
    e(f"v_and_b32 v7, 31, v1\nv_lshlrev_b32 v{BKH}, 3, v7\nv_add_u32 v{BKH}, 1024, v{BKH}\nv_lshl_add_u32 v{BKH}, v6, 18, v{BKH}")
    e(f"v_mul_u32_u24 v{BV}, 24, v6\nv_add_u32 v{BV}, v{BV}, v7")
    e("v_cmp_le_u32 vcc, 28, v7\nv_cndmask_b32 v13, 0, 1, vcc\nv_xor_b32 v13, v13, v6\nv_mul_u32_u24 v13, 24, v13\nv_add_u32 v13, 20, v13")
    e("v_and_b32 v15, 27, v7\nv_cmp_ne_u32 vcc, 24, v15\nv_mov_b32 v15, 0x4000\nv_cndmask_b32 v13, v13, v15, vcc")
    e(f"v_cmp_le_u32 vcc, 20, v7\nv_cndmask_b32 v{BV}, v{BV}, v13, vcc")
    e(f"v_lshlrev_b32 v{BV}, 4, v{BV}\nv_add_u32 v{BV}, 1536, v{BV}")
    c0 = KV0 + KVSLOT
    e(f"v_add_u32 v{AKL}, {c0}, v2\nv_add_u32 v{AKH}, {c0}, v{BKH}\nv_add_u32 v{AV}, {c0}, v{BV}")
    e("v_and_b32 v14, 1, v1\nv_lshlrev_b32 v14, 7, v14\nv_lshlrev_b32 v13, 3, v1\nv_add_u32 v3, 49152, v2")
    e("s_lshr_b32 s32, s3, 1\ns_lshl_b32 s33, s8, 1\ns_add_u32 s37, s32, s33\ns_mul_i32 s13, s37, 40960")
    e("s_and_b32 s32, s3, 1\ns_lshl_b32 s32, s32, 12\ns_add_u32 s13, s13, s32")
    e(f"s_lshl_b32 s15, s3, 12\ns_lshl_b32 s39, s37, 8\ns_add_u32 s39, s39, {XNF}\ns_mov_b32 s38, {KVF}\ns_mul_i32 s36, s3, 6144")
    rot_first("s40", "s13", 8192, "s41")
    for r in range(1, 4): wq_issue(r)
    tag_finish(k)
    stamp(k, 1)
    wqr = lambda ks: WQ + 4*ks if ks < 38 else 24 + 4*(ks - 38)
    def wq_read(ks, lks):
        for u in range(2):
            off = lks*2560 + u*160
            ad = "v4"
            if off >= 40960: ad = "v5"; off -= 40960
            e(f"ds_read_b64_tr_b16 {vr(wqr(ks)+2*u,2)}, {ad} offset:{off}")
    e("s_waitcnt vmcnt(15)\ns_barrier")
    for ks in range(8): wq_read(ks, ks)
    e("s_waitcnt lgkmcnt(0)\ns_barrier")
    wq_issue(0)
    poll(k, "v14", "s39", 22, pre_issued="issue")
    e("s_waitcnt vmcnt(6)\ns_barrier")
    stamp(k, 2)
    for ks in range(8, 32): wq_read(ks, ks)
    poll(k, "v14", "s39", 22, pre_issued=True)
    e("s_waitcnt lgkmcnt(0)\ns_barrier")
    stamp(k, 3)
    reg = lambda s: ((s + 2) % 5) * 16384
    def x_list(s):
        L = [[f"s_add_u32 m0, s15, {reg(s)}"]]
        for i in range(4):
            L.append([f"buffer_load_dwordx4 v2, s[16:19], s40 offen offset:{i*1024} {SC} lds"])
        if s < 4: L.append(["s_add_u32 s40, s40, 8192", "s_cmp_eq_u32 s40, s41", "s_cselect_b32 s40, s13, s40"])
        return L
    for s in range(2):
        for g in x_list(s):
            for x in g: e(x)
    for ks in range(32, 40): wq_read(ks, ks - 32)
    stamp(k, 4)
    def kv_issue(chunk_soff, slot_base):
        L = []
        for half in range(2):
            L.append([f"s_add_u32 m0, s36, {slot_base + half*3072}", f"s_add_u32 s32, s36, {chunk_soff + half*3072}"])
            for j in range(3):
                L.append([f"buffer_load_dwordx4 v2, s[24:27], s32 offen offset:{j*1024} {SC} lds"])
        return L
    def xrd(f):
        s, i = f >> 4, f & 15
        off = reg(s) + (i & 1)*8192 + (i >> 1)*1024
        ad = "v2"
        if off >= 49152: ad = "v3"; off -= 49152
        return f"ds_read_b128 {vr(FB+4*(f&7),4)}, {ad} offset:{off}"
    inits = []
    for j in range(8): inits += [(P[1]+j, "0"), (V0(1)+j, "0")]
    for s_ in range(2): inits += [(KH(s_)+2, "0x3f80"), (KH(s_)+3, "0")]
    for j in range(32): inits += [(O[0]+j, "0")]
    for t in range(4): inits += [(KT+8*t+6, "0"), (KT+8*t+7, "0")]
    inits.sort()
    sh = {}
    kv0 = kv_issue(0, KV0 + KVSLOT); kv1 = kv_issue(KVSLOT, KV0 + 2*KVSLOT)
    for i, x in enumerate(kv0): sh.setdefault(41 + i, []).extend(x)
    for i, x in enumerate(kv1): sh.setdefault(57 + i, []).extend(x)
    for i, x in enumerate(x_list(2)): sh.setdefault(0 + i, []).extend(x)
    for i, x in enumerate(x_list(3)): sh.setdefault(8 + i, []).extend(x)
    for i, x in enumerate(x_list(4)): sh.setdefault(14 + i, []).extend(x)
    sh.setdefault(20, []).append(f"buffer_load_dwordx2 v[22:23], v13, s[{FLS}:{FLS+3}], s38 offen {SC}")
    e("s_waitcnt vmcnt(4) lgkmcnt(0)\ns_barrier")
    for f in range(8): e(xrd(f))
    for f in range(80):
        ks = f >> 1; b = f & 1
        if f + 8 < 80 and (f + 8) % 16 == 0:
            s = (f + 8) >> 4
            if s == 3: poll(k, "v13", "s38", 22, nloads=2, pre_issued=True, x2=True)
            elif s < 3: e(f"s_waitcnt vmcnt({4 if s == 1 else 9})")
            e("s_barrier")
        e(f"s_waitcnt lgkmcnt({min(7, 79-f)})")
        acc = vr(S0+16*b, 16)
        e(f"{MF} {acc}, {vr(wqr(ks),4)}, {vr(FB+4*(f&7),4)}, {'0' if ks == 0 else acc}")
        if f + 8 < 80: e(xrd(f + 8))
        for x in sh.get(f, []): e(x)
        n = 0
        while inits and n < 3 and inits[0][0] < WQ + 4*ks:
            r, v = inits.pop(0); e(f"v_mov_b32 v{r}, {v}"); n += 1
    assert not inits
    stamp(k, 5)
    e(f"s_mov_b32 s33, {hex(f32bits(QSCALE))}")
    e("s_waitcnt vmcnt(6)\ns_barrier")
    for t in range(4):
        e(f"ds_read_b128 {vr(KT+8*t,4)}, v{AKL} offset:{t*3072}")
        e(f"ds_read_b64 {vr(KT+8*t+4,2)}, v{AKH} offset:{t*3072}")
    for s in range(2):
        e(f"ds_read_b128 {vr(KL(s),4)}, v{AKL} offset:{s*3072}\nds_read_b64 {vr(KH(s),2)}, v{AKH} offset:{s*3072}")
    e(f"ds_read_b128 {vr(V0(0),4)}, v{AV}\nds_read_b128 {vr(V1(0),4)}, v{AV} offset:768")
    T = list(range(96, 104)) + list(range(240, 244))
    def qepi(b):
        L = []
        for j in range(6): L.append(f"v_cvt_pk_bf16_f32 v{Q[b]+j}, v{S0+16*b+2*j}, v{S0+16*b+2*j+1}")
        for j in range(6): L += [f"v_lshlrev_b32 v{T[2*j]}, 16, v{Q[b]+j}", f"v_and_b32 v{T[2*j+1]}, 0xffff0000, v{Q[b]+j}"]
        for j in range(12): L.append(f"v_mul_f32 v{T[j]}, s33, v{T[j]}")
        for j in range(6): L.append(f"v_cvt_pk_bf16_f32 v{Q[b]+j}, v{T[2*j]}, v{T[2*j+1]}")
        L += [f"v_mov_b32 v{Q[b]+6}, 0", f"v_mov_b32 v{Q[b]+7}, 0"]
        return L
    MX = [13, 14]
    SX = [[64, 80, 208, 224], [32, 48, 64, 80]]
    def mx(b, t):
        S = SX[b][t]
        L = [f"v_max3_f32 v{MX[b]}, v{S}, v{S+1}, v{S+2}", f"v_max_f32 v{MX[b]}, v{MX[b]}, v{S+3}"] if t == 0 else []
        for j in range(4 if t == 0 else 0, 16, 2): L.append(f"v_max3_f32 v{MX[b]}, v{MX[b]}, v{S+j}, v{S+j+1}")
        return L
    def qk(b, t):
        S = SX[b][t]
        return [f"{MF} {vr(S,16)}, {vr(KT+8*t,4)}, {vr(Q[b],4)}, 0", f"{MF} {vr(S,16)}, {vr(KT+8*t+4,4)}, {vr(Q[b]+4,4)}, {vr(S,16)}"]
    def fin(b, offs):
        L = [f"v_mov_b32 v15, v{MX[b]}", f"v_permlane32_swap_b32 v{MX[b]}, v15", f"v_max_f32 v{MX[b]}, v{MX[b]}, v15"]
        if offs: L.append(f"v_add_f32 v{MX[b]}, {hex(f32bits(offs))}, v{MX[b]}")
        L += [f"v_cvt_pk_bf16_f32 v{MX[b]}, -v{MX[b]}, 0", "v_cmp_ne_u32 vcc, 0, v6", f"v_cndmask_b32 v{Q[b]+6}, v{MX[b]}, 0, vcc"]
        return L
    def weave(mfs, vals, per):
        for m in mfs:
            e(m)
            for _ in range(per):
                if vals: e(vals.pop(0))
        for v in vals: e(v)
    for x in qepi(0): e(x)
    e("s_waitcnt lgkmcnt(6)")
    weave([m for t in range(4) for m in qk(0, t)], qepi(1), 5)
    v0 = mx(0, 0) + mx(0, 1)
    weave(qk(1, 0) + qk(1, 1), v0, 4)
    weave(qk(1, 2) + qk(1, 3), mx(0, 2) + mx(0, 3) + fin(0, OFFS), 6)
    for x in mx(1, 0): e(x)
    e("s_waitcnt lgkmcnt(0)")
    weave([f"{MF} {vr(S0,16)}, {vr(KL(0),4)}, {vr(Q[0],4)}, 0", f"{MF} {vr(S0,16)}, {vr(KH(0),4)}, {vr(Q[0]+4,4)}, {vr(S0,16)}"],
          mx(1, 1) + [f"v_mov_b32 v{S1+12+j}, 0" for j in range(4)] + mx(1, 2) + mx(1, 3) + fin(1, OFFS), 6)
    e(f"s_mov_b32 s40, 0\ns_mov_b32 s41, {KV0+2*KVSLOT}\ns_add_u32 s35, s36, {KV0}\ns_mov_b32 s42, s35\ns_add_u32 s43, s36, {2*KVSLOT}\ns_add_u32 s39, s35, {3*KVSLOT}")
    dma = lambda so, off: f"buffer_load_dwordx4 v2, s[24:27], {so} offen offset:{off} {SC} lds"
    extra = {(1, 0): ["s_mov_b32 m0, s42"], (1, 1): ["s_add_u32 s38, s43, 4096"], (1, 3): ["s_waitcnt vmcnt(0)", "s_barrier"],
             (2, 3): [dma("s43", 0), dma("s43", 1024)], (3, 3): [dma("s43", 2048), dma("s43", 3072)],
             (4, 0): ["s_add_u32 m0, s42, 4096"], (4, 3): [dma("s38", 0), dma("s38", 1024)],
             (5, 0): [f"s_add_u32 s43, s43, {KVSLOT}"], (5, 1): ["s_add_u32 s40, s40, 1"], (5, 2): [f"s_add_u32 s37, s42, {KVSLOT}"],
             (6, 0): ["s_cmp_eq_u32 s37, s39"], (6, 1): ["s_cselect_b32 s37, s35, s37"],
             (7, 0): ["s_sub_u32 s41, s42, s36"], (7, 1): ["s_mov_b32 s42, s37"],
             (7, 2): ["s_cmp_lt_u32 s40, 8"]}
    A0 = 208
    e("s_lshl_b32 s32, s9, 2\ns_add_u32 s32, s32, s3\ns_mul_i32 s32, s32, 20")
    e(f"s_mul_i32 s12, s8, {2*136*1024}\ns_add_u32 s13, s12, {136*1024}")
    e(f"s_lshl_b32 s14, s8, 3\ns_add_u32 s14, s14, s9\ns_lshl_b32 s14, s14, 7\ns_add_u32 s14, s14, {OF}")
    stamp(k, 6)
    stamp(k, 7)
    e("s_nop 4")
    Lloop = k.newlabel("att")
    k.label(Lloop, 6)
    def cv(S, Pb, g):
        return [f"v_cvt_pk_bf16_f32 v{Pb+2*g}, v{S+4*g}, v{S+4*g+1}", f"v_cvt_pk_bf16_f32 v{Pb+2*g+1}, v{S+4*g+2}, v{S+4*g+3}"]
    for jj in range(8):
        for blk in range(2):
            Sc, Sn = (S0, S1) if blk == 0 else (S1, S0)
            valu = []
            for g in range(4):
                for j in range(4): valu.append(f"v_exp_f32 v{Sc+4*g+j}, v{Sc+4*g+j}")
                valu += cv(Sn, P[1-blk], 3) if g == 0 else cv(Sc, P[blk], g-1)
            ks = (jj + blk) & 1; vs = (jj - 1 + blk) & 1; nb = 1 - blk
            ko = ((jj + 2) % 8) * 3072; vo = ((jj + 1) % 8) * 3072
            mf = [[f"{MF} {vr(O[nb],16)}, {vr(V0(vs),4)}, {vr(P[nb],4)}, {vr(O[nb],16)}"],
                  [f"{MF} {vr(Sn,16)}, {vr(KL(ks),4)}, {vr(Q[nb],4)}, 0"],
                  [f"{MF} {vr(Sn,16)}, {vr(KH(ks),4)}, {vr(Q[nb]+4,4)}, {vr(Sn,16)}"],
                  [f"{MF} {vr(O[nb],16)}, {vr(V1(vs),4)}, {vr(P[nb]+4,4)}, {vr(O[nb],16)}"]]
            if blk == 0:
                mf[2].append("s_waitcnt lgkmcnt(0)")
                mf[3].append(f"ds_read_b128 {vr(KL(ks),4)}, v{AKL} offset:{ko}")
                mf[3].append(f"ds_read_b64 {vr(KH(ks),2)}, v{AKH} offset:{ko}")
            else:
                mf[3].append(f"ds_read_b128 {vr(V0(1-vs),4)}, v{AV} offset:{vo}")
                mf[3].append(f"ds_read_b128 {vr(V1(1-vs),4)}, v{AV} offset:{vo+768}")
                if jj == 5: valu.append(f"v_add_u32 v{AKL}, s41, v2"); valu.append(f"v_add_u32 v{AKH}, s41, v{BKH}")
                if jj == 6: valu.append(f"v_add_u32 v{AV}, s41, v{BV}")
                for m in range(4): mf[m] += extra.get((jj, m), [])
            for i, v in enumerate(valu):
                for m in range(4):
                    if PATTERN[m] == i:
                        for x in mf[m]: e(x)
                e(v)
    e(f"s_cbranch_scc1 {Lloop}")
    for x in cv(S1, P[1], 3): e(x)
    e(f"{MF} {vr(O[1],16)}, {vr(V0(1),4)}, {vr(P[1],4)}, {vr(O[1],16)}")
    e(f"{MF} {vr(O[1],16)}, {vr(V1(1),4)}, {vr(P[1]+4,4)}, {vr(O[1],16)}")
    stamp(k, 8)
    e("s_mov_b32 s40, 0")
    e("v_and_b32 v7, 31, v1\nv_lshlrev_b32 v7, 4, v7")
    for j in range(3):
        a = A0 + j
        e(f"v_lshl_add_u32 v{a}, v6, 2, s32\nv_add_u32 v{a}, {8*j}, v{a}")
        e(f"v_lshrrev_b32 v{A0+3}, 3, v{a}\nv_lshl_add_u32 v{A0+3}, v{A0+3}, 9, v7")
        e(f"v_and_b32 v{a}, 4, v{a}\nv_lshl_add_u32 v{a}, v{a}, 1, v{A0+3}")
    e(f"v_cmp_ne_u32 vcc, 0, v6\nv_mov_b32 v{A0+3}, 0x7fffffff\nv_cndmask_b32 v{A0+2}, v{A0+2}, v{A0+3}, vcc")
    Lout = k.newlabel("out"); Lslow = k.newlabel("slow"); Lpub = k.newlabel("pub")
    k.label(Lout)
    PK = 224
    for b in range(2):
        e(f"v_rcp_f32 v{A0+4+b}, v{O[b]+12}")
        for j in range(12): e(f"v_mul_f32 v{O[b]+j}, v{O[b]+j}, v{A0+4+b}")
        for j in range(6): e(f"v_cvt_pk_bf16_f32 v{PK+8*b+j}, v{O[b]+2*j}, v{O[b]+2*j+1}")
        for j in range(3):
            e(f"buffer_store_dwordx2 {vr(PK+8*b+2*j,2)}, v{A0+j}, s[28:31], s{12+b} offen {SC}")
    e(f"v_mul_f32 v{A0+6}, 0, v{O[0]+12}\nv_mul_f32 v{A0+7}, 0, v{O[1]+12}")
    for j in range(12):
        for b in range(2): e(f"v_fma_f32 v{A0+6+b}, v{O[b]+j}, 0, v{A0+6+b}")
    e(f"v_cmp_u_f32 vcc, v{A0+6}, v{A0+7}")
    e(f"s_cmp_lg_u32 s40, 0\ns_cbranch_scc1 {Lpub}")
    e(f"s_cmp_lg_u64 vcc, 0\ns_cbranch_scc1 {Lslow}")
    k.label(Lpub)
    e("s_waitcnt vmcnt(0)\ns_barrier")
    setflag(k, "s14", 16)
    Lx = k.newlabel("axit")
    e(f"s_or_b32 s32, s2, s3\ns_cmp_lg_u32 s32, 0\ns_cbranch_scc1 {Lx}")
    e(f"v_lshlrev_b32 v13, 7, v1\ns_mov_b32 s38, {HF}")
    if not os.environ.get("ONLY"): poll(k, "v13", "s38", 16, nloads=8)
    setflag(k, "0", 16)
    k.label(Lx)
    stamp_dump(k, 1, 9, "s2", PWS)
    e("s_endpgm")
    k.label(Lslow)
    e("s_waitcnt vmcnt(0) lgkmcnt(0)")
    e(f"s_mov_b32 s40, 1\ns_mov_b32 s41, 0\nv_mov_b32 v{Q[0]+6}, 0\nv_mov_b32 v{Q[1]+6}, 0")
    e(f"v_mov_b32 v{MX[0]}, 0xff800000\nv_mov_b32 v{MX[1]}, 0xff800000")
    def kload():
        e(f"buffer_load_dwordx4 {vr(KL(0),4)}, v2, s[24:27], s41 offen {SC}")
        e(f"buffer_load_dwordx2 {vr(KH(0),2)}, v{BKH}, s[24:27], s41 offen {SC}")
    def qk2():
        for b in range(2):
            S = S0 + 16*b
            e(f"{MF} {vr(S,16)}, {vr(KL(0),4)}, {vr(Q[b],4)}, 0\n{MF} {vr(S,16)}, {vr(KH(0),4)}, {vr(Q[b]+4,4)}, {vr(S,16)}")
    L1 = k.newlabel("sl1"); k.label(L1)
    kload(); e("s_waitcnt vmcnt(0)"); qk2()
    for b in range(2):
        for j in range(0, 16, 2): e(f"v_max3_f32 v{MX[b]}, v{MX[b]}, v{S0+16*b+j}, v{S0+16*b+j+1}")
    e(f"s_add_u32 s41, s41, 3072\ns_cmp_lt_u32 s41, {KV_BYTES}\ns_cbranch_scc1 {L1}")
    for b in range(2):
        for x in fin(b, 0): e(x)
    for j in range(32): e(f"v_mov_b32 v{O[0]+j}, 0")
    e("s_mov_b32 s41, 0")
    L2 = k.newlabel("sl2"); k.label(L2)
    kload()
    e(f"buffer_load_dwordx4 {vr(V0(0),4)}, v{BV}, s[24:27], s41 offen {SC}")
    e(f"buffer_load_dwordx4 {vr(V1(0),4)}, v{BV}, s[24:27], s41 offen offset:768 {SC}")
    e("s_waitcnt vmcnt(0)"); qk2()
    for b in range(2):
        S = S0 + 16*b
        for j in range(16): e(f"v_exp_f32 v{S+j}, v{S+j}")
        for g in range(4):
            for x in cv(S, P[b], g): e(x)
        e(f"{MF} {vr(O[b],16)}, {vr(V0(0),4)}, {vr(P[b],4)}, {vr(O[b],16)}")
        e(f"{MF} {vr(O[b],16)}, {vr(V1(0),4)}, {vr(P[b]+4,4)}, {vr(O[b],16)}")
    e(f"s_add_u32 s41, s41, 3072\ns_cmp_lt_u32 s41, {KV_BYTES}\ns_cbranch_scc1 {L2}")
    e("s_nop 12")
    e(f"s_branch {Lout}")

def gen_mega(name="parallel_sum__grouped_kv_mqa__swiglu_ffn__prompt_kernel"):
    k = Kernel(name); e = k.e
    LA = k.newlabel("roleA"); LB = k.newlabel("roleB")
    e("s_load_dwordx16 s[48:63], s[0:1], 0\ns_load_dwordx8 s[64:71], s[0:1], 64")
    e("v_and_b32 v1, 63, v0\nv_lshrrev_b32 v2, 6, v0\nv_readfirstlane_b32 s3, v2\nv_lshlrev_b32 v2, 4, v1")
    e(f"s_cmp_lt_u32 s2, 256\ns_cbranch_scc1 {LB}\ns_cmp_lt_u32 s2, 512\ns_cbranch_scc1 {LA}\ns_endpgm")
    k.label(LB)
    e("s_setprio 2")
    roleB(k)
    k.label(LA, 6)
    if os.environ.get("ONLY") == "B": e("s_endpgm")
    e("s_sub_u32 s2, s2, 256\ns_setprio 1")
    roleA(k)
    k.label(f"{k.name}_end")
    k.lds = 81920; k.grid = 512; k.block = 256
    return k

if __name__ == "__main__":
    import sys
    from build import emit
    emit([gen_mega()], sys.argv[1] if len(sys.argv) > 1 else "parallel_sum__grouped_kv_mqa__swiglu_ffn__prompt.s")
```

```python
from asmgen import *
import common
from common import KA, NBYTES, f32bits, srd_from, stamp, stamp_dump, STAMPS
import math, os

MF = "v_mfma_f32_32x32x16_bf16"
QSCALE = (20 ** -0.5) * math.log2(math.e)
OFFS = float(os.environ.get('OFFS', 96.0))
PATTERN = [int(x) for x in os.environ.get('APAT', '2,6,9,13').split(',')]
XNF = 0x1000; KVF = 0x5000; HF = 0x9000; OF = 0x11000; FL_BYTES = 0x19000
KV_OFF = 0x20000;  KV_BYTES = 64*3072
XN_OFF = 0x80000;  XN_BYTES = 64*40*1024
AF_OFF = 0x300000; AF_BYTES = 64*136*1024
PX, PWQ, PWK, PWV, PWO, PWG, PWU, PWD, POUT, PWS = 48, 50, 52, 54, 56, 60, 62, 64, 66, 70
TAG = "s73"; BUD = "s74"
FLS = 44
SC = "sc1"
PREF = int(os.environ.get("PREF", 1))
RDM = int(os.environ.get("RDM", 1))
GP0 = int(os.environ.get("GP0", 0)); GP1 = int(os.environ.get("GP1", 2)); GSW = int(os.environ.get("GSW", -1)); DP = int(os.environ.get("DP", 0))
WQP = int(os.environ.get("WQP", 0))
AMAP = int(os.environ.get("AMAP", 1))
TV = int(os.environ.get("TV", 2))
XNT = os.environ.get("XNT", "nt")

BST = int(os.environ.get("BST", 0))
def bstamp(k, name):
    m0 = dict(start=0, xl=1, xs=2, xf=3, p0=4, gu0=5, gu1=6, dn0=7, dn1=8)
    m1 = dict(start=0, p0=1, gu0=2, gu1=3, dn0=4, dn1=5, of=6, mm=7, rd=8)
    m = m1 if BST else m0
    if name in m: stamp(k, m[name])

def poll(k, voff, soff, vt, nloads=1, pre_issued=False, x2=False):
    e = k.e
    Lp = k.newlabel("poll"); Ld = k.newlabel("pdone"); Lc = k.newlabel("pchk")
    def loads():
        if x2:
            e(f"buffer_load_dwordx2 {vr(vt,2)}, {voff}, s[{FLS}:{FLS+3}], {soff} offen {SC}"); return
        for i in range(nloads):
            if i == 0: e(f"buffer_load_dword v{vt}, {voff}, s[{FLS}:{FLS+3}], {soff} offen {SC}")
            else:
                e(f"s_add_u32 s75, {soff}, {8192*i}")
                e(f"buffer_load_dword v{vt+i}, {voff}, s[{FLS}:{FLS+3}], s75 offen {SC}")
    if pre_issued == "issue":
        loads(); return
    if pre_issued: e(f"s_branch {Lc}")
    k.label(Lp)
    loads()
    k.label(Lc)
    e("s_waitcnt vmcnt(0)")
    for i in range(1, nloads):
        e(f"v_xor_b32 v{vt+i}, {TAG}, v{vt+i}")
    e(f"v_xor_b32 v{vt}, {TAG}, v{vt}")
    for i in range(1, nloads): e(f"v_or_b32 v{vt}, v{vt}, v{vt+i}")
    e(f"v_cmp_ne_u32 vcc, 0, v{vt}")
    e(f"s_cmp_eq_u64 vcc, 0\ns_cbranch_scc1 {Ld}")
    e(f"s_sub_u32 {BUD}, {BUD}, 1\ns_cbranch_scc1 {Ld}")
    e(f"s_sleep 1\ns_branch {Lp}")
    k.label(Ld)

LEAK = os.environ.get("LEAK")
def setflag(k, soff, vt, leak=None):
    e = k.e
    L = k.newlabel("nofl")
    e(f"s_cmp_lg_u32 s3, 0\ns_cbranch_scc1 {L}")
    if LEAK and leak is not None:
        role, idx = LEAK[0], int(LEAK[1:])
        sel = f"s{86+idx}" if role == leak else "s86"
        e(f"v_mov_b32 v{vt}, s86\nv_mov_b32 v{vt+1}, {sel}\nv_mov_b32 v{vt+2}, 0\ns_mov_b64 exec, 1")
        e(f"buffer_store_dwordx2 {vr(vt,2)}, v{vt+2}, s[{FLS}:{FLS+3}], {soff} offen offset:8 {SC}")
        e("s_waitcnt vmcnt(0)\ns_mov_b64 exec, -1")
    e(f"v_mov_b32 v{vt}, {TAG}\nv_mov_b32 v{vt+1}, 0\ns_mov_b64 exec, 1")
    e(f"buffer_store_dword v{vt}, v{vt+1}, s[{FLS}:{FLS+3}], {soff} offen {SC}")
    e("s_mov_b64 exec, -1")
    k.label(L)

def w160_voffs(k, dst, t):
    e = k.e
    for i in range(5):
        e(f"v_add_u32 v{t}, {64*i}, v1\nv_mul_u32_u24 v{t+1}, 6554, v{t}\nv_lshrrev_b32 v{t+1}, 16, v{t+1}")
        e(f"v_mul_u32_u24 v{t+2}, 10, v{t+1}\nv_sub_u32 v{t+2}, v{t}, v{t+2}")
        e(f"v_and_b32 v{t}, 24, v{t+1}\nv_bfe_u32 v{t+3}, v{t+1}, 1, 2\nv_add_u32 v{t}, v{t}, v{t+3}\nv_and_b32 v{t+3}, 1, v{t+1}\nv_lshl_add_u32 v{t}, v{t+3}, 2, v{t}")
        e(f"v_mul_u32_u24 v{t}, 1280, v{t}\nv_lshl_add_u32 v{dst+i}, v{t+2}, 4, v{t}")

def touch(k, bufs, vdst):
    if not PREF: return
    e = k.e
    Lnp = k.newlabel("nopf")
    tot = sum(n for _, n in bufs)
    e(f"s_cmp_ge_u32 s10, {tot}\ns_cbranch_scc1 {Lnp}")
    e(f"s_mov_b32 s34, s{bufs[0][0]}\ns_mov_b32 s35, s{bufs[0][0]+1}\ns_mov_b32 s32, s10")
    lo = bufs[0][1]
    for p, n in bufs[1:]:
        e(f"s_sub_u32 s33, s10, {lo}")
        e(f"s_cselect_b32 s34, s34, s{p}\ns_cselect_b32 s35, s35, s{p+1}\ns_cselect_b32 s32, s32, s33")
        lo += n
    e("s_lshl_b32 s32, s32, 13\ns_add_u32 s34, s34, s32\ns_addc_u32 s35, s35, 0")
    e(f"global_load_dword v{vdst}, v9, s[34:35]")
    k.label(Lnp)

def stouch(k):
    e = k.e
    e("s_sub_u32 s10, s2, 128\ns_lshl_b32 s10, s10, 2\ns_add_u32 s10, s10, s3\ns_lshl_b32 s10, s10, 7")
    for j, p in enumerate((PWG, PWU, PWD, PWO)):
        e(f"s_add_u32 s{16+2*j}, s{p}, s10\ns_addc_u32 s{17+2*j}, s{p+1}, 0")
    seq = []
    for i in range(30): seq += [(0, i), (1, i)]
    NT = int(os.environ.get("NT2", 30))
    for i in range(NT): seq += [(2, i)]
    for i in range(min(NT, 12)): seq += [(3, i)]
    n = 0
    adv = [0, 0, 0, 0]
    for j, i in seq:
        off = (i - adv[j]) * 65536
        if off >= 0x100000:
            e(f"s_add_u32 s{16+2*j}, s{16+2*j}, {hex(off)}\ns_addc_u32 s{17+2*j}, s{17+2*j}, 0"); adv[j] = i; off = 0
        e(f"s_load_dword s{24 + n % 12}, s[{16+2*j}:{17+2*j}], {hex(off)}")
        n += 1
    e("s_waitcnt lgkmcnt(0)")

def tag_setup(k):
    k.e(f"s_load_dword s72, s[{PWS}:{PWS+1}], 0")
    srd_from(k, FLS, PWS, FL_BYTES)
    k.e(f"s_mov_b32 {BUD}, 200000")
def tag_finish(k):
    k.e(f"s_waitcnt lgkmcnt(0)\ns_mul_i32 {TAG}, s72, 1664525\ns_add_u32 {TAG}, {TAG}, 1013904223")

def phase0(k):
    e = k.e
    e("v_and_b32 v3, 15, v1\nv_lshrrev_b32 v4, 4, v1")
    e("s_mul_i32 s12, s4, 20480\ns_mul_i32 s13, s3, 320\ns_add_u32 s12, s12, s13")
    e("v_mul_u32_u24 v5, 1280, v3\nv_lshl_add_u32 v5, v4, 4, v5")
    e("s_mul_i32 s14, s3, 6400\ns_mul_i32 s15, s3, 14336")
    e("s_waitcnt lgkmcnt(0)")
    srd_from(k, 16, PX, NBYTES['x'])
    X = 16
    for i in range(5):
        e(f"buffer_load_dwordx4 {vr(X+4*i,4)}, v5, s[16:19], s12 offen offset:{64*i} {XNT}")
    srd_from(k, 20, PWK, NBYTES['wk'])
    srd_from(k, 24, PWV, NBYTES['wv'])
    for m, srd in ((0, 20), (1, 24)):
        for j in range(7):
            if j % 4 == 0:
                e(f"s_add_u32 m0, s15, {m*7168 + j*1024}")
                e(f"s_add_u32 s37, s14, {j*1024}")
            e(f"buffer_load_dwordx4 v2, s[{srd}:{srd+3}], s37 offen offset:{(j%4)*1024} lds")
    tag_setup(k)
    srd_from(k, 28, PWS, XN_BYTES, XN_OFF)
    srd_from(k, 32, PWS, KV_BYTES, KV_OFF)
    e("v_mov_b32 v8, 0\nv_mov_b32 v9, 0\nv_mov_b32 v10, 0\nv_mov_b32 v11, 0")
    e("s_mov_b32 s38, 0x3f803f80")
    STAT = 57344; RED = STAT + 512
    e(f"s_lshl_b32 s39, s3, 7\ns_add_u32 s39, s39, {STAT}")
    e("v_lshl_add_u32 v12, v3, 3, s39\nv_lshlrev_b32 v13, 3, v3")
    tag_finish(k)
    for i in range(5):
        e(f"s_waitcnt vmcnt({18-i})")
        for d in range(4*i, 4*i+4):
            a = 8 + (d & 1); q = 10 + (d & 1)
            e(f"v_dot2_f32_bf16 v{a}, v{X+d}, s38, v{a}")
            e(f"v_dot2_f32_bf16 v{q}, v{X+d}, v{X+d}, v{q}")
    bstamp(k, "xl")
    e("v_add_f32 v8, v8, v9\nv_add_f32 v9, v10, v11")
    for sw in ("v_permlane32_swap_b32", "v_permlane16_swap_b32"):
        e("v_mov_b32 v10, v8\nv_mov_b32 v11, v9")
        e(f"{sw} v8, v10\n{sw} v9, v11")
        e("v_add_f32 v8, v8, v10\nv_add_f32 v9, v9, v11")
    e("ds_write_b64 v12, v[8:9]")
    U = 96
    for d in range(20):
        e(f"v_lshlrev_b32 v{U+2*d}, 16, v{X+d}\nv_and_b32 v{U+2*d+1}, 0xffff0000, v{X+d}")
        if d == 1: e("s_waitcnt lgkmcnt(0)\ns_barrier")
        if d == 1:
            for w in range(4): e(f"ds_read_b64 {vr(36+2*w,2)}, v13 offset:{STAT+128*w}")
    e("s_waitcnt lgkmcnt(0)")
    e("v_add_f32 v8, v36, v38\nv_add_f32 v9, v37, v39\nv_add_f32 v10, v40, v42\nv_add_f32 v11, v41, v43")
    e("v_add_f32 v8, v8, v10\nv_add_f32 v9, v9, v11")
    inv = hex(f32bits(1.0/640))
    e(f"v_mul_f32 v8, {inv}, v8\nv_mul_f32 v9, {inv}, v9")
    e("v_fma_f32 v9, -v8, v8, v9\nv_max_f32 v9, 0, v9")
    e("v_cvt_pk_bf16_f32 v10, v8, v9")
    e("v_lshlrev_b32 v8, 16, v10\nv_and_b32 v9, 0xffff0000, v10")
    e(f"v_add_f32 v9, {hex(f32bits(1e-5))}, v9")
    e("v_cvt_pk_bf16_f32 v9, v9, v9\nv_and_b32 v9, 0xffff0000, v9")
    e("v_sqrt_f32 v9, v9")
    e("v_cvt_pk_bf16_f32 v9, v9, v9\nv_and_b32 v9, 0xffff0000, v9")
    e("v_rcp_f32 v10, v9")
    e("s_lshr_b32 s40, s4, 1\ns_mul_i32 s41, s40, 40960\ns_and_b32 s42, s4, 1")
    e("s_lshl_b32 s43, s42, 8\ns_add_u32 s41, s41, s43\ns_mul_i32 s43, s3, 10240\ns_add_u32 s41, s41, s43")
    e("v_lshlrev_b32 v13, 9, v4\nv_lshl_add_u32 v13, v3, 4, v13")
    for d in range(20):
        u = U + 2*d
        e(f"v_pk_add_f32 {vr(u,2)}, {vr(u,2)}, v[8:9] op_sel_hi:[1,0] neg_lo:[0,1] neg_hi:[0,1]")
    for d in range(20):
        u = U + 2*d
        e(f"v_cvt_pk_bf16_f32 v{X+d}, v{u}, v{u+1}")
    for i in range(5):
        for d in range(4*i, 4*i+4):
            u = U + 2*d
            e(f"v_lshlrev_b32 v{u}, 16, v{X+d}\nv_and_b32 v{u+1}, 0xffff0000, v{X+d}")
        for d in range(4*i, 4*i+4):
            u = U + 2*d
            e(f"v_pk_mul_f32 {vr(u,2)}, {vr(u,2)}, v[10:11] op_sel_hi:[1,0]")
        for d in range(4*i, 4*i+4):
            u = U + 2*d
            e(f"v_cvt_pk_bf16_f32 v{X+d}, v{u}, v{u+1}")
        if i in (2, 4): e("s_add_u32 s41, s41, 4096")
        e(f"buffer_store_dwordx4 {vr(X+4*i,4)}, v13, s[28:31], s41 offen offset:{(i%2)*2048} {SC}")
    bstamp(k, "xs")
    e("v_lshrrev_b32 v14, 2, v3\nv_lshl_add_u32 v14, v4, 3, v14\nv_mul_u32_u24 v14, 40, v14")
    e("v_and_b32 v15, 3, v1\nv_lshl_add_u32 v14, v15, 3, v14\nv_add_u32 v14, s15, v14")
    ACC = 44; W = 136
    e("s_waitcnt vmcnt(5)")
    for i in range(5):
        for tl in range(4):
            m, n0 = tl >> 1, (tl & 1) * 16
            for u in range(2):
                e(f"ds_read_b64_tr_b16 {vr(W+16*i+4*tl+2*u,2)}, v14 offset:{m*7168 + i*1280 + u*160 + n0*2}")
        if i >= 1:
            e("s_waitcnt lgkmcnt(8)")
            for tl in range(4):
                wf = vr(W+16*(i-1)+4*tl, 4); xf = vr(X+4*(i-1), 4); acc = vr(ACC+4*tl, 4)
                a, b = (wf, xf) if tl < 2 else (xf, wf)
                e(f"v_mfma_f32_16x16x32_bf16 {acc}, {a}, {b}, {'0' if i == 1 else acc}")
    e("s_waitcnt lgkmcnt(0)")
    for tl in range(4):
        wf = vr(W+64+4*tl, 4); xf = vr(X+16, 4); acc = vr(ACC+4*tl, 4)
        a, b = (wf, xf) if tl < 2 else (xf, wf)
        e(f"v_mfma_f32_16x16x32_bf16 {acc}, {a}, {b}, {acc}")
    e(f"s_lshl_b32 s39, s3, 12\ns_add_u32 s39, s39, {RED}\nv_add_u32 v12, s39, v2")
    e(f"s_lshl_b32 s39, s3, 10\ns_add_u32 s39, s39, {RED}\nv_add_u32 v6, s39, v2")
    e(f"s_lshl_b32 s36, s4, 7\ns_add_u32 s36, s36, {XNF}\ns_lshl_b32 s37, s4, 2\ns_add_u32 s37, s37, {KVF}")
    for tl in range(4):
        e(f"ds_write_b128 v12, {vr(ACC+4*tl,4)} offset:{tl*1024}")
    e("s_waitcnt lgkmcnt(0) vmcnt(0)\ns_barrier")
    R = 60
    for w in range(4):
        e(f"ds_read_b128 {vr(R+4*w,4)}, v6 offset:{w*4096}")
    setflag(k, "s36", 10)
    bstamp(k, "xf")
    e("s_mul_i32 s39, s40, 3072")
    Lk1, Lv0, Lv1, Lst = (k.newlabel(x) for x in ("k1", "v0", "v1", "st"))
    e("v_lshl_add_u32 v7, s42, 4, v3")
    e("v_and_b32 v15, 1, v4\nv_lshrrev_b32 v5, 1, v4")
    e("s_waitcnt lgkmcnt(0)")
    for j in range(4):
        e(f"v_add_f32 v{R+j}, v{R+j}, v{R+4+j}\nv_add_f32 v{R+8+j}, v{R+8+j}, v{R+12+j}\nv_add_f32 v{R+j}, v{R+j}, v{R+8+j}")
    e(f"v_cvt_pk_bf16_f32 v8, v{R}, v{R+1}\nv_cvt_pk_bf16_f32 v9, v{R+2}, v{R+3}")
    e(f"s_cmp_eq_u32 s3, 1\ns_cbranch_scc1 {Lk1}")
    e(f"s_cmp_eq_u32 s3, 2\ns_cbranch_scc1 {Lv0}")
    e(f"s_cmp_eq_u32 s3, 3\ns_cbranch_scc1 {Lv1}")
    e("v_lshl_add_u32 v12, v5, 5, v7\nv_lshlrev_b32 v12, 4, v12\nv_lshl_add_u32 v12, v15, 3, v12")
    e(f"s_branch {Lst}")
    k.label(Lk1)
    e("v_lshlrev_b32 v12, 3, v7\nv_add_u32 v12, 1024, v12")
    e("v_cmp_ne_u32 vcc, 0, v4\nv_mov_b32 v13, 0x7fffffff\nv_cndmask_b32 v12, v12, v13, vcc")
    e(f"s_branch {Lst}")
    k.label(Lv1)
    e("v_add_u32 v3, 16, v3")
    e("v_cmp_eq_u32 vcc, 20, v3\nv_mov_b32 v13, 0x3f803f80\nv_cndmask_b32 v8, v8, v13, vcc\nv_cndmask_b32 v9, v9, v13, vcc")
    e("v_cmp_lt_u32 vcc, 20, v3\nv_mov_b32 v13, 0x1000000\nv_cndmask_b32 v3, v3, v13, vcc")
    k.label(Lv0)
    e("s_mul_i32 s38, s42, 768\ns_add_u32 s38, s38, 1536")
    e("v_mul_u32_u24 v12, 384, v15\nv_lshl_add_u32 v12, v3, 4, v12\nv_lshl_add_u32 v12, v5, 3, v12\nv_add_u32 v12, s38, v12")
    k.label(Lst)
    e(f"buffer_store_dwordx2 v[8:9], v12, s[32:35], s39 offen {SC}")
    e("s_waitcnt vmcnt(0)\ns_barrier")
    setflag(k, "s37", 10)

def roleB(k):
    e = k.e
    SLOT = 20480
    Lgu = k.newlabel("gu0"); Lnp = k.newlabel("nop0")
    bstamp(k, "start")
    e("s_and_b32 s5, s2, 7\ns_lshr_b32 s6, s2, 3")
    e(f"s_cmp_ge_u32 s6, 16\ns_cbranch_scc1 {Lnp}")
    e("s_lshl_b32 s4, s5, 4\ns_add_u32 s4, s4, s6")
    phase0(k)
    e(f"s_branch {Lgu}")
    k.label(Lnp)
    if PREF:
        Lc = k.newlabel("nocp"); Lh = k.newlabel("here")
        e(f"s_cmp_lg_u32 s6, 31\ns_cbranch_scc1 {Lc}")
        e("s_getpc_b64 s[34:35]")
        k.label(Lh)
        e(f"s_sub_u32 s34, s34, {Lh}-{k.name}\ns_subb_u32 s35, s35, 0")
        e(f"v_lshlrev_b32 v9, 7, v0\nv_min_u32 v9, {k.name}_end-{k.name}-4, v9")
        e("global_load_dword v15, v9, s[34:35]")
        k.label(Lc)
    e("s_waitcnt lgkmcnt(0)")
    tag_setup(k)
    tag_finish(k)
    if TV >= 1:
        e("s_sub_u32 s10, s2, 128\ns_lshl_b32 s10, s10, 2\ns_add_u32 s10, s10, s3\nv_lshlrev_b32 v9, 7, v1")
        if TV == 2:
            e(f"s_lshl_b32 s32, s10, 12\ns_add_u32 s34, s{PWD}, s32\ns_addc_u32 s35, s{PWD+1}, 0\ns_cmp_lt_u32 s10, 480\ns_cselect_b32 s34, s34, s{PWD}\ns_cselect_b32 s35, s35, s{PWD+1}")
            e("v_mov_b32 v16, 0\nglobal_load_dword v15, v16, s[34:35]\ns_waitcnt vmcnt(0)")
        touch(k, [(PWG, 240), (PWU, 240)], 15)
        e("s_waitcnt vmcnt(0)")
    if STAMPS:
        for n in ("xl", "xs", "xf"): bstamp(k, n)
    k.label(Lgu)
    bstamp(k, "p0")
    if os.environ.get("ONLY") == "A":
        stamp_dump(k, 0, 5, "s2", PWS); e("s_endpgm")
    e("s_lshr_b32 s7, s5, 1\ns_lshl_b32 s7, s7, 2\ns_lshr_b32 s8, s6, 3\ns_add_u32 s7, s7, s8")
    e("s_and_b32 s8, s5, 1\ns_lshl_b32 s8, s8, 3\ns_and_b32 s32, s6, 7\ns_add_u32 s8, s8, s32")
    e("s_lshr_b32 s38, s3, 1\ns_and_b32 s39, s3, 1")
    e("s_lshl_b32 s32, s38, 1")
    for i in range(3):
        e(f"v_add_u32 v6, {64*i}, v1\nv_mul_u32_u24 v7, 5462, v6\nv_lshrrev_b32 v7, 16, v7")
        e("v_mul_u32_u24 v8, 12, v7\nv_sub_u32 v8, v6, v8\nv_xor_b32 v8, s32, v8")
        e(f"v_mul_u32_u24 v7, 3072, v7\nv_lshl_add_u32 v{3+i}, v8, 4, v7")
    srd_from(k, 16, PWS, XN_BYTES, XN_OFF)
    e(f"s_cmp_eq_u32 s38, 0\ns_cselect_b32 s20, s{PWG}, s{PWU}\ns_cselect_b32 s21, s{PWG+1}, s{PWU+1}")
    e(f"s_mov_b32 s22, {hex(NBYTES['wg'])}\ns_mov_b32 s23, 0x20000")
    srd_from(k, 28, PWS, AF_BYTES, AF_OFF)
    e("s_mul_i32 s12, s39, 49152\ns_mul_i32 s32, s8, 192\ns_add_u32 s12, s12, s32")
    e("s_lshl_b32 s32, s7, 2\ns_add_u32 s32, s32, s3\ns_mul_i32 s13, s32, 40960")
    e("s_mul_i32 s14, s3, 3072\ns_lshl_b32 s15, s3, 11\ns_add_u32 s15, s15, 12288")
    def issueW(sl):
        return [[f"s_add_u32 m0, s14, {sl*SLOT}"],
                ["buffer_load_dwordx4 v3, s[20:23], s12 offen lds", "s_add_u32 m0, m0, 1024"],
                ["buffer_load_dwordx4 v4, s[20:23], s12 offen lds", "s_add_u32 m0, m0, 1024"],
                ["buffer_load_dwordx4 v5, s[20:23], s12 offen lds", f"s_add_u32 s12, s12, {32*3072}"]]
    def issueX(sl):
        return [[f"s_add_u32 m0, s15, {sl*SLOT}"],
                [f"buffer_load_dwordx4 v2, s[16:19], s13 offen {SC} lds"],
                [f"buffer_load_dwordx4 v2, s[16:19], s13 offen offset:1024 {SC} lds", "s_add_u32 s13, s13, 2048"]]
    for c in range(4):
        for g in issueW(c):
            for x in g: e(x)
    e("v_lshrrev_b32 v6, 5, v1\nv_bfe_u32 v7, v1, 2, 2\nv_lshl_add_u32 v7, v6, 3, v7\nv_mul_u32_u24 v7, 192, v7")
    e("v_and_b32 v8, 1, v1\nv_lshl_add_u32 v7, v8, 4, v7\nv_bfe_u32 v8, v1, 1, 1\nv_lshl_add_u32 v7, v8, 3, v7")
    e("v_bfe_u32 v8, v1, 4, 1\nv_mul_u32_u24 v9, 6144, v8\nv_add_u32 v7, v7, v9")
    e("s_mul_i32 s40, s38, 3")
    for a in range(3):
        e(f"s_add_u32 s32, s40, {a}\nv_xor_b32 v9, s32, v8\nv_lshl_add_u32 v{10+a}, v9, 5, v7")
    e("s_lshl_b32 s32, s39, 12\ns_add_u32 s32, s32, 12288\nv_add_u32 v13, s32, v2")
    ACC = 32; FR = [128, 148]
    for j in range(96): e(f"v_mov_b32 v{ACC+j}, 0")
    e("v_and_b32 v14, 1, v1\nv_lshlrev_b32 v14, 7, v14")
    e(f"s_lshl_b32 s32, s7, 2\ns_add_u32 s32, s32, s3\ns_lshl_b32 s32, s32, 8\ns_add_u32 s32, s32, {XNF}")
    poll(k, "v14", "s32", 15)
    for c in range(4):
        for g in issueX(c):
            for x in g: e(x)
    def reads(fs, sl, ks):
        L = [f"ds_read_b128 {vr(FR[fs]+12,4)}, v13 offset:{sl*SLOT + ks*1024}"]
        for a in range(3):
            for u in range(2):
                L.append(f"ds_read_b64_tr_b16 {vr(FR[fs]+4*a+2*u,2)}, v{10+a} offset:{sl*SLOT + (16*ks+4*u)*192}")
            if a == 0: L.append(f"ds_read_b128 {vr(FR[fs]+16,4)}, v13 offset:{sl*SLOT + 2048 + ks*1024}")
        return L
    def mfmas(fs):
        return [f"{MF} {vr(ACC+16*(2*a+b),16)}, {vr(FR[fs]+4*a,4)}, {vr(FR[fs]+12+4*b,4)}, {vr(ACC+16*(2*a+b),16)}" for a in range(3) for b in range(2)]
    e(f"s_mov_b32 s42, 0\ns_setprio {GP0}")
    e("s_lshl_b32 s10, s3, 8\ns_add_u32 s10, s10, s2\nv_lshlrev_b32 v9, 7, v1")
    e("s_waitcnt vmcnt(0)\ns_barrier")
    bstamp(k, "gu0")
    for x in reads(0, 0, 0): e(x)
    L = k.newlabel("gu")
    k.label(L, 6)
    for sl in range(4):
        e("s_waitcnt lgkmcnt(0)")
        rd = reads(1, sl, 1); mf = mfmas(0)
        sh = [rd[0:2], rd[2:4], rd[4:6], rd[6:8], [], []]
        if sl == 0: sh[4] = ["s_cmp_ge_u32 s42, 4", "s_cselect_b32 s13, 0x7ff00000, s13"]
        for i in range(6):
            e(mf[i])
            for x in sh[i]: e(x)
        if sl == 2 and GSW >= 0:
            Lt = k.newlabel("gsw")
            e(f"s_cmp_lg_u32 s42, {GSW}\ns_cbranch_scc1 {Lt}\ns_setprio {GP1}")
            k.label(Lt)
        if sl == 1 and TV >= 1:
            Lt = k.newlabel("nt2")
            e(f"s_cmp_lg_u32 s42, 2\ns_cbranch_scc1 {Lt}")
            touch(k, [(PWD, 240), (PWO, 100)], 15)
            k.label(Lt)
        e("s_waitcnt vmcnt(10) lgkmcnt(0)\ns_barrier")
        rd = reads(0, (sl+1) % 4, 0); mf = mfmas(1)
        iw = issueW(sl); ix = issueX(sl)
        sh = [rd[0:2] + iw[0], rd[2:4] + iw[1], rd[4:6] + iw[2], rd[6:8] + iw[3] + ix[0], ix[1], ix[2]]
        if sl == 3: sh[5] = sh[5] + ["s_add_u32 s42, s42, 1", "s_cmp_lt_u32 s42, 5"]
        for i in range(6):
            e(mf[i])
            for x in sh[i]: e(x)
    e(f"s_cbranch_scc1 {L}")
    e("s_setprio 2")
    e("s_lshl_b32 s9, s5, 2\ns_lshr_b32 s10, s6, 3\ns_add_u32 s9, s9, s10\ns_and_b32 s10, s6, 7")
    w160_voffs(k, 3, 16)
    srd_from(k, 20, PWD, NBYTES['wd'])
    e(f"s_mul_i32 s12, s3, {384*1280}\ns_mul_i32 s33, s10, 160\ns_add_u32 s12, s12, s33")
    e(f"s_mul_i32 s11, s3, {160*1280}\ns_add_u32 s11, s11, s33")
    e(f"s_mul_i32 s14, s3, {SLOT}")
    e("s_waitcnt vmcnt(0) lgkmcnt(0)\ns_barrier")
    bstamp(k, "gu1")
    def issueW2(sl):
        L = []
        for i in range(5):
            L.append([f"s_add_u32 m0, s14, {sl*5120 + i*1024}", f"buffer_load_dwordx4 v{3+i}, s[20:23], s12 offen lds"])
        L[4].append(f"s_add_u32 s12, s12, {32*1280}")
        return L
    for g in range(4):
        for x in issueW2(g):
            for y in x: e(y)
    e(f"s_mov_b32 s33, {hex(f32bits(-math.log2(math.e)))}")
    e(f"s_lshl_b32 s32, s7, 1\ns_add_u32 s32, s32, s39\ns_mul_i32 s32, s32, 272\ns_mul_i32 s43, s8, 6")
    e("s_add_u32 s32, s32, s43\ns_add_u32 s32, s32, s40\ns_add_u32 s32, s32, 40\ns_lshl_b32 s32, s32, 10")
    e(f"s_add_u32 s34, s32, {136*1024}")
    T = 128
    for a in range(3):
        for b in range(2):
            g = ACC + 16*(2*a+b); u = g + 8
            for j in range(8): e(f"v_mul_f32 v{T+j}, s33, v{g+j}")
            for j in range(8): e(f"v_exp_f32 v{T+j}, v{T+j}")
            for j in range(0, 8, 2): e(f"v_pk_mul_f32 {vr(g+j,2)}, {vr(g+j,2)}, {vr(u+j,2)}")
            for j in range(0, 8, 2): e(f"v_pk_add_f32 {vr(T+j,2)}, {vr(T+j,2)}, 1.0 op_sel_hi:[1,0]")
            for j in range(8): e(f"v_rcp_f32 v{T+j}, v{T+j}")
            for j in range(0, 8, 2): e(f"v_pk_mul_f32 {vr(g+j,2)}, {vr(g+j,2)}, {vr(T+j,2)}")
            for j in range(4): e(f"v_cvt_pk_bf16_f32 v{u+j}, v{g+2*j}, v{g+2*j+1}")
            e(f"buffer_store_dwordx4 {vr(u,4)}, v2, s[28:31], {'s34' if b else 's32'} offen offset:{a*1024} {SC}")
    e("v_lshrrev_b32 v8, 5, v1\nv_bfe_u32 v9, v1, 2, 2\nv_lshl_add_u32 v9, v8, 2, v9\nv_mul_u32_u24 v9, 320, v9\nv_add_u32 v9, s14, v9")
    e("v_and_b32 v16, 1, v1\nv_bfe_u32 v17, v1, 1, 1\nv_bfe_u32 v18, v1, 4, 1")
    e("v_lshl_add_u32 v10, v16, 5, v9\nv_lshl_add_u32 v10, v17, 3, v10\nv_lshl_add_u32 v10, v18, 4, v10")
    e("v_lshl_add_u32 v11, v16, 4, v9\nv_lshl_add_u32 v11, v17, 3, v11\nv_add_u32 v11, 128, v11\nv_lshl_add_u32 v11, v18, 18, v11")
    e(f"s_lshl_b32 s35, s7, 4\ns_add_u32 s36, s35, s8\ns_lshl_b32 s36, s36, 7\ns_add_u32 s36, s36, {HF}")
    e("s_waitcnt vmcnt(0)\ns_barrier")
    setflag(k, "s36", 16, "B")
    for j in range(96): e(f"v_mov_b32 v{ACC+j}, 0")
    e(f"s_mul_i32 s24, s9, {272*1024}\ns_mul_i32 s32, s3, {24*1024}\ns_add_u32 s26, s24, s32\ns_add_u32 s26, s26, {40*1024}\ns_add_u32 s27, s26, {136*1024}")
    e("v_and_b32 v14, 3, v1\nv_lshlrev_b32 v14, 7, v14")
    e(f"s_lshr_b32 s35, s9, 1\ns_lshl_b32 s35, s35, 4\ns_lshl_b32 s32, s3, 2\ns_add_u32 s32, s32, s35\ns_lshl_b32 s32, s32, 7\ns_add_u32 s32, s32, {HF}")
    poll(k, "v14", "s32", 16)
    XR = 128; FA = [208, 220]
    def issueX2(rs):
        L = []
        for ks in range(2):
            for b in range(2):
                L.append([f"buffer_load_dwordx4 {vr(XR+16*rs+8*ks+4*b,4)}, v2, s[28:31], s{26+b} offen offset:{ks*1024} {SC}"])
        L[3] += ["s_add_u32 s26, s26, 2048", "s_add_u32 s27, s27, 2048"]
        return L
    for g in range(4):
        for x in issueX2(g):
            for y in x: e(y)
    def reads2(fs, sl, ks):
        L = []
        for a in range(3):
            for u in range(2):
                ad, off = ("v10", a*64) if a < 2 else ("v11", 0)
                L.append(f"ds_read_b64_tr_b16 {vr(FA[fs]+4*a+2*u,2)}, {ad} offset:{sl*5120 + ks*2560 + u*160 + off}")
        return L
    def mfmas2(fs, rs, ks):
        return [f"{MF} {vr(ACC+16*(3*b+a),16)}, {vr(FA[fs]+4*a,4)}, {vr(XR+16*rs+8*ks+4*b,4)}, {vr(ACC+16*(3*b+a),16)}" for a in range(3) for b in range(2)]
    e(f"s_mov_b32 s42, 0\ns_setprio {DP}")
    for x in reads2(0, 0, 0): e(x)
    e("s_waitcnt vmcnt(0)")
    bstamp(k, "dn0")
    L = k.newlabel("dn")
    k.label(L, 6)
    for sl in range(4):
        e("s_waitcnt lgkmcnt(0)")
        rd = reads2(1, sl, 1); mf = mfmas2(0, sl, 0)
        sh = [rd[0:2], rd[2:4], rd[4:6], [], [], []]
        if sl == 0:
            sh[3] = ["s_cmp_eq_u32 s42, 2", f"s_cselect_b32 s20, s{PWO}, s20", f"s_cselect_b32 s21, s{PWO+1}, s21"]
            sh[4] = [f"s_cselect_b32 s22, {hex(NBYTES['wo'])}, s22", "s_cselect_b32 s12, s11, s12"]
            sh[5] = ["s_cselect_b32 s26, 0x7ff00000, s26", "s_cselect_b32 s27, 0x7ff00000, s27"]
        for i in range(6):
            e(mf[i])
            for x in sh[i]: e(x)
        e("s_waitcnt vmcnt(18) lgkmcnt(0)")
        rd = reads2(0, (sl+1) % 4, 0); mf = mfmas2(1, sl, 1)
        iw = issueW2(sl); ix = issueX2(sl)
        sh = [rd[0:2] + iw[0], rd[2:4] + iw[1], rd[4:6] + iw[2], iw[3], iw[4], ix[0] + ix[1] + ix[2] + ix[3]]
        if sl == 3: sh[5] = sh[5] + ["s_add_u32 s42, s42, 1", "s_cmp_lt_u32 s42, 3"]
        for i in range(6):
            e(mf[i])
            for x in sh[i]: e(x)
    e(f"s_cbranch_scc1 {L}")
    e("s_setprio 2")
    for x in reads2(1, 0, 1): e(x)
    e("s_waitcnt lgkmcnt(0)")
    for x in issueW2(0):
        for y in x: e(y)
    srd_from(k, 16, PX, NBYTES['x'])
    srd_from(k, 36, POUT, NBYTES['out'])
    e("s_lshr_b32 s40, s3, 1\ns_and_b32 s41, s3, 1")
    e("s_lshl_b32 s32, s9, 1\ns_add_u32 s32, s32, s40\ns_mul_i32 s32, s32, 40960\ns_mul_i32 s33, s10, 160\ns_add_u32 s43, s32, s33")
    e("v_and_b32 v16, 31, v1\nv_mul_u32_u24 v16, 1280, v16")
    e("s_lshl_b32 s32, s41, 6\nv_lshl_add_u32 v12, v8, 5, v16\nv_add_u32 v12, s32, v12")
    e("s_lshl_b32 s32, s41, 3\ns_add_u32 s32, s32, 128\nv_lshl_add_u32 v13, v8, 4, v16\nv_add_u32 v13, s32, v13")
    XS = 232
    e(f"buffer_load_dwordx4 {vr(XS,4)}, v12, s[16:19], s43 offen")
    e(f"buffer_load_dwordx4 {vr(XS+4,4)}, v12, s[16:19], s43 offen offset:16")
    e(f"buffer_load_dwordx2 {vr(XS+8,2)}, v13, s[16:19], s43 offen")
    e(f"s_mul_i32 s32, s3, {10*1024}\ns_add_u32 s26, s24, s32\ns_add_u32 s27, s26, {136*1024}")
    e("v_and_b32 v14, 1, v1\nv_lshlrev_b32 v14, 7, v14")
    e(f"s_lshl_b32 s32, s9, 3\ns_lshl_b32 s33, s3, 1\ns_add_u32 s32, s32, s33\ns_lshl_b32 s32, s32, 7\ns_add_u32 s32, s32, {OF}")
    bstamp(k, "dn1")
    if os.environ.get("ONLY") != "B": poll(k, "v14", "s32", 16)
    else: e("s_waitcnt vmcnt(0)")
    bstamp(k, "of")
    for g in range(5):
        for x in issueX2(g):
            for y in x: e(y)
    for t in range(10):
        g, ks = t >> 1, t & 1
        e(f"s_waitcnt vmcnt({18 - 2*t}) lgkmcnt({6 if t < 9 else 0})")
        mf = mfmas2(t & 1, g, ks)
        for i in range(6): e(mf[i])
        if t + 2 < 10:
            g2, ks2 = (t+2) >> 1, (t+2) & 1
            for x in reads2(t & 1, g2 % 4, ks2): e(x)
    bstamp(k, "mm")
    e("v_add_u32 v14, s14, v2")
    for b in range(2):
        for q in range(10):
            e(f"ds_write_b128 v14, {vr(ACC+48*b+4*q,4)} offset:{(10*b+q)*1024}")
    e("s_mul_i32 s32, s40, 10240\ns_lshl_b32 s33, s41, 12\ns_add_u32 s33, s33, s32\nv_add_u32 v15, s33, v2")
    e("s_lshl_b32 s33, s41, 10\ns_add_u32 s33, s33, s32\ns_add_u32 s33, s33, 8192\nv_add_u32 v16, s33, v2")
    e("s_waitcnt lgkmcnt(0)\ns_barrier")
    R = 128
    for w in range(4):
        for q in range(4):
            e(f"ds_read_b128 {vr(R+20*w+4*q,4)}, v15 offset:{w*SLOT + q*1024}")
        e(f"ds_read_b128 {vr(R+20*w+16,4)}, v16 offset:{w*SLOT}")
    for j in range(10):
        e(f"v_lshlrev_b32 v{ACC+2*j}, 16, v{XS+j}\nv_and_b32 v{ACC+2*j+1}, 0xffff0000, v{XS+j}")
    for w in range(4):
        e(f"s_waitcnt lgkmcnt({15-5*w})")
        for j in range(0, 20, 2):
            e(f"v_pk_add_f32 {vr(ACC+j,2)}, {vr(ACC+j,2)}, {vr(R+20*w+j,2)}")
    for j in range(10):
        e(f"v_cvt_pk_bf16_f32 v{XS+j}, v{ACC+2*j}, v{ACC+2*j+1}")
    bstamp(k, "rd")
    e(f"buffer_store_dwordx4 {vr(XS,4)}, v12, s[36:39], s43 offen")
    e(f"buffer_store_dwordx4 {vr(XS+4,4)}, v12, s[36:39], s43 offen offset:16")
    e(f"buffer_store_dwordx2 {vr(XS+8,2)}, v13, s[36:39], s43 offen")
    stamp_dump(k, 0, 9, "s2", PWS)
    e("s_endpgm")

def roleA(k):
    e = k.e
    KVSLOT = 24576; KV0 = 8192
    WQ = 96; S0, S1 = 32, 48; FB = 64
    Q = [16, 24]; O = [144, 160]; P = [96, 104]; KVB = [112, 128]; KT = 176
    KL = lambda s: KVB[s]; KH = lambda s: KVB[s]+4; V0 = lambda s: KVB[s]+8; V1 = lambda s: KVB[s]+12
    AKL, AKH, AV, BKH, BV = 8, 9, 10, 11, 12
    WV = 16
    stamp(k, 0)
    e("s_bfe_u32 s8, s2, 0x20001\ns_lshl_b32 s8, s8, 3\ns_lshr_b32 s9, s2, 5\ns_add_u32 s8, s8, s9")
    e("s_and_b32 s9, s2, 1\ns_lshl_b32 s9, s9, 2\ns_bfe_u32 s32, s2, 0x20003\ns_add_u32 s9, s9, s32")
    e("s_add_u32 s11, s8, s9\ns_mul_i32 s32, s11, 52\ns_lshr_b32 s32, s32, 8\ns_mul_i32 s32, s32, 5\ns_sub_u32 s11, s11, s32")
    w160_voffs(k, WV, 3)
    e("s_mul_i32 s12, s3, 40960\ns_mul_i32 s32, s9, 160\ns_add_u32 s12, s12, s32")
    e("s_mul_i32 s14, s3, 5120")
    def rot_first(dst, base, step, lim):
        e(f"s_mul_i32 {dst}, s11, {step}\ns_add_u32 {dst}, {dst}, {base}\ns_add_u32 {lim}, {base}, {5*step}")
    def rot_next(dst, base, step, lim):
        e(f"s_add_u32 {dst}, {dst}, {step}\ns_cmp_eq_u32 {dst}, {lim}\ns_cselect_b32 {dst}, {base}, {dst}")
    rot_first("s34", "s12", 4*40960, "s35")
    e("s_waitcnt lgkmcnt(0)")
    srd_from(k, 20, PWQ, NBYTES['wq'])
    def wq_issue(slot):
        for i in range(5):
            e(f"s_add_u32 m0, s14, {slot*20480 + i*1024}")
            e(f"buffer_load_dwordx4 v{WV+i}, s[20:23], s34 offen lds")
        rot_next("s34", "s12", 4*40960, "s35")
    wq_issue(0)
    tag_setup(k)
    srd_from(k, 16, PWS, XN_BYTES, XN_OFF)
    srd_from(k, 24, PWS, KV_BYTES, KV_OFF)
    srd_from(k, 28, PWS, AF_BYTES, AF_OFF)
    e("v_lshrrev_b32 v6, 5, v1")
    e("v_bfe_u32 v7, v1, 2, 2\nv_lshl_add_u32 v7, v6, 2, v7\nv_mul_u32_u24 v4, 320, v7")
    e("v_and_b32 v7, 1, v1\nv_lshlrev_b32 v7, 4, v7")
    e("v_bfe_u32 v8, v1, 1, 1\nv_lshl_add_u32 v7, v8, 3, v7")
    e("v_and_b32 v8, 16, v1\nv_cmp_ne_u32 vcc, 0, v8\nv_mov_b32 v8, 32\nv_cndmask_b32 v7, v7, v8, vcc")
    e("v_add_u32 v4, v4, v7\ns_mul_i32 s32, s3, 40\nv_add_u32 v4, s32, v4")
    e("v_and_b32 v8, 19, v1\nv_cmp_lt_u32 vcc, 16, v8\nv_mov_b32 v8, 0x40000\nv_cndmask_b32 v4, v4, v8, vcc")
    e("v_add_u32 v5, 40960, v4")
    e(f"v_and_b32 v7, 31, v1\nv_lshlrev_b32 v{BKH}, 3, v7\nv_add_u32 v{BKH}, 1024, v{BKH}\nv_lshl_add_u32 v{BKH}, v6, 18, v{BKH}")
    e(f"v_mul_u32_u24 v{BV}, 24, v6\nv_add_u32 v{BV}, v{BV}, v7")
    e("v_cmp_le_u32 vcc, 28, v7\nv_cndmask_b32 v13, 0, 1, vcc\nv_xor_b32 v13, v13, v6\nv_mul_u32_u24 v13, 24, v13\nv_add_u32 v13, 20, v13")
    e("v_and_b32 v15, 27, v7\nv_cmp_ne_u32 vcc, 24, v15\nv_mov_b32 v15, 0x4000\nv_cndmask_b32 v13, v13, v15, vcc")
    e(f"v_cmp_le_u32 vcc, 20, v7\nv_cndmask_b32 v{BV}, v{BV}, v13, vcc")
    e(f"v_lshlrev_b32 v{BV}, 4, v{BV}\nv_add_u32 v{BV}, 1536, v{BV}")
    c0 = KV0 + KVSLOT
    e(f"v_add_u32 v{AKL}, {c0}, v2\nv_add_u32 v{AKH}, {c0}, v{BKH}\nv_add_u32 v{AV}, {c0}, v{BV}")
    e("v_and_b32 v14, 1, v1\nv_lshlrev_b32 v14, 7, v14\nv_lshlrev_b32 v13, 3, v1\nv_add_u32 v3, 49152, v2")
    e("s_lshr_b32 s32, s3, 1\ns_lshl_b32 s33, s8, 1\ns_add_u32 s37, s32, s33\ns_mul_i32 s13, s37, 40960")
    e("s_and_b32 s32, s3, 1\ns_lshl_b32 s32, s32, 12\ns_add_u32 s13, s13, s32")
    e(f"s_lshl_b32 s15, s3, 12\ns_lshl_b32 s39, s37, 8\ns_add_u32 s39, s39, {XNF}\ns_mov_b32 s38, {KVF}\ns_mul_i32 s36, s3, 6144")
    rot_first("s40", "s13", 8192, "s41")
    for r in range(1, 4): wq_issue(r)
    tag_finish(k)
    stamp(k, 1)
    wqr = lambda ks: WQ + 4*ks if ks < 38 else 24 + 4*(ks - 38)
    def wq_read(ks, lks):
        for u in range(2):
            off = lks*2560 + u*160
            ad = "v4"
            if off >= 40960: ad = "v5"; off -= 40960
            e(f"ds_read_b64_tr_b16 {vr(wqr(ks)+2*u,2)}, {ad} offset:{off}")
    e("s_waitcnt vmcnt(15)\ns_barrier")
    for ks in range(8): wq_read(ks, ks)
    e("s_waitcnt lgkmcnt(0)\ns_barrier")
    wq_issue(0)
    poll(k, "v14", "s39", 22, pre_issued="issue")
    e("s_waitcnt vmcnt(6)\ns_barrier")
    stamp(k, 2)
    for ks in range(8, 32): wq_read(ks, ks)
    poll(k, "v14", "s39", 22, pre_issued=True)
    e("s_waitcnt lgkmcnt(0)\ns_barrier")
    stamp(k, 3)
    reg = lambda s: ((s + 2) % 5) * 16384
    def x_list(s):
        L = [[f"s_add_u32 m0, s15, {reg(s)}"]]
        for i in range(4):
            L.append([f"buffer_load_dwordx4 v2, s[16:19], s40 offen offset:{i*1024} {SC} lds"])
        if s < 4: L.append(["s_add_u32 s40, s40, 8192", "s_cmp_eq_u32 s40, s41", "s_cselect_b32 s40, s13, s40"])
        return L
    for s in range(2):
        for g in x_list(s):
            for x in g: e(x)
    for ks in range(32, 40): wq_read(ks, ks - 32)
    stamp(k, 4)
    def kv_issue(chunk_soff, slot_base):
        L = []
        for half in range(2):
            L.append([f"s_add_u32 m0, s36, {slot_base + half*3072}", f"s_add_u32 s32, s36, {chunk_soff + half*3072}"])
            for j in range(3):
                L.append([f"buffer_load_dwordx4 v2, s[24:27], s32 offen offset:{j*1024} {SC} lds"])
        return L
    def xrd(f):
        s, i = f >> 4, f & 15
        off = reg(s) + (i & 1)*8192 + (i >> 1)*1024
        ad = "v2"
        if off >= 49152: ad = "v3"; off -= 49152
        return f"ds_read_b128 {vr(FB+4*(f&7),4)}, {ad} offset:{off}"
    inits = []
    for j in range(8): inits += [(P[1]+j, "0"), (V0(1)+j, "0")]
    for s_ in range(2): inits += [(KH(s_)+2, "0x3f80"), (KH(s_)+3, "0")]
    for j in range(32): inits += [(O[0]+j, "0")]
    for t in range(4): inits += [(KT+8*t+6, "0"), (KT+8*t+7, "0")]
    inits.sort()
    sh = {}
    kv0 = kv_issue(0, KV0 + KVSLOT); kv1 = kv_issue(KVSLOT, KV0 + 2*KVSLOT)
    for i, x in enumerate(kv0): sh.setdefault(41 + i, []).extend(x)
    for i, x in enumerate(kv1): sh.setdefault(57 + i, []).extend(x)
    for i, x in enumerate(x_list(2)): sh.setdefault(0 + i, []).extend(x)
    for i, x in enumerate(x_list(3)): sh.setdefault(8 + i, []).extend(x)
    for i, x in enumerate(x_list(4)): sh.setdefault(14 + i, []).extend(x)
    sh.setdefault(20, []).append(f"buffer_load_dwordx2 v[22:23], v13, s[{FLS}:{FLS+3}], s38 offen {SC}")
    e("s_waitcnt vmcnt(4) lgkmcnt(0)\ns_barrier")
    for f in range(8): e(xrd(f))
    for f in range(80):
        ks = f >> 1; b = f & 1
        if f + 8 < 80 and (f + 8) % 16 == 0:
            s = (f + 8) >> 4
            if s == 3: poll(k, "v13", "s38", 22, nloads=2, pre_issued=True, x2=True)
            elif s < 3: e(f"s_waitcnt vmcnt({4 if s == 1 else 9})")
            e("s_barrier")
        e(f"s_waitcnt lgkmcnt({min(7, 79-f)})")
        acc = vr(S0+16*b, 16)
        e(f"{MF} {acc}, {vr(wqr(ks),4)}, {vr(FB+4*(f&7),4)}, {'0' if ks == 0 else acc}")
        if f + 8 < 80: e(xrd(f + 8))
        for x in sh.get(f, []): e(x)
        n = 0
        while inits and n < 3 and inits[0][0] < WQ + 4*ks:
            r, v = inits.pop(0); e(f"v_mov_b32 v{r}, {v}"); n += 1
    assert not inits
    stamp(k, 5)
    e(f"s_mov_b32 s33, {hex(f32bits(QSCALE))}")
    e("s_waitcnt vmcnt(6)\ns_barrier")
    for t in range(4):
        e(f"ds_read_b128 {vr(KT+8*t,4)}, v{AKL} offset:{t*3072}")
        e(f"ds_read_b64 {vr(KT+8*t+4,2)}, v{AKH} offset:{t*3072}")
    for s in range(2):
        e(f"ds_read_b128 {vr(KL(s),4)}, v{AKL} offset:{s*3072}\nds_read_b64 {vr(KH(s),2)}, v{AKH} offset:{s*3072}")
    e(f"ds_read_b128 {vr(V0(0),4)}, v{AV}\nds_read_b128 {vr(V1(0),4)}, v{AV} offset:768")
    T = list(range(96, 104)) + list(range(240, 244))
    def qepi(b):
        L = []
        for j in range(6): L.append(f"v_cvt_pk_bf16_f32 v{Q[b]+j}, v{S0+16*b+2*j}, v{S0+16*b+2*j+1}")
        for j in range(6): L += [f"v_lshlrev_b32 v{T[2*j]}, 16, v{Q[b]+j}", f"v_and_b32 v{T[2*j+1]}, 0xffff0000, v{Q[b]+j}"]
        for j in range(12): L.append(f"v_mul_f32 v{T[j]}, s33, v{T[j]}")
        for j in range(6): L.append(f"v_cvt_pk_bf16_f32 v{Q[b]+j}, v{T[2*j]}, v{T[2*j+1]}")
        L += [f"v_mov_b32 v{Q[b]+6}, 0", f"v_mov_b32 v{Q[b]+7}, 0"]
        return L
    MX = [13, 14]
    SX = [[64, 80, 208, 224], [32, 48, 64, 80]]
    def mx(b, t):
        S = SX[b][t]
        L = [f"v_max3_f32 v{MX[b]}, v{S}, v{S+1}, v{S+2}", f"v_max_f32 v{MX[b]}, v{MX[b]}, v{S+3}"] if t == 0 else []
        for j in range(4 if t == 0 else 0, 16, 2): L.append(f"v_max3_f32 v{MX[b]}, v{MX[b]}, v{S+j}, v{S+j+1}")
        return L
    def qk(b, t):
        S = SX[b][t]
        return [f"{MF} {vr(S,16)}, {vr(KT+8*t,4)}, {vr(Q[b],4)}, 0", f"{MF} {vr(S,16)}, {vr(KT+8*t+4,4)}, {vr(Q[b]+4,4)}, {vr(S,16)}"]
    def fin(b, offs):
        L = [f"v_mov_b32 v15, v{MX[b]}", f"v_permlane32_swap_b32 v{MX[b]}, v15", f"v_max_f32 v{MX[b]}, v{MX[b]}, v15"]
        if offs: L.append(f"v_add_f32 v{MX[b]}, {hex(f32bits(offs))}, v{MX[b]}")
        L += [f"v_cvt_pk_bf16_f32 v{MX[b]}, -v{MX[b]}, 0", "v_cmp_ne_u32 vcc, 0, v6", f"v_cndmask_b32 v{Q[b]+6}, v{MX[b]}, 0, vcc"]
        return L
    def weave(mfs, vals, per):
        for m in mfs:
            e(m)
            for _ in range(per):
                if vals: e(vals.pop(0))
        for v in vals: e(v)
    for x in qepi(0): e(x)
    e("s_waitcnt lgkmcnt(6)")
    weave([m for t in range(4) for m in qk(0, t)], qepi(1), 5)
    v0 = mx(0, 0) + mx(0, 1)
    weave(qk(1, 0) + qk(1, 1), v0, 4)
    weave(qk(1, 2) + qk(1, 3), mx(0, 2) + mx(0, 3) + fin(0, OFFS), 6)
    for x in mx(1, 0): e(x)
    e("s_waitcnt lgkmcnt(0)")
    weave([f"{MF} {vr(S0,16)}, {vr(KL(0),4)}, {vr(Q[0],4)}, 0", f"{MF} {vr(S0,16)}, {vr(KH(0),4)}, {vr(Q[0]+4,4)}, {vr(S0,16)}"],
          mx(1, 1) + [f"v_mov_b32 v{S1+12+j}, 0" for j in range(4)] + mx(1, 2) + mx(1, 3) + fin(1, OFFS), 6)
    e(f"s_mov_b32 s40, 0\ns_mov_b32 s41, {KV0+2*KVSLOT}\ns_add_u32 s35, s36, {KV0}\ns_mov_b32 s42, s35\ns_add_u32 s43, s36, {2*KVSLOT}\ns_add_u32 s39, s35, {3*KVSLOT}")
    dma = lambda so, off: f"buffer_load_dwordx4 v2, s[24:27], {so} offen offset:{off} {SC} lds"
    extra = {(1, 0): ["s_mov_b32 m0, s42"], (1, 1): ["s_add_u32 s38, s43, 4096"], (1, 3): ["s_waitcnt vmcnt(0)", "s_barrier"],
             (2, 3): [dma("s43", 0), dma("s43", 1024)], (3, 3): [dma("s43", 2048), dma("s43", 3072)],
             (4, 0): ["s_add_u32 m0, s42, 4096"], (4, 3): [dma("s38", 0), dma("s38", 1024)],
             (5, 0): [f"s_add_u32 s43, s43, {KVSLOT}"], (5, 1): ["s_add_u32 s40, s40, 1"], (5, 2): [f"s_add_u32 s37, s42, {KVSLOT}"],
             (6, 0): ["s_cmp_eq_u32 s37, s39"], (6, 1): ["s_cselect_b32 s37, s35, s37"],
             (7, 0): ["s_sub_u32 s41, s42, s36"], (7, 1): ["s_mov_b32 s42, s37"],
             (7, 2): ["s_cmp_lt_u32 s40, 8"]}
    A0 = 208
    e("s_lshl_b32 s32, s9, 2\ns_add_u32 s32, s32, s3\ns_mul_i32 s32, s32, 20")
    e(f"s_mul_i32 s12, s8, {2*136*1024}\ns_add_u32 s13, s12, {136*1024}")
    e(f"s_lshl_b32 s14, s8, 3\ns_add_u32 s14, s14, s9\ns_lshl_b32 s14, s14, 7\ns_add_u32 s14, s14, {OF}")
    stamp(k, 6)
    stamp(k, 7)
    e("s_nop 4")
    Lloop = k.newlabel("att")
    k.label(Lloop, 6)
    def cv(S, Pb, g):
        return [f"v_cvt_pk_bf16_f32 v{Pb+2*g}, v{S+4*g}, v{S+4*g+1}", f"v_cvt_pk_bf16_f32 v{Pb+2*g+1}, v{S+4*g+2}, v{S+4*g+3}"]
    for jj in range(8):
        for blk in range(2):
            Sc, Sn = (S0, S1) if blk == 0 else (S1, S0)
            valu = []
            for g in range(4):
                for j in range(4): valu.append(f"v_exp_f32 v{Sc+4*g+j}, v{Sc+4*g+j}")
                valu += cv(Sn, P[1-blk], 3) if g == 0 else cv(Sc, P[blk], g-1)
            ks = (jj + blk) & 1; vs = (jj - 1 + blk) & 1; nb = 1 - blk
            ko = ((jj + 2) % 8) * 3072; vo = ((jj + 1) % 8) * 3072
            mf = [[f"{MF} {vr(O[nb],16)}, {vr(V0(vs),4)}, {vr(P[nb],4)}, {vr(O[nb],16)}"],
                  [f"{MF} {vr(Sn,16)}, {vr(KL(ks),4)}, {vr(Q[nb],4)}, 0"],
                  [f"{MF} {vr(Sn,16)}, {vr(KH(ks),4)}, {vr(Q[nb]+4,4)}, {vr(Sn,16)}"],
                  [f"{MF} {vr(O[nb],16)}, {vr(V1(vs),4)}, {vr(P[nb]+4,4)}, {vr(O[nb],16)}"]]
            if blk == 0:
                mf[2].append("s_waitcnt lgkmcnt(0)")
                mf[3].append(f"ds_read_b128 {vr(KL(ks),4)}, v{AKL} offset:{ko}")
                mf[3].append(f"ds_read_b64 {vr(KH(ks),2)}, v{AKH} offset:{ko}")
            else:
                mf[3].append(f"ds_read_b128 {vr(V0(1-vs),4)}, v{AV} offset:{vo}")
                mf[3].append(f"ds_read_b128 {vr(V1(1-vs),4)}, v{AV} offset:{vo+768}")
                if jj == 5: valu.append(f"v_add_u32 v{AKL}, s41, v2"); valu.append(f"v_add_u32 v{AKH}, s41, v{BKH}")
                if jj == 6: valu.append(f"v_add_u32 v{AV}, s41, v{BV}")
                for m in range(4): mf[m] += extra.get((jj, m), [])
            for i, v in enumerate(valu):
                for m in range(4):
                    if PATTERN[m] == i:
                        for x in mf[m]: e(x)
                e(v)
    e(f"s_cbranch_scc1 {Lloop}")
    for x in cv(S1, P[1], 3): e(x)
    e(f"{MF} {vr(O[1],16)}, {vr(V0(1),4)}, {vr(P[1],4)}, {vr(O[1],16)}")
    e(f"{MF} {vr(O[1],16)}, {vr(V1(1),4)}, {vr(P[1]+4,4)}, {vr(O[1],16)}")
    stamp(k, 8)
    e("s_mov_b32 s40, 0")
    e("v_and_b32 v7, 31, v1\nv_lshlrev_b32 v7, 4, v7")
    for j in range(3):
        a = A0 + j
        e(f"v_lshl_add_u32 v{a}, v6, 2, s32\nv_add_u32 v{a}, {8*j}, v{a}")
        e(f"v_lshrrev_b32 v{A0+3}, 3, v{a}\nv_lshl_add_u32 v{A0+3}, v{A0+3}, 9, v7")
        e(f"v_and_b32 v{a}, 4, v{a}\nv_lshl_add_u32 v{a}, v{a}, 1, v{A0+3}")
    e(f"v_cmp_ne_u32 vcc, 0, v6\nv_mov_b32 v{A0+3}, 0x7fffffff\nv_cndmask_b32 v{A0+2}, v{A0+2}, v{A0+3}, vcc")
    Lout = k.newlabel("out"); Lslow = k.newlabel("slow"); Lpub = k.newlabel("pub")
    k.label(Lout)
    PK = 224
    for b in range(2):
        e(f"v_rcp_f32 v{A0+4+b}, v{O[b]+12}")
        for j in range(12): e(f"v_mul_f32 v{O[b]+j}, v{O[b]+j}, v{A0+4+b}")
        for j in range(6): e(f"v_cvt_pk_bf16_f32 v{PK+8*b+j}, v{O[b]+2*j}, v{O[b]+2*j+1}")
        for j in range(3):
            e(f"buffer_store_dwordx2 {vr(PK+8*b+2*j,2)}, v{A0+j}, s[28:31], s{12+b} offen {SC}")
    e(f"v_mul_f32 v{A0+6}, 0, v{O[0]+12}\nv_mul_f32 v{A0+7}, 0, v{O[1]+12}")
    for j in range(12):
        for b in range(2): e(f"v_fma_f32 v{A0+6+b}, v{O[b]+j}, 0, v{A0+6+b}")
    e(f"v_cmp_u_f32 vcc, v{A0+6}, v{A0+7}")
    e(f"s_cmp_lg_u32 s40, 0\ns_cbranch_scc1 {Lpub}")
    e(f"s_cmp_lg_u64 vcc, 0\ns_cbranch_scc1 {Lslow}")
    k.label(Lpub)
    e("s_waitcnt vmcnt(0)\ns_barrier")
    setflag(k, "s14", 16, "A")
    Lx = k.newlabel("axit")
    e(f"s_or_b32 s32, s2, s3\ns_cmp_lg_u32 s32, 0\ns_cbranch_scc1 {Lx}")
    e(f"v_lshlrev_b32 v13, 7, v1\ns_mov_b32 s38, {HF}")
    if not os.environ.get("ONLY"): poll(k, "v13", "s38", 16, nloads=8)
    setflag(k, "0", 16)
    if LEAK:
        for i in range(8):
            e(f"s_add_u32 s75, s38, {8192*i}\nbuffer_load_dwordx2 {vr(32+2*i,2)}, v13, s[{FLS}:{FLS+3}], s75 offen offset:8 {SC}")
        e("s_waitcnt vmcnt(0)")
        for i in range(16): e(f"v_subrev_u32 v{32+i}, s86, v{32+i}")
        for i in range(1, 8): e(f"v_min_i32 v32, v32, v{32+2*i}\nv_max_i32 v33, v33, v{33+2*i}")
        e("s_mov_b32 s40, 0x7fffffff\ns_mov_b32 s41, 0x80000000")
        for l in range(64):
            e(f"v_readlane_b32 s42, v32, {l}\nv_readlane_b32 s43, v33, {l}\ns_min_i32 s40, s40, s42\ns_max_i32 s41, s41, s43")
        e(f"s_sub_u32 s41, s41, s40\ns_mul_i32 s41, s41, {int(os.environ.get('LEAKK', 4))}\ns_add_u32 s41, s41, 10000\ns_add_u32 s40, s40, s86")
        Ls = k.newlabel("spin"); k.label(Ls)
        e("s_memrealtime s[42:43]\ns_waitcnt lgkmcnt(0)\ns_sub_u32 s42, s42, s40")
        e(f"s_cmp_lt_u32 s42, s41\ns_cbranch_scc1 {Ls}")
    k.label(Lx)
    stamp_dump(k, 1, 9, "s2", PWS)
    e("s_endpgm")
    k.label(Lslow)
    e("s_waitcnt vmcnt(0) lgkmcnt(0)")
    e(f"s_mov_b32 s40, 1\ns_mov_b32 s41, 0\nv_mov_b32 v{Q[0]+6}, 0\nv_mov_b32 v{Q[1]+6}, 0")
    e(f"v_mov_b32 v{MX[0]}, 0xff800000\nv_mov_b32 v{MX[1]}, 0xff800000")
    def kload():
        e(f"buffer_load_dwordx4 {vr(KL(0),4)}, v2, s[24:27], s41 offen {SC}")
        e(f"buffer_load_dwordx2 {vr(KH(0),2)}, v{BKH}, s[24:27], s41 offen {SC}")
    def qk2():
        for b in range(2):
            S = S0 + 16*b
            e(f"{MF} {vr(S,16)}, {vr(KL(0),4)}, {vr(Q[b],4)}, 0\n{MF} {vr(S,16)}, {vr(KH(0),4)}, {vr(Q[b]+4,4)}, {vr(S,16)}")
    L1 = k.newlabel("sl1"); k.label(L1)
    kload(); e("s_waitcnt vmcnt(0)"); qk2()
    for b in range(2):
        for j in range(0, 16, 2): e(f"v_max3_f32 v{MX[b]}, v{MX[b]}, v{S0+16*b+j}, v{S0+16*b+j+1}")
    e(f"s_add_u32 s41, s41, 3072\ns_cmp_lt_u32 s41, {KV_BYTES}\ns_cbranch_scc1 {L1}")
    for b in range(2):
        for x in fin(b, 0): e(x)
    for j in range(32): e(f"v_mov_b32 v{O[0]+j}, 0")
    e("s_mov_b32 s41, 0")
    L2 = k.newlabel("sl2"); k.label(L2)
    kload()
    e(f"buffer_load_dwordx4 {vr(V0(0),4)}, v{BV}, s[24:27], s41 offen {SC}")
    e(f"buffer_load_dwordx4 {vr(V1(0),4)}, v{BV}, s[24:27], s41 offen offset:768 {SC}")
    e("s_waitcnt vmcnt(0)"); qk2()
    for b in range(2):
        S = S0 + 16*b
        for j in range(16): e(f"v_exp_f32 v{S+j}, v{S+j}")
        for g in range(4):
            for x in cv(S, P[b], g): e(x)
        e(f"{MF} {vr(O[b],16)}, {vr(V0(0),4)}, {vr(P[b],4)}, {vr(O[b],16)}")
        e(f"{MF} {vr(O[b],16)}, {vr(V1(0),4)}, {vr(P[b]+4,4)}, {vr(O[b],16)}")
    e(f"s_add_u32 s41, s41, 3072\ns_cmp_lt_u32 s41, {KV_BYTES}\ns_cbranch_scc1 {L2}")
    e("s_nop 12")
    e(f"s_branch {Lout}")

def gen_mega(name="parallel_sum__grouped_kv_mqa__swiglu_ffn__prompt_kernel"):
    k = Kernel(name); e = k.e
    LA = k.newlabel("roleA"); LB = k.newlabel("roleB")
    if os.environ.get("EARLY0"):
        e("s_memrealtime s[98:99]\ns_waitcnt lgkmcnt(0)\ns_mov_b32 s85, s98")
    e("s_load_dwordx16 s[48:63], s[0:1], 0\ns_load_dwordx8 s[64:71], s[0:1], 64")
    e("v_and_b32 v1, 63, v0\nv_lshrrev_b32 v2, 6, v0\nv_readfirstlane_b32 s3, v2\nv_lshlrev_b32 v2, 4, v1")
    e(f"s_cmp_lt_u32 s2, 256\ns_cbranch_scc1 {LB}\ns_cmp_lt_u32 s2, 512\ns_cbranch_scc1 {LA}\ns_endpgm")
    k.label(LB)
    e("s_setprio 2")
    roleB(k)
    k.label(LA, 6)
    if os.environ.get("ONLY") == "B": e("s_endpgm")
    e("s_sub_u32 s2, s2, 256\ns_setprio 1")
    roleA(k)
    k.label(f"{k.name}_end")
    k.lds = 81920; k.grid = 512; k.block = 256
    return k

if __name__ == "__main__":
    import sys
    from build import emit
    emit([gen_mega()], sys.argv[1] if len(sys.argv) > 1 else "parallel_sum__grouped_kv_mqa__swiglu_ffn__prompt.s")
```

```python
from asmgen import *
from common import KA, NBYTES, f32bits, srd_from, stamp, stamp_dump, STAMPS
import math, os

MF = "v_mfma_f32_32x32x16_bf16"
LOG2E = math.log2(math.e)
QSCALE = (20 ** -0.5) * LOG2E * float(os.environ.get("QEPS", 1.0))
env = lambda n, d: type(d)(os.environ.get(n, d))
OFFS = env('OFFS', 96.0)
PATTERN = [int(x) for x in env('APAT', '2,6,9,13').split(',')]
BST = env("BST", 0); ONLY = env("ONLY", "")
P0B = env("P0B", 14); PKD = env("PKD", 0); ADLY = env("ADLY", 2); KSL = env("KSL", 4); BSL = env("BSL", 8); BP0 = env("BP0", 0); GP0 = env("GP0", 0); GP1 = env("GP1", 2); GSW = env("GSW", -1); CPF = env("CPF", 1); DP = env("DP", 0); AP0 = env("AP0", 2)
STAT = 0x1000; KVF = 0x5000; PKF = 0x800; HF = 0x9000; OF = 0x11000; XNF = 0x19000; FL_BYTES = 0x1D000
KV_OFF = 0x20000;  KV_BYTES = 64*3072
WP_OFF = 0x50000;  WP_BYTES = 8*136*2560
AF_OFF = 0x300000; AF_BYTES = 64*136*1024
XN_OFF = 0xC00000; XN_BYTES = 64*40*1024
PX, PWQ, PWK, PWV, PWO, PWG, PWU, PWD, POUT, PWS = 48, 50, 52, 54, 56, 60, 62, 64, 66, 70
TAG = "s73"; BUD = "s74"; FLS = 44; SC = "sc1"
FL = f"s[{FLS}:{FLS+3}]"
HUGE = "0x7ff00000"

def bstamp(k, name):
    m0 = dict(start=0, xl=1, xs=2, xf=3, p0=4, gu0=5, gu1=6, dn0=7, dn1=8)
    m1 = dict(start=0, p0=1, gu0=2, gu1=3, dn0=4, dn1=5, of=6, mm=7, rd=8)
    m = m1 if BST else m0
    if name in m: stamp(k, m[name])

def emit(k, lst):
    for x in lst:
        if isinstance(x, list): emit(k, x)
        else: k.e(x)

def spin(k, loads, regs, vt, pre_issued=False, slp=1):
    e = k.e
    Lp = k.newlabel("poll"); Ld = k.newlabel("pdone"); Lc = k.newlabel("pchk")
    if pre_issued: e(f"s_branch {Lc}")
    k.label(Lp)
    emit(k, loads)
    k.label(Lc)
    e("s_waitcnt vmcnt(0)")
    e(f"v_xor_b32 v{vt}, {TAG}, v{regs[0]}")
    for r in regs[1:]:
        e(f"v_xor_b32 v{r}, {TAG}, v{r}\nv_or_b32 v{vt}, v{vt}, v{r}")
    e(f"v_cmp_ne_u32 vcc, 0, v{vt}")
    e(f"s_cmp_eq_u64 vcc, 0\ns_cbranch_scc1 {Ld}")
    e(f"s_sub_u32 {BUD}, {BUD}, 1\ns_cbranch_scc1 {Ld}")
    e(f"s_sleep {slp}\ns_branch {Lp}")
    k.label(Ld)

def setflag(k, soffs, vt):
    e = k.e
    L = k.newlabel("nofl")
    e(f"s_cmp_lg_u32 s3, 0\ns_cbranch_scc1 {L}")
    e(f"v_mov_b32 v{vt}, {TAG}\nv_mov_b32 v{vt+1}, 0\ns_mov_b64 exec, 1")
    for so in (soffs if isinstance(soffs, list) else [soffs]):
        e(f"buffer_store_dword v{vt}, v{vt+1}, {FL}, {so} offen {SC}")
    e("s_mov_b64 exec, -1")
    k.label(L)

def tag_setup(k):
    k.e(f"s_load_dword s72, s[{PWS}:{PWS+1}], 0")
    srd_from(k, FLS, PWS, FL_BYTES)
    k.e(f"s_mov_b32 {BUD}, 200000")
def tag_finish(k):
    k.e(f"s_waitcnt lgkmcnt(0)\ns_mul_i32 {TAG}, s72, 1664525\ns_add_u32 {TAG}, {TAG}, 1013904223")

def x_voffs(k, dst, t):
    e = k.e
    e(f"v_lshrrev_b32 v{t}, 3, v1\nv_mul_u32_u24 v{t}, 1280, v{t}")
    e(f"v_and_b32 v{t+1}, 7, v1\nv_lshrrev_b32 v{t+2}, 4, v1\nv_xor_b32 v{t+1}, v{t+1}, v{t+2}")
    e(f"v_lshl_add_u32 v{dst}, v{t+1}, 4, v{t}\nv_xor_b32 v{dst+1}, 64, v{dst}")
def x_raddr(k, dst, t, base):
    e = k.e
    e(f"v_and_b32 v{t}, 31, v1\nv_bfe_u32 v{t+1}, v1, 1, 3\nv_lshrrev_b32 v{t+2}, 5, v1\nv_xor_b32 v{t+1}, v{t+1}, v{t+2}")
    e(f"v_lshlrev_b32 v{t}, 7, v{t}\nv_lshl_add_u32 v{t}, v{t+1}, 4, v{t}")
    for ks in range(4):
        e(f"v_xor_b32 v{t+1}, {ks*32}, v{t}\nv_add_u32 v{dst+ks}, {base}, v{t+1}")

def phase0(k, pre):
    e = k.e
    e("v_and_b32 v3, 15, v1\nv_lshrrev_b32 v4, 4, v1")
    e("s_mul_i32 s12, s4, 20480\ns_mul_i32 s13, s3, 320\ns_add_u32 s12, s12, s13")
    e("v_mul_u32_u24 v5, 1280, v3\nv_lshl_add_u32 v5, v4, 4, v5")
    e("s_mul_i32 s14, s3, 6400\ns_mul_i32 s15, s3, 14336")
    e("s_waitcnt lgkmcnt(0)")
    srd_from(k, 16, PX, NBYTES['x'])
    X = 16
    for i in range(5):
        e(f"buffer_load_dwordx4 {vr(X+4*i,4)}, v5, s[16:19], s12 offen offset:{64*i}")
    tag_setup(k)
    srd_from(k, 20, PWK, NBYTES['wk'])
    srd_from(k, 24, PWV, NBYTES['wv'])
    dm = []
    for m, srd in ((0, 20), (1, 24)):
        for j in range(7):
            g = []
            if j % 4 == 0: g += [f"s_add_u32 m0, s15, {m*7168 + j*1024}", f"s_add_u32 s37, s14, {j*1024}"]
            g.append(f"buffer_load_dwordx4 v2, s[{srd}:{srd+3}], s37 offen offset:{(j%4)*1024} lds")
            dm.append(g)
    emit(k, dm[:P0B]); dm = dm[P0B:]
    srd_from(k, 28, PWS, XN_BYTES, XN_OFF)
    srd_from(k, 32, PWS, KV_BYTES, KV_OFF)
    e("v_mov_b32 v8, 0\nv_mov_b32 v9, 0\nv_mov_b32 v10, 0\nv_mov_b32 v11, 0")
    e("s_mov_b32 s38, 0x3f803f80")
    LST = 57344; RED = LST + 512
    e(f"s_lshl_b32 s39, s3, 7\ns_add_u32 s39, s39, {LST}")
    e("v_lshl_add_u32 v12, v3, 3, s39\nv_lshlrev_b32 v13, 3, v3")
    e("v_lshrrev_b32 v14, 2, v3\nv_lshl_add_u32 v14, v4, 3, v14\nv_mul_u32_u24 v14, 40, v14")
    e("v_and_b32 v15, 3, v1\nv_lshl_add_u32 v14, v15, 3, v14\nv_add_u32 v14, s15, v14")
    e(f"s_lshl_b32 s36, s4, 7\ns_add_u32 s36, s36, {STAT}")
    e("s_lshr_b32 s40, s4, 1\ns_mul_i32 s41, s40, 40960\ns_and_b32 s42, s4, 1")
    e("s_lshl_b32 s43, s42, 8\ns_add_u32 s41, s41, s43\ns_mul_i32 s43, s3, 10240\ns_add_u32 s41, s41, s43")
    e("v_lshlrev_b32 v5, 9, v4\nv_lshl_add_u32 v5, v3, 4, v5")
    tag_finish(k)
    for i in range(5):
        e(f"s_waitcnt vmcnt({4 - i + 14 - len(dm)})")
        for d in range(4*i, 4*i+4):
            a = 8 + (d & 1); q = 10 + (d & 1)
            e(f"v_dot2_f32_bf16 v{a}, v{X+d}, s38, v{a}")
            e(f"v_dot2_f32_bf16 v{q}, v{X+d}, v{X+d}, v{q}")
        emit(k, dm[:2]); dm = dm[2:]
    bstamp(k, "xl")
    e("v_add_f32 v8, v8, v9\nv_add_f32 v9, v10, v11")
    for sw in ("v_permlane32_swap_b32", "v_permlane16_swap_b32"):
        e("v_mov_b32 v10, v8\nv_mov_b32 v11, v9")
        e(f"{sw} v8, v10\n{sw} v9, v11")
        e("v_add_f32 v8, v8, v10\nv_add_f32 v9, v9, v11")
    e("ds_write_b64 v12, v[8:9]")
    U = 96
    for d in range(20):
        e(f"v_lshlrev_b32 v{U+2*d}, 16, v{X+d}\nv_and_b32 v{U+2*d+1}, 0xffff0000, v{X+d}")
        if d == 1:
            e("s_waitcnt lgkmcnt(0)\ns_barrier")
            for w in range(4): e(f"ds_read_b64 {vr(36+2*w,2)}, v13 offset:{LST+128*w}")
    W = 136
    e("s_waitcnt lgkmcnt(0)")
    def wrd(i):
        for tl in range(4):
            m, n0 = tl >> 1, (tl & 1) * 16
            for u in range(2):
                e(f"ds_read_b64_tr_b16 {vr(W+16*i+4*tl+2*u,2)}, v14 offset:{m*7168 + i*1280 + u*160 + n0*2}")
    e("v_add_f32 v8, v36, v38\nv_add_f32 v9, v37, v39\nv_add_f32 v10, v40, v42\nv_add_f32 v11, v41, v43")
    e("v_add_f32 v8, v8, v10\nv_add_f32 v9, v9, v11")
    inv = hex(f32bits(1.0/640))
    e(f"v_mul_f32 v8, {inv}, v8\nv_mul_f32 v9, {inv}, v9")
    e("v_fma_f32 v9, -v8, v8, v9\nv_max_f32 v9, 0, v9")
    e("v_cvt_pk_bf16_f32 v10, v8, v9")
    e("v_lshlrev_b32 v8, 16, v10\nv_and_b32 v9, 0xffff0000, v10")
    e(f"v_add_f32 v9, {hex(f32bits(1e-5))}, v9")
    e("v_cvt_pk_bf16_f32 v9, v9, v9\nv_and_b32 v9, 0xffff0000, v9")
    e("v_sqrt_f32 v9, v9")
    e("v_cvt_pk_bf16_f32 v6, v8, v9")
    e(f"v_mov_b32 v7, {TAG}\nv_and_b32 v9, 0xffff0000, v6")
    e("s_waitcnt vmcnt(0)")
    for i in range(5): wrd(i)
    Lns = k.newlabel("nost")
    e(f"s_cmp_lg_u32 s3, 0\ns_cbranch_scc1 {Lns}")
    e(f"s_mov_b64 exec, 0xffff\nbuffer_store_dwordx2 v[6:7], v13, {FL}, s36 offen {SC}\ns_mov_b64 exec, -1")
    k.label(Lns)
    e("v_rcp_f32 v10, v9")
    for d in range(20):
        u = U + 2*d
        e(f"v_pk_add_f32 {vr(u,2)}, {vr(u,2)}, v[8:9] op_sel_hi:[1,0] neg_lo:[0,1] neg_hi:[0,1]")
    for d in range(20):
        u = U + 2*d
        e(f"v_cvt_pk_bf16_f32 v{X+d}, v{u}, v{u+1}")
    ACC = 44
    e("s_waitcnt lgkmcnt(0)")
    for i in range(5):
        for d in range(4*i, 4*i+4):
            u = U + 2*d
            e(f"v_lshlrev_b32 v{u}, 16, v{X+d}\nv_and_b32 v{u+1}, 0xffff0000, v{X+d}")
        for d in range(4*i, 4*i+4):
            u = U + 2*d
            e(f"v_mul_f32 v{u}, v{u}, v10\nv_mul_f32 v{u+1}, v{u+1}, v10")
        for d in range(4*i, 4*i+4):
            u = U + 2*d
            e(f"v_cvt_pk_bf16_f32 v{X+d}, v{u}, v{u+1}")
        for tl in range(4):
            wf = vr(W+16*i+4*tl, 4); xf = vr(X+4*i, 4); acc = vr(ACC+4*tl, 4)
            a, b = (wf, xf) if tl < 2 else (xf, wf)
            e(f"v_mfma_f32_16x16x32_bf16 {acc}, {a}, {b}, {'0' if i == 0 else acc}")
    bstamp(k, "xs")
    e(f"s_lshl_b32 s39, s3, 12\ns_add_u32 s39, s39, {RED}\nv_add_u32 v12, s39, v2")
    e(f"s_lshl_b32 s39, s3, 10\ns_add_u32 s39, s39, {RED}\nv_add_u32 v6, s39, v2")
    e("s_mul_i32 s39, s40, 3072")
    for tl in range(4):
        e(f"ds_write_b128 v12, {vr(ACC+4*tl,4)} offset:{tl*1024}")
    Lk1, Lv0, Lv1, Lst = (k.newlabel(x) for x in ("k1", "v0", "v1", "st"))
    e("v_lshl_add_u32 v7, s42, 4, v3")
    e("v_and_b32 v15, 1, v4\nv_lshrrev_b32 v11, 1, v4")
    e("s_mov_b64 s[24:25], 0")
    e(f"s_cmp_eq_u32 s3, 1\ns_cbranch_scc1 {Lk1}")
    e(f"s_cmp_eq_u32 s3, 2\ns_cbranch_scc1 {Lv0}")
    e(f"s_cmp_eq_u32 s3, 3\ns_cbranch_scc1 {Lv1}")
    e("v_lshl_add_u32 v12, v11, 5, v7\nv_lshlrev_b32 v12, 4, v12\nv_lshl_add_u32 v12, v15, 3, v12")
    e(f"s_branch {Lst}")
    k.label(Lk1)
    e("v_lshlrev_b32 v12, 3, v7\nv_add_u32 v12, 1024, v12")
    e("v_cmp_ne_u32 vcc, 0, v4\nv_mov_b32 v13, 0x7fffffff\nv_cndmask_b32 v12, v12, v13, vcc")
    e(f"s_branch {Lst}")
    k.label(Lv1)
    e("v_add_u32 v3, 16, v3")
    e("s_mov_b32 s24, 0x00100010\ns_mov_b32 s25, 0x00100010")
    e("v_cmp_lt_u32 vcc, 20, v3\nv_mov_b32 v13, 0x1000000\nv_cndmask_b32 v3, v3, v13, vcc")
    k.label(Lv0)
    e("s_mul_i32 s38, s42, 768\ns_add_u32 s38, s38, 1536")
    e("v_mul_u32_u24 v12, 384, v15\nv_lshl_add_u32 v12, v3, 4, v12\nv_lshl_add_u32 v12, v11, 3, v12\nv_add_u32 v12, s38, v12")
    k.label(Lst)
    e("v_mov_b32 v13, 0x3f803f80")
    e("s_waitcnt lgkmcnt(0)\ns_barrier")
    R = 60
    for w in range(4):
        e(f"ds_read_b128 {vr(R+4*w,4)}, v6 offset:{w*4096}")
    e("s_waitcnt lgkmcnt(0)")
    for j in range(4):
        e(f"v_add_f32 v{R+j}, v{R+j}, v{R+4+j}\nv_add_f32 v{R+8+j}, v{R+8+j}, v{R+12+j}\nv_add_f32 v{R+j}, v{R+j}, v{R+8+j}")
    e(f"v_cvt_pk_bf16_f32 v8, v{R}, v{R+1}\nv_cvt_pk_bf16_f32 v9, v{R+2}, v{R+3}")
    e("v_cndmask_b32 v8, v8, v13, s[24:25]\nv_cndmask_b32 v9, v9, v13, s[24:25]")
    e(f"buffer_store_dwordx2 v[8:9], v12, s[32:35], s39 offen {SC}")
    for i in range(5):
        if i in (2, 4): e("s_add_u32 s41, s41, 4096")
        e(f"buffer_store_dwordx4 {vr(X+4*i,4)}, v5, s[28:31], s41 offen offset:{(i%2)*2048} {SC}")
    bstamp(k, "xf")

def roleB(k):
    e = k.e
    SLOT = 20480
    GW, RA, RB = 216, 221, 224
    ACC = 32; FR = [176, 196]
    Lgu = k.newlabel("gu0"); Lpk = k.newlabel("pk")
    bstamp(k, "start")
    e("s_and_b32 s5, s2, 7\ns_lshr_b32 s6, s2, 3")
    def tile_ids():
        e("s_lshr_b32 s7, s5, 1\ns_lshl_b32 s7, s7, 2\ns_lshr_b32 s8, s6, 3\ns_add_u32 s7, s7, s8")
        e("s_and_b32 s9, s5, 1\ns_lshl_b32 s8, s9, 3\ns_and_b32 s10, s6, 7\ns_add_u32 s8, s8, s10\ns_lshl_b32 s11, s7, 1\ns_add_u32 s9, s9, s11")
    def gu_vsetup(t):
        e("s_and_b32 s11, s3, 2")
        for i in range(3):
            e(f"v_add_u32 v{t}, {64*i}, v1\nv_mul_u32_u24 v{t+1}, 5462, v{t}\nv_lshrrev_b32 v{t+1}, 16, v{t+1}")
            e(f"v_mul_u32_u24 v{t+2}, 12, v{t+1}\nv_sub_u32 v{t+2}, v{t}, v{t+2}\nv_xor_b32 v{t+2}, s11, v{t+2}")
            e(f"v_mul_u32_u24 v{t+1}, 3072, v{t+1}\nv_lshl_add_u32 v{GW+i}, v{t+2}, 4, v{t+1}")
    def gu_vsetup2(t):
        e(f"v_lshrrev_b32 v{t}, 5, v1\nv_bfe_u32 v{t+1}, v1, 2, 2\nv_lshl_add_u32 v{t+1}, v{t}, 3, v{t+1}\nv_mul_u32_u24 v{t+1}, 192, v{t+1}")
        e(f"v_and_b32 v{t+2}, 1, v1\nv_lshl_add_u32 v{t+1}, v{t+2}, 4, v{t+1}\nv_bfe_u32 v{t+2}, v1, 1, 1\nv_lshl_add_u32 v{t+1}, v{t+2}, 3, v{t+1}")
        e(f"v_bfe_u32 v{t+2}, v1, 4, 1\nv_mul_u32_u24 v{t+3}, 6144, v{t+2}\nv_add_u32 v{t+1}, v{t+1}, v{t+3}")
        e("s_lshr_b32 s11, s3, 1\ns_mul_i32 s11, s11, 3")
        for a in range(3):
            e(f"v_xor_b32 v{t+3}, s11, v{t+2}\nv_lshl_add_u32 v{RA+a}, v{t+3}, 5, v{t+1}\ns_add_u32 s11, s11, 1")
        e(f"s_and_b32 s11, s3, 1\ns_lshl_b32 s11, s11, 12\ns_add_u32 s11, s11, 12288\nv_add_u32 v{RB}, s11, v2")
        e(f"v_and_b32 v{RB+1}, 1, v1\nv_lshlrev_b32 v{RB+1}, 7, v{RB+1}")
    def zero_acc():
        for j in range(96): e(f"v_mov_b32 v{ACC+j}, 0")
    def gu_ssetup():
        e("s_lshr_b32 s38, s3, 1\ns_and_b32 s39, s3, 1\ns_mul_i32 s40, s38, 3")
        srd_from(k, 16, PWS, XN_BYTES, XN_OFF)
        e(f"s_cmp_eq_u32 s38, 0\ns_cselect_b32 s20, s{PWG}, s{PWU}\ns_cselect_b32 s21, s{PWG+1}, s{PWU+1}")
        e(f"s_mov_b32 s22, {hex(NBYTES['wg'])}\ns_mov_b32 s23, 0x20000")
        e("s_mul_i32 s12, s39, 49152\ns_mul_i32 s32, s8, 192\ns_add_u32 s12, s12, s32")
        e(f"s_lshl_b32 s32, s7, 2\ns_add_u32 s32, s32, s3\ns_mul_i32 s13, s32, 40960\ns_lshl_b32 s42, s32, 8\ns_add_u32 s42, s42, {XNF}")
        e("s_mul_i32 s14, s3, 3072\ns_lshl_b32 s15, s3, 11\ns_add_u32 s15, s15, 12288")
    def issueW(sl):
        return [[f"s_add_u32 m0, s14, {sl*SLOT}"],
                [f"buffer_load_dwordx4 v{GW}, s[20:23], s12 offen lds", "s_add_u32 m0, m0, 1024"],
                [f"buffer_load_dwordx4 v{GW+1}, s[20:23], s12 offen lds", "s_add_u32 m0, m0, 1024"],
                [f"buffer_load_dwordx4 v{GW+2}, s[20:23], s12 offen lds", f"s_add_u32 s12, s12, {32*3072}"]]
    def issueX(sl):
        return [[f"s_add_u32 m0, s15, {sl*SLOT}"],
                [f"buffer_load_dwordx4 v2, s[16:19], s13 offen {SC} lds"],
                [f"buffer_load_dwordx4 v2, s[16:19], s13 offen offset:1024 {SC} lds", "s_add_u32 s13, s13, 2048"]]
    e(f"s_cmp_ge_u32 s6, 16\ns_cbranch_scc1 {Lpk}")
    e("s_lshl_b32 s4, s5, 4\ns_add_u32 s4, s4, s6")
    def pre():
        tile_ids(); gu_vsetup(232); gu_vsetup2(232)
    phase0(k, pre)
    pre()
    gu_ssetup()
    e(f"s_lshl_b32 s36, s4, 7\ns_add_u32 s36, s36, {KVF}\ns_mov_b32 s11, {HUGE}\ns_mov_b32 s43, {HUGE}")
    e(f"s_add_u32 s35, s36, {XNF - KVF}")
    e("s_waitcnt vmcnt(5)\ns_barrier")
    setflag(k, "s36", 10)
    zero_acc()
    e("s_waitcnt vmcnt(0)\ns_barrier")
    setflag(k, "s35", 10)
    e(f"s_setprio {BP0}")
    for c in range(4): emit(k, issueW(c))
    e(f"s_branch {Lgu}")
    k.label(Lpk)
    e(f"s_setprio {BP0}")
    PKB = 3*SLOT; PD = 176
    if CPF:
        Lc = k.newlabel("nocp"); Lh = k.newlabel("here")
        e(f"s_cmp_lg_u32 s6, 31\ns_cbranch_scc1 {Lc}")
        e("s_getpc_b64 s[34:35]")
        k.label(Lh)
        e(f"s_sub_u32 s34, s34, {Lh}-{k.name}\ns_subb_u32 s35, s35, 0")
        e(f"v_lshlrev_b32 v9, 7, v0\nv_min_u32 v9, {k.name}_end-{k.name}-4, v9")
        e("global_load_dword v31, v9, s[34:35]")
        k.label(Lc)
    e("s_sub_u32 s4, s2, 128\ns_mul_i32 s33, s3, 320")
    for i in range(5):
        e(f"v_add_u32 v13, {64*i}, v1\nv_add_u32 v13, s33, v13\nv_mul_u32_u24 v{19+i}, 52429, v13\nv_lshrrev_b32 v{19+i}, 22, v{19+i}")
        e(f"v_mul_u32_u24 v14, 80, v{19+i}\nv_sub_u32 v14, v13, v14\nv_lshlrev_b32 v{24+i}, 4, v14")
    def pack_issue(first):
        e("s_mul_i32 s32, s4, 241\ns_lshr_b32 s32, s32, 13\ns_mul_i32 s33, s32, 34\ns_sub_u32 s33, s4, s33")
        e("s_mul_i32 s34, s32, 384\ns_lshl_b32 s35, s33, 4\ns_add_u32 s34, s34, s35")
        e("s_mul_i32 s35, s32, 160\ns_mul_i32 s36, s33, 20\ns_add_u32 s36, s36, s35\ns_sub_u32 s36, s36, 480")
        e("s_mul_i32 s37, s33, 80\ns_add_u32 s37, s37, s35\ns_sub_u32 s37, s37, 2544")
        e("s_cmp_ge_u32 s33, 32\ns_cselect_b32 s36, s37, s36\ns_cselect_b32 s41, 16, 0")
        for i in range(5):
            e(f"v_lshrrev_b32 v13, 2, v{19+i}\nv_mul_u32_u24 v13, s41, v13\nv_add_u32 v13, v13, v{19+i}\nv_mul_u32_u24 v13, 1280, v13\nv_add_u32 v{3+i}, v13, v{24+i}")
        if first: e("s_waitcnt lgkmcnt(0)")
        e(f"s_cmp_ge_u32 s33, 24\ns_cselect_b32 s34, s36, s34\ns_cselect_b32 s24, s{PWO}, s{PWD}\ns_cselect_b32 s25, s{PWO+1}, s{PWD+1}")
        e(f"s_cselect_b32 s26, {hex(NBYTES['wo'])}, s26\ns_mov_b32 s27, 0x20000\ns_mul_i32 s34, s34, 1280")
        e(f"s_mul_i32 s35, s3, 5120\ns_add_u32 m0, s35, {PKB}")
        for i in range(5):
            e(f"buffer_load_dwordx4 v{3+i}, s[24:27], s34 offen lds")
            if i < 4: e("s_add_u32 m0, m0, 1024")
    def pack_finish():
        for c in range(2):
            for a in range(3):
                for u in range(2):
                    ad, off = ("v10", a*64) if a < 2 else ("v11", 0)
                    e(f"ds_read_b64_tr_b16 {vr(PD+12*c+4*a+2*u,2)}, {ad} offset:{c*160 + off + u*5120}")
        e(f"s_mul_i32 s34, s3, {2*136*2560}\ns_mul_i32 s35, s4, 2560\ns_add_u32 s34, s34, s35\ns_add_u32 s35, s34, {136*2560}")
        for c in range(2):
            for a in range(3):
                e(f"s_waitcnt lgkmcnt({10 - 6*c - 2*a})")
                e(f"buffer_store_dwordx4 {vr(PD+12*c+4*a,4)}, {'v2' if a < 2 else 'v12'}, s[28:31], s{34+c} offen offset:{a*1024} {SC}")
    e(f"s_mov_b32 s26, {hex(NBYTES['wd'])}")
    if not PKD: pack_issue(True)
    else: e("s_waitcnt lgkmcnt(0)")
    tag_setup(k)
    srd_from(k, 28, PWS, WP_BYTES, WP_OFF)
    e("v_lshrrev_b32 v8, 5, v1\nv_bfe_u32 v9, v1, 2, 2\nv_lshl_add_u32 v9, v8, 3, v9\nv_mul_u32_u24 v9, 1280, v9")
    e(f"s_mul_i32 s32, s3, 320\ns_add_u32 s32, s32, {PKB}\nv_add_u32 v9, s32, v9")
    e("v_and_b32 v16, 1, v1\nv_bfe_u32 v17, v1, 1, 1\nv_bfe_u32 v18, v1, 4, 1")
    e("v_lshl_add_u32 v10, v16, 5, v9\nv_lshl_add_u32 v10, v17, 3, v10\nv_lshl_add_u32 v10, v18, 4, v10")
    e("v_lshl_add_u32 v11, v16, 4, v9\nv_lshl_add_u32 v11, v17, 3, v11\nv_add_u32 v11, 128, v11\nv_lshl_add_u32 v11, v18, 18, v11")
    e("v_and_b32 v12, 15, v1\nv_lshlrev_b32 v12, 4, v12\nv_lshl_add_u32 v12, v8, 8, v12\nv_lshl_add_u32 v12, v18, 30, v12")
    pre()
    zero_acc()
    gu_ssetup()
    e(f"s_lshl_b32 s11, s4, 2\ns_add_u32 s11, s11, {PKF}\ns_mov_b32 s43, {HUGE}")
    tag_finish(k)
    if PKD:
        e(f"s_lshl_b32 s32, s4, 7\ns_add_u32 s32, s32, {(STAT + 4) if PKD == 1 else KVF}\nv_mov_b32 v29, 0")
        spin(k, [f"buffer_load_dword v30, v29, {FL}, s32 offen {SC}"], [30], 29+2, slp=BSL)
        pack_issue(False)
        for c in range(3): emit(k, issueW(c))
        e("s_waitcnt vmcnt(9)\ns_barrier")
    if not PKD: e("s_waitcnt vmcnt(0)\ns_barrier")
    pack_finish()
    L1 = k.newlabel("pk1")
    e(f"s_cmp_ge_u32 s4, 8\ns_cbranch_scc1 {L1}")
    e(f"s_add_u32 s4, s4, 128\ns_add_u32 s43, s11, 512\ns_barrier")
    pack_issue(False)
    e("s_waitcnt vmcnt(0)\ns_barrier")
    pack_finish()
    k.label(L1)
    e("s_barrier")
    for c in range(3 if PKD else 0, 4): emit(k, issueW(c))
    if STAMPS:
        for n in ("xl", "xs", "xf"): bstamp(k, n)
    k.label(Lgu)
    bstamp(k, "p0")
    srd_from(k, 28, PWS, AF_BYTES, AF_OFF)
    spin(k, [f"buffer_load_dword v16, v{RB+1}, {FL}, s42 offen {SC}"], [16], 17, slp=BSL)
    for c in range(4): emit(k, issueX(c))
    def reads(fs, sl, ks):
        L = [f"ds_read_b128 {vr(FR[fs]+12,4)}, v{RB} offset:{sl*SLOT + ks*1024}"]
        for a in range(3):
            for u in range(2):
                L.append(f"ds_read_b64_tr_b16 {vr(FR[fs]+4*a+2*u,2)}, v{RA+a} offset:{sl*SLOT + (16*ks+4*u)*192}")
            if a == 0: L.append(f"ds_read_b128 {vr(FR[fs]+16,4)}, v{RB} offset:{sl*SLOT + 2048 + ks*1024}")
        return L
    def mfmas(fs):
        return [f"{MF} {vr(ACC+16*(2*a+b),16)}, {vr(FR[fs]+4*a,4)}, {vr(FR[fs]+12+4*b,4)}, {vr(ACC+16*(2*a+b),16)}" for a in range(3) for b in range(2)]
    e("s_mov_b32 s42, 0")
    e("s_waitcnt vmcnt(0)\ns_barrier")
    setflag(k, ["s11", "s43"], 10)
    e(f"s_setprio {GP0}")
    bstamp(k, "gu0")
    if ONLY == "A":
        e("s_waitcnt vmcnt(0)"); stamp_dump(k, 0, 6, "s2", PWS); e("s_endpgm")
    emit(k, reads(0, 0, 0))
    L = k.newlabel("gu")
    k.label(L, 6)
    for sl in range(4):
        e("s_waitcnt lgkmcnt(0)")
        rd = reads(1, sl, 1); mf = mfmas(0)
        sh = [rd[0:2], rd[2:4], rd[4:6], rd[6:8], [], []]
        if sl == 0: sh[4] = ["s_cmp_ge_u32 s42, 4", f"s_cselect_b32 s13, {HUGE}, s13"]
        for i in range(6):
            e(mf[i]); emit(k, sh[i])
        if sl == 2 and GSW >= 0:
            Lt = k.newlabel("gsw")
            e(f"s_cmp_lg_u32 s42, {GSW}\ns_cbranch_scc1 {Lt}\ns_setprio {GP1}")
            k.label(Lt)
        e("s_waitcnt vmcnt(10) lgkmcnt(0)\ns_barrier")
        rd = reads(0, (sl+1) % 4, 0); mf = mfmas(1)
        iw = issueW(sl); ix = issueX(sl)
        sh = [rd[0:2] + iw[0], rd[2:4] + iw[1], rd[4:6] + iw[2], rd[6:8] + iw[3] + ix[0], ix[1], ix[2]]
        if sl == 3: sh[5] = sh[5] + ["s_add_u32 s42, s42, 1", "s_cmp_lt_u32 s42, 5"]
        for i in range(6):
            e(mf[i]); emit(k, sh[i])
    e(f"s_cbranch_scc1 {L}")
    e("s_setprio 2")
    e(f"s_mov_b32 s36, {PKF}\nv_min_u32 v4, 33, v1\nv_lshlrev_b32 v4, 4, v4\nv_lshrrev_b32 v8, 5, v1")
    st_loads = [f"buffer_load_dwordx4 v[16:19], v4, {FL}, s36 offen {SC}"]
    emit(k, st_loads)
    e(f"s_mul_i32 s14, s3, {SLOT}")
    srd_from(k, 20, PWS, WP_BYTES, WP_OFF)
    srd_from(k, 16, PX, NBYTES['x'])
    e(f"s_lshl_b32 s12, s10, 2\ns_add_u32 s12, s12, s3\ns_mul_i32 s12, s12, {34*2560}")
    e(f"s_lshl_b32 s32, s7, 1\ns_add_u32 s32, s32, s39\ns_mul_i32 s32, s32, 272\ns_mul_i32 s43, s8, 6\ns_add_u32 s32, s32, s43\ns_add_u32 s32, s32, s40\ns_add_u32 s32, s32, 40\ns_lshl_b32 s32, s32, 10")
    e(f"s_add_u32 s34, s32, {136*1024}\ns_mov_b32 s33, {hex(f32bits(-LOG2E))}")
    e("s_waitcnt lgkmcnt(0)")
    bstamp(k, "gu1")
    def issueW2(sl):
        L = [[f"s_add_u32 m0, s14, {sl*5120}", "s_add_u32 s37, s12, 4096"]]
        for i in range(4): L.append([f"buffer_load_dwordx4 v2, s[20:23], s12 offen offset:{i*1024} {SC} lds"])
        L[4].append("s_add_u32 m0, m0, 4096")
        L.append([f"buffer_load_dwordx4 v2, s[20:23], s37 offen {SC} lds", "s_add_u32 s12, s12, 5120"])
        return L
    T = 176
    for a in range(3):
        for b in range(2):
            g = ACC + 16*(2*a+b); u = g + 8
            for j in range(8): e(f"v_mul_f32 v{T+j}, s33, v{g+j}")
            for j in range(8): e(f"v_exp_f32 v{T+j}, v{T+j}")
            for j in range(8): e(f"v_mul_f32 v{g+j}, v{g+j}, v{u+j}")
            for j in range(8): e(f"v_add_f32 v{T+j}, 1.0, v{T+j}")
            for j in range(8): e(f"v_rcp_f32 v{T+j}, v{T+j}")
            for j in range(8): e(f"v_mul_f32 v{g+j}, v{g+j}, v{T+j}")
            for j in range(4): e(f"v_cvt_pk_bf16_f32 v{u+j}, v{g+2*j}, v{g+2*j+1}")
            e(f"buffer_store_dwordx4 {vr(u,4)}, v2, s[28:31], {'s34' if b else 's32'} offen offset:{a*1024} {SC}")
    wq_ = []
    assert not wq_
    e("v_add_u32 v10, s14, v2\nv_and_b32 v11, 15, v1\nv_lshlrev_b32 v11, 4, v11\nv_lshl_add_u32 v11, v8, 8, v11\nv_bfe_u32 v9, v1, 4, 1")
    e("v_lshl_add_u32 v11, v9, 18, v11\nv_add_u32 v11, s14, v11")
    e(f"s_lshl_b32 s35, s7, 4\ns_add_u32 s36, s35, s8\ns_lshl_b32 s36, s36, 7\ns_add_u32 s36, s36, {HF}")
    e(f"s_mul_i32 s24, s9, {272*1024}\ns_mul_i32 s32, s3, {24*1024}\ns_add_u32 s26, s24, s32\ns_add_u32 s26, s26, {40*1024}\ns_add_u32 s27, s26, {136*1024}")
    e("v_and_b32 v14, 3, v1\nv_lshlrev_b32 v14, 7, v14")
    e(f"s_lshl_b32 s32, s3, 2\ns_add_u32 s32, s32, s35\ns_lshl_b32 s32, s32, 7\ns_add_u32 s32, s32, {HF}")
    e(f"s_mov_b32 s33, s36\ns_mov_b32 s36, {PKF}")
    spin(k, st_loads, [16, 17, 18, 19], 20, pre_issued=True)
    e("s_barrier")
    setflag(k, "s33", 16)
    hl = [f"buffer_load_dword v16, v14, {FL}, s32 offen {SC}"]
    zi = 0
    for sl in range(4):
        for g in issueW2(sl):
            emit(k, g)
            for j in range(4): e(f"v_mov_b32 v{ACC+zi}, 0"); zi += 1
    spin(k, hl, [16], 17)
    XR = 128; FA = [208, 220]
    def issueX2(rs):
        L = []
        for ks in range(2):
            for b in range(2):
                L.append([f"buffer_load_dwordx4 {vr(XR+16*rs+8*ks+4*b,4)}, v2, s[28:31], s{26+b} offen offset:{ks*1024} {SC}"])
        L[3] += ["s_add_u32 s26, s26, 2048", "s_add_u32 s27, s27, 2048"]
        return L
    for g in range(4): emit(k, issueX2(g))
    def reads2(fs, sl, ks):
        return [f"ds_read_b128 {vr(FA[fs]+4*a,4)}, {'v10' if a < 2 else 'v11'} offset:{sl*5120 + ks*2560 + a*1024}" for a in range(3)]
    def mfmas2(fs, rs, ks):
        return [f"{MF} {vr(ACC+16*(3*b+a),16)}, {vr(FA[fs]+4*a,4)}, {vr(XR+16*rs+8*ks+4*b,4)}, {vr(ACC+16*(3*b+a),16)}" for a in range(3) for b in range(2)]
    e(f"s_mov_b32 s42, 0\ns_setprio {DP}")
    emit(k, reads2(0, 0, 0))
    e("s_waitcnt vmcnt(0)")
    bstamp(k, "dn0")
    L = k.newlabel("dn")
    k.label(L, 6)
    for sl in range(4):
        e("s_waitcnt lgkmcnt(0)")
        rd = reads2(1, sl, 1); mf = mfmas2(0, sl, 0)
        sh = [rd[0:1], rd[1:2], rd[2:3], [], [], []]
        if sl == 0: sh[3] = ["s_cmp_eq_u32 s42, 2", f"s_cselect_b32 s26, {HUGE}, s26", f"s_cselect_b32 s27, {HUGE}, s27"]
        for i in range(6):
            e(mf[i]); emit(k, sh[i])
        e("s_waitcnt vmcnt(18) lgkmcnt(0)")
        rd = reads2(0, (sl+1) % 4, 0); mf = mfmas2(1, sl, 1)
        iw = issueW2(sl); ix = issueX2(sl)
        sh = [rd[0:1] + iw[0], rd[1:2] + iw[1], rd[2:3] + iw[2], iw[3] + iw[4], iw[5], ix[0] + ix[1] + ix[2] + ix[3]]
        if sl == 3: sh[5] = sh[5] + ["s_add_u32 s42, s42, 1", "s_cmp_lt_u32 s42, 3"]
        for i in range(6):
            e(mf[i]); emit(k, sh[i])
    e(f"s_cbranch_scc1 {L}")
    e("s_setprio 2")
    emit(k, reads2(1, 0, 1))
    e("s_waitcnt lgkmcnt(0)")
    emit(k, issueW2(0))
    srd_from(k, 36, POUT, NBYTES['out'])
    e("s_lshr_b32 s40, s3, 1\ns_and_b32 s41, s3, 1")
    e("s_lshl_b32 s32, s9, 1\ns_add_u32 s32, s32, s40\ns_mul_i32 s32, s32, 40960\ns_mul_i32 s33, s10, 160\ns_add_u32 s43, s32, s33")
    e("v_and_b32 v16, 31, v1\nv_mul_u32_u24 v16, 1280, v16")
    e("s_lshl_b32 s32, s41, 6\nv_lshl_add_u32 v12, v8, 5, v16\nv_add_u32 v12, s32, v12")
    e("s_lshl_b32 s32, s41, 3\ns_add_u32 s32, s32, 128\nv_lshl_add_u32 v13, v8, 4, v16\nv_add_u32 v13, s32, v13")
    XS = 232
    e(f"buffer_load_dwordx4 {vr(XS,4)}, v12, s[16:19], s43 offen")
    e(f"buffer_load_dwordx4 {vr(XS+4,4)}, v12, s[16:19], s43 offen offset:16")
    e(f"buffer_load_dwordx2 {vr(XS+8,2)}, v13, s[16:19], s43 offen")
    e(f"s_mul_i32 s32, s3, {10*1024}\ns_add_u32 s26, s24, s32\ns_add_u32 s27, s26, {136*1024}")
    e("v_and_b32 v14, 1, v1\nv_lshlrev_b32 v14, 7, v14")
    e(f"s_lshl_b32 s32, s9, 3\ns_lshl_b32 s33, s3, 1\ns_add_u32 s32, s32, s33\ns_lshl_b32 s32, s32, 7\ns_add_u32 s32, s32, {OF}")
    e("s_mul_i32 s34, s40, 10240\ns_lshl_b32 s33, s41, 12\ns_add_u32 s33, s33, s34\nv_add_u32 v15, s33, v2")
    e("s_lshl_b32 s33, s41, 10\ns_add_u32 s33, s33, s34\ns_add_u32 s33, s33, 8192\nv_add_u32 v18, s33, v2")
    bstamp(k, "dn1")
    if ONLY != "B": spin(k, hl, [16], 17)
    else: e("s_waitcnt vmcnt(0)")
    bstamp(k, "of")
    for g in range(5): emit(k, issueX2(g))
    for t in range(10):
        g, ks = t >> 1, t & 1
        e(f"s_waitcnt vmcnt({18 - 2*t}) lgkmcnt({3 if t < 9 else 0})")
        emit(k, mfmas2(t & 1, g, ks))
        if t + 2 < 10: emit(k, reads2(t & 1, ((t+2) >> 1) % 4, (t+2) & 1))
    bstamp(k, "mm")
    for b in range(2):
        for q in range(10):
            e(f"ds_write_b128 v10, {vr(ACC+48*b+4*q,4)} offset:{(10*b+q)*1024}")
    e("s_waitcnt lgkmcnt(0)\ns_barrier")
    R = 128
    for w in range(4):
        for q in range(4):
            e(f"ds_read_b128 {vr(R+20*w+4*q,4)}, v15 offset:{w*SLOT + q*1024}")
        e(f"ds_read_b128 {vr(R+20*w+16,4)}, v18 offset:{w*SLOT}")
    for j in range(10):
        e(f"v_lshlrev_b32 v{ACC+2*j}, 16, v{XS+j}\nv_and_b32 v{ACC+2*j+1}, 0xffff0000, v{XS+j}")
    for w in range(4):
        e(f"s_waitcnt lgkmcnt({15-5*w})")
        for j in range(0, 20, 2):
            e(f"v_pk_add_f32 {vr(ACC+j,2)}, {vr(ACC+j,2)}, {vr(R+20*w+j,2)}")
    for j in range(10):
        e(f"v_cvt_pk_bf16_f32 v{XS+j}, v{ACC+2*j}, v{ACC+2*j+1}")
    bstamp(k, "rd")
    e(f"buffer_store_dwordx4 {vr(XS,4)}, v12, s[36:39], s43 offen")
    e(f"buffer_store_dwordx4 {vr(XS+4,4)}, v12, s[36:39], s43 offen offset:16")
    e(f"buffer_store_dwordx2 {vr(XS+8,2)}, v13, s[36:39], s43 offen")
    stamp_dump(k, 0, 9, "s2", PWS)
    e("s_endpgm")

def w160_voffs(k, dst, t):
    e = k.e
    for i in range(5):
        e(f"v_add_u32 v{t}, {64*i}, v1\nv_mul_u32_u24 v{t+1}, 6554, v{t}\nv_lshrrev_b32 v{t+1}, 16, v{t+1}")
        e(f"v_mul_u32_u24 v{t+2}, 10, v{t+1}\nv_sub_u32 v{t+2}, v{t}, v{t+2}")
        e(f"v_and_b32 v{t}, 24, v{t+1}\nv_bfe_u32 v{t+3}, v{t+1}, 1, 2\nv_add_u32 v{t}, v{t}, v{t+3}\nv_and_b32 v{t+3}, 1, v{t+1}\nv_lshl_add_u32 v{t}, v{t+3}, 2, v{t}")
        e(f"v_mul_u32_u24 v{t}, 1280, v{t}\nv_lshl_add_u32 v{dst+i}, v{t+2}, 4, v{t}")

def roleA(k):
    e = k.e
    KVSLOT = 24576; KV0 = 8192
    QS = 20480; QX = 10240
    S0, S1 = 32, 48; SA = 64
    Q = [16, 24]; O = [144, 160]; P = [96, 104]; KVB = [112, 128]; KT = 176
    KL = lambda s: KVB[s]; KH = lambda s: KVB[s]+4; V0 = lambda s: KVB[s]+8; V1 = lambda s: KVB[s]+12
    AKL, AKH, AV, BKH, BV = 8, 9, 10, 11, 12
    WV = 16; XV = 21; RB = 24; ONES = 28
    FRG = 80
    AO2 = 241; RB2 = 224
    stamp(k, 0)
    e("s_bfe_u32 s8, s2, 0x20001\ns_lshl_b32 s8, s8, 3\ns_lshr_b32 s9, s2, 5\ns_add_u32 s8, s8, s9")
    e("s_and_b32 s9, s2, 1\ns_lshl_b32 s9, s9, 2\ns_bfe_u32 s32, s2, 0x20003\ns_add_u32 s9, s9, s32")
    e("s_add_u32 s11, s8, s9\ns_mul_i32 s11, s11, 3\ns_mul_i32 s32, s11, 205\ns_lshr_b32 s32, s32, 11\ns_mul_i32 s32, s32, 10\ns_sub_u32 s11, s11, s32")
    x_voffs(k, XV, 3)
    w160_voffs(k, WV, 3)
    Lw = k.newlabel("wrole")
    e(f"s_mul_i32 s12, s3, 40960\ns_mul_i32 s32, s9, 160\ns_add_u32 s12, s12, s32\ns_mov_b32 s13, {64*1280}")
    e("s_waitcnt lgkmcnt(0)")
    srd_from(k, 20, PWQ, NBYTES['wq'])
    e(f"s_cmp_lt_u32 s3, 2\ns_cbranch_scc1 {Lw}")
    for i in range(4): e(f"v_add_u32 v{WV+i}, {10240*i}, v{XV+(i&1)}")
    e(f"v_mov_b32 v{WV+4}, {HUGE}")
    e("s_lshl_b32 s33, s8, 1\ns_add_u32 s33, s33, s3\ns_sub_u32 s33, s33, 2\ns_mul_i32 s12, s33, 40960\ns_mov_b32 s13, 128")
    srd_from(k, 20, PX, NBYTES['x'])
    k.label(Lw)
    e("s_mul_i32 s34, s11, s13\ns_add_u32 s34, s34, s12\ns_mul_i32 s35, s13, 10\ns_add_u32 s35, s35, s12\ns_mul_i32 s14, s3, 5120")
    def st_issue(slot):
        L = [[f"s_add_u32 m0, s14, {slot*QS}"]]
        for i in range(5):
            g = [f"buffer_load_dwordx4 v{WV+i}, s[20:23], s34 offen lds"]
            if i < 4: g += ["s_add_u32 m0, m0, 1024"]
            else: g += ["s_add_u32 s34, s34, s13", "s_cmp_eq_u32 s34, s35", "s_cselect_b32 s34, s12, s34"]
            L.append(g)
        return L
    if not ADLY: emit(k, st_issue(0)); emit(k, st_issue(1))
    tag_setup(k)
    srd_from(k, 24, PWS, KV_BYTES, KV_OFF)
    srd_from(k, 28, PWS, AF_BYTES, AF_OFF)
    e("v_lshrrev_b32 v6, 5, v1")
    e("v_bfe_u32 v7, v1, 2, 2\nv_lshl_add_u32 v7, v6, 2, v7\nv_mul_u32_u24 v4, 320, v7")
    e("v_and_b32 v7, 1, v1\nv_lshlrev_b32 v7, 4, v7")
    e("v_bfe_u32 v8, v1, 1, 1\nv_lshl_add_u32 v7, v8, 3, v7")
    e("v_and_b32 v8, 16, v1\nv_cmp_ne_u32 vcc, 0, v8\nv_mov_b32 v8, 32\nv_cndmask_b32 v7, v7, v8, vcc")
    e("v_add_u32 v4, v4, v7\ns_mul_i32 s32, s3, 40\nv_add_u32 v4, s32, v4")
    e("v_and_b32 v8, 19, v1\nv_cmp_lt_u32 vcc, 16, v8\nv_mov_b32 v8, 0x40000\nv_cndmask_b32 v4, v4, v8, vcc")
    e("v_add_u32 v5, 40960, v4")
    x_raddr(k, RB, 7, str(QX))
    if not ADLY: emit(k, st_issue(2))
    for j in range(4): e(f"v_mov_b32 v{ONES+j}, 0x3f803f80")
    e(f"v_and_b32 v7, 31, v1\nv_lshlrev_b32 v{BKH}, 3, v7\nv_add_u32 v{BKH}, 1024, v{BKH}\nv_lshl_add_u32 v{BKH}, v6, 18, v{BKH}")
    e("v_and_b32 v13, 19, v7\nv_bfe_u32 v14, v7, 2, 1\nv_lshl_add_u32 v13, v14, 3, v13\nv_bfe_u32 v14, v7, 3, 1\nv_lshl_add_u32 v13, v14, 2, v13")
    e(f"v_mul_u32_u24 v{BV}, 24, v6\nv_add_u32 v{BV}, v{BV}, v13")
    e("v_cmp_le_u32 vcc, 28, v7\nv_cndmask_b32 v13, 0, 1, vcc\nv_xor_b32 v13, v13, v6\nv_mul_u32_u24 v13, 24, v13\nv_add_u32 v13, 20, v13")
    e("v_and_b32 v15, 27, v7\nv_cmp_ne_u32 vcc, 24, v15\nv_mov_b32 v15, 0x4000\nv_cndmask_b32 v13, v13, v15, vcc")
    e(f"v_cmp_le_u32 vcc, 20, v7\nv_cndmask_b32 v{BV}, v{BV}, v13, vcc")
    e(f"v_lshlrev_b32 v{BV}, 4, v{BV}\nv_add_u32 v{BV}, 1536, v{BV}")
    c0 = KV0 + 2*KVSLOT
    e(f"v_add_u32 v{AKL}, {c0}, v2\nv_add_u32 v{AKH}, {c0}, v{BKH}\nv_add_u32 v{AV}, {c0}, v{BV}")
    e(f"s_lshr_b32 s32, s3, 1\ns_lshl_b32 s32, s32, 9\ns_and_b32 s33, s3, 1\ns_lshl_b32 s33, s33, 3\ns_add_u32 s32, s32, s33")
    e(f"v_lshl_add_u32 v{AO2}, v7, 4, s32\nv_lshl_add_u32 v{AO2}, v6, 30, v{AO2}")
    e("v_lshlrev_b32 v13, 7, v7\nv_lshlrev_b32 v14, 3, v7")
    e(f"s_lshl_b32 s39, s8, 9\ns_add_u32 s39, s39, {STAT}\ns_lshl_b32 s38, s3, 12\ns_add_u32 s38, s38, {KVF}\ns_mul_i32 s36, s3, 6144")
    for t in range(4): e(f"v_mov_b32 v{KT+8*t+6}, 0\nv_mov_b32 v{KT+8*t+7}, 0")
    for j in range(4): e(f"v_add_u32 v{RB2+j}, 40960, v{RB+j}")
    if ADLY == 2: tag_finish(k)
    if ADLY:
        for sl in range(3): emit(k, st_issue(sl))
    emit(k, st_issue(3))
    if ADLY != 2: tag_finish(k)
    stamp(k, 1)
    def kv_issue(chunk_soff, slot_base):
        L = []
        for half in range(2):
            L.append([f"s_add_u32 m0, s36, {slot_base + half*3072}", f"s_add_u32 s32, s36, {chunk_soff + half*3072}"])
            for j in range(3):
                L.append([f"buffer_load_dwordx4 v2, s[24:27], s32 offen offset:{j*1024} {SC} lds"])
        return L
    PL = 232
    kv_poll = [f"buffer_load_dword v{PL}, v13, {FL}, s38 offen {SC}"]
    pl_loads = [f"buffer_load_dwordx2 {vr(PL+2,2)}, v14, {FL}, s39 offen {SC}", f"buffer_load_dwordx2 {vr(PL+4,2)}, v14, {FL}, s39 offen offset:256 {SC}"]
    inits = []
    for j in range(8): inits += [(P[1]+j, "0"), (V0(1)+j, "0")]
    for s_ in range(2): inits += [(KH(s_)+2, "0x3f80"), (KH(s_)+3, "0")]
    for j in range(32): inits += [(O[0]+j, "0")]
    inits.sort()
    def hreads(h):
        sl = h % 4; F = FRG + 48*(h & 1); L = []
        so = (sl & 1) * QS; ta = "v5" if sl >= 2 else "v4"; rb = RB2 if sl >= 2 else RB
        for ks in range(4):
            for u in range(2): L.append(f"ds_read_b64_tr_b16 {vr(F+12*ks+2*u,2)}, {ta} offset:{so + ks*2560 + u*160}")
            for b in range(2): L.append(f"ds_read_b128 {vr(F+12*ks+4+4*b,4)}, v{rb+ks} offset:{so + b*5120}")
        return L
    e("s_waitcnt vmcnt(15)\ns_barrier")
    stamp(k, 2)
    emit(k, hreads(0))
    for h in range(10):
        F = FRG + 48*(h & 1)
        if h < 9:
            n = 10 if h < 7 else {7: 5, 8: 0}[h]
            e(f"s_waitcnt vmcnt({n}) lgkmcnt(0)")
        else:
            e("s_waitcnt lgkmcnt(0)")
        if h < 9: e("s_barrier")
        rd = hreads(h+1) if h < 9 else []
        dm = st_issue(h % 4) if h < 6 else []
        if h == 8: dm = [pl_loads]
        if h == 9: dm = [kv_poll]
        i = 0
        for ks in range(4):
            first = (h == 0 and ks == 0)
            for acc, bop in ((S0, F+12*ks+4), (S1, F+12*ks+8), (SA, ONES)):
                e(f"{MF} {vr(acc,16)}, {vr(F+12*ks,4)}, {vr(bop,4)}, {'0' if first else vr(acc,16)}")
                emit(k, rd[:2]); rd = rd[2:]
                if dm and (i >= 3 or h == 9): emit(k, dm.pop(0))
                if h == 9:
                    m = 0
                    while inits and m < 3 and inits[0][0] < F + 12*ks:
                        r, v = inits.pop(0); e(f"v_mov_b32 v{r}, {v}"); m += 1
                i += 1
        emit(k, dm)
    stamp(k, 3)
    for r, v in inits: e(f"v_mov_b32 v{r}, {v}")
    spin(k, pl_loads, [PL+3, PL+5], 15, pre_issued=True)
    for b in range(2):
        st = PL + 2 + 2*b
        e(f"v_lshlrev_b32 v{238+b}, 16, v{st}\nv_xor_b32 v{238+b}, 0x80000000, v{238+b}\nv_and_b32 v{st}, 0xffff0000, v{st}")
        e(f"v_rcp_f32 v{st}, v{st}\nv_mul_f32 v{st}, {hex(f32bits(QSCALE))}, v{st}")
    def qepi(b):
        L = []; a = S0 + 16*b
        for j in range(12): L.append(f"v_fmac_f32 v{a+j}, v{238+b}, v{SA+j}")
        for j in range(12): L.append(f"v_mul_f32 v{a+j}, v{PL+2+2*b}, v{a+j}")
        for j in range(6): L.append(f"v_cvt_pk_bf16_f32 v{Q[b]+j}, v{a+2*j}, v{a+2*j+1}")
        L += [f"v_mov_b32 v{Q[b]+6}, 0", f"v_mov_b32 v{Q[b]+7}, 0"]
        return L
    MX = [3, 5]
    sxr = lambda b, t: [[80, 32, 80, 32], [208, 64, 208, 64]][b][t]
    def mx(b, t):
        S = sxr(b, t)
        L = [f"v_max3_f32 v{MX[b]}, v{S}, v{S+1}, v{S+2}", f"v_max_f32 v{MX[b]}, v{MX[b]}, v{S+3}"] if t == 0 else []
        for j in range(4 if t == 0 else 0, 16, 2): L.append(f"v_max3_f32 v{MX[b]}, v{MX[b]}, v{S+j}, v{S+j+1}")
        return L
    def qk(b, t):
        S = sxr(b, t)
        return [f"{MF} {vr(S,16)}, {vr(KT+8*t,4)}, {vr(Q[b],4)}, 0", f"{MF} {vr(S,16)}, {vr(KT+8*t+4,4)}, {vr(Q[b]+4,4)}, {vr(S,16)}"]
    def fin(b, offs):
        L = [f"v_mov_b32 v15, v{MX[b]}", f"v_permlane32_swap_b32 v{MX[b]}, v15", f"v_max_f32 v{MX[b]}, v{MX[b]}, v15"]
        if offs: L.append(f"v_add_f32 v{MX[b]}, {hex(f32bits(offs))}, v{MX[b]}")
        L += [f"v_cvt_pk_bf16_f32 v{MX[b]}, -v{MX[b]}, 0", "v_cmp_ne_u32 vcc, 0, v6", f"v_cndmask_b32 v{Q[b]+6}, v{MX[b]}, 0, vcc"]
        return L
    def weave(mfs, vals, per):
        for m in mfs:
            e(m)
            for _ in range(per):
                if vals: e(vals.pop(0))
        for v in vals: e(v)
    emit(k, qepi(0)); emit(k, qepi(1))
    e(f"s_mov_b32 s40, 0\ns_mov_b32 s41, {KV0}\ns_add_u32 s35, s36, {KV0}\ns_add_u32 s42, s35, {KVSLOT}\ns_add_u32 s43, s36, {2*KVSLOT}\ns_add_u32 s39, s35, {3*KVSLOT}")
    e(f"s_lshr_b32 s32, s9, 1\ns_mul_i32 s32, s32, 10\ns_mul_i32 s33, s8, 272\ns_add_u32 s32, s32, s33\ns_and_b32 s33, s9, 1")
    e("s_add_u32 s16, s32, s33\ns_add_u32 s16, s16, 8\ns_lshl_b32 s16, s16, 10")
    e("s_lshl_b32 s33, s33, 2\ns_add_u32 s12, s32, s33\ns_add_u32 s12, s12, s3\ns_lshl_b32 s12, s12, 10")
    e(f"s_add_u32 s13, s12, {136*1024}\ns_add_u32 s17, s16, {136*1024}")
    e(f"s_lshl_b32 s14, s8, 3\ns_add_u32 s14, s14, s9\ns_lshl_b32 s14, s14, 7\ns_add_u32 s14, s14, {OF}")
    for j in range(4): e(f"v_mov_b32 v{S1+12+j}, 0")
    stamp(k, 4)
    spin(k, kv_poll, [PL], 15, pre_issued=True, slp=KSL)
    e("s_barrier")
    stamp(k, 5)
    e("s_mov_b32 s33, 6144")
    for t in range(4):
        so, off = ("0", t*3072) if t < 2 else ("s33", (t-2)*3072)
        e(f"buffer_load_dwordx4 {vr(KT+8*t,4)}, v2, s[24:27], {so} offen offset:{off} {SC}")
        e(f"buffer_load_dwordx2 {vr(KT+8*t+4,2)}, v{BKH}, s[24:27], {so} offen offset:{off} {SC}")
    emit(k, kv_issue(0, KV0 + 2*KVSLOT))
    kv1 = kv_issue(KVSLOT, KV0)
    e("s_waitcnt vmcnt(12)")
    weave(qk(0, 0) + qk(1, 0), [], 0)
    e("s_waitcnt vmcnt(10)")
    weave(qk(0, 1) + qk(1, 1), mx(0, 0) + mx(1, 0), 4)
    e("s_waitcnt vmcnt(8)")
    weave(qk(0, 2) + qk(1, 2), mx(0, 1) + mx(1, 1), 4)
    e("s_waitcnt vmcnt(6)")
    weave(qk(0, 3) + qk(1, 3), mx(0, 2) + mx(1, 2), 4)
    e("s_waitcnt vmcnt(0)\ns_barrier")
    for s in range(2):
        e(f"ds_read_b128 {vr(KL(s),4)}, v{AKL} offset:{s*3072}\nds_read_b64 {vr(KH(s),2)}, v{AKH} offset:{s*3072}")
    e(f"ds_read_b128 {vr(V0(0),4)}, v{AV}\nds_read_b128 {vr(V1(0),4)}, v{AV} offset:768")
    emit(k, mx(0, 3) + fin(0, OFFS))
    e("s_waitcnt lgkmcnt(0)")
    weave([f"{MF} {vr(S0,16)}, {vr(KL(0),4)}, {vr(Q[0],4)}, 0", f"{MF} {vr(S0,16)}, {vr(KH(0),4)}, {vr(Q[0]+4,4)}, {vr(S0,16)}"],
          mx(1, 3) + fin(1, OFFS), 6)
    emit(k, kv1)
    dma = lambda so, off: f"buffer_load_dwordx4 v2, s[24:27], {so} offen offset:{off} {SC} lds"
    extra = {(1, 0): ["s_mov_b32 m0, s42"], (1, 1): ["s_add_u32 s38, s43, 4096"], (1, 3): ["s_waitcnt vmcnt(0)", "s_barrier"],
             (2, 3): [dma("s43", 0), dma("s43", 1024)], (3, 3): [dma("s43", 2048), dma("s43", 3072)],
             (4, 0): ["s_add_u32 m0, s42, 4096"], (4, 3): [dma("s38", 0), dma("s38", 1024)],
             (5, 0): [f"s_add_u32 s43, s43, {KVSLOT}"], (5, 1): ["s_add_u32 s40, s40, 1"], (5, 2): [f"s_add_u32 s37, s42, {KVSLOT}"],
             (6, 0): ["s_cmp_eq_u32 s37, s39"], (6, 1): ["s_cselect_b32 s37, s35, s37"],
             (7, 0): ["s_sub_u32 s41, s42, s36"], (7, 1): ["s_mov_b32 s42, s37"],
             (7, 2): ["s_cmp_lt_u32 s40, 8"]}
    e("s_setprio 1")
    stamp(k, 6)
    stamp(k, 7)
    Lloop = k.newlabel("att")
    k.label(Lloop, 6)
    def cv(S, Pb, g):
        return [f"v_cvt_pk_bf16_f32 v{Pb+2*g}, v{S+4*g}, v{S+4*g+1}", f"v_cvt_pk_bf16_f32 v{Pb+2*g+1}, v{S+4*g+2}, v{S+4*g+3}"]
    for jj in range(8):
        for blk in range(2):
            Sc, Sn = (S0, S1) if blk == 0 else (S1, S0)
            valu = []
            for g in range(4):
                for j in range(4): valu.append(f"v_exp_f32 v{Sc+4*g+j}, v{Sc+4*g+j}")
                valu += cv(Sn, P[1-blk], 3) if g == 0 else cv(Sc, P[blk], g-1)
            ks = (jj + blk) & 1; vs = (jj - 1 + blk) & 1; nb = 1 - blk
            ko = ((jj + 2) % 8) * 3072; vo = ((jj + 1) % 8) * 3072
            mf = [[f"{MF} {vr(O[nb],16)}, {vr(V0(vs),4)}, {vr(P[nb],4)}, {vr(O[nb],16)}"],
                  [f"{MF} {vr(Sn,16)}, {vr(KL(ks),4)}, {vr(Q[nb],4)}, 0"],
                  [f"{MF} {vr(Sn,16)}, {vr(KH(ks),4)}, {vr(Q[nb]+4,4)}, {vr(Sn,16)}"],
                  [f"{MF} {vr(O[nb],16)}, {vr(V1(vs),4)}, {vr(P[nb]+4,4)}, {vr(O[nb],16)}"]]
            if blk == 0:
                mf[2].append("s_waitcnt lgkmcnt(0)")
                mf[3].append(f"ds_read_b128 {vr(KL(ks),4)}, v{AKL} offset:{ko}")
                mf[3].append(f"ds_read_b64 {vr(KH(ks),2)}, v{AKH} offset:{ko}")
            else:
                mf[3].append(f"ds_read_b128 {vr(V0(1-vs),4)}, v{AV} offset:{vo}")
                mf[3].append(f"ds_read_b128 {vr(V1(1-vs),4)}, v{AV} offset:{vo+768}")
                if jj == 5: valu.append(f"v_add_u32 v{AKL}, s41, v2"); valu.append(f"v_add_u32 v{AKH}, s41, v{BKH}")
                if jj == 6: valu.append(f"v_add_u32 v{AV}, s41, v{BV}")
                for m in range(4): mf[m] += extra.get((jj, m), [])
            for i, v in enumerate(valu):
                for m in range(4):
                    if PATTERN[m] == i: emit(k, mf[m])
                e(v)
    e(f"s_cbranch_scc1 {Lloop}")
    emit(k, cv(S1, P[1], 3))
    e(f"{MF} {vr(O[1],16)}, {vr(V0(1),4)}, {vr(P[1],4)}, {vr(O[1],16)}")
    e(f"{MF} {vr(O[1],16)}, {vr(V1(1),4)}, {vr(P[1]+4,4)}, {vr(O[1],16)}")
    stamp(k, 8)
    e("s_mov_b32 s40, 0\ns_setprio 3")
    Lout = k.newlabel("out"); Lslow = k.newlabel("slow"); Lpub = k.newlabel("pub")
    k.label(Lout)
    PK = 224; A0 = 208
    for b in range(2):
        e(f"v_rcp_f32 v{A0+b}, v{O[b]+12}")
        for j in range(12): e(f"v_mul_f32 v{O[b]+j}, v{O[b]+j}, v{A0+b}")
        for j in range(6): e(f"v_cvt_pk_bf16_f32 v{PK+8*b+j}, v{O[b]+2*j}, v{O[b]+2*j+1}")
        e(f"buffer_store_dwordx4 {vr(PK+8*b,4)}, v2, s[28:31], s{12+b} offen {SC}")
        e(f"buffer_store_dwordx2 {vr(PK+8*b+4,2)}, v{AO2}, s[28:31], s{16+b} offen {SC}")
    e(f"v_mul_f32 v{A0+2}, 0, v{O[0]+12}\nv_mul_f32 v{A0+3}, 0, v{O[1]+12}")
    for j in range(12):
        for b in range(2): e(f"v_fma_f32 v{A0+2+b}, v{O[b]+j}, 0, v{A0+2+b}")
    e(f"v_cmp_u_f32 vcc, v{A0+2}, v{A0+3}")
    e(f"s_cmp_lg_u32 s40, 0\ns_cbranch_scc1 {Lpub}")
    e(f"s_cmp_lg_u64 vcc, 0\ns_cbranch_scc1 {Lslow}")
    k.label(Lpub)
    e("s_waitcnt vmcnt(0)\ns_barrier")
    setflag(k, "s14", 16)
    Lx = k.newlabel("axit")
    e(f"s_or_b32 s32, s2, s3\ns_cmp_lg_u32 s32, 0\ns_cbranch_scc1 {Lx}")
    e(f"v_lshlrev_b32 v13, 7, v1")
    ld = []
    for i in range(8): ld += [f"s_mov_b32 s38, {HF + 8192*i}", f"buffer_load_dword v{16+i}, v13, {FL}, s38 offen {SC}"]
    if not ONLY: spin(k, ld, list(range(16, 24)), 24)
    setflag(k, "0", 16)
    k.label(Lx)
    stamp_dump(k, 1, 9, "s2", PWS)
    e("s_endpgm")
    k.label(Lslow)
    e("s_waitcnt vmcnt(0) lgkmcnt(0)")
    e(f"s_mov_b32 s40, 1\ns_mov_b32 s41, 0\nv_mov_b32 v{Q[0]+6}, 0\nv_mov_b32 v{Q[1]+6}, 0")
    e(f"v_mov_b32 v{MX[0]}, 0xff800000\nv_mov_b32 v{MX[1]}, 0xff800000")
    def kload():
        e(f"buffer_load_dwordx4 {vr(KL(0),4)}, v2, s[24:27], s41 offen {SC}")
        e(f"buffer_load_dwordx2 {vr(KH(0),2)}, v{BKH}, s[24:27], s41 offen {SC}")
    def qk2():
        for b in range(2):
            S = S0 + 16*b
            e(f"{MF} {vr(S,16)}, {vr(KL(0),4)}, {vr(Q[b],4)}, 0\n{MF} {vr(S,16)}, {vr(KH(0),4)}, {vr(Q[b]+4,4)}, {vr(S,16)}")
    L1 = k.newlabel("sl1"); k.label(L1)
    kload(); e("s_waitcnt vmcnt(0)"); qk2()
    for b in range(2):
        for j in range(0, 16, 2): e(f"v_max3_f32 v{MX[b]}, v{MX[b]}, v{S0+16*b+j}, v{S0+16*b+j+1}")
    e(f"s_add_u32 s41, s41, 3072\ns_cmp_lt_u32 s41, {KV_BYTES}\ns_cbranch_scc1 {L1}")
    for b in range(2): emit(k, fin(b, 0))
    for j in range(32): e(f"v_mov_b32 v{O[0]+j}, 0")
    e("s_mov_b32 s41, 0")
    L2 = k.newlabel("sl2"); k.label(L2)
    kload()
    e(f"buffer_load_dwordx4 {vr(V0(0),4)}, v{BV}, s[24:27], s41 offen {SC}")
    e(f"buffer_load_dwordx4 {vr(V1(0),4)}, v{BV}, s[24:27], s41 offen offset:768 {SC}")
    e("s_waitcnt vmcnt(0)"); qk2()
    for b in range(2):
        S = S0 + 16*b
        for j in range(16): e(f"v_exp_f32 v{S+j}, v{S+j}")
        for g in range(4): emit(k, cv(S, P[b], g))
        e(f"{MF} {vr(O[b],16)}, {vr(V0(0),4)}, {vr(P[b],4)}, {vr(O[b],16)}")
        e(f"{MF} {vr(O[b],16)}, {vr(V1(0),4)}, {vr(P[b]+4,4)}, {vr(O[b],16)}")
    e(f"s_add_u32 s41, s41, 3072\ns_cmp_lt_u32 s41, {KV_BYTES}\ns_cbranch_scc1 {L2}")
    e("s_nop 12")
    e(f"s_branch {Lout}")

def gen_mega(name="parallel_sum__grouped_kv_mqa__swiglu_ffn__prompt_kernel"):
    k = Kernel(name); e = k.e
    LA = k.newlabel("roleA"); LB = k.newlabel("roleB")
    e("s_load_dwordx16 s[48:63], s[0:1], 0\ns_load_dwordx8 s[64:71], s[0:1], 64")
    e("v_and_b32 v1, 63, v0\nv_lshrrev_b32 v2, 6, v0\nv_readfirstlane_b32 s3, v2\nv_lshlrev_b32 v2, 4, v1")
    e(f"s_cmp_lt_u32 s2, 256\ns_cbranch_scc1 {LB}\ns_cmp_lt_u32 s2, 512\ns_cbranch_scc1 {LA}\ns_endpgm")
    k.label(LB)
    e("s_setprio 3")
    roleB(k)
    k.label(LA, 6)
    if ONLY == "B": e("s_endpgm")
    e(f"s_sub_u32 s2, s2, 256\ns_setprio {AP0}")
    roleA(k)
    k.label(f"{k.name}_end")
    k.lds = 81920; k.grid = 512; k.block = 256
    return k

if __name__ == "__main__":
    import sys
    from build import emit as emit_file
    emit_file([gen_mega()], sys.argv[1] if len(sys.argv) > 1 else "parallel_sum__grouped_kv_mqa__swiglu_ffn__prompt.s")
```

```python
from asmgen import *
from common import KA, NBYTES, f32bits, srd_from, stamp, stamp_dump, STAMPS
import math, os

MF = "v_mfma_f32_32x32x16_bf16"
LOG2E = math.log2(math.e)
QSCALE = (20 ** -0.5) * LOG2E * float(os.environ.get("QEPS", 1.0))
env = lambda n, d: type(d)(os.environ.get(n, d))
OFFS = env('OFFS', 96.0)
PATTERN = [int(x) for x in env('APAT', '2,6,9,13').split(',')]
BST = env("BST", 0); ONLY = env("ONLY", "")
P0B = env("P0B", 14); PKD = env("PKD", 0); ADLY = env("ADLY", 2); E64 = env("E64", ""); KSL = env("KSL", 4); BSL = env("BSL", 8); BP0 = env("BP0", 0); GP0 = env("GP0", 0); GP1 = env("GP1", 2); GSW = env("GSW", -1); CPF = env("CPF", 1); DP = env("DP", 0); AP0 = env("AP0", 2)
STAT = 0x1000; KVF = 0x5000; PKF = 0x800; HF = 0x9000; OF = 0x11000; XNF = 0x19000; FL_BYTES = 0x1D000
KV_OFF = 0x20000;  KV_BYTES = 64*3072
WP_OFF = 0x50000;  WP_BYTES = 8*136*2560
AF_OFF = 0x300000; AF_BYTES = 64*136*1024
XN_OFF = 0xC00000; XN_BYTES = 64*40*1024
PX, PWQ, PWK, PWV, PWO, PWG, PWU, PWD, POUT, PWS = 48, 50, 52, 54, 56, 60, 62, 64, 66, 70
TAG = "s73"; BUD = "s74"; FLS = 44; SC = "sc1"
FL = f"s[{FLS}:{FLS+3}]"
HUGE = "0x7ff00000"

def bstamp(k, name):
    m0 = dict(start=0, xl=1, xs=2, xf=3, p0=4, gu0=5, gu1=6, dn0=7, dn1=8)
    m1 = dict(start=0, p0=1, gu0=2, gu1=3, dn0=4, dn1=5, of=6, mm=7, rd=8)
    m = m1 if BST else m0
    if name in m: stamp(k, m[name])

def emit(k, lst):
    for x in lst:
        if isinstance(x, list): emit(k, x)
        else: k.e(x)

def spin(k, loads, regs, vt, pre_issued=False, slp=1):
    e = k.e
    Lp = k.newlabel("poll"); Ld = k.newlabel("pdone"); Lc = k.newlabel("pchk")
    if pre_issued: e(f"s_branch {Lc}")
    k.label(Lp)
    emit(k, loads)
    k.label(Lc)
    e("s_waitcnt vmcnt(0)")
    e(f"v_xor_b32 v{vt}, {TAG}, v{regs[0]}")
    for r in regs[1:]:
        e(f"v_xor_b32 v{r}, {TAG}, v{r}\nv_or_b32 v{vt}, v{vt}, v{r}")
    e(f"v_cmp_ne_u32 vcc, 0, v{vt}")
    e(f"s_cmp_eq_u64 vcc, 0\ns_cbranch_scc1 {Ld}")
    e(f"s_sub_u32 {BUD}, {BUD}, 1\ns_cbranch_scc1 {Ld}")
    e(f"s_sleep {slp}\ns_branch {Lp}")
    k.label(Ld)

def setflag(k, soffs, vt):
    e = k.e
    L = k.newlabel("nofl")
    e(f"s_cmp_lg_u32 s3, 0\ns_cbranch_scc1 {L}")
    e(f"v_mov_b32 v{vt}, {TAG}\nv_mov_b32 v{vt+1}, 0\ns_mov_b64 exec, 1")
    for so in (soffs if isinstance(soffs, list) else [soffs]):
        e(f"buffer_store_dword v{vt}, v{vt+1}, {FL}, {so} offen {SC}")
    e("s_mov_b64 exec, -1")
    k.label(L)

def tag_setup(k):
    k.e(f"s_load_dword s72, s[{PWS}:{PWS+1}], 0")
    srd_from(k, FLS, PWS, FL_BYTES)
    k.e(f"s_mov_b32 {BUD}, 200000")
def tag_finish(k):
    k.e(f"s_waitcnt lgkmcnt(0)\ns_mul_i32 {TAG}, s72, 1664525\ns_add_u32 {TAG}, {TAG}, 1013904223")

def x_voffs(k, dst, t):
    e = k.e
    e(f"v_lshrrev_b32 v{t}, 3, v1\nv_mul_u32_u24 v{t}, 1280, v{t}")
    e(f"v_and_b32 v{t+1}, 7, v1\nv_lshrrev_b32 v{t+2}, 4, v1\nv_xor_b32 v{t+1}, v{t+1}, v{t+2}")
    e(f"v_lshl_add_u32 v{dst}, v{t+1}, 4, v{t}\nv_xor_b32 v{dst+1}, 64, v{dst}")
def x_raddr(k, dst, t, base):
    e = k.e
    e(f"v_and_b32 v{t}, 31, v1\nv_bfe_u32 v{t+1}, v1, 1, 3\nv_lshrrev_b32 v{t+2}, 5, v1\nv_xor_b32 v{t+1}, v{t+1}, v{t+2}")
    e(f"v_lshlrev_b32 v{t}, 7, v{t}\nv_lshl_add_u32 v{t}, v{t+1}, 4, v{t}")
    for ks in range(4):
        e(f"v_xor_b32 v{t+1}, {ks*32}, v{t}\nv_add_u32 v{dst+ks}, {base}, v{t+1}")

def phase0(k, pre):
    e = k.e
    e("v_and_b32 v3, 15, v1\nv_lshrrev_b32 v4, 4, v1")
    e("s_mul_i32 s12, s4, 20480\ns_mul_i32 s13, s3, 320\ns_add_u32 s12, s12, s13")
    e("v_mul_u32_u24 v5, 1280, v3\nv_lshl_add_u32 v5, v4, 4, v5")
    e("s_mul_i32 s14, s3, 6400\ns_mul_i32 s15, s3, 14336")
    e("s_waitcnt lgkmcnt(0)")
    srd_from(k, 16, PX, NBYTES['x'])
    X = 16
    for i in range(5):
        e(f"buffer_load_dwordx4 {vr(X+4*i,4)}, v5, s[16:19], s12 offen offset:{64*i}")
    tag_setup(k)
    srd_from(k, 20, PWK, NBYTES['wk'])
    srd_from(k, 24, PWV, NBYTES['wv'])
    dm = []
    for m, srd in ((0, 20), (1, 24)):
        for j in range(7):
            g = []
            if j % 4 == 0: g += [f"s_add_u32 m0, s15, {m*7168 + j*1024}", f"s_add_u32 s37, s14, {j*1024}"]
            g.append(f"buffer_load_dwordx4 v2, s[{srd}:{srd+3}], s37 offen offset:{(j%4)*1024} lds")
            dm.append(g)
    emit(k, dm[:P0B]); dm = dm[P0B:]
    srd_from(k, 28, PWS, XN_BYTES, XN_OFF)
    srd_from(k, 32, PWS, KV_BYTES, KV_OFF)
    e("v_mov_b32 v8, 0\nv_mov_b32 v9, 0\nv_mov_b32 v10, 0\nv_mov_b32 v11, 0")
    e("s_mov_b32 s38, 0x3f803f80")
    LST = 57344; RED = LST + 512
    e(f"s_lshl_b32 s39, s3, 7\ns_add_u32 s39, s39, {LST}")
    e("v_lshl_add_u32 v12, v3, 3, s39\nv_lshlrev_b32 v13, 3, v3")
    e("v_lshrrev_b32 v14, 2, v3\nv_lshl_add_u32 v14, v4, 3, v14\nv_mul_u32_u24 v14, 40, v14")
    e("v_and_b32 v15, 3, v1\nv_lshl_add_u32 v14, v15, 3, v14\nv_add_u32 v14, s15, v14")
    e(f"s_lshl_b32 s36, s4, 7\ns_add_u32 s36, s36, {STAT}")
    e("s_lshr_b32 s40, s4, 1\ns_mul_i32 s41, s40, 40960\ns_and_b32 s42, s4, 1")
    e("s_lshl_b32 s43, s42, 8\ns_add_u32 s41, s41, s43\ns_mul_i32 s43, s3, 10240\ns_add_u32 s41, s41, s43")
    e("v_lshlrev_b32 v5, 9, v4\nv_lshl_add_u32 v5, v3, 4, v5")
    tag_finish(k)
    for i in range(5):
        e(f"s_waitcnt vmcnt({4 - i + 14 - len(dm)})")
        for d in range(4*i, 4*i+4):
            a = 8 + (d & 1); q = 10 + (d & 1)
            e(f"v_dot2_f32_bf16 v{a}, v{X+d}, s38, v{a}")
            e(f"v_dot2_f32_bf16 v{q}, v{X+d}, v{X+d}, v{q}")
        emit(k, dm[:2]); dm = dm[2:]
    bstamp(k, "xl")
    e("v_add_f32 v8, v8, v9\nv_add_f32 v9, v10, v11")
    for sw in ("v_permlane32_swap_b32", "v_permlane16_swap_b32"):
        e("v_mov_b32 v10, v8\nv_mov_b32 v11, v9")
        e(f"{sw} v8, v10\n{sw} v9, v11")
        e("v_add_f32 v8, v8, v10\nv_add_f32 v9, v9, v11")
    e("ds_write_b64 v12, v[8:9]")
    U = 96
    for d in range(20):
        e(f"v_lshlrev_b32 v{U+2*d}, 16, v{X+d}\nv_and_b32 v{U+2*d+1}, 0xffff0000, v{X+d}")
        if d == 1:
            e("s_waitcnt lgkmcnt(0)\ns_barrier")
            for w in range(4): e(f"ds_read_b64 {vr(36+2*w,2)}, v13 offset:{LST+128*w}")
    W = 136
    e("s_waitcnt lgkmcnt(0)")
    def wrd(i):
        for tl in range(4):
            m, n0 = tl >> 1, (tl & 1) * 16
            for u in range(2):
                e(f"ds_read_b64_tr_b16 {vr(W+16*i+4*tl+2*u,2)}, v14 offset:{m*7168 + i*1280 + u*160 + n0*2}")
    e("s_waitcnt vmcnt(0)")
    for i in range(5): wrd(i)
    e("v_add_f32 v8, v36, v38\nv_add_f32 v9, v37, v39\nv_add_f32 v10, v40, v42\nv_add_f32 v11, v41, v43")
    e("v_add_f32 v8, v8, v10\nv_add_f32 v9, v9, v11")
    inv = hex(f32bits(1.0/640))
    e(f"v_mul_f32 v8, {inv}, v8\nv_mul_f32 v9, {inv}, v9")
    e("v_fma_f32 v9, -v8, v8, v9\nv_max_f32 v9, 0, v9")
    e("v_cvt_pk_bf16_f32 v10, v8, v9")
    e("v_lshlrev_b32 v8, 16, v10\nv_and_b32 v9, 0xffff0000, v10")
    e(f"v_add_f32 v9, {hex(f32bits(1e-5))}, v9")
    e("v_cvt_pk_bf16_f32 v9, v9, v9\nv_and_b32 v9, 0xffff0000, v9")
    e("v_sqrt_f32 v9, v9")
    e("v_cvt_pk_bf16_f32 v6, v8, v9")
    e(f"v_mov_b32 v7, {TAG}\nv_and_b32 v9, 0xffff0000, v6")
    Lns = k.newlabel("nost")
    e(f"s_cmp_lg_u32 s3, 0\ns_cbranch_scc1 {Lns}")
    e(f"s_mov_b64 exec, 0xffff\nbuffer_store_dwordx2 v[6:7], v13, {FL}, s36 offen {SC}\ns_mov_b64 exec, -1")
    k.label(Lns)
    e("v_rcp_f32 v10, v9")
    e("v_mul_f32 v11, v8, v10")
    ACC = 44
    for i in range(5):
        for d in range(4*i, 4*i+4):
            u = U + 2*d
            e(f"v_fma_f32 v{u}, v{u}, v10, -v11\nv_fma_f32 v{u+1}, v{u+1}, v10, -v11")
        for d in range(4*i, 4*i+4):
            u = U + 2*d
            e(f"v_cvt_pk_bf16_f32 v{X+d}, v{u}, v{u+1}")
        if i == 0: e("s_waitcnt lgkmcnt(0)")
        if i >= 1:
            for tl in range(4):
                wf = vr(W+16*(i-1)+4*tl, 4); xf = vr(X+4*(i-1), 4); acc = vr(ACC+4*tl, 4)
                a, b = (wf, xf) if tl < 2 else (xf, wf)
                e(f"v_mfma_f32_16x16x32_bf16 {acc}, {a}, {b}, {'0' if i == 1 else acc}")
    for tl in range(4):
        wf = vr(W+64+4*tl, 4); xf = vr(X+16, 4); acc = vr(ACC+4*tl, 4)
        a, b = (wf, xf) if tl < 2 else (xf, wf)
        e(f"v_mfma_f32_16x16x32_bf16 {acc}, {a}, {b}, {acc}")
    bstamp(k, "xs")
    e(f"s_lshl_b32 s39, s3, 12\ns_add_u32 s39, s39, {RED}\nv_add_u32 v12, s39, v2")
    e(f"s_lshl_b32 s39, s3, 10\ns_add_u32 s39, s39, {RED}\nv_add_u32 v6, s39, v2")
    e("s_mul_i32 s39, s40, 3072")
    for tl in range(4):
        e(f"ds_write_b128 v12, {vr(ACC+4*tl,4)} offset:{tl*1024}")
    Lk1, Lv0, Lv1, Lst = (k.newlabel(x) for x in ("k1", "v0", "v1", "st"))
    e("v_lshl_add_u32 v7, s42, 4, v3")
    e("v_and_b32 v15, 1, v4\nv_lshrrev_b32 v11, 1, v4")
    e("s_mov_b64 s[24:25], 0")
    e(f"s_cmp_eq_u32 s3, 1\ns_cbranch_scc1 {Lk1}")
    e(f"s_cmp_eq_u32 s3, 2\ns_cbranch_scc1 {Lv0}")
    e(f"s_cmp_eq_u32 s3, 3\ns_cbranch_scc1 {Lv1}")
    e("v_lshl_add_u32 v12, v11, 5, v7\nv_lshlrev_b32 v12, 4, v12\nv_lshl_add_u32 v12, v15, 3, v12")
    e(f"s_branch {Lst}")
    k.label(Lk1)
    e("v_lshlrev_b32 v12, 3, v7\nv_add_u32 v12, 1024, v12")
    e("v_cmp_ne_u32 vcc, 0, v4\nv_mov_b32 v13, 0x7fffffff\nv_cndmask_b32 v12, v12, v13, vcc")
    e(f"s_branch {Lst}")
    k.label(Lv1)
    e("v_add_u32 v3, 16, v3")
    e("s_mov_b32 s24, 0x00100010\ns_mov_b32 s25, 0x00100010")
    e("v_cmp_lt_u32 vcc, 20, v3\nv_mov_b32 v13, 0x1000000\nv_cndmask_b32 v3, v3, v13, vcc")
    k.label(Lv0)
    e("s_mul_i32 s38, s42, 768\ns_add_u32 s38, s38, 1536")
    e("v_mul_u32_u24 v12, 384, v15\nv_lshl_add_u32 v12, v3, 4, v12\nv_lshl_add_u32 v12, v11, 3, v12\nv_add_u32 v12, s38, v12")
    k.label(Lst)
    e("v_mov_b32 v13, 0x3f803f80")
    e("s_waitcnt lgkmcnt(0)\ns_barrier")
    R = 60
    for w in range(4):
        e(f"ds_read_b128 {vr(R+4*w,4)}, v6 offset:{w*4096}")
    e("s_waitcnt lgkmcnt(0)")
    for j in range(4):
        e(f"v_add_f32 v{R+j}, v{R+j}, v{R+4+j}\nv_add_f32 v{R+8+j}, v{R+8+j}, v{R+12+j}\nv_add_f32 v{R+j}, v{R+j}, v{R+8+j}")
    e(f"v_cvt_pk_bf16_f32 v8, v{R}, v{R+1}\nv_cvt_pk_bf16_f32 v9, v{R+2}, v{R+3}")
    e("v_cndmask_b32 v8, v8, v13, s[24:25]\nv_cndmask_b32 v9, v9, v13, s[24:25]")
    e(f"buffer_store_dwordx2 v[8:9], v12, s[32:35], s39 offen {SC}")
    for i in range(5):
        if i in (2, 4): e("s_add_u32 s41, s41, 4096")
        e(f"buffer_store_dwordx4 {vr(X+4*i,4)}, v5, s[28:31], s41 offen offset:{(i%2)*2048} {SC}")
    bstamp(k, "xf")

def roleB(k):
    e = k.e
    SLOT = 20480
    GW, RA, RB = 216, 221, 224
    ACC = 32; FR = [176, 196]
    Lgu = k.newlabel("gu0"); Lpk = k.newlabel("pk")
    bstamp(k, "start")
    e("s_and_b32 s5, s2, 7\ns_lshr_b32 s6, s2, 3")
    def tile_ids():
        e("s_lshr_b32 s7, s5, 1\ns_lshl_b32 s7, s7, 2\ns_lshr_b32 s8, s6, 3\ns_add_u32 s7, s7, s8")
        e("s_and_b32 s9, s5, 1\ns_lshl_b32 s8, s9, 3\ns_and_b32 s10, s6, 7\ns_add_u32 s8, s8, s10\ns_lshl_b32 s11, s7, 1\ns_add_u32 s9, s9, s11")
    def gu_vsetup(t):
        e("s_and_b32 s11, s3, 2")
        for i in range(3):
            e(f"v_add_u32 v{t}, {64*i}, v1\nv_mul_u32_u24 v{t+1}, 5462, v{t}\nv_lshrrev_b32 v{t+1}, 16, v{t+1}")
            e(f"v_mul_u32_u24 v{t+2}, 12, v{t+1}\nv_sub_u32 v{t+2}, v{t}, v{t+2}\nv_xor_b32 v{t+2}, s11, v{t+2}")
            e(f"v_mul_u32_u24 v{t+1}, 3072, v{t+1}\nv_lshl_add_u32 v{GW+i}, v{t+2}, 4, v{t+1}")
    def gu_vsetup2(t):
        e(f"v_lshrrev_b32 v{t}, 5, v1\nv_bfe_u32 v{t+1}, v1, 2, 2\nv_lshl_add_u32 v{t+1}, v{t}, 3, v{t+1}\nv_mul_u32_u24 v{t+1}, 192, v{t+1}")
        e(f"v_and_b32 v{t+2}, 1, v1\nv_lshl_add_u32 v{t+1}, v{t+2}, 4, v{t+1}\nv_bfe_u32 v{t+2}, v1, 1, 1\nv_lshl_add_u32 v{t+1}, v{t+2}, 3, v{t+1}")
        e(f"v_bfe_u32 v{t+2}, v1, 4, 1\nv_mul_u32_u24 v{t+3}, 6144, v{t+2}\nv_add_u32 v{t+1}, v{t+1}, v{t+3}")
        e("s_lshr_b32 s11, s3, 1\ns_mul_i32 s11, s11, 3")
        for a in range(3):
            e(f"v_xor_b32 v{t+3}, s11, v{t+2}\nv_lshl_add_u32 v{RA+a}, v{t+3}, 5, v{t+1}\ns_add_u32 s11, s11, 1")
        e(f"s_and_b32 s11, s3, 1\ns_lshl_b32 s11, s11, 12\ns_add_u32 s11, s11, 12288\nv_add_u32 v{RB}, s11, v2")
        e(f"v_and_b32 v{RB+1}, 1, v1\nv_lshlrev_b32 v{RB+1}, 7, v{RB+1}")
    def zero_acc():
        for j in range(96): e(f"v_mov_b32 v{ACC+j}, 0")
    def gu_ssetup():
        e("s_lshr_b32 s38, s3, 1\ns_and_b32 s39, s3, 1\ns_mul_i32 s40, s38, 3")
        srd_from(k, 16, PWS, XN_BYTES, XN_OFF)
        e(f"s_cmp_eq_u32 s38, 0\ns_cselect_b32 s20, s{PWG}, s{PWU}\ns_cselect_b32 s21, s{PWG+1}, s{PWU+1}")
        e(f"s_mov_b32 s22, {hex(NBYTES['wg'])}\ns_mov_b32 s23, 0x20000")
        e("s_mul_i32 s12, s39, 49152\ns_mul_i32 s32, s8, 192\ns_add_u32 s12, s12, s32")
        e(f"s_lshl_b32 s32, s7, 2\ns_add_u32 s32, s32, s3\ns_mul_i32 s13, s32, 40960\ns_lshl_b32 s42, s32, 8\ns_add_u32 s42, s42, {XNF}")
        e("s_mul_i32 s14, s3, 3072\ns_lshl_b32 s15, s3, 11\ns_add_u32 s15, s15, 12288")
    def issueW(sl):
        return [[f"s_add_u32 m0, s14, {sl*SLOT}"],
                [f"buffer_load_dwordx4 v{GW}, s[20:23], s12 offen lds", "s_add_u32 m0, m0, 1024"],
                [f"buffer_load_dwordx4 v{GW+1}, s[20:23], s12 offen lds", "s_add_u32 m0, m0, 1024"],
                [f"buffer_load_dwordx4 v{GW+2}, s[20:23], s12 offen lds", f"s_add_u32 s12, s12, {32*3072}"]]
    def issueX(sl):
        return [[f"s_add_u32 m0, s15, {sl*SLOT}"],
                [f"buffer_load_dwordx4 v2, s[16:19], s13 offen {SC} lds"],
                [f"buffer_load_dwordx4 v2, s[16:19], s13 offen offset:1024 {SC} lds", "s_add_u32 s13, s13, 2048"]]
    e(f"s_cmp_ge_u32 s6, 16\ns_cbranch_scc1 {Lpk}")
    e("s_lshl_b32 s4, s5, 4\ns_add_u32 s4, s4, s6")
    def pre():
        tile_ids(); gu_vsetup(232); gu_vsetup2(232)
    phase0(k, pre)
    pre()
    gu_ssetup()
    e(f"s_lshl_b32 s36, s4, 7\ns_add_u32 s36, s36, {KVF}\ns_mov_b32 s11, {HUGE}\ns_mov_b32 s43, {HUGE}")
    e(f"s_add_u32 s35, s36, {XNF - KVF}")
    e("s_waitcnt vmcnt(5)\ns_barrier")
    setflag(k, "s36", 10)
    zero_acc()
    e("s_waitcnt vmcnt(0)\ns_barrier")
    setflag(k, "s35", 10)
    e(f"s_setprio {BP0}")
    for c in range(4): emit(k, issueW(c))
    e(f"s_branch {Lgu}")
    k.label(Lpk)
    e(f"s_setprio {BP0}")
    PKB = 3*SLOT; PD = 176
    if CPF:
        Lc = k.newlabel("nocp"); Lh = k.newlabel("here")
        e(f"s_cmp_lg_u32 s6, 31\ns_cbranch_scc1 {Lc}")
        e("s_getpc_b64 s[34:35]")
        k.label(Lh)
        e(f"s_sub_u32 s34, s34, {Lh}-{k.name}\ns_subb_u32 s35, s35, 0")
        e(f"v_lshlrev_b32 v9, 7, v0\nv_min_u32 v9, {k.name}_end-{k.name}-4, v9")
        e("global_load_dword v31, v9, s[34:35]")
        k.label(Lc)
    e("s_sub_u32 s4, s2, 128\ns_mul_i32 s33, s3, 320")
    for i in range(5):
        e(f"v_add_u32 v13, {64*i}, v1\nv_add_u32 v13, s33, v13\nv_mul_u32_u24 v{19+i}, 52429, v13\nv_lshrrev_b32 v{19+i}, 22, v{19+i}")
        e(f"v_mul_u32_u24 v14, 80, v{19+i}\nv_sub_u32 v14, v13, v14\nv_lshlrev_b32 v{24+i}, 4, v14")
    def pack_issue(first):
        e("s_mul_i32 s32, s4, 241\ns_lshr_b32 s32, s32, 13\ns_mul_i32 s33, s32, 34\ns_sub_u32 s33, s4, s33")
        e("s_mul_i32 s34, s32, 384\ns_lshl_b32 s35, s33, 4\ns_add_u32 s34, s34, s35")
        e("s_mul_i32 s35, s32, 160\ns_mul_i32 s36, s33, 20\ns_add_u32 s36, s36, s35\ns_sub_u32 s36, s36, 480")
        e("s_mul_i32 s37, s33, 80\ns_add_u32 s37, s37, s35\ns_sub_u32 s37, s37, 2544")
        e("s_cmp_ge_u32 s33, 32\ns_cselect_b32 s36, s37, s36\ns_cselect_b32 s41, 16, 0")
        for i in range(5):
            e(f"v_lshrrev_b32 v13, 2, v{19+i}\nv_mul_u32_u24 v13, s41, v13\nv_add_u32 v13, v13, v{19+i}\nv_mul_u32_u24 v13, 1280, v13\nv_add_u32 v{3+i}, v13, v{24+i}")
        if first: e("s_waitcnt lgkmcnt(0)")
        e(f"s_cmp_ge_u32 s33, 24\ns_cselect_b32 s34, s36, s34\ns_cselect_b32 s24, s{PWO}, s{PWD}\ns_cselect_b32 s25, s{PWO+1}, s{PWD+1}")
        e(f"s_cselect_b32 s26, {hex(NBYTES['wo'])}, s26\ns_mov_b32 s27, 0x20000\ns_mul_i32 s34, s34, 1280")
        e(f"s_mul_i32 s35, s3, 5120\ns_add_u32 m0, s35, {PKB}")
        for i in range(5):
            e(f"buffer_load_dwordx4 v{3+i}, s[24:27], s34 offen lds")
            if i < 4: e("s_add_u32 m0, m0, 1024")
    def pack_finish():
        for c in range(2):
            for a in range(3):
                for u in range(2):
                    ad, off = ("v10", a*64) if a < 2 else ("v11", 0)
                    e(f"ds_read_b64_tr_b16 {vr(PD+12*c+4*a+2*u,2)}, {ad} offset:{c*160 + off + u*5120}")
        e(f"s_mul_i32 s34, s3, {2*136*2560}\ns_mul_i32 s35, s4, 2560\ns_add_u32 s34, s34, s35\ns_add_u32 s35, s34, {136*2560}")
        for c in range(2):
            for a in range(3):
                e(f"s_waitcnt lgkmcnt({10 - 6*c - 2*a})")
                e(f"buffer_store_dwordx4 {vr(PD+12*c+4*a,4)}, {'v2' if a < 2 else 'v12'}, s[28:31], s{34+c} offen offset:{a*1024} {SC}")
    e(f"s_mov_b32 s26, {hex(NBYTES['wd'])}")
    if not PKD: pack_issue(True)
    else: e("s_waitcnt lgkmcnt(0)")
    tag_setup(k)
    srd_from(k, 28, PWS, WP_BYTES, WP_OFF)
    e("v_lshrrev_b32 v8, 5, v1\nv_bfe_u32 v9, v1, 2, 2\nv_lshl_add_u32 v9, v8, 3, v9\nv_mul_u32_u24 v9, 1280, v9")
    e(f"s_mul_i32 s32, s3, 320\ns_add_u32 s32, s32, {PKB}\nv_add_u32 v9, s32, v9")
    e("v_and_b32 v16, 1, v1\nv_bfe_u32 v17, v1, 1, 1\nv_bfe_u32 v18, v1, 4, 1")
    e("v_lshl_add_u32 v10, v16, 5, v9\nv_lshl_add_u32 v10, v17, 3, v10\nv_lshl_add_u32 v10, v18, 4, v10")
    e("v_lshl_add_u32 v11, v16, 4, v9\nv_lshl_add_u32 v11, v17, 3, v11\nv_add_u32 v11, 128, v11\nv_lshl_add_u32 v11, v18, 18, v11")
    e("v_and_b32 v12, 15, v1\nv_lshlrev_b32 v12, 4, v12\nv_lshl_add_u32 v12, v8, 8, v12\nv_lshl_add_u32 v12, v18, 30, v12")
    pre()
    zero_acc()
    gu_ssetup()
    e(f"s_lshl_b32 s11, s4, 2\ns_add_u32 s11, s11, {PKF}\ns_mov_b32 s43, {HUGE}")
    tag_finish(k)
    if PKD:
        e(f"s_lshl_b32 s32, s4, 7\ns_add_u32 s32, s32, {(STAT + 4) if PKD == 1 else KVF}\nv_mov_b32 v29, 0")
        spin(k, [f"buffer_load_dword v30, v29, {FL}, s32 offen {SC}"], [30], 29+2, slp=BSL)
        pack_issue(False)
        for c in range(3): emit(k, issueW(c))
        e("s_waitcnt vmcnt(9)\ns_barrier")
    if not PKD: e("s_waitcnt vmcnt(0)\ns_barrier")
    pack_finish()
    L1 = k.newlabel("pk1")
    e(f"s_cmp_ge_u32 s4, 8\ns_cbranch_scc1 {L1}")
    e(f"s_add_u32 s4, s4, 128\ns_add_u32 s43, s11, 512\ns_barrier")
    pack_issue(False)
    e("s_waitcnt vmcnt(0)\ns_barrier")
    pack_finish()
    k.label(L1)
    e("s_barrier")
    for c in range(3 if PKD else 0, 4): emit(k, issueW(c))
    if STAMPS:
        for n in ("xl", "xs", "xf"): bstamp(k, n)
    k.label(Lgu)
    bstamp(k, "p0")
    srd_from(k, 28, PWS, AF_BYTES, AF_OFF)
    spin(k, [f"buffer_load_dword v16, v{RB+1}, {FL}, s42 offen {SC}"], [16], 17, slp=BSL)
    for c in range(4): emit(k, issueX(c))
    def reads(fs, sl, ks):
        L = [f"ds_read_b128 {vr(FR[fs]+12,4)}, v{RB} offset:{sl*SLOT + ks*1024}"]
        for a in range(3):
            for u in range(2):
                L.append(f"ds_read_b64_tr_b16 {vr(FR[fs]+4*a+2*u,2)}, v{RA+a} offset:{sl*SLOT + (16*ks+4*u)*192}")
            if a == 0: L.append(f"ds_read_b128 {vr(FR[fs]+16,4)}, v{RB} offset:{sl*SLOT + 2048 + ks*1024}")
        return L
    def mfmas(fs):
        return [f"{MF} {vr(ACC+16*(2*a+b),16)}, {vr(FR[fs]+4*a,4)}, {vr(FR[fs]+12+4*b,4)}, {vr(ACC+16*(2*a+b),16)}" for a in range(3) for b in range(2)]
    e("s_mov_b32 s42, 0")
    e("s_waitcnt vmcnt(0)\ns_barrier")
    setflag(k, ["s11", "s43"], 10)
    e(f"s_setprio {GP0}")
    bstamp(k, "gu0")
    if ONLY == "A":
        e("s_waitcnt vmcnt(0)"); stamp_dump(k, 0, 6, "s2", PWS); e("s_endpgm")
    emit(k, reads(0, 0, 0))
    L = k.newlabel("gu")
    k.label(L, 6)
    for sl in range(4):
        e("s_waitcnt lgkmcnt(0)")
        rd = reads(1, sl, 1); mf = mfmas(0)
        sh = [rd[0:2], rd[2:4], rd[4:6], rd[6:8], [], []]
        if sl == 0: sh[4] = ["s_cmp_ge_u32 s42, 4", f"s_cselect_b32 s13, {HUGE}, s13"]
        for i in range(6):
            e(mf[i]); emit(k, sh[i])
        if sl == 2 and GSW >= 0:
            Lt = k.newlabel("gsw")
            e(f"s_cmp_lg_u32 s42, {GSW}\ns_cbranch_scc1 {Lt}\ns_setprio {GP1}")
            k.label(Lt)
        e("s_waitcnt vmcnt(10) lgkmcnt(0)\ns_barrier")
        rd = reads(0, (sl+1) % 4, 0); mf = mfmas(1)
        iw = issueW(sl); ix = issueX(sl)
        sh = [rd[0:2] + iw[0], rd[2:4] + iw[1], rd[4:6] + iw[2], rd[6:8] + iw[3] + ix[0], ix[1], ix[2]]
        if sl == 3: sh[5] = sh[5] + ["s_add_u32 s42, s42, 1", "s_cmp_lt_u32 s42, 5"]
        for i in range(6):
            e(mf[i]); emit(k, sh[i])
    e(f"s_cbranch_scc1 {L}")
    e("s_setprio 2")
    e(f"s_mov_b32 s36, {PKF}\nv_min_u32 v4, 33, v1\nv_lshlrev_b32 v4, 4, v4\nv_lshrrev_b32 v8, 5, v1")
    st_loads = [f"buffer_load_dwordx4 v[16:19], v4, {FL}, s36 offen {SC}"]
    emit(k, st_loads)
    e(f"s_mul_i32 s14, s3, {SLOT}")
    srd_from(k, 20, PWS, WP_BYTES, WP_OFF)
    srd_from(k, 16, PX, NBYTES['x'])
    e(f"s_lshl_b32 s12, s10, 2\ns_add_u32 s12, s12, s3\ns_mul_i32 s12, s12, {34*2560}")
    e(f"s_lshl_b32 s32, s7, 1\ns_add_u32 s32, s32, s39\ns_mul_i32 s32, s32, 272\ns_mul_i32 s43, s8, 6\ns_add_u32 s32, s32, s43\ns_add_u32 s32, s32, s40\ns_add_u32 s32, s32, 40\ns_lshl_b32 s32, s32, 10")
    e(f"s_add_u32 s34, s32, {136*1024}\ns_mov_b32 s33, {hex(f32bits(-LOG2E))}")
    e("s_waitcnt lgkmcnt(0)")
    bstamp(k, "gu1")
    def issueW2(sl):
        L = [[f"s_add_u32 m0, s14, {sl*5120}", "s_add_u32 s37, s12, 4096"]]
        for i in range(4): L.append([f"buffer_load_dwordx4 v2, s[20:23], s12 offen offset:{i*1024} {SC} lds"])
        L[4].append("s_add_u32 m0, m0, 4096")
        L.append([f"buffer_load_dwordx4 v2, s[20:23], s37 offen {SC} lds", "s_add_u32 s12, s12, 5120"])
        return L
    T = 176
    for a in range(3):
        for b in range(2):
            g = ACC + 16*(2*a+b); u = g + 8
            for j in range(8): e(f"v_mul_f32 v{T+j}, s33, v{g+j}")
            for j in range(8): e(f"v_exp_f32 v{T+j}, v{T+j}")
            for j in range(8): e(f"v_mul_f32 v{g+j}, v{g+j}, v{u+j}")
            for j in range(8): e(f"v_add_f32 v{T+j}, 1.0, v{T+j}")
            for j in range(8): e(f"v_rcp_f32 v{T+j}, v{T+j}")
            for j in range(8): e(f"v_mul_f32 v{g+j}, v{g+j}, v{T+j}")
            for j in range(4): e(f"v_cvt_pk_bf16_f32 v{u+j}, v{g+2*j}, v{g+2*j+1}")
            e(f"buffer_store_dwordx4 {vr(u,4)}, v2, s[28:31], {'s34' if b else 's32'} offen offset:{a*1024} {SC}")
    wq_ = []
    assert not wq_
    e("v_add_u32 v10, s14, v2\nv_and_b32 v11, 15, v1\nv_lshlrev_b32 v11, 4, v11\nv_lshl_add_u32 v11, v8, 8, v11\nv_bfe_u32 v9, v1, 4, 1")
    e("v_lshl_add_u32 v11, v9, 18, v11\nv_add_u32 v11, s14, v11")
    e(f"s_lshl_b32 s35, s7, 4\ns_add_u32 s36, s35, s8\ns_lshl_b32 s36, s36, 7\ns_add_u32 s36, s36, {HF}")
    e(f"s_mul_i32 s24, s9, {272*1024}\ns_mul_i32 s32, s3, {24*1024}\ns_add_u32 s26, s24, s32\ns_add_u32 s26, s26, {40*1024}\ns_add_u32 s27, s26, {136*1024}")
    e("v_and_b32 v14, 3, v1\nv_lshlrev_b32 v14, 7, v14")
    e(f"s_lshl_b32 s32, s3, 2\ns_add_u32 s32, s32, s35\ns_lshl_b32 s32, s32, 7\ns_add_u32 s32, s32, {HF}")
    e(f"s_mov_b32 s33, s36\ns_mov_b32 s36, {PKF}")
    spin(k, st_loads, [16, 17, 18, 19], 20, pre_issued=True)
    e("s_barrier")
    setflag(k, "s33", 16)
    hl = [f"buffer_load_dword v16, v14, {FL}, s32 offen {SC}"]
    zi = 0
    for sl in range(4):
        for g in issueW2(sl):
            emit(k, g)
            for j in range(4): e(f"v_mov_b32 v{ACC+zi}, 0"); zi += 1
    spin(k, hl, [16], 17)
    XR = 128; FA = [208, 220]
    def issueX2(rs):
        L = []
        for ks in range(2):
            for b in range(2):
                L.append([f"buffer_load_dwordx4 {vr(XR+16*rs+8*ks+4*b,4)}, v2, s[28:31], s{26+b} offen offset:{ks*1024} {SC}"])
        L[3] += ["s_add_u32 s26, s26, 2048", "s_add_u32 s27, s27, 2048"]
        return L
    for g in range(4): emit(k, issueX2(g))
    def reads2(fs, sl, ks):
        return [f"ds_read_b128 {vr(FA[fs]+4*a,4)}, {'v10' if a < 2 else 'v11'} offset:{sl*5120 + ks*2560 + a*1024}" for a in range(3)]
    def mfmas2(fs, rs, ks):
        return [f"{MF} {vr(ACC+16*(3*b+a),16)}, {vr(FA[fs]+4*a,4)}, {vr(XR+16*rs+8*ks+4*b,4)}, {vr(ACC+16*(3*b+a),16)}" for a in range(3) for b in range(2)]
    e(f"s_mov_b32 s42, 0\ns_setprio {DP}")
    emit(k, reads2(0, 0, 0))
    e("s_waitcnt vmcnt(0)")
    bstamp(k, "dn0")
    L = k.newlabel("dn")
    k.label(L, 6)
    for sl in range(4):
        e("s_waitcnt lgkmcnt(0)")
        rd = reads2(1, sl, 1); mf = mfmas2(0, sl, 0)
        sh = [rd[0:1], rd[1:2], rd[2:3], [], [], []]
        if sl == 0: sh[3] = ["s_cmp_eq_u32 s42, 2", f"s_cselect_b32 s26, {HUGE}, s26", f"s_cselect_b32 s27, {HUGE}, s27"]
        for i in range(6):
            e(mf[i]); emit(k, sh[i])
        e("s_waitcnt vmcnt(18) lgkmcnt(0)")
        rd = reads2(0, (sl+1) % 4, 0); mf = mfmas2(1, sl, 1)
        iw = issueW2(sl); ix = issueX2(sl)
        sh = [rd[0:1] + iw[0], rd[1:2] + iw[1], rd[2:3] + iw[2], iw[3] + iw[4], iw[5], ix[0] + ix[1] + ix[2] + ix[3]]
        if sl == 3: sh[5] = sh[5] + ["s_add_u32 s42, s42, 1", "s_cmp_lt_u32 s42, 3"]
        for i in range(6):
            e(mf[i]); emit(k, sh[i])
    e(f"s_cbranch_scc1 {L}")
    e("s_setprio 2")
    emit(k, reads2(1, 0, 1))
    e("s_waitcnt lgkmcnt(0)")
    emit(k, issueW2(0))
    srd_from(k, 36, POUT, NBYTES['out'])
    e("s_lshr_b32 s40, s3, 1\ns_and_b32 s41, s3, 1")
    e("s_lshl_b32 s32, s9, 1\ns_add_u32 s32, s32, s40\ns_mul_i32 s32, s32, 40960\ns_mul_i32 s33, s10, 160\ns_add_u32 s43, s32, s33")
    e("v_and_b32 v16, 31, v1\nv_mul_u32_u24 v16, 1280, v16")
    e("s_lshl_b32 s32, s41, 6\nv_lshl_add_u32 v12, v8, 5, v16\nv_add_u32 v12, s32, v12")
    e("s_lshl_b32 s32, s41, 3\ns_add_u32 s32, s32, 128\nv_lshl_add_u32 v13, v8, 4, v16\nv_add_u32 v13, s32, v13")
    XS = 232
    e(f"buffer_load_dwordx4 {vr(XS,4)}, v12, s[16:19], s43 offen")
    e(f"buffer_load_dwordx4 {vr(XS+4,4)}, v12, s[16:19], s43 offen offset:16")
    e(f"buffer_load_dwordx2 {vr(XS+8,2)}, v13, s[16:19], s43 offen")
    e(f"s_mul_i32 s32, s3, {10*1024}\ns_add_u32 s26, s24, s32\ns_add_u32 s27, s26, {136*1024}")
    e("v_and_b32 v14, 1, v1\nv_lshlrev_b32 v14, 7, v14")
    e(f"s_lshl_b32 s32, s9, 3\ns_lshl_b32 s33, s3, 1\ns_add_u32 s32, s32, s33\ns_lshl_b32 s32, s32, 7\ns_add_u32 s32, s32, {OF}")
    e("s_mul_i32 s34, s40, 10240\ns_lshl_b32 s33, s41, 12\ns_add_u32 s33, s33, s34\nv_add_u32 v15, s33, v2")
    e("s_lshl_b32 s33, s41, 10\ns_add_u32 s33, s33, s34\ns_add_u32 s33, s33, 8192\nv_add_u32 v18, s33, v2")
    bstamp(k, "dn1")
    if ONLY != "B": spin(k, hl, [16], 17)
    else: e("s_waitcnt vmcnt(0)")
    bstamp(k, "of")
    for g in range(5): emit(k, issueX2(g))
    for t in range(10):
        g, ks = t >> 1, t & 1
        e(f"s_waitcnt vmcnt({18 - 2*t}) lgkmcnt({3 if t < 9 else 0})")
        emit(k, mfmas2(t & 1, g, ks))
        if t + 2 < 10: emit(k, reads2(t & 1, ((t+2) >> 1) % 4, (t+2) & 1))
    bstamp(k, "mm")
    for b in range(2):
        for q in range(10):
            e(f"ds_write_b128 v10, {vr(ACC+48*b+4*q,4)} offset:{(10*b+q)*1024}")
    e("s_waitcnt lgkmcnt(0)\ns_barrier")
    R = 128
    for w in range(4):
        for q in range(4):
            e(f"ds_read_b128 {vr(R+20*w+4*q,4)}, v15 offset:{w*SLOT + q*1024}")
        e(f"ds_read_b128 {vr(R+20*w+16,4)}, v18 offset:{w*SLOT}")
    for j in range(10):
        e(f"v_lshlrev_b32 v{ACC+2*j}, 16, v{XS+j}\nv_and_b32 v{ACC+2*j+1}, 0xffff0000, v{XS+j}")
    for w in range(4):
        e(f"s_waitcnt lgkmcnt({15-5*w})")
        for j in range(0, 20, 2):
            e(f"v_pk_add_f32 {vr(ACC+j,2)}, {vr(ACC+j,2)}, {vr(R+20*w+j,2)}")
    for j in range(10):
        e(f"v_cvt_pk_bf16_f32 v{XS+j}, v{ACC+2*j}, v{ACC+2*j+1}")
    bstamp(k, "rd")
    e(f"buffer_store_dwordx4 {vr(XS,4)}, v12, s[36:39], s43 offen")
    e(f"buffer_store_dwordx4 {vr(XS+4,4)}, v12, s[36:39], s43 offen offset:16")
    e(f"buffer_store_dwordx2 {vr(XS+8,2)}, v13, s[36:39], s43 offen")
    stamp_dump(k, 0, 9, "s2", PWS)
    e("s_endpgm")

def w160_voffs(k, dst, t):
    e = k.e
    for i in range(5):
        e(f"v_add_u32 v{t}, {64*i}, v1\nv_mul_u32_u24 v{t+1}, 6554, v{t}\nv_lshrrev_b32 v{t+1}, 16, v{t+1}")
        e(f"v_mul_u32_u24 v{t+2}, 10, v{t+1}\nv_sub_u32 v{t+2}, v{t}, v{t+2}")
        e(f"v_and_b32 v{t}, 24, v{t+1}\nv_bfe_u32 v{t+3}, v{t+1}, 1, 2\nv_add_u32 v{t}, v{t}, v{t+3}\nv_and_b32 v{t+3}, 1, v{t+1}\nv_lshl_add_u32 v{t}, v{t+3}, 2, v{t}")
        e(f"v_mul_u32_u24 v{t}, 1280, v{t}\nv_lshl_add_u32 v{dst+i}, v{t+2}, 4, v{t}")

def roleA(k):
    e = k.e
    KVSLOT = 24576; KV0 = 8192
    QS = 20480; QX = 10240
    S0, S1 = 32, 48; SA = 64
    Q = [16, 24]; O = [144, 160]; P = [96, 104]; KVB = [112, 128]; KT = 176
    KL = lambda s: KVB[s]; KH = lambda s: KVB[s]+4; V0 = lambda s: KVB[s]+8; V1 = lambda s: KVB[s]+12
    AKL, AKH, AV, BKH, BV = 8, 9, 10, 11, 12
    WV = 16; XV = 21; RB = 24; ONES = 28
    FRG = 80
    AO2 = 241; RB2 = 224
    stamp(k, 0)
    e("s_bfe_u32 s8, s2, 0x20001\ns_lshl_b32 s8, s8, 3\ns_lshr_b32 s9, s2, 5\ns_add_u32 s8, s8, s9")
    e("s_and_b32 s9, s2, 1\ns_lshl_b32 s9, s9, 2\ns_bfe_u32 s32, s2, 0x20003\ns_add_u32 s9, s9, s32")
    e("s_add_u32 s11, s8, s9\ns_mul_i32 s11, s11, 3\ns_mul_i32 s32, s11, 205\ns_lshr_b32 s32, s32, 11\ns_mul_i32 s32, s32, 10\ns_sub_u32 s11, s11, s32")
    x_voffs(k, XV, 3)
    w160_voffs(k, WV, 3)
    Lw = k.newlabel("wrole")
    e(f"s_mul_i32 s12, s3, 40960\ns_mul_i32 s32, s9, 160\ns_add_u32 s12, s12, s32\ns_mov_b32 s13, {64*1280}")
    e("s_waitcnt lgkmcnt(0)")
    srd_from(k, 20, PWQ, NBYTES['wq'])
    e(f"s_cmp_lt_u32 s3, 2\ns_cbranch_scc1 {Lw}")
    for i in range(4): e(f"v_add_u32 v{WV+i}, {10240*i}, v{XV+(i&1)}")
    e(f"v_mov_b32 v{WV+4}, {HUGE}")
    e("s_lshl_b32 s33, s8, 1\ns_add_u32 s33, s33, s3\ns_sub_u32 s33, s33, 2\ns_mul_i32 s12, s33, 40960\ns_mov_b32 s13, 128")
    srd_from(k, 20, PX, NBYTES['x'])
    k.label(Lw)
    e("s_mul_i32 s34, s11, s13\ns_add_u32 s34, s34, s12\ns_mul_i32 s35, s13, 10\ns_add_u32 s35, s35, s12\ns_mul_i32 s14, s3, 5120")
    def st_issue(slot):
        L = [[f"s_add_u32 m0, s14, {slot*QS}"]]
        for i in range(5):
            g = [f"buffer_load_dwordx4 v{WV+i}, s[20:23], s34 offen lds"]
            if i < 4: g += ["s_add_u32 m0, m0, 1024"]
            else: g += ["s_add_u32 s34, s34, s13", "s_cmp_eq_u32 s34, s35", "s_cselect_b32 s34, s12, s34"]
            L.append(g)
        return L
    tag_setup(k)
    srd_from(k, 24, PWS, KV_BYTES, KV_OFF)
    srd_from(k, 28, PWS, AF_BYTES, AF_OFF)
    e("v_lshrrev_b32 v6, 5, v1")
    e("v_bfe_u32 v7, v1, 2, 2\nv_lshl_add_u32 v7, v6, 2, v7\nv_mul_u32_u24 v4, 320, v7")
    e("v_and_b32 v7, 1, v1\nv_lshlrev_b32 v7, 4, v7")
    e("v_bfe_u32 v8, v1, 1, 1\nv_lshl_add_u32 v7, v8, 3, v7")
    e("v_and_b32 v8, 16, v1\nv_cmp_ne_u32 vcc, 0, v8\nv_mov_b32 v8, 32\nv_cndmask_b32 v7, v7, v8, vcc")
    e("v_add_u32 v4, v4, v7\ns_mul_i32 s32, s3, 40\nv_add_u32 v4, s32, v4")
    e("v_and_b32 v8, 19, v1\nv_cmp_lt_u32 vcc, 16, v8\nv_mov_b32 v8, 0x40000\nv_cndmask_b32 v4, v4, v8, vcc")
    e("v_add_u32 v5, 40960, v4")
    x_raddr(k, RB, 7, str(QX))
    for j in range(4): e(f"v_mov_b32 v{ONES+j}, 0x3f803f80")
    e(f"v_and_b32 v7, 31, v1\nv_lshlrev_b32 v{BKH}, 3, v7\nv_add_u32 v{BKH}, 1024, v{BKH}\nv_lshl_add_u32 v{BKH}, v6, 18, v{BKH}")
    e("v_and_b32 v13, 19, v7\nv_bfe_u32 v14, v7, 2, 1\nv_lshl_add_u32 v13, v14, 3, v13\nv_bfe_u32 v14, v7, 3, 1\nv_lshl_add_u32 v13, v14, 2, v13")
    e(f"v_mul_u32_u24 v{BV}, 24, v6\nv_add_u32 v{BV}, v{BV}, v13")
    e("v_cmp_le_u32 vcc, 28, v7\nv_cndmask_b32 v13, 0, 1, vcc\nv_xor_b32 v13, v13, v6\nv_mul_u32_u24 v13, 24, v13\nv_add_u32 v13, 20, v13")
    e("v_and_b32 v15, 27, v7\nv_cmp_ne_u32 vcc, 24, v15\nv_mov_b32 v15, 0x4000\nv_cndmask_b32 v13, v13, v15, vcc")
    e(f"v_cmp_le_u32 vcc, 20, v7\nv_cndmask_b32 v{BV}, v{BV}, v13, vcc")
    e(f"v_lshlrev_b32 v{BV}, 4, v{BV}\nv_add_u32 v{BV}, 1536, v{BV}")
    c0 = KV0 + 2*KVSLOT
    e(f"v_add_u32 v{AKL}, {c0}, v2\nv_add_u32 v{AKH}, {c0}, v{BKH}\nv_add_u32 v{AV}, {c0}, v{BV}")
    e(f"s_lshr_b32 s32, s3, 1\ns_lshl_b32 s32, s32, 9\ns_and_b32 s33, s3, 1\ns_lshl_b32 s33, s33, 3\ns_add_u32 s32, s32, s33")
    e(f"v_lshl_add_u32 v{AO2}, v7, 4, s32\nv_lshl_add_u32 v{AO2}, v6, 30, v{AO2}")
    e("v_lshlrev_b32 v13, 7, v7\nv_lshlrev_b32 v14, 3, v7")
    e(f"s_lshl_b32 s39, s8, 9\ns_add_u32 s39, s39, {STAT}\ns_lshl_b32 s38, s3, 12\ns_add_u32 s38, s38, {KVF}\ns_mul_i32 s36, s3, 6144")
    for t in range(4): e(f"v_mov_b32 v{KT+8*t+6}, 0\nv_mov_b32 v{KT+8*t+7}, 0")
    for j in range(4): e(f"v_add_u32 v{RB2+j}, 40960, v{RB+j}")
    if ADLY == 2: tag_finish(k)
    for sl in range(2): emit(k, st_issue(sl))
    if ADLY != 2: tag_finish(k)
    stamp(k, 1)
    def kv_issue(chunk_soff, slot_base):
        L = []
        for half in range(2):
            L.append([f"s_add_u32 m0, s36, {slot_base + half*3072}", f"s_add_u32 s32, s36, {chunk_soff + half*3072}"])
            for j in range(3):
                L.append([f"buffer_load_dwordx4 v2, s[24:27], s32 offen offset:{j*1024} {SC} lds"])
        return L
    PL = 232
    kv_poll = [f"buffer_load_dword v{PL}, v13, {FL}, s38 offen {SC}"]
    pl_loads = [f"buffer_load_dwordx2 {vr(PL+2,2)}, v14, {FL}, s39 offen {SC}", f"buffer_load_dwordx2 {vr(PL+4,2)}, v14, {FL}, s39 offen offset:256 {SC}"]
    inits = []
    for j in range(8): inits += [(P[1]+j, "0"), (V0(1)+j, "0")]
    for s_ in range(2): inits += [(KH(s_)+2, "0x3f80"), (KH(s_)+3, "0")]
    for j in range(32): inits += [(O[0]+j, "0")]
    inits.sort()
    def hreads(h):
        sl = h % 4; F = FRG + 48*(h & 1); L = []
        so = (sl & 1) * QS; ta = "v5" if sl >= 2 else "v4"; rb = RB2 if sl >= 2 else RB
        for ks in range(4):
            for u in range(2): L.append(f"ds_read_b64_tr_b16 {vr(F+12*ks+2*u,2)}, {ta} offset:{so + ks*2560 + u*160}")
            for b in range(2): L.append(f"ds_read_b128 {vr(F+12*ks+4+4*b,4)}, v{rb+ks} offset:{so + b*5120}")
        return L
    e("s_waitcnt vmcnt(5)\ns_barrier")
    stamp(k, 2)
    emit(k, hreads(0))
    emit(k, st_issue(2))
    for h in range(10):
        F = FRG + 48*(h & 1)
        if h < 9:
            n = {0: 5, 7: 5, 8: 0}.get(h, 10)
            e(f"s_waitcnt vmcnt({n}) lgkmcnt(0)")
        else:
            e("s_waitcnt lgkmcnt(0)")
        if h < 9: e("s_barrier")
        rd = hreads(h+1) if h < 9 else []
        dm = st_issue(h % 4) if h < 6 else []
        if h == 0: dm = st_issue(3) + dm
        if h == 8: dm = [pl_loads]
        if h == 9: dm = [kv_poll]
        i = 0
        for ks in range(4):
            first = (h == 0 and ks == 0)
            for acc, bop in ((S0, F+12*ks+4), (S1, F+12*ks+8), (SA, ONES)):
                e(f"{MF} {vr(acc,16)}, {vr(F+12*ks,4)}, {vr(bop,4)}, {'0' if first else vr(acc,16)}")
                emit(k, rd[:2]); rd = rd[2:]
                if dm and (i >= 3 or h in (0, 9)): emit(k, dm.pop(0))
                if h == 9:
                    m = 0
                    while inits and m < 3 and inits[0][0] < F + 12*ks:
                        r, v = inits.pop(0); e(f"v_mov_b32 v{r}, {v}"); m += 1
                i += 1
        emit(k, dm)
    stamp(k, 3)
    for r, v in inits: e(f"v_mov_b32 v{r}, {v}")
    spin(k, pl_loads, [PL+3, PL+5], 15, pre_issued=True)
    for b in range(2):
        st = PL + 2 + 2*b
        e(f"v_lshlrev_b32 v{238+b}, 16, v{st}\nv_xor_b32 v{238+b}, 0x80000000, v{238+b}\nv_and_b32 v{st}, 0xffff0000, v{st}")
        e(f"v_rcp_f32 v{st}, v{st}\nv_mul_f32 v{st}, {hex(f32bits(QSCALE))}, v{st}")
    def qepi(b):
        L = []; a = S0 + 16*b
        for j in range(12): L.append(f"v_fmac_f32 v{a+j}, v{238+b}, v{SA+j}")
        for j in range(12): L.append(f"v_mul_f32 v{a+j}, v{PL+2+2*b}, v{a+j}")
        for j in range(6): L.append(f"v_cvt_pk_bf16_f32 v{Q[b]+j}, v{a+2*j}, v{a+2*j+1}")
        L += [f"v_mov_b32 v{Q[b]+6}, 0", f"v_mov_b32 v{Q[b]+7}, 0"]
        return L
    MX = [3, 5]
    sxr = lambda b, t: [[80, 32, 80, 32], [208, 64, 208, 64]][b][t]
    def mx(b, t):
        S = sxr(b, t)
        L = [f"v_max3_f32 v{MX[b]}, v{S}, v{S+1}, v{S+2}", f"v_max_f32 v{MX[b]}, v{MX[b]}, v{S+3}"] if t == 0 else []
        for j in range(4 if t == 0 else 0, 16, 2): L.append(f"v_max3_f32 v{MX[b]}, v{MX[b]}, v{S+j}, v{S+j+1}")
        return L
    def qk(b, t):
        S = sxr(b, t)
        return [f"{MF} {vr(S,16)}, {vr(KT+8*t,4)}, {vr(Q[b],4)}, 0", f"{MF} {vr(S,16)}, {vr(KT+8*t+4,4)}, {vr(Q[b]+4,4)}, {vr(S,16)}"]
    def fin(b, offs):
        L = [f"v_mov_b32 v15, v{MX[b]}", f"v_permlane32_swap_b32 v{MX[b]}, v15", f"v_max_f32 v{MX[b]}, v{MX[b]}, v15"]
        if offs: L.append(f"v_add_f32 v{MX[b]}, {hex(f32bits(offs))}, v{MX[b]}")
        L += [f"v_cvt_pk_bf16_f32 v{MX[b]}, -v{MX[b]}, 0", "v_cmp_ne_u32 vcc, 0, v6", f"v_cndmask_b32 v{Q[b]+6}, v{MX[b]}, 0, vcc"]
        return L
    def weave(mfs, vals, per):
        for m in mfs:
            e(m)
            for _ in range(per):
                if vals: e(vals.pop(0))
        for v in vals: e(v)
    emit(k, qepi(0)); emit(k, qepi(1))
    e(f"s_mov_b32 s40, 0\ns_mov_b32 s41, {KV0}\ns_add_u32 s35, s36, {KV0}\ns_add_u32 s42, s35, {KVSLOT}\ns_add_u32 s43, s36, {2*KVSLOT}\ns_add_u32 s39, s35, {3*KVSLOT}")
    e(f"s_lshr_b32 s32, s9, 1\ns_mul_i32 s32, s32, 10\ns_mul_i32 s33, s8, 272\ns_add_u32 s32, s32, s33\ns_and_b32 s33, s9, 1")
    e("s_add_u32 s16, s32, s33\ns_add_u32 s16, s16, 8\ns_lshl_b32 s16, s16, 10")
    e("s_lshl_b32 s33, s33, 2\ns_add_u32 s12, s32, s33\ns_add_u32 s12, s12, s3\ns_lshl_b32 s12, s12, 10")
    e(f"s_add_u32 s13, s12, {136*1024}\ns_add_u32 s17, s16, {136*1024}")
    e(f"s_lshl_b32 s14, s8, 3\ns_add_u32 s14, s14, s9\ns_lshl_b32 s14, s14, 7\ns_add_u32 s14, s14, {OF}")
    for j in range(4): e(f"v_mov_b32 v{S1+12+j}, 0")
    stamp(k, 4)
    spin(k, kv_poll, [PL], 15, pre_issued=True, slp=KSL)
    e("s_barrier")
    stamp(k, 5)
    e("s_mov_b32 s33, 6144")
    for t in range(4):
        so, off = ("0", t*3072) if t < 2 else ("s33", (t-2)*3072)
        e(f"buffer_load_dwordx4 {vr(KT+8*t,4)}, v2, s[24:27], {so} offen offset:{off} {SC}")
        e(f"buffer_load_dwordx2 {vr(KT+8*t+4,2)}, v{BKH}, s[24:27], {so} offen offset:{off} {SC}")
    emit(k, kv_issue(0, KV0 + 2*KVSLOT))
    kv1 = kv_issue(KVSLOT, KV0)
    e("s_waitcnt vmcnt(12)")
    weave(qk(0, 0) + qk(1, 0), [], 0)
    e("s_waitcnt vmcnt(10)")
    weave(qk(0, 1) + qk(1, 1), mx(0, 0) + mx(1, 0), 4)
    e("s_waitcnt vmcnt(8)")
    weave(qk(0, 2) + qk(1, 2), mx(0, 1) + mx(1, 1), 4)
    e("s_waitcnt vmcnt(6)")
    weave(qk(0, 3) + qk(1, 3), mx(0, 2) + mx(1, 2), 4)
    e("s_waitcnt vmcnt(0)\ns_barrier")
    for s in range(2):
        e(f"ds_read_b128 {vr(KL(s),4)}, v{AKL} offset:{s*3072}\nds_read_b64 {vr(KH(s),2)}, v{AKH} offset:{s*3072}")
    e(f"ds_read_b128 {vr(V0(0),4)}, v{AV}\nds_read_b128 {vr(V1(0),4)}, v{AV} offset:768")
    emit(k, mx(0, 3) + fin(0, OFFS))
    e("s_waitcnt lgkmcnt(0)")
    weave([f"{MF} {vr(S0,16)}, {vr(KL(0),4)}, {vr(Q[0],4)}, 0", f"{MF} {vr(S0,16)}, {vr(KH(0),4)}, {vr(Q[0]+4,4)}, {vr(S0,16)}"],
          mx(1, 3) + fin(1, OFFS), 6)
    emit(k, kv1)
    dma = lambda so, off: f"buffer_load_dwordx4 v2, s[24:27], {so} offen offset:{off} {SC} lds"
    extra = {(1, 0): ["s_mov_b32 m0, s42"], (1, 1): ["s_add_u32 s38, s43, 4096"], (1, 3): ["s_waitcnt vmcnt(0)", "s_barrier"],
             (2, 3): [dma("s43", 0), dma("s43", 1024)], (3, 3): [dma("s43", 2048), dma("s43", 3072)],
             (4, 0): ["s_add_u32 m0, s42, 4096"], (4, 3): [dma("s38", 0), dma("s38", 1024)],
             (5, 0): [f"s_add_u32 s43, s43, {KVSLOT}"], (5, 1): ["s_add_u32 s40, s40, 1"], (5, 2): [f"s_add_u32 s37, s42, {KVSLOT}"],
             (6, 0): ["s_cmp_eq_u32 s37, s39"], (6, 1): ["s_cselect_b32 s37, s35, s37"],
             (7, 0): ["s_sub_u32 s41, s42, s36"], (7, 1): ["s_mov_b32 s42, s37"],
             (7, 2): ["s_cmp_lt_u32 s40, 8"]}
    e("s_setprio 1")
    stamp(k, 6)
    stamp(k, 7)
    Lloop = k.newlabel("att")
    k.label(Lloop, 6)
    def cv(S, Pb, g):
        return [f"v_cvt_pk_bf16_f32 v{Pb+2*g}, v{S+4*g}, v{S+4*g+1}", f"v_cvt_pk_bf16_f32 v{Pb+2*g+1}, v{S+4*g+2}, v{S+4*g+3}"]
    for jj in range(8):
        for blk in range(2):
            Sc, Sn = (S0, S1) if blk == 0 else (S1, S0)
            valu = []
            for g in range(4):
                for j in range(4): valu.append(f"v_exp_f32{E64} v{Sc+4*g+j}, v{Sc+4*g+j}")
                valu += cv(Sn, P[1-blk], 3) if g == 0 else cv(Sc, P[blk], g-1)
            ks = (jj + blk) & 1; vs = (jj - 1 + blk) & 1; nb = 1 - blk
            ko = ((jj + 2) % 8) * 3072; vo = ((jj + 1) % 8) * 3072
            mf = [[f"{MF} {vr(O[nb],16)}, {vr(V0(vs),4)}, {vr(P[nb],4)}, {vr(O[nb],16)}"],
                  [f"{MF} {vr(Sn,16)}, {vr(KL(ks),4)}, {vr(Q[nb],4)}, 0"],
                  [f"{MF} {vr(Sn,16)}, {vr(KH(ks),4)}, {vr(Q[nb]+4,4)}, {vr(Sn,16)}"],
                  [f"{MF} {vr(O[nb],16)}, {vr(V1(vs),4)}, {vr(P[nb]+4,4)}, {vr(O[nb],16)}"]]
            if blk == 0:
                mf[2].append("s_waitcnt lgkmcnt(0)")
                mf[3].append(f"ds_read_b128 {vr(KL(ks),4)}, v{AKL} offset:{ko}")
                mf[3].append(f"ds_read_b64 {vr(KH(ks),2)}, v{AKH} offset:{ko}")
            else:
                mf[3].append(f"ds_read_b128 {vr(V0(1-vs),4)}, v{AV} offset:{vo}")
                mf[3].append(f"ds_read_b128 {vr(V1(1-vs),4)}, v{AV} offset:{vo+768}")
                if jj == 5: valu.append(f"v_add_u32 v{AKL}, s41, v2"); valu.append(f"v_add_u32 v{AKH}, s41, v{BKH}")
                if jj == 6: valu.append(f"v_add_u32 v{AV}, s41, v{BV}")
                for m in range(4): mf[m] += extra.get((jj, m), [])
            for i, v in enumerate(valu):
                for m in range(4):
                    if PATTERN[m] == i: emit(k, mf[m])
                e(v)
    e(f"s_cbranch_scc1 {Lloop}")
    emit(k, cv(S1, P[1], 3))
    e(f"{MF} {vr(O[1],16)}, {vr(V0(1),4)}, {vr(P[1],4)}, {vr(O[1],16)}")
    e(f"{MF} {vr(O[1],16)}, {vr(V1(1),4)}, {vr(P[1]+4,4)}, {vr(O[1],16)}")
    stamp(k, 8)
    e("s_mov_b32 s40, 0\ns_setprio 3")
    Lout = k.newlabel("out"); Lslow = k.newlabel("slow"); Lpub = k.newlabel("pub")
    k.label(Lout)
    PK = 224; A0 = 208
    for b in range(2):
        e(f"v_rcp_f32 v{A0+b}, v{O[b]+12}")
        for j in range(12): e(f"v_mul_f32 v{O[b]+j}, v{O[b]+j}, v{A0+b}")
        for j in range(6): e(f"v_cvt_pk_bf16_f32 v{PK+8*b+j}, v{O[b]+2*j}, v{O[b]+2*j+1}")
        e(f"buffer_store_dwordx4 {vr(PK+8*b,4)}, v2, s[28:31], s{12+b} offen {SC}")
        e(f"buffer_store_dwordx2 {vr(PK+8*b+4,2)}, v{AO2}, s[28:31], s{16+b} offen {SC}")
    e(f"v_mul_f32 v{A0+2}, 0, v{O[0]+12}\nv_mul_f32 v{A0+3}, 0, v{O[1]+12}")
    for j in range(12):
        for b in range(2): e(f"v_fma_f32 v{A0+2+b}, v{O[b]+j}, 0, v{A0+2+b}")
    e(f"v_cmp_u_f32 vcc, v{A0+2}, v{A0+3}")
    e(f"s_cmp_lg_u32 s40, 0\ns_cbranch_scc1 {Lpub}")
    e(f"s_cmp_lg_u64 vcc, 0\ns_cbranch_scc1 {Lslow}")
    k.label(Lpub)
    e("s_waitcnt vmcnt(0)\ns_barrier")
    setflag(k, "s14", 16)
    Lx = k.newlabel("axit")
    e(f"s_or_b32 s32, s2, s3\ns_cmp_lg_u32 s32, 0\ns_cbranch_scc1 {Lx}")
    e(f"v_lshlrev_b32 v13, 7, v1")
    ld = []
    for i in range(8): ld += [f"s_mov_b32 s38, {HF + 8192*i}", f"buffer_load_dword v{16+i}, v13, {FL}, s38 offen {SC}"]
    if not ONLY: spin(k, ld, list(range(16, 24)), 24)
    setflag(k, "0", 16)
    k.label(Lx)
    stamp_dump(k, 1, 9, "s2", PWS)
    e("s_endpgm")
    k.label(Lslow)
    e("s_waitcnt vmcnt(0) lgkmcnt(0)")
    e(f"s_mov_b32 s40, 1\ns_mov_b32 s41, 0\nv_mov_b32 v{Q[0]+6}, 0\nv_mov_b32 v{Q[1]+6}, 0")
    e(f"v_mov_b32 v{MX[0]}, 0xff800000\nv_mov_b32 v{MX[1]}, 0xff800000")
    def kload():
        e(f"buffer_load_dwordx4 {vr(KL(0),4)}, v2, s[24:27], s41 offen {SC}")
        e(f"buffer_load_dwordx2 {vr(KH(0),2)}, v{BKH}, s[24:27], s41 offen {SC}")
    def qk2():
        for b in range(2):
            S = S0 + 16*b
            e(f"{MF} {vr(S,16)}, {vr(KL(0),4)}, {vr(Q[b],4)}, 0\n{MF} {vr(S,16)}, {vr(KH(0),4)}, {vr(Q[b]+4,4)}, {vr(S,16)}")
    L1 = k.newlabel("sl1"); k.label(L1)
    kload(); e("s_waitcnt vmcnt(0)"); qk2()
    for b in range(2):
        for j in range(0, 16, 2): e(f"v_max3_f32 v{MX[b]}, v{MX[b]}, v{S0+16*b+j}, v{S0+16*b+j+1}")
    e(f"s_add_u32 s41, s41, 3072\ns_cmp_lt_u32 s41, {KV_BYTES}\ns_cbranch_scc1 {L1}")
    for b in range(2): emit(k, fin(b, 0))
    for j in range(32): e(f"v_mov_b32 v{O[0]+j}, 0")
    e("s_mov_b32 s41, 0")
    L2 = k.newlabel("sl2"); k.label(L2)
    kload()
    e(f"buffer_load_dwordx4 {vr(V0(0),4)}, v{BV}, s[24:27], s41 offen {SC}")
    e(f"buffer_load_dwordx4 {vr(V1(0),4)}, v{BV}, s[24:27], s41 offen offset:768 {SC}")
    e("s_waitcnt vmcnt(0)"); qk2()
    for b in range(2):
        S = S0 + 16*b
        for j in range(16): e(f"v_exp_f32 v{S+j}, v{S+j}")
        for g in range(4): emit(k, cv(S, P[b], g))
        e(f"{MF} {vr(O[b],16)}, {vr(V0(0),4)}, {vr(P[b],4)}, {vr(O[b],16)}")
        e(f"{MF} {vr(O[b],16)}, {vr(V1(0),4)}, {vr(P[b]+4,4)}, {vr(O[b],16)}")
    e(f"s_add_u32 s41, s41, 3072\ns_cmp_lt_u32 s41, {KV_BYTES}\ns_cbranch_scc1 {L2}")
    e("s_nop 12")
    e(f"s_branch {Lout}")

def gen_mega(name="parallel_sum__grouped_kv_mqa__swiglu_ffn__prompt_kernel"):
    k = Kernel(name); e = k.e
    LA = k.newlabel("roleA"); LB = k.newlabel("roleB")
    e("s_load_dwordx16 s[48:63], s[0:1], 0\ns_load_dwordx8 s[64:71], s[0:1], 64")
    e("v_and_b32 v1, 63, v0\nv_lshrrev_b32 v2, 6, v0\nv_readfirstlane_b32 s3, v2\nv_lshlrev_b32 v2, 4, v1")
    e(f"s_cmp_lt_u32 s2, 256\ns_cbranch_scc1 {LB}\ns_cmp_lt_u32 s2, 512\ns_cbranch_scc1 {LA}\ns_endpgm")
    k.label(LB)
    e("s_setprio 3")
    roleB(k)
    k.label(LA, 6)
    if ONLY == "B": e("s_endpgm")
    e(f"s_sub_u32 s2, s2, 256\ns_setprio {AP0}")
    roleA(k)
    k.label(f"{k.name}_end")
    k.lds = 81920; k.grid = 512; k.block = 256
    return k

if __name__ == "__main__":
    import sys
    from build import emit as emit_file
    emit_file([gen_mega()], sys.argv[1] if len(sys.argv) > 1 else "parallel_sum__grouped_kv_mqa__swiglu_ffn__prompt.s")
```

```python
from asmgen import *
from common import KA, NBYTES, f32bits, srd_from, stamp, stamp_dump, STAMPS
import math, os

MF = "v_mfma_f32_32x32x16_bf16"
LOG2E = math.log2(math.e)
QSCALE = (20 ** -0.5) * LOG2E * float(os.environ.get("QEPS", 1.0))
env = lambda n, d: type(d)(os.environ.get(n, d))
OFFS = env('OFFS', 96.0)
PATTERN = [int(x) for x in env('APAT', '2,6,9,13').split(',')]
BST = env("BST", 0); ONLY = env("ONLY", "")
P0B = env("P0B", 14); PKD = env("PKD", 0); ADLY = env("ADLY", 2); E64 = env("E64", ""); TP = env("TP", 2); KSL = env("KSL", 4); BSL = env("BSL", 8); BP0 = env("BP0", 0); GP0 = env("GP0", 0); GP1 = env("GP1", 2); GSW = env("GSW", -1); CPF = env("CPF", 1); DP = env("DP", 0); AP0 = env("AP0", 2)
STAT = 0x1000; KVF = 0x5000; PKF = 0x800; HF = 0x9000; OF = 0x11000; XNF = 0x19000; FL_BYTES = 0x1D000
KV_OFF = 0x20000;  KV_BYTES = 64*3072
WP_OFF = 0x50000;  WP_BYTES = 8*136*2560
AF_OFF = 0x300000; AF_BYTES = 64*136*1024
XN_OFF = 0xC00000; XN_BYTES = 64*40*1024
PX, PWQ, PWK, PWV, PWO, PWG, PWU, PWD, POUT, PWS = 48, 50, 52, 54, 56, 60, 62, 64, 66, 70
TAG = "s73"; BUD = "s74"; FLS = 44; SC = "sc1"
FL = f"s[{FLS}:{FLS+3}]"
HUGE = "0x7ff00000"

def bstamp(k, name):
    m0 = dict(start=0, xl=1, xs=2, xf=3, p0=4, gu0=5, gu1=6, dn0=7, dn1=8)
    m1 = dict(start=0, p0=1, gu0=2, gu1=3, dn0=4, dn1=5, of=6, mm=7, rd=8)
    m = m1 if BST else m0
    if name in m: stamp(k, m[name])

def emit(k, lst):
    for x in lst:
        if isinstance(x, list): emit(k, x)
        else: k.e(x)

def spin(k, loads, regs, vt, pre_issued=False, slp=1):
    e = k.e
    Lp = k.newlabel("poll"); Ld = k.newlabel("pdone"); Lc = k.newlabel("pchk")
    if pre_issued: e(f"s_branch {Lc}")
    k.label(Lp)
    emit(k, loads)
    k.label(Lc)
    e("s_waitcnt vmcnt(0)")
    e(f"v_xor_b32 v{vt}, {TAG}, v{regs[0]}")
    for r in regs[1:]:
        e(f"v_xor_b32 v{r}, {TAG}, v{r}\nv_or_b32 v{vt}, v{vt}, v{r}")
    e(f"v_cmp_ne_u32 vcc, 0, v{vt}")
    e(f"s_cmp_eq_u64 vcc, 0\ns_cbranch_scc1 {Ld}")
    e(f"s_sub_u32 {BUD}, {BUD}, 1\ns_cbranch_scc1 {Ld}")
    e(f"s_sleep {slp}\ns_branch {Lp}")
    k.label(Ld)

def setflag(k, soffs, vt):
    e = k.e
    L = k.newlabel("nofl")
    e(f"s_cmp_lg_u32 s3, 0\ns_cbranch_scc1 {L}")
    e(f"v_mov_b32 v{vt}, {TAG}\nv_mov_b32 v{vt+1}, 0\ns_mov_b64 exec, 1")
    for so in (soffs if isinstance(soffs, list) else [soffs]):
        e(f"buffer_store_dword v{vt}, v{vt+1}, {FL}, {so} offen {SC}")
    e("s_mov_b64 exec, -1")
    k.label(L)

def tag_setup(k):
    k.e(f"s_load_dword s72, s[{PWS}:{PWS+1}], 0")
    srd_from(k, FLS, PWS, FL_BYTES)
    k.e(f"s_mov_b32 {BUD}, 200000")
def tag_finish(k):
    k.e(f"s_waitcnt lgkmcnt(0)\ns_mul_i32 {TAG}, s72, 1664525\ns_add_u32 {TAG}, {TAG}, 1013904223")

def x_voffs(k, dst, t):
    e = k.e
    e(f"v_lshrrev_b32 v{t}, 3, v1\nv_mul_u32_u24 v{t}, 1280, v{t}")
    e(f"v_and_b32 v{t+1}, 7, v1\nv_lshrrev_b32 v{t+2}, 4, v1\nv_xor_b32 v{t+1}, v{t+1}, v{t+2}")
    e(f"v_lshl_add_u32 v{dst}, v{t+1}, 4, v{t}\nv_xor_b32 v{dst+1}, 64, v{dst}")
def x_raddr(k, dst, t, base):
    e = k.e
    e(f"v_and_b32 v{t}, 31, v1\nv_bfe_u32 v{t+1}, v1, 1, 3\nv_lshrrev_b32 v{t+2}, 5, v1\nv_xor_b32 v{t+1}, v{t+1}, v{t+2}")
    e(f"v_lshlrev_b32 v{t}, 7, v{t}\nv_lshl_add_u32 v{t}, v{t+1}, 4, v{t}")
    for ks in range(4):
        e(f"v_xor_b32 v{t+1}, {ks*32}, v{t}\nv_add_u32 v{dst+ks}, {base}, v{t+1}")

def phase0(k, pre):
    e = k.e
    e("v_and_b32 v3, 15, v1\nv_lshrrev_b32 v4, 4, v1")
    e("s_mul_i32 s12, s4, 20480\ns_mul_i32 s13, s3, 320\ns_add_u32 s12, s12, s13")
    e("v_mul_u32_u24 v5, 1280, v3\nv_lshl_add_u32 v5, v4, 4, v5")
    e("s_mul_i32 s14, s3, 6400\ns_mul_i32 s15, s3, 14336")
    e("s_waitcnt lgkmcnt(0)")
    srd_from(k, 16, PX, NBYTES['x'])
    X = 16
    for i in range(5):
        e(f"buffer_load_dwordx4 {vr(X+4*i,4)}, v5, s[16:19], s12 offen offset:{64*i}")
    tag_setup(k)
    srd_from(k, 20, PWK, NBYTES['wk'])
    srd_from(k, 24, PWV, NBYTES['wv'])
    dm = []
    for m, srd in ((0, 20), (1, 24)):
        for j in range(7):
            g = []
            if j % 4 == 0: g += [f"s_add_u32 m0, s15, {m*7168 + j*1024}", f"s_add_u32 s37, s14, {j*1024}"]
            g.append(f"buffer_load_dwordx4 v2, s[{srd}:{srd+3}], s37 offen offset:{(j%4)*1024} lds")
            dm.append(g)
    emit(k, dm[:P0B]); dm = dm[P0B:]
    srd_from(k, 28, PWS, XN_BYTES, XN_OFF)
    srd_from(k, 32, PWS, KV_BYTES, KV_OFF)
    e("v_mov_b32 v8, 0\nv_mov_b32 v9, 0\nv_mov_b32 v10, 0\nv_mov_b32 v11, 0")
    e("s_mov_b32 s38, 0x3f803f80")
    LST = 57344; RED = LST + 512
    e(f"s_lshl_b32 s39, s3, 7\ns_add_u32 s39, s39, {LST}")
    e("v_lshl_add_u32 v12, v3, 3, s39\nv_lshlrev_b32 v13, 3, v3")
    e("v_lshrrev_b32 v14, 2, v3\nv_lshl_add_u32 v14, v4, 3, v14\nv_mul_u32_u24 v14, 40, v14")
    e("v_and_b32 v15, 3, v1\nv_lshl_add_u32 v14, v15, 3, v14\nv_add_u32 v14, s15, v14")
    e(f"s_lshl_b32 s36, s4, 7\ns_add_u32 s36, s36, {STAT}")
    e("s_lshr_b32 s40, s4, 1\ns_mul_i32 s41, s40, 40960\ns_and_b32 s42, s4, 1")
    e("s_lshl_b32 s43, s42, 8\ns_add_u32 s41, s41, s43\ns_mul_i32 s43, s3, 10240\ns_add_u32 s41, s41, s43")
    e("v_lshlrev_b32 v5, 9, v4\nv_lshl_add_u32 v5, v3, 4, v5")
    tag_finish(k)
    for i in range(5):
        e(f"s_waitcnt vmcnt({4 - i + 14 - len(dm)})")
        for d in range(4*i, 4*i+4):
            a = 8 + (d & 1); q = 10 + (d & 1)
            e(f"v_dot2_f32_bf16 v{a}, v{X+d}, s38, v{a}")
            e(f"v_dot2_f32_bf16 v{q}, v{X+d}, v{X+d}, v{q}")
        emit(k, dm[:2]); dm = dm[2:]
    bstamp(k, "xl")
    e("v_add_f32 v8, v8, v9\nv_add_f32 v9, v10, v11")
    for sw in ("v_permlane32_swap_b32", "v_permlane16_swap_b32"):
        e("v_mov_b32 v10, v8\nv_mov_b32 v11, v9")
        e(f"{sw} v8, v10\n{sw} v9, v11")
        e("v_add_f32 v8, v8, v10\nv_add_f32 v9, v9, v11")
    e("ds_write_b64 v12, v[8:9]")
    U = 96
    for d in range(20):
        e(f"v_lshlrev_b32 v{U+2*d}, 16, v{X+d}\nv_and_b32 v{U+2*d+1}, 0xffff0000, v{X+d}")
        if d == 1:
            e("s_waitcnt lgkmcnt(0)\ns_barrier")
            for w in range(4): e(f"ds_read_b64 {vr(36+2*w,2)}, v13 offset:{LST+128*w}")
    W = 136
    e("s_waitcnt lgkmcnt(0)")
    def wrd(i):
        for tl in range(4):
            m, n0 = tl >> 1, (tl & 1) * 16
            for u in range(2):
                e(f"ds_read_b64_tr_b16 {vr(W+16*i+4*tl+2*u,2)}, v14 offset:{m*7168 + i*1280 + u*160 + n0*2}")
    e("s_waitcnt vmcnt(0)")
    for i in range(5): wrd(i)
    e("v_add_f32 v8, v36, v38\nv_add_f32 v9, v37, v39\nv_add_f32 v10, v40, v42\nv_add_f32 v11, v41, v43")
    e("v_add_f32 v8, v8, v10\nv_add_f32 v9, v9, v11")
    inv = hex(f32bits(1.0/640))
    e(f"v_mul_f32 v8, {inv}, v8\nv_mul_f32 v9, {inv}, v9")
    e("v_fma_f32 v9, -v8, v8, v9\nv_max_f32 v9, 0, v9")
    e("v_cvt_pk_bf16_f32 v10, v8, v9")
    e("v_lshlrev_b32 v8, 16, v10\nv_and_b32 v9, 0xffff0000, v10")
    e(f"v_add_f32 v9, {hex(f32bits(1e-5))}, v9")
    e("v_cvt_pk_bf16_f32 v9, v9, v9\nv_and_b32 v9, 0xffff0000, v9")
    e("v_sqrt_f32 v9, v9")
    e("v_cvt_pk_bf16_f32 v6, v8, v9")
    e(f"v_mov_b32 v7, {TAG}\nv_and_b32 v9, 0xffff0000, v6")
    Lns = k.newlabel("nost")
    e(f"s_cmp_lg_u32 s3, 0\ns_cbranch_scc1 {Lns}")
    e(f"s_mov_b64 exec, 0xffff\nbuffer_store_dwordx2 v[6:7], v13, {FL}, s36 offen {SC}\ns_mov_b64 exec, -1")
    k.label(Lns)
    e("v_rcp_f32 v10, v9")
    e("v_mul_f32 v11, v8, v10")
    ACC = 44
    for i in range(5):
        for d in range(4*i, 4*i+4):
            u = U + 2*d
            e(f"v_fma_f32 v{u}, v{u}, v10, -v11\nv_fma_f32 v{u+1}, v{u+1}, v10, -v11")
        for d in range(4*i, 4*i+4):
            u = U + 2*d
            e(f"v_cvt_pk_bf16_f32 v{X+d}, v{u}, v{u+1}")
        if i == 0: e("s_waitcnt lgkmcnt(0)")
        if i >= 1:
            for tl in range(4):
                wf = vr(W+16*(i-1)+4*tl, 4); xf = vr(X+4*(i-1), 4); acc = vr(ACC+4*tl, 4)
                a, b = (wf, xf) if tl < 2 else (xf, wf)
                e(f"v_mfma_f32_16x16x32_bf16 {acc}, {a}, {b}, {'0' if i == 1 else acc}")
    for tl in range(4):
        wf = vr(W+64+4*tl, 4); xf = vr(X+16, 4); acc = vr(ACC+4*tl, 4)
        a, b = (wf, xf) if tl < 2 else (xf, wf)
        e(f"v_mfma_f32_16x16x32_bf16 {acc}, {a}, {b}, {acc}")
    bstamp(k, "xs")
    e(f"s_lshl_b32 s39, s3, 12\ns_add_u32 s39, s39, {RED}\nv_add_u32 v12, s39, v2")
    e(f"s_lshl_b32 s39, s3, 10\ns_add_u32 s39, s39, {RED}\nv_add_u32 v6, s39, v2")
    e("s_mul_i32 s39, s40, 3072")
    for tl in range(4):
        e(f"ds_write_b128 v12, {vr(ACC+4*tl,4)} offset:{tl*1024}")
    Lk1, Lv0, Lv1, Lst = (k.newlabel(x) for x in ("k1", "v0", "v1", "st"))
    e("v_lshl_add_u32 v7, s42, 4, v3")
    e("v_and_b32 v15, 1, v4\nv_lshrrev_b32 v11, 1, v4")
    e("s_mov_b64 s[24:25], 0")
    e(f"s_cmp_eq_u32 s3, 1\ns_cbranch_scc1 {Lk1}")
    e(f"s_cmp_eq_u32 s3, 2\ns_cbranch_scc1 {Lv0}")
    e(f"s_cmp_eq_u32 s3, 3\ns_cbranch_scc1 {Lv1}")
    e("v_lshl_add_u32 v12, v11, 5, v7\nv_lshlrev_b32 v12, 4, v12\nv_lshl_add_u32 v12, v15, 3, v12")
    e(f"s_branch {Lst}")
    k.label(Lk1)
    e("v_lshlrev_b32 v12, 3, v7\nv_add_u32 v12, 1024, v12")
    e("v_cmp_ne_u32 vcc, 0, v4\nv_mov_b32 v13, 0x7fffffff\nv_cndmask_b32 v12, v12, v13, vcc")
    e(f"s_branch {Lst}")
    k.label(Lv1)
    e("v_add_u32 v3, 16, v3")
    e("s_mov_b32 s24, 0x00100010\ns_mov_b32 s25, 0x00100010")
    e("v_cmp_lt_u32 vcc, 20, v3\nv_mov_b32 v13, 0x1000000\nv_cndmask_b32 v3, v3, v13, vcc")
    k.label(Lv0)
    e("s_mul_i32 s38, s42, 768\ns_add_u32 s38, s38, 1536")
    e("v_mul_u32_u24 v12, 384, v15\nv_lshl_add_u32 v12, v3, 4, v12\nv_lshl_add_u32 v12, v11, 3, v12\nv_add_u32 v12, s38, v12")
    k.label(Lst)
    e("v_mov_b32 v13, 0x3f803f80")
    e("s_waitcnt lgkmcnt(0)\ns_barrier")
    R = 60
    for w in range(4):
        e(f"ds_read_b128 {vr(R+4*w,4)}, v6 offset:{w*4096}")
    e("s_waitcnt lgkmcnt(0)")
    for j in range(4):
        e(f"v_add_f32 v{R+j}, v{R+j}, v{R+4+j}\nv_add_f32 v{R+8+j}, v{R+8+j}, v{R+12+j}\nv_add_f32 v{R+j}, v{R+j}, v{R+8+j}")
    e(f"v_cvt_pk_bf16_f32 v8, v{R}, v{R+1}\nv_cvt_pk_bf16_f32 v9, v{R+2}, v{R+3}")
    e("v_cndmask_b32 v8, v8, v13, s[24:25]\nv_cndmask_b32 v9, v9, v13, s[24:25]")
    e(f"buffer_store_dwordx2 v[8:9], v12, s[32:35], s39 offen {SC}")
    for i in range(5):
        if i in (2, 4): e("s_add_u32 s41, s41, 4096")
        e(f"buffer_store_dwordx4 {vr(X+4*i,4)}, v5, s[28:31], s41 offen offset:{(i%2)*2048} {SC}")
    bstamp(k, "xf")

def roleB(k):
    e = k.e
    SLOT = 20480
    GW, RA, RB = 216, 221, 224
    ACC = 32; FR = [176, 196]
    Lgu = k.newlabel("gu0"); Lpk = k.newlabel("pk")
    bstamp(k, "start")
    e("s_and_b32 s5, s2, 7\ns_lshr_b32 s6, s2, 3")
    def tile_ids():
        e("s_lshr_b32 s7, s5, 1\ns_lshl_b32 s7, s7, 2\ns_lshr_b32 s8, s6, 3\ns_add_u32 s7, s7, s8")
        e("s_and_b32 s9, s5, 1\ns_lshl_b32 s8, s9, 3\ns_and_b32 s10, s6, 7\ns_add_u32 s8, s8, s10\ns_lshl_b32 s11, s7, 1\ns_add_u32 s9, s9, s11")
    def gu_vsetup(t):
        e("s_and_b32 s11, s3, 2")
        for i in range(3):
            e(f"v_add_u32 v{t}, {64*i}, v1\nv_mul_u32_u24 v{t+1}, 5462, v{t}\nv_lshrrev_b32 v{t+1}, 16, v{t+1}")
            e(f"v_mul_u32_u24 v{t+2}, 12, v{t+1}\nv_sub_u32 v{t+2}, v{t}, v{t+2}\nv_xor_b32 v{t+2}, s11, v{t+2}")
            e(f"v_mul_u32_u24 v{t+1}, 3072, v{t+1}\nv_lshl_add_u32 v{GW+i}, v{t+2}, 4, v{t+1}")
    def gu_vsetup2(t):
        e(f"v_lshrrev_b32 v{t}, 5, v1\nv_bfe_u32 v{t+1}, v1, 2, 2\nv_lshl_add_u32 v{t+1}, v{t}, 3, v{t+1}\nv_mul_u32_u24 v{t+1}, 192, v{t+1}")
        e(f"v_and_b32 v{t+2}, 1, v1\nv_lshl_add_u32 v{t+1}, v{t+2}, 4, v{t+1}\nv_bfe_u32 v{t+2}, v1, 1, 1\nv_lshl_add_u32 v{t+1}, v{t+2}, 3, v{t+1}")
        e(f"v_bfe_u32 v{t+2}, v1, 4, 1\nv_mul_u32_u24 v{t+3}, 6144, v{t+2}\nv_add_u32 v{t+1}, v{t+1}, v{t+3}")
        e("s_lshr_b32 s11, s3, 1\ns_mul_i32 s11, s11, 3")
        for a in range(3):
            e(f"v_xor_b32 v{t+3}, s11, v{t+2}\nv_lshl_add_u32 v{RA+a}, v{t+3}, 5, v{t+1}\ns_add_u32 s11, s11, 1")
        e(f"s_and_b32 s11, s3, 1\ns_lshl_b32 s11, s11, 12\ns_add_u32 s11, s11, 12288\nv_add_u32 v{RB}, s11, v2")
        e(f"v_and_b32 v{RB+1}, 1, v1\nv_lshlrev_b32 v{RB+1}, 7, v{RB+1}")
    def zero_acc():
        for j in range(96): e(f"v_mov_b32 v{ACC+j}, 0")
    def gu_ssetup():
        e("s_lshr_b32 s38, s3, 1\ns_and_b32 s39, s3, 1\ns_mul_i32 s40, s38, 3")
        srd_from(k, 16, PWS, XN_BYTES, XN_OFF)
        e(f"s_cmp_eq_u32 s38, 0\ns_cselect_b32 s20, s{PWG}, s{PWU}\ns_cselect_b32 s21, s{PWG+1}, s{PWU+1}")
        e(f"s_mov_b32 s22, {hex(NBYTES['wg'])}\ns_mov_b32 s23, 0x20000")
        e("s_mul_i32 s12, s39, 49152\ns_mul_i32 s32, s8, 192\ns_add_u32 s12, s12, s32")
        e(f"s_lshl_b32 s32, s7, 2\ns_add_u32 s32, s32, s3\ns_mul_i32 s13, s32, 40960\ns_lshl_b32 s42, s32, 8\ns_add_u32 s42, s42, {XNF}")
        e("s_mul_i32 s14, s3, 3072\ns_lshl_b32 s15, s3, 11\ns_add_u32 s15, s15, 12288")
    def issueW(sl):
        return [[f"s_add_u32 m0, s14, {sl*SLOT}"],
                [f"buffer_load_dwordx4 v{GW}, s[20:23], s12 offen lds", "s_add_u32 m0, m0, 1024"],
                [f"buffer_load_dwordx4 v{GW+1}, s[20:23], s12 offen lds", "s_add_u32 m0, m0, 1024"],
                [f"buffer_load_dwordx4 v{GW+2}, s[20:23], s12 offen lds", f"s_add_u32 s12, s12, {32*3072}"]]
    def issueX(sl):
        return [[f"s_add_u32 m0, s15, {sl*SLOT}"],
                [f"buffer_load_dwordx4 v2, s[16:19], s13 offen {SC} lds"],
                [f"buffer_load_dwordx4 v2, s[16:19], s13 offen offset:1024 {SC} lds", "s_add_u32 s13, s13, 2048"]]
    e(f"s_cmp_ge_u32 s6, 16\ns_cbranch_scc1 {Lpk}")
    e("s_lshl_b32 s4, s5, 4\ns_add_u32 s4, s4, s6")
    def pre():
        tile_ids(); gu_vsetup(232); gu_vsetup2(232)
    phase0(k, pre)
    pre()
    gu_ssetup()
    e(f"s_lshl_b32 s36, s4, 7\ns_add_u32 s36, s36, {KVF}\ns_mov_b32 s11, {HUGE}\ns_mov_b32 s43, {HUGE}")
    e(f"s_add_u32 s35, s36, {XNF - KVF}")
    e("s_waitcnt vmcnt(5)\ns_barrier")
    setflag(k, "s36", 10)
    zero_acc()
    e("s_waitcnt vmcnt(0)\ns_barrier")
    setflag(k, "s35", 10)
    e(f"s_setprio {BP0}")
    for c in range(4): emit(k, issueW(c))
    e(f"s_branch {Lgu}")
    k.label(Lpk)
    e(f"s_setprio {BP0}")
    PKB = 2*SLOT; PD = 176
    if CPF:
        Lc = k.newlabel("nocp"); Lh = k.newlabel("here")
        e(f"s_cmp_lg_u32 s6, 31\ns_cbranch_scc1 {Lc}")
        e("s_getpc_b64 s[34:35]")
        k.label(Lh)
        e(f"s_sub_u32 s34, s34, {Lh}-{k.name}\ns_subb_u32 s35, s35, 0")
        e(f"v_lshlrev_b32 v9, 7, v0\nv_min_u32 v9, {k.name}_end-{k.name}-4, v9")
        e("global_load_dword v31, v9, s[34:35]")
        k.label(Lc)
    e("s_sub_u32 s4, s2, 128\ns_mul_i32 s33, s3, 320")
    for i in range(5):
        e(f"v_add_u32 v13, {64*i}, v1\nv_add_u32 v13, s33, v13\nv_mul_u32_u24 v{19+i}, 52429, v13\nv_lshrrev_b32 v{19+i}, 22, v{19+i}")
        e(f"v_mul_u32_u24 v14, 80, v{19+i}\nv_sub_u32 v14, v13, v14\nv_lshlrev_b32 v{24+i}, 4, v14")
    def pack_issue(first, lo=0):
        e("s_mul_i32 s32, s4, 241\ns_lshr_b32 s32, s32, 13\ns_mul_i32 s33, s32, 34\ns_sub_u32 s33, s4, s33")
        e("s_mul_i32 s34, s32, 384\ns_lshl_b32 s35, s33, 4\ns_add_u32 s34, s34, s35")
        e("s_mul_i32 s35, s32, 160\ns_mul_i32 s36, s33, 20\ns_add_u32 s36, s36, s35\ns_sub_u32 s36, s36, 480")
        e("s_mul_i32 s37, s33, 80\ns_add_u32 s37, s37, s35\ns_sub_u32 s37, s37, 2544")
        e("s_cmp_ge_u32 s33, 32\ns_cselect_b32 s36, s37, s36\ns_cselect_b32 s41, 16, 0")
        for i in range(5):
            e(f"v_lshrrev_b32 v13, 2, v{19+i}\nv_mul_u32_u24 v13, s41, v13\nv_add_u32 v13, v13, v{19+i}\nv_mul_u32_u24 v13, 1280, v13\nv_add_u32 v{3+i}, v13, v{24+i}")
        if first: e("s_waitcnt lgkmcnt(0)")
        e(f"s_cmp_ge_u32 s33, 24\ns_cselect_b32 s34, s36, s34\ns_cselect_b32 s24, s{PWO}, s{PWD}\ns_cselect_b32 s25, s{PWO+1}, s{PWD+1}")
        e(f"s_cselect_b32 s26, {hex(NBYTES['wo'])}, s26\ns_mov_b32 s27, 0x20000\ns_mul_i32 s34, s34, 1280")
        e(f"s_mul_i32 s35, s3, 5120\ns_add_u32 m0, s35, {PKB+lo}")
        for i in range(5):
            e(f"buffer_load_dwordx4 v{3+i}, s[24:27], s34 offen lds")
            if i < 4: e("s_add_u32 m0, m0, 1024")
    def pack_finish(lo=0):
        for c in range(2):
            for a in range(3):
                for u in range(2):
                    ad, off = ("v10", a*64) if a < 2 else ("v11", 0)
                    e(f"ds_read_b64_tr_b16 {vr(PD+12*c+4*a+2*u,2)}, {ad} offset:{lo + c*160 + off + u*5120}")
        e(f"s_mul_i32 s34, s3, {2*136*2560}\ns_mul_i32 s35, s4, 2560\ns_add_u32 s34, s34, s35\ns_add_u32 s35, s34, {136*2560}")
        for c in range(2):
            for a in range(3):
                e(f"s_waitcnt lgkmcnt({10 - 6*c - 2*a})")
                e(f"buffer_store_dwordx4 {vr(PD+12*c+4*a,4)}, {'v2' if a < 2 else 'v12'}, s[28:31], s{34+c} offen offset:{a*1024} {SC}")
    e(f"s_mov_b32 s26, {hex(NBYTES['wd'])}")
    pack_issue(True)
    L0 = k.newlabel("pk0")
    e(f"s_cmp_ge_u32 s4, 8\ns_cbranch_scc1 {L0}")
    e("s_add_u32 s4, s4, 128")
    pack_issue(False, SLOT)
    e("s_sub_u32 s4, s4, 128")
    k.label(L0)
    tag_setup(k)
    srd_from(k, 28, PWS, WP_BYTES, WP_OFF)
    e("v_lshrrev_b32 v8, 5, v1\nv_bfe_u32 v9, v1, 2, 2\nv_lshl_add_u32 v9, v8, 3, v9\nv_mul_u32_u24 v9, 1280, v9")
    e(f"s_mul_i32 s32, s3, 320\ns_add_u32 s32, s32, {PKB}\nv_add_u32 v9, s32, v9")
    e("v_and_b32 v16, 1, v1\nv_bfe_u32 v17, v1, 1, 1\nv_bfe_u32 v18, v1, 4, 1")
    e("v_lshl_add_u32 v10, v16, 5, v9\nv_lshl_add_u32 v10, v17, 3, v10\nv_lshl_add_u32 v10, v18, 4, v10")
    e("v_lshl_add_u32 v11, v16, 4, v9\nv_lshl_add_u32 v11, v17, 3, v11\nv_add_u32 v11, 128, v11\nv_lshl_add_u32 v11, v18, 18, v11")
    e("v_and_b32 v12, 15, v1\nv_lshlrev_b32 v12, 4, v12\nv_lshl_add_u32 v12, v8, 8, v12\nv_lshl_add_u32 v12, v18, 30, v12")
    pre()
    zero_acc()
    gu_ssetup()
    e(f"s_lshl_b32 s11, s4, 2\ns_add_u32 s11, s11, {PKF}\ns_mov_b32 s43, {HUGE}")
    tag_finish(k)
    e("s_waitcnt vmcnt(0)\ns_barrier")
    pack_finish()
    L1 = k.newlabel("pk1")
    e(f"s_cmp_ge_u32 s4, 8\ns_cbranch_scc1 {L1}")
    e(f"s_add_u32 s4, s4, 128\ns_add_u32 s43, s11, 512\ns_nop 2")
    pack_finish(SLOT)
    k.label(L1)
    for c in range(2): emit(k, issueW(c))
    e("s_barrier")
    for c in range(2, 4): emit(k, issueW(c))
    if STAMPS:
        for n in ("xl", "xs", "xf"): bstamp(k, n)
    k.label(Lgu)
    bstamp(k, "p0")
    srd_from(k, 28, PWS, AF_BYTES, AF_OFF)
    spin(k, [f"buffer_load_dword v16, v{RB+1}, {FL}, s42 offen {SC}"], [16], 17, slp=BSL)
    for c in range(4): emit(k, issueX(c))
    def reads(fs, sl, ks):
        L = [f"ds_read_b128 {vr(FR[fs]+12,4)}, v{RB} offset:{sl*SLOT + ks*1024}"]
        for a in range(3):
            for u in range(2):
                L.append(f"ds_read_b64_tr_b16 {vr(FR[fs]+4*a+2*u,2)}, v{RA+a} offset:{sl*SLOT + (16*ks+4*u)*192}")
            if a == 0: L.append(f"ds_read_b128 {vr(FR[fs]+16,4)}, v{RB} offset:{sl*SLOT + 2048 + ks*1024}")
        return L
    def mfmas(fs):
        return [f"{MF} {vr(ACC+16*(2*a+b),16)}, {vr(FR[fs]+4*a,4)}, {vr(FR[fs]+12+4*b,4)}, {vr(ACC+16*(2*a+b),16)}" for a in range(3) for b in range(2)]
    e("s_mov_b32 s42, 0")
    e("s_waitcnt vmcnt(0)\ns_barrier")
    setflag(k, ["s11", "s43"], 10)
    e(f"s_setprio {GP0}")
    bstamp(k, "gu0")
    if ONLY == "A":
        e("s_waitcnt vmcnt(0)"); stamp_dump(k, 0, 6, "s2", PWS); e("s_endpgm")
    emit(k, reads(0, 0, 0))
    L = k.newlabel("gu")
    k.label(L, 6)
    for sl in range(4):
        e("s_waitcnt lgkmcnt(0)")
        rd = reads(1, sl, 1); mf = mfmas(0)
        sh = [rd[0:2], rd[2:4], rd[4:6], rd[6:8], [], []]
        if sl == 0: sh[4] = ["s_cmp_ge_u32 s42, 4", f"s_cselect_b32 s13, {HUGE}, s13"]
        for i in range(6):
            e(mf[i]); emit(k, sh[i])
        if sl == 2 and GSW >= 0:
            Lt = k.newlabel("gsw")
            e(f"s_cmp_lg_u32 s42, {GSW}\ns_cbranch_scc1 {Lt}\ns_setprio {GP1}")
            k.label(Lt)
        e("s_waitcnt vmcnt(10) lgkmcnt(0)\ns_barrier")
        rd = reads(0, (sl+1) % 4, 0); mf = mfmas(1)
        iw = issueW(sl); ix = issueX(sl)
        sh = [rd[0:2] + iw[0], rd[2:4] + iw[1], rd[4:6] + iw[2], rd[6:8] + iw[3] + ix[0], ix[1], ix[2]]
        if sl == 3: sh[5] = sh[5] + ["s_add_u32 s42, s42, 1", "s_cmp_lt_u32 s42, 5"]
        for i in range(6):
            e(mf[i]); emit(k, sh[i])
    e(f"s_cbranch_scc1 {L}")
    e("s_setprio 2")
    e(f"s_mov_b32 s36, {PKF}\nv_min_u32 v4, 33, v1\nv_lshlrev_b32 v4, 4, v4\nv_lshrrev_b32 v8, 5, v1")
    st_loads = [f"buffer_load_dwordx4 v[16:19], v4, {FL}, s36 offen {SC}"]
    emit(k, st_loads)
    e(f"s_mul_i32 s14, s3, {SLOT}")
    srd_from(k, 20, PWS, WP_BYTES, WP_OFF)
    srd_from(k, 16, PX, NBYTES['x'])
    e(f"s_lshl_b32 s12, s10, 2\ns_add_u32 s12, s12, s3\ns_mul_i32 s12, s12, {34*2560}")
    e(f"s_lshl_b32 s32, s7, 1\ns_add_u32 s32, s32, s39\ns_mul_i32 s32, s32, 272\ns_mul_i32 s43, s8, 6\ns_add_u32 s32, s32, s43\ns_add_u32 s32, s32, s40\ns_add_u32 s32, s32, 40\ns_lshl_b32 s32, s32, 10")
    e(f"s_add_u32 s34, s32, {136*1024}\ns_mov_b32 s33, {hex(f32bits(-LOG2E))}")
    e("s_waitcnt lgkmcnt(0)")
    bstamp(k, "gu1")
    def issueW2(sl):
        L = [[f"s_add_u32 m0, s14, {sl*5120}", "s_add_u32 s33, s12, 4096"]]
        for i in range(4): L.append([f"buffer_load_dwordx4 v2, s[20:23], s12 offen offset:{i*1024} {SC} lds"])
        L[4].append("s_add_u32 m0, m0, 4096")
        L.append([f"buffer_load_dwordx4 v2, s[20:23], s33 offen {SC} lds", "s_add_u32 s12, s12, 5120"])
        return L
    T = 176
    for a in range(3):
        for b in range(2):
            g = ACC + 16*(2*a+b); u = g + 8
            for j in range(8): e(f"v_mul_f32 v{T+j}, s33, v{g+j}")
            for j in range(8): e(f"v_exp_f32 v{T+j}, v{T+j}")
            for j in range(8): e(f"v_mul_f32 v{g+j}, v{g+j}, v{u+j}")
            for j in range(8): e(f"v_add_f32 v{T+j}, 1.0, v{T+j}")
            for j in range(8): e(f"v_rcp_f32 v{T+j}, v{T+j}")
            for j in range(8): e(f"v_mul_f32 v{g+j}, v{g+j}, v{T+j}")
            for j in range(4): e(f"v_cvt_pk_bf16_f32 v{u+j}, v{g+2*j}, v{g+2*j+1}")
            e(f"buffer_store_dwordx4 {vr(u,4)}, v2, s[28:31], {'s34' if b else 's32'} offen offset:{a*1024} {SC}")
    wq_ = []
    assert not wq_
    e("v_add_u32 v10, s14, v2\nv_and_b32 v11, 15, v1\nv_lshlrev_b32 v11, 4, v11\nv_lshl_add_u32 v11, v8, 8, v11\nv_bfe_u32 v9, v1, 4, 1")
    e("v_lshl_add_u32 v7, v9, 30, v11\nv_lshl_add_u32 v11, v9, 18, v11\nv_add_u32 v11, s14, v11")
    e(f"s_lshl_b32 s35, s7, 4\ns_add_u32 s36, s35, s8\ns_lshl_b32 s36, s36, 7\ns_add_u32 s36, s36, {HF}")
    e(f"s_mul_i32 s24, s9, {272*1024}\ns_mul_i32 s32, s3, {24*1024}\ns_add_u32 s26, s24, s32\ns_add_u32 s26, s26, {40*1024}\ns_add_u32 s27, s26, {136*1024}")
    e("v_and_b32 v14, 3, v1\nv_lshlrev_b32 v14, 7, v14\nv_and_b32 v6, 1, v1\nv_lshlrev_b32 v6, 7, v6")
    e(f"s_lshl_b32 s32, s3, 2\ns_add_u32 s32, s32, s35\ns_lshl_b32 s32, s32, 7\ns_add_u32 s32, s32, {HF}")
    e("s_lshr_b32 s40, s3, 1\ns_and_b32 s41, s3, 1")
    e("s_lshl_b32 s34, s9, 1\ns_add_u32 s34, s34, s40\ns_mul_i32 s34, s34, 40960\ns_mul_i32 s33, s10, 160\ns_add_u32 s43, s34, s33")
    e("v_and_b32 v5, 31, v1\nv_mul_u32_u24 v5, 1280, v5")
    e("s_lshl_b32 s34, s41, 6\nv_lshl_add_u32 v12, v8, 5, v5\nv_add_u32 v12, s34, v12")
    e("s_lshl_b32 s34, s41, 3\ns_add_u32 s34, s34, 128\nv_lshl_add_u32 v13, v8, 4, v5\nv_add_u32 v13, s34, v13")
    e("s_mul_i32 s34, s40, 10240\ns_lshl_b32 s33, s41, 12\ns_add_u32 s33, s33, s34\nv_add_u32 v15, s33, v2")
    e("s_lshl_b32 s33, s41, 10\ns_add_u32 s33, s33, s34\ns_add_u32 s33, s33, 8192\nv_add_u32 v3, s33, v2")
    e(f"s_lshl_b32 s25, s9, 3\ns_lshl_b32 s33, s3, 1\ns_add_u32 s25, s25, s33\ns_lshl_b32 s25, s25, 7\ns_add_u32 s25, s25, {OF}")
    e(f"s_mul_i32 s33, s3, {10*1024}\ns_add_u32 s24, s24, s33")
    e(f"s_mov_b32 s33, s36\ns_mov_b32 s36, {PKF}")
    spin(k, st_loads, [16, 17, 18, 19], 20, pre_issued=True)
    e("s_barrier")
    setflag(k, "s33", 16)
    e(f"s_setprio {TP}")
    hl = [f"buffer_load_dword v16, v14, {FL}, s32 offen {SC}"]
    XS = 232; G4 = [20, 244]
    e(f"s_add_u32 s34, s12, {32*2560}\ns_add_u32 s35, s12, {33*2560}")
    for sl in range(4): emit(k, issueW2(sl))
    for ks in range(2):
        for a in range(3):
            e(f"buffer_load_dwordx4 {vr(G4[ks]+4*a,4)}, {'v2' if a < 2 else 'v7'}, s[20:23], s{34+ks} offen offset:{a*1024} {SC}")
    e(f"buffer_load_dwordx4 {vr(XS,4)}, v12, s[16:19], s43 offen")
    e(f"buffer_load_dwordx4 {vr(XS+4,4)}, v12, s[16:19], s43 offen offset:16")
    e(f"buffer_load_dwordx2 {vr(XS+8,2)}, v13, s[16:19], s43 offen")
    srd_from(k, 36, POUT, NBYTES['out'])
    spin(k, hl, [16], 17)
    XR = 128; FA = [208, 220]
    def issueX2(rs):
        L = []
        for ks in range(2):
            for b in range(2):
                L.append([f"buffer_load_dwordx4 {vr(XR+16*rs+8*ks+4*b,4)}, v2, s[28:31], s{26+b} offen offset:{ks*1024} {SC}"])
        L[3] += ["s_add_u32 s26, s26, 2048", "s_add_u32 s27, s27, 2048"]
        return L
    for g in range(4): emit(k, issueX2(g))
    def reads2(fs, sl, ks):
        return [f"ds_read_b128 {vr(FA[fs]+4*a,4)}, {'v10' if a < 2 else 'v11'} offset:{sl*5120 + ks*2560 + a*1024}" for a in range(3)]
    def mfmas2(fs, rs, ks, c0=False):
        return [f"{MF} {vr(ACC+16*(3*b+a),16)}, {vr(FA[fs]+4*a,4)}, {vr(XR+16*rs+8*ks+4*b,4)}, {'0' if c0 else vr(ACC+16*(3*b+a),16)}" for a in range(3) for b in range(2)]
    e(f"s_mov_b32 s42, 0\ns_setprio {DP}")
    emit(k, reads2(0, 0, 0))
    e("s_waitcnt vmcnt(14) lgkmcnt(0)")
    bstamp(k, "dn0")
    L = k.newlabel("dn"); Lm = k.newlabel("dnm")
    rd = reads2(1, 0, 1); mf = mfmas2(0, 0, 0, True)
    for i in range(6):
        e(mf[i]); emit(k, rd[i:i+1])
    e(f"s_waitcnt vmcnt(0)\ns_branch {Lm}")
    k.label(L, 6)
    for sl in range(4):
        e("s_waitcnt lgkmcnt(0)")
        rd = reads2(1, sl, 1); mf = mfmas2(0, sl, 0)
        sh = [rd[0:1], rd[1:2], rd[2:3], [], [], []]
        if sl == 0: sh[3] = ["s_cmp_eq_u32 s42, 2", f"s_cselect_b32 s26, {HUGE}, s26", f"s_cselect_b32 s27, {HUGE}, s27"]
        for i in range(6):
            e(mf[i]); emit(k, sh[i])
        if sl == 0: k.label(Lm)
        e("s_waitcnt vmcnt(18) lgkmcnt(0)")
        rd = reads2(0, (sl+1) % 4, 0); mf = mfmas2(1, sl, 1)
        iw = issueW2(sl); ix = issueX2(sl)
        sh = [rd[0:1] + iw[0], rd[1:2] + iw[1], rd[2:3] + iw[2], iw[3] + iw[4], iw[5], ix[0] + ix[1] + ix[2] + ix[3]]
        if sl == 3: sh[5] = sh[5] + ["s_add_u32 s42, s42, 1", "s_cmp_lt_u32 s42, 3"]
        for i in range(6):
            e(mf[i]); emit(k, sh[i])
    e(f"s_cbranch_scc1 {L}")
    e("s_setprio 2")
    emit(k, reads2(1, 0, 1))
    bstamp(k, "dn1")
    if ONLY != "B": spin(k, [f"buffer_load_dword v16, v6, {FL}, s25 offen {SC}"], [16], 17)
    else: e("s_waitcnt vmcnt(0)")
    bstamp(k, "of")
    for b in range(2):
        for t in range(10):
            if t % 4 == 0: e(f"s_add_u32 s26, s24, {b*136*1024 + t*1024}")
            e(f"buffer_load_dwordx4 {vr(XR+40*b+4*t,4)}, v2, s[28:31], s26 offen offset:{(t%4)*1024} {SC}")
    lds = ["n0"]*3 + ["n1"]*3
    wr = [f"ds_write_b128 v10, {vr(ACC+4*q,4)} offset:{q*1024}" for q in range(10)]
    for u in range(20):
        b, t = divmod(u, 10)
        n = 8*b + t
        if t < 8:
            last = max([i for i, x in enumerate(lds) if x == f"n{n}"], default=-1)
            lds = lds[last+1:]
            e(f"s_waitcnt vmcnt({19-u}) lgkmcnt({min(15, len(lds))})")
            F = FA[n & 1]
        else:
            e(f"s_waitcnt vmcnt({19-u})")
            F = G4[t-8]
        for a in range(3):
            e(f"{MF} {vr(ACC+16*(3*b+a),16)}, {vr(F+4*a,4)}, {vr(XR+40*b+4*t,4)}, {vr(ACC+16*(3*b+a),16)}")
            if b == 1 and t >= 2 and wr and a < 2:
                e(wr.pop(0)); lds.append("w")
        if t < 8 and n + 2 < 16:
            t2 = (n + 2) % 8
            emit(k, reads2(n & 1, t2 >> 1, t2 & 1)); lds += [f"n{n+2}"]*3
    assert not wr
    bstamp(k, "mm")
    for q in range(10):
        e(f"ds_write_b128 v10, {vr(ACC+48+4*q,4)} offset:{(10+q)*1024}")
    e("s_waitcnt lgkmcnt(0)\ns_barrier")
    R = 128
    for w in range(4):
        for q in range(4):
            e(f"ds_read_b128 {vr(R+20*w+4*q,4)}, v15 offset:{w*SLOT + q*1024}")
        e(f"ds_read_b128 {vr(R+20*w+16,4)}, v3 offset:{w*SLOT}")
    for j in range(10):
        e(f"v_lshlrev_b32 v{ACC+2*j}, 16, v{XS+j}\nv_and_b32 v{ACC+2*j+1}, 0xffff0000, v{XS+j}")
    for w in range(4):
        e(f"s_waitcnt lgkmcnt({15-5*w})")
        for j in range(0, 20, 2):
            e(f"v_pk_add_f32 {vr(ACC+j,2)}, {vr(ACC+j,2)}, {vr(R+20*w+j,2)}")
    for j in range(10):
        e(f"v_cvt_pk_bf16_f32 v{XS+j}, v{ACC+2*j}, v{ACC+2*j+1}")
    bstamp(k, "rd")
    e(f"buffer_store_dwordx4 {vr(XS,4)}, v12, s[36:39], s43 offen")
    e(f"buffer_store_dwordx4 {vr(XS+4,4)}, v12, s[36:39], s43 offen offset:16")
    e(f"buffer_store_dwordx2 {vr(XS+8,2)}, v13, s[36:39], s43 offen")
    stamp_dump(k, 0, 9, "s2", PWS)
    e("s_endpgm")

def w160_voffs(k, dst, t):
    e = k.e
    for i in range(5):
        e(f"v_add_u32 v{t}, {64*i}, v1\nv_mul_u32_u24 v{t+1}, 6554, v{t}\nv_lshrrev_b32 v{t+1}, 16, v{t+1}")
        e(f"v_mul_u32_u24 v{t+2}, 10, v{t+1}\nv_sub_u32 v{t+2}, v{t}, v{t+2}")
        e(f"v_and_b32 v{t}, 24, v{t+1}\nv_bfe_u32 v{t+3}, v{t+1}, 1, 2\nv_add_u32 v{t}, v{t}, v{t+3}\nv_and_b32 v{t+3}, 1, v{t+1}\nv_lshl_add_u32 v{t}, v{t+3}, 2, v{t}")
        e(f"v_mul_u32_u24 v{t}, 1280, v{t}\nv_lshl_add_u32 v{dst+i}, v{t+2}, 4, v{t}")

def roleA(k):
    e = k.e
    KVSLOT = 24576; KV0 = 8192
    QS = 20480; QX = 10240
    S0, S1 = 32, 48; SA = 64
    Q = [16, 24]; O = [144, 160]; P = [96, 104]; KVB = [112, 128]; KT = 176
    KL = lambda s: KVB[s]; KH = lambda s: KVB[s]+4; V0 = lambda s: KVB[s]+8; V1 = lambda s: KVB[s]+12
    AKL, AKH, AV, BKH, BV = 8, 9, 10, 11, 12
    WV = 16; XV = 21; RB = 24; ONES = 28
    FRG = 80
    AO2 = 241; RB2 = 224
    stamp(k, 0)
    e("s_bfe_u32 s8, s2, 0x20001\ns_lshl_b32 s8, s8, 3\ns_lshr_b32 s9, s2, 5\ns_add_u32 s8, s8, s9")
    e("s_and_b32 s9, s2, 1\ns_lshl_b32 s9, s9, 2\ns_bfe_u32 s32, s2, 0x20003\ns_add_u32 s9, s9, s32")
    e("s_add_u32 s11, s8, s9\ns_mul_i32 s11, s11, 3\ns_mul_i32 s32, s11, 205\ns_lshr_b32 s32, s32, 11\ns_mul_i32 s32, s32, 10\ns_sub_u32 s11, s11, s32")
    x_voffs(k, XV, 3)
    w160_voffs(k, WV, 3)
    Lw = k.newlabel("wrole")
    e(f"s_mul_i32 s12, s3, 40960\ns_mul_i32 s32, s9, 160\ns_add_u32 s12, s12, s32\ns_mov_b32 s13, {64*1280}")
    e("s_waitcnt lgkmcnt(0)")
    srd_from(k, 20, PWQ, NBYTES['wq'])
    e(f"s_cmp_lt_u32 s3, 2\ns_cbranch_scc1 {Lw}")
    for i in range(4): e(f"v_add_u32 v{WV+i}, {10240*i}, v{XV+(i&1)}")
    e(f"v_mov_b32 v{WV+4}, {HUGE}")
    e("s_lshl_b32 s33, s8, 1\ns_add_u32 s33, s33, s3\ns_sub_u32 s33, s33, 2\ns_mul_i32 s12, s33, 40960\ns_mov_b32 s13, 128")
    srd_from(k, 20, PX, NBYTES['x'])
    k.label(Lw)
    e("s_mul_i32 s34, s11, s13\ns_add_u32 s34, s34, s12\ns_mul_i32 s35, s13, 10\ns_add_u32 s35, s35, s12\ns_mul_i32 s14, s3, 5120")
    def st_issue(slot):
        L = [[f"s_add_u32 m0, s14, {slot*QS}"]]
        for i in range(5):
            g = [f"buffer_load_dwordx4 v{WV+i}, s[20:23], s34 offen lds"]
            if i < 4: g += ["s_add_u32 m0, m0, 1024"]
            else: g += ["s_add_u32 s34, s34, s13", "s_cmp_eq_u32 s34, s35", "s_cselect_b32 s34, s12, s34"]
            L.append(g)
        return L
    tag_setup(k)
    srd_from(k, 24, PWS, KV_BYTES, KV_OFF)
    srd_from(k, 28, PWS, AF_BYTES, AF_OFF)
    e("v_lshrrev_b32 v6, 5, v1")
    e("v_bfe_u32 v7, v1, 2, 2\nv_lshl_add_u32 v7, v6, 2, v7\nv_mul_u32_u24 v4, 320, v7")
    e("v_and_b32 v7, 1, v1\nv_lshlrev_b32 v7, 4, v7")
    e("v_bfe_u32 v8, v1, 1, 1\nv_lshl_add_u32 v7, v8, 3, v7")
    e("v_and_b32 v8, 16, v1\nv_cmp_ne_u32 vcc, 0, v8\nv_mov_b32 v8, 32\nv_cndmask_b32 v7, v7, v8, vcc")
    e("v_add_u32 v4, v4, v7\ns_mul_i32 s32, s3, 40\nv_add_u32 v4, s32, v4")
    e("v_and_b32 v8, 19, v1\nv_cmp_lt_u32 vcc, 16, v8\nv_mov_b32 v8, 0x40000\nv_cndmask_b32 v4, v4, v8, vcc")
    e("v_add_u32 v5, 40960, v4")
    x_raddr(k, RB, 7, str(QX))
    for j in range(4): e(f"v_mov_b32 v{ONES+j}, 0x3f803f80")
    e(f"v_and_b32 v7, 31, v1\nv_lshlrev_b32 v{BKH}, 3, v7\nv_add_u32 v{BKH}, 1024, v{BKH}\nv_lshl_add_u32 v{BKH}, v6, 18, v{BKH}")
    e("v_and_b32 v13, 19, v7\nv_bfe_u32 v14, v7, 2, 1\nv_lshl_add_u32 v13, v14, 3, v13\nv_bfe_u32 v14, v7, 3, 1\nv_lshl_add_u32 v13, v14, 2, v13")
    e(f"v_mul_u32_u24 v{BV}, 24, v6\nv_add_u32 v{BV}, v{BV}, v13")
    e("v_cmp_le_u32 vcc, 28, v7\nv_cndmask_b32 v13, 0, 1, vcc\nv_xor_b32 v13, v13, v6\nv_mul_u32_u24 v13, 24, v13\nv_add_u32 v13, 20, v13")
    e("v_and_b32 v15, 27, v7\nv_cmp_ne_u32 vcc, 24, v15\nv_mov_b32 v15, 0x4000\nv_cndmask_b32 v13, v13, v15, vcc")
    e(f"v_cmp_le_u32 vcc, 20, v7\nv_cndmask_b32 v{BV}, v{BV}, v13, vcc")
    e(f"v_lshlrev_b32 v{BV}, 4, v{BV}\nv_add_u32 v{BV}, 1536, v{BV}")
    c0 = KV0 + 2*KVSLOT
    e(f"v_add_u32 v{AKL}, {c0}, v2\nv_add_u32 v{AKH}, {c0}, v{BKH}\nv_add_u32 v{AV}, {c0}, v{BV}")
    e(f"s_lshr_b32 s32, s3, 1\ns_lshl_b32 s32, s32, 9\ns_and_b32 s33, s3, 1\ns_lshl_b32 s33, s33, 3\ns_add_u32 s32, s32, s33")
    e(f"v_lshl_add_u32 v{AO2}, v7, 4, s32\nv_lshl_add_u32 v{AO2}, v6, 30, v{AO2}")
    e("v_lshlrev_b32 v13, 7, v7\nv_lshlrev_b32 v14, 3, v7")
    e(f"s_lshl_b32 s39, s8, 9\ns_add_u32 s39, s39, {STAT}\ns_lshl_b32 s38, s3, 12\ns_add_u32 s38, s38, {KVF}\ns_mul_i32 s36, s3, 6144")
    for t in range(4): e(f"v_mov_b32 v{KT+8*t+6}, 0\nv_mov_b32 v{KT+8*t+7}, 0")
    for j in range(4): e(f"v_add_u32 v{RB2+j}, 40960, v{RB+j}")
    if ADLY == 2: tag_finish(k)
    for sl in range(2): emit(k, st_issue(sl))
    if ADLY != 2: tag_finish(k)
    stamp(k, 1)
    def kv_issue(chunk_soff, slot_base):
        L = []
        for half in range(2):
            L.append([f"s_add_u32 m0, s36, {slot_base + half*3072}", f"s_add_u32 s32, s36, {chunk_soff + half*3072}"])
            for j in range(3):
                L.append([f"buffer_load_dwordx4 v2, s[24:27], s32 offen offset:{j*1024} {SC} lds"])
        return L
    PL = 232
    kv_poll = [f"buffer_load_dword v{PL}, v13, {FL}, s38 offen {SC}"]
    pl_loads = [f"buffer_load_dwordx2 {vr(PL+2,2)}, v14, {FL}, s39 offen {SC}", f"buffer_load_dwordx2 {vr(PL+4,2)}, v14, {FL}, s39 offen offset:256 {SC}"]
    inits = []
    for j in range(8): inits += [(P[1]+j, "0"), (V0(1)+j, "0")]
    for s_ in range(2): inits += [(KH(s_)+2, "0x3f80"), (KH(s_)+3, "0")]
    for j in range(32): inits += [(O[0]+j, "0")]
    inits.sort()
    def hreads(h):
        sl = h % 4; F = FRG + 48*(h & 1); L = []
        so = (sl & 1) * QS; ta = "v5" if sl >= 2 else "v4"; rb = RB2 if sl >= 2 else RB
        for ks in range(4):
            for u in range(2): L.append(f"ds_read_b64_tr_b16 {vr(F+12*ks+2*u,2)}, {ta} offset:{so + ks*2560 + u*160}")
            for b in range(2): L.append(f"ds_read_b128 {vr(F+12*ks+4+4*b,4)}, v{rb+ks} offset:{so + b*5120}")
        return L
    e("s_waitcnt vmcnt(5)\ns_barrier")
    stamp(k, 2)
    emit(k, hreads(0))
    emit(k, st_issue(2))
    for h in range(10):
        F = FRG + 48*(h & 1)
        if h < 9:
            n = {0: 5, 7: 5, 8: 0}.get(h, 10)
            e(f"s_waitcnt vmcnt({n}) lgkmcnt(0)")
        else:
            e("s_waitcnt lgkmcnt(0)")
        if h < 9: e("s_barrier")
        rd = hreads(h+1) if h < 9 else []
        dm = st_issue(h % 4) if h < 6 else []
        if h == 0: dm = st_issue(3) + dm
        if h == 8: dm = [pl_loads]
        if h == 9: dm = [kv_poll]
        i = 0
        for ks in range(4):
            first = (h == 0 and ks == 0)
            for acc, bop in ((S0, F+12*ks+4), (S1, F+12*ks+8), (SA, ONES)):
                e(f"{MF} {vr(acc,16)}, {vr(F+12*ks,4)}, {vr(bop,4)}, {'0' if first else vr(acc,16)}")
                emit(k, rd[:2]); rd = rd[2:]
                if dm and (i >= 3 or h in (0, 9)): emit(k, dm.pop(0))
                if h == 9:
                    m = 0
                    while inits and m < 3 and inits[0][0] < F + 12*ks:
                        r, v = inits.pop(0); e(f"v_mov_b32 v{r}, {v}"); m += 1
                i += 1
        emit(k, dm)
    stamp(k, 3)
    for r, v in inits: e(f"v_mov_b32 v{r}, {v}")
    spin(k, pl_loads, [PL+3, PL+5], 15, pre_issued=True)
    for b in range(2):
        st = PL + 2 + 2*b
        e(f"v_lshlrev_b32 v{238+b}, 16, v{st}\nv_xor_b32 v{238+b}, 0x80000000, v{238+b}\nv_and_b32 v{st}, 0xffff0000, v{st}")
        e(f"v_rcp_f32 v{st}, v{st}\nv_mul_f32 v{st}, {hex(f32bits(QSCALE))}, v{st}")
    def qepi(b):
        L = []; a = S0 + 16*b
        for j in range(12): L.append(f"v_fmac_f32 v{a+j}, v{238+b}, v{SA+j}")
        for j in range(12): L.append(f"v_mul_f32 v{a+j}, v{PL+2+2*b}, v{a+j}")
        for j in range(6): L.append(f"v_cvt_pk_bf16_f32 v{Q[b]+j}, v{a+2*j}, v{a+2*j+1}")
        L += [f"v_mov_b32 v{Q[b]+6}, 0", f"v_mov_b32 v{Q[b]+7}, 0"]
        return L
    MX = [3, 5]
    sxr = lambda b, t: [[80, 32, 80, 32], [208, 64, 208, 64]][b][t]
    def mx(b, t):
        S = sxr(b, t)
        L = [f"v_max3_f32 v{MX[b]}, v{S}, v{S+1}, v{S+2}", f"v_max_f32 v{MX[b]}, v{MX[b]}, v{S+3}"] if t == 0 else []
        for j in range(4 if t == 0 else 0, 16, 2): L.append(f"v_max3_f32 v{MX[b]}, v{MX[b]}, v{S+j}, v{S+j+1}")
        return L
    def qk(b, t):
        S = sxr(b, t)
        return [f"{MF} {vr(S,16)}, {vr(KT+8*t,4)}, {vr(Q[b],4)}, 0", f"{MF} {vr(S,16)}, {vr(KT+8*t+4,4)}, {vr(Q[b]+4,4)}, {vr(S,16)}"]
    def fin(b, offs):
        L = [f"v_mov_b32 v15, v{MX[b]}", f"v_permlane32_swap_b32 v{MX[b]}, v15", f"v_max_f32 v{MX[b]}, v{MX[b]}, v15"]
        if offs: L.append(f"v_add_f32 v{MX[b]}, {hex(f32bits(offs))}, v{MX[b]}")
        L += [f"v_cvt_pk_bf16_f32 v{MX[b]}, -v{MX[b]}, 0", "v_cmp_ne_u32 vcc, 0, v6", f"v_cndmask_b32 v{Q[b]+6}, v{MX[b]}, 0, vcc"]
        return L
    def weave(mfs, vals, per):
        for m in mfs:
            e(m)
            for _ in range(per):
                if vals: e(vals.pop(0))
        for v in vals: e(v)
    emit(k, qepi(0)); emit(k, qepi(1))
    e(f"s_mov_b32 s40, 0\ns_mov_b32 s41, {KV0}\ns_add_u32 s35, s36, {KV0}\ns_add_u32 s42, s35, {KVSLOT}\ns_add_u32 s43, s36, {2*KVSLOT}\ns_add_u32 s39, s35, {3*KVSLOT}")
    e(f"s_lshr_b32 s32, s9, 1\ns_mul_i32 s32, s32, 10\ns_mul_i32 s33, s8, 272\ns_add_u32 s32, s32, s33\ns_and_b32 s33, s9, 1")
    e("s_add_u32 s16, s32, s33\ns_add_u32 s16, s16, 8\ns_lshl_b32 s16, s16, 10")
    e("s_lshl_b32 s33, s33, 2\ns_add_u32 s12, s32, s33\ns_add_u32 s12, s12, s3\ns_lshl_b32 s12, s12, 10")
    e(f"s_add_u32 s13, s12, {136*1024}\ns_add_u32 s17, s16, {136*1024}")
    e(f"s_lshl_b32 s14, s8, 3\ns_add_u32 s14, s14, s9\ns_lshl_b32 s14, s14, 7\ns_add_u32 s14, s14, {OF}")
    for j in range(4): e(f"v_mov_b32 v{S1+12+j}, 0")
    stamp(k, 4)
    spin(k, kv_poll, [PL], 15, pre_issued=True, slp=KSL)
    e("s_barrier")
    stamp(k, 5)
    e("s_mov_b32 s33, 6144")
    for t in range(4):
        so, off = ("0", t*3072) if t < 2 else ("s33", (t-2)*3072)
        e(f"buffer_load_dwordx4 {vr(KT+8*t,4)}, v2, s[24:27], {so} offen offset:{off} {SC}")
        e(f"buffer_load_dwordx2 {vr(KT+8*t+4,2)}, v{BKH}, s[24:27], {so} offen offset:{off} {SC}")
    emit(k, kv_issue(0, KV0 + 2*KVSLOT))
    kv1 = kv_issue(KVSLOT, KV0)
    e("s_waitcnt vmcnt(12)")
    weave(qk(0, 0) + qk(1, 0), [], 0)
    e("s_waitcnt vmcnt(10)")
    weave(qk(0, 1) + qk(1, 1), mx(0, 0) + mx(1, 0), 4)
    e("s_waitcnt vmcnt(8)")
    weave(qk(0, 2) + qk(1, 2), mx(0, 1) + mx(1, 1), 4)
    e("s_waitcnt vmcnt(6)")
    weave(qk(0, 3) + qk(1, 3), mx(0, 2) + mx(1, 2), 4)
    e("s_waitcnt vmcnt(0)\ns_barrier")
    for s in range(2):
        e(f"ds_read_b128 {vr(KL(s),4)}, v{AKL} offset:{s*3072}\nds_read_b64 {vr(KH(s),2)}, v{AKH} offset:{s*3072}")
    e(f"ds_read_b128 {vr(V0(0),4)}, v{AV}\nds_read_b128 {vr(V1(0),4)}, v{AV} offset:768")
    emit(k, mx(0, 3) + fin(0, OFFS))
    e("s_waitcnt lgkmcnt(0)")
    weave([f"{MF} {vr(S0,16)}, {vr(KL(0),4)}, {vr(Q[0],4)}, 0", f"{MF} {vr(S0,16)}, {vr(KH(0),4)}, {vr(Q[0]+4,4)}, {vr(S0,16)}"],
          mx(1, 3) + fin(1, OFFS), 6)
    emit(k, kv1)
    dma = lambda so, off: f"buffer_load_dwordx4 v2, s[24:27], {so} offen offset:{off} {SC} lds"
    extra = {(1, 0): ["s_mov_b32 m0, s42"], (1, 1): ["s_add_u32 s38, s43, 4096"], (1, 3): ["s_waitcnt vmcnt(0)", "s_barrier"],
             (2, 3): [dma("s43", 0), dma("s43", 1024)], (3, 3): [dma("s43", 2048), dma("s43", 3072)],
             (4, 0): ["s_add_u32 m0, s42, 4096"], (4, 3): [dma("s38", 0), dma("s38", 1024)],
             (5, 0): [f"s_add_u32 s43, s43, {KVSLOT}"], (5, 1): ["s_add_u32 s40, s40, 1"], (5, 2): [f"s_add_u32 s37, s42, {KVSLOT}"],
             (6, 0): ["s_cmp_eq_u32 s37, s39"], (6, 1): ["s_cselect_b32 s37, s35, s37"],
             (7, 0): ["s_sub_u32 s41, s42, s36"], (7, 1): ["s_mov_b32 s42, s37"],
             (7, 2): ["s_cmp_lt_u32 s40, 8"]}
    e("s_setprio 1")
    stamp(k, 6)
    stamp(k, 7)
    Lloop = k.newlabel("att")
    k.label(Lloop, 6)
    def cv(S, Pb, g):
        return [f"v_cvt_pk_bf16_f32 v{Pb+2*g}, v{S+4*g}, v{S+4*g+1}", f"v_cvt_pk_bf16_f32 v{Pb+2*g+1}, v{S+4*g+2}, v{S+4*g+3}"]
    for jj in range(8):
        for blk in range(2):
            Sc, Sn = (S0, S1) if blk == 0 else (S1, S0)
            valu = []
            for g in range(4):
                for j in range(4): valu.append(f"v_exp_f32{E64} v{Sc+4*g+j}, v{Sc+4*g+j}")
                valu += cv(Sn, P[1-blk], 3) if g == 0 else cv(Sc, P[blk], g-1)
            ks = (jj + blk) & 1; vs = (jj - 1 + blk) & 1; nb = 1 - blk
            ko = ((jj + 2) % 8) * 3072; vo = ((jj + 1) % 8) * 3072
            mf = [[f"{MF} {vr(O[nb],16)}, {vr(V0(vs),4)}, {vr(P[nb],4)}, {vr(O[nb],16)}"],
                  [f"{MF} {vr(Sn,16)}, {vr(KL(ks),4)}, {vr(Q[nb],4)}, 0"],
                  [f"{MF} {vr(Sn,16)}, {vr(KH(ks),4)}, {vr(Q[nb]+4,4)}, {vr(Sn,16)}"],
                  [f"{MF} {vr(O[nb],16)}, {vr(V1(vs),4)}, {vr(P[nb]+4,4)}, {vr(O[nb],16)}"]]
            if blk == 0:
                mf[2].append("s_waitcnt lgkmcnt(0)")
                mf[3].append(f"ds_read_b128 {vr(KL(ks),4)}, v{AKL} offset:{ko}")
                mf[3].append(f"ds_read_b64 {vr(KH(ks),2)}, v{AKH} offset:{ko}")
            else:
                mf[3].append(f"ds_read_b128 {vr(V0(1-vs),4)}, v{AV} offset:{vo}")
                mf[3].append(f"ds_read_b128 {vr(V1(1-vs),4)}, v{AV} offset:{vo+768}")
                if jj == 5: valu.append(f"v_add_u32 v{AKL}, s41, v2"); valu.append(f"v_add_u32 v{AKH}, s41, v{BKH}")
                if jj == 6: valu.append(f"v_add_u32 v{AV}, s41, v{BV}")
                for m in range(4): mf[m] += extra.get((jj, m), [])
            for i, v in enumerate(valu):
                for m in range(4):
                    if PATTERN[m] == i: emit(k, mf[m])
                e(v)
    e(f"s_cbranch_scc1 {Lloop}")
    emit(k, cv(S1, P[1], 3))
    e(f"{MF} {vr(O[1],16)}, {vr(V0(1),4)}, {vr(P[1],4)}, {vr(O[1],16)}")
    e(f"{MF} {vr(O[1],16)}, {vr(V1(1),4)}, {vr(P[1]+4,4)}, {vr(O[1],16)}")
    stamp(k, 8)
    e("s_mov_b32 s40, 0\ns_setprio 3")
    Lout = k.newlabel("out"); Lslow = k.newlabel("slow"); Lpub = k.newlabel("pub")
    k.label(Lout)
    PK = 224; A0 = 208
    for b in range(2):
        e(f"v_rcp_f32 v{A0+b}, v{O[b]+12}")
        for j in range(12): e(f"v_mul_f32 v{O[b]+j}, v{O[b]+j}, v{A0+b}")
        for j in range(6): e(f"v_cvt_pk_bf16_f32 v{PK+8*b+j}, v{O[b]+2*j}, v{O[b]+2*j+1}")
        e(f"buffer_store_dwordx4 {vr(PK+8*b,4)}, v2, s[28:31], s{12+b} offen {SC}")
        e(f"buffer_store_dwordx2 {vr(PK+8*b+4,2)}, v{AO2}, s[28:31], s{16+b} offen {SC}")
    e(f"v_mul_f32 v{A0+2}, 0, v{O[0]+12}\nv_mul_f32 v{A0+3}, 0, v{O[1]+12}")
    for j in range(12):
        for b in range(2): e(f"v_fma_f32 v{A0+2+b}, v{O[b]+j}, 0, v{A0+2+b}")
    e(f"v_cmp_u_f32 vcc, v{A0+2}, v{A0+3}")
    e(f"s_cmp_lg_u32 s40, 0\ns_cbranch_scc1 {Lpub}")
    e(f"s_cmp_lg_u64 vcc, 0\ns_cbranch_scc1 {Lslow}")
    k.label(Lpub)
    e("s_waitcnt vmcnt(0)\ns_barrier")
    setflag(k, "s14", 16)
    Lx = k.newlabel("axit")
    e(f"s_or_b32 s32, s2, s3\ns_cmp_lg_u32 s32, 0\ns_cbranch_scc1 {Lx}")
    e(f"v_lshlrev_b32 v13, 7, v1")
    ld = []
    for i in range(8): ld += [f"s_mov_b32 s38, {HF + 8192*i}", f"buffer_load_dword v{16+i}, v13, {FL}, s38 offen {SC}"]
    if not ONLY: spin(k, ld, list(range(16, 24)), 24)
    setflag(k, "0", 16)
    k.label(Lx)
    stamp_dump(k, 1, 9, "s2", PWS)
    e("s_endpgm")
    k.label(Lslow)
    e("s_waitcnt vmcnt(0) lgkmcnt(0)")
    e(f"s_mov_b32 s40, 1\ns_mov_b32 s41, 0\nv_mov_b32 v{Q[0]+6}, 0\nv_mov_b32 v{Q[1]+6}, 0")
    e(f"v_mov_b32 v{MX[0]}, 0xff800000\nv_mov_b32 v{MX[1]}, 0xff800000")
    def kload():
        e(f"buffer_load_dwordx4 {vr(KL(0),4)}, v2, s[24:27], s41 offen {SC}")
        e(f"buffer_load_dwordx2 {vr(KH(0),2)}, v{BKH}, s[24:27], s41 offen {SC}")
    def qk2():
        for b in range(2):
            S = S0 + 16*b
            e(f"{MF} {vr(S,16)}, {vr(KL(0),4)}, {vr(Q[b],4)}, 0\n{MF} {vr(S,16)}, {vr(KH(0),4)}, {vr(Q[b]+4,4)}, {vr(S,16)}")
    L1 = k.newlabel("sl1"); k.label(L1)
    kload(); e("s_waitcnt vmcnt(0)"); qk2()
    for b in range(2):
        for j in range(0, 16, 2): e(f"v_max3_f32 v{MX[b]}, v{MX[b]}, v{S0+16*b+j}, v{S0+16*b+j+1}")
    e(f"s_add_u32 s41, s41, 3072\ns_cmp_lt_u32 s41, {KV_BYTES}\ns_cbranch_scc1 {L1}")
    for b in range(2): emit(k, fin(b, 0))
    for j in range(32): e(f"v_mov_b32 v{O[0]+j}, 0")
    e("s_mov_b32 s41, 0")
    L2 = k.newlabel("sl2"); k.label(L2)
    kload()
    e(f"buffer_load_dwordx4 {vr(V0(0),4)}, v{BV}, s[24:27], s41 offen {SC}")
    e(f"buffer_load_dwordx4 {vr(V1(0),4)}, v{BV}, s[24:27], s41 offen offset:768 {SC}")
    e("s_waitcnt vmcnt(0)"); qk2()
    for b in range(2):
        S = S0 + 16*b
        for j in range(16): e(f"v_exp_f32 v{S+j}, v{S+j}")
        for g in range(4): emit(k, cv(S, P[b], g))
        e(f"{MF} {vr(O[b],16)}, {vr(V0(0),4)}, {vr(P[b],4)}, {vr(O[b],16)}")
        e(f"{MF} {vr(O[b],16)}, {vr(V1(0),4)}, {vr(P[b]+4,4)}, {vr(O[b],16)}")
    e(f"s_add_u32 s41, s41, 3072\ns_cmp_lt_u32 s41, {KV_BYTES}\ns_cbranch_scc1 {L2}")
    e("s_nop 12")
    e(f"s_branch {Lout}")

def gen_mega(name="parallel_sum__grouped_kv_mqa__swiglu_ffn__prompt_kernel"):
    k = Kernel(name); e = k.e
    LA = k.newlabel("roleA"); LB = k.newlabel("roleB")
    e("s_load_dwordx16 s[48:63], s[0:1], 0\ns_load_dwordx8 s[64:71], s[0:1], 64")
    e("v_and_b32 v1, 63, v0\nv_lshrrev_b32 v2, 6, v0\nv_readfirstlane_b32 s3, v2\nv_lshlrev_b32 v2, 4, v1")
    e(f"s_cmp_lt_u32 s2, 256\ns_cbranch_scc1 {LB}\ns_cmp_lt_u32 s2, 512\ns_cbranch_scc1 {LA}\ns_endpgm")
    k.label(LB)
    e("s_setprio 3")
    roleB(k)
    k.label(LA, 6)
    if ONLY == "B": e("s_endpgm")
    e(f"s_sub_u32 s2, s2, 256\ns_setprio {AP0}")
    roleA(k)
    k.label(f"{k.name}_end")
    k.lds = 81920; k.grid = 512; k.block = 256
    return k

if __name__ == "__main__":
    import sys
    from build import emit as emit_file
    emit_file([gen_mega()], sys.argv[1] if len(sys.argv) > 1 else "parallel_sum__grouped_kv_mqa__swiglu_ffn__prompt.s")
```

```python
from asmgen import *
from common import KA, NBYTES, f32bits, srd_from, stamp, stamp_dump, STAMPS
import math, os

MF = "v_mfma_f32_32x32x16_bf16"
LOG2E = math.log2(math.e)
QSCALE = (20 ** -0.5) * LOG2E * float(os.environ.get("QEPS", 1.0))
env = lambda n, d: type(d)(os.environ.get(n, d))
OFFS = env('OFFS', 96.0)
PATTERN = [int(x) for x in env('APAT', '2,6,9,13').split(',')]
BST = env("BST", 0); ONLY = env("ONLY", "")
P0B = env("P0B", 14); PKD = env("PKD", 0); ADLY = env("ADLY", 2); E64 = env("E64", ""); TP = env("TP", 0); QH = env("QH", 3); KVS = env("KVS", 2); PH = env("PH", 7); LATE = env("LATE", 0); NOKV = env("NOKV", 0); KSL = env("KSL", 4); BSL = env("BSL", 8); BP0 = env("BP0", 0); GP0 = env("GP0", 0); GP1 = env("GP1", 2); GSW = env("GSW", -1); CPF = env("CPF", 1); DP = env("DP", 0); AP0 = env("AP0", 2)
STAT = 0x1000; PKF = 0x800; HF = 0x9000; OF = 0x11000; KVF = 0xE80000; XNF = 0xE88000; QF = 0xE90000; FL_BYTES = 0xE98000
KV_OFF = 0x20000;  KV_BYTES = 64*3072
WP_OFF = 0x50000;  WP_BYTES = 8*136*2560
AF_OFF = 0x300000; AF_BYTES = 64*136*1024
XN_OFF = 0xC00000; XN_BYTES = 64*40*1024
PX, PWQ, PWK, PWV, PWO, PWG, PWU, PWD, POUT, PWS = 48, 50, 52, 54, 56, 60, 62, 64, 66, 70
TAG = "s73"; BUD = "s74"; FLS = 44; SC = "sc1"
FL = f"s[{FLS}:{FLS+3}]"
HUGE = "0x7ff00000"

def bstamp(k, name):
    m0 = dict(start=0, xl=1, xs=2, xf=3, p0=4, gu0=5, gu1=6, dn0=7, dn1=8)
    m1 = dict(start=0, p0=1, gu0=2, gu1=3, dn0=4, dn1=5, of=6, mm=7, rd=8)
    m = m1 if BST else m0
    if name in m: stamp(k, m[name])

def emit(k, lst):
    for x in lst:
        if isinstance(x, list): emit(k, x)
        else: k.e(x)

def spin(k, loads, regs, vt, pre_issued=False, slp=1):
    e = k.e
    Lp = k.newlabel("poll"); Ld = k.newlabel("pdone"); Lc = k.newlabel("pchk")
    if pre_issued: e(f"s_branch {Lc}")
    k.label(Lp)
    emit(k, loads)
    k.label(Lc)
    e("s_waitcnt vmcnt(0)")
    e(f"v_xor_b32 v{vt}, {TAG}, v{regs[0]}")
    for r in regs[1:]:
        e(f"v_xor_b32 v{r}, {TAG}, v{r}\nv_or_b32 v{vt}, v{vt}, v{r}")
    e(f"v_cmp_ne_u32 vcc, 0, v{vt}")
    e(f"s_cmp_eq_u64 vcc, 0\ns_cbranch_scc1 {Ld}")
    e(f"s_sub_u32 {BUD}, {BUD}, 1\ns_cbranch_scc1 {Ld}")
    e(f"s_sleep {slp}\ns_branch {Lp}")
    k.label(Ld)

def setflag(k, soffs, vt):
    e = k.e
    L = k.newlabel("nofl")
    e(f"s_cmp_lg_u32 s3, 0\ns_cbranch_scc1 {L}")
    e(f"v_mov_b32 v{vt}, {TAG}\nv_mov_b32 v{vt+1}, 0\ns_mov_b64 exec, 1")
    for so in (soffs if isinstance(soffs, list) else [soffs]):
        e(f"buffer_store_dword v{vt}, v{vt+1}, {FL}, {so} offen {SC}")
    e("s_mov_b64 exec, -1")
    k.label(L)

def tag_setup(k):
    k.e(f"s_load_dword s72, s[{PWS}:{PWS+1}], 0")
    srd_from(k, FLS, PWS, FL_BYTES)
    k.e(f"s_mov_b32 {BUD}, 200000")
def tag_finish(k):
    k.e(f"s_waitcnt lgkmcnt(0)\ns_mul_i32 {TAG}, s72, 1664525\ns_add_u32 {TAG}, {TAG}, 1013904223")

def x_voffs(k, dst, t):
    e = k.e
    e(f"v_lshrrev_b32 v{t}, 3, v1\nv_mul_u32_u24 v{t}, 1280, v{t}")
    e(f"v_and_b32 v{t+1}, 7, v1\nv_lshrrev_b32 v{t+2}, 4, v1\nv_xor_b32 v{t+1}, v{t+1}, v{t+2}")
    e(f"v_lshl_add_u32 v{dst}, v{t+1}, 4, v{t}\nv_xor_b32 v{dst+1}, 64, v{dst}")
def x_raddr(k, dst, t, base):
    e = k.e
    e(f"v_and_b32 v{t}, 31, v1\nv_bfe_u32 v{t+1}, v1, 1, 3\nv_lshrrev_b32 v{t+2}, 5, v1\nv_xor_b32 v{t+1}, v{t+1}, v{t+2}")
    e(f"v_lshlrev_b32 v{t}, 7, v{t}\nv_lshl_add_u32 v{t}, v{t+1}, 4, v{t}")
    for ks in range(4):
        e(f"v_xor_b32 v{t+1}, {ks*32}, v{t}\nv_add_u32 v{dst+ks}, {base}, v{t+1}")

def phase0(k):
    e = k.e
    e("v_and_b32 v3, 15, v1\nv_lshrrev_b32 v4, 4, v1")
    e("s_mul_i32 s12, s4, 20480\ns_mul_i32 s13, s3, 320\ns_add_u32 s12, s12, s13")
    e("v_mul_u32_u24 v5, 1280, v3\nv_lshl_add_u32 v5, v4, 4, v5")
    e("s_mul_i32 s14, s3, 6400\ns_mul_i32 s15, s3, 7168\ns_add_u32 s37, s14, 4096")
    e("s_waitcnt lgkmcnt(0)")
    srd_from(k, 16, PX, NBYTES['x'])
    X = 16
    for i in range(5):
        e(f"buffer_load_dwordx4 {vr(X+4*i,4)}, v5, s[16:19], s12 offen offset:{64*i}")
    tag_setup(k)
    e(f"s_cmp_eq_u32 s11, 0\ns_cselect_b32 s20, s{PWK}, s{PWV}\ns_cselect_b32 s21, s{PWK+1}, s{PWV+1}")
    e(f"s_mov_b32 s22, {hex(NBYTES['wk'])}\ns_mov_b32 s23, 0x20000\ns_mov_b32 m0, s15")
    for j in range(7):
        if j == 4: e("s_add_u32 m0, s15, 4096")
        e(f"buffer_load_dwordx4 v2, s[20:23], {'s14' if j < 4 else 's37'} offen offset:{(j%4)*1024} lds")
    srd_from(k, 28, PWS, XN_BYTES, XN_OFF)
    srd_from(k, 32, PWS, KV_BYTES, KV_OFF)
    e("v_mov_b32 v8, 0\nv_mov_b32 v9, 0\nv_mov_b32 v10, 0\nv_mov_b32 v11, 0")
    e("s_mov_b32 s38, 0x3f803f80")
    LST = 28672; RED = LST + 512
    e(f"s_lshl_b32 s39, s3, 7\ns_add_u32 s39, s39, {LST}")
    e("v_lshl_add_u32 v12, v3, 3, s39\nv_lshlrev_b32 v13, 3, v3")
    e("v_lshrrev_b32 v14, 2, v3\nv_lshl_add_u32 v14, v4, 3, v14\nv_mul_u32_u24 v14, 40, v14")
    e("v_and_b32 v15, 3, v1\nv_lshl_add_u32 v14, v15, 3, v14\nv_add_u32 v14, s15, v14")
    e(f"s_lshl_b32 s36, s4, 7\ns_add_u32 s36, s36, {STAT}")
    e("s_lshr_b32 s40, s4, 1\ns_mul_i32 s41, s40, 40960\ns_and_b32 s42, s4, 1")
    e("s_lshl_b32 s43, s42, 8\ns_add_u32 s41, s41, s43\ns_mul_i32 s43, s3, 10240\ns_add_u32 s41, s41, s43")
    e("v_lshlrev_b32 v5, 9, v4\nv_lshl_add_u32 v5, v3, 4, v5")
    e(f"s_lshl_b32 s39, s3, 11\ns_add_u32 s39, s39, {RED}\nv_add_u32 v92, s39, v2\ns_mul_i32 s39, s40, 3072")
    e(f"s_lshl_b32 s43, s4, 1\ns_add_u32 s43, s43, s11\ns_lshl_b32 s75, s43, 7\ns_add_u32 s75, s75, {XNF}\ns_lshl_b32 s43, s43, {KVS}\ns_add_u32 s43, s43, {KVF}")
    Lv, Lst = k.newlabel("v"), k.newlabel("st")
    e("v_lshl_add_u32 v7, s42, 4, v3\nv_and_b32 v15, 1, v4\nv_lshrrev_b32 v6, 1, v4\nv_mov_b32 v95, 0x7fffffff")
    e(f"s_mov_b64 s[24:25], 0\ns_cmp_lg_u32 s11, 0\ns_cbranch_scc1 {Lv}")
    e("v_lshl_add_u32 v93, v6, 5, v7\nv_lshlrev_b32 v93, 4, v93\nv_lshl_add_u32 v93, v15, 3, v93")
    e("v_lshlrev_b32 v94, 3, v7\nv_add_u32 v94, 1024, v94\nv_cmp_ne_u32 vcc, 0, v4")
    e(f"s_branch {Lst}")
    k.label(Lv)
    e("s_mul_i32 s26, s42, 768\ns_add_u32 s26, s26, 1536\ns_mov_b32 s24, 0x00100010\ns_mov_b32 s25, 0x00100010")
    e("v_mul_u32_u24 v93, 384, v15\nv_lshl_add_u32 v93, v3, 4, v93\nv_lshl_add_u32 v93, v6, 3, v93\nv_add_u32 v93, s26, v93")
    e("v_add_u32 v94, 256, v93\nv_cmp_lt_u32 vcc, 4, v3")
    k.label(Lst)
    e("v_cndmask_b32 v94, v94, v95, vcc\nv_mov_b32 v95, 0x3f803f80")
    tag_finish(k)
    for i in range(5):
        e(f"s_waitcnt vmcnt({11 - i})")
        for d in range(4*i, 4*i+4):
            a = 8 + (d & 1); q = 10 + (d & 1)
            e(f"v_dot2_f32_bf16 v{a}, v{X+d}, s38, v{a}")
            e(f"v_dot2_f32_bf16 v{q}, v{X+d}, v{X+d}, v{q}")
    bstamp(k, "xl")
    e("v_add_f32 v8, v8, v9\nv_add_f32 v9, v10, v11")
    for sw in ("v_permlane32_swap_b32", "v_permlane16_swap_b32"):
        e("v_mov_b32 v10, v8\nv_mov_b32 v11, v9")
        e(f"{sw} v8, v10\n{sw} v9, v11")
        e("v_add_f32 v8, v8, v10\nv_add_f32 v9, v9, v11")
    e("ds_write_b64 v12, v[8:9]")
    U = 96; W = 136
    for d in range(20):
        e(f"v_lshlrev_b32 v{U+2*d}, 16, v{X+d}\nv_and_b32 v{U+2*d+1}, 0xffff0000, v{X+d}")
        if d == 1:
            e("s_waitcnt lgkmcnt(0)\ns_barrier")
            for w in range(4): e(f"ds_read_b64 {vr(36+2*w,2)}, v13 offset:{LST+128*w}")
    e("s_waitcnt lgkmcnt(0) vmcnt(0)")
    for i in range(5):
        for tl in range(2):
            for u in range(2):
                e(f"ds_read_b64_tr_b16 {vr(W+8*i+4*tl+2*u,2)}, v14 offset:{i*1280 + u*160 + tl*32}")
    e("v_add_f32 v8, v36, v38\nv_add_f32 v9, v37, v39\nv_add_f32 v10, v40, v42\nv_add_f32 v11, v41, v43")
    e("v_add_f32 v8, v8, v10\nv_add_f32 v9, v9, v11")
    inv = hex(f32bits(1.0/640))
    e(f"v_mul_f32 v8, {inv}, v8\nv_mul_f32 v9, {inv}, v9")
    e("v_fma_f32 v9, -v8, v8, v9\nv_max_f32 v9, 0, v9")
    e("v_cvt_pk_bf16_f32 v10, v8, v9")
    e("v_lshlrev_b32 v8, 16, v10\nv_and_b32 v9, 0xffff0000, v10")
    e(f"v_add_f32 v9, {hex(f32bits(1e-5))}, v9")
    e("v_cvt_pk_bf16_f32 v9, v9, v9\nv_and_b32 v9, 0xffff0000, v9")
    e("v_sqrt_f32 v9, v9")
    e("v_cvt_pk_bf16_f32 v6, v8, v9")
    e(f"v_mov_b32 v7, {TAG}\nv_and_b32 v9, 0xffff0000, v6")
    Lns = k.newlabel("nost")
    e(f"s_lshl_b32 s26, s11, 2\ns_add_u32 s26, s26, s3\ns_cmp_lg_u32 s26, 7\ns_cbranch_scc1 {Lns}")
    e(f"s_mov_b64 exec, 0xffff\nbuffer_store_dwordx2 v[6:7], v13, {FL}, s36 offen {SC}\ns_mov_b64 exec, -1")
    k.label(Lns)
    e("v_rcp_f32 v10, v9")
    e("v_mul_f32 v11, v8, v10")
    ACC = 44
    for d in range(20):
        u = U + 2*d
        e(f"v_fma_f32 v{u}, v{u}, v10, -v11\nv_fma_f32 v{u+1}, v{u+1}, v10, -v11")
        if d >= 1: e(f"v_cvt_pk_bf16_f32 v{X+d-1}, v{u-2}, v{u-1}")
    e(f"v_cvt_pk_bf16_f32 v{X+19}, v{U+38}, v{U+39}")
    Lmv, Lmd = k.newlabel("mv"), k.newlabel("md")
    e(f"s_waitcnt lgkmcnt(0)\ns_cmp_lg_u32 s11, 0\ns_cbranch_scc1 {Lmv}")
    def xst(i): return f"buffer_store_dwordx4 {vr(X+4*i,4)}, v5, s[28:31], s26 offen offset:{(i%2)*2048} {SC}"
    for m in range(2):
        if m: k.label(Lmv)
        for i in range(5):
            for tl in range(2):
                wf = vr(W+8*i+4*tl, 4); xf = vr(X+4*i, 4); acc = vr(ACC+4*tl, 4)
                a, b = (wf, xf) if m == 0 else (xf, wf)
                e(f"v_mfma_f32_16x16x32_bf16 {acc}, {a}, {b}, {'0' if i == 0 else acc}")
        if m == 0: e(f"s_branch {Lmd}")
    k.label(Lmd)
    bstamp(k, "xs")
    for tl in range(2):
        e(f"ds_write_b128 v92, {vr(ACC+4*tl,4)} offset:{tl*1024}")
    e("s_waitcnt lgkmcnt(0)\ns_barrier")
    Lx = k.newlabel("xst")
    e(f"s_cmp_lg_u32 s3, 0\ns_cbranch_scc1 {Lx}")
    R = 52
    for tl in range(2):
        for w in range(1, 4):
            e(f"ds_read_b128 {vr(R+16*tl+4*w,4)}, v92 offset:{w*2048 + tl*1024}")
    for tl in range(2):
        e(f"s_waitcnt lgkmcnt({3 - 3*tl})")
        r = R + 16*tl; c = ACC + 4*tl
        for j in range(4):
            e(f"v_add_f32 v{c+j}, v{c+j}, v{r+4+j}\nv_add_f32 v{r+8+j}, v{r+8+j}, v{r+12+j}\nv_add_f32 v{c+j}, v{c+j}, v{r+8+j}")
        e(f"v_cvt_pk_bf16_f32 v{8+2*tl}, v{c}, v{c+1}\nv_cvt_pk_bf16_f32 v{9+2*tl}, v{c+2}, v{c+3}")
        if tl: e("v_cndmask_b32 v10, v10, v95, s[24:25]\nv_cndmask_b32 v11, v11, v95, s[24:25]")
        e(f"buffer_store_dwordx2 {vr(8+2*tl,2)}, v{93+tl}, s[32:35], s39 offen {SC}")
    k.label(Lx)
    L1, L2 = k.newlabel("x1"), k.newlabel("x2")
    e(f"s_cmp_lg_u32 s11, 0\ns_cbranch_scc1 {L1}")
    e("s_mov_b32 s26, s41"); e(xst(0)); e(xst(1)); e("s_add_u32 s26, s41, 4096"); e(xst(2))
    e(f"s_branch {L2}")
    k.label(L1)
    e("s_add_u32 s26, s41, 4096"); e(xst(3)); e("s_add_u32 s26, s41, 8192"); e(xst(4))
    k.label(L2)
    bstamp(k, "xf")

def roleB(k):
    e = k.e
    SLOT = 20480
    GW, RA, RB = 216, 221, 224
    ACC = 32; FR = [176, 196]
    Lgu = k.newlabel("gu0"); Lpk = k.newlabel("pk")
    bstamp(k, "start")
    e("s_and_b32 s5, s2, 7\ns_lshr_b32 s6, s2, 3")
    def tile_ids():
        e("s_lshr_b32 s7, s5, 1\ns_lshl_b32 s7, s7, 2\ns_lshr_b32 s8, s6, 3\ns_add_u32 s7, s7, s8")
        e("s_and_b32 s9, s5, 1\ns_lshl_b32 s8, s9, 3\ns_and_b32 s10, s6, 7\ns_add_u32 s8, s8, s10\ns_lshl_b32 s11, s7, 1\ns_add_u32 s9, s9, s11")
    def gu_vsetup(t):
        e("s_and_b32 s11, s3, 2")
        for i in range(3):
            e(f"v_add_u32 v{t}, {64*i}, v1\nv_mul_u32_u24 v{t+1}, 5462, v{t}\nv_lshrrev_b32 v{t+1}, 16, v{t+1}")
            e(f"v_mul_u32_u24 v{t+2}, 12, v{t+1}\nv_sub_u32 v{t+2}, v{t}, v{t+2}\nv_xor_b32 v{t+2}, s11, v{t+2}")
            e(f"v_mul_u32_u24 v{t+1}, 3072, v{t+1}\nv_lshl_add_u32 v{GW+i}, v{t+2}, 4, v{t+1}")
    def gu_vsetup2(t):
        e(f"v_lshrrev_b32 v{t}, 5, v1\nv_bfe_u32 v{t+1}, v1, 2, 2\nv_lshl_add_u32 v{t+1}, v{t}, 3, v{t+1}\nv_mul_u32_u24 v{t+1}, 192, v{t+1}")
        e(f"v_and_b32 v{t+2}, 1, v1\nv_lshl_add_u32 v{t+1}, v{t+2}, 4, v{t+1}\nv_bfe_u32 v{t+2}, v1, 1, 1\nv_lshl_add_u32 v{t+1}, v{t+2}, 3, v{t+1}")
        e(f"v_bfe_u32 v{t+2}, v1, 4, 1\nv_mul_u32_u24 v{t+3}, 6144, v{t+2}\nv_add_u32 v{t+1}, v{t+1}, v{t+3}")
        e("s_lshr_b32 s11, s3, 1\ns_mul_i32 s11, s11, 3")
        for a in range(3):
            e(f"v_xor_b32 v{t+3}, s11, v{t+2}\nv_lshl_add_u32 v{RA+a}, v{t+3}, 5, v{t+1}\ns_add_u32 s11, s11, 1")
        e(f"s_and_b32 s11, s3, 1\ns_lshl_b32 s11, s11, 12\ns_add_u32 s11, s11, 12288\nv_add_u32 v{RB}, s11, v2")
        e(f"v_and_b32 v{RB+1}, 3, v1\nv_lshlrev_b32 v{RB+1}, 7, v{RB+1}")
    def zero_acc():
        for j in range(96): e(f"v_mov_b32 v{ACC+j}, 0")
    def gu_ssetup():
        e("s_lshr_b32 s38, s3, 1\ns_and_b32 s39, s3, 1\ns_mul_i32 s40, s38, 3")
        srd_from(k, 16, PWS, XN_BYTES, XN_OFF)
        e(f"s_cmp_eq_u32 s38, 0\ns_cselect_b32 s20, s{PWG}, s{PWU}\ns_cselect_b32 s21, s{PWG+1}, s{PWU+1}")
        e(f"s_mov_b32 s22, {hex(NBYTES['wg'])}\ns_mov_b32 s23, 0x20000")
        e("s_mul_i32 s12, s39, 49152\ns_mul_i32 s32, s8, 192\ns_add_u32 s12, s12, s32")
        e(f"s_lshl_b32 s32, s7, 2\ns_add_u32 s32, s32, s3\ns_mul_i32 s13, s32, 40960\ns_lshl_b32 s42, s32, 9\ns_add_u32 s42, s42, {XNF}")
        e("s_mul_i32 s14, s3, 3072\ns_lshl_b32 s15, s3, 11\ns_add_u32 s15, s15, 12288")
    def issueW(sl):
        return [[f"s_add_u32 m0, s14, {sl*SLOT}"],
                [f"buffer_load_dwordx4 v{GW}, s[20:23], s12 offen lds", "s_add_u32 m0, m0, 1024"],
                [f"buffer_load_dwordx4 v{GW+1}, s[20:23], s12 offen lds", "s_add_u32 m0, m0, 1024"],
                [f"buffer_load_dwordx4 v{GW+2}, s[20:23], s12 offen lds", f"s_add_u32 s12, s12, {32*3072}"]]
    def issueX(sl):
        return [[f"s_add_u32 m0, s15, {sl*SLOT}"],
                [f"buffer_load_dwordx4 v2, s[16:19], s13 offen {SC} lds"],
                [f"buffer_load_dwordx4 v2, s[16:19], s13 offen offset:1024 {SC} lds", "s_add_u32 s13, s13, 2048"]]
    xn_poll = [f"buffer_load_dword v16, v{RB+1}, {FL}, s42 offen {SC}"]
    e("s_lshl_b32 s4, s5, 4\ns_lshr_b32 s11, s6, 1\ns_add_u32 s4, s4, s11\ns_and_b32 s11, s6, 1")
    def pre():
        tile_ids(); gu_vsetup(232); gu_vsetup2(232)
    if CPF:
        Lc = k.newlabel("nocp"); Lh = k.newlabel("here")
        e(f"s_cmp_lg_u32 s6, 31\ns_cbranch_scc1 {Lc}")
        e("s_getpc_b64 s[34:35]")
        k.label(Lh)
        e(f"s_sub_u32 s34, s34, {Lh}-{k.name}\ns_subb_u32 s35, s35, 0")
        e(f"v_lshlrev_b32 v9, 7, v0\nv_min_u32 v9, {k.name}_end-{k.name}-4, v9")
        e("global_load_dword v255, v9, s[34:35]")
        k.label(Lc)
    phase0(k)
    pre()
    gu_ssetup()
    zero_acc()
    e("s_waitcnt vmcnt(2)")
    setflag(k, "s43", 10)
    Lw0 = k.newlabel("w0")
    e(f"s_waitcnt vmcnt(1)\ns_cmp_eq_u32 s3, 0\ns_cbranch_scc1 {Lw0}\ns_waitcnt vmcnt(0)")
    k.label(Lw0)
    e("s_barrier")
    setflag(k, "s75", 10)
    e(f"s_setprio {BP0}\ns_mov_b32 s11, {HUGE}")
    e(f"s_lshl_b32 s41, s2, 7\ns_add_u32 s41, s41, {QF}\nv_mov_b32 v31, 0")
    def go():
        if QH >= 0: spin(k, xn_poll + [f"buffer_load_dword v29, v31, {FL}, s41 offen {SC}"], [16, 29], 17, slp=BSL)
        else: spin(k, xn_poll, [16], 17, slp=BSL)
    e(f"s_cmp_lt_u32 s2, 136\ns_cbranch_scc1 {Lpk}")
    go()
    for c in range(4): emit(k, issueW(c)); emit(k, issueX(c))
    e(f"s_branch {Lgu}")
    k.label(Lpk)
    PKB = 3*SLOT; PD = 128
    e("s_mov_b32 s4, s2\ns_mul_i32 s33, s3, 320")
    for i in range(5):
        e(f"v_add_u32 v13, {64*i}, v1\nv_add_u32 v13, s33, v13\nv_mul_u32_u24 v{19+i}, 52429, v13\nv_lshrrev_b32 v{19+i}, 22, v{19+i}")
        e(f"v_mul_u32_u24 v14, 80, v{19+i}\nv_sub_u32 v14, v13, v14\nv_lshlrev_b32 v{24+i}, 4, v14")
    def pack_issue(first, lo=0):
        e("s_mul_i32 s32, s4, 241\ns_lshr_b32 s32, s32, 13\ns_mul_i32 s33, s32, 34\ns_sub_u32 s33, s4, s33")
        e("s_mul_i32 s34, s32, 384\ns_lshl_b32 s35, s33, 4\ns_add_u32 s34, s34, s35")
        e("s_mul_i32 s35, s32, 160\ns_mul_i32 s36, s33, 20\ns_add_u32 s36, s36, s35\ns_sub_u32 s36, s36, 480")
        e("s_mul_i32 s37, s33, 80\ns_add_u32 s37, s37, s35\ns_sub_u32 s37, s37, 2544")
        e("s_cmp_ge_u32 s33, 32\ns_cselect_b32 s36, s37, s36\ns_cselect_b32 s43, 16, 0")
        for i in range(5):
            e(f"v_lshrrev_b32 v13, 2, v{19+i}\nv_mul_u32_u24 v13, s43, v13\nv_add_u32 v13, v13, v{19+i}\nv_mul_u32_u24 v13, 1280, v13\nv_add_u32 v{3+i}, v13, v{24+i}")
        first()
        e(f"s_cmp_ge_u32 s33, 24\ns_cselect_b32 s34, s36, s34\ns_cselect_b32 s24, s{PWO}, s{PWD}\ns_cselect_b32 s25, s{PWO+1}, s{PWD+1}")
        e(f"s_cselect_b32 s26, {hex(NBYTES['wo'])}, s26\ns_mov_b32 s27, 0x20000\ns_mul_i32 s34, s34, 1280")
        e(f"s_mul_i32 s35, s3, 5120\ns_add_u32 m0, s35, {PKB+lo}")
        for i in range(5):
            e(f"buffer_load_dwordx4 v{3+i}, s[24:27], s34 offen lds")
            if i < 4: e("s_add_u32 m0, m0, 1024")
    def pack_finish(lo=0):
        for c in range(2):
            for a in range(3):
                for u in range(2):
                    ad, off = ("v10", a*64) if a < 2 else ("v11", 0)
                    e(f"ds_read_b64_tr_b16 {vr(PD+12*c+4*a+2*u,2)}, {ad} offset:{lo + c*160 + off + u*5120}")
        e(f"s_mul_i32 s5, s3, {2*136*2560}\ns_mul_i32 s6, s4, 2560\ns_add_u32 s5, s5, s6\ns_add_u32 s6, s5, {136*2560}")
        e("s_waitcnt lgkmcnt(0)")
    e("v_lshrrev_b32 v8, 5, v1\nv_bfe_u32 v9, v1, 2, 2\nv_lshl_add_u32 v9, v8, 3, v9\nv_mul_u32_u24 v9, 1280, v9")
    e(f"s_mul_i32 s32, s3, 320\ns_add_u32 s32, s32, {PKB}\nv_add_u32 v9, s32, v9")
    e("v_and_b32 v16, 1, v1\nv_bfe_u32 v17, v1, 1, 1\nv_bfe_u32 v18, v1, 4, 1")
    e("v_lshl_add_u32 v10, v16, 5, v9\nv_lshl_add_u32 v10, v17, 3, v10\nv_lshl_add_u32 v10, v18, 4, v10")
    e("v_lshl_add_u32 v11, v16, 4, v9\nv_lshl_add_u32 v11, v17, 3, v11\nv_add_u32 v11, 128, v11\nv_lshl_add_u32 v11, v18, 18, v11")
    e("v_and_b32 v12, 15, v1\nv_lshlrev_b32 v12, 4, v12\nv_lshl_add_u32 v12, v8, 8, v12\nv_lshl_add_u32 v12, v18, 30, v12")
    e(f"s_lshl_b32 s75, s4, 2\ns_add_u32 s75, s75, {PKF}")
    e(f"s_mov_b32 s26, {hex(NBYTES['wd'])}")
    pack_issue(go)
    for c in range(2): emit(k, issueW(c)); emit(k, issueX(c))
    e("s_waitcnt vmcnt(10)\ns_barrier")
    pack_finish()
    emit(k, issueW(2)); emit(k, issueX(2))
    e("s_barrier")
    emit(k, issueW(3)); emit(k, issueX(3))
    k.label(Lgu)
    bstamp(k, "p0")
    srd_from(k, 28, PWS, AF_BYTES, AF_OFF)
    def reads(fs, sl, ks):
        L = [f"ds_read_b128 {vr(FR[fs]+12,4)}, v{RB} offset:{sl*SLOT + ks*1024}"]
        for a in range(3):
            for u in range(2):
                L.append(f"ds_read_b64_tr_b16 {vr(FR[fs]+4*a+2*u,2)}, v{RA+a} offset:{sl*SLOT + (16*ks+4*u)*192}")
            if a == 0: L.append(f"ds_read_b128 {vr(FR[fs]+16,4)}, v{RB} offset:{sl*SLOT + 2048 + ks*1024}")
        return L
    def mfmas(fs):
        return [f"{MF} {vr(ACC+16*(2*a+b),16)}, {vr(FR[fs]+4*a,4)}, {vr(FR[fs]+12+4*b,4)}, {vr(ACC+16*(2*a+b),16)}" for a in range(3) for b in range(2)]
    e("s_mov_b32 s42, 0\nv_min_u32 v4, 33, v1\nv_lshlrev_b32 v4, 4, v4")
    e("s_waitcnt vmcnt(15)\ns_barrier")
    e(f"s_setprio {GP0}")
    bstamp(k, "gu0")
    if ONLY == "A":
        e("s_waitcnt vmcnt(0)"); stamp_dump(k, 0, 6, "s2", PWS); e("s_endpgm")
    emit(k, reads(0, 0, 0))
    srd_from(k, 24, PWS, WP_BYTES, WP_OFF)
    e(f"s_mul_i32 s11, s10, {4*34*2560}\ns_mul_i32 s43, s3, 5120\ns_add_u32 s11, s11, s43\ns_mov_b32 s35, {HUGE}")
    st_loads = [f"buffer_load_dwordx4 v[16:19], v4, {FL}, s36 offen {SC}"]
    def issueP(sl):
        L = [[f"s_add_u32 m0, s43, {sl*SLOT}", "s_add_u32 s33, s11, 4096"]]
        for i in range(4): L.append([f"buffer_load_dwordx4 v2, s[24:27], s11 offen offset:{i*1024} {SC} lds"])
        L[4].append("s_add_u32 m0, m0, 4096")
        L.append([f"buffer_load_dwordx4 v2, s[24:27], s33 offen {SC} lds", f"s_add_u32 s11, s11, {34*2560}"])
        return L
    L = k.newlabel("gu")
    def trip(last):
        for sl in range(4):
            e("s_waitcnt lgkmcnt(0)")
            rd = reads(1, sl, 1); mf = mfmas(0)
            sh = [rd[0:2], rd[2:4], rd[4:6], rd[6:8], [], []]
            if not last and sl == 1: sh[4] = ["s_cmp_eq_u32 s42, 3", f"s_cselect_b32 s36, {PKF}, s35"] + st_loads
            for i in range(6):
                e(mf[i]); emit(k, sh[i])
            if sl == 0 and not last:
                Ls = k.newlabel("nps")
                e(f"s_cmp_ge_u32 s2, 136\ns_cbranch_scc1 {Ls}\ns_cmp_lg_u32 s42, 1\ns_cbranch_scc1 {Ls}")
                for c in range(2):
                    for a in range(3):
                        e(f"buffer_store_dwordx4 {vr(PD+12*c+4*a,4)}, {'v2' if a < 2 else 'v12'}, s[24:27], s{5+c} offen offset:{a*1024} {SC}")
                k.label(Ls)
            if sl == 1 and not last:
                Ls = k.newlabel("npf")
                e(f"s_cmp_ge_u32 s2, 136\ns_cbranch_scc1 {Ls}\ns_cmp_lg_u32 s42, 2\ns_cbranch_scc1 {Ls}")
                setflag(k, "s75", 10)
                k.label(Ls)
            if sl == 2 and GSW >= 0 and not last:
                Lt = k.newlabel("gsw")
                e(f"s_cmp_lg_u32 s42, {GSW}\ns_cbranch_scc1 {Lt}\ns_setprio {GP1}")
                k.label(Lt)
            e("s_waitcnt vmcnt(10) lgkmcnt(0)\ns_barrier")
            rd = reads(0, (sl+1) % 4, 0) if not (last and sl == 3) else [[]]*8
            mf = mfmas(1)
            if not last:
                iw = issueW(sl); ix = issueX(sl)
                sh = [rd[0:2] + iw[0], rd[2:4] + iw[1], rd[4:6] + iw[2], rd[6:8] + iw[3] + ix[0], ix[1], ix[2]]
                if sl == 3: sh[5] = sh[5] + ["s_add_u32 s42, s42, 1", "s_cmp_lt_u32 s42, 4"]
            else:
                ip = issueP(sl)
                sh = [rd[0:2] + ip[0], rd[2:4] + ip[1], rd[4:6] + ip[2], rd[6:8] + ip[3], ip[4], ip[5]]
            for i in range(6):
                e(mf[i]); emit(k, sh[i])
    k.label(L, 6)
    trip(False)
    e(f"s_cbranch_scc1 {L}")
    Lok = k.newlabel("pkok")
    e(f"s_setprio 2\nv_xor_b32 v20, {TAG}, v16")
    for r in (17, 18, 19): e(f"v_xor_b32 v{r}, {TAG}, v{r}\nv_or_b32 v20, v20, v{r}")
    e(f"v_cmp_ne_u32 vcc, 0, v20\ns_cmp_eq_u64 vcc, 0\ns_cbranch_scc1 {Lok}")
    spin(k, st_loads, [16, 17, 18, 19], 20)
    k.label(Lok)
    e(f"s_setprio {GP0}")
    trip(True)
    e("s_setprio 2")
    e("v_lshrrev_b32 v8, 5, v1")
    e(f"s_mul_i32 s14, s3, {SLOT}")
    srd_from(k, 20, PWS, WP_BYTES, WP_OFF)
    srd_from(k, 16, PX, NBYTES['x'])
    e(f"s_lshl_b32 s12, s10, 2\ns_add_u32 s12, s12, s3\ns_mul_i32 s12, s12, {34*2560}\ns_add_u32 s12, s12, {4*5120}")
    e(f"s_lshl_b32 s32, s7, 1\ns_add_u32 s32, s32, s39\ns_mul_i32 s32, s32, 272\ns_mul_i32 s43, s8, 6\ns_add_u32 s32, s32, s43\ns_add_u32 s32, s32, s40\ns_add_u32 s32, s32, 40\ns_lshl_b32 s32, s32, 10")
    e(f"s_add_u32 s34, s32, {136*1024}\ns_mov_b32 s33, {hex(f32bits(-LOG2E))}")
    e("s_waitcnt lgkmcnt(0)")
    bstamp(k, "gu1")
    def issueW2(sl):
        L = [[f"s_add_u32 m0, s14, {sl*5120}", "s_add_u32 s33, s12, 4096"]]
        for i in range(4): L.append([f"buffer_load_dwordx4 v2, s[20:23], s12 offen offset:{i*1024} {SC} lds"])
        L[4].append("s_add_u32 m0, m0, 4096")
        L.append([f"buffer_load_dwordx4 v2, s[20:23], s33 offen {SC} lds", "s_add_u32 s12, s12, 5120"])
        return L
    T = 176
    for a in range(3):
        for b in range(2):
            g = ACC + 16*(2*a+b); u = g + 8
            for j in range(8): e(f"v_mul_f32 v{T+j}, s33, v{g+j}")
            for j in range(8): e(f"v_exp_f32 v{T+j}, v{T+j}")
            for j in range(8): e(f"v_mul_f32 v{g+j}, v{g+j}, v{u+j}")
            for j in range(8): e(f"v_add_f32 v{T+j}, 1.0, v{T+j}")
            for j in range(8): e(f"v_rcp_f32 v{T+j}, v{T+j}")
            for j in range(8): e(f"v_mul_f32 v{g+j}, v{g+j}, v{T+j}")
            for j in range(4): e(f"v_cvt_pk_bf16_f32 v{u+j}, v{g+2*j}, v{g+2*j+1}")
            e(f"buffer_store_dwordx4 {vr(u,4)}, v2, s[28:31], {'s34' if b else 's32'} offen offset:{a*1024} {SC}")
    wq_ = []
    assert not wq_
    e("v_add_u32 v10, s14, v2\nv_and_b32 v11, 15, v1\nv_lshlrev_b32 v11, 4, v11\nv_lshl_add_u32 v11, v8, 8, v11\nv_bfe_u32 v9, v1, 4, 1")
    e("v_lshl_add_u32 v7, v9, 30, v11\nv_lshl_add_u32 v11, v9, 18, v11\nv_add_u32 v11, s14, v11")
    e(f"s_lshl_b32 s35, s7, 4\ns_add_u32 s36, s35, s8\ns_lshl_b32 s36, s36, 7\ns_add_u32 s36, s36, {HF}")
    e(f"s_mul_i32 s24, s9, {272*1024}\ns_mul_i32 s32, s3, {24*1024}\ns_add_u32 s26, s24, s32\ns_add_u32 s26, s26, {40*1024}\ns_add_u32 s27, s26, {136*1024}")
    e("v_and_b32 v14, 3, v1\nv_lshlrev_b32 v14, 7, v14\nv_and_b32 v6, 1, v1\nv_lshlrev_b32 v6, 7, v6")
    e(f"s_lshl_b32 s32, s3, 2\ns_add_u32 s32, s32, s35\ns_lshl_b32 s32, s32, 7\ns_add_u32 s32, s32, {HF}")
    e("s_lshr_b32 s40, s3, 1\ns_and_b32 s41, s3, 1")
    e("s_lshl_b32 s34, s9, 1\ns_add_u32 s34, s34, s40\ns_mul_i32 s34, s34, 40960\ns_mul_i32 s33, s10, 160\ns_add_u32 s43, s34, s33")
    e("v_and_b32 v5, 31, v1\nv_mul_u32_u24 v5, 1280, v5")
    e("s_lshl_b32 s34, s41, 6\nv_lshl_add_u32 v12, v8, 5, v5\nv_add_u32 v12, s34, v12")
    e("s_lshl_b32 s34, s41, 3\ns_add_u32 s34, s34, 128\nv_lshl_add_u32 v13, v8, 4, v5\nv_add_u32 v13, s34, v13")
    e("s_mul_i32 s34, s40, 10240\ns_lshl_b32 s33, s41, 12\ns_add_u32 s33, s33, s34\nv_add_u32 v15, s33, v2")
    e("s_lshl_b32 s33, s41, 10\ns_add_u32 s33, s33, s34\ns_add_u32 s33, s33, 8192\nv_add_u32 v3, s33, v2")
    e(f"s_lshl_b32 s25, s9, 3\ns_lshl_b32 s33, s3, 1\ns_add_u32 s25, s25, s33\ns_lshl_b32 s25, s25, 7\ns_add_u32 s25, s25, {OF}")
    e(f"s_mul_i32 s33, s3, {10*1024}\ns_add_u32 s24, s24, s33")
    e("s_waitcnt vmcnt(0)\ns_barrier")
    setflag(k, "s36", 16)
    hl = [f"buffer_load_dword v16, v14, {FL}, s32 offen {SC}"]
    XS = 232; G4 = [20, 244]
    e(f"s_add_u32 s34, s12, {24*2560}\ns_add_u32 s35, s12, {25*2560}")
    srd_from(k, 36, POUT, NBYTES['out'])
    spin(k, hl, [16], 17)
    e(f"s_setprio {TP}")
    XR = 128; FA = [208, 220]
    def issueX2(rs):
        L = []
        for ks in range(2):
            for b in range(2):
                L.append([f"buffer_load_dwordx4 {vr(XR+16*rs+8*ks+4*b,4)}, v2, s[28:31], s{26+b} offen offset:{ks*1024} {SC}"])
        L[3] += ["s_add_u32 s26, s26, 2048", "s_add_u32 s27, s27, 2048"]
        return L
    for g in range(4): emit(k, issueX2(g))
    def reads2(fs, sl, ks):
        return [f"ds_read_b128 {vr(FA[fs]+4*a,4)}, {'v10' if a < 2 else 'v11'} offset:{sl*5120 + ks*2560 + a*1024}" for a in range(3)]
    def mfmas2(fs, rs, ks, c0=False):
        return [f"{MF} {vr(ACC+16*(3*b+a),16)}, {vr(FA[fs]+4*a,4)}, {vr(XR+16*rs+8*ks+4*b,4)}, {'0' if c0 else vr(ACC+16*(3*b+a),16)}" for a in range(3) for b in range(2)]
    e(f"s_mov_b32 s42, 0\ns_setprio {DP}")
    emit(k, reads2(0, 0, 0))
    e("s_waitcnt vmcnt(14) lgkmcnt(0)")
    bstamp(k, "dn0")
    L = k.newlabel("dn"); Lm = k.newlabel("dnm")
    rd = reads2(1, 0, 1); mf = mfmas2(0, 0, 0, True)
    for i in range(6):
        e(mf[i]); emit(k, rd[i:i+1])
    e("s_waitcnt vmcnt(0)")
    for ks in range(2):
        for a in range(3):
            e(f"buffer_load_dwordx4 {vr(G4[ks]+4*a,4)}, {'v2' if a < 2 else 'v7'}, s[20:23], s{34+ks} offen offset:{a*1024} {SC}")
    e(f"buffer_load_dwordx4 {vr(XS,4)}, v12, s[16:19], s43 offen")
    e(f"buffer_load_dwordx4 {vr(XS+4,4)}, v12, s[16:19], s43 offen offset:16")
    e(f"buffer_load_dwordx2 {vr(XS+8,2)}, v13, s[16:19], s43 offen")
    e(f"s_branch {Lm}")
    k.label(L, 6)
    for sl in range(4):
        e("s_waitcnt lgkmcnt(0)")
        rd = reads2(1, sl, 1); mf = mfmas2(0, sl, 0)
        sh = [rd[0:1], rd[1:2], rd[2:3], [], [], []]
        if sl == 0: sh[3] = ["s_cmp_eq_u32 s42, 2", f"s_cselect_b32 s26, {HUGE}, s26", f"s_cselect_b32 s27, {HUGE}, s27"]
        for i in range(6):
            e(mf[i]); emit(k, sh[i])
        if sl == 0: k.label(Lm)
        e("s_waitcnt vmcnt(18) lgkmcnt(0)")
        rd = reads2(0, (sl+1) % 4, 0); mf = mfmas2(1, sl, 1)
        iw = issueW2(sl); ix = issueX2(sl)
        sh = [rd[0:1] + iw[0], rd[1:2] + iw[1], rd[2:3] + iw[2], iw[3] + iw[4], iw[5], ix[0] + ix[1] + ix[2] + ix[3]]
        if sl == 3: sh[5] = sh[5] + ["s_add_u32 s42, s42, 1", "s_cmp_lt_u32 s42, 3"]
        for i in range(6):
            e(mf[i]); emit(k, sh[i])
    e(f"s_cbranch_scc1 {L}")
    e("s_setprio 2")
    emit(k, reads2(1, 0, 1))
    bstamp(k, "dn1")
    if ONLY != "B": spin(k, [f"buffer_load_dword v16, v6, {FL}, s25 offen {SC}"], [16], 17)
    else: e("s_waitcnt vmcnt(0)")
    bstamp(k, "of")
    for b in range(2):
        for t in range(10):
            if t % 4 == 0: e(f"s_add_u32 s26, s24, {b*136*1024 + t*1024}")
            e(f"buffer_load_dwordx4 {vr(XR+40*b+4*t,4)}, v2, s[28:31], s26 offen offset:{(t%4)*1024} {SC}")
    lds = ["n0"]*3 + ["n1"]*3
    wr = [f"ds_write_b128 v10, {vr(ACC+4*q,4)} offset:{q*1024}" for q in range(10)]
    for u in range(20):
        b, t = divmod(u, 10)
        n = 8*b + t
        if t < 8:
            last = max([i for i, x in enumerate(lds) if x == f"n{n}"], default=-1)
            lds = lds[last+1:]
            e(f"s_waitcnt vmcnt({19-u}) lgkmcnt({min(15, len(lds))})")
            F = FA[n & 1]
        else:
            e(f"s_waitcnt vmcnt({19-u})")
            F = G4[t-8]
        for a in range(3):
            e(f"{MF} {vr(ACC+16*(3*b+a),16)}, {vr(F+4*a,4)}, {vr(XR+40*b+4*t,4)}, {vr(ACC+16*(3*b+a),16)}")
            if b == 1 and t >= 2 and wr and a < 2:
                e(wr.pop(0)); lds.append("w")
        if t < 8 and n + 2 < 16:
            t2 = (n + 2) % 8
            emit(k, reads2(n & 1, t2 >> 1, t2 & 1)); lds += [f"n{n+2}"]*3
    assert not wr
    bstamp(k, "mm")
    for q in range(10):
        e(f"ds_write_b128 v10, {vr(ACC+48+4*q,4)} offset:{(10+q)*1024}")
    e("s_waitcnt lgkmcnt(0)\ns_barrier")
    R = 128
    for w in range(4):
        for q in range(4):
            e(f"ds_read_b128 {vr(R+20*w+4*q,4)}, v15 offset:{w*SLOT + q*1024}")
        e(f"ds_read_b128 {vr(R+20*w+16,4)}, v3 offset:{w*SLOT}")
    for j in range(10):
        e(f"v_lshlrev_b32 v{ACC+2*j}, 16, v{XS+j}\nv_and_b32 v{ACC+2*j+1}, 0xffff0000, v{XS+j}")
    for w in range(4):
        e(f"s_waitcnt lgkmcnt({15-5*w})")
        for j in range(0, 20, 2):
            e(f"v_pk_add_f32 {vr(ACC+j,2)}, {vr(ACC+j,2)}, {vr(R+20*w+j,2)}")
    for j in range(10):
        e(f"v_cvt_pk_bf16_f32 v{XS+j}, v{ACC+2*j}, v{ACC+2*j+1}")
    bstamp(k, "rd")
    e(f"buffer_store_dwordx4 {vr(XS,4)}, v12, s[36:39], s43 offen")
    e(f"buffer_store_dwordx4 {vr(XS+4,4)}, v12, s[36:39], s43 offen offset:16")
    e(f"buffer_store_dwordx2 {vr(XS+8,2)}, v13, s[36:39], s43 offen")
    stamp_dump(k, 0, 9, "s2", PWS)
    e("s_endpgm")

def w160_voffs(k, dst, t):
    e = k.e
    for i in range(5):
        e(f"v_add_u32 v{t}, {64*i}, v1\nv_mul_u32_u24 v{t+1}, 6554, v{t}\nv_lshrrev_b32 v{t+1}, 16, v{t+1}")
        e(f"v_mul_u32_u24 v{t+2}, 10, v{t+1}\nv_sub_u32 v{t+2}, v{t}, v{t+2}")
        e(f"v_and_b32 v{t}, 24, v{t+1}\nv_bfe_u32 v{t+3}, v{t+1}, 1, 2\nv_add_u32 v{t}, v{t}, v{t+3}\nv_and_b32 v{t+3}, 1, v{t+1}\nv_lshl_add_u32 v{t}, v{t+3}, 2, v{t}")
        e(f"v_mul_u32_u24 v{t}, 1280, v{t}\nv_lshl_add_u32 v{dst+i}, v{t+2}, 4, v{t}")

def roleA(k):
    e = k.e
    KVSLOT = 24576; KV0 = 8192
    QS = 20480; QX = 10240
    S0, S1 = 32, 48; SA = 64
    Q = [16, 24]; O = [144, 160]; P = [96, 104]; KVB = [112, 128]; KT = 176
    KL = lambda s: KVB[s]; KH = lambda s: KVB[s]+4; V0 = lambda s: KVB[s]+8; V1 = lambda s: KVB[s]+12
    AKL, AKH, AV, BKH, BV = 8, 9, 10, 11, 12
    WV = 16; XV = 21; RB = 24; ONES = 28
    FRG = 80
    AO2 = 241; RB2 = 224
    stamp(k, 0)
    e("s_bfe_u32 s8, s2, 0x20001\ns_lshl_b32 s8, s8, 3\ns_lshr_b32 s9, s2, 5\ns_add_u32 s8, s8, s9")
    e("s_and_b32 s9, s2, 1\ns_lshl_b32 s9, s9, 2\ns_bfe_u32 s32, s2, 0x20003\ns_add_u32 s9, s9, s32")
    e("s_add_u32 s11, s8, s9\ns_mul_i32 s11, s11, 3\ns_mul_i32 s32, s11, 205\ns_lshr_b32 s32, s32, 11\ns_mul_i32 s32, s32, 10\ns_sub_u32 s11, s11, s32")
    x_voffs(k, XV, 3)
    w160_voffs(k, WV, 3)
    Lw = k.newlabel("wrole")
    e(f"s_mul_i32 s12, s3, 40960\ns_mul_i32 s32, s9, 160\ns_add_u32 s12, s12, s32\ns_mov_b32 s13, {64*1280}")
    e("s_waitcnt lgkmcnt(0)")
    srd_from(k, 20, PWQ, NBYTES['wq'])
    e(f"s_mov_b64 s[18:19], -1\ns_cmp_lt_u32 s3, 2\ns_cbranch_scc1 {Lw}\ns_mov_b64 s[18:19], 1")
    for i in range(4): e(f"v_add_u32 v{WV+i}, {10240*i}, v{XV+(i&1)}")
    e(f"v_mov_b32 v{WV+4}, {HUGE}")
    e("s_lshl_b32 s33, s8, 1\ns_add_u32 s33, s33, s3\ns_sub_u32 s33, s33, 2\ns_mul_i32 s12, s33, 40960\ns_mov_b32 s13, 128")
    srd_from(k, 20, PX, NBYTES['x'])
    k.label(Lw)
    e("s_mul_i32 s34, s11, s13\ns_add_u32 s34, s34, s12\ns_mul_i32 s35, s13, 10\ns_add_u32 s35, s35, s12\ns_mul_i32 s14, s3, 5120")
    def st_issue(slot):
        L = [[f"s_add_u32 m0, s14, {slot*QS}"]]
        for i in range(5):
            g = [f"buffer_load_dwordx4 v{WV+i}, s[20:23], s34 offen lds"]
            if i < 4: g += ["s_add_u32 m0, m0, 1024"]
            else: g = ["s_mov_b64 exec, s[18:19]"] + g + ["s_mov_b64 exec, -1", "s_add_u32 s34, s34, s13", "s_cmp_eq_u32 s34, s35", "s_cselect_b32 s34, s12, s34"]
            L.append(g)
        return L
    tag_setup(k)
    srd_from(k, 24, PWS, KV_BYTES, KV_OFF)
    srd_from(k, 28, PWS, AF_BYTES, AF_OFF)
    e("v_lshrrev_b32 v6, 5, v1")
    e("v_bfe_u32 v7, v1, 2, 2\nv_lshl_add_u32 v7, v6, 2, v7\nv_mul_u32_u24 v4, 320, v7")
    e("v_and_b32 v7, 1, v1\nv_lshlrev_b32 v7, 4, v7")
    e("v_bfe_u32 v8, v1, 1, 1\nv_lshl_add_u32 v7, v8, 3, v7")
    e("v_and_b32 v8, 16, v1\nv_cmp_ne_u32 vcc, 0, v8\nv_mov_b32 v8, 32\nv_cndmask_b32 v7, v7, v8, vcc")
    e("v_add_u32 v4, v4, v7\ns_mul_i32 s32, s3, 40\nv_add_u32 v4, s32, v4")
    e("v_and_b32 v8, 19, v1\nv_cmp_lt_u32 vcc, 16, v8\nv_mov_b32 v8, 0x40000\nv_cndmask_b32 v4, v4, v8, vcc")
    e("v_add_u32 v5, 40960, v4")
    x_raddr(k, RB, 7, str(QX))
    for j in range(4): e(f"v_mov_b32 v{ONES+j}, 0x3f803f80")
    e(f"v_and_b32 v7, 31, v1\nv_lshlrev_b32 v{BKH}, 3, v7\nv_add_u32 v{BKH}, 1024, v{BKH}\nv_lshl_add_u32 v{BKH}, v6, 18, v{BKH}")
    e("v_and_b32 v13, 19, v7\nv_bfe_u32 v14, v7, 2, 1\nv_lshl_add_u32 v13, v14, 3, v13\nv_bfe_u32 v14, v7, 3, 1\nv_lshl_add_u32 v13, v14, 2, v13")
    e(f"v_mul_u32_u24 v{BV}, 24, v6\nv_add_u32 v{BV}, v{BV}, v13")
    e("v_cmp_le_u32 vcc, 28, v7\nv_cndmask_b32 v13, 0, 1, vcc\nv_xor_b32 v13, v13, v6\nv_mul_u32_u24 v13, 24, v13\nv_add_u32 v13, 20, v13")
    e("v_and_b32 v15, 27, v7\nv_cmp_ne_u32 vcc, 24, v15\nv_mov_b32 v15, 0x4000\nv_cndmask_b32 v13, v13, v15, vcc")
    e(f"v_cmp_le_u32 vcc, 20, v7\nv_cndmask_b32 v{BV}, v{BV}, v13, vcc")
    e(f"v_lshlrev_b32 v{BV}, 4, v{BV}\nv_add_u32 v{BV}, 1536, v{BV}")
    c0 = KV0 + 2*KVSLOT
    e(f"v_add_u32 v{AKL}, {c0}, v2\nv_add_u32 v{AKH}, {c0}, v{BKH}\nv_add_u32 v{AV}, {c0}, v{BV}")
    e(f"s_lshr_b32 s32, s3, 1\ns_lshl_b32 s32, s32, 9\ns_and_b32 s33, s3, 1\ns_lshl_b32 s33, s33, 3\ns_add_u32 s32, s32, s33")
    e(f"v_lshl_add_u32 v{AO2}, v7, 4, s32\nv_lshl_add_u32 v{AO2}, v6, 30, v{AO2}")
    e(f"v_lshlrev_b32 v13, {KVS}, v1\nv_lshlrev_b32 v14, 3, v7")
    e(f"s_lshl_b32 s39, s8, 9\ns_add_u32 s39, s39, {STAT}\ns_lshl_b32 s38, s3, {KVS+6}\ns_add_u32 s38, s38, {KVF}\ns_mul_i32 s36, s3, 6144")
    for t in range(4): e(f"v_mov_b32 v{KT+8*t+6}, 0\nv_mov_b32 v{KT+8*t+7}, 0")
    for j in range(4): e(f"v_add_u32 v{RB2+j}, 40960, v{RB+j}")
    if ADLY == 2: tag_finish(k)
    for sl in range(2): emit(k, st_issue(sl))
    if ADLY != 2: tag_finish(k)
    stamp(k, 1)
    def kv_issue(chunk_soff, slot_base):
        L = []
        for half in range(2):
            L.append([f"s_add_u32 m0, s36, {slot_base + half*3072}", f"s_add_u32 s32, s36, {chunk_soff + half*3072}"])
            for j in range(3):
                L.append([f"buffer_load_dwordx4 v2, s[24:27], s32 offen offset:{j*1024} {SC} lds"])
        return L
    PL = 232
    kv_poll = [f"buffer_load_dword v{PL}, v13, {FL}, s38 offen {SC}"]
    pl_loads = [f"buffer_load_dwordx2 {vr(PL+2,2)}, v14, {FL}, s39 offen {SC}", f"buffer_load_dwordx2 {vr(PL+4,2)}, v14, {FL}, s39 offen offset:256 {SC}"]
    inits = []
    for j in range(8): inits += [(P[1]+j, "0"), (V0(1)+j, "0")]
    for s_ in range(2): inits += [(KH(s_)+2, "0x3f80"), (KH(s_)+3, "0")]
    for j in range(32): inits += [(O[0]+j, "0")]
    inits.sort()
    def hreads(h):
        sl = h % 4; F = FRG + 48*(h & 1); L = []
        so = (sl & 1) * QS; ta = "v5" if sl >= 2 else "v4"; rb = RB2 if sl >= 2 else RB
        for ks in range(4):
            for u in range(2): L.append(f"ds_read_b64_tr_b16 {vr(F+12*ks+2*u,2)}, {ta} offset:{so + ks*2560 + u*160}")
            for b in range(2): L.append(f"ds_read_b128 {vr(F+12*ks+4+4*b,4)}, v{rb+ks} offset:{so + b*5120}")
        return L
    e("s_waitcnt vmcnt(5)\ns_barrier")
    stamp(k, 2)
    emit(k, hreads(0))
    emit(k, st_issue(2))
    kt_loads = [["s_mov_b32 s33, 6144"]]
    for t in range(4):
        so, off = ("0", t*3072) if t < 2 else ("s33", (t-2)*3072)
        kt_loads.append([f"buffer_load_dwordx4 {vr(KT+8*t,4)}, v2, s[24:27], {so} offen offset:{off} {SC}",
                         f"buffer_load_dwordx2 {vr(KT+8*t+4,2)}, v{BKH}, s[24:27], {so} offen offset:{off} {SC}"])
    for h in range(10):
        F = FRG + 48*(h & 1)
        if h < PH:
            n = {0: 5, 7: 5, 8: 0}.get(h, 10) + (3 if h == PH - 1 else 0)
            e(f"s_waitcnt vmcnt({n}) lgkmcnt(0)")
        else:
            if h == PH: spin(k, pl_loads + kv_poll, [PL, PL+3, PL+5], 15, pre_issued=True, slp=KSL)
            e("s_waitcnt lgkmcnt(0)")
        if h < 9: e("s_barrier")
        if h == QH:
            e(f"s_lshl_b32 s32, s2, 7\ns_add_u32 s32, s32, {QF}")
            setflag(k, "s32", 242)
        rd = hreads(h+1) if h < 9 else []
        dm = st_issue(h % 4) if h < 6 else []
        if h == 0: dm = st_issue(3) + dm
        if h == PH - 2: dm = dm + [pl_loads + kv_poll]
        if h == PH: dm = kv_issue(0, KV0 + 2*KVSLOT)
        i = 0
        for ks in range(4):
            first = (h == 0 and ks == 0)
            for acc, bop in ((S0, F+12*ks+4), (S1, F+12*ks+8), (SA, ONES)):
                e(f"{MF} {vr(acc,16)}, {vr(F+12*ks,4)}, {vr(bop,4)}, {'0' if first else vr(acc,16)}")
                emit(k, rd[:2]); rd = rd[2:]
                if dm and (i >= 3 or h in (0, PH, 9)): emit(k, dm.pop(0))
                if h == 9:
                    m = 0
                    while inits and m < 3 and inits[0][0] < F + 12*ks:
                        r, v = inits.pop(0); e(f"v_mov_b32 v{r}, {v}"); m += 1
                i += 1
        emit(k, dm)
    stamp(k, 3)
    for r, v in inits: e(f"v_mov_b32 v{r}, {v}")
    for b in range(2):
        st = PL + 2 + 2*b
        e(f"v_lshlrev_b32 v{238+b}, 16, v{st}\nv_xor_b32 v{238+b}, 0x80000000, v{238+b}\nv_and_b32 v{st}, 0xffff0000, v{st}")
        e(f"v_rcp_f32 v{st}, v{st}\nv_mul_f32 v{st}, {hex(f32bits(QSCALE))}, v{st}")
    def qepi(b):
        L = []; a = S0 + 16*b
        for j in range(12): L.append(f"v_fmac_f32 v{a+j}, v{238+b}, v{SA+j}")
        for j in range(12): L.append(f"v_mul_f32 v{a+j}, v{PL+2+2*b}, v{a+j}")
        for j in range(6): L.append(f"v_cvt_pk_bf16_f32 v{Q[b]+j}, v{a+2*j}, v{a+2*j+1}")
        L += [f"v_mov_b32 v{Q[b]+6}, 0", f"v_mov_b32 v{Q[b]+7}, 0"]
        return L
    MX = [3, 5]
    sxr = lambda b, t: [[80, 208, 32, 64], [48, 80, 208, 64]][b][t]
    def mx(b, t):
        S = sxr(b, t)
        L = [f"v_max3_f32 v{MX[b]}, v{S}, v{S+1}, v{S+2}", f"v_max_f32 v{MX[b]}, v{MX[b]}, v{S+3}"] if t == 0 else []
        for j in range(4 if t == 0 else 0, 16, 2): L.append(f"v_max3_f32 v{MX[b]}, v{MX[b]}, v{S+j}, v{S+j+1}")
        return L
    def qk(b, t):
        S = sxr(b, t)
        return [f"{MF} {vr(S,16)}, {vr(KT+8*t,4)}, {vr(Q[b],4)}, 0", f"{MF} {vr(S,16)}, {vr(KT+8*t+4,4)}, {vr(Q[b]+4,4)}, {vr(S,16)}"]
    def fin(b, offs):
        L = [f"v_mov_b32 v15, v{MX[b]}", f"v_permlane32_swap_b32 v{MX[b]}, v15", f"v_max_f32 v{MX[b]}, v{MX[b]}, v15"]
        if offs: L.append(f"v_add_f32 v{MX[b]}, {hex(f32bits(offs))}, v{MX[b]}")
        L += [f"v_cvt_pk_bf16_f32 v{MX[b]}, -v{MX[b]}, 0", "v_cmp_ne_u32 vcc, 0, v6", f"v_cndmask_b32 v{Q[b]+6}, v{MX[b]}, 0, vcc"]
        return L
    def weave(mfs, vals, per, ex=None):
        for m in mfs:
            e(m)
            if ex: emit(k, ex.pop(0))
            for _ in range(per):
                if vals: e(vals.pop(0))
        for v in vals: e(v)
    e(f"s_mov_b32 s40, 0\ns_mov_b32 s41, {KV0}\ns_add_u32 s35, s36, {KV0}\ns_add_u32 s42, s35, {KVSLOT}\ns_add_u32 s43, s36, {2*KVSLOT}\ns_add_u32 s39, s35, {3*KVSLOT}")
    e(f"s_lshr_b32 s32, s9, 1\ns_mul_i32 s32, s32, 10\ns_mul_i32 s33, s8, 272\ns_add_u32 s32, s32, s33\ns_and_b32 s33, s9, 1")
    e("s_add_u32 s16, s32, s33\ns_add_u32 s16, s16, 8\ns_lshl_b32 s16, s16, 10")
    e("s_lshl_b32 s33, s33, 2\ns_add_u32 s12, s32, s33\ns_add_u32 s12, s12, s3\ns_lshl_b32 s12, s12, 10")
    e(f"s_add_u32 s13, s12, {136*1024}\ns_add_u32 s17, s16, {136*1024}")
    e(f"s_lshl_b32 s14, s8, 3\ns_add_u32 s14, s14, s9\ns_lshl_b32 s14, s14, 7\ns_add_u32 s14, s14, {OF}")
    e("s_waitcnt vmcnt(0)\ns_barrier")
    for t in range(4):
        e(f"ds_read_b128 {vr(KT+8*t,4)}, v{AKL} offset:{t*3072}\nds_read_b64 {vr(KT+8*t+4,2)}, v{AKH} offset:{t*3072}")
    for s in range(2):
        e(f"ds_read_b128 {vr(KL(s),4)}, v{AKL} offset:{s*3072}\nds_read_b64 {vr(KH(s),2)}, v{AKH} offset:{s*3072}")
    e(f"ds_read_b128 {vr(V0(0),4)}, v{AV}\nds_read_b128 {vr(V1(0),4)}, v{AV} offset:768")
    emit(k, qepi(0))
    stamp(k, 4)
    stamp(k, 5)
    e("s_waitcnt lgkmcnt(6)")
    kv1 = kv_issue(KVSLOT, KV0)
    weave(qk(0, 0) + qk(0, 1) + qk(0, 2), qepi(1), 6, kv1)
    weave(qk(0, 3) + qk(1, 0), mx(0, 0) + mx(0, 1), 4, kv1)
    weave(qk(1, 1) + qk(1, 2), mx(0, 2) + mx(0, 3) + fin(0, OFFS), 6)
    e("s_waitcnt lgkmcnt(0)")
    weave(qk(1, 3) + [f"{MF} {vr(S0,16)}, {vr(KL(0),4)}, {vr(Q[0],4)}, 0", f"{MF} {vr(S0,16)}, {vr(KH(0),4)}, {vr(Q[0]+4,4)}, {vr(S0,16)}"],
          mx(1, 0) + [f"v_mov_b32 v{S1+12+j}, 0" for j in range(4)] + mx(1, 1) + mx(1, 2) + mx(1, 3) + fin(1, OFFS), 6)
    dma = lambda so, off: f"buffer_load_dwordx4 v2, s[24:27], {so} offen offset:{off} {SC} lds" if not NOKV else "s_nop 0"
    extra = {(1, 0): ["s_mov_b32 m0, s42"], (1, 1): ["s_add_u32 s38, s43, 4096"], (1, 3): ["s_waitcnt vmcnt(0)", "s_barrier"] if NOKV < 2 else [],
             (2, 3): [dma("s43", 0), dma("s43", 1024)], (3, 3): [dma("s43", 2048), dma("s43", 3072)],
             (4, 0): ["s_add_u32 m0, s42, 4096"], (4, 3): [dma("s38", 0), dma("s38", 1024)],
             (5, 0): [f"s_add_u32 s43, s43, {KVSLOT}"], (5, 1): ["s_add_u32 s40, s40, 1"], (5, 2): [f"s_add_u32 s37, s42, {KVSLOT}"],
             (6, 0): ["s_cmp_eq_u32 s37, s39"], (6, 1): ["s_cselect_b32 s37, s35, s37"],
             (7, 0): ["s_sub_u32 s41, s42, s36"], (7, 1): ["s_mov_b32 s42, s37"],
             (7, 2): ["s_cmp_lt_u32 s40, 8"]}
    e("s_setprio 1")
    stamp(k, 6)
    stamp(k, 7)
    Lloop = k.newlabel("att")
    k.label(Lloop, 6)
    def cv(S, Pb, g):
        return [f"v_cvt_pk_bf16_f32 v{Pb+2*g}, v{S+4*g}, v{S+4*g+1}", f"v_cvt_pk_bf16_f32 v{Pb+2*g+1}, v{S+4*g+2}, v{S+4*g+3}"]
    for jj in range(8):
        for blk in range(2):
            Sc, Sn = (S0, S1) if blk == 0 else (S1, S0)
            valu = []
            for g in range(4):
                for j in range(4): valu.append(f"v_exp_f32{E64} v{Sc+4*g+j}, v{Sc+4*g+j}")
                valu += cv(Sn, P[1-blk], 3) if g == 0 else cv(Sc, P[blk], g-1)
            ks = (jj + blk) & 1; vs = (jj - 1 + blk) & 1; nb = 1 - blk
            ko = ((jj + 2) % 8) * 3072; vo = ((jj + 1) % 8) * 3072
            mf = [[f"{MF} {vr(O[nb],16)}, {vr(V0(vs),4)}, {vr(P[nb],4)}, {vr(O[nb],16)}"],
                  [f"{MF} {vr(Sn,16)}, {vr(KL(ks),4)}, {vr(Q[nb],4)}, 0"],
                  [f"{MF} {vr(Sn,16)}, {vr(KH(ks),4)}, {vr(Q[nb]+4,4)}, {vr(Sn,16)}"],
                  [f"{MF} {vr(O[nb],16)}, {vr(V1(vs),4)}, {vr(P[nb]+4,4)}, {vr(O[nb],16)}"]]
            if blk == 0:
                mf[2].append("s_waitcnt lgkmcnt(0)")
                mf[3].append(f"ds_read_b128 {vr(KL(ks),4)}, v{AKL} offset:{ko}")
                mf[3].append(f"ds_read_b64 {vr(KH(ks),2)}, v{AKH} offset:{ko}")
            else:
                mf[3].append(f"ds_read_b128 {vr(V0(1-vs),4)}, v{AV} offset:{vo}")
                mf[3].append(f"ds_read_b128 {vr(V1(1-vs),4)}, v{AV} offset:{vo+768}")
                if jj == 5: valu.append(f"v_add_u32 v{AKL}, s41, v2"); valu.append(f"v_add_u32 v{AKH}, s41, v{BKH}")
                if jj == 6: valu.append(f"v_add_u32 v{AV}, s41, v{BV}")
                for m in range(4): mf[m] += extra.get((jj, m), [])
            for i, v in enumerate(valu):
                for m in range(4):
                    if PATTERN[m] == i: emit(k, mf[m])
                e(v)
    e(f"s_cbranch_scc1 {Lloop}")
    emit(k, cv(S1, P[1], 3))
    e(f"{MF} {vr(O[1],16)}, {vr(V0(1),4)}, {vr(P[1],4)}, {vr(O[1],16)}")
    e(f"{MF} {vr(O[1],16)}, {vr(V1(1),4)}, {vr(P[1]+4,4)}, {vr(O[1],16)}")
    stamp(k, 8)
    e("s_mov_b32 s40, 0\ns_setprio 3")
    Lout = k.newlabel("out"); Lslow = k.newlabel("slow"); Lpub = k.newlabel("pub")
    k.label(Lout)
    PK = 224; A0 = 208
    for b in range(2):
        e(f"v_rcp_f32 v{A0+b}, v{O[b]+12}")
        for j in range(12): e(f"v_mul_f32 v{O[b]+j}, v{O[b]+j}, v{A0+b}")
        for j in range(6): e(f"v_cvt_pk_bf16_f32 v{PK+8*b+j}, v{O[b]+2*j}, v{O[b]+2*j+1}")
        e(f"buffer_store_dwordx4 {vr(PK+8*b,4)}, v2, s[28:31], s{12+b} offen {SC}")
        e(f"buffer_store_dwordx2 {vr(PK+8*b+4,2)}, v{AO2}, s[28:31], s{16+b} offen {SC}")
    e(f"v_mul_f32 v{A0+2}, 0, v{O[0]+12}\nv_mul_f32 v{A0+3}, 0, v{O[1]+12}")
    for j in range(12):
        for b in range(2): e(f"v_fma_f32 v{A0+2+b}, v{O[b]+j}, 0, v{A0+2+b}")
    e(f"v_cmp_u_f32 vcc, v{A0+2}, v{A0+3}")
    e(f"s_cmp_lg_u32 s40, 0\ns_cbranch_scc1 {Lpub}")
    e(f"s_cmp_lg_u64 vcc, 0\ns_cbranch_scc1 {Lslow}")
    k.label(Lpub)
    e("s_waitcnt vmcnt(0)\ns_barrier")
    setflag(k, "s14", 16)
    Lx = k.newlabel("axit")
    e(f"s_or_b32 s32, s2, s3\ns_cmp_lg_u32 s32, 0\ns_cbranch_scc1 {Lx}")
    e(f"v_lshlrev_b32 v13, 7, v1")
    ld = []
    for i in range(8): ld += [f"s_mov_b32 s38, {HF + 8192*i}", f"buffer_load_dword v{16+i}, v13, {FL}, s38 offen {SC}"]
    if not ONLY: spin(k, ld, list(range(16, 24)), 24)
    setflag(k, "0", 16)
    k.label(Lx)
    stamp_dump(k, 1, 9, "s2", PWS)
    e("s_endpgm")
    k.label(Lslow)
    e("s_waitcnt vmcnt(0) lgkmcnt(0)")
    e(f"s_mov_b32 s40, 1\ns_mov_b32 s41, 0\nv_mov_b32 v{Q[0]+6}, 0\nv_mov_b32 v{Q[1]+6}, 0")
    e(f"v_mov_b32 v{MX[0]}, 0xff800000\nv_mov_b32 v{MX[1]}, 0xff800000")
    def kload():
        e(f"buffer_load_dwordx4 {vr(KL(0),4)}, v2, s[24:27], s41 offen {SC}")
        e(f"buffer_load_dwordx2 {vr(KH(0),2)}, v{BKH}, s[24:27], s41 offen {SC}")
    def qk2():
        for b in range(2):
            S = S0 + 16*b
            e(f"{MF} {vr(S,16)}, {vr(KL(0),4)}, {vr(Q[b],4)}, 0\n{MF} {vr(S,16)}, {vr(KH(0),4)}, {vr(Q[b]+4,4)}, {vr(S,16)}")
    L1 = k.newlabel("sl1"); k.label(L1)
    kload(); e("s_waitcnt vmcnt(0)"); qk2()
    for b in range(2):
        for j in range(0, 16, 2): e(f"v_max3_f32 v{MX[b]}, v{MX[b]}, v{S0+16*b+j}, v{S0+16*b+j+1}")
    e(f"s_add_u32 s41, s41, 3072\ns_cmp_lt_u32 s41, {KV_BYTES}\ns_cbranch_scc1 {L1}")
    for b in range(2): emit(k, fin(b, 0))
    for j in range(32): e(f"v_mov_b32 v{O[0]+j}, 0")
    e("s_mov_b32 s41, 0")
    L2 = k.newlabel("sl2"); k.label(L2)
    kload()
    e(f"buffer_load_dwordx4 {vr(V0(0),4)}, v{BV}, s[24:27], s41 offen {SC}")
    e(f"buffer_load_dwordx4 {vr(V1(0),4)}, v{BV}, s[24:27], s41 offen offset:768 {SC}")
    e("s_waitcnt vmcnt(0)"); qk2()
    for b in range(2):
        S = S0 + 16*b
        for j in range(16): e(f"v_exp_f32 v{S+j}, v{S+j}")
        for g in range(4): emit(k, cv(S, P[b], g))
        e(f"{MF} {vr(O[b],16)}, {vr(V0(0),4)}, {vr(P[b],4)}, {vr(O[b],16)}")
        e(f"{MF} {vr(O[b],16)}, {vr(V1(0),4)}, {vr(P[b]+4,4)}, {vr(O[b],16)}")
    e(f"s_add_u32 s41, s41, 3072\ns_cmp_lt_u32 s41, {KV_BYTES}\ns_cbranch_scc1 {L2}")
    e("s_nop 12")
    e(f"s_branch {Lout}")

def gen_mega(name="parallel_sum__grouped_kv_mqa__swiglu_ffn__prompt_kernel"):
    k = Kernel(name); e = k.e
    LA = k.newlabel("roleA"); LB = k.newlabel("roleB")
    e("s_load_dwordx16 s[48:63], s[0:1], 0\ns_load_dwordx8 s[64:71], s[0:1], 64")
    e("v_and_b32 v1, 63, v0\nv_lshrrev_b32 v2, 6, v0\nv_readfirstlane_b32 s3, v2\nv_lshlrev_b32 v2, 4, v1")
    e(f"s_cmp_lt_u32 s2, 256\ns_cbranch_scc1 {LB}\ns_cmp_lt_u32 s2, 512\ns_cbranch_scc1 {LA}\ns_endpgm")
    k.label(LB)
    e("s_setprio 3")
    roleB(k)
    k.label(LA, 6)
    if ONLY == "B": e("s_endpgm")
    e(f"s_sub_u32 s2, s2, 256\ns_setprio {AP0}")
    roleA(k)
    k.label(f"{k.name}_end")
    k.lds = 81920; k.grid = 512; k.block = 256
    return k

if __name__ == "__main__":
    import sys
    from build import emit as emit_file
    emit_file([gen_mega()], sys.argv[1] if len(sys.argv) > 1 else "parallel_sum__grouped_kv_mqa__swiglu_ffn__prompt.s")
```

```python
from asmgen import *
from common import KA, NBYTES, f32bits, srd_from, stamp, stamp_dump, STAMPS
import math, os

MF = "v_mfma_f32_32x32x16_bf16"
LOG2E = math.log2(math.e)
QSCALE = (20 ** -0.5) * LOG2E * float(os.environ.get("QEPS", 1.0))
env = lambda n, d: type(d)(os.environ.get(n, d))
OFFS = env('OFFS', 96.0)
PATTERN = [int(x) for x in env('APAT', '2,6,9,13').split(',')]
BST = env("BST", 0); ONLY = env("ONLY", "")
P0B = env("P0B", 14); PKD = env("PKD", 0); ADLY = env("ADLY", 2); E64 = env("E64", ""); TP = env("TP", 0); QH = env("QH", 3); KVS = env("KVS", 2); PH = env("PH", 7); LATE = env("LATE", 0); NOKV = env("NOKV", 0); KSL = env("KSL", 4); BSL = env("BSL", 8); BP0 = env("BP0", 0); GP0 = env("GP0", 0); GP1 = env("GP1", 2); GSW = env("GSW", -1); CPF = env("CPF", 1); DP = env("DP", 0); AP0 = env("AP0", 2)
STAT = 0x1000; PKF = 0x800; HF = 0x9000; OF = 0x11000; KVF = 0xE80000; XNF = 0xE88000; QF = 0xE90000; FL_BYTES = 0xE98000
KV_OFF = 0x20000;  KV_BYTES = 64*3072
WP_OFF = 0x50000;  WP_BYTES = 8*136*2560
AF_OFF = 0x300000; AF_BYTES = 64*136*1024
XN_OFF = 0xC00000; XN_BYTES = 64*40*1024
PX, PWQ, PWK, PWV, PWO, PWG, PWU, PWD, POUT, PWS = 48, 50, 52, 54, 56, 60, 62, 64, 66, 70
TAG = "s73"; BUD = "s74"; FLS = 44; SC = "sc1"
FL = f"s[{FLS}:{FLS+3}]"
HUGE = "0x7ff00000"

def bstamp(k, name):
    m0 = dict(start=0, xl=1, xs=2, xf=3, p0=4, gu0=5, gu1=6, dn0=7, dn1=8)
    m1 = dict(start=0, p0=1, gu0=2, gu1=3, dn0=4, dn1=5, of=6, mm=7, rd=8)
    m = m1 if BST else m0
    if name in m: stamp(k, m[name])

def emit(k, lst):
    for x in lst:
        if isinstance(x, list): emit(k, x)
        else: k.e(x)

def spin(k, loads, regs, vt, pre_issued=False, slp=1):
    e = k.e
    Lp = k.newlabel("poll"); Ld = k.newlabel("pdone"); Lc = k.newlabel("pchk")
    if pre_issued: e(f"s_branch {Lc}")
    k.label(Lp)
    emit(k, loads)
    k.label(Lc)
    e("s_waitcnt vmcnt(0)")
    e(f"v_xor_b32 v{vt}, {TAG}, v{regs[0]}")
    for r in regs[1:]:
        e(f"v_xor_b32 v{r}, {TAG}, v{r}\nv_or_b32 v{vt}, v{vt}, v{r}")
    e(f"v_cmp_ne_u32 vcc, 0, v{vt}")
    e(f"s_cmp_eq_u64 vcc, 0\ns_cbranch_scc1 {Ld}")
    e(f"s_sub_u32 {BUD}, {BUD}, 1\ns_cbranch_scc1 {Ld}")
    e(f"s_sleep {slp}\ns_branch {Lp}")
    k.label(Ld)

LEAK = os.environ.get("LEAK")
def setflag(k, soffs, vt, leak=None):
    e = k.e
    L = k.newlabel("nofl")
    e(f"s_cmp_lg_u32 s3, 0\ns_cbranch_scc1 {L}")
    if LEAK and leak is not None:
        role, idx = LEAK[0], int(LEAK[1:])
        sel = f"s{86+idx}" if role == leak else "s86"
        e(f"v_mov_b32 v{vt}, s86\nv_mov_b32 v{vt+1}, {sel}\nv_mov_b32 v{vt+2}, 0\ns_mov_b64 exec, 1")
        e(f"buffer_store_dwordx2 {vr(vt,2)}, v{vt+2}, {FL}, {soffs} offen offset:8 {SC}")
        e("s_waitcnt vmcnt(0)\ns_mov_b64 exec, -1")
    e(f"v_mov_b32 v{vt}, {TAG}\nv_mov_b32 v{vt+1}, 0\ns_mov_b64 exec, 1")
    for so in (soffs if isinstance(soffs, list) else [soffs]):
        e(f"buffer_store_dword v{vt}, v{vt+1}, {FL}, {so} offen {SC}")
    e("s_mov_b64 exec, -1")
    k.label(L)

def tag_setup(k):
    k.e(f"s_load_dword s72, s[{PWS}:{PWS+1}], 0")
    srd_from(k, FLS, PWS, FL_BYTES)
    k.e(f"s_mov_b32 {BUD}, 200000")
def tag_finish(k):
    k.e(f"s_waitcnt lgkmcnt(0)\ns_mul_i32 {TAG}, s72, 1664525\ns_add_u32 {TAG}, {TAG}, 1013904223")

def x_voffs(k, dst, t):
    e = k.e
    e(f"v_lshrrev_b32 v{t}, 3, v1\nv_mul_u32_u24 v{t}, 1280, v{t}")
    e(f"v_and_b32 v{t+1}, 7, v1\nv_lshrrev_b32 v{t+2}, 4, v1\nv_xor_b32 v{t+1}, v{t+1}, v{t+2}")
    e(f"v_lshl_add_u32 v{dst}, v{t+1}, 4, v{t}\nv_xor_b32 v{dst+1}, 64, v{dst}")
def x_raddr(k, dst, t, base):
    e = k.e
    e(f"v_and_b32 v{t}, 31, v1\nv_bfe_u32 v{t+1}, v1, 1, 3\nv_lshrrev_b32 v{t+2}, 5, v1\nv_xor_b32 v{t+1}, v{t+1}, v{t+2}")
    e(f"v_lshlrev_b32 v{t}, 7, v{t}\nv_lshl_add_u32 v{t}, v{t+1}, 4, v{t}")
    for ks in range(4):
        e(f"v_xor_b32 v{t+1}, {ks*32}, v{t}\nv_add_u32 v{dst+ks}, {base}, v{t+1}")

def phase0(k):
    e = k.e
    e("v_and_b32 v3, 15, v1\nv_lshrrev_b32 v4, 4, v1")
    e("s_mul_i32 s12, s4, 20480\ns_mul_i32 s13, s3, 320\ns_add_u32 s12, s12, s13")
    e("v_mul_u32_u24 v5, 1280, v3\nv_lshl_add_u32 v5, v4, 4, v5")
    e("s_mul_i32 s14, s3, 6400\ns_mul_i32 s15, s3, 7168\ns_add_u32 s37, s14, 4096")
    e("s_waitcnt lgkmcnt(0)")
    srd_from(k, 16, PX, NBYTES['x'])
    X = 16
    for i in range(5):
        e(f"buffer_load_dwordx4 {vr(X+4*i,4)}, v5, s[16:19], s12 offen offset:{64*i}")
    tag_setup(k)
    e(f"s_cmp_eq_u32 s11, 0\ns_cselect_b32 s20, s{PWK}, s{PWV}\ns_cselect_b32 s21, s{PWK+1}, s{PWV+1}")
    e(f"s_mov_b32 s22, {hex(NBYTES['wk'])}\ns_mov_b32 s23, 0x20000\ns_mov_b32 m0, s15")
    for j in range(7):
        if j == 4: e("s_add_u32 m0, s15, 4096")
        e(f"buffer_load_dwordx4 v2, s[20:23], {'s14' if j < 4 else 's37'} offen offset:{(j%4)*1024} lds")
    srd_from(k, 28, PWS, XN_BYTES, XN_OFF)
    srd_from(k, 32, PWS, KV_BYTES, KV_OFF)
    e("v_mov_b32 v8, 0\nv_mov_b32 v9, 0\nv_mov_b32 v10, 0\nv_mov_b32 v11, 0")
    e("s_mov_b32 s38, 0x3f803f80")
    LST = 28672; RED = LST + 512
    e(f"s_lshl_b32 s39, s3, 7\ns_add_u32 s39, s39, {LST}")
    e("v_lshl_add_u32 v12, v3, 3, s39\nv_lshlrev_b32 v13, 3, v3")
    e("v_lshrrev_b32 v14, 2, v3\nv_lshl_add_u32 v14, v4, 3, v14\nv_mul_u32_u24 v14, 40, v14")
    e("v_and_b32 v15, 3, v1\nv_lshl_add_u32 v14, v15, 3, v14\nv_add_u32 v14, s15, v14")
    e(f"s_lshl_b32 s36, s4, 7\ns_add_u32 s36, s36, {STAT}")
    e("s_lshr_b32 s40, s4, 1\ns_mul_i32 s41, s40, 40960\ns_and_b32 s42, s4, 1")
    e("s_lshl_b32 s43, s42, 8\ns_add_u32 s41, s41, s43\ns_mul_i32 s43, s3, 10240\ns_add_u32 s41, s41, s43")
    e("v_lshlrev_b32 v5, 9, v4\nv_lshl_add_u32 v5, v3, 4, v5")
    e(f"s_lshl_b32 s39, s3, 11\ns_add_u32 s39, s39, {RED}\nv_add_u32 v92, s39, v2\ns_mul_i32 s39, s40, 3072")
    e(f"s_lshl_b32 s43, s4, 1\ns_add_u32 s43, s43, s11\ns_lshl_b32 s75, s43, 7\ns_add_u32 s75, s75, {XNF}\ns_lshl_b32 s43, s43, {KVS}\ns_add_u32 s43, s43, {KVF}")
    Lv, Lst = k.newlabel("v"), k.newlabel("st")
    e("v_lshl_add_u32 v7, s42, 4, v3\nv_and_b32 v15, 1, v4\nv_lshrrev_b32 v6, 1, v4\nv_mov_b32 v95, 0x7fffffff")
    e(f"s_mov_b64 s[24:25], 0\ns_cmp_lg_u32 s11, 0\ns_cbranch_scc1 {Lv}")
    e("v_lshl_add_u32 v93, v6, 5, v7\nv_lshlrev_b32 v93, 4, v93\nv_lshl_add_u32 v93, v15, 3, v93")
    e("v_lshlrev_b32 v94, 3, v7\nv_add_u32 v94, 1024, v94\nv_cmp_ne_u32 vcc, 0, v4")
    e(f"s_branch {Lst}")
    k.label(Lv)
    e("s_mul_i32 s26, s42, 768\ns_add_u32 s26, s26, 1536\ns_mov_b32 s24, 0x00100010\ns_mov_b32 s25, 0x00100010")
    e("v_mul_u32_u24 v93, 384, v15\nv_lshl_add_u32 v93, v3, 4, v93\nv_lshl_add_u32 v93, v6, 3, v93\nv_add_u32 v93, s26, v93")
    e("v_add_u32 v94, 256, v93\nv_cmp_lt_u32 vcc, 4, v3")
    k.label(Lst)
    e("v_cndmask_b32 v94, v94, v95, vcc\nv_mov_b32 v95, 0x3f803f80")
    tag_finish(k)
    for i in range(5):
        e(f"s_waitcnt vmcnt({11 - i})")
        for d in range(4*i, 4*i+4):
            a = 8 + (d & 1); q = 10 + (d & 1)
            e(f"v_dot2_f32_bf16 v{a}, v{X+d}, s38, v{a}")
            e(f"v_dot2_f32_bf16 v{q}, v{X+d}, v{X+d}, v{q}")
    bstamp(k, "xl")
    e("v_add_f32 v8, v8, v9\nv_add_f32 v9, v10, v11")
    for sw in ("v_permlane32_swap_b32", "v_permlane16_swap_b32"):
        e("v_mov_b32 v10, v8\nv_mov_b32 v11, v9")
        e(f"{sw} v8, v10\n{sw} v9, v11")
        e("v_add_f32 v8, v8, v10\nv_add_f32 v9, v9, v11")
    e("ds_write_b64 v12, v[8:9]")
    U = 96; W = 136
    for d in range(20):
        e(f"v_lshlrev_b32 v{U+2*d}, 16, v{X+d}\nv_and_b32 v{U+2*d+1}, 0xffff0000, v{X+d}")
        if d == 1:
            e("s_waitcnt lgkmcnt(0)\ns_barrier")
            for w in range(4): e(f"ds_read_b64 {vr(36+2*w,2)}, v13 offset:{LST+128*w}")
    e("s_waitcnt lgkmcnt(0) vmcnt(0)")
    for i in range(5):
        for tl in range(2):
            for u in range(2):
                e(f"ds_read_b64_tr_b16 {vr(W+8*i+4*tl+2*u,2)}, v14 offset:{i*1280 + u*160 + tl*32}")
    e("v_add_f32 v8, v36, v38\nv_add_f32 v9, v37, v39\nv_add_f32 v10, v40, v42\nv_add_f32 v11, v41, v43")
    e("v_add_f32 v8, v8, v10\nv_add_f32 v9, v9, v11")
    inv = hex(f32bits(1.0/640))
    e(f"v_mul_f32 v8, {inv}, v8\nv_mul_f32 v9, {inv}, v9")
    e("v_fma_f32 v9, -v8, v8, v9\nv_max_f32 v9, 0, v9")
    e("v_cvt_pk_bf16_f32 v10, v8, v9")
    e("v_lshlrev_b32 v8, 16, v10\nv_and_b32 v9, 0xffff0000, v10")
    e(f"v_add_f32 v9, {hex(f32bits(1e-5))}, v9")
    e("v_cvt_pk_bf16_f32 v9, v9, v9\nv_and_b32 v9, 0xffff0000, v9")
    e("v_sqrt_f32 v9, v9")
    e("v_cvt_pk_bf16_f32 v6, v8, v9")
    e(f"v_mov_b32 v7, {TAG}\nv_and_b32 v9, 0xffff0000, v6")
    Lns = k.newlabel("nost")
    e(f"s_lshl_b32 s26, s11, 2\ns_add_u32 s26, s26, s3\ns_cmp_lg_u32 s26, 7\ns_cbranch_scc1 {Lns}")
    e(f"s_mov_b64 exec, 0xffff\nbuffer_store_dwordx2 v[6:7], v13, {FL}, s36 offen {SC}\ns_mov_b64 exec, -1")
    k.label(Lns)
    e("v_rcp_f32 v10, v9")
    e("v_mul_f32 v11, v8, v10")
    ACC = 44
    for d in range(20):
        u = U + 2*d
        e(f"v_fma_f32 v{u}, v{u}, v10, -v11\nv_fma_f32 v{u+1}, v{u+1}, v10, -v11")
        if d >= 1: e(f"v_cvt_pk_bf16_f32 v{X+d-1}, v{u-2}, v{u-1}")
    e(f"v_cvt_pk_bf16_f32 v{X+19}, v{U+38}, v{U+39}")
    Lmv, Lmd = k.newlabel("mv"), k.newlabel("md")
    e(f"s_waitcnt lgkmcnt(0)\ns_cmp_lg_u32 s11, 0\ns_cbranch_scc1 {Lmv}")
    def xst(i): return f"buffer_store_dwordx4 {vr(X+4*i,4)}, v5, s[28:31], s26 offen offset:{(i%2)*2048} {SC}"
    for m in range(2):
        if m: k.label(Lmv)
        for i in range(5):
            for tl in range(2):
                wf = vr(W+8*i+4*tl, 4); xf = vr(X+4*i, 4); acc = vr(ACC+4*tl, 4)
                a, b = (wf, xf) if m == 0 else (xf, wf)
                e(f"v_mfma_f32_16x16x32_bf16 {acc}, {a}, {b}, {'0' if i == 0 else acc}")
        if m == 0: e(f"s_branch {Lmd}")
    k.label(Lmd)
    bstamp(k, "xs")
    for tl in range(2):
        e(f"ds_write_b128 v92, {vr(ACC+4*tl,4)} offset:{tl*1024}")
    e("s_waitcnt lgkmcnt(0)\ns_barrier")
    Lx = k.newlabel("xst")
    e(f"s_cmp_lg_u32 s3, 0\ns_cbranch_scc1 {Lx}")
    R = 52
    for tl in range(2):
        for w in range(1, 4):
            e(f"ds_read_b128 {vr(R+16*tl+4*w,4)}, v92 offset:{w*2048 + tl*1024}")
    for tl in range(2):
        e(f"s_waitcnt lgkmcnt({3 - 3*tl})")
        r = R + 16*tl; c = ACC + 4*tl
        for j in range(4):
            e(f"v_add_f32 v{c+j}, v{c+j}, v{r+4+j}\nv_add_f32 v{r+8+j}, v{r+8+j}, v{r+12+j}\nv_add_f32 v{c+j}, v{c+j}, v{r+8+j}")
        e(f"v_cvt_pk_bf16_f32 v{8+2*tl}, v{c}, v{c+1}\nv_cvt_pk_bf16_f32 v{9+2*tl}, v{c+2}, v{c+3}")
        if tl: e("v_cndmask_b32 v10, v10, v95, s[24:25]\nv_cndmask_b32 v11, v11, v95, s[24:25]")
        e(f"buffer_store_dwordx2 {vr(8+2*tl,2)}, v{93+tl}, s[32:35], s39 offen {SC}")
    k.label(Lx)
    L1, L2 = k.newlabel("x1"), k.newlabel("x2")
    e(f"s_cmp_lg_u32 s11, 0\ns_cbranch_scc1 {L1}")
    e("s_mov_b32 s26, s41"); e(xst(0)); e(xst(1)); e("s_add_u32 s26, s41, 4096"); e(xst(2))
    e(f"s_branch {L2}")
    k.label(L1)
    e("s_add_u32 s26, s41, 4096"); e(xst(3)); e("s_add_u32 s26, s41, 8192"); e(xst(4))
    k.label(L2)
    bstamp(k, "xf")

def roleB(k):
    e = k.e
    SLOT = 20480
    GW, RA, RB = 216, 221, 224
    ACC = 32; FR = [176, 196]
    Lgu = k.newlabel("gu0"); Lpk = k.newlabel("pk")
    bstamp(k, "start")
    e("s_and_b32 s5, s2, 7\ns_lshr_b32 s6, s2, 3")
    def tile_ids():
        e("s_lshr_b32 s7, s5, 1\ns_lshl_b32 s7, s7, 2\ns_lshr_b32 s8, s6, 3\ns_add_u32 s7, s7, s8")
        e("s_and_b32 s9, s5, 1\ns_lshl_b32 s8, s9, 3\ns_and_b32 s10, s6, 7\ns_add_u32 s8, s8, s10\ns_lshl_b32 s11, s7, 1\ns_add_u32 s9, s9, s11")
    def gu_vsetup(t):
        e("s_and_b32 s11, s3, 2")
        for i in range(3):
            e(f"v_add_u32 v{t}, {64*i}, v1\nv_mul_u32_u24 v{t+1}, 5462, v{t}\nv_lshrrev_b32 v{t+1}, 16, v{t+1}")
            e(f"v_mul_u32_u24 v{t+2}, 12, v{t+1}\nv_sub_u32 v{t+2}, v{t}, v{t+2}\nv_xor_b32 v{t+2}, s11, v{t+2}")
            e(f"v_mul_u32_u24 v{t+1}, 3072, v{t+1}\nv_lshl_add_u32 v{GW+i}, v{t+2}, 4, v{t+1}")
    def gu_vsetup2(t):
        e(f"v_lshrrev_b32 v{t}, 5, v1\nv_bfe_u32 v{t+1}, v1, 2, 2\nv_lshl_add_u32 v{t+1}, v{t}, 3, v{t+1}\nv_mul_u32_u24 v{t+1}, 192, v{t+1}")
        e(f"v_and_b32 v{t+2}, 1, v1\nv_lshl_add_u32 v{t+1}, v{t+2}, 4, v{t+1}\nv_bfe_u32 v{t+2}, v1, 1, 1\nv_lshl_add_u32 v{t+1}, v{t+2}, 3, v{t+1}")
        e(f"v_bfe_u32 v{t+2}, v1, 4, 1\nv_mul_u32_u24 v{t+3}, 6144, v{t+2}\nv_add_u32 v{t+1}, v{t+1}, v{t+3}")
        e("s_lshr_b32 s11, s3, 1\ns_mul_i32 s11, s11, 3")
        for a in range(3):
            e(f"v_xor_b32 v{t+3}, s11, v{t+2}\nv_lshl_add_u32 v{RA+a}, v{t+3}, 5, v{t+1}\ns_add_u32 s11, s11, 1")
        e(f"s_and_b32 s11, s3, 1\ns_lshl_b32 s11, s11, 12\ns_add_u32 s11, s11, 12288\nv_add_u32 v{RB}, s11, v2")
        e(f"v_and_b32 v{RB+1}, 3, v1\nv_lshlrev_b32 v{RB+1}, 7, v{RB+1}")
    def zero_acc():
        for j in range(96): e(f"v_mov_b32 v{ACC+j}, 0")
    def gu_ssetup():
        e("s_lshr_b32 s38, s3, 1\ns_and_b32 s39, s3, 1\ns_mul_i32 s40, s38, 3")
        srd_from(k, 16, PWS, XN_BYTES, XN_OFF)
        e(f"s_cmp_eq_u32 s38, 0\ns_cselect_b32 s20, s{PWG}, s{PWU}\ns_cselect_b32 s21, s{PWG+1}, s{PWU+1}")
        e(f"s_mov_b32 s22, {hex(NBYTES['wg'])}\ns_mov_b32 s23, 0x20000")
        e("s_mul_i32 s12, s39, 49152\ns_mul_i32 s32, s8, 192\ns_add_u32 s12, s12, s32")
        e(f"s_lshl_b32 s32, s7, 2\ns_add_u32 s32, s32, s3\ns_mul_i32 s13, s32, 40960\ns_lshl_b32 s42, s32, 9\ns_add_u32 s42, s42, {XNF}")
        e("s_mul_i32 s14, s3, 3072\ns_lshl_b32 s15, s3, 11\ns_add_u32 s15, s15, 12288")
    def issueW(sl):
        return [[f"s_add_u32 m0, s14, {sl*SLOT}"],
                [f"buffer_load_dwordx4 v{GW}, s[20:23], s12 offen lds", "s_add_u32 m0, m0, 1024"],
                [f"buffer_load_dwordx4 v{GW+1}, s[20:23], s12 offen lds", "s_add_u32 m0, m0, 1024"],
                [f"buffer_load_dwordx4 v{GW+2}, s[20:23], s12 offen lds", f"s_add_u32 s12, s12, {32*3072}"]]
    def issueX(sl):
        return [[f"s_add_u32 m0, s15, {sl*SLOT}"],
                [f"buffer_load_dwordx4 v2, s[16:19], s13 offen {SC} lds"],
                [f"buffer_load_dwordx4 v2, s[16:19], s13 offen offset:1024 {SC} lds", "s_add_u32 s13, s13, 2048"]]
    xn_poll = [f"buffer_load_dword v16, v{RB+1}, {FL}, s42 offen {SC}"]
    e("s_lshl_b32 s4, s5, 4\ns_lshr_b32 s11, s6, 1\ns_add_u32 s4, s4, s11\ns_and_b32 s11, s6, 1")
    def pre():
        tile_ids(); gu_vsetup(232); gu_vsetup2(232)
    if CPF:
        Lc = k.newlabel("nocp"); Lh = k.newlabel("here")
        e(f"s_cmp_lg_u32 s6, 31\ns_cbranch_scc1 {Lc}")
        e("s_getpc_b64 s[34:35]")
        k.label(Lh)
        e(f"s_sub_u32 s34, s34, {Lh}-{k.name}\ns_subb_u32 s35, s35, 0")
        e(f"v_lshlrev_b32 v9, 7, v0\nv_min_u32 v9, {k.name}_end-{k.name}-4, v9")
        e("global_load_dword v255, v9, s[34:35]")
        k.label(Lc)
    phase0(k)
    pre()
    gu_ssetup()
    zero_acc()
    e("s_waitcnt vmcnt(2)")
    setflag(k, "s43", 10)
    Lw0 = k.newlabel("w0")
    e(f"s_waitcnt vmcnt(1)\ns_cmp_eq_u32 s3, 0\ns_cbranch_scc1 {Lw0}\ns_waitcnt vmcnt(0)")
    k.label(Lw0)
    e("s_barrier")
    setflag(k, "s75", 10)
    e(f"s_setprio {BP0}\ns_mov_b32 s11, {HUGE}")
    e(f"s_lshl_b32 s41, s2, 7\ns_add_u32 s41, s41, {QF}\nv_mov_b32 v31, 0")
    def go():
        if QH >= 0: spin(k, xn_poll + [f"buffer_load_dword v29, v31, {FL}, s41 offen {SC}"], [16, 29], 17, slp=BSL)
        else: spin(k, xn_poll, [16], 17, slp=BSL)
    e(f"s_cmp_lt_u32 s2, 136\ns_cbranch_scc1 {Lpk}")
    go()
    for c in range(4): emit(k, issueW(c)); emit(k, issueX(c))
    e(f"s_branch {Lgu}")
    k.label(Lpk)
    PKB = 3*SLOT; PD = 128
    e("s_mov_b32 s4, s2\ns_mul_i32 s33, s3, 320")
    for i in range(5):
        e(f"v_add_u32 v13, {64*i}, v1\nv_add_u32 v13, s33, v13\nv_mul_u32_u24 v{19+i}, 52429, v13\nv_lshrrev_b32 v{19+i}, 22, v{19+i}")
        e(f"v_mul_u32_u24 v14, 80, v{19+i}\nv_sub_u32 v14, v13, v14\nv_lshlrev_b32 v{24+i}, 4, v14")
    def pack_issue(first, lo=0):
        e("s_mul_i32 s32, s4, 241\ns_lshr_b32 s32, s32, 13\ns_mul_i32 s33, s32, 34\ns_sub_u32 s33, s4, s33")
        e("s_mul_i32 s34, s32, 384\ns_lshl_b32 s35, s33, 4\ns_add_u32 s34, s34, s35")
        e("s_mul_i32 s35, s32, 160\ns_mul_i32 s36, s33, 20\ns_add_u32 s36, s36, s35\ns_sub_u32 s36, s36, 480")
        e("s_mul_i32 s37, s33, 80\ns_add_u32 s37, s37, s35\ns_sub_u32 s37, s37, 2544")
        e("s_cmp_ge_u32 s33, 32\ns_cselect_b32 s36, s37, s36\ns_cselect_b32 s43, 16, 0")
        for i in range(5):
            e(f"v_lshrrev_b32 v13, 2, v{19+i}\nv_mul_u32_u24 v13, s43, v13\nv_add_u32 v13, v13, v{19+i}\nv_mul_u32_u24 v13, 1280, v13\nv_add_u32 v{3+i}, v13, v{24+i}")
        first()
        e(f"s_cmp_ge_u32 s33, 24\ns_cselect_b32 s34, s36, s34\ns_cselect_b32 s24, s{PWO}, s{PWD}\ns_cselect_b32 s25, s{PWO+1}, s{PWD+1}")
        e(f"s_cselect_b32 s26, {hex(NBYTES['wo'])}, s26\ns_mov_b32 s27, 0x20000\ns_mul_i32 s34, s34, 1280")
        e(f"s_mul_i32 s35, s3, 5120\ns_add_u32 m0, s35, {PKB+lo}")
        for i in range(5):
            e(f"buffer_load_dwordx4 v{3+i}, s[24:27], s34 offen lds")
            if i < 4: e("s_add_u32 m0, m0, 1024")
    def pack_finish(lo=0):
        for c in range(2):
            for a in range(3):
                for u in range(2):
                    ad, off = ("v10", a*64) if a < 2 else ("v11", 0)
                    e(f"ds_read_b64_tr_b16 {vr(PD+12*c+4*a+2*u,2)}, {ad} offset:{lo + c*160 + off + u*5120}")
        e(f"s_mul_i32 s5, s3, {2*136*2560}\ns_mul_i32 s6, s4, 2560\ns_add_u32 s5, s5, s6\ns_add_u32 s6, s5, {136*2560}")
        e("s_waitcnt lgkmcnt(0)")
    e("v_lshrrev_b32 v8, 5, v1\nv_bfe_u32 v9, v1, 2, 2\nv_lshl_add_u32 v9, v8, 3, v9\nv_mul_u32_u24 v9, 1280, v9")
    e(f"s_mul_i32 s32, s3, 320\ns_add_u32 s32, s32, {PKB}\nv_add_u32 v9, s32, v9")
    e("v_and_b32 v16, 1, v1\nv_bfe_u32 v17, v1, 1, 1\nv_bfe_u32 v18, v1, 4, 1")
    e("v_lshl_add_u32 v10, v16, 5, v9\nv_lshl_add_u32 v10, v17, 3, v10\nv_lshl_add_u32 v10, v18, 4, v10")
    e("v_lshl_add_u32 v11, v16, 4, v9\nv_lshl_add_u32 v11, v17, 3, v11\nv_add_u32 v11, 128, v11\nv_lshl_add_u32 v11, v18, 18, v11")
    e("v_and_b32 v12, 15, v1\nv_lshlrev_b32 v12, 4, v12\nv_lshl_add_u32 v12, v8, 8, v12\nv_lshl_add_u32 v12, v18, 30, v12")
    e(f"s_lshl_b32 s75, s4, 2\ns_add_u32 s75, s75, {PKF}")
    e(f"s_mov_b32 s26, {hex(NBYTES['wd'])}")
    pack_issue(go)
    for c in range(2): emit(k, issueW(c)); emit(k, issueX(c))
    e("s_waitcnt vmcnt(10)\ns_barrier")
    pack_finish()
    emit(k, issueW(2)); emit(k, issueX(2))
    e("s_barrier")
    emit(k, issueW(3)); emit(k, issueX(3))
    k.label(Lgu)
    bstamp(k, "p0")
    srd_from(k, 28, PWS, AF_BYTES, AF_OFF)
    def reads(fs, sl, ks):
        L = [f"ds_read_b128 {vr(FR[fs]+12,4)}, v{RB} offset:{sl*SLOT + ks*1024}"]
        for a in range(3):
            for u in range(2):
                L.append(f"ds_read_b64_tr_b16 {vr(FR[fs]+4*a+2*u,2)}, v{RA+a} offset:{sl*SLOT + (16*ks+4*u)*192}")
            if a == 0: L.append(f"ds_read_b128 {vr(FR[fs]+16,4)}, v{RB} offset:{sl*SLOT + 2048 + ks*1024}")
        return L
    def mfmas(fs):
        return [f"{MF} {vr(ACC+16*(2*a+b),16)}, {vr(FR[fs]+4*a,4)}, {vr(FR[fs]+12+4*b,4)}, {vr(ACC+16*(2*a+b),16)}" for a in range(3) for b in range(2)]
    e("s_mov_b32 s42, 0\nv_min_u32 v4, 33, v1\nv_lshlrev_b32 v4, 4, v4")
    e("s_waitcnt vmcnt(15)\ns_barrier")
    e(f"s_setprio {GP0}")
    bstamp(k, "gu0")
    if ONLY == "A":
        e("s_waitcnt vmcnt(0)"); stamp_dump(k, 0, 6, "s2", PWS); e("s_endpgm")
    emit(k, reads(0, 0, 0))
    srd_from(k, 24, PWS, WP_BYTES, WP_OFF)
    e(f"s_mul_i32 s11, s10, {4*34*2560}\ns_mul_i32 s43, s3, 5120\ns_add_u32 s11, s11, s43\ns_mov_b32 s35, {HUGE}")
    st_loads = [f"buffer_load_dwordx4 v[16:19], v4, {FL}, s36 offen {SC}"]
    def issueP(sl):
        L = [[f"s_add_u32 m0, s43, {sl*SLOT}", "s_add_u32 s33, s11, 4096"]]
        for i in range(4): L.append([f"buffer_load_dwordx4 v2, s[24:27], s11 offen offset:{i*1024} {SC} lds"])
        L[4].append("s_add_u32 m0, m0, 4096")
        L.append([f"buffer_load_dwordx4 v2, s[24:27], s33 offen {SC} lds", f"s_add_u32 s11, s11, {34*2560}"])
        return L
    L = k.newlabel("gu")
    def trip(last):
        for sl in range(4):
            e("s_waitcnt lgkmcnt(0)")
            rd = reads(1, sl, 1); mf = mfmas(0)
            sh = [rd[0:2], rd[2:4], rd[4:6], rd[6:8], [], []]
            if not last and sl == 1: sh[4] = ["s_cmp_eq_u32 s42, 3", f"s_cselect_b32 s36, {PKF}, s35"] + st_loads
            for i in range(6):
                e(mf[i]); emit(k, sh[i])
            if sl == 0 and not last:
                Ls = k.newlabel("nps")
                e(f"s_cmp_ge_u32 s2, 136\ns_cbranch_scc1 {Ls}\ns_cmp_lg_u32 s42, 1\ns_cbranch_scc1 {Ls}")
                for c in range(2):
                    for a in range(3):
                        e(f"buffer_store_dwordx4 {vr(PD+12*c+4*a,4)}, {'v2' if a < 2 else 'v12'}, s[24:27], s{5+c} offen offset:{a*1024} {SC}")
                k.label(Ls)
            if sl == 1 and not last:
                Ls = k.newlabel("npf")
                e(f"s_cmp_ge_u32 s2, 136\ns_cbranch_scc1 {Ls}\ns_cmp_lg_u32 s42, 2\ns_cbranch_scc1 {Ls}")
                setflag(k, "s75", 10)
                k.label(Ls)
            if sl == 2 and GSW >= 0 and not last:
                Lt = k.newlabel("gsw")
                e(f"s_cmp_lg_u32 s42, {GSW}\ns_cbranch_scc1 {Lt}\ns_setprio {GP1}")
                k.label(Lt)
            e("s_waitcnt vmcnt(10) lgkmcnt(0)\ns_barrier")
            rd = reads(0, (sl+1) % 4, 0) if not (last and sl == 3) else [[]]*8
            mf = mfmas(1)
            if not last:
                iw = issueW(sl); ix = issueX(sl)
                sh = [rd[0:2] + iw[0], rd[2:4] + iw[1], rd[4:6] + iw[2], rd[6:8] + iw[3] + ix[0], ix[1], ix[2]]
                if sl == 3: sh[5] = sh[5] + ["s_add_u32 s42, s42, 1", "s_cmp_lt_u32 s42, 4"]
            else:
                ip = issueP(sl)
                sh = [rd[0:2] + ip[0], rd[2:4] + ip[1], rd[4:6] + ip[2], rd[6:8] + ip[3], ip[4], ip[5]]
            for i in range(6):
                e(mf[i]); emit(k, sh[i])
    k.label(L, 6)
    trip(False)
    e(f"s_cbranch_scc1 {L}")
    Lok = k.newlabel("pkok")
    e(f"s_setprio 2\nv_xor_b32 v20, {TAG}, v16")
    for r in (17, 18, 19): e(f"v_xor_b32 v{r}, {TAG}, v{r}\nv_or_b32 v20, v20, v{r}")
    e(f"v_cmp_ne_u32 vcc, 0, v20\ns_cmp_eq_u64 vcc, 0\ns_cbranch_scc1 {Lok}")
    spin(k, st_loads, [16, 17, 18, 19], 20)
    k.label(Lok)
    e(f"s_setprio {GP0}")
    trip(True)
    e("s_setprio 2")
    e("v_lshrrev_b32 v8, 5, v1")
    e(f"s_mul_i32 s14, s3, {SLOT}")
    srd_from(k, 20, PWS, WP_BYTES, WP_OFF)
    srd_from(k, 16, PX, NBYTES['x'])
    e(f"s_lshl_b32 s12, s10, 2\ns_add_u32 s12, s12, s3\ns_mul_i32 s12, s12, {34*2560}\ns_add_u32 s12, s12, {4*5120}")
    e(f"s_lshl_b32 s32, s7, 1\ns_add_u32 s32, s32, s39\ns_mul_i32 s32, s32, 272\ns_mul_i32 s43, s8, 6\ns_add_u32 s32, s32, s43\ns_add_u32 s32, s32, s40\ns_add_u32 s32, s32, 40\ns_lshl_b32 s32, s32, 10")
    e(f"s_add_u32 s34, s32, {136*1024}\ns_mov_b32 s33, {hex(f32bits(-LOG2E))}")
    e("s_waitcnt lgkmcnt(0)")
    bstamp(k, "gu1")
    def issueW2(sl):
        L = [[f"s_add_u32 m0, s14, {sl*5120}", "s_add_u32 s33, s12, 4096"]]
        for i in range(4): L.append([f"buffer_load_dwordx4 v2, s[20:23], s12 offen offset:{i*1024} {SC} lds"])
        L[4].append("s_add_u32 m0, m0, 4096")
        L.append([f"buffer_load_dwordx4 v2, s[20:23], s33 offen {SC} lds", "s_add_u32 s12, s12, 5120"])
        return L
    T = 176
    for a in range(3):
        for b in range(2):
            g = ACC + 16*(2*a+b); u = g + 8
            for j in range(8): e(f"v_mul_f32 v{T+j}, s33, v{g+j}")
            for j in range(8): e(f"v_exp_f32 v{T+j}, v{T+j}")
            for j in range(8): e(f"v_mul_f32 v{g+j}, v{g+j}, v{u+j}")
            for j in range(8): e(f"v_add_f32 v{T+j}, 1.0, v{T+j}")
            for j in range(8): e(f"v_rcp_f32 v{T+j}, v{T+j}")
            for j in range(8): e(f"v_mul_f32 v{g+j}, v{g+j}, v{T+j}")
            for j in range(4): e(f"v_cvt_pk_bf16_f32 v{u+j}, v{g+2*j}, v{g+2*j+1}")
            e(f"buffer_store_dwordx4 {vr(u,4)}, v2, s[28:31], {'s34' if b else 's32'} offen offset:{a*1024} {SC}")
    wq_ = []
    assert not wq_
    e("v_add_u32 v10, s14, v2\nv_and_b32 v11, 15, v1\nv_lshlrev_b32 v11, 4, v11\nv_lshl_add_u32 v11, v8, 8, v11\nv_bfe_u32 v9, v1, 4, 1")
    e("v_lshl_add_u32 v7, v9, 30, v11\nv_lshl_add_u32 v11, v9, 18, v11\nv_add_u32 v11, s14, v11")
    e(f"s_lshl_b32 s35, s7, 4\ns_add_u32 s36, s35, s8\ns_lshl_b32 s36, s36, 7\ns_add_u32 s36, s36, {HF}")
    e(f"s_mul_i32 s24, s9, {272*1024}\ns_mul_i32 s32, s3, {24*1024}\ns_add_u32 s26, s24, s32\ns_add_u32 s26, s26, {40*1024}\ns_add_u32 s27, s26, {136*1024}")
    e("v_and_b32 v14, 3, v1\nv_lshlrev_b32 v14, 7, v14\nv_and_b32 v6, 1, v1\nv_lshlrev_b32 v6, 7, v6")
    e(f"s_lshl_b32 s32, s3, 2\ns_add_u32 s32, s32, s35\ns_lshl_b32 s32, s32, 7\ns_add_u32 s32, s32, {HF}")
    e("s_lshr_b32 s40, s3, 1\ns_and_b32 s41, s3, 1")
    e("s_lshl_b32 s34, s9, 1\ns_add_u32 s34, s34, s40\ns_mul_i32 s34, s34, 40960\ns_mul_i32 s33, s10, 160\ns_add_u32 s43, s34, s33")
    e("v_and_b32 v5, 31, v1\nv_mul_u32_u24 v5, 1280, v5")
    e("s_lshl_b32 s34, s41, 6\nv_lshl_add_u32 v12, v8, 5, v5\nv_add_u32 v12, s34, v12")
    e("s_lshl_b32 s34, s41, 3\ns_add_u32 s34, s34, 128\nv_lshl_add_u32 v13, v8, 4, v5\nv_add_u32 v13, s34, v13")
    e("s_mul_i32 s34, s40, 10240\ns_lshl_b32 s33, s41, 12\ns_add_u32 s33, s33, s34\nv_add_u32 v15, s33, v2")
    e("s_lshl_b32 s33, s41, 10\ns_add_u32 s33, s33, s34\ns_add_u32 s33, s33, 8192\nv_add_u32 v3, s33, v2")
    e(f"s_lshl_b32 s25, s9, 3\ns_lshl_b32 s33, s3, 1\ns_add_u32 s25, s25, s33\ns_lshl_b32 s25, s25, 7\ns_add_u32 s25, s25, {OF}")
    e(f"s_mul_i32 s33, s3, {10*1024}\ns_add_u32 s24, s24, s33")
    e("s_waitcnt vmcnt(0)\ns_barrier")
    setflag(k, "s36", 16, "B")
    hl = [f"buffer_load_dword v16, v14, {FL}, s32 offen {SC}"]
    XS = 232; G4 = [20, 244]
    e(f"s_add_u32 s34, s12, {24*2560}\ns_add_u32 s35, s12, {25*2560}")
    srd_from(k, 36, POUT, NBYTES['out'])
    spin(k, hl, [16], 17)
    e(f"s_setprio {TP}")
    XR = 128; FA = [208, 220]
    def issueX2(rs):
        L = []
        for ks in range(2):
            for b in range(2):
                L.append([f"buffer_load_dwordx4 {vr(XR+16*rs+8*ks+4*b,4)}, v2, s[28:31], s{26+b} offen offset:{ks*1024} {SC}"])
        L[3] += ["s_add_u32 s26, s26, 2048", "s_add_u32 s27, s27, 2048"]
        return L
    for g in range(4): emit(k, issueX2(g))
    def reads2(fs, sl, ks):
        return [f"ds_read_b128 {vr(FA[fs]+4*a,4)}, {'v10' if a < 2 else 'v11'} offset:{sl*5120 + ks*2560 + a*1024}" for a in range(3)]
    def mfmas2(fs, rs, ks, c0=False):
        return [f"{MF} {vr(ACC+16*(3*b+a),16)}, {vr(FA[fs]+4*a,4)}, {vr(XR+16*rs+8*ks+4*b,4)}, {'0' if c0 else vr(ACC+16*(3*b+a),16)}" for a in range(3) for b in range(2)]
    e(f"s_mov_b32 s42, 0\ns_setprio {DP}")
    emit(k, reads2(0, 0, 0))
    e("s_waitcnt vmcnt(14) lgkmcnt(0)")
    bstamp(k, "dn0")
    L = k.newlabel("dn"); Lm = k.newlabel("dnm")
    rd = reads2(1, 0, 1); mf = mfmas2(0, 0, 0, True)
    for i in range(6):
        e(mf[i]); emit(k, rd[i:i+1])
    e("s_waitcnt vmcnt(0)")
    for ks in range(2):
        for a in range(3):
            e(f"buffer_load_dwordx4 {vr(G4[ks]+4*a,4)}, {'v2' if a < 2 else 'v7'}, s[20:23], s{34+ks} offen offset:{a*1024} {SC}")
    e(f"buffer_load_dwordx4 {vr(XS,4)}, v12, s[16:19], s43 offen")
    e(f"buffer_load_dwordx4 {vr(XS+4,4)}, v12, s[16:19], s43 offen offset:16")
    e(f"buffer_load_dwordx2 {vr(XS+8,2)}, v13, s[16:19], s43 offen")
    e(f"s_branch {Lm}")
    k.label(L, 6)
    for sl in range(4):
        e("s_waitcnt lgkmcnt(0)")
        rd = reads2(1, sl, 1); mf = mfmas2(0, sl, 0)
        sh = [rd[0:1], rd[1:2], rd[2:3], [], [], []]
        if sl == 0: sh[3] = ["s_cmp_eq_u32 s42, 2", f"s_cselect_b32 s26, {HUGE}, s26", f"s_cselect_b32 s27, {HUGE}, s27"]
        for i in range(6):
            e(mf[i]); emit(k, sh[i])
        if sl == 0: k.label(Lm)
        e("s_waitcnt vmcnt(18) lgkmcnt(0)")
        rd = reads2(0, (sl+1) % 4, 0); mf = mfmas2(1, sl, 1)
        iw = issueW2(sl); ix = issueX2(sl)
        sh = [rd[0:1] + iw[0], rd[1:2] + iw[1], rd[2:3] + iw[2], iw[3] + iw[4], iw[5], ix[0] + ix[1] + ix[2] + ix[3]]
        if sl == 3: sh[5] = sh[5] + ["s_add_u32 s42, s42, 1", "s_cmp_lt_u32 s42, 3"]
        for i in range(6):
            e(mf[i]); emit(k, sh[i])
    e(f"s_cbranch_scc1 {L}")
    e("s_setprio 2")
    emit(k, reads2(1, 0, 1))
    bstamp(k, "dn1")
    if ONLY != "B": spin(k, [f"buffer_load_dword v16, v6, {FL}, s25 offen {SC}"], [16], 17)
    else: e("s_waitcnt vmcnt(0)")
    bstamp(k, "of")
    for b in range(2):
        for t in range(10):
            if t % 4 == 0: e(f"s_add_u32 s26, s24, {b*136*1024 + t*1024}")
            e(f"buffer_load_dwordx4 {vr(XR+40*b+4*t,4)}, v2, s[28:31], s26 offen offset:{(t%4)*1024} {SC}")
    lds = ["n0"]*3 + ["n1"]*3
    wr = [f"ds_write_b128 v10, {vr(ACC+4*q,4)} offset:{q*1024}" for q in range(10)]
    for u in range(20):
        b, t = divmod(u, 10)
        n = 8*b + t
        if t < 8:
            last = max([i for i, x in enumerate(lds) if x == f"n{n}"], default=-1)
            lds = lds[last+1:]
            e(f"s_waitcnt vmcnt({19-u}) lgkmcnt({min(15, len(lds))})")
            F = FA[n & 1]
        else:
            e(f"s_waitcnt vmcnt({19-u})")
            F = G4[t-8]
        for a in range(3):
            e(f"{MF} {vr(ACC+16*(3*b+a),16)}, {vr(F+4*a,4)}, {vr(XR+40*b+4*t,4)}, {vr(ACC+16*(3*b+a),16)}")
            if b == 1 and t >= 2 and wr and a < 2:
                e(wr.pop(0)); lds.append("w")
        if t < 8 and n + 2 < 16:
            t2 = (n + 2) % 8
            emit(k, reads2(n & 1, t2 >> 1, t2 & 1)); lds += [f"n{n+2}"]*3
    assert not wr
    bstamp(k, "mm")
    for q in range(10):
        e(f"ds_write_b128 v10, {vr(ACC+48+4*q,4)} offset:{(10+q)*1024}")
    e("s_waitcnt lgkmcnt(0)\ns_barrier")
    R = 128
    for w in range(4):
        for q in range(4):
            e(f"ds_read_b128 {vr(R+20*w+4*q,4)}, v15 offset:{w*SLOT + q*1024}")
        e(f"ds_read_b128 {vr(R+20*w+16,4)}, v3 offset:{w*SLOT}")
    for j in range(10):
        e(f"v_lshlrev_b32 v{ACC+2*j}, 16, v{XS+j}\nv_and_b32 v{ACC+2*j+1}, 0xffff0000, v{XS+j}")
    for w in range(4):
        e(f"s_waitcnt lgkmcnt({15-5*w})")
        for j in range(0, 20, 2):
            e(f"v_pk_add_f32 {vr(ACC+j,2)}, {vr(ACC+j,2)}, {vr(R+20*w+j,2)}")
    for j in range(10):
        e(f"v_cvt_pk_bf16_f32 v{XS+j}, v{ACC+2*j}, v{ACC+2*j+1}")
    bstamp(k, "rd")
    e(f"buffer_store_dwordx4 {vr(XS,4)}, v12, s[36:39], s43 offen")
    e(f"buffer_store_dwordx4 {vr(XS+4,4)}, v12, s[36:39], s43 offen offset:16")
    e(f"buffer_store_dwordx2 {vr(XS+8,2)}, v13, s[36:39], s43 offen")
    stamp_dump(k, 0, 9, "s2", PWS)
    e("s_endpgm")

def w160_voffs(k, dst, t):
    e = k.e
    for i in range(5):
        e(f"v_add_u32 v{t}, {64*i}, v1\nv_mul_u32_u24 v{t+1}, 6554, v{t}\nv_lshrrev_b32 v{t+1}, 16, v{t+1}")
        e(f"v_mul_u32_u24 v{t+2}, 10, v{t+1}\nv_sub_u32 v{t+2}, v{t}, v{t+2}")
        e(f"v_and_b32 v{t}, 24, v{t+1}\nv_bfe_u32 v{t+3}, v{t+1}, 1, 2\nv_add_u32 v{t}, v{t}, v{t+3}\nv_and_b32 v{t+3}, 1, v{t+1}\nv_lshl_add_u32 v{t}, v{t+3}, 2, v{t}")
        e(f"v_mul_u32_u24 v{t}, 1280, v{t}\nv_lshl_add_u32 v{dst+i}, v{t+2}, 4, v{t}")

def roleA(k):
    e = k.e
    KVSLOT = 24576; KV0 = 8192
    QS = 20480; QX = 10240
    S0, S1 = 32, 48; SA = 64
    Q = [16, 24]; O = [144, 160]; P = [96, 104]; KVB = [112, 128]; KT = 176
    KL = lambda s: KVB[s]; KH = lambda s: KVB[s]+4; V0 = lambda s: KVB[s]+8; V1 = lambda s: KVB[s]+12
    AKL, AKH, AV, BKH, BV = 8, 9, 10, 11, 12
    WV = 16; XV = 21; RB = 24; ONES = 28
    FRG = 80
    AO2 = 241; RB2 = 224
    stamp(k, 0)
    e("s_bfe_u32 s8, s2, 0x20001\ns_lshl_b32 s8, s8, 3\ns_lshr_b32 s9, s2, 5\ns_add_u32 s8, s8, s9")
    e("s_and_b32 s9, s2, 1\ns_lshl_b32 s9, s9, 2\ns_bfe_u32 s32, s2, 0x20003\ns_add_u32 s9, s9, s32")
    e("s_add_u32 s11, s8, s9\ns_mul_i32 s11, s11, 3\ns_mul_i32 s32, s11, 205\ns_lshr_b32 s32, s32, 11\ns_mul_i32 s32, s32, 10\ns_sub_u32 s11, s11, s32")
    x_voffs(k, XV, 3)
    w160_voffs(k, WV, 3)
    Lw = k.newlabel("wrole")
    e(f"s_mul_i32 s12, s3, 40960\ns_mul_i32 s32, s9, 160\ns_add_u32 s12, s12, s32\ns_mov_b32 s13, {64*1280}")
    e("s_waitcnt lgkmcnt(0)")
    srd_from(k, 20, PWQ, NBYTES['wq'])
    e(f"s_mov_b64 s[18:19], -1\ns_cmp_lt_u32 s3, 2\ns_cbranch_scc1 {Lw}\ns_mov_b64 s[18:19], 1")
    for i in range(4): e(f"v_add_u32 v{WV+i}, {10240*i}, v{XV+(i&1)}")
    e(f"v_mov_b32 v{WV+4}, {HUGE}")
    e("s_lshl_b32 s33, s8, 1\ns_add_u32 s33, s33, s3\ns_sub_u32 s33, s33, 2\ns_mul_i32 s12, s33, 40960\ns_mov_b32 s13, 128")
    srd_from(k, 20, PX, NBYTES['x'])
    k.label(Lw)
    e("s_mul_i32 s34, s11, s13\ns_add_u32 s34, s34, s12\ns_mul_i32 s35, s13, 10\ns_add_u32 s35, s35, s12\ns_mul_i32 s14, s3, 5120")
    def st_issue(slot):
        L = [[f"s_add_u32 m0, s14, {slot*QS}"]]
        for i in range(5):
            g = [f"buffer_load_dwordx4 v{WV+i}, s[20:23], s34 offen lds"]
            if i < 4: g += ["s_add_u32 m0, m0, 1024"]
            else: g = ["s_mov_b64 exec, s[18:19]"] + g + ["s_mov_b64 exec, -1", "s_add_u32 s34, s34, s13", "s_cmp_eq_u32 s34, s35", "s_cselect_b32 s34, s12, s34"]
            L.append(g)
        return L
    tag_setup(k)
    srd_from(k, 24, PWS, KV_BYTES, KV_OFF)
    srd_from(k, 28, PWS, AF_BYTES, AF_OFF)
    e("v_lshrrev_b32 v6, 5, v1")
    e("v_bfe_u32 v7, v1, 2, 2\nv_lshl_add_u32 v7, v6, 2, v7\nv_mul_u32_u24 v4, 320, v7")
    e("v_and_b32 v7, 1, v1\nv_lshlrev_b32 v7, 4, v7")
    e("v_bfe_u32 v8, v1, 1, 1\nv_lshl_add_u32 v7, v8, 3, v7")
    e("v_and_b32 v8, 16, v1\nv_cmp_ne_u32 vcc, 0, v8\nv_mov_b32 v8, 32\nv_cndmask_b32 v7, v7, v8, vcc")
    e("v_add_u32 v4, v4, v7\ns_mul_i32 s32, s3, 40\nv_add_u32 v4, s32, v4")
    e("v_and_b32 v8, 19, v1\nv_cmp_lt_u32 vcc, 16, v8\nv_mov_b32 v8, 0x40000\nv_cndmask_b32 v4, v4, v8, vcc")
    e("v_add_u32 v5, 40960, v4")
    x_raddr(k, RB, 7, str(QX))
    for j in range(4): e(f"v_mov_b32 v{ONES+j}, 0x3f803f80")
    e(f"v_and_b32 v7, 31, v1\nv_lshlrev_b32 v{BKH}, 3, v7\nv_add_u32 v{BKH}, 1024, v{BKH}\nv_lshl_add_u32 v{BKH}, v6, 18, v{BKH}")
    e("v_and_b32 v13, 19, v7\nv_bfe_u32 v14, v7, 2, 1\nv_lshl_add_u32 v13, v14, 3, v13\nv_bfe_u32 v14, v7, 3, 1\nv_lshl_add_u32 v13, v14, 2, v13")
    e(f"v_mul_u32_u24 v{BV}, 24, v6\nv_add_u32 v{BV}, v{BV}, v13")
    e("v_cmp_le_u32 vcc, 28, v7\nv_cndmask_b32 v13, 0, 1, vcc\nv_xor_b32 v13, v13, v6\nv_mul_u32_u24 v13, 24, v13\nv_add_u32 v13, 20, v13")
    e("v_and_b32 v15, 27, v7\nv_cmp_ne_u32 vcc, 24, v15\nv_mov_b32 v15, 0x4000\nv_cndmask_b32 v13, v13, v15, vcc")
    e(f"v_cmp_le_u32 vcc, 20, v7\nv_cndmask_b32 v{BV}, v{BV}, v13, vcc")
    e(f"v_lshlrev_b32 v{BV}, 4, v{BV}\nv_add_u32 v{BV}, 1536, v{BV}")
    c0 = KV0 + 2*KVSLOT
    e(f"v_add_u32 v{AKL}, {c0}, v2\nv_add_u32 v{AKH}, {c0}, v{BKH}\nv_add_u32 v{AV}, {c0}, v{BV}")
    e(f"s_lshr_b32 s32, s3, 1\ns_lshl_b32 s32, s32, 9\ns_and_b32 s33, s3, 1\ns_lshl_b32 s33, s33, 3\ns_add_u32 s32, s32, s33")
    e(f"v_lshl_add_u32 v{AO2}, v7, 4, s32\nv_lshl_add_u32 v{AO2}, v6, 30, v{AO2}")
    e(f"v_lshlrev_b32 v13, {KVS}, v1\nv_lshlrev_b32 v14, 3, v7")
    e(f"s_lshl_b32 s39, s8, 9\ns_add_u32 s39, s39, {STAT}\ns_lshl_b32 s38, s3, {KVS+6}\ns_add_u32 s38, s38, {KVF}\ns_mul_i32 s36, s3, 6144")
    for t in range(4): e(f"v_mov_b32 v{KT+8*t+6}, 0\nv_mov_b32 v{KT+8*t+7}, 0")
    for j in range(4): e(f"v_add_u32 v{RB2+j}, 40960, v{RB+j}")
    if ADLY == 2: tag_finish(k)
    for sl in range(2): emit(k, st_issue(sl))
    if ADLY != 2: tag_finish(k)
    stamp(k, 1)
    def kv_issue(chunk_soff, slot_base):
        L = []
        for half in range(2):
            L.append([f"s_add_u32 m0, s36, {slot_base + half*3072}", f"s_add_u32 s32, s36, {chunk_soff + half*3072}"])
            for j in range(3):
                L.append([f"buffer_load_dwordx4 v2, s[24:27], s32 offen offset:{j*1024} {SC} lds"])
        return L
    PL = 232
    kv_poll = [f"buffer_load_dword v{PL}, v13, {FL}, s38 offen {SC}"]
    pl_loads = [f"buffer_load_dwordx2 {vr(PL+2,2)}, v14, {FL}, s39 offen {SC}", f"buffer_load_dwordx2 {vr(PL+4,2)}, v14, {FL}, s39 offen offset:256 {SC}"]
    inits = []
    for j in range(8): inits += [(P[1]+j, "0"), (V0(1)+j, "0")]
    for s_ in range(2): inits += [(KH(s_)+2, "0x3f80"), (KH(s_)+3, "0")]
    for j in range(32): inits += [(O[0]+j, "0")]
    inits.sort()
    def hreads(h):
        sl = h % 4; F = FRG + 48*(h & 1); L = []
        so = (sl & 1) * QS; ta = "v5" if sl >= 2 else "v4"; rb = RB2 if sl >= 2 else RB
        for ks in range(4):
            for u in range(2): L.append(f"ds_read_b64_tr_b16 {vr(F+12*ks+2*u,2)}, {ta} offset:{so + ks*2560 + u*160}")
            for b in range(2): L.append(f"ds_read_b128 {vr(F+12*ks+4+4*b,4)}, v{rb+ks} offset:{so + b*5120}")
        return L
    e("s_waitcnt vmcnt(5)\ns_barrier")
    stamp(k, 2)
    emit(k, hreads(0))
    emit(k, st_issue(2))
    kt_loads = [["s_mov_b32 s33, 6144"]]
    for t in range(4):
        so, off = ("0", t*3072) if t < 2 else ("s33", (t-2)*3072)
        kt_loads.append([f"buffer_load_dwordx4 {vr(KT+8*t,4)}, v2, s[24:27], {so} offen offset:{off} {SC}",
                         f"buffer_load_dwordx2 {vr(KT+8*t+4,2)}, v{BKH}, s[24:27], {so} offen offset:{off} {SC}"])
    for h in range(10):
        F = FRG + 48*(h & 1)
        if h < PH:
            n = {0: 5, 7: 5, 8: 0}.get(h, 10) + (3 if h == PH - 1 else 0)
            e(f"s_waitcnt vmcnt({n}) lgkmcnt(0)")
        else:
            if h == PH: spin(k, pl_loads + kv_poll, [PL, PL+3, PL+5], 15, pre_issued=True, slp=KSL)
            e("s_waitcnt lgkmcnt(0)")
        if h < 9: e("s_barrier")
        if h == QH:
            e(f"s_lshl_b32 s32, s2, 7\ns_add_u32 s32, s32, {QF}")
            setflag(k, "s32", 242)
        rd = hreads(h+1) if h < 9 else []
        dm = st_issue(h % 4) if h < 6 else []
        if h == 0: dm = st_issue(3) + dm
        if h == PH - 2: dm = dm + [pl_loads + kv_poll]
        if h == PH: dm = kv_issue(0, KV0 + 2*KVSLOT)
        i = 0
        for ks in range(4):
            first = (h == 0 and ks == 0)
            for acc, bop in ((S0, F+12*ks+4), (S1, F+12*ks+8), (SA, ONES)):
                e(f"{MF} {vr(acc,16)}, {vr(F+12*ks,4)}, {vr(bop,4)}, {'0' if first else vr(acc,16)}")
                emit(k, rd[:2]); rd = rd[2:]
                if dm and (i >= 3 or h in (0, PH, 9)): emit(k, dm.pop(0))
                if h == 9:
                    m = 0
                    while inits and m < 3 and inits[0][0] < F + 12*ks:
                        r, v = inits.pop(0); e(f"v_mov_b32 v{r}, {v}"); m += 1
                i += 1
        emit(k, dm)
    stamp(k, 3)
    for r, v in inits: e(f"v_mov_b32 v{r}, {v}")
    for b in range(2):
        st = PL + 2 + 2*b
        e(f"v_lshlrev_b32 v{238+b}, 16, v{st}\nv_xor_b32 v{238+b}, 0x80000000, v{238+b}\nv_and_b32 v{st}, 0xffff0000, v{st}")
        e(f"v_rcp_f32 v{st}, v{st}\nv_mul_f32 v{st}, {hex(f32bits(QSCALE))}, v{st}")
    def qepi(b):
        L = []; a = S0 + 16*b
        for j in range(12): L.append(f"v_fmac_f32 v{a+j}, v{238+b}, v{SA+j}")
        for j in range(12): L.append(f"v_mul_f32 v{a+j}, v{PL+2+2*b}, v{a+j}")
        for j in range(6): L.append(f"v_cvt_pk_bf16_f32 v{Q[b]+j}, v{a+2*j}, v{a+2*j+1}")
        L += [f"v_mov_b32 v{Q[b]+6}, 0", f"v_mov_b32 v{Q[b]+7}, 0"]
        return L
    MX = [3, 5]
    sxr = lambda b, t: [[80, 208, 32, 64], [48, 80, 208, 64]][b][t]
    def mx(b, t):
        S = sxr(b, t)
        L = [f"v_max3_f32 v{MX[b]}, v{S}, v{S+1}, v{S+2}", f"v_max_f32 v{MX[b]}, v{MX[b]}, v{S+3}"] if t == 0 else []
        for j in range(4 if t == 0 else 0, 16, 2): L.append(f"v_max3_f32 v{MX[b]}, v{MX[b]}, v{S+j}, v{S+j+1}")
        return L
    def qk(b, t):
        S = sxr(b, t)
        return [f"{MF} {vr(S,16)}, {vr(KT+8*t,4)}, {vr(Q[b],4)}, 0", f"{MF} {vr(S,16)}, {vr(KT+8*t+4,4)}, {vr(Q[b]+4,4)}, {vr(S,16)}"]
    def fin(b, offs):
        L = [f"v_mov_b32 v15, v{MX[b]}", f"v_permlane32_swap_b32 v{MX[b]}, v15", f"v_max_f32 v{MX[b]}, v{MX[b]}, v15"]
        if offs: L.append(f"v_add_f32 v{MX[b]}, {hex(f32bits(offs))}, v{MX[b]}")
        L += [f"v_cvt_pk_bf16_f32 v{MX[b]}, -v{MX[b]}, 0", "v_cmp_ne_u32 vcc, 0, v6", f"v_cndmask_b32 v{Q[b]+6}, v{MX[b]}, 0, vcc"]
        return L
    def weave(mfs, vals, per, ex=None):
        for m in mfs:
            e(m)
            if ex: emit(k, ex.pop(0))
            for _ in range(per):
                if vals: e(vals.pop(0))
        for v in vals: e(v)
    e(f"s_mov_b32 s40, 0\ns_mov_b32 s41, {KV0}\ns_add_u32 s35, s36, {KV0}\ns_add_u32 s42, s35, {KVSLOT}\ns_add_u32 s43, s36, {2*KVSLOT}\ns_add_u32 s39, s35, {3*KVSLOT}")
    e(f"s_lshr_b32 s32, s9, 1\ns_mul_i32 s32, s32, 10\ns_mul_i32 s33, s8, 272\ns_add_u32 s32, s32, s33\ns_and_b32 s33, s9, 1")
    e("s_add_u32 s16, s32, s33\ns_add_u32 s16, s16, 8\ns_lshl_b32 s16, s16, 10")
    e("s_lshl_b32 s33, s33, 2\ns_add_u32 s12, s32, s33\ns_add_u32 s12, s12, s3\ns_lshl_b32 s12, s12, 10")
    e(f"s_add_u32 s13, s12, {136*1024}\ns_add_u32 s17, s16, {136*1024}")
    e(f"s_lshl_b32 s14, s8, 3\ns_add_u32 s14, s14, s9\ns_lshl_b32 s14, s14, 7\ns_add_u32 s14, s14, {OF}")
    e("s_waitcnt vmcnt(0)\ns_barrier")
    for t in range(4):
        e(f"ds_read_b128 {vr(KT+8*t,4)}, v{AKL} offset:{t*3072}\nds_read_b64 {vr(KT+8*t+4,2)}, v{AKH} offset:{t*3072}")
    for s in range(2):
        e(f"ds_read_b128 {vr(KL(s),4)}, v{AKL} offset:{s*3072}\nds_read_b64 {vr(KH(s),2)}, v{AKH} offset:{s*3072}")
    e(f"ds_read_b128 {vr(V0(0),4)}, v{AV}\nds_read_b128 {vr(V1(0),4)}, v{AV} offset:768")
    emit(k, qepi(0))
    stamp(k, 4)
    stamp(k, 5)
    e("s_waitcnt lgkmcnt(6)")
    kv1 = kv_issue(KVSLOT, KV0)
    weave(qk(0, 0) + qk(0, 1) + qk(0, 2), qepi(1), 6, kv1)
    weave(qk(0, 3) + qk(1, 0), mx(0, 0) + mx(0, 1), 4, kv1)
    weave(qk(1, 1) + qk(1, 2), mx(0, 2) + mx(0, 3) + fin(0, OFFS), 6)
    e("s_waitcnt lgkmcnt(0)")
    weave(qk(1, 3) + [f"{MF} {vr(S0,16)}, {vr(KL(0),4)}, {vr(Q[0],4)}, 0", f"{MF} {vr(S0,16)}, {vr(KH(0),4)}, {vr(Q[0]+4,4)}, {vr(S0,16)}"],
          mx(1, 0) + [f"v_mov_b32 v{S1+12+j}, 0" for j in range(4)] + mx(1, 1) + mx(1, 2) + mx(1, 3) + fin(1, OFFS), 6)
    dma = lambda so, off: f"buffer_load_dwordx4 v2, s[24:27], {so} offen offset:{off} {SC} lds" if not NOKV else "s_nop 0"
    extra = {(1, 0): ["s_mov_b32 m0, s42"], (1, 1): ["s_add_u32 s38, s43, 4096"], (1, 3): ["s_waitcnt vmcnt(0)", "s_barrier"] if NOKV < 2 else [],
             (2, 3): [dma("s43", 0), dma("s43", 1024)], (3, 3): [dma("s43", 2048), dma("s43", 3072)],
             (4, 0): ["s_add_u32 m0, s42, 4096"], (4, 3): [dma("s38", 0), dma("s38", 1024)],
             (5, 0): [f"s_add_u32 s43, s43, {KVSLOT}"], (5, 1): ["s_add_u32 s40, s40, 1"], (5, 2): [f"s_add_u32 s37, s42, {KVSLOT}"],
             (6, 0): ["s_cmp_eq_u32 s37, s39"], (6, 1): ["s_cselect_b32 s37, s35, s37"],
             (7, 0): ["s_sub_u32 s41, s42, s36"], (7, 1): ["s_mov_b32 s42, s37"],
             (7, 2): ["s_cmp_lt_u32 s40, 8"]}
    e("s_setprio 1")
    stamp(k, 6)
    stamp(k, 7)
    Lloop = k.newlabel("att")
    k.label(Lloop, 6)
    def cv(S, Pb, g):
        return [f"v_cvt_pk_bf16_f32 v{Pb+2*g}, v{S+4*g}, v{S+4*g+1}", f"v_cvt_pk_bf16_f32 v{Pb+2*g+1}, v{S+4*g+2}, v{S+4*g+3}"]
    for jj in range(8):
        for blk in range(2):
            Sc, Sn = (S0, S1) if blk == 0 else (S1, S0)
            valu = []
            for g in range(4):
                for j in range(4): valu.append(f"v_exp_f32{E64} v{Sc+4*g+j}, v{Sc+4*g+j}")
                valu += cv(Sn, P[1-blk], 3) if g == 0 else cv(Sc, P[blk], g-1)
            ks = (jj + blk) & 1; vs = (jj - 1 + blk) & 1; nb = 1 - blk
            ko = ((jj + 2) % 8) * 3072; vo = ((jj + 1) % 8) * 3072
            mf = [[f"{MF} {vr(O[nb],16)}, {vr(V0(vs),4)}, {vr(P[nb],4)}, {vr(O[nb],16)}"],
                  [f"{MF} {vr(Sn,16)}, {vr(KL(ks),4)}, {vr(Q[nb],4)}, 0"],
                  [f"{MF} {vr(Sn,16)}, {vr(KH(ks),4)}, {vr(Q[nb]+4,4)}, {vr(Sn,16)}"],
                  [f"{MF} {vr(O[nb],16)}, {vr(V1(vs),4)}, {vr(P[nb]+4,4)}, {vr(O[nb],16)}"]]
            if blk == 0:
                mf[2].append("s_waitcnt lgkmcnt(0)")
                mf[3].append(f"ds_read_b128 {vr(KL(ks),4)}, v{AKL} offset:{ko}")
                mf[3].append(f"ds_read_b64 {vr(KH(ks),2)}, v{AKH} offset:{ko}")
            else:
                mf[3].append(f"ds_read_b128 {vr(V0(1-vs),4)}, v{AV} offset:{vo}")
                mf[3].append(f"ds_read_b128 {vr(V1(1-vs),4)}, v{AV} offset:{vo+768}")
                if jj == 5: valu.append(f"v_add_u32 v{AKL}, s41, v2"); valu.append(f"v_add_u32 v{AKH}, s41, v{BKH}")
                if jj == 6: valu.append(f"v_add_u32 v{AV}, s41, v{BV}")
                for m in range(4): mf[m] += extra.get((jj, m), [])
            for i, v in enumerate(valu):
                for m in range(4):
                    if PATTERN[m] == i: emit(k, mf[m])
                e(v)
    e(f"s_cbranch_scc1 {Lloop}")
    emit(k, cv(S1, P[1], 3))
    e(f"{MF} {vr(O[1],16)}, {vr(V0(1),4)}, {vr(P[1],4)}, {vr(O[1],16)}")
    e(f"{MF} {vr(O[1],16)}, {vr(V1(1),4)}, {vr(P[1]+4,4)}, {vr(O[1],16)}")
    stamp(k, 8)
    e("s_mov_b32 s40, 0\ns_setprio 3")
    Lout = k.newlabel("out"); Lslow = k.newlabel("slow"); Lpub = k.newlabel("pub")
    k.label(Lout)
    PK = 224; A0 = 208
    for b in range(2):
        e(f"v_rcp_f32 v{A0+b}, v{O[b]+12}")
        for j in range(12): e(f"v_mul_f32 v{O[b]+j}, v{O[b]+j}, v{A0+b}")
        for j in range(6): e(f"v_cvt_pk_bf16_f32 v{PK+8*b+j}, v{O[b]+2*j}, v{O[b]+2*j+1}")
        e(f"buffer_store_dwordx4 {vr(PK+8*b,4)}, v2, s[28:31], s{12+b} offen {SC}")
        e(f"buffer_store_dwordx2 {vr(PK+8*b+4,2)}, v{AO2}, s[28:31], s{16+b} offen {SC}")
    e(f"v_mul_f32 v{A0+2}, 0, v{O[0]+12}\nv_mul_f32 v{A0+3}, 0, v{O[1]+12}")
    for j in range(12):
        for b in range(2): e(f"v_fma_f32 v{A0+2+b}, v{O[b]+j}, 0, v{A0+2+b}")
    e(f"v_cmp_u_f32 vcc, v{A0+2}, v{A0+3}")
    e(f"s_cmp_lg_u32 s40, 0\ns_cbranch_scc1 {Lpub}")
    e(f"s_cmp_lg_u64 vcc, 0\ns_cbranch_scc1 {Lslow}")
    k.label(Lpub)
    e("s_waitcnt vmcnt(0)\ns_barrier")
    setflag(k, "s14", 16, "A")
    Lx = k.newlabel("axit")
    e(f"s_or_b32 s32, s2, s3\ns_cmp_lg_u32 s32, 0\ns_cbranch_scc1 {Lx}")
    e(f"v_lshlrev_b32 v13, 7, v1")
    ld = []
    for i in range(8): ld += [f"s_mov_b32 s38, {HF + 8192*i}", f"buffer_load_dword v{16+i}, v13, {FL}, s38 offen {SC}"]
    if not ONLY: spin(k, ld, list(range(16, 24)), 24)
    setflag(k, "0", 16)
    if LEAK:
        for i in range(8):
            e(f"s_mov_b32 s75, {HF + 8192*i}\nbuffer_load_dwordx2 {vr(32+2*i,2)}, v13, {FL}, s75 offen offset:8 {SC}")
        e("s_waitcnt vmcnt(0)")
        for i in range(16): e(f"v_subrev_u32 v{32+i}, s86, v{32+i}")
        for i in range(1, 8): e(f"v_min_i32 v32, v32, v{32+2*i}\nv_max_i32 v33, v33, v{33+2*i}")
        e("s_mov_b32 s40, 0x7fffffff\ns_mov_b32 s41, 0x80000000")
        for l in range(64):
            e(f"v_readlane_b32 s42, v32, {l}\nv_readlane_b32 s43, v33, {l}\ns_min_i32 s40, s40, s42\ns_max_i32 s41, s41, s43")
        e("s_sub_u32 s41, s41, s40\ns_mul_i32 s41, s41, 4\ns_add_u32 s41, s41, 10000\ns_add_u32 s40, s40, s86")
        Ls = k.newlabel("spin"); k.label(Ls)
        e("s_memrealtime s[42:43]\ns_waitcnt lgkmcnt(0)\ns_sub_u32 s42, s42, s40")
        e(f"s_cmp_lt_u32 s42, s41\ns_cbranch_scc1 {Ls}")
    k.label(Lx)
    stamp_dump(k, 1, 9, "s2", PWS)
    e("s_endpgm")
    k.label(Lslow)
    e("s_waitcnt vmcnt(0) lgkmcnt(0)")
    e(f"s_mov_b32 s40, 1\ns_mov_b32 s41, 0\nv_mov_b32 v{Q[0]+6}, 0\nv_mov_b32 v{Q[1]+6}, 0")
    e(f"v_mov_b32 v{MX[0]}, 0xff800000\nv_mov_b32 v{MX[1]}, 0xff800000")
    def kload():
        e(f"buffer_load_dwordx4 {vr(KL(0),4)}, v2, s[24:27], s41 offen {SC}")
        e(f"buffer_load_dwordx2 {vr(KH(0),2)}, v{BKH}, s[24:27], s41 offen {SC}")
    def qk2():
        for b in range(2):
            S = S0 + 16*b
            e(f"{MF} {vr(S,16)}, {vr(KL(0),4)}, {vr(Q[b],4)}, 0\n{MF} {vr(S,16)}, {vr(KH(0),4)}, {vr(Q[b]+4,4)}, {vr(S,16)}")
    L1 = k.newlabel("sl1"); k.label(L1)
    kload(); e("s_waitcnt vmcnt(0)"); qk2()
    for b in range(2):
        for j in range(0, 16, 2): e(f"v_max3_f32 v{MX[b]}, v{MX[b]}, v{S0+16*b+j}, v{S0+16*b+j+1}")
    e(f"s_add_u32 s41, s41, 3072\ns_cmp_lt_u32 s41, {KV_BYTES}\ns_cbranch_scc1 {L1}")
    for b in range(2): emit(k, fin(b, 0))
    for j in range(32): e(f"v_mov_b32 v{O[0]+j}, 0")
    e("s_mov_b32 s41, 0")
    L2 = k.newlabel("sl2"); k.label(L2)
    kload()
    e(f"buffer_load_dwordx4 {vr(V0(0),4)}, v{BV}, s[24:27], s41 offen {SC}")
    e(f"buffer_load_dwordx4 {vr(V1(0),4)}, v{BV}, s[24:27], s41 offen offset:768 {SC}")
    e("s_waitcnt vmcnt(0)"); qk2()
    for b in range(2):
        S = S0 + 16*b
        for j in range(16): e(f"v_exp_f32 v{S+j}, v{S+j}")
        for g in range(4): emit(k, cv(S, P[b], g))
        e(f"{MF} {vr(O[b],16)}, {vr(V0(0),4)}, {vr(P[b],4)}, {vr(O[b],16)}")
        e(f"{MF} {vr(O[b],16)}, {vr(V1(0),4)}, {vr(P[b]+4,4)}, {vr(O[b],16)}")
    e(f"s_add_u32 s41, s41, 3072\ns_cmp_lt_u32 s41, {KV_BYTES}\ns_cbranch_scc1 {L2}")
    e("s_nop 12")
    e(f"s_branch {Lout}")

def gen_mega(name="parallel_sum__grouped_kv_mqa__swiglu_ffn__prompt_kernel"):
    k = Kernel(name); e = k.e
    LA = k.newlabel("roleA"); LB = k.newlabel("roleB")
    e("s_load_dwordx16 s[48:63], s[0:1], 0\ns_load_dwordx8 s[64:71], s[0:1], 64")
    e("v_and_b32 v1, 63, v0\nv_lshrrev_b32 v2, 6, v0\nv_readfirstlane_b32 s3, v2\nv_lshlrev_b32 v2, 4, v1")
    e(f"s_cmp_lt_u32 s2, 256\ns_cbranch_scc1 {LB}\ns_cmp_lt_u32 s2, 512\ns_cbranch_scc1 {LA}\ns_endpgm")
    k.label(LB)
    e("s_setprio 3")
    roleB(k)
    k.label(LA, 6)
    if ONLY == "B": e("s_endpgm")
    e(f"s_sub_u32 s2, s2, 256\ns_setprio {AP0}")
    roleA(k)
    k.label(f"{k.name}_end")
    k.lds = 81920; k.grid = 512; k.block = 256
    return k

if __name__ == "__main__":
    import sys
    from build import emit as emit_file
    emit_file([gen_mega()], sys.argv[1] if len(sys.argv) > 1 else "parallel_sum__grouped_kv_mqa__swiglu_ffn__prompt.s")
```

```python
from asmgen import *
from common import KA, NBYTES, f32bits, srd_from, stamp, stamp_dump, STAMPS
import math, os

MF = "v_mfma_f32_32x32x16_bf16"
LOG2E = math.log2(math.e)
QSCALE = (20 ** -0.5) * float(os.environ.get("QEPS", 1.0))
env = lambda n, d: type(d)(os.environ.get(n, d))
OFFS = env('OFFS', 96.0)
PATTERN = [int(x) for x in env('APAT', '2,6,9,13').split(',')]
BST = env("BST", 0); ONLY = env("ONLY", "")
P0B = env("P0B", 14); PKD = env("PKD", 0); ADLY = env("ADLY", 2); E64 = env("E64", ""); TP = env("TP", 0); QH = env("QH", 3); PKS = env("PKS", 1); WF = env("WF", 0); KVS = env("KVS", 2); PH = env("PH", 7); LATE = env("LATE", 0); NOKV = env("NOKV", 0); KSL = env("KSL", 4); BSL = env("BSL", 8); BP0 = env("BP0", 0); GP0 = env("GP0", 0); GP1 = env("GP1", 2); GSW = env("GSW", -1); CPF = env("CPF", 1); DP = env("DP", 0); AP0 = env("AP0", 2)
STAT = 0x1000; PKF = 0x800; HF = 0x9000; OF = 0x11000; KVF = 0xE80000; XNF = 0xE88000; QF = 0xE90000; FL_BYTES = 0xE98000
KV_OFF = 0x20000;  KV_BYTES = 64*3072
WP_OFF = 0x50000;  WP_BYTES = 8*136*2560
AF_OFF = 0x300000; AF_BYTES = 64*136*1024
XN_OFF = 0xC00000; XN_BYTES = 64*40*1024
PX, PWQ, PWK, PWV, PWO, PWG, PWU, PWD, POUT, PWS = 48, 50, 52, 54, 56, 60, 62, 64, 66, 70
TAG = "s73"; BUD = "s74"; FLS = 44; SC = "sc1"
FL = f"s[{FLS}:{FLS+3}]"
HUGE = "0x7ff00000"

def bstamp(k, name):
    m0 = dict(start=0, xl=1, xs=2, xf=3, p0=4, gu0=5, gu1=6, dn0=7, dn1=8)
    m1 = dict(start=0, p0=1, gu0=2, gu1=3, dn0=4, dn1=5, of=6, mm=7, rd=8)
    m = m1 if BST else m0
    if name in m: stamp(k, m[name])

def emit(k, lst):
    for x in lst:
        if isinstance(x, list): emit(k, x)
        else: k.e(x)

def spin(k, loads, regs, vt, pre_issued=False, slp=1):
    e = k.e
    Lp = k.newlabel("poll"); Ld = k.newlabel("pdone"); Lc = k.newlabel("pchk")
    if pre_issued: e(f"s_branch {Lc}")
    k.label(Lp)
    emit(k, loads)
    k.label(Lc)
    e("s_waitcnt vmcnt(0)")
    e(f"v_xor_b32 v{vt}, {TAG}, v{regs[0]}")
    for r in regs[1:]:
        e(f"v_xor_b32 v{r}, {TAG}, v{r}\nv_or_b32 v{vt}, v{vt}, v{r}")
    e(f"v_cmp_ne_u32 vcc, 0, v{vt}")
    e(f"s_cmp_eq_u64 vcc, 0\ns_cbranch_scc1 {Ld}")
    e(f"s_sub_u32 {BUD}, {BUD}, 1\ns_cbranch_scc1 {Ld}")
    e(f"s_sleep {slp}\ns_branch {Lp}")
    k.label(Ld)

LEAK = os.environ.get("LEAK")
def setflag(k, soffs, vt, leak=None):
    e = k.e
    L = k.newlabel("nofl")
    e(f"s_cmp_lg_u32 s3, 0\ns_cbranch_scc1 {L}")
    if LEAK and leak is not None:
        role, idx = LEAK[0], int(LEAK[1:])
        sel = f"s{86+idx}" if role == leak else "s86"
        e(f"v_mov_b32 v{vt}, s86\nv_mov_b32 v{vt+1}, {sel}\nv_mov_b32 v{vt+2}, 0\ns_mov_b64 exec, 1")
        e(f"buffer_store_dwordx2 {vr(vt,2)}, v{vt+2}, {FL}, {soffs} offen offset:8 {SC}")
        e("s_waitcnt vmcnt(0)\ns_mov_b64 exec, -1")
    e(f"v_mov_b32 v{vt}, {TAG}\nv_mov_b32 v{vt+1}, 0\ns_mov_b64 exec, 1")
    for so in (soffs if isinstance(soffs, list) else [soffs]):
        e(f"buffer_store_dword v{vt}, v{vt+1}, {FL}, {so} offen {SC}")
    e("s_mov_b64 exec, -1")
    k.label(L)

def tag_setup(k):
    k.e(f"s_load_dword s72, s[{PWS}:{PWS+1}], 0")
    srd_from(k, FLS, PWS, FL_BYTES)
    k.e(f"s_mov_b32 {BUD}, 200000")
def tag_finish(k):
    k.e(f"s_waitcnt lgkmcnt(0)\ns_mul_i32 {TAG}, s72, 1664525\ns_add_u32 {TAG}, {TAG}, 1013904223")

def x_voffs(k, dst, t):
    e = k.e
    e(f"v_lshrrev_b32 v{t}, 3, v1\nv_mul_u32_u24 v{t}, 1280, v{t}")
    e(f"v_and_b32 v{t+1}, 7, v1\nv_lshrrev_b32 v{t+2}, 4, v1\nv_xor_b32 v{t+1}, v{t+1}, v{t+2}")
    e(f"v_lshl_add_u32 v{dst}, v{t+1}, 4, v{t}\nv_xor_b32 v{dst+1}, 64, v{dst}")
def x_raddr(k, dst, t, base):
    e = k.e
    e(f"v_and_b32 v{t}, 31, v1\nv_bfe_u32 v{t+1}, v1, 1, 3\nv_lshrrev_b32 v{t+2}, 5, v1\nv_xor_b32 v{t+1}, v{t+1}, v{t+2}")
    e(f"v_lshlrev_b32 v{t}, 7, v{t}\nv_lshl_add_u32 v{t}, v{t+1}, 4, v{t}")
    for ks in range(4):
        e(f"v_xor_b32 v{t+1}, {ks*32}, v{t}\nv_add_u32 v{dst+ks}, {base}, v{t+1}")

def phase0(k):
    e = k.e
    e("v_and_b32 v3, 15, v1\nv_lshrrev_b32 v4, 4, v1")
    e("s_mul_i32 s12, s4, 20480\ns_mul_i32 s13, s3, 320\ns_add_u32 s12, s12, s13")
    e("v_mul_u32_u24 v5, 1280, v3\nv_lshl_add_u32 v5, v4, 4, v5")
    e("s_mul_i32 s14, s3, 6400\ns_mul_i32 s15, s3, 7168\ns_add_u32 s37, s14, 4096")
    e("s_waitcnt lgkmcnt(0)")
    srd_from(k, 16, PX, NBYTES['x'])
    X = 16
    for i in range(5):
        e(f"buffer_load_dwordx4 {vr(X+4*i,4)}, v5, s[16:19], s12 offen offset:{64*i}")
    tag_setup(k)
    e(f"s_cmp_eq_u32 s11, 0\ns_cselect_b32 s20, s{PWK}, s{PWV}\ns_cselect_b32 s21, s{PWK+1}, s{PWV+1}")
    e(f"s_mov_b32 s22, {hex(NBYTES['wk'])}\ns_mov_b32 s23, 0x20000\ns_mov_b32 m0, s15")
    for j in range(7):
        if j == 4: e("s_add_u32 m0, s15, 4096")
        e(f"buffer_load_dwordx4 v2, s[20:23], {'s14' if j < 4 else 's37'} offen offset:{(j%4)*1024} lds")
    srd_from(k, 28, PWS, XN_BYTES, XN_OFF)
    srd_from(k, 32, PWS, KV_BYTES, KV_OFF)
    e("v_mov_b32 v8, 0\nv_mov_b32 v9, 0\nv_mov_b32 v10, 0\nv_mov_b32 v11, 0")
    e("s_mov_b32 s38, 0x3f803f80")
    LST = 28672; RED = LST + 512
    e(f"s_lshl_b32 s39, s3, 7\ns_add_u32 s39, s39, {LST}")
    e("v_lshl_add_u32 v12, v3, 3, s39\nv_lshlrev_b32 v13, 3, v3")
    e("v_lshrrev_b32 v14, 2, v3\nv_lshl_add_u32 v14, v4, 3, v14\nv_mul_u32_u24 v14, 40, v14")
    e("v_and_b32 v15, 3, v1\nv_lshl_add_u32 v14, v15, 3, v14\nv_add_u32 v14, s15, v14")
    e(f"s_lshl_b32 s36, s4, 7\ns_add_u32 s36, s36, {STAT}")
    e("s_lshr_b32 s40, s4, 1\ns_mul_i32 s41, s40, 40960\ns_and_b32 s42, s4, 1")
    e("s_lshl_b32 s43, s42, 8\ns_add_u32 s41, s41, s43\ns_mul_i32 s43, s3, 10240\ns_add_u32 s41, s41, s43")
    e("v_lshlrev_b32 v5, 9, v4\nv_lshl_add_u32 v5, v3, 4, v5")
    e(f"s_lshl_b32 s39, s3, 11\ns_add_u32 s39, s39, {RED}\nv_add_u32 v92, s39, v2\ns_mul_i32 s39, s40, 3072")
    e(f"s_lshl_b32 s43, s4, 1\ns_add_u32 s43, s43, s11\ns_lshl_b32 s75, s43, 7\ns_add_u32 s75, s75, {XNF}\ns_lshl_b32 s43, s43, {KVS}\ns_add_u32 s43, s43, {KVF}")
    Lv, Lst = k.newlabel("v"), k.newlabel("st")
    e("v_lshl_add_u32 v7, s42, 4, v3\nv_and_b32 v15, 1, v4\nv_lshrrev_b32 v6, 1, v4\nv_mov_b32 v95, 0x7fffffff")
    e(f"s_mov_b64 s[24:25], 0\ns_cmp_lg_u32 s11, 0\ns_cbranch_scc1 {Lv}")
    e("v_lshl_add_u32 v93, v6, 5, v7\nv_lshlrev_b32 v93, 4, v93\nv_lshl_add_u32 v93, v15, 3, v93")
    e("v_lshlrev_b32 v94, 3, v7\nv_add_u32 v94, 1024, v94\nv_cmp_ne_u32 vcc, 0, v4")
    e(f"s_branch {Lst}")
    k.label(Lv)
    e("s_mul_i32 s26, s42, 768\ns_add_u32 s26, s26, 1536\ns_mov_b32 s24, 0x00100010\ns_mov_b32 s25, 0x00100010")
    e("v_mul_u32_u24 v93, 384, v15\nv_lshl_add_u32 v93, v3, 4, v93\nv_lshl_add_u32 v93, v6, 3, v93\nv_add_u32 v93, s26, v93")
    e("v_add_u32 v94, 256, v93\nv_cmp_lt_u32 vcc, 4, v3")
    k.label(Lst)
    e("v_cndmask_b32 v94, v94, v95, vcc\nv_mov_b32 v95, 0x3f803f80")
    tag_finish(k)
    for i in range(5):
        e(f"s_waitcnt vmcnt({11 - i})")
        for d in range(4*i, 4*i+4):
            a = 8 + (d & 1); q = 10 + (d & 1)
            e(f"v_dot2_f32_bf16 v{a}, v{X+d}, s38, v{a}")
            e(f"v_dot2_f32_bf16 v{q}, v{X+d}, v{X+d}, v{q}")
    bstamp(k, "xl")
    e("v_add_f32 v8, v8, v9\nv_add_f32 v9, v10, v11")
    for sw in ("v_permlane32_swap_b32", "v_permlane16_swap_b32"):
        e("v_mov_b32 v10, v8\nv_mov_b32 v11, v9")
        e(f"{sw} v8, v10\n{sw} v9, v11")
        e("v_add_f32 v8, v8, v10\nv_add_f32 v9, v9, v11")
    e("ds_write_b64 v12, v[8:9]")
    U = 96; W = 136
    for d in range(20):
        e(f"v_lshlrev_b32 v{U+2*d}, 16, v{X+d}\nv_and_b32 v{U+2*d+1}, 0xffff0000, v{X+d}")
        if d == 1:
            e("s_waitcnt lgkmcnt(0)\ns_barrier")
            for w in range(4): e(f"ds_read_b64 {vr(36+2*w,2)}, v13 offset:{LST+128*w}")
    e("s_waitcnt lgkmcnt(0) vmcnt(0)")
    for i in range(5):
        for tl in range(2):
            for u in range(2):
                e(f"ds_read_b64_tr_b16 {vr(W+8*i+4*tl+2*u,2)}, v14 offset:{i*1280 + u*160 + tl*32}")
    e("v_add_f32 v8, v36, v38\nv_add_f32 v9, v37, v39\nv_add_f32 v10, v40, v42\nv_add_f32 v11, v41, v43")
    e("v_add_f32 v8, v8, v10\nv_add_f32 v9, v9, v11")
    inv = hex(f32bits(1.0/640))
    e(f"v_mul_f32 v8, {inv}, v8\nv_mul_f32 v9, {inv}, v9")
    e("v_fma_f32 v9, -v8, v8, v9\nv_max_f32 v9, 0, v9")
    e("v_cvt_pk_bf16_f32 v10, v8, v9")
    e("v_lshlrev_b32 v8, 16, v10\nv_and_b32 v9, 0xffff0000, v10")
    e(f"v_add_f32 v9, {hex(f32bits(1e-5))}, v9")
    e("v_cvt_pk_bf16_f32 v9, v9, v9\nv_and_b32 v9, 0xffff0000, v9")
    e("v_sqrt_f32 v9, v9")
    e("v_cvt_pk_bf16_f32 v6, v8, v9")
    e(f"v_mov_b32 v7, {TAG}\nv_and_b32 v9, 0xffff0000, v6")
    Lns = k.newlabel("nost")
    e(f"s_lshl_b32 s26, s11, 2\ns_add_u32 s26, s26, s3\ns_cmp_lg_u32 s26, 7\ns_cbranch_scc1 {Lns}")
    e(f"s_mov_b64 exec, 0xffff\nbuffer_store_dwordx2 v[6:7], v13, {FL}, s36 offen {SC}\ns_mov_b64 exec, -1")
    k.label(Lns)
    e("v_rcp_f32 v10, v9")
    e(f"v_mul_f32 v10, {hex(f32bits(LOG2E))}, v10")
    e("v_mul_f32 v11, v8, v10")
    ACC = 44
    for d in range(20):
        u = U + 2*d
        e(f"v_fma_f32 v{u}, v{u}, v10, -v11\nv_fma_f32 v{u+1}, v{u+1}, v10, -v11")
        if d >= 1: e(f"v_cvt_pk_bf16_f32 v{X+d-1}, v{u-2}, v{u-1}")
    e(f"v_cvt_pk_bf16_f32 v{X+19}, v{U+38}, v{U+39}")
    Lmv, Lmd = k.newlabel("mv"), k.newlabel("md")
    e(f"s_waitcnt lgkmcnt(0)\ns_cmp_lg_u32 s11, 0\ns_cbranch_scc1 {Lmv}")
    def xst(i): return f"buffer_store_dwordx4 {vr(X+4*i,4)}, v5, s[28:31], s26 offen offset:{(i%2)*2048} {SC}"
    for m in range(2):
        if m: k.label(Lmv)
        for i in range(5):
            for tl in range(2):
                wf = vr(W+8*i+4*tl, 4); xf = vr(X+4*i, 4); acc = vr(ACC+4*tl, 4)
                a, b = (wf, xf) if m == 0 else (xf, wf)
                e(f"v_mfma_f32_16x16x32_bf16 {acc}, {a}, {b}, {'0' if i == 0 else acc}")
        if m == 0: e(f"s_branch {Lmd}")
    k.label(Lmd)
    bstamp(k, "xs")
    for tl in range(2):
        e(f"ds_write_b128 v92, {vr(ACC+4*tl,4)} offset:{tl*1024}")
    e("s_waitcnt lgkmcnt(0)\ns_barrier")
    Lx = k.newlabel("xst")
    e(f"s_cmp_lg_u32 s3, 0\ns_cbranch_scc1 {Lx}")
    R = 52
    for tl in range(2):
        for w in range(1, 4):
            e(f"ds_read_b128 {vr(R+16*tl+4*w,4)}, v92 offset:{w*2048 + tl*1024}")
    for tl in range(2):
        e(f"s_waitcnt lgkmcnt({3 - 3*tl})")
        r = R + 16*tl; c = ACC + 4*tl
        for j in range(4):
            e(f"v_add_f32 v{c+j}, v{c+j}, v{r+4+j}\nv_add_f32 v{r+8+j}, v{r+8+j}, v{r+12+j}\nv_add_f32 v{c+j}, v{c+j}, v{r+8+j}")
        e(f"v_cvt_pk_bf16_f32 v{8+2*tl}, v{c}, v{c+1}\nv_cvt_pk_bf16_f32 v{9+2*tl}, v{c+2}, v{c+3}")
        if tl: e("v_cndmask_b32 v10, v10, v95, s[24:25]\nv_cndmask_b32 v11, v11, v95, s[24:25]")
        e(f"buffer_store_dwordx2 {vr(8+2*tl,2)}, v{93+tl}, s[32:35], s39 offen {SC}")
    k.label(Lx)
    L1, L2 = k.newlabel("x1"), k.newlabel("x2")
    e(f"s_cmp_lg_u32 s11, 0\ns_cbranch_scc1 {L1}")
    e("s_mov_b32 s26, s41"); e(xst(0)); e(xst(1)); e("s_add_u32 s26, s41, 4096"); e(xst(2))
    e(f"s_branch {L2}")
    k.label(L1)
    e("s_add_u32 s26, s41, 4096"); e(xst(3)); e("s_add_u32 s26, s41, 8192"); e(xst(4))
    k.label(L2)
    bstamp(k, "xf")

def roleB(k):
    e = k.e
    SLOT = 20480
    GW, RA, RB = 216, 221, 224
    ACC = 32; FR = [176, 196]
    Lgu = k.newlabel("gu0"); Lpk = k.newlabel("pk")
    bstamp(k, "start")
    e("s_and_b32 s5, s2, 7\ns_lshr_b32 s6, s2, 3")
    def tile_ids():
        e("s_lshr_b32 s7, s5, 1\ns_lshl_b32 s7, s7, 2\ns_lshr_b32 s8, s6, 3\ns_add_u32 s7, s7, s8")
        e("s_and_b32 s9, s5, 1\ns_lshl_b32 s8, s9, 3\ns_and_b32 s10, s6, 7\ns_add_u32 s8, s8, s10\ns_lshl_b32 s11, s7, 1\ns_add_u32 s9, s9, s11")
    def gu_vsetup(t):
        e("s_and_b32 s11, s3, 2")
        for i in range(3):
            e(f"v_add_u32 v{t}, {64*i}, v1\nv_mul_u32_u24 v{t+1}, 5462, v{t}\nv_lshrrev_b32 v{t+1}, 16, v{t+1}")
            e(f"v_mul_u32_u24 v{t+2}, 12, v{t+1}\nv_sub_u32 v{t+2}, v{t}, v{t+2}\nv_xor_b32 v{t+2}, s11, v{t+2}")
            e(f"v_mul_u32_u24 v{t+1}, 3072, v{t+1}\nv_lshl_add_u32 v{GW+i}, v{t+2}, 4, v{t+1}")
    def gu_vsetup2(t):
        e(f"v_lshrrev_b32 v{t}, 5, v1\nv_bfe_u32 v{t+1}, v1, 2, 2\nv_lshl_add_u32 v{t+1}, v{t}, 3, v{t+1}\nv_mul_u32_u24 v{t+1}, 192, v{t+1}")
        e(f"v_and_b32 v{t+2}, 1, v1\nv_lshl_add_u32 v{t+1}, v{t+2}, 4, v{t+1}\nv_bfe_u32 v{t+2}, v1, 1, 1\nv_lshl_add_u32 v{t+1}, v{t+2}, 3, v{t+1}")
        e(f"v_bfe_u32 v{t+2}, v1, 4, 1\nv_mul_u32_u24 v{t+3}, 6144, v{t+2}\nv_add_u32 v{t+1}, v{t+1}, v{t+3}")
        e("s_lshr_b32 s11, s3, 1\ns_mul_i32 s11, s11, 3")
        for a in range(3):
            e(f"v_xor_b32 v{t+3}, s11, v{t+2}\nv_lshl_add_u32 v{RA+a}, v{t+3}, 5, v{t+1}\ns_add_u32 s11, s11, 1")
        e(f"s_and_b32 s11, s3, 1\ns_lshl_b32 s11, s11, 12\ns_add_u32 s11, s11, 12288\nv_add_u32 v{RB}, s11, v2")
        e(f"v_and_b32 v{RB+1}, 3, v1\nv_lshlrev_b32 v{RB+1}, 7, v{RB+1}")
    def zero_acc():
        for j in range(96): e(f"v_mov_b32 v{ACC+j}, 0")
    def gu_ssetup():
        e("s_lshr_b32 s38, s3, 1\ns_and_b32 s39, s3, 1\ns_mul_i32 s40, s38, 3")
        srd_from(k, 16, PWS, XN_BYTES, XN_OFF)
        e(f"s_cmp_eq_u32 s38, 0\ns_cselect_b32 s20, s{PWG}, s{PWU}\ns_cselect_b32 s21, s{PWG+1}, s{PWU+1}")
        e(f"s_mov_b32 s22, {hex(NBYTES['wg'])}\ns_mov_b32 s23, 0x20000")
        e("s_mul_i32 s12, s39, 49152\ns_mul_i32 s32, s8, 192\ns_add_u32 s12, s12, s32")
        e(f"s_lshl_b32 s32, s7, 2\ns_add_u32 s32, s32, s3\ns_mul_i32 s13, s32, 40960\ns_lshl_b32 s42, s32, 9\ns_add_u32 s42, s42, {XNF}")
        e("s_mul_i32 s14, s3, 3072\ns_lshl_b32 s15, s3, 11\ns_add_u32 s15, s15, 12288")
    def issueW(sl):
        return [[f"s_add_u32 m0, s14, {sl*SLOT}"],
                [f"buffer_load_dwordx4 v{GW}, s[20:23], s12 offen lds", "s_add_u32 m0, m0, 1024"],
                [f"buffer_load_dwordx4 v{GW+1}, s[20:23], s12 offen lds", "s_add_u32 m0, m0, 1024"],
                [f"buffer_load_dwordx4 v{GW+2}, s[20:23], s12 offen lds", f"s_add_u32 s12, s12, {32*3072}"]]
    def issueX(sl):
        return [[f"s_add_u32 m0, s15, {sl*SLOT}"],
                [f"buffer_load_dwordx4 v2, s[16:19], s13 offen {SC} lds"],
                [f"buffer_load_dwordx4 v2, s[16:19], s13 offen offset:1024 {SC} lds", "s_add_u32 s13, s13, 2048"]]
    xn_poll = [f"buffer_load_dword v16, v{RB+1}, {FL}, s42 offen {SC}"]
    e("s_lshl_b32 s4, s5, 4\ns_lshr_b32 s11, s6, 1\ns_add_u32 s4, s4, s11\ns_and_b32 s11, s6, 1")
    def pre():
        tile_ids(); gu_vsetup(232); gu_vsetup2(232)
    if CPF:
        Lc = k.newlabel("nocp"); Lh = k.newlabel("here")
        e(f"s_cmp_lg_u32 s6, 31\ns_cbranch_scc1 {Lc}")
        e("s_getpc_b64 s[34:35]")
        k.label(Lh)
        e(f"s_sub_u32 s34, s34, {Lh}-{k.name}\ns_subb_u32 s35, s35, 0")
        e(f"v_lshlrev_b32 v9, 7, v0\nv_min_u32 v9, {k.name}_end-{k.name}-4, v9")
        e("global_load_dword v255, v9, s[34:35]")
        k.label(Lc)
    phase0(k)
    pre()
    gu_ssetup()
    zero_acc()
    e("s_waitcnt vmcnt(2)")
    setflag(k, "s43", 10)
    Lw0 = k.newlabel("w0")
    e(f"s_waitcnt vmcnt(1)\ns_cmp_eq_u32 s3, 0\ns_cbranch_scc1 {Lw0}\ns_waitcnt vmcnt(0)")
    k.label(Lw0)
    e("s_barrier")
    setflag(k, "s75", 10)
    e(f"s_setprio {BP0}\ns_mov_b32 s11, {HUGE}")
    e(f"s_lshl_b32 s41, s2, 7\ns_add_u32 s41, s41, {QF}\nv_mov_b32 v31, 0")
    def go():
        if QH >= 0: spin(k, xn_poll + [f"buffer_load_dword v29, v31, {FL}, s41 offen {SC}"], [16, 29], 17, slp=BSL)
        else: spin(k, xn_poll, [16], 17, slp=BSL)
    e(f"s_cmp_lt_u32 s2, 136\ns_cbranch_scc1 {Lpk}")
    go()
    for c in range(4): emit(k, issueW(c)); emit(k, issueX(c))
    e(f"s_branch {Lgu}")
    k.label(Lpk)
    PKB = 3*SLOT; PD = 128
    e("s_mov_b32 s4, s2\ns_mul_i32 s33, s3, 320")
    for i in range(5):
        e(f"v_add_u32 v13, {64*i}, v1\nv_add_u32 v13, s33, v13\nv_mul_u32_u24 v{19+i}, 52429, v13\nv_lshrrev_b32 v{19+i}, 22, v{19+i}")
        e(f"v_mul_u32_u24 v14, 80, v{19+i}\nv_sub_u32 v14, v13, v14\nv_lshlrev_b32 v{24+i}, 4, v14")
    def pack_issue(first, lo=0):
        e("s_mul_i32 s32, s4, 241\ns_lshr_b32 s32, s32, 13\ns_mul_i32 s33, s32, 34\ns_sub_u32 s33, s4, s33")
        e("s_mul_i32 s34, s32, 384\ns_lshl_b32 s35, s33, 4\ns_add_u32 s34, s34, s35")
        e("s_sub_u32 s36, s33, 24\ns_sub_u32 s37, s33, 29\ns_cmp_ge_u32 s33, 29\ns_cselect_b32 s36, s37, s36\ns_cselect_b32 s37, 320, 0")
        e("s_mul_i32 s35, s32, 80\ns_add_u32 s35, s35, s37\ns_mul_i32 s37, s36, 20")
        e("s_cmp_eq_u32 s36, 4\ns_cselect_b32 s37, 16, s37\ns_cselect_b32 s43, 16, 0\ns_add_u32 s36, s35, s37")
        for i in range(5):
            e(f"v_lshrrev_b32 v13, 2, v{19+i}\nv_mul_u32_u24 v13, s43, v13\nv_add_u32 v13, v13, v{19+i}\nv_mul_u32_u24 v13, 1280, v13\nv_add_u32 v{3+i}, v13, v{24+i}")
        first()
        e(f"s_cmp_ge_u32 s33, 24\ns_cselect_b32 s34, s36, s34\ns_cselect_b32 s24, s{PWO}, s{PWD}\ns_cselect_b32 s25, s{PWO+1}, s{PWD+1}")
        e(f"s_cselect_b32 s26, {hex(NBYTES['wo'])}, s26\ns_mov_b32 s27, 0x20000\ns_mul_i32 s34, s34, 1280")
        e(f"s_mul_i32 s35, s3, 5120\ns_add_u32 m0, s35, {PKB+lo}")
        for i in range(5):
            e(f"buffer_load_dwordx4 v{3+i}, s[24:27], s34 offen lds")
            if i < 4: e("s_add_u32 m0, m0, 1024")
    def pack_finish(lo=0):
        for c in range(2):
            for a in range(3):
                for u in range(2):
                    ad, off = ("v10", a*64) if a < 2 else ("v11", 0)
                    e(f"ds_read_b64_tr_b16 {vr(PD+12*c+4*a+2*u,2)}, {ad} offset:{lo + c*160 + off + u*5120}")
        e(f"s_mul_i32 s5, s3, {2*136*2560}\ns_mul_i32 s6, s4, 2560\ns_add_u32 s5, s5, s6\ns_add_u32 s6, s5, {136*2560}")
        e("s_waitcnt lgkmcnt(0)")
    e("v_lshrrev_b32 v8, 5, v1\nv_bfe_u32 v9, v1, 2, 2\nv_lshl_add_u32 v9, v8, 3, v9\nv_mul_u32_u24 v9, 1280, v9")
    e(f"s_mul_i32 s32, s3, 320\ns_add_u32 s32, s32, {PKB}\nv_add_u32 v9, s32, v9")
    e("v_and_b32 v16, 1, v1\nv_bfe_u32 v17, v1, 1, 1\nv_bfe_u32 v18, v1, 4, 1")
    e("v_lshl_add_u32 v10, v16, 5, v9\nv_lshl_add_u32 v10, v17, 3, v10\nv_lshl_add_u32 v10, v18, 4, v10")
    e("v_lshl_add_u32 v11, v16, 4, v9\nv_lshl_add_u32 v11, v17, 3, v11\nv_add_u32 v11, 128, v11\nv_lshl_add_u32 v11, v18, 18, v11")
    e("v_and_b32 v12, 15, v1\nv_lshlrev_b32 v12, 4, v12\nv_lshl_add_u32 v12, v8, 8, v12\nv_lshl_add_u32 v12, v18, 30, v12")
    e(f"s_lshl_b32 s75, s4, 2\ns_add_u32 s75, s75, {PKF}")
    e(f"s_mov_b32 s26, {hex(NBYTES['wd'])}")
    pack_issue(go)
    for c in range(2): emit(k, issueW(c)); emit(k, issueX(c))
    e("s_waitcnt vmcnt(10)\ns_barrier")
    pack_finish()
    emit(k, issueW(2)); emit(k, issueX(2))
    e("s_barrier")
    emit(k, issueW(3)); emit(k, issueX(3))
    k.label(Lgu)
    bstamp(k, "p0")
    srd_from(k, 28, PWS, AF_BYTES, AF_OFF)
    def reads(fs, sl, ks):
        L = [f"ds_read_b128 {vr(FR[fs]+12,4)}, v{RB} offset:{sl*SLOT + ks*1024}"]
        for a in range(3):
            for u in range(2):
                L.append(f"ds_read_b64_tr_b16 {vr(FR[fs]+4*a+2*u,2)}, v{RA+a} offset:{sl*SLOT + (16*ks+4*u)*192}")
            if a == 0: L.append(f"ds_read_b128 {vr(FR[fs]+16,4)}, v{RB} offset:{sl*SLOT + 2048 + ks*1024}")
        return L
    def mfmas(fs):
        return [f"{MF} {vr(ACC+16*(2*a+b),16)}, {vr(FR[fs]+4*a,4)}, {vr(FR[fs]+12+4*b,4)}, {vr(ACC+16*(2*a+b),16)}" for a in range(3) for b in range(2)]
    e("s_mov_b32 s42, 0\nv_min_u32 v4, 33, v1\nv_lshlrev_b32 v4, 4, v4")
    e("s_waitcnt vmcnt(15)\ns_barrier")
    e(f"s_setprio {GP0}")
    bstamp(k, "gu0")
    if ONLY == "A":
        e("s_waitcnt vmcnt(0)"); stamp_dump(k, 0, 6, "s2", PWS); e("s_endpgm")
    emit(k, reads(0, 0, 0))
    srd_from(k, 24, PWS, WP_BYTES, WP_OFF)
    e(f"s_mul_i32 s11, s10, {4*34*2560}\ns_mul_i32 s43, s3, 5120\ns_add_u32 s11, s11, s43\ns_mov_b32 s35, {HUGE}")
    st_loads = [f"buffer_load_dwordx4 v[16:19], v4, {FL}, s36 offen {SC}"]
    def issueP(sl):
        L = [[f"s_add_u32 m0, s43, {sl*SLOT}", "s_add_u32 s33, s11, 4096"]]
        for i in range(4): L.append([f"buffer_load_dwordx4 v2, s[24:27], s11 offen offset:{i*1024} {SC} lds"])
        L[4].append("s_add_u32 m0, m0, 4096")
        L.append([f"buffer_load_dwordx4 v2, s[24:27], s33 offen {SC} lds", f"s_add_u32 s11, s11, {34*2560}"])
        return L
    L = k.newlabel("gu")
    def trip(last):
        for sl in range(4):
            e("s_waitcnt lgkmcnt(0)")
            rd = reads(1, sl, 1); mf = mfmas(0)
            sh = [rd[0:2], rd[2:4], rd[4:6], rd[6:8], [], []]
            if not last and sl == 1: sh[4] = ["s_cmp_eq_u32 s42, 3", f"s_cselect_b32 s36, {PKF}, s35"] + st_loads
            for i in range(6):
                e(mf[i]); emit(k, sh[i])
            if sl == 0 and not last:
                Ls = k.newlabel("nps")
                e(f"s_cmp_ge_u32 s2, 136\ns_cbranch_scc1 {Ls}\ns_cmp_lg_u32 s42, 1\ns_cbranch_scc1 {Ls}")
                for c in range(2):
                    for a in range(3):
                        e(f"buffer_store_dwordx4 {vr(PD+12*c+4*a,4)}, {'v2' if a < 2 else 'v12'}, s[24:27], s{5+c} offen offset:{a*1024} {SC}")
                k.label(Ls)
            if sl == 1 and not last:
                Ls = k.newlabel("npf")
                e(f"s_cmp_ge_u32 s2, 136\ns_cbranch_scc1 {Ls}\ns_cmp_lg_u32 s42, 2\ns_cbranch_scc1 {Ls}")
                setflag(k, "s75", 10)
                k.label(Ls)
            if sl == 2 and GSW >= 0 and not last:
                Lt = k.newlabel("gsw")
                e(f"s_cmp_lg_u32 s42, {GSW}\ns_cbranch_scc1 {Lt}\ns_setprio {GP1}")
                k.label(Lt)
            e("s_waitcnt vmcnt(10) lgkmcnt(0)\ns_barrier")
            rd = reads(0, (sl+1) % 4, 0) if not (last and sl == 3) else [[]]*8
            mf = mfmas(1)
            if not last:
                iw = issueW(sl); ix = issueX(sl)
                sh = [rd[0:2] + iw[0], rd[2:4] + iw[1], rd[4:6] + iw[2], rd[6:8] + iw[3] + ix[0], ix[1], ix[2]]
                if sl == 3: sh[5] = sh[5] + ["s_add_u32 s42, s42, 1", "s_cmp_lt_u32 s42, 4"]
            else:
                ip = issueP(sl)
                sh = [rd[0:2] + ip[0], rd[2:4] + ip[1], rd[4:6] + ip[2], rd[6:8] + ip[3], ip[4], ip[5]]
            for i in range(6):
                e(mf[i]); emit(k, sh[i])
    k.label(L, 6)
    trip(False)
    e(f"s_cbranch_scc1 {L}")
    Lok = k.newlabel("pkok")
    e(f"s_setprio 2\nv_xor_b32 v20, {TAG}, v16")
    for r in (17, 18, 19): e(f"v_xor_b32 v{r}, {TAG}, v{r}\nv_or_b32 v20, v20, v{r}")
    e(f"v_cmp_ne_u32 vcc, 0, v20\ns_cmp_eq_u64 vcc, 0\ns_cbranch_scc1 {Lok}")
    spin(k, st_loads, [16, 17, 18, 19], 20)
    k.label(Lok)
    e(f"s_setprio {GP0}")
    trip(True)
    e("s_setprio 2")
    e("v_lshrrev_b32 v8, 5, v1")
    e(f"s_mul_i32 s14, s3, {SLOT}")
    srd_from(k, 20, PWS, WP_BYTES, WP_OFF)
    srd_from(k, 16, PX, NBYTES['x'])
    e(f"s_lshl_b32 s12, s10, 2\ns_add_u32 s12, s12, s3\ns_mul_i32 s12, s12, {34*2560}\ns_add_u32 s12, s12, {4*5120}")
    e(f"s_lshl_b32 s32, s7, 1\ns_add_u32 s32, s32, s39\ns_mul_i32 s32, s32, 272\ns_mul_i32 s43, s8, 6\ns_add_u32 s32, s32, s43\ns_add_u32 s32, s32, s40\ns_add_u32 s32, s32, 40\ns_lshl_b32 s32, s32, 10")
    e(f"s_add_u32 s34, s32, {136*1024}\ns_mov_b32 s33, {hex(f32bits(LOG2E*LOG2E))}")
    e("s_waitcnt lgkmcnt(0)")
    bstamp(k, "gu1")
    def issueW2(sl):
        L = [[f"s_add_u32 m0, s14, {sl*5120}", "s_add_u32 s33, s12, 4096"]]
        for i in range(4): L.append([f"buffer_load_dwordx4 v2, s[20:23], s12 offen offset:{i*1024} {SC} lds"])
        L[4].append("s_add_u32 m0, m0, 4096")
        L.append([f"buffer_load_dwordx4 v2, s[20:23], s33 offen {SC} lds", "s_add_u32 s12, s12, 5120"])
        return L
    T = 176
    if PKS: e("v_mov_b32 v184, s33\nv_mov_b32 v185, s33")
    for a in range(3):
        for b in range(2):
            g = ACC + 16*(2*a+b); u = g + 8
            for j in range(8): e(f"v_exp_f32 v{T+j}, -v{g+j}")
            if PKS:
                for j in range(0, 8, 2): e(f"v_pk_mul_f32 {vr(g+j,2)}, {vr(g+j,2)}, {vr(u+j,2)}")
                for j in range(0, 8, 2): e(f"v_pk_fma_f32 {vr(T+j,2)}, {vr(T+j,2)}, v[184:185], v[184:185]")
            else:
                for j in range(8): e(f"v_mul_f32 v{g+j}, v{g+j}, v{u+j}")
                for j in range(8): e(f"v_fma_f32 v{T+j}, v{T+j}, s33, s33")
            for j in range(8): e(f"v_rcp_f32 v{T+j}, v{T+j}")
            if PKS:
                for j in range(0, 8, 2): e(f"v_pk_mul_f32 {vr(g+j,2)}, {vr(g+j,2)}, {vr(T+j,2)}")
            else:
                for j in range(8): e(f"v_mul_f32 v{g+j}, v{g+j}, v{T+j}")
            for j in range(4): e(f"v_cvt_pk_bf16_f32 v{u+j}, v{g+2*j}, v{g+2*j+1}")
            e(f"buffer_store_dwordx4 {vr(u,4)}, v2, s[28:31], {'s34' if b else 's32'} offen offset:{a*1024} {SC}")
    wq_ = []
    assert not wq_
    e("v_add_u32 v10, s14, v2\nv_and_b32 v11, 15, v1\nv_lshlrev_b32 v11, 4, v11\nv_lshl_add_u32 v11, v8, 8, v11\nv_bfe_u32 v9, v1, 4, 1")
    e("v_lshl_add_u32 v7, v9, 30, v11\nv_lshl_add_u32 v11, v9, 18, v11\nv_add_u32 v11, s14, v11")
    e(f"s_lshl_b32 s35, s7, 4\ns_add_u32 s36, s35, s8\ns_lshl_b32 s36, s36, 7\ns_add_u32 s36, s36, {HF}")
    e(f"s_mul_i32 s24, s9, {272*1024}\ns_mul_i32 s32, s3, {24*1024}\ns_add_u32 s26, s24, s32\ns_add_u32 s26, s26, {40*1024}\ns_add_u32 s27, s26, {136*1024}")
    e("v_and_b32 v14, 3, v1\nv_lshlrev_b32 v14, 7, v14\nv_and_b32 v6, 1, v1\nv_lshlrev_b32 v6, 7, v6")
    if WF: e("v_bfe_u32 v5, v1, 1, 2\nv_lshl_add_u32 v6, v5, 2, v6")
    e(f"s_lshl_b32 s32, s3, 2\ns_add_u32 s32, s32, s35\ns_lshl_b32 s32, s32, 7\ns_add_u32 s32, s32, {HF}")
    e("s_lshr_b32 s40, s3, 1\ns_and_b32 s41, s3, 1")
    e("s_lshl_b32 s34, s9, 1\ns_add_u32 s34, s34, s40\ns_mul_i32 s34, s34, 40960\ns_mul_i32 s33, s10, 160\ns_add_u32 s43, s34, s33")
    e("v_and_b32 v5, 31, v1\nv_mul_u32_u24 v5, 1280, v5")
    e("s_lshl_b32 s34, s41, 6\nv_lshl_add_u32 v12, v8, 5, v5\nv_add_u32 v12, s34, v12")
    e("s_lshl_b32 s34, s41, 3\ns_add_u32 s34, s34, 128\nv_lshl_add_u32 v13, v8, 4, v5\nv_add_u32 v13, s34, v13")
    e("s_mul_i32 s34, s40, 10240\ns_lshl_b32 s33, s41, 12\ns_add_u32 s33, s33, s34\nv_add_u32 v15, s33, v2")
    e("s_lshl_b32 s33, s41, 10\ns_add_u32 s33, s33, s34\ns_add_u32 s33, s33, 8192\nv_add_u32 v3, s33, v2")
    e(f"s_lshl_b32 s25, s9, 3\ns_add_u32 s25, s25, s3\ns_lshl_b32 s25, s25, 7\ns_add_u32 s25, s25, {OF}\nv_mov_b32 v6, 0")
    e(f"s_mul_i32 s33, s3, {10*1024}\ns_add_u32 s24, s24, s33")
    e("s_waitcnt vmcnt(0)\ns_barrier")
    setflag(k, "s36", 16, "B")
    hl = [f"buffer_load_dword v16, v14, {FL}, s32 offen {SC}"]
    XS = 232; G4 = [20, 244]
    e(f"s_add_u32 s34, s12, {24*2560}\ns_add_u32 s35, s12, {25*2560}")
    srd_from(k, 36, POUT, NBYTES['out'])
    spin(k, hl, [16], 17)
    e(f"s_setprio {TP}")
    XR = 128; FA = [208, 220]
    def issueX2(rs):
        L = []
        for ks in range(2):
            for b in range(2):
                L.append([f"buffer_load_dwordx4 {vr(XR+16*rs+8*ks+4*b,4)}, v2, s[28:31], s{26+b} offen offset:{ks*1024} {SC}"])
        L[3] += ["s_add_u32 s26, s26, 2048", "s_add_u32 s27, s27, 2048"]
        return L
    for g in range(4): emit(k, issueX2(g))
    def reads2(fs, sl, ks):
        return [f"ds_read_b128 {vr(FA[fs]+4*a,4)}, {'v10' if a < 2 else 'v11'} offset:{sl*5120 + ks*2560 + a*1024}" for a in range(3)]
    def mfmas2(fs, rs, ks, c0=False):
        return [f"{MF} {vr(ACC+16*(3*b+a),16)}, {vr(FA[fs]+4*a,4)}, {vr(XR+16*rs+8*ks+4*b,4)}, {'0' if c0 else vr(ACC+16*(3*b+a),16)}" for a in range(3) for b in range(2)]
    e(f"s_mov_b32 s42, 0\ns_setprio {DP}")
    emit(k, reads2(0, 0, 0))
    e("s_waitcnt vmcnt(14) lgkmcnt(0)")
    bstamp(k, "dn0")
    L = k.newlabel("dn"); Lm = k.newlabel("dnm")
    rd = reads2(1, 0, 1); mf = mfmas2(0, 0, 0, True)
    for i in range(6):
        e(mf[i]); emit(k, rd[i:i+1])
    e("s_waitcnt vmcnt(0)")
    for ks in range(2):
        for a in range(3):
            e(f"buffer_load_dwordx4 {vr(G4[ks]+4*a,4)}, {'v2' if a < 2 else 'v7'}, s[20:23], s{34+ks} offen offset:{a*1024} {SC}")
    e(f"buffer_load_dwordx4 {vr(XS,4)}, v12, s[16:19], s43 offen")
    e(f"buffer_load_dwordx4 {vr(XS+4,4)}, v12, s[16:19], s43 offen offset:16")
    e(f"buffer_load_dwordx2 {vr(XS+8,2)}, v13, s[16:19], s43 offen")
    e(f"s_branch {Lm}")
    k.label(L, 6)
    for sl in range(4):
        e("s_waitcnt lgkmcnt(0)")
        rd = reads2(1, sl, 1); mf = mfmas2(0, sl, 0)
        sh = [rd[0:1], rd[1:2], rd[2:3], [], [], []]
        if sl == 0: sh[3] = ["s_cmp_eq_u32 s42, 2", f"s_cselect_b32 s26, {HUGE}, s26", f"s_cselect_b32 s27, {HUGE}, s27"]
        for i in range(6):
            e(mf[i]); emit(k, sh[i])
        if sl == 0: k.label(Lm)
        e("s_waitcnt vmcnt(18) lgkmcnt(0)")
        rd = reads2(0, (sl+1) % 4, 0); mf = mfmas2(1, sl, 1)
        iw = issueW2(sl); ix = issueX2(sl)
        sh = [rd[0:1] + iw[0], rd[1:2] + iw[1], rd[2:3] + iw[2], iw[3] + iw[4], iw[5], ix[0] + ix[1] + ix[2] + ix[3]]
        if sl == 3: sh[5] = sh[5] + ["s_add_u32 s42, s42, 1", "s_cmp_lt_u32 s42, 3"]
        for i in range(6):
            e(mf[i]); emit(k, sh[i])
    e(f"s_cbranch_scc1 {L}")
    e("s_setprio 2")
    emit(k, reads2(1, 0, 1))
    bstamp(k, "dn1")
    def oload(b, t):
        return [f"s_add_u32 s26, s24, {b*136*1024 + t*1024}", f"buffer_load_dwordx4 {vr(XR+40*b+4*t,4)}, v2, s[28:31], s26 offen {SC}"]
    f2 = [f"buffer_load_dword v18, v6, {FL}, s25 offen offset:512 {SC}"]
    if ONLY != "B": spin(k, [f"buffer_load_dword v16, v6, {FL}, s25 offen {SC}"] + f2, [16], 17)
    else: e(f"s_waitcnt vmcnt(0)\nv_mov_b32 v18, {TAG}")
    for t in range(5):
        for b in range(2): emit(k, oload(b, t))
    seq = [(t, (0, 1)) for t in range(5)] + [(t, (0,)) for t in range(5, 10)] + [(t, (1,)) for t in range(5, 10)]
    lsteps = [t for t, _ in seq if t < 8]
    wr = [f"ds_write_b128 v10, {vr(ACC+4*q,4)} offset:{q*1024}" for q in range(10)]
    def late_loads():
        for b in range(2):
            for t2 in range(5, 10): emit(k, oload(b, t2))
    def steps(us, lds, n, younger):
        for u in us:
            t, bs = seq[u]
            vm = (8 - 2*u + younger) if u < 5 else (14 - u)
            if t < 8:
                last = max([i for i, x in enumerate(lds) if x == f"n{n}"], default=-1)
                lds = lds[last+1:]
                e(f"s_waitcnt vmcnt({vm}) lgkmcnt({min(15, len(lds))})")
                F = FA[n & 1]
            else:
                e(f"s_waitcnt vmcnt({vm})")
                F = G4[t-8]
            for a in range(3):
                for b in bs:
                    e(f"{MF} {vr(ACC+16*(3*b+a),16)}, {vr(F+4*a,4)}, {vr(XR+40*b+4*t,4)}, {vr(ACC+16*(3*b+a),16)}")
                    if u >= 11 and wr:
                        e(wr.pop(0)); lds.append("w")
            if t < 8:
                if n + 2 < len(lsteps):
                    t2 = lsteps[n+2]
                    emit(k, reads2(n & 1, t2 >> 1, t2 & 1)); lds += [f"n{n+2}"]*3
                n += 1
        return lds, n
    Lb, Lj = k.newlabel("both"), k.newlabel("join")
    e(f"v_cmp_ne_u32 vcc, {TAG}, v18\ns_cmp_eq_u64 vcc, 0\ns_cbranch_scc1 {Lb}")
    emit(k, f2)
    steps(range(5), ["n0"]*3 + ["n1"]*3, 0, 1)
    spin(k, f2, [18], 17, pre_issued=True)
    late_loads()
    e(f"s_branch {Lj}")
    k.label(Lb)
    late_loads()
    lds, n = steps(range(5), ["n0"]*3 + ["n1"]*3, 0, 10)
    k.label(Lj)
    bstamp(k, "of")
    steps(range(5, 15), lds, n, 0)
    assert not wr
    bstamp(k, "mm")
    for q in range(10):
        e(f"ds_write_b128 v10, {vr(ACC+48+4*q,4)} offset:{(10+q)*1024}")
    e("s_waitcnt lgkmcnt(0)\ns_barrier")
    R = 128
    for w in range(4):
        for q in range(4):
            e(f"ds_read_b128 {vr(R+20*w+4*q,4)}, v15 offset:{w*SLOT + q*1024}")
        e(f"ds_read_b128 {vr(R+20*w+16,4)}, v3 offset:{w*SLOT}")
    for j in range(10):
        e(f"v_lshlrev_b32 v{ACC+2*j}, 16, v{XS+j}\nv_and_b32 v{ACC+2*j+1}, 0xffff0000, v{XS+j}")
    for w in range(4):
        e(f"s_waitcnt lgkmcnt({15-5*w})")
        for j in range(0, 20, 2):
            e(f"v_pk_add_f32 {vr(ACC+j,2)}, {vr(ACC+j,2)}, {vr(R+20*w+j,2)}")
    for j in range(10):
        e(f"v_cvt_pk_bf16_f32 v{XS+j}, v{ACC+2*j}, v{ACC+2*j+1}")
    bstamp(k, "rd")
    e(f"buffer_store_dwordx4 {vr(XS,4)}, v12, s[36:39], s43 offen")
    e(f"buffer_store_dwordx4 {vr(XS+4,4)}, v12, s[36:39], s43 offen offset:16")
    e(f"buffer_store_dwordx2 {vr(XS+8,2)}, v13, s[36:39], s43 offen")
    stamp_dump(k, 0, 9, "s2", PWS)
    e("s_endpgm")

def w160_voffs(k, dst, t):
    e = k.e
    for i in range(5):
        e(f"v_add_u32 v{t}, {64*i}, v1\nv_mul_u32_u24 v{t+1}, 6554, v{t}\nv_lshrrev_b32 v{t+1}, 16, v{t+1}")
        e(f"v_mul_u32_u24 v{t+2}, 10, v{t+1}\nv_sub_u32 v{t+2}, v{t}, v{t+2}")
        e(f"v_and_b32 v{t}, 24, v{t+1}\nv_bfe_u32 v{t+3}, v{t+1}, 1, 2\nv_add_u32 v{t}, v{t}, v{t+3}\nv_and_b32 v{t+3}, 1, v{t+1}\nv_lshl_add_u32 v{t}, v{t+3}, 2, v{t}")
        e(f"v_mul_u32_u24 v{t}, 1280, v{t}\nv_lshl_add_u32 v{dst+i}, v{t+2}, 4, v{t}")

def roleA(k):
    e = k.e
    KVSLOT = 24576; KV0 = 8192
    QS = 20480; QX = 10240
    S0, S1 = 32, 48; SA = 64
    Q = [16, 24]; O = [144, 160]; P = [96, 104]; KVB = [112, 128]; KT = 176
    KL = lambda s: KVB[s]; KH = lambda s: KVB[s]+4; V0 = lambda s: KVB[s]+8; V1 = lambda s: KVB[s]+12
    AKL, AKH, AV, BKH, BV = 8, 9, 10, 11, 12
    WV = 16; XV = 21; RB = 24; ONES = 28
    FRG = 80
    AO2 = 241; RB2 = 224
    stamp(k, 0)
    e("s_bfe_u32 s8, s2, 0x20001\ns_lshl_b32 s8, s8, 3\ns_lshr_b32 s9, s2, 5\ns_add_u32 s8, s8, s9")
    e("s_and_b32 s9, s2, 1\ns_lshl_b32 s9, s9, 2\ns_bfe_u32 s32, s2, 0x20003\ns_add_u32 s9, s9, s32")
    e("s_add_u32 s11, s8, s9\ns_mul_i32 s11, s11, 3\ns_mul_i32 s32, s11, 205\ns_lshr_b32 s32, s32, 11\ns_mul_i32 s32, s32, 10\ns_sub_u32 s11, s11, s32")
    x_voffs(k, XV, 3)
    w160_voffs(k, WV, 3)
    Lw = k.newlabel("wrole")
    e(f"s_mul_i32 s12, s3, 40960\ns_mul_i32 s32, s9, 160\ns_add_u32 s12, s12, s32\ns_mov_b32 s13, {64*1280}")
    e("s_waitcnt lgkmcnt(0)")
    srd_from(k, 20, PWQ, NBYTES['wq'])
    e(f"s_mov_b64 s[18:19], -1\ns_cmp_lt_u32 s3, 2\ns_cbranch_scc1 {Lw}\ns_mov_b64 s[18:19], 1")
    for i in range(4): e(f"v_add_u32 v{WV+i}, {10240*i}, v{XV+(i&1)}")
    e(f"v_mov_b32 v{WV+4}, {HUGE}")
    e("s_lshl_b32 s33, s8, 1\ns_add_u32 s33, s33, s3\ns_sub_u32 s33, s33, 2\ns_mul_i32 s12, s33, 40960\ns_mov_b32 s13, 128")
    srd_from(k, 20, PX, NBYTES['x'])
    k.label(Lw)
    e("s_mul_i32 s34, s11, s13\ns_add_u32 s34, s34, s12\ns_mul_i32 s35, s13, 10\ns_add_u32 s35, s35, s12\ns_mul_i32 s14, s3, 5120")
    def st_issue(slot):
        L = [[f"s_add_u32 m0, s14, {slot*QS}"]]
        for i in range(5):
            g = [f"buffer_load_dwordx4 v{WV+i}, s[20:23], s34 offen lds"]
            if i < 4: g += ["s_add_u32 m0, m0, 1024"]
            else: g = ["s_mov_b64 exec, s[18:19]"] + g + ["s_mov_b64 exec, -1", "s_add_u32 s34, s34, s13", "s_cmp_eq_u32 s34, s35", "s_cselect_b32 s34, s12, s34"]
            L.append(g)
        return L
    tag_setup(k)
    srd_from(k, 24, PWS, KV_BYTES, KV_OFF)
    srd_from(k, 28, PWS, AF_BYTES, AF_OFF)
    e("v_lshrrev_b32 v6, 5, v1")
    e("v_bfe_u32 v7, v1, 2, 2\nv_lshl_add_u32 v7, v6, 2, v7\nv_mul_u32_u24 v4, 320, v7")
    e("v_and_b32 v7, 1, v1\nv_lshlrev_b32 v7, 4, v7")
    e("v_bfe_u32 v8, v1, 1, 1\nv_lshl_add_u32 v7, v8, 3, v7")
    e("v_and_b32 v8, 16, v1\nv_cmp_ne_u32 vcc, 0, v8\nv_mov_b32 v8, 32\nv_cndmask_b32 v7, v7, v8, vcc")
    e("v_add_u32 v4, v4, v7\ns_mul_i32 s32, s3, 40\nv_add_u32 v4, s32, v4")
    e("v_and_b32 v8, 19, v1\nv_cmp_lt_u32 vcc, 16, v8\nv_mov_b32 v8, 0x40000\nv_cndmask_b32 v4, v4, v8, vcc")
    e("v_add_u32 v5, 40960, v4")
    x_raddr(k, RB, 7, str(QX))
    for j in range(4): e(f"v_mov_b32 v{ONES+j}, 0x3f803f80")
    e(f"v_and_b32 v7, 31, v1\nv_lshlrev_b32 v{BKH}, 3, v7\nv_add_u32 v{BKH}, 1024, v{BKH}\nv_lshl_add_u32 v{BKH}, v6, 18, v{BKH}")
    e("v_and_b32 v13, 19, v7\nv_bfe_u32 v14, v7, 2, 1\nv_lshl_add_u32 v13, v14, 3, v13\nv_bfe_u32 v14, v7, 3, 1\nv_lshl_add_u32 v13, v14, 2, v13")
    e(f"v_mul_u32_u24 v{BV}, 24, v6\nv_add_u32 v{BV}, v{BV}, v13")
    e("v_cmp_le_u32 vcc, 28, v7\nv_cndmask_b32 v13, 0, 1, vcc\nv_xor_b32 v13, v13, v6\nv_mul_u32_u24 v13, 24, v13\nv_add_u32 v13, 20, v13")
    e("v_and_b32 v15, 27, v7\nv_cmp_ne_u32 vcc, 24, v15\nv_mov_b32 v15, 0x4000\nv_cndmask_b32 v13, v13, v15, vcc")
    e(f"v_cmp_le_u32 vcc, 20, v7\nv_cndmask_b32 v{BV}, v{BV}, v13, vcc")
    e(f"v_lshlrev_b32 v{BV}, 4, v{BV}\nv_add_u32 v{BV}, 1536, v{BV}")
    c0 = KV0 + 2*KVSLOT
    e(f"v_add_u32 v{AKL}, {c0}, v2\nv_add_u32 v{AKH}, {c0}, v{BKH}\nv_add_u32 v{AV}, {c0}, v{BV}")
    e(f"s_lshr_b32 s32, s3, 1\ns_lshl_b32 s32, s32, 9\ns_and_b32 s33, s3, 1\ns_lshl_b32 s33, s33, 3\ns_add_u32 s32, s32, s33")
    e(f"v_lshl_add_u32 v{AO2}, v7, 4, s32\nv_lshl_add_u32 v{AO2}, v6, 30, v{AO2}")
    e(f"v_lshlrev_b32 v13, {KVS}, v1\nv_lshlrev_b32 v14, 3, v7")
    e(f"s_lshl_b32 s39, s8, 9\ns_add_u32 s39, s39, {STAT}\ns_lshl_b32 s38, s3, {KVS+6}\ns_add_u32 s38, s38, {KVF}\ns_mul_i32 s36, s3, 6144")
    for t in range(4): e(f"v_mov_b32 v{KT+8*t+6}, 0\nv_mov_b32 v{KT+8*t+7}, 0")
    for j in range(4): e(f"v_add_u32 v{RB2+j}, 40960, v{RB+j}")
    if ADLY == 2: tag_finish(k)
    for sl in range(2): emit(k, st_issue(sl))
    if ADLY != 2: tag_finish(k)
    stamp(k, 1)
    def kv_issue(chunk_soff, slot_base):
        L = []
        for half in range(2):
            L.append([f"s_add_u32 m0, s36, {slot_base + half*3072}", f"s_add_u32 s32, s36, {chunk_soff + half*3072}"])
            for j in range(3):
                L.append([f"buffer_load_dwordx4 v2, s[24:27], s32 offen offset:{j*1024} {SC} lds"])
        return L
    PL = 232
    kv_poll = [f"buffer_load_dword v{PL}, v13, {FL}, s38 offen {SC}"]
    pl_loads = [f"buffer_load_dwordx2 {vr(PL+2,2)}, v14, {FL}, s39 offen {SC}", f"buffer_load_dwordx2 {vr(PL+4,2)}, v14, {FL}, s39 offen offset:256 {SC}"]
    inits = []
    for j in range(8): inits += [(P[1]+j, "0"), (V0(1)+j, "0")]
    for s_ in range(2): inits += [(KH(s_)+2, "0x3f80"), (KH(s_)+3, "0")]
    for j in range(32): inits += [(O[0]+j, "0")]
    inits.sort()
    def hreads(h):
        sl = h % 4; F = FRG + 48*(h & 1); L = []
        so = (sl & 1) * QS; ta = "v5" if sl >= 2 else "v4"; rb = RB2 if sl >= 2 else RB
        for ks in range(4):
            for u in range(2): L.append(f"ds_read_b64_tr_b16 {vr(F+12*ks+2*u,2)}, {ta} offset:{so + ks*2560 + u*160}")
            for b in range(2): L.append(f"ds_read_b128 {vr(F+12*ks+4+4*b,4)}, v{rb+ks} offset:{so + b*5120}")
        return L
    e("s_waitcnt vmcnt(5)\ns_barrier")
    stamp(k, 2)
    emit(k, hreads(0))
    emit(k, st_issue(2))
    kt_loads = [["s_mov_b32 s33, 6144"]]
    for t in range(4):
        so, off = ("0", t*3072) if t < 2 else ("s33", (t-2)*3072)
        kt_loads.append([f"buffer_load_dwordx4 {vr(KT+8*t,4)}, v2, s[24:27], {so} offen offset:{off} {SC}",
                         f"buffer_load_dwordx2 {vr(KT+8*t+4,2)}, v{BKH}, s[24:27], {so} offen offset:{off} {SC}"])
    for h in range(10):
        F = FRG + 48*(h & 1)
        if h < PH:
            n = {0: 5, 7: 5, 8: 0}.get(h, 10) + (3 if h == PH - 1 else 0)
            e(f"s_waitcnt vmcnt({n}) lgkmcnt(0)")
        else:
            if h == PH: spin(k, pl_loads + kv_poll, [PL, PL+3, PL+5], 15, pre_issued=True, slp=KSL)
            e("s_waitcnt lgkmcnt(0)")
        if h < 9: e("s_barrier")
        if h == QH:
            e(f"s_lshl_b32 s32, s2, 7\ns_add_u32 s32, s32, {QF}")
            setflag(k, "s32", 242)
        rd = hreads(h+1) if h < 9 else []
        dm = st_issue(h % 4) if h < 6 else []
        if h == 0: dm = st_issue(3) + dm
        if h == PH - 2: dm = dm + [pl_loads + kv_poll]
        if h == PH: dm = kv_issue(0, KV0 + 2*KVSLOT)
        i = 0
        for ks in range(4):
            first = (h == 0 and ks == 0)
            for acc, bop in ((S0, F+12*ks+4), (S1, F+12*ks+8), (SA, ONES)):
                e(f"{MF} {vr(acc,16)}, {vr(F+12*ks,4)}, {vr(bop,4)}, {'0' if first else vr(acc,16)}")
                emit(k, rd[:2]); rd = rd[2:]
                if dm and (i >= 3 or h in (0, PH, 9)): emit(k, dm.pop(0))
                if h == 9:
                    m = 0
                    while inits and m < 3 and inits[0][0] < F + 12*ks:
                        r, v = inits.pop(0); e(f"v_mov_b32 v{r}, {v}"); m += 1
                i += 1
        emit(k, dm)
    stamp(k, 3)
    for r, v in inits: e(f"v_mov_b32 v{r}, {v}")
    for b in range(2):
        st = PL + 2 + 2*b
        e(f"v_lshlrev_b32 v{238+b}, 16, v{st}\nv_xor_b32 v{238+b}, 0x80000000, v{238+b}\nv_and_b32 v{st}, 0xffff0000, v{st}")
        e(f"v_rcp_f32 v{st}, v{st}\nv_mul_f32 v{st}, {hex(f32bits(QSCALE))}, v{st}")
    def qepi(b):
        L = []; a = S0 + 16*b
        for j in range(12): L.append(f"v_fmac_f32 v{a+j}, v{238+b}, v{SA+j}")
        for j in range(12): L.append(f"v_mul_f32 v{a+j}, v{PL+2+2*b}, v{a+j}")
        for j in range(6): L.append(f"v_cvt_pk_bf16_f32 v{Q[b]+j}, v{a+2*j}, v{a+2*j+1}")
        L += [f"v_mov_b32 v{Q[b]+6}, 0", f"v_mov_b32 v{Q[b]+7}, 0"]
        return L
    MX = [3, 5]
    sxr = lambda b, t: [[80, 208, 32, 64], [48, 80, 208, 64]][b][t]
    def mx(b, t):
        S = sxr(b, t)
        L = [f"v_max3_f32 v{MX[b]}, v{S}, v{S+1}, v{S+2}", f"v_max_f32 v{MX[b]}, v{MX[b]}, v{S+3}"] if t == 0 else []
        for j in range(4 if t == 0 else 0, 16, 2): L.append(f"v_max3_f32 v{MX[b]}, v{MX[b]}, v{S+j}, v{S+j+1}")
        return L
    def qk(b, t):
        S = sxr(b, t)
        return [f"{MF} {vr(S,16)}, {vr(KT+8*t,4)}, {vr(Q[b],4)}, 0", f"{MF} {vr(S,16)}, {vr(KT+8*t+4,4)}, {vr(Q[b]+4,4)}, {vr(S,16)}"]
    def fin(b, offs):
        L = [f"v_mov_b32 v15, v{MX[b]}", f"v_permlane32_swap_b32 v{MX[b]}, v15", f"v_max_f32 v{MX[b]}, v{MX[b]}, v15"]
        if offs: L.append(f"v_add_f32 v{MX[b]}, {hex(f32bits(offs))}, v{MX[b]}")
        L += [f"v_cvt_pk_bf16_f32 v{MX[b]}, -v{MX[b]}, 0", "v_cmp_ne_u32 vcc, 0, v6", f"v_cndmask_b32 v{Q[b]+6}, v{MX[b]}, 0, vcc"]
        return L
    def weave(mfs, vals, per, ex=None):
        for m in mfs:
            e(m)
            if ex: emit(k, ex.pop(0))
            for _ in range(per):
                if vals: e(vals.pop(0))
        for v in vals: e(v)
    e(f"s_mov_b32 s40, 0\ns_mov_b32 s41, {KV0}\ns_add_u32 s35, s36, {KV0}\ns_add_u32 s42, s35, {KVSLOT}\ns_add_u32 s43, s36, {2*KVSLOT}\ns_add_u32 s39, s35, {3*KVSLOT}")
    e("s_and_b32 s32, s9, 3\ns_mul_i32 s32, s32, 10\ns_mul_i32 s33, s8, 272\ns_add_u32 s32, s32, s33\ns_lshr_b32 s33, s9, 2\ns_mul_i32 s33, s33, 5\ns_add_u32 s32, s32, s33")
    e("s_add_u32 s16, s32, 4\ns_lshl_b32 s16, s16, 10\ns_add_u32 s12, s32, s3\ns_lshl_b32 s12, s12, 10")
    e(f"s_add_u32 s13, s12, {136*1024}\ns_add_u32 s17, s16, {136*1024}")
    e(f"s_lshl_b32 s14, s8, 3\ns_add_u32 s14, s14, s9\ns_lshl_b32 s14, s14, 7\ns_add_u32 s14, s14, {OF}")
    e("s_waitcnt vmcnt(0)\ns_barrier")
    for t in range(4):
        e(f"ds_read_b128 {vr(KT+8*t,4)}, v{AKL} offset:{t*3072}\nds_read_b64 {vr(KT+8*t+4,2)}, v{AKH} offset:{t*3072}")
    for s in range(2):
        e(f"ds_read_b128 {vr(KL(s),4)}, v{AKL} offset:{s*3072}\nds_read_b64 {vr(KH(s),2)}, v{AKH} offset:{s*3072}")
    e(f"ds_read_b128 {vr(V0(0),4)}, v{AV}\nds_read_b128 {vr(V1(0),4)}, v{AV} offset:768")
    emit(k, qepi(0))
    stamp(k, 4)
    stamp(k, 5)
    e("s_waitcnt lgkmcnt(6)")
    kv1 = kv_issue(KVSLOT, KV0)
    weave(qk(0, 0) + qk(0, 1) + qk(0, 2), qepi(1), 6, kv1)
    weave(qk(0, 3) + qk(1, 0), mx(0, 0) + mx(0, 1), 4, kv1)
    weave(qk(1, 1) + qk(1, 2), mx(0, 2) + mx(0, 3) + fin(0, OFFS), 6)
    e("s_waitcnt lgkmcnt(0)")
    weave(qk(1, 3) + [f"{MF} {vr(S0,16)}, {vr(KL(0),4)}, {vr(Q[0],4)}, 0", f"{MF} {vr(S0,16)}, {vr(KH(0),4)}, {vr(Q[0]+4,4)}, {vr(S0,16)}"],
          mx(1, 0) + [f"v_mov_b32 v{S1+12+j}, 0" for j in range(4)] + mx(1, 1) + mx(1, 2) + mx(1, 3) + fin(1, OFFS), 6)
    dma = lambda so, off: f"buffer_load_dwordx4 v2, s[24:27], {so} offen offset:{off} {SC} lds" if not NOKV else "s_nop 0"
    extra = {(1, 0): ["s_mov_b32 m0, s42"], (1, 1): ["s_add_u32 s38, s43, 4096"], (1, 3): ["s_waitcnt vmcnt(0)", "s_barrier"] if NOKV < 2 else [],
             (2, 3): [dma("s43", 0), dma("s43", 1024)], (3, 3): [dma("s43", 2048), dma("s43", 3072)],
             (4, 0): ["s_add_u32 m0, s42, 4096"], (4, 3): [dma("s38", 0), dma("s38", 1024)],
             (5, 0): [f"s_add_u32 s43, s43, {KVSLOT}"], (5, 1): ["s_add_u32 s40, s40, 1"], (5, 2): [f"s_add_u32 s37, s42, {KVSLOT}"],
             (6, 0): ["s_cmp_eq_u32 s37, s39"], (6, 1): ["s_cselect_b32 s37, s35, s37"],
             (7, 0): ["s_sub_u32 s41, s42, s36"], (7, 1): ["s_mov_b32 s42, s37"],
             (7, 2): ["s_cmp_lt_u32 s40, 8"]}
    e("s_setprio 1")
    stamp(k, 6)
    stamp(k, 7)
    Lloop = k.newlabel("att")
    k.label(Lloop, 6)
    def cv(S, Pb, g):
        return [f"v_cvt_pk_bf16_f32 v{Pb+2*g}, v{S+4*g}, v{S+4*g+1}", f"v_cvt_pk_bf16_f32 v{Pb+2*g+1}, v{S+4*g+2}, v{S+4*g+3}"]
    for jj in range(8):
        for blk in range(2):
            Sc, Sn = (S0, S1) if blk == 0 else (S1, S0)
            valu = []
            for g in range(4):
                for j in range(4): valu.append(f"v_exp_f32{E64} v{Sc+4*g+j}, v{Sc+4*g+j}")
                valu += cv(Sn, P[1-blk], 3) if g == 0 else cv(Sc, P[blk], g-1)
            ks = (jj + blk) & 1; vs = (jj - 1 + blk) & 1; nb = 1 - blk
            ko = ((jj + 2) % 8) * 3072; vo = ((jj + 1) % 8) * 3072
            mf = [[f"{MF} {vr(O[nb],16)}, {vr(V0(vs),4)}, {vr(P[nb],4)}, {vr(O[nb],16)}"],
                  [f"{MF} {vr(Sn,16)}, {vr(KL(ks),4)}, {vr(Q[nb],4)}, 0"],
                  [f"{MF} {vr(Sn,16)}, {vr(KH(ks),4)}, {vr(Q[nb]+4,4)}, {vr(Sn,16)}"],
                  [f"{MF} {vr(O[nb],16)}, {vr(V1(vs),4)}, {vr(P[nb]+4,4)}, {vr(O[nb],16)}"]]
            if blk == 0:
                mf[2].append("s_waitcnt lgkmcnt(0)")
                mf[3].append(f"ds_read_b128 {vr(KL(ks),4)}, v{AKL} offset:{ko}")
                mf[3].append(f"ds_read_b64 {vr(KH(ks),2)}, v{AKH} offset:{ko}")
            else:
                mf[3].append(f"ds_read_b128 {vr(V0(1-vs),4)}, v{AV} offset:{vo}")
                mf[3].append(f"ds_read_b128 {vr(V1(1-vs),4)}, v{AV} offset:{vo+768}")
                if jj == 5: valu.append(f"v_add_u32 v{AKL}, s41, v2"); valu.append(f"v_add_u32 v{AKH}, s41, v{BKH}")
                if jj == 6: valu.append(f"v_add_u32 v{AV}, s41, v{BV}")
                for m in range(4): mf[m] += extra.get((jj, m), [])
            for i, v in enumerate(valu):
                for m in range(4):
                    if PATTERN[m] == i: emit(k, mf[m])
                e(v)
    e(f"s_cbranch_scc1 {Lloop}")
    emit(k, cv(S1, P[1], 3))
    e(f"{MF} {vr(O[1],16)}, {vr(V0(1),4)}, {vr(P[1],4)}, {vr(O[1],16)}")
    e(f"{MF} {vr(O[1],16)}, {vr(V1(1),4)}, {vr(P[1]+4,4)}, {vr(O[1],16)}")
    stamp(k, 8)
    e("s_mov_b32 s40, 0\ns_setprio 3")
    Lout = k.newlabel("out"); Lslow = k.newlabel("slow"); Lpub = k.newlabel("pub")
    k.label(Lout)
    PK = 224; A0 = 208
    for b in range(2):
        e(f"v_rcp_f32 v{A0+b}, v{O[b]+12}")
        e(f"v_mul_f32 v{A0+b}, {hex(f32bits(1/LOG2E))}, v{A0+b}")
        for j in range(12): e(f"v_mul_f32 v{O[b]+j}, v{O[b]+j}, v{A0+b}")
        for j in range(6): e(f"v_cvt_pk_bf16_f32 v{PK+8*b+j}, v{O[b]+2*j}, v{O[b]+2*j+1}")
        e(f"buffer_store_dwordx4 {vr(PK+8*b,4)}, v2, s[28:31], s{12+b} offen {SC}")
        e(f"buffer_store_dwordx2 {vr(PK+8*b+4,2)}, v{AO2}, s[28:31], s{16+b} offen {SC}")
    e(f"v_mul_f32 v{A0+2}, 0, v{O[0]+12}\nv_mul_f32 v{A0+3}, 0, v{O[1]+12}")
    for j in range(12):
        for b in range(2): e(f"v_fma_f32 v{A0+2+b}, v{O[b]+j}, 0, v{A0+2+b}")
    e(f"v_cmp_u_f32 vcc, v{A0+2}, v{A0+3}")
    e(f"s_cmp_lg_u32 s40, 0\ns_cbranch_scc1 {Lpub}")
    e(f"s_cmp_lg_u64 vcc, 0\ns_cbranch_scc1 {Lslow}")
    k.label(Lpub)
    if WF:
        e(f"v_mov_b32 v16, {TAG}\ns_lshl_b32 s32, s3, 2\nv_mov_b32 v17, s32\ns_mov_b64 exec, 1\ns_waitcnt vmcnt(0)")
        e(f"buffer_store_dword v16, v17, {FL}, s14 offen {SC}\ns_mov_b64 exec, -1")
    else:
        e("s_waitcnt vmcnt(0)\ns_barrier")
        setflag(k, "s14", 16, "A")
    Lx = k.newlabel("axit")
    e(f"s_or_b32 s32, s2, s3\ns_cmp_lg_u32 s32, 0\ns_cbranch_scc1 {Lx}")
    e(f"v_lshlrev_b32 v13, 7, v1")
    ld = []
    for i in range(8): ld += [f"s_mov_b32 s38, {HF + 8192*i}", f"buffer_load_dword v{16+i}, v13, {FL}, s38 offen {SC}"]
    if not ONLY: spin(k, ld, list(range(16, 24)), 24)
    setflag(k, "0", 16)
    if LEAK:
        for i in range(8):
            e(f"s_mov_b32 s75, {HF + 8192*i}\nbuffer_load_dwordx2 {vr(32+2*i,2)}, v13, {FL}, s75 offen offset:8 {SC}")
        e("s_waitcnt vmcnt(0)")
        for i in range(16): e(f"v_subrev_u32 v{32+i}, s86, v{32+i}")
        for i in range(1, 8): e(f"v_min_i32 v32, v32, v{32+2*i}\nv_max_i32 v33, v33, v{33+2*i}")
        e("s_mov_b32 s40, 0x7fffffff\ns_mov_b32 s41, 0x80000000")
        for l in range(64):
            e(f"v_readlane_b32 s42, v32, {l}\nv_readlane_b32 s43, v33, {l}\ns_min_i32 s40, s40, s42\ns_max_i32 s41, s41, s43")
        e("s_sub_u32 s41, s41, s40\ns_mul_i32 s41, s41, 4\ns_add_u32 s41, s41, 10000\ns_add_u32 s40, s40, s86")
        Ls = k.newlabel("spin"); k.label(Ls)
        e("s_memrealtime s[42:43]\ns_waitcnt lgkmcnt(0)\ns_sub_u32 s42, s42, s40")
        e(f"s_cmp_lt_u32 s42, s41\ns_cbranch_scc1 {Ls}")
    k.label(Lx)
    stamp_dump(k, 1, 9, "s2", PWS)
    e("s_endpgm")
    k.label(Lslow)
    e("s_waitcnt vmcnt(0) lgkmcnt(0)")
    e(f"s_mov_b32 s40, 1\ns_mov_b32 s41, 0\nv_mov_b32 v{Q[0]+6}, 0\nv_mov_b32 v{Q[1]+6}, 0")
    e(f"v_mov_b32 v{MX[0]}, 0xff800000\nv_mov_b32 v{MX[1]}, 0xff800000")
    def kload():
        e(f"buffer_load_dwordx4 {vr(KL(0),4)}, v2, s[24:27], s41 offen {SC}")
        e(f"buffer_load_dwordx2 {vr(KH(0),2)}, v{BKH}, s[24:27], s41 offen {SC}")
    def qk2():
        for b in range(2):
            S = S0 + 16*b
            e(f"{MF} {vr(S,16)}, {vr(KL(0),4)}, {vr(Q[b],4)}, 0\n{MF} {vr(S,16)}, {vr(KH(0),4)}, {vr(Q[b]+4,4)}, {vr(S,16)}")
    L1 = k.newlabel("sl1"); k.label(L1)
    kload(); e("s_waitcnt vmcnt(0)"); qk2()
    for b in range(2):
        for j in range(0, 16, 2): e(f"v_max3_f32 v{MX[b]}, v{MX[b]}, v{S0+16*b+j}, v{S0+16*b+j+1}")
    e(f"s_add_u32 s41, s41, 3072\ns_cmp_lt_u32 s41, {KV_BYTES}\ns_cbranch_scc1 {L1}")
    for b in range(2): emit(k, fin(b, 0))
    for j in range(32): e(f"v_mov_b32 v{O[0]+j}, 0")
    e("s_mov_b32 s41, 0")
    L2 = k.newlabel("sl2"); k.label(L2)
    kload()
    e(f"buffer_load_dwordx4 {vr(V0(0),4)}, v{BV}, s[24:27], s41 offen {SC}")
    e(f"buffer_load_dwordx4 {vr(V1(0),4)}, v{BV}, s[24:27], s41 offen offset:768 {SC}")
    e("s_waitcnt vmcnt(0)"); qk2()
    for b in range(2):
        S = S0 + 16*b
        for j in range(16): e(f"v_exp_f32 v{S+j}, v{S+j}")
        for g in range(4): emit(k, cv(S, P[b], g))
        e(f"{MF} {vr(O[b],16)}, {vr(V0(0),4)}, {vr(P[b],4)}, {vr(O[b],16)}")
        e(f"{MF} {vr(O[b],16)}, {vr(V1(0),4)}, {vr(P[b]+4,4)}, {vr(O[b],16)}")
    e(f"s_add_u32 s41, s41, 3072\ns_cmp_lt_u32 s41, {KV_BYTES}\ns_cbranch_scc1 {L2}")
    e("s_nop 12")
    e(f"s_branch {Lout}")

def gen_mega(name="parallel_sum__grouped_kv_mqa__swiglu_ffn__prompt_kernel"):
    k = Kernel(name); e = k.e
    LA = k.newlabel("roleA"); LB = k.newlabel("roleB")
    e("s_load_dwordx16 s[48:63], s[0:1], 0\ns_load_dwordx8 s[64:71], s[0:1], 64")
    e("v_and_b32 v1, 63, v0\nv_lshrrev_b32 v2, 6, v0\nv_readfirstlane_b32 s3, v2\nv_lshlrev_b32 v2, 4, v1")
    e(f"s_cmp_lt_u32 s2, 256\ns_cbranch_scc1 {LB}\ns_cmp_lt_u32 s2, 512\ns_cbranch_scc1 {LA}\ns_endpgm")
    k.label(LB)
    e("s_setprio 3")
    roleB(k)
    k.label(LA, 6)
    if ONLY == "B": e("s_endpgm")
    e(f"s_sub_u32 s2, s2, 256\ns_setprio {AP0}")
    roleA(k)
    k.label(f"{k.name}_end")
    k.lds = 81920; k.grid = 512; k.block = 256
    return k

if __name__ == "__main__":
    import sys
    from build import emit as emit_file
    emit_file([gen_mega()], sys.argv[1] if len(sys.argv) > 1 else "parallel_sum__grouped_kv_mqa__swiglu_ffn__prompt.s")
```

```python
from asmgen import *
from common import KA, NBYTES, f32bits, srd_from, stamp, stamp_dump, STAMPS
import math, os

MF = "v_mfma_f32_32x32x16_bf16"
LOG2E = math.log2(math.e)
QSCALE = (20 ** -0.5) * float(os.environ.get("QEPS", 1.0))
env = lambda n, d: type(d)(os.environ.get(n, d))
OFFS = env('OFFS', 96.0)
PATTERN = [int(x) for x in env('APAT', '2,6,9,13').split(',')]
BST = env("BST", 0); ONLY = env("ONLY", "")
P0B = env("P0B", 14); PKD = env("PKD", 0); ADLY = env("ADLY", 2); E64 = env("E64", ""); TP = env("TP", 0); QH = env("QH", 3); HEAD = env("HEAD", 1); PKS = env("PKS", 1); WF = env("WF", 0); KVS = env("KVS", 2); PH = env("PH", 7); LATE = env("LATE", 0); NOKV = env("NOKV", 0); KSL = env("KSL", 4); BSL = env("BSL", 8); BP0 = env("BP0", 0); GP0 = env("GP0", 0); GP1 = env("GP1", 2); GSW = env("GSW", -1); CPF = env("CPF", 1); DP = env("DP", 0); AP0 = env("AP0", 2)
STAT = 0x1000; PKF = 0x800; HF = 0x9000; OF = 0x11000; KVF = 0xE80000; XNF = 0xE88000; QF = 0xE90000; FL_BYTES = 0xE98000
KV_OFF = 0x20000;  KV_BYTES = 64*3072
WP_OFF = 0x50000;  WP_BYTES = 8*136*2560
AF_OFF = 0x300000; AF_BYTES = 64*136*1024
XN_OFF = 0xC00000; XN_BYTES = 64*40*1024
PX, PWQ, PWK, PWV, PWO, PWG, PWU, PWD, POUT, PWS = 48, 50, 52, 54, 56, 60, 62, 64, 66, 70
TAG = "s73"; BUD = "s74"; FLS = 44; SC = "sc1"
FL = f"s[{FLS}:{FLS+3}]"
HUGE = "0x7ff00000"

def bstamp(k, name):
    m0 = dict(start=0, xl=1, xs=2, xf=3, p0=4, gu0=5, gu1=6, dn0=7, dn1=8)
    m1 = dict(start=0, p0=1, gu0=2, gu1=3, dn0=4, dn1=5, of=6, mm=7, rd=8)
    m = m1 if BST else m0
    if name in m: stamp(k, m[name])

def emit(k, lst):
    for x in lst:
        if isinstance(x, list): emit(k, x)
        else: k.e(x)

def spin(k, loads, regs, vt, pre_issued=False, slp=1):
    e = k.e
    Lp = k.newlabel("poll"); Ld = k.newlabel("pdone"); Lc = k.newlabel("pchk")
    if pre_issued: e(f"s_branch {Lc}")
    k.label(Lp)
    emit(k, loads)
    k.label(Lc)
    e("s_waitcnt vmcnt(0)")
    e(f"v_xor_b32 v{vt}, {TAG}, v{regs[0]}")
    for r in regs[1:]:
        e(f"v_xor_b32 v{r}, {TAG}, v{r}\nv_or_b32 v{vt}, v{vt}, v{r}")
    e(f"v_cmp_ne_u32 vcc, 0, v{vt}")
    e(f"s_cmp_eq_u64 vcc, 0\ns_cbranch_scc1 {Ld}")
    e(f"s_sub_u32 {BUD}, {BUD}, 1\ns_cbranch_scc1 {Ld}")
    e(f"s_sleep {slp}\ns_branch {Lp}")
    k.label(Ld)

LEAK = os.environ.get("LEAK")
def setflag(k, soffs, vt, leak=None):
    e = k.e
    L = k.newlabel("nofl")
    e(f"s_cmp_lg_u32 s3, 0\ns_cbranch_scc1 {L}")
    if LEAK and leak is not None:
        role, idx = LEAK[0], int(LEAK[1:])
        sel = f"s{86+idx}" if role == leak else "s86"
        e(f"v_mov_b32 v{vt}, s86\nv_mov_b32 v{vt+1}, {sel}\nv_mov_b32 v{vt+2}, 0\ns_mov_b64 exec, 1")
        e(f"buffer_store_dwordx2 {vr(vt,2)}, v{vt+2}, {FL}, {soffs} offen offset:8 {SC}")
        e("s_waitcnt vmcnt(0)\ns_mov_b64 exec, -1")
    e(f"v_mov_b32 v{vt}, {TAG}\nv_mov_b32 v{vt+1}, 0\ns_mov_b64 exec, 1")
    for so in (soffs if isinstance(soffs, list) else [soffs]):
        e(f"buffer_store_dword v{vt}, v{vt+1}, {FL}, {so} offen {SC}")
    e("s_mov_b64 exec, -1")
    k.label(L)

def tag_setup(k):
    k.e(f"s_load_dword s72, s[{PWS}:{PWS+1}], 0")
    srd_from(k, FLS, PWS, FL_BYTES)
    k.e(f"s_mov_b32 {BUD}, 200000")
def tag_finish(k):
    k.e(f"s_waitcnt lgkmcnt(0)\ns_mul_i32 {TAG}, s72, 1664525\ns_add_u32 {TAG}, {TAG}, 1013904223")

def x_voffs(k, dst, t):
    e = k.e
    e(f"v_lshrrev_b32 v{t}, 3, v1\nv_mul_u32_u24 v{t}, 1280, v{t}")
    e(f"v_and_b32 v{t+1}, 7, v1\nv_lshrrev_b32 v{t+2}, 4, v1\nv_xor_b32 v{t+1}, v{t+1}, v{t+2}")
    e(f"v_lshl_add_u32 v{dst}, v{t+1}, 4, v{t}\nv_xor_b32 v{dst+1}, 64, v{dst}")
def x_raddr(k, dst, t, base):
    e = k.e
    e(f"v_and_b32 v{t}, 31, v1\nv_bfe_u32 v{t+1}, v1, 1, 3\nv_lshrrev_b32 v{t+2}, 5, v1\nv_xor_b32 v{t+1}, v{t+1}, v{t+2}")
    e(f"v_lshlrev_b32 v{t}, 7, v{t}\nv_lshl_add_u32 v{t}, v{t+1}, 4, v{t}")
    for ks in range(4):
        e(f"v_xor_b32 v{t+1}, {ks*32}, v{t}\nv_add_u32 v{dst+ks}, {base}, v{t+1}")

def phase0(k):
    e = k.e
    e("v_and_b32 v3, 15, v1\nv_lshrrev_b32 v4, 4, v1")
    e("s_mul_i32 s12, s4, 20480\ns_mul_i32 s13, s3, 320\ns_add_u32 s12, s12, s13")
    e("v_mul_u32_u24 v5, 1280, v3\nv_lshl_add_u32 v5, v4, 4, v5")
    e("s_mul_i32 s14, s3, 6400\ns_mul_i32 s15, s3, 7168\ns_add_u32 s37, s14, 4096")
    e("s_waitcnt lgkmcnt(0)")
    srd_from(k, 16, PX, NBYTES['x'])
    X = 16
    for i in range(5):
        e(f"buffer_load_dwordx4 {vr(X+4*i,4)}, v5, s[16:19], s12 offen offset:{64*i}")
    tag_setup(k)
    e(f"s_cmp_eq_u32 s11, 0\ns_cselect_b32 s20, s{PWK}, s{PWV}\ns_cselect_b32 s21, s{PWK+1}, s{PWV+1}")
    e(f"s_mov_b32 s22, {hex(NBYTES['wk'])}\ns_mov_b32 s23, 0x20000\ns_mov_b32 m0, s15")
    for j in range(7):
        if j == 4: e("s_add_u32 m0, s15, 4096")
        e(f"buffer_load_dwordx4 v2, s[20:23], {'s14' if j < 4 else 's37'} offen offset:{(j%4)*1024} lds")
    srd_from(k, 28, PWS, XN_BYTES, XN_OFF)
    srd_from(k, 32, PWS, KV_BYTES, KV_OFF)
    e("v_mov_b32 v8, 0\nv_mov_b32 v9, 0\nv_mov_b32 v10, 0\nv_mov_b32 v11, 0")
    e("s_mov_b32 s38, 0x3f803f80")
    LST = 28672; RED = LST + 512
    e(f"s_lshl_b32 s39, s3, 7\ns_add_u32 s39, s39, {LST}")
    e("v_lshl_add_u32 v12, v3, 3, s39\nv_lshlrev_b32 v13, 3, v3")
    e("v_lshrrev_b32 v14, 2, v3\nv_lshl_add_u32 v14, v4, 3, v14\nv_mul_u32_u24 v14, 40, v14")
    e("v_and_b32 v15, 3, v1\nv_lshl_add_u32 v14, v15, 3, v14\nv_add_u32 v14, s15, v14")
    e(f"s_lshl_b32 s36, s4, 7\ns_add_u32 s36, s36, {STAT}")
    e("s_lshr_b32 s40, s4, 1\ns_mul_i32 s41, s40, 40960\ns_and_b32 s42, s4, 1")
    e("s_lshl_b32 s43, s42, 8\ns_add_u32 s41, s41, s43\ns_mul_i32 s43, s3, 10240\ns_add_u32 s41, s41, s43")
    e("v_lshlrev_b32 v5, 9, v4\nv_lshl_add_u32 v5, v3, 4, v5")
    e(f"s_lshl_b32 s39, s3, 11\ns_add_u32 s39, s39, {RED}\nv_add_u32 v92, s39, v2\ns_mul_i32 s39, s40, 3072")
    e(f"s_lshl_b32 s43, s4, 1\ns_add_u32 s43, s43, s11\ns_lshl_b32 s75, s43, 7\ns_add_u32 s75, s75, {XNF}\ns_lshl_b32 s43, s43, {KVS}\ns_add_u32 s43, s43, {KVF}")
    Lv, Lst = k.newlabel("v"), k.newlabel("st")
    e("v_lshl_add_u32 v7, s42, 4, v3\nv_and_b32 v15, 1, v4\nv_lshrrev_b32 v6, 1, v4\nv_mov_b32 v95, 0x7fffffff")
    e(f"s_mov_b64 s[24:25], 0\ns_cmp_lg_u32 s11, 0\ns_cbranch_scc1 {Lv}")
    e("v_lshl_add_u32 v93, v6, 5, v7\nv_lshlrev_b32 v93, 4, v93\nv_lshl_add_u32 v93, v15, 3, v93")
    e("v_lshlrev_b32 v94, 3, v7\nv_add_u32 v94, 1024, v94\nv_cmp_ne_u32 vcc, 0, v4")
    e(f"s_branch {Lst}")
    k.label(Lv)
    e("s_mul_i32 s26, s42, 768\ns_add_u32 s26, s26, 1536\ns_mov_b32 s24, 0x00100010\ns_mov_b32 s25, 0x00100010")
    e("v_mul_u32_u24 v93, 384, v15\nv_lshl_add_u32 v93, v3, 4, v93\nv_lshl_add_u32 v93, v6, 3, v93\nv_add_u32 v93, s26, v93")
    e("v_add_u32 v94, 256, v93\nv_cmp_lt_u32 vcc, 4, v3")
    k.label(Lst)
    e("v_cndmask_b32 v94, v94, v95, vcc\nv_mov_b32 v95, 0x3f803f80")
    tag_finish(k)
    for i in range(5):
        e(f"s_waitcnt vmcnt({11 - i})")
        for d in range(4*i, 4*i+4):
            a = 8 + (d & 1); q = 10 + (d & 1)
            e(f"v_dot2_f32_bf16 v{a}, v{X+d}, s38, v{a}")
            e(f"v_dot2_f32_bf16 v{q}, v{X+d}, v{X+d}, v{q}")
    bstamp(k, "xl")
    e("v_add_f32 v8, v8, v9\nv_add_f32 v9, v10, v11")
    for sw in ("v_permlane32_swap_b32", "v_permlane16_swap_b32"):
        e("v_mov_b32 v10, v8\nv_mov_b32 v11, v9")
        e(f"{sw} v8, v10\n{sw} v9, v11")
        e("v_add_f32 v8, v8, v10\nv_add_f32 v9, v9, v11")
    e("ds_write_b64 v12, v[8:9]")
    U = 96; W = 136
    for d in range(20):
        e(f"v_lshlrev_b32 v{U+2*d}, 16, v{X+d}\nv_and_b32 v{U+2*d+1}, 0xffff0000, v{X+d}")
        if d == 1:
            e("s_waitcnt lgkmcnt(0)\ns_barrier")
            for w in range(4): e(f"ds_read_b64 {vr(36+2*w,2)}, v13 offset:{LST+128*w}")
    e("s_waitcnt lgkmcnt(0) vmcnt(0)")
    for i in range(5):
        for tl in range(2):
            for u in range(2):
                e(f"ds_read_b64_tr_b16 {vr(W+8*i+4*tl+2*u,2)}, v14 offset:{i*1280 + u*160 + tl*32}")
    e("v_add_f32 v8, v36, v38\nv_add_f32 v9, v37, v39\nv_add_f32 v10, v40, v42\nv_add_f32 v11, v41, v43")
    e("v_add_f32 v8, v8, v10\nv_add_f32 v9, v9, v11")
    inv = hex(f32bits(1.0/640))
    e(f"v_mul_f32 v8, {inv}, v8\nv_mul_f32 v9, {inv}, v9")
    e("v_fma_f32 v9, -v8, v8, v9\nv_max_f32 v9, 0, v9")
    e("v_cvt_pk_bf16_f32 v10, v8, v9")
    e("v_lshlrev_b32 v8, 16, v10\nv_and_b32 v9, 0xffff0000, v10")
    e(f"v_add_f32 v9, {hex(f32bits(1e-5))}, v9")
    e("v_cvt_pk_bf16_f32 v9, v9, v9\nv_and_b32 v9, 0xffff0000, v9")
    e("v_sqrt_f32 v9, v9")
    e("v_cvt_pk_bf16_f32 v6, v8, v9")
    e(f"v_mov_b32 v7, {TAG}\nv_and_b32 v9, 0xffff0000, v6")
    Lns = k.newlabel("nost")
    e(f"s_lshl_b32 s26, s11, 2\ns_add_u32 s26, s26, s3\ns_cmp_lg_u32 s26, 7\ns_cbranch_scc1 {Lns}")
    e(f"s_mov_b64 exec, 0xffff\nbuffer_store_dwordx2 v[6:7], v13, {FL}, s36 offen {SC}\ns_mov_b64 exec, -1")
    k.label(Lns)
    e("v_rcp_f32 v10, v9")
    e(f"v_mul_f32 v10, {hex(f32bits(LOG2E))}, v10")
    e("v_mul_f32 v11, v8, v10")
    ACC = 44
    for d in range(20):
        u = U + 2*d
        e(f"v_fma_f32 v{u}, v{u}, v10, -v11\nv_fma_f32 v{u+1}, v{u+1}, v10, -v11")
        if d >= 1: e(f"v_cvt_pk_bf16_f32 v{X+d-1}, v{u-2}, v{u-1}")
    e(f"v_cvt_pk_bf16_f32 v{X+19}, v{U+38}, v{U+39}")
    Lmv, Lmd = k.newlabel("mv"), k.newlabel("md")
    e(f"s_waitcnt lgkmcnt(0)\ns_cmp_lg_u32 s11, 0\ns_cbranch_scc1 {Lmv}")
    def xst(i): return f"buffer_store_dwordx4 {vr(X+4*i,4)}, v5, s[28:31], s26 offen offset:{(i%2)*2048} {SC}"
    for m in range(2):
        if m: k.label(Lmv)
        for i in range(5):
            for tl in range(2):
                wf = vr(W+8*i+4*tl, 4); xf = vr(X+4*i, 4); acc = vr(ACC+4*tl, 4)
                a, b = (wf, xf) if m == 0 else (xf, wf)
                e(f"v_mfma_f32_16x16x32_bf16 {acc}, {a}, {b}, {'0' if i == 0 else acc}")
        if m == 0: e(f"s_branch {Lmd}")
    k.label(Lmd)
    bstamp(k, "xs")
    for tl in range(2):
        e(f"ds_write_b128 v92, {vr(ACC+4*tl,4)} offset:{tl*1024}")
    e("s_waitcnt lgkmcnt(0)\ns_barrier")
    Lx = k.newlabel("xst")
    e(f"s_cmp_lg_u32 s3, 0\ns_cbranch_scc1 {Lx}")
    R = 52
    for tl in range(2):
        for w in range(1, 4):
            e(f"ds_read_b128 {vr(R+16*tl+4*w,4)}, v92 offset:{w*2048 + tl*1024}")
    for tl in range(2):
        e(f"s_waitcnt lgkmcnt({3 - 3*tl})")
        r = R + 16*tl; c = ACC + 4*tl
        for j in range(4):
            e(f"v_add_f32 v{c+j}, v{c+j}, v{r+4+j}\nv_add_f32 v{r+8+j}, v{r+8+j}, v{r+12+j}\nv_add_f32 v{c+j}, v{c+j}, v{r+8+j}")
        e(f"v_cvt_pk_bf16_f32 v{8+2*tl}, v{c}, v{c+1}\nv_cvt_pk_bf16_f32 v{9+2*tl}, v{c+2}, v{c+3}")
        if tl: e("v_cndmask_b32 v10, v10, v95, s[24:25]\nv_cndmask_b32 v11, v11, v95, s[24:25]")
        e(f"buffer_store_dwordx2 {vr(8+2*tl,2)}, v{93+tl}, s[32:35], s39 offen {SC}")
    k.label(Lx)
    L1, L2 = k.newlabel("x1"), k.newlabel("x2")
    e(f"s_cmp_lg_u32 s11, 0\ns_cbranch_scc1 {L1}")
    e("s_mov_b32 s26, s41"); e(xst(0)); e(xst(1)); e("s_add_u32 s26, s41, 4096"); e(xst(2))
    e(f"s_branch {L2}")
    k.label(L1)
    e("s_add_u32 s26, s41, 4096"); e(xst(3)); e("s_add_u32 s26, s41, 8192"); e(xst(4))
    k.label(L2)
    bstamp(k, "xf")

def roleB(k):
    e = k.e
    SLOT = 20480
    GW, RA, RB = 216, 221, 224
    ACC = 32; FR = [176, 196]
    Lgu = k.newlabel("gu0"); Lpk = k.newlabel("pk")
    bstamp(k, "start")
    e("s_and_b32 s5, s2, 7\ns_lshr_b32 s6, s2, 3")
    def tile_ids():
        e("s_lshr_b32 s7, s5, 1\ns_lshl_b32 s7, s7, 2\ns_lshr_b32 s8, s6, 3\ns_add_u32 s7, s7, s8")
        e("s_and_b32 s9, s5, 1\ns_lshl_b32 s8, s9, 3\ns_and_b32 s10, s6, 7\ns_add_u32 s8, s8, s10\ns_lshl_b32 s11, s7, 1\ns_add_u32 s9, s9, s11")
    def gu_vsetup(t):
        e("s_and_b32 s11, s3, 2")
        for i in range(3):
            e(f"v_add_u32 v{t}, {64*i}, v1\nv_mul_u32_u24 v{t+1}, 5462, v{t}\nv_lshrrev_b32 v{t+1}, 16, v{t+1}")
            e(f"v_mul_u32_u24 v{t+2}, 12, v{t+1}\nv_sub_u32 v{t+2}, v{t}, v{t+2}\nv_xor_b32 v{t+2}, s11, v{t+2}")
            e(f"v_mul_u32_u24 v{t+1}, 3072, v{t+1}\nv_lshl_add_u32 v{GW+i}, v{t+2}, 4, v{t+1}")
    def gu_vsetup2(t):
        e(f"v_lshrrev_b32 v{t}, 5, v1\nv_bfe_u32 v{t+1}, v1, 2, 2\nv_lshl_add_u32 v{t+1}, v{t}, 3, v{t+1}\nv_mul_u32_u24 v{t+1}, 192, v{t+1}")
        e(f"v_and_b32 v{t+2}, 1, v1\nv_lshl_add_u32 v{t+1}, v{t+2}, 4, v{t+1}\nv_bfe_u32 v{t+2}, v1, 1, 1\nv_lshl_add_u32 v{t+1}, v{t+2}, 3, v{t+1}")
        e(f"v_bfe_u32 v{t+2}, v1, 4, 1\nv_mul_u32_u24 v{t+3}, 6144, v{t+2}\nv_add_u32 v{t+1}, v{t+1}, v{t+3}")
        e("s_lshr_b32 s11, s3, 1\ns_mul_i32 s11, s11, 3")
        for a in range(3):
            e(f"v_xor_b32 v{t+3}, s11, v{t+2}\nv_lshl_add_u32 v{RA+a}, v{t+3}, 5, v{t+1}\ns_add_u32 s11, s11, 1")
        e(f"s_and_b32 s11, s3, 1\ns_lshl_b32 s11, s11, 12\ns_add_u32 s11, s11, 12288\nv_add_u32 v{RB}, s11, v2")
        e(f"v_and_b32 v{RB+1}, 3, v1\nv_lshlrev_b32 v{RB+1}, 7, v{RB+1}")
    def zero_acc():
        for j in range(96): e(f"v_mov_b32 v{ACC+j}, 0")
    def gu_ssetup():
        e("s_lshr_b32 s38, s3, 1\ns_and_b32 s39, s3, 1\ns_mul_i32 s40, s38, 3")
        srd_from(k, 16, PWS, XN_BYTES, XN_OFF)
        e(f"s_cmp_eq_u32 s38, 0\ns_cselect_b32 s20, s{PWG}, s{PWU}\ns_cselect_b32 s21, s{PWG+1}, s{PWU+1}")
        e(f"s_mov_b32 s22, {hex(NBYTES['wg'])}\ns_mov_b32 s23, 0x20000")
        e("s_mul_i32 s12, s39, 49152\ns_mul_i32 s32, s8, 192\ns_add_u32 s12, s12, s32")
        e(f"s_lshl_b32 s32, s7, 2\ns_add_u32 s32, s32, s3\ns_mul_i32 s13, s32, 40960\ns_lshl_b32 s42, s32, 9\ns_add_u32 s42, s42, {XNF}")
        e("s_mul_i32 s14, s3, 3072\ns_lshl_b32 s15, s3, 11\ns_add_u32 s15, s15, 12288")
    def issueW(sl):
        return [[f"s_add_u32 m0, s14, {sl*SLOT}"],
                [f"buffer_load_dwordx4 v{GW}, s[20:23], s12 offen lds", "s_add_u32 m0, m0, 1024"],
                [f"buffer_load_dwordx4 v{GW+1}, s[20:23], s12 offen lds", "s_add_u32 m0, m0, 1024"],
                [f"buffer_load_dwordx4 v{GW+2}, s[20:23], s12 offen lds", f"s_add_u32 s12, s12, {32*3072}"]]
    def issueX(sl):
        return [[f"s_add_u32 m0, s15, {sl*SLOT}"],
                [f"buffer_load_dwordx4 v2, s[16:19], s13 offen {SC} lds"],
                [f"buffer_load_dwordx4 v2, s[16:19], s13 offen offset:1024 {SC} lds", "s_add_u32 s13, s13, 2048"]]
    xn_poll = [f"buffer_load_dword v16, v{RB+1}, {FL}, s42 offen {SC}"]
    e("s_lshl_b32 s4, s5, 4\ns_lshr_b32 s11, s6, 1\ns_add_u32 s4, s4, s11\ns_and_b32 s11, s6, 1")
    def pre():
        tile_ids(); gu_vsetup(232); gu_vsetup2(232)
    if CPF:
        Lc = k.newlabel("nocp"); Lh = k.newlabel("here")
        e(f"s_cmp_lg_u32 s6, 31\ns_cbranch_scc1 {Lc}")
        e("s_getpc_b64 s[34:35]")
        k.label(Lh)
        e(f"s_sub_u32 s34, s34, {Lh}-{k.name}\ns_subb_u32 s35, s35, 0")
        e(f"v_lshlrev_b32 v9, 7, v0\nv_min_u32 v9, {k.name}_end-{k.name}-4, v9")
        e("global_load_dword v255, v9, s[34:35]")
        k.label(Lc)
    phase0(k)
    pre()
    gu_ssetup()
    zero_acc()
    e("s_waitcnt vmcnt(2)")
    setflag(k, "s43", 10)
    Lw0 = k.newlabel("w0")
    e(f"s_waitcnt vmcnt(1)\ns_cmp_eq_u32 s3, 0\ns_cbranch_scc1 {Lw0}\ns_waitcnt vmcnt(0)")
    k.label(Lw0)
    e("s_barrier")
    setflag(k, "s75", 10)
    e(f"s_setprio {BP0}\ns_mov_b32 s11, {HUGE}")
    e(f"s_lshl_b32 s41, s2, 7\ns_add_u32 s41, s41, {QF}\nv_mov_b32 v31, 0")
    def go():
        if QH >= 0: spin(k, xn_poll + [f"buffer_load_dword v29, v31, {FL}, s41 offen {SC}"], [16, 29], 17, slp=BSL)
        else: spin(k, xn_poll, [16], 17, slp=BSL)
    e(f"s_cmp_lt_u32 s2, 136\ns_cbranch_scc1 {Lpk}")
    go()
    for c in range(4): emit(k, issueW(c)); emit(k, issueX(c))
    e(f"s_branch {Lgu}")
    k.label(Lpk)
    PKB = 3*SLOT; PD = 128
    e("s_mov_b32 s4, s2\ns_mul_i32 s33, s3, 320")
    for i in range(5):
        e(f"v_add_u32 v13, {64*i}, v1\nv_add_u32 v13, s33, v13\nv_mul_u32_u24 v{19+i}, 52429, v13\nv_lshrrev_b32 v{19+i}, 22, v{19+i}")
        e(f"v_mul_u32_u24 v14, 80, v{19+i}\nv_sub_u32 v14, v13, v14\nv_lshlrev_b32 v{24+i}, 4, v14")
    def pack_issue(first, lo=0):
        e("s_mul_i32 s32, s4, 241\ns_lshr_b32 s32, s32, 13\ns_mul_i32 s33, s32, 34\ns_sub_u32 s33, s4, s33")
        e("s_mul_i32 s34, s32, 384\ns_lshl_b32 s35, s33, 4\ns_add_u32 s34, s34, s35")
        e("s_sub_u32 s36, s33, 24\ns_sub_u32 s37, s33, 29\ns_cmp_ge_u32 s33, 29\ns_cselect_b32 s36, s37, s36\ns_cselect_b32 s37, 320, 0")
        e("s_mul_i32 s35, s32, 80\ns_add_u32 s35, s35, s37\ns_mul_i32 s37, s36, 20")
        e("s_cmp_eq_u32 s36, 4\ns_cselect_b32 s37, 16, s37\ns_cselect_b32 s43, 16, 0\ns_add_u32 s36, s35, s37")
        for i in range(5):
            e(f"v_lshrrev_b32 v13, 2, v{19+i}\nv_mul_u32_u24 v13, s43, v13\nv_add_u32 v13, v13, v{19+i}\nv_mul_u32_u24 v13, 1280, v13\nv_add_u32 v{3+i}, v13, v{24+i}")
        first()
        e(f"s_cmp_ge_u32 s33, 24\ns_cselect_b32 s34, s36, s34\ns_cselect_b32 s24, s{PWO}, s{PWD}\ns_cselect_b32 s25, s{PWO+1}, s{PWD+1}")
        e(f"s_cselect_b32 s26, {hex(NBYTES['wo'])}, s26\ns_mov_b32 s27, 0x20000\ns_mul_i32 s34, s34, 1280")
        e(f"s_mul_i32 s35, s3, 5120\ns_add_u32 m0, s35, {PKB+lo}")
        for i in range(5):
            e(f"buffer_load_dwordx4 v{3+i}, s[24:27], s34 offen lds")
            if i < 4: e("s_add_u32 m0, m0, 1024")
    def pack_finish(lo=0):
        for c in range(2):
            for a in range(3):
                for u in range(2):
                    ad, off = ("v10", a*64) if a < 2 else ("v11", 0)
                    e(f"ds_read_b64_tr_b16 {vr(PD+12*c+4*a+2*u,2)}, {ad} offset:{lo + c*160 + off + u*5120}")
        e(f"s_mul_i32 s5, s3, {2*136*2560}\ns_mul_i32 s6, s4, 2560\ns_add_u32 s5, s5, s6\ns_add_u32 s6, s5, {136*2560}")
        e("s_waitcnt lgkmcnt(0)")
    e("v_lshrrev_b32 v8, 5, v1\nv_bfe_u32 v9, v1, 2, 2\nv_lshl_add_u32 v9, v8, 3, v9\nv_mul_u32_u24 v9, 1280, v9")
    e(f"s_mul_i32 s32, s3, 320\ns_add_u32 s32, s32, {PKB}\nv_add_u32 v9, s32, v9")
    e("v_and_b32 v16, 1, v1\nv_bfe_u32 v17, v1, 1, 1\nv_bfe_u32 v18, v1, 4, 1")
    e("v_lshl_add_u32 v10, v16, 5, v9\nv_lshl_add_u32 v10, v17, 3, v10\nv_lshl_add_u32 v10, v18, 4, v10")
    e("v_lshl_add_u32 v11, v16, 4, v9\nv_lshl_add_u32 v11, v17, 3, v11\nv_add_u32 v11, 128, v11\nv_lshl_add_u32 v11, v18, 18, v11")
    e("v_and_b32 v12, 15, v1\nv_lshlrev_b32 v12, 4, v12\nv_lshl_add_u32 v12, v8, 8, v12\nv_lshl_add_u32 v12, v18, 30, v12")
    e(f"s_lshl_b32 s75, s4, 2\ns_add_u32 s75, s75, {PKF}")
    e(f"s_mov_b32 s26, {hex(NBYTES['wd'])}")
    pack_issue(go)
    for c in range(2): emit(k, issueW(c)); emit(k, issueX(c))
    e("s_waitcnt vmcnt(10)\ns_barrier")
    pack_finish()
    emit(k, issueW(2)); emit(k, issueX(2))
    e("s_barrier")
    emit(k, issueW(3)); emit(k, issueX(3))
    k.label(Lgu)
    bstamp(k, "p0")
    srd_from(k, 28, PWS, AF_BYTES, AF_OFF)
    def reads(fs, sl, ks):
        L = [f"ds_read_b128 {vr(FR[fs]+12,4)}, v{RB} offset:{sl*SLOT + ks*1024}"]
        for a in range(3):
            for u in range(2):
                L.append(f"ds_read_b64_tr_b16 {vr(FR[fs]+4*a+2*u,2)}, v{RA+a} offset:{sl*SLOT + (16*ks+4*u)*192}")
            if a == 0: L.append(f"ds_read_b128 {vr(FR[fs]+16,4)}, v{RB} offset:{sl*SLOT + 2048 + ks*1024}")
        return L
    def mfmas(fs):
        return [f"{MF} {vr(ACC+16*(2*a+b),16)}, {vr(FR[fs]+4*a,4)}, {vr(FR[fs]+12+4*b,4)}, {vr(ACC+16*(2*a+b),16)}" for a in range(3) for b in range(2)]
    e("s_mov_b32 s42, 0\nv_min_u32 v4, 33, v1\nv_lshlrev_b32 v4, 4, v4")
    e("s_waitcnt vmcnt(15)\ns_barrier")
    e(f"s_setprio {GP0}")
    bstamp(k, "gu0")
    if ONLY == "A":
        e("s_waitcnt vmcnt(0)"); stamp_dump(k, 0, 6, "s2", PWS); e("s_endpgm")
    emit(k, reads(0, 0, 0))
    srd_from(k, 24, PWS, WP_BYTES, WP_OFF)
    e(f"s_mul_i32 s11, s10, {4*34*2560}\ns_mul_i32 s43, s3, 5120\ns_add_u32 s11, s11, s43\ns_mov_b32 s35, {HUGE}")
    st_loads = [f"buffer_load_dwordx4 v[16:19], v4, {FL}, s36 offen {SC}"]
    def issueP(sl):
        L = [[f"s_add_u32 m0, s43, {sl*SLOT}", "s_add_u32 s33, s11, 4096"]]
        for i in range(4): L.append([f"buffer_load_dwordx4 v2, s[24:27], s11 offen offset:{i*1024} {SC} lds"])
        L[4].append("s_add_u32 m0, m0, 4096")
        L.append([f"buffer_load_dwordx4 v2, s[24:27], s33 offen {SC} lds", f"s_add_u32 s11, s11, {34*2560}"])
        return L
    L = k.newlabel("gu")
    def trip(last):
        for sl in range(4):
            e("s_waitcnt lgkmcnt(0)")
            rd = reads(1, sl, 1); mf = mfmas(0)
            sh = [rd[0:2], rd[2:4], rd[4:6], rd[6:8], [], []]
            if not last and sl == 1: sh[4] = ["s_cmp_eq_u32 s42, 3", f"s_cselect_b32 s36, {PKF}, s35"] + st_loads
            for i in range(6):
                e(mf[i]); emit(k, sh[i])
            if sl == 0 and not last:
                Ls = k.newlabel("nps")
                e(f"s_cmp_ge_u32 s2, 136\ns_cbranch_scc1 {Ls}\ns_cmp_lg_u32 s42, 1\ns_cbranch_scc1 {Ls}")
                for c in range(2):
                    for a in range(3):
                        e(f"buffer_store_dwordx4 {vr(PD+12*c+4*a,4)}, {'v2' if a < 2 else 'v12'}, s[24:27], s{5+c} offen offset:{a*1024} {SC}")
                k.label(Ls)
            if sl == 1 and not last:
                Ls = k.newlabel("npf")
                e(f"s_cmp_ge_u32 s2, 136\ns_cbranch_scc1 {Ls}\ns_cmp_lg_u32 s42, 2\ns_cbranch_scc1 {Ls}")
                setflag(k, "s75", 10)
                k.label(Ls)
            if sl == 2 and GSW >= 0 and not last:
                Lt = k.newlabel("gsw")
                e(f"s_cmp_lg_u32 s42, {GSW}\ns_cbranch_scc1 {Lt}\ns_setprio {GP1}")
                k.label(Lt)
            e("s_waitcnt vmcnt(10) lgkmcnt(0)\ns_barrier")
            rd = reads(0, (sl+1) % 4, 0) if not (last and sl == 3) else [[]]*8
            mf = mfmas(1)
            if not last:
                iw = issueW(sl); ix = issueX(sl)
                sh = [rd[0:2] + iw[0], rd[2:4] + iw[1], rd[4:6] + iw[2], rd[6:8] + iw[3] + ix[0], ix[1], ix[2]]
                if sl == 3: sh[5] = sh[5] + ["s_add_u32 s42, s42, 1", "s_cmp_lt_u32 s42, 4"]
            else:
                ip = issueP(sl)
                sh = [rd[0:2] + ip[0], rd[2:4] + ip[1], rd[4:6] + ip[2], rd[6:8] + ip[3], ip[4], ip[5]]
            for i in range(6):
                e(mf[i]); emit(k, sh[i])
    k.label(L, 6)
    trip(False)
    e(f"s_cbranch_scc1 {L}")
    Lok = k.newlabel("pkok")
    e(f"s_setprio 2\nv_xor_b32 v20, {TAG}, v16")
    for r in (17, 18, 19): e(f"v_xor_b32 v{r}, {TAG}, v{r}\nv_or_b32 v20, v20, v{r}")
    e(f"v_cmp_ne_u32 vcc, 0, v20\ns_cmp_eq_u64 vcc, 0\ns_cbranch_scc1 {Lok}")
    spin(k, st_loads, [16, 17, 18, 19], 20)
    k.label(Lok)
    e(f"s_setprio {GP0}")
    trip(True)
    e("s_setprio 2")
    e("v_lshrrev_b32 v8, 5, v1")
    e(f"s_mul_i32 s14, s3, {SLOT}")
    srd_from(k, 20, PWS, WP_BYTES, WP_OFF)
    srd_from(k, 16, PX, NBYTES['x'])
    e(f"s_lshl_b32 s12, s10, 2\ns_add_u32 s12, s12, s3\ns_mul_i32 s12, s12, {34*2560}\ns_add_u32 s12, s12, {4*5120}")
    e(f"s_lshl_b32 s32, s7, 1\ns_add_u32 s32, s32, s39\ns_mul_i32 s32, s32, 272\ns_mul_i32 s43, s8, 6\ns_add_u32 s32, s32, s43\ns_add_u32 s32, s32, s40\ns_add_u32 s32, s32, 40\ns_lshl_b32 s32, s32, 10")
    e(f"s_add_u32 s34, s32, {136*1024}\ns_mov_b32 s33, {hex(f32bits(LOG2E*LOG2E))}")
    e("s_waitcnt lgkmcnt(0)")
    bstamp(k, "gu1")
    def issueW2(sl):
        L = [[f"s_add_u32 m0, s14, {sl*5120}", "s_add_u32 s33, s12, 4096"]]
        for i in range(4): L.append([f"buffer_load_dwordx4 v2, s[20:23], s12 offen offset:{i*1024} {SC} lds"])
        L[4].append("s_add_u32 m0, m0, 4096")
        L.append([f"buffer_load_dwordx4 v2, s[20:23], s33 offen {SC} lds", "s_add_u32 s12, s12, 5120"])
        return L
    T = 176
    if PKS: e("v_mov_b32 v184, s33\nv_mov_b32 v185, s33")
    for a in range(3):
        for b in range(2):
            g = ACC + 16*(2*a+b); u = g + 8
            for j in range(8): e(f"v_exp_f32 v{T+j}, -v{g+j}")
            if PKS:
                for j in range(0, 8, 2): e(f"v_pk_mul_f32 {vr(g+j,2)}, {vr(g+j,2)}, {vr(u+j,2)}")
                for j in range(0, 8, 2): e(f"v_pk_fma_f32 {vr(T+j,2)}, {vr(T+j,2)}, v[184:185], v[184:185]")
            else:
                for j in range(8): e(f"v_mul_f32 v{g+j}, v{g+j}, v{u+j}")
                for j in range(8): e(f"v_fma_f32 v{T+j}, v{T+j}, s33, s33")
            for j in range(8): e(f"v_rcp_f32 v{T+j}, v{T+j}")
            if PKS:
                for j in range(0, 8, 2): e(f"v_pk_mul_f32 {vr(g+j,2)}, {vr(g+j,2)}, {vr(T+j,2)}")
            else:
                for j in range(8): e(f"v_mul_f32 v{g+j}, v{g+j}, v{T+j}")
            for j in range(4): e(f"v_cvt_pk_bf16_f32 v{u+j}, v{g+2*j}, v{g+2*j+1}")
            e(f"buffer_store_dwordx4 {vr(u,4)}, v2, s[28:31], {'s34' if b else 's32'} offen offset:{a*1024} {SC}")
    wq_ = []
    assert not wq_
    e("v_add_u32 v10, s14, v2\nv_and_b32 v11, 15, v1\nv_lshlrev_b32 v11, 4, v11\nv_lshl_add_u32 v11, v8, 8, v11\nv_bfe_u32 v9, v1, 4, 1")
    e("v_lshl_add_u32 v7, v9, 30, v11\nv_lshl_add_u32 v11, v9, 18, v11\nv_add_u32 v11, s14, v11")
    e(f"s_lshl_b32 s35, s7, 4\ns_add_u32 s36, s35, s8\ns_lshl_b32 s36, s36, 7\ns_add_u32 s36, s36, {HF}")
    e(f"s_mul_i32 s24, s9, {272*1024}\ns_mul_i32 s32, s3, {24*1024}\ns_add_u32 s26, s24, s32\ns_add_u32 s26, s26, {40*1024}\ns_add_u32 s27, s26, {136*1024}")
    e("v_and_b32 v14, 3, v1\nv_lshlrev_b32 v14, 7, v14\nv_and_b32 v6, 1, v1\nv_lshlrev_b32 v6, 7, v6")
    if WF: e("v_bfe_u32 v5, v1, 1, 2\nv_lshl_add_u32 v6, v5, 2, v6")
    e(f"s_lshl_b32 s32, s3, 2\ns_add_u32 s32, s32, s35\ns_lshl_b32 s32, s32, 7\ns_add_u32 s32, s32, {HF}")
    e("s_lshr_b32 s40, s3, 1\ns_and_b32 s41, s3, 1")
    e("s_lshl_b32 s34, s9, 1\ns_add_u32 s34, s34, s40\ns_mul_i32 s34, s34, 40960\ns_mul_i32 s33, s10, 160\ns_add_u32 s43, s34, s33")
    e("v_and_b32 v5, 31, v1\nv_mul_u32_u24 v5, 1280, v5")
    e("s_lshl_b32 s34, s41, 6\nv_lshl_add_u32 v12, v8, 5, v5\nv_add_u32 v12, s34, v12")
    e("s_lshl_b32 s34, s41, 3\ns_add_u32 s34, s34, 128\nv_lshl_add_u32 v13, v8, 4, v5\nv_add_u32 v13, s34, v13")
    e("s_mul_i32 s34, s40, 10240\ns_lshl_b32 s33, s41, 12\ns_add_u32 s33, s33, s34\nv_add_u32 v15, s33, v2")
    e("s_lshl_b32 s33, s41, 10\ns_add_u32 s33, s33, s34\ns_add_u32 s33, s33, 8192\nv_add_u32 v3, s33, v2")
    e(f"s_lshl_b32 s25, s9, 3\ns_add_u32 s25, s25, s3\ns_lshl_b32 s25, s25, 7\ns_add_u32 s25, s25, {OF}\nv_mov_b32 v6, 0")
    e(f"s_mul_i32 s33, s3, {10*1024}\ns_add_u32 s24, s24, s33")
    e("s_waitcnt vmcnt(0)\ns_barrier")
    setflag(k, "s36", 16, "B")
    hl = [f"buffer_load_dword v16, v14, {FL}, s32 offen {SC}"]
    XS = 232; G4 = [20, 244]
    e(f"s_add_u32 s34, s12, {24*2560}\ns_add_u32 s35, s12, {25*2560}")
    srd_from(k, 36, POUT, NBYTES['out'])
    spin(k, hl, [16], 17)
    e(f"s_setprio {TP}")
    XR = 128; FA = [208, 220]
    def issueX2(rs):
        L = []
        for ks in range(2):
            for b in range(2):
                L.append([f"buffer_load_dwordx4 {vr(XR+16*rs+8*ks+4*b,4)}, v2, s[28:31], s{26+b} offen offset:{ks*1024} {SC}"])
        L[3] += ["s_add_u32 s26, s26, 2048", "s_add_u32 s27, s27, 2048"]
        return L
    for g in range(4): emit(k, issueX2(g))
    def reads2(fs, sl, ks):
        return [f"ds_read_b128 {vr(FA[fs]+4*a,4)}, {'v10' if a < 2 else 'v11'} offset:{sl*5120 + ks*2560 + a*1024}" for a in range(3)]
    def mfmas2(fs, rs, ks, c0=False):
        return [f"{MF} {vr(ACC+16*(3*b+a),16)}, {vr(FA[fs]+4*a,4)}, {vr(XR+16*rs+8*ks+4*b,4)}, {'0' if c0 else vr(ACC+16*(3*b+a),16)}" for a in range(3) for b in range(2)]
    e(f"s_mov_b32 s42, 0\ns_setprio {DP}")
    emit(k, reads2(0, 0, 0))
    e("s_waitcnt vmcnt(14) lgkmcnt(0)")
    bstamp(k, "dn0")
    L = k.newlabel("dn"); Lm = k.newlabel("dnm")
    rd = reads2(1, 0, 1); mf = mfmas2(0, 0, 0, True)
    for i in range(6):
        e(mf[i]); emit(k, rd[i:i+1])
    e("s_waitcnt vmcnt(0)")
    for ks in range(2):
        for a in range(3):
            e(f"buffer_load_dwordx4 {vr(G4[ks]+4*a,4)}, {'v2' if a < 2 else 'v7'}, s[20:23], s{34+ks} offen offset:{a*1024} {SC}")
    e(f"buffer_load_dwordx4 {vr(XS,4)}, v12, s[16:19], s43 offen")
    e(f"buffer_load_dwordx4 {vr(XS+4,4)}, v12, s[16:19], s43 offen offset:16")
    e(f"buffer_load_dwordx2 {vr(XS+8,2)}, v13, s[16:19], s43 offen")
    e(f"s_branch {Lm}")
    k.label(L, 6)
    for sl in range(4):
        e("s_waitcnt lgkmcnt(0)")
        rd = reads2(1, sl, 1); mf = mfmas2(0, sl, 0)
        sh = [rd[0:1], rd[1:2], rd[2:3], [], [], []]
        if sl == 0: sh[3] = ["s_cmp_eq_u32 s42, 2", f"s_cselect_b32 s26, {HUGE}, s26", f"s_cselect_b32 s27, {HUGE}, s27"]
        for i in range(6):
            e(mf[i]); emit(k, sh[i])
        if sl == 0: k.label(Lm)
        e("s_waitcnt vmcnt(18) lgkmcnt(0)")
        rd = reads2(0, (sl+1) % 4, 0); mf = mfmas2(1, sl, 1)
        iw = issueW2(sl); ix = issueX2(sl)
        sh = [rd[0:1] + iw[0], rd[1:2] + iw[1], rd[2:3] + iw[2], iw[3] + iw[4], iw[5], ix[0] + ix[1] + ix[2] + ix[3]]
        if sl == 3: sh[5] = sh[5] + ["s_add_u32 s42, s42, 1", "s_cmp_lt_u32 s42, 3"]
        for i in range(6):
            e(mf[i]); emit(k, sh[i])
    e(f"s_cbranch_scc1 {L}")
    e("s_setprio 2")
    emit(k, reads2(1, 0, 1))
    bstamp(k, "dn1")
    def oload(b, t):
        return [f"s_add_u32 s26, s24, {b*136*1024 + t*1024}", f"buffer_load_dwordx4 {vr(XR+40*b+4*t,4)}, v2, s[28:31], s26 offen {SC}"]
    f2 = [f"buffer_load_dword v18, v6, {FL}, s25 offen offset:512 {SC}"]
    if ONLY != "B": spin(k, [f"buffer_load_dword v16, v6, {FL}, s25 offen {SC}"] + f2, [16], 17)
    else: e(f"s_waitcnt vmcnt(0)\nv_mov_b32 v18, {TAG}")
    for t in range(5):
        for b in range(2): emit(k, oload(b, t))
    seq = [(t, (0, 1)) for t in range(5)] + [(t, (0,)) for t in range(5, 10)] + [(t, (1,)) for t in range(5, 10)]
    lsteps = [t for t, _ in seq if t < 8]
    wr = [f"ds_write_b128 v10, {vr(ACC+4*q,4)} offset:{q*1024}" for q in range(10)]
    def late_loads():
        for b in range(2):
            for t2 in range(5, 10): emit(k, oload(b, t2))
    def steps(us, lds, n, younger):
        for u in us:
            t, bs = seq[u]
            vm = (8 - 2*u + younger) if u < 5 else (14 - u)
            if t < 8:
                last = max([i for i, x in enumerate(lds) if x == f"n{n}"], default=-1)
                lds = lds[last+1:]
                e(f"s_waitcnt vmcnt({vm}) lgkmcnt({min(15, len(lds))})")
                F = FA[n & 1]
            else:
                e(f"s_waitcnt vmcnt({vm})")
                F = G4[t-8]
            for a in range(3):
                for b in bs:
                    e(f"{MF} {vr(ACC+16*(3*b+a),16)}, {vr(F+4*a,4)}, {vr(XR+40*b+4*t,4)}, {vr(ACC+16*(3*b+a),16)}")
                    if u >= 11 and wr:
                        e(wr.pop(0)); lds.append("w")
            if t < 8:
                if n + 2 < len(lsteps):
                    t2 = lsteps[n+2]
                    emit(k, reads2(n & 1, t2 >> 1, t2 & 1)); lds += [f"n{n+2}"]*3
                n += 1
        return lds, n
    Lb, Lj = k.newlabel("both"), k.newlabel("join")
    e(f"v_cmp_ne_u32 vcc, {TAG}, v18\ns_cmp_eq_u64 vcc, 0\ns_cbranch_scc1 {Lb}")
    emit(k, f2)
    steps(range(5), ["n0"]*3 + ["n1"]*3, 0, 1)
    spin(k, f2, [18], 17, pre_issued=True)
    late_loads()
    e(f"s_branch {Lj}")
    k.label(Lb)
    late_loads()
    lds, n = steps(range(5), ["n0"]*3 + ["n1"]*3, 0, 10)
    k.label(Lj)
    bstamp(k, "of")
    steps(range(5, 15), lds, n, 0)
    assert not wr
    bstamp(k, "mm")
    for q in range(10):
        e(f"ds_write_b128 v10, {vr(ACC+48+4*q,4)} offset:{(10+q)*1024}")
    e("s_waitcnt lgkmcnt(0)\ns_barrier")
    R = 128
    for w in range(4):
        for q in range(4):
            e(f"ds_read_b128 {vr(R+20*w+4*q,4)}, v15 offset:{w*SLOT + q*1024}")
        e(f"ds_read_b128 {vr(R+20*w+16,4)}, v3 offset:{w*SLOT}")
    for j in range(10):
        e(f"v_lshlrev_b32 v{ACC+2*j}, 16, v{XS+j}\nv_and_b32 v{ACC+2*j+1}, 0xffff0000, v{XS+j}")
    for w in range(4):
        e(f"s_waitcnt lgkmcnt({15-5*w})")
        for j in range(0, 20, 2):
            e(f"v_pk_add_f32 {vr(ACC+j,2)}, {vr(ACC+j,2)}, {vr(R+20*w+j,2)}")
    for j in range(10):
        e(f"v_cvt_pk_bf16_f32 v{XS+j}, v{ACC+2*j}, v{ACC+2*j+1}")
    bstamp(k, "rd")
    e(f"buffer_store_dwordx4 {vr(XS,4)}, v12, s[36:39], s43 offen")
    e(f"buffer_store_dwordx4 {vr(XS+4,4)}, v12, s[36:39], s43 offen offset:16")
    e(f"buffer_store_dwordx2 {vr(XS+8,2)}, v13, s[36:39], s43 offen")
    stamp_dump(k, 0, 9, "s2", PWS)
    e("s_endpgm")

def w160_voffs(k, dst, t):
    e = k.e
    for i in range(5):
        e(f"v_add_u32 v{t}, {64*i}, v1\nv_mul_u32_u24 v{t+1}, 6554, v{t}\nv_lshrrev_b32 v{t+1}, 16, v{t+1}")
        e(f"v_mul_u32_u24 v{t+2}, 10, v{t+1}\nv_sub_u32 v{t+2}, v{t}, v{t+2}")
        e(f"v_and_b32 v{t}, 24, v{t+1}\nv_bfe_u32 v{t+3}, v{t+1}, 1, 2\nv_add_u32 v{t}, v{t}, v{t+3}\nv_and_b32 v{t+3}, 1, v{t+1}\nv_lshl_add_u32 v{t}, v{t+3}, 2, v{t}")
        e(f"v_mul_u32_u24 v{t}, 1280, v{t}\nv_lshl_add_u32 v{dst+i}, v{t+2}, 4, v{t}")

def roleA(k, mid):
    e = k.e
    KVSLOT = 24576; KV0 = 8192
    QS = 20480; QX = 10240
    S0, S1 = 32, 48; SA = 64
    Q = [16, 24]; O = [144, 160]; P = [96, 104]; KVB = [112, 128]; KT = 176
    KL = lambda s: KVB[s]; KH = lambda s: KVB[s]+4; V0 = lambda s: KVB[s]+8; V1 = lambda s: KVB[s]+12
    AKL, AKH, AV, BKH, BV = 8, 9, 10, 11, 12
    WV = 16; XV = 21; RB = 24; ONES = 28
    FRG = 80
    AO2 = 241; RB2 = 224
    stamp(k, 0)
    e("s_bfe_u32 s8, s2, 0x20001\ns_lshl_b32 s8, s8, 3\ns_lshr_b32 s9, s2, 5\ns_add_u32 s8, s8, s9")
    e("s_and_b32 s9, s2, 1\ns_lshl_b32 s9, s9, 2\ns_bfe_u32 s32, s2, 0x20003\ns_add_u32 s9, s9, s32")
    e("s_add_u32 s11, s8, s9\ns_mul_i32 s11, s11, 3\ns_mul_i32 s32, s11, 205\ns_lshr_b32 s32, s32, 11\ns_mul_i32 s32, s32, 10\ns_sub_u32 s11, s11, s32")
    x_voffs(k, XV, 3)
    w160_voffs(k, WV, 3)
    Lw = k.newlabel("wrole")
    e(f"s_mul_i32 s12, s3, 40960\ns_mul_i32 s32, s9, 160\ns_add_u32 s12, s12, s32\ns_mov_b32 s13, {64*1280}")
    e("s_waitcnt lgkmcnt(0)")
    srd_from(k, 20, PWQ, NBYTES['wq'])
    e(f"s_mov_b64 s[18:19], -1\ns_cmp_lt_u32 s3, 2\ns_cbranch_scc1 {Lw}\ns_mov_b64 s[18:19], 1")
    for i in range(4): e(f"v_add_u32 v{WV+i}, {10240*i}, v{XV+(i&1)}")
    e(f"v_mov_b32 v{WV+4}, {HUGE}")
    e("s_lshl_b32 s33, s8, 1\ns_add_u32 s33, s33, s3\ns_sub_u32 s33, s33, 2\ns_mul_i32 s12, s33, 40960\ns_mov_b32 s13, 128")
    srd_from(k, 20, PX, NBYTES['x'])
    k.label(Lw)
    e("s_mul_i32 s34, s11, s13\ns_add_u32 s34, s34, s12\ns_mul_i32 s35, s13, 10\ns_add_u32 s35, s35, s12\ns_mul_i32 s14, s3, 5120")
    def st_issue(slot):
        L = [[f"s_add_u32 m0, s14, {slot*QS}"]]
        for i in range(5):
            g = [f"buffer_load_dwordx4 v{WV+i}, s[20:23], s34 offen lds"]
            if i < 4: g += ["s_add_u32 m0, m0, 1024"]
            else: g = ["s_mov_b64 exec, s[18:19]"] + g + ["s_mov_b64 exec, -1", "s_add_u32 s34, s34, s13", "s_cmp_eq_u32 s34, s35", "s_cselect_b32 s34, s12, s34"]
            L.append(g)
        return L
    if ADLY == 0:
        for sl in range(2): emit(k, st_issue(sl))
    mid()
    tag_setup(k)
    srd_from(k, 24, PWS, KV_BYTES, KV_OFF)
    srd_from(k, 28, PWS, AF_BYTES, AF_OFF)
    e("v_lshrrev_b32 v6, 5, v1")
    e("v_bfe_u32 v7, v1, 2, 2\nv_lshl_add_u32 v7, v6, 2, v7\nv_mul_u32_u24 v4, 320, v7")
    e("v_and_b32 v7, 1, v1\nv_lshlrev_b32 v7, 4, v7")
    e("v_bfe_u32 v8, v1, 1, 1\nv_lshl_add_u32 v7, v8, 3, v7")
    e("v_and_b32 v8, 16, v1\nv_cmp_ne_u32 vcc, 0, v8\nv_mov_b32 v8, 32\nv_cndmask_b32 v7, v7, v8, vcc")
    e("v_add_u32 v4, v4, v7\ns_mul_i32 s32, s3, 40\nv_add_u32 v4, s32, v4")
    e("v_and_b32 v8, 19, v1\nv_cmp_lt_u32 vcc, 16, v8\nv_mov_b32 v8, 0x40000\nv_cndmask_b32 v4, v4, v8, vcc")
    e("v_add_u32 v5, 40960, v4")
    x_raddr(k, RB, 7, str(QX))
    for j in range(4): e(f"v_mov_b32 v{ONES+j}, 0x3f803f80")
    e(f"v_and_b32 v7, 31, v1\nv_lshlrev_b32 v{BKH}, 3, v7\nv_add_u32 v{BKH}, 1024, v{BKH}\nv_lshl_add_u32 v{BKH}, v6, 18, v{BKH}")
    e("v_and_b32 v13, 19, v7\nv_bfe_u32 v14, v7, 2, 1\nv_lshl_add_u32 v13, v14, 3, v13\nv_bfe_u32 v14, v7, 3, 1\nv_lshl_add_u32 v13, v14, 2, v13")
    e(f"v_mul_u32_u24 v{BV}, 24, v6\nv_add_u32 v{BV}, v{BV}, v13")
    e("v_cmp_le_u32 vcc, 28, v7\nv_cndmask_b32 v13, 0, 1, vcc\nv_xor_b32 v13, v13, v6\nv_mul_u32_u24 v13, 24, v13\nv_add_u32 v13, 20, v13")
    e("v_and_b32 v15, 27, v7\nv_cmp_ne_u32 vcc, 24, v15\nv_mov_b32 v15, 0x4000\nv_cndmask_b32 v13, v13, v15, vcc")
    e(f"v_cmp_le_u32 vcc, 20, v7\nv_cndmask_b32 v{BV}, v{BV}, v13, vcc")
    e(f"v_lshlrev_b32 v{BV}, 4, v{BV}\nv_add_u32 v{BV}, 1536, v{BV}")
    c0 = KV0 + 2*KVSLOT
    e(f"v_add_u32 v{AKL}, {c0}, v2\nv_add_u32 v{AKH}, {c0}, v{BKH}\nv_add_u32 v{AV}, {c0}, v{BV}")
    e(f"s_lshr_b32 s32, s3, 1\ns_lshl_b32 s32, s32, 9\ns_and_b32 s33, s3, 1\ns_lshl_b32 s33, s33, 3\ns_add_u32 s32, s32, s33")
    e(f"v_lshl_add_u32 v{AO2}, v7, 4, s32\nv_lshl_add_u32 v{AO2}, v6, 30, v{AO2}")
    e(f"v_lshlrev_b32 v13, {KVS}, v1\nv_lshlrev_b32 v14, 3, v7")
    e(f"s_lshl_b32 s39, s8, 9\ns_add_u32 s39, s39, {STAT}\ns_lshl_b32 s38, s3, {KVS+6}\ns_add_u32 s38, s38, {KVF}\ns_mul_i32 s36, s3, 6144")
    for t in range(4): e(f"v_mov_b32 v{KT+8*t+6}, 0\nv_mov_b32 v{KT+8*t+7}, 0")
    for j in range(4): e(f"v_add_u32 v{RB2+j}, 40960, v{RB+j}")
    if ADLY == 2: tag_finish(k)
    if ADLY:
        for sl in range(2): emit(k, st_issue(sl))
    if ADLY != 2: tag_finish(k)
    stamp(k, 1)
    def kv_issue(chunk_soff, slot_base):
        L = []
        for half in range(2):
            L.append([f"s_add_u32 m0, s36, {slot_base + half*3072}", f"s_add_u32 s32, s36, {chunk_soff + half*3072}"])
            for j in range(3):
                L.append([f"buffer_load_dwordx4 v2, s[24:27], s32 offen offset:{j*1024} {SC} lds"])
        return L
    PL = 232
    kv_poll = [f"buffer_load_dword v{PL}, v13, {FL}, s38 offen {SC}"]
    pl_loads = [f"buffer_load_dwordx2 {vr(PL+2,2)}, v14, {FL}, s39 offen {SC}", f"buffer_load_dwordx2 {vr(PL+4,2)}, v14, {FL}, s39 offen offset:256 {SC}"]
    inits = []
    for j in range(8): inits += [(P[1]+j, "0"), (V0(1)+j, "0")]
    for s_ in range(2): inits += [(KH(s_)+2, "0x3f80"), (KH(s_)+3, "0")]
    for j in range(32): inits += [(O[0]+j, "0")]
    inits.sort()
    def hreads(h):
        sl = h % 4; F = FRG + 48*(h & 1); L = []
        so = (sl & 1) * QS; ta = "v5" if sl >= 2 else "v4"; rb = RB2 if sl >= 2 else RB
        for ks in range(4):
            for u in range(2): L.append(f"ds_read_b64_tr_b16 {vr(F+12*ks+2*u,2)}, {ta} offset:{so + ks*2560 + u*160}")
            for b in range(2): L.append(f"ds_read_b128 {vr(F+12*ks+4+4*b,4)}, v{rb+ks} offset:{so + b*5120}")
        return L
    e("s_waitcnt vmcnt(5)\ns_barrier")
    stamp(k, 2)
    emit(k, hreads(0))
    emit(k, st_issue(2))
    kt_loads = [["s_mov_b32 s33, 6144"]]
    for t in range(4):
        so, off = ("0", t*3072) if t < 2 else ("s33", (t-2)*3072)
        kt_loads.append([f"buffer_load_dwordx4 {vr(KT+8*t,4)}, v2, s[24:27], {so} offen offset:{off} {SC}",
                         f"buffer_load_dwordx2 {vr(KT+8*t+4,2)}, v{BKH}, s[24:27], {so} offen offset:{off} {SC}"])
    for h in range(10):
        F = FRG + 48*(h & 1)
        if h < PH:
            n = {0: 5, 7: 5, 8: 0}.get(h, 10) + (3 if h == PH - 1 else 0)
            e(f"s_waitcnt vmcnt({n}) lgkmcnt(0)")
        else:
            if h == PH: spin(k, pl_loads + kv_poll, [PL, PL+3, PL+5], 15, pre_issued=True, slp=KSL)
            e("s_waitcnt lgkmcnt(0)")
        if h < 9: e("s_barrier")
        if h == QH:
            e(f"s_lshl_b32 s32, s2, 7\ns_add_u32 s32, s32, {QF}")
            setflag(k, "s32", 242)
        rd = hreads(h+1) if h < 9 else []
        dm = st_issue(h % 4) if h < 6 else []
        if h == 0: dm = st_issue(3) + dm
        if h == PH - 2: dm = dm + [pl_loads + kv_poll]
        if h == PH: dm = kv_issue(0, KV0 + 2*KVSLOT)
        i = 0
        for ks in range(4):
            first = (h == 0 and ks == 0)
            for acc, bop in ((S0, F+12*ks+4), (S1, F+12*ks+8), (SA, ONES)):
                e(f"{MF} {vr(acc,16)}, {vr(F+12*ks,4)}, {vr(bop,4)}, {'0' if first else vr(acc,16)}")
                emit(k, rd[:2]); rd = rd[2:]
                if dm and (i >= 3 or h in (0, PH, 9)): emit(k, dm.pop(0))
                if h == 9:
                    m = 0
                    while inits and m < 3 and inits[0][0] < F + 12*ks:
                        r, v = inits.pop(0); e(f"v_mov_b32 v{r}, {v}"); m += 1
                i += 1
        emit(k, dm)
    stamp(k, 3)
    for r, v in inits: e(f"v_mov_b32 v{r}, {v}")
    for b in range(2):
        st = PL + 2 + 2*b
        e(f"v_lshlrev_b32 v{238+b}, 16, v{st}\nv_xor_b32 v{238+b}, 0x80000000, v{238+b}\nv_and_b32 v{st}, 0xffff0000, v{st}")
        e(f"v_rcp_f32 v{st}, v{st}\nv_mul_f32 v{st}, {hex(f32bits(QSCALE))}, v{st}")
    def qepi(b):
        L = []; a = S0 + 16*b
        for j in range(12): L.append(f"v_fmac_f32 v{a+j}, v{238+b}, v{SA+j}")
        for j in range(12): L.append(f"v_mul_f32 v{a+j}, v{PL+2+2*b}, v{a+j}")
        for j in range(6): L.append(f"v_cvt_pk_bf16_f32 v{Q[b]+j}, v{a+2*j}, v{a+2*j+1}")
        L += [f"v_mov_b32 v{Q[b]+6}, 0", f"v_mov_b32 v{Q[b]+7}, 0"]
        return L
    MX = [3, 5]
    sxr = lambda b, t: [[80, 208, 32, 64], [48, 80, 208, 64]][b][t]
    def mx(b, t):
        S = sxr(b, t)
        L = [f"v_max3_f32 v{MX[b]}, v{S}, v{S+1}, v{S+2}", f"v_max_f32 v{MX[b]}, v{MX[b]}, v{S+3}"] if t == 0 else []
        for j in range(4 if t == 0 else 0, 16, 2): L.append(f"v_max3_f32 v{MX[b]}, v{MX[b]}, v{S+j}, v{S+j+1}")
        return L
    def qk(b, t):
        S = sxr(b, t)
        return [f"{MF} {vr(S,16)}, {vr(KT+8*t,4)}, {vr(Q[b],4)}, 0", f"{MF} {vr(S,16)}, {vr(KT+8*t+4,4)}, {vr(Q[b]+4,4)}, {vr(S,16)}"]
    def fin(b, offs):
        L = [f"v_mov_b32 v15, v{MX[b]}", f"v_permlane32_swap_b32 v{MX[b]}, v15", f"v_max_f32 v{MX[b]}, v{MX[b]}, v15"]
        if offs: L.append(f"v_add_f32 v{MX[b]}, {hex(f32bits(offs))}, v{MX[b]}")
        L += [f"v_cvt_pk_bf16_f32 v{MX[b]}, -v{MX[b]}, 0", "v_cmp_ne_u32 vcc, 0, v6", f"v_cndmask_b32 v{Q[b]+6}, v{MX[b]}, 0, vcc"]
        return L
    def weave(mfs, vals, per, ex=None):
        for m in mfs:
            e(m)
            if ex: emit(k, ex.pop(0))
            for _ in range(per):
                if vals: e(vals.pop(0))
        for v in vals: e(v)
    e(f"s_mov_b32 s40, 0\ns_mov_b32 s41, {KV0}\ns_add_u32 s35, s36, {KV0}\ns_add_u32 s42, s35, {KVSLOT}\ns_add_u32 s43, s36, {2*KVSLOT}\ns_add_u32 s39, s35, {3*KVSLOT}")
    e("s_and_b32 s32, s9, 3\ns_mul_i32 s32, s32, 10\ns_mul_i32 s33, s8, 272\ns_add_u32 s32, s32, s33\ns_lshr_b32 s33, s9, 2\ns_mul_i32 s33, s33, 5\ns_add_u32 s32, s32, s33")
    e("s_add_u32 s16, s32, 4\ns_lshl_b32 s16, s16, 10\ns_add_u32 s12, s32, s3\ns_lshl_b32 s12, s12, 10")
    e(f"s_add_u32 s13, s12, {136*1024}\ns_add_u32 s17, s16, {136*1024}")
    e(f"s_lshl_b32 s14, s8, 3\ns_add_u32 s14, s14, s9\ns_lshl_b32 s14, s14, 7\ns_add_u32 s14, s14, {OF}")
    e("s_waitcnt vmcnt(0)\ns_barrier")
    for t in range(4):
        e(f"ds_read_b128 {vr(KT+8*t,4)}, v{AKL} offset:{t*3072}\nds_read_b64 {vr(KT+8*t+4,2)}, v{AKH} offset:{t*3072}")
    for s in range(2):
        e(f"ds_read_b128 {vr(KL(s),4)}, v{AKL} offset:{s*3072}\nds_read_b64 {vr(KH(s),2)}, v{AKH} offset:{s*3072}")
    e(f"ds_read_b128 {vr(V0(0),4)}, v{AV}\nds_read_b128 {vr(V1(0),4)}, v{AV} offset:768")
    emit(k, qepi(0))
    stamp(k, 4)
    stamp(k, 5)
    e("s_waitcnt lgkmcnt(6)")
    kv1 = kv_issue(KVSLOT, KV0)
    weave(qk(0, 0) + qk(0, 1) + qk(0, 2), qepi(1), 6, kv1)
    weave(qk(0, 3) + qk(1, 0), mx(0, 0) + mx(0, 1), 4, kv1)
    weave(qk(1, 1) + qk(1, 2), mx(0, 2) + mx(0, 3) + fin(0, OFFS), 6)
    e("s_waitcnt lgkmcnt(0)")
    weave(qk(1, 3) + [f"{MF} {vr(S0,16)}, {vr(KL(0),4)}, {vr(Q[0],4)}, 0", f"{MF} {vr(S0,16)}, {vr(KH(0),4)}, {vr(Q[0]+4,4)}, {vr(S0,16)}"],
          mx(1, 0) + [f"v_mov_b32 v{S1+12+j}, 0" for j in range(4)] + mx(1, 1) + mx(1, 2) + mx(1, 3) + fin(1, OFFS), 6)
    dma = lambda so, off: f"buffer_load_dwordx4 v2, s[24:27], {so} offen offset:{off} {SC} lds" if not NOKV else "s_nop 0"
    extra = {(1, 0): ["s_mov_b32 m0, s42"], (1, 1): ["s_add_u32 s38, s43, 4096"], (1, 3): ["s_waitcnt vmcnt(0)", "s_barrier"] if NOKV < 2 else [],
             (2, 3): [dma("s43", 0), dma("s43", 1024)], (3, 3): [dma("s43", 2048), dma("s43", 3072)],
             (4, 0): ["s_add_u32 m0, s42, 4096"], (4, 3): [dma("s38", 0), dma("s38", 1024)],
             (5, 0): [f"s_add_u32 s43, s43, {KVSLOT}"], (5, 1): ["s_add_u32 s40, s40, 1"], (5, 2): [f"s_add_u32 s37, s42, {KVSLOT}"],
             (6, 0): ["s_cmp_eq_u32 s37, s39"], (6, 1): ["s_cselect_b32 s37, s35, s37"],
             (7, 0): ["s_sub_u32 s41, s42, s36"], (7, 1): ["s_mov_b32 s42, s37"],
             (7, 2): ["s_cmp_lt_u32 s40, 8"]}
    e("s_setprio 1")
    stamp(k, 6)
    stamp(k, 7)
    Lloop = k.newlabel("att")
    k.label(Lloop, 6)
    def cv(S, Pb, g):
        return [f"v_cvt_pk_bf16_f32 v{Pb+2*g}, v{S+4*g}, v{S+4*g+1}", f"v_cvt_pk_bf16_f32 v{Pb+2*g+1}, v{S+4*g+2}, v{S+4*g+3}"]
    for jj in range(8):
        for blk in range(2):
            Sc, Sn = (S0, S1) if blk == 0 else (S1, S0)
            valu = []
            for g in range(4):
                for j in range(4): valu.append(f"v_exp_f32{E64} v{Sc+4*g+j}, v{Sc+4*g+j}")
                valu += cv(Sn, P[1-blk], 3) if g == 0 else cv(Sc, P[blk], g-1)
            ks = (jj + blk) & 1; vs = (jj - 1 + blk) & 1; nb = 1 - blk
            ko = ((jj + 2) % 8) * 3072; vo = ((jj + 1) % 8) * 3072
            mf = [[f"{MF} {vr(O[nb],16)}, {vr(V0(vs),4)}, {vr(P[nb],4)}, {vr(O[nb],16)}"],
                  [f"{MF} {vr(Sn,16)}, {vr(KL(ks),4)}, {vr(Q[nb],4)}, 0"],
                  [f"{MF} {vr(Sn,16)}, {vr(KH(ks),4)}, {vr(Q[nb]+4,4)}, {vr(Sn,16)}"],
                  [f"{MF} {vr(O[nb],16)}, {vr(V1(vs),4)}, {vr(P[nb]+4,4)}, {vr(O[nb],16)}"]]
            if blk == 0:
                mf[2].append("s_waitcnt lgkmcnt(0)")
                mf[3].append(f"ds_read_b128 {vr(KL(ks),4)}, v{AKL} offset:{ko}")
                mf[3].append(f"ds_read_b64 {vr(KH(ks),2)}, v{AKH} offset:{ko}")
            else:
                mf[3].append(f"ds_read_b128 {vr(V0(1-vs),4)}, v{AV} offset:{vo}")
                mf[3].append(f"ds_read_b128 {vr(V1(1-vs),4)}, v{AV} offset:{vo+768}")
                if jj == 5: valu.append(f"v_add_u32 v{AKL}, s41, v2"); valu.append(f"v_add_u32 v{AKH}, s41, v{BKH}")
                if jj == 6: valu.append(f"v_add_u32 v{AV}, s41, v{BV}")
                for m in range(4): mf[m] += extra.get((jj, m), [])
            for i, v in enumerate(valu):
                for m in range(4):
                    if PATTERN[m] == i: emit(k, mf[m])
                e(v)
    e(f"s_cbranch_scc1 {Lloop}")
    emit(k, cv(S1, P[1], 3))
    e(f"{MF} {vr(O[1],16)}, {vr(V0(1),4)}, {vr(P[1],4)}, {vr(O[1],16)}")
    e(f"{MF} {vr(O[1],16)}, {vr(V1(1),4)}, {vr(P[1]+4,4)}, {vr(O[1],16)}")
    stamp(k, 8)
    e("s_mov_b32 s40, 0\ns_setprio 3")
    Lout = k.newlabel("out"); Lslow = k.newlabel("slow"); Lpub = k.newlabel("pub")
    k.label(Lout)
    PK = 224; A0 = 208
    for b in range(2):
        e(f"v_rcp_f32 v{A0+b}, v{O[b]+12}")
        e(f"v_mul_f32 v{A0+b}, {hex(f32bits(1/LOG2E))}, v{A0+b}")
        for j in range(12): e(f"v_mul_f32 v{O[b]+j}, v{O[b]+j}, v{A0+b}")
        for j in range(6): e(f"v_cvt_pk_bf16_f32 v{PK+8*b+j}, v{O[b]+2*j}, v{O[b]+2*j+1}")
        e(f"buffer_store_dwordx4 {vr(PK+8*b,4)}, v2, s[28:31], s{12+b} offen {SC}")
        e(f"buffer_store_dwordx2 {vr(PK+8*b+4,2)}, v{AO2}, s[28:31], s{16+b} offen {SC}")
    e(f"v_mul_f32 v{A0+2}, 0, v{O[0]+12}\nv_mul_f32 v{A0+3}, 0, v{O[1]+12}")
    for j in range(12):
        for b in range(2): e(f"v_fma_f32 v{A0+2+b}, v{O[b]+j}, 0, v{A0+2+b}")
    e(f"v_cmp_u_f32 vcc, v{A0+2}, v{A0+3}")
    e(f"s_cmp_lg_u32 s40, 0\ns_cbranch_scc1 {Lpub}")
    e(f"s_cmp_lg_u64 vcc, 0\ns_cbranch_scc1 {Lslow}")
    k.label(Lpub)
    if WF:
        e(f"v_mov_b32 v16, {TAG}\ns_lshl_b32 s32, s3, 2\nv_mov_b32 v17, s32\ns_mov_b64 exec, 1\ns_waitcnt vmcnt(0)")
        e(f"buffer_store_dword v16, v17, {FL}, s14 offen {SC}\ns_mov_b64 exec, -1")
    else:
        e("s_waitcnt vmcnt(0)\ns_barrier")
        setflag(k, "s14", 16, "A")
    Lx = k.newlabel("axit")
    e(f"s_or_b32 s32, s2, s3\ns_cmp_lg_u32 s32, 0\ns_cbranch_scc1 {Lx}")
    e(f"v_lshlrev_b32 v13, 7, v1")
    ld = []
    for i in range(8): ld += [f"s_mov_b32 s38, {HF + 8192*i}", f"buffer_load_dword v{16+i}, v13, {FL}, s38 offen {SC}"]
    if not ONLY: spin(k, ld, list(range(16, 24)), 24)
    setflag(k, "0", 16)
    if LEAK:
        for i in range(8):
            e(f"s_mov_b32 s75, {HF + 8192*i}\nbuffer_load_dwordx2 {vr(32+2*i,2)}, v13, {FL}, s75 offen offset:8 {SC}")
        e("s_waitcnt vmcnt(0)")
        for i in range(16): e(f"v_subrev_u32 v{32+i}, s86, v{32+i}")
        for i in range(1, 8): e(f"v_min_i32 v32, v32, v{32+2*i}\nv_max_i32 v33, v33, v{33+2*i}")
        e("s_mov_b32 s40, 0x7fffffff\ns_mov_b32 s41, 0x80000000")
        for l in range(64):
            e(f"v_readlane_b32 s42, v32, {l}\nv_readlane_b32 s43, v33, {l}\ns_min_i32 s40, s40, s42\ns_max_i32 s41, s41, s43")
        e("s_sub_u32 s41, s41, s40\ns_mul_i32 s41, s41, 4\ns_add_u32 s41, s41, 10000\ns_add_u32 s40, s40, s86")
        Ls = k.newlabel("spin"); k.label(Ls)
        e("s_memrealtime s[42:43]\ns_waitcnt lgkmcnt(0)\ns_sub_u32 s42, s42, s40")
        e(f"s_cmp_lt_u32 s42, s41\ns_cbranch_scc1 {Ls}")
    k.label(Lx)
    stamp_dump(k, 1, 9, "s2", PWS)
    e("s_endpgm")
    k.label(Lslow)
    e("s_waitcnt vmcnt(0) lgkmcnt(0)")
    e(f"s_mov_b32 s40, 1\ns_mov_b32 s41, 0\nv_mov_b32 v{Q[0]+6}, 0\nv_mov_b32 v{Q[1]+6}, 0")
    e(f"v_mov_b32 v{MX[0]}, 0xff800000\nv_mov_b32 v{MX[1]}, 0xff800000")
    def kload():
        e(f"buffer_load_dwordx4 {vr(KL(0),4)}, v2, s[24:27], s41 offen {SC}")
        e(f"buffer_load_dwordx2 {vr(KH(0),2)}, v{BKH}, s[24:27], s41 offen {SC}")
    def qk2():
        for b in range(2):
            S = S0 + 16*b
            e(f"{MF} {vr(S,16)}, {vr(KL(0),4)}, {vr(Q[b],4)}, 0\n{MF} {vr(S,16)}, {vr(KH(0),4)}, {vr(Q[b]+4,4)}, {vr(S,16)}")
    L1 = k.newlabel("sl1"); k.label(L1)
    kload(); e("s_waitcnt vmcnt(0)"); qk2()
    for b in range(2):
        for j in range(0, 16, 2): e(f"v_max3_f32 v{MX[b]}, v{MX[b]}, v{S0+16*b+j}, v{S0+16*b+j+1}")
    e(f"s_add_u32 s41, s41, 3072\ns_cmp_lt_u32 s41, {KV_BYTES}\ns_cbranch_scc1 {L1}")
    for b in range(2): emit(k, fin(b, 0))
    for j in range(32): e(f"v_mov_b32 v{O[0]+j}, 0")
    e("s_mov_b32 s41, 0")
    L2 = k.newlabel("sl2"); k.label(L2)
    kload()
    e(f"buffer_load_dwordx4 {vr(V0(0),4)}, v{BV}, s[24:27], s41 offen {SC}")
    e(f"buffer_load_dwordx4 {vr(V1(0),4)}, v{BV}, s[24:27], s41 offen offset:768 {SC}")
    e("s_waitcnt vmcnt(0)"); qk2()
    for b in range(2):
        S = S0 + 16*b
        for j in range(16): e(f"v_exp_f32 v{S+j}, v{S+j}")
        for g in range(4): emit(k, cv(S, P[b], g))
        e(f"{MF} {vr(O[b],16)}, {vr(V0(0),4)}, {vr(P[b],4)}, {vr(O[b],16)}")
        e(f"{MF} {vr(O[b],16)}, {vr(V1(0),4)}, {vr(P[b]+4,4)}, {vr(O[b],16)}")
    e(f"s_add_u32 s41, s41, 3072\ns_cmp_lt_u32 s41, {KV_BYTES}\ns_cbranch_scc1 {L2}")
    e("s_nop 12")
    e(f"s_branch {Lout}")

def gen_mega(name="parallel_sum__grouped_kv_mqa__swiglu_ffn__prompt_kernel"):
    k = Kernel(name); e = k.e
    LA = k.newlabel("roleA"); LB = k.newlabel("roleB")
    e("s_load_dwordx16 s[48:63], s[0:1], 0\ns_load_dwordx8 s[64:71], s[0:1], 64")
    e("v_and_b32 v1, 63, v0\nv_lshrrev_b32 v2, 6, v0\nv_readfirstlane_b32 s3, v2\nv_lshlrev_b32 v2, 4, v1")
    Lgo = k.newlabel("go")
    e(f"s_cmp_lt_u32 s2, 256\ns_cbranch_scc1 {LB}\ns_cmp_lt_u32 s2, 512\ns_cbranch_scc1 {Lgo}\ns_endpgm")
    def body_b():
        k.label(LB)
        e("s_setprio 3")
        roleB(k)
    if HEAD:
        k.label(Lgo)
        if ONLY == "B": e("s_endpgm")
        e(f"s_sub_u32 s2, s2, 256\ns_setprio {AP0}")
        def mid():
            e(f"s_branch {LA}")
            body_b()
            k.label(LA, 6)
        roleA(k, mid)
    else:
        body_b()
        k.label(Lgo, 6)
        if ONLY == "B": e("s_endpgm")
        e(f"s_sub_u32 s2, s2, 256\ns_setprio {AP0}")
        roleA(k, lambda: None)
    k.label(f"{k.name}_end")
    k.lds = 81920; k.grid = 512; k.block = 256
    return k

if __name__ == "__main__":
    import sys
    from build import emit as emit_file
    emit_file([gen_mega()], sys.argv[1] if len(sys.argv) > 1 else "parallel_sum__grouped_kv_mqa__swiglu_ffn__prompt.s")
```

```python
from asmgen import *
from common import KA, NBYTES, f32bits, srd_from, stamp, stamp_dump, STAMPS
import math, os

MF = "v_mfma_f32_32x32x16_bf16"
LOG2E = math.log2(math.e)
QSCALE = (20 ** -0.5) * float(os.environ.get("QEPS", 1.0))
env = lambda n, d: type(d)(os.environ.get(n, d))
OFFS = env('OFFS', 96.0)
PATTERN = [int(x) for x in env('APAT', '2,6,9,13').split(',')]
BST = env("BST", 0); ONLY = env("ONLY", "")
P0B = env("P0B", 14); PKD = env("PKD", 0); ADLY = env("ADLY", 2); E64 = env("E64", ""); TP = env("TP", 0); QH = env("QH", 3); OM = env("OM", ""); HEAD = env("HEAD", 1); PKS = env("PKS", 1); WF = env("WF", 0); KVS = env("KVS", 2); PH = env("PH", 7); LATE = env("LATE", 0); NOKV = env("NOKV", 0); KSL = env("KSL", 4); BSL = env("BSL", 8); BP0 = env("BP0", 0); GP0 = env("GP0", 0); GP1 = env("GP1", 2); GSW = env("GSW", -1); CPF = env("CPF", 1); DP = env("DP", 0); AP0 = env("AP0", 2)
STAT = 0x1000; PKF = 0x800; HF = 0x9000; OF = 0x11000; KVF = 0xE80000; XNF = 0xE88000; QF = 0xE90000; FL_BYTES = 0xE98000
KV_OFF = 0x20000;  KV_BYTES = 64*3072
WP_OFF = 0x50000;  WP_BYTES = 8*136*2560
AF_OFF = 0x300000; AF_BYTES = 64*136*1024
XN_OFF = 0xC00000; XN_BYTES = 64*40*1024
PX, PWQ, PWK, PWV, PWO, PWG, PWU, PWD, POUT, PWS = 48, 50, 52, 54, 56, 60, 62, 64, 66, 70
TAG = "s73"; BUD = "s74"; FLS = 44; SC = "sc1"
FL = f"s[{FLS}:{FLS+3}]"
HUGE = "0x7ff00000"

def bstamp(k, name):
    m0 = dict(start=0, xl=1, xs=2, xf=3, p0=4, gu0=5, gu1=6, dn0=7, dn1=8)
    m1 = dict(start=0, p0=1, gu0=2, gu1=3, dn0=4, dn1=5, of=6, mm=7, rd=8)
    m = m1 if BST else m0
    if name in m: stamp(k, m[name])

def emit(k, lst):
    for x in lst:
        if isinstance(x, list): emit(k, x)
        else: k.e(x)

def spin(k, loads, regs, vt, pre_issued=False, slp=1):
    e = k.e
    Lp = k.newlabel("poll"); Ld = k.newlabel("pdone"); Lc = k.newlabel("pchk")
    if pre_issued: e(f"s_branch {Lc}")
    k.label(Lp)
    emit(k, loads)
    k.label(Lc)
    e("s_waitcnt vmcnt(0)")
    e(f"v_xor_b32 v{vt}, {TAG}, v{regs[0]}")
    for r in regs[1:]:
        e(f"v_xor_b32 v{r}, {TAG}, v{r}\nv_or_b32 v{vt}, v{vt}, v{r}")
    e(f"v_cmp_ne_u32 vcc, 0, v{vt}")
    e(f"s_cmp_eq_u64 vcc, 0\ns_cbranch_scc1 {Ld}")
    e(f"s_sub_u32 {BUD}, {BUD}, 1\ns_cbranch_scc1 {Ld}")
    e(f"s_sleep {slp}\ns_branch {Lp}")
    k.label(Ld)

LEAK = os.environ.get("LEAK")
def setflag(k, soffs, vt, leak=None):
    e = k.e
    L = k.newlabel("nofl")
    e(f"s_cmp_lg_u32 s3, 0\ns_cbranch_scc1 {L}")
    if LEAK and leak is not None:
        role, idx = LEAK[0], int(LEAK[1:])
        sel = f"s{86+idx}" if role == leak else "s86"
        e(f"v_mov_b32 v{vt}, s86\nv_mov_b32 v{vt+1}, {sel}\nv_mov_b32 v{vt+2}, 0\ns_mov_b64 exec, 1")
        e(f"buffer_store_dwordx2 {vr(vt,2)}, v{vt+2}, {FL}, {soffs} offen offset:8 {SC}")
        e("s_waitcnt vmcnt(0)\ns_mov_b64 exec, -1")
    e(f"v_mov_b32 v{vt}, {TAG}\nv_mov_b32 v{vt+1}, 0\ns_mov_b64 exec, 1")
    for so in (soffs if isinstance(soffs, list) else [soffs]):
        e(f"buffer_store_dword v{vt}, v{vt+1}, {FL}, {so} offen {SC}")
    e("s_mov_b64 exec, -1")
    k.label(L)

def tag_setup(k):
    k.e(f"s_load_dword s72, s[{PWS}:{PWS+1}], 0")
    srd_from(k, FLS, PWS, FL_BYTES)
    k.e(f"s_mov_b32 {BUD}, 200000")
def tag_finish(k):
    k.e(f"s_waitcnt lgkmcnt(0)\ns_mul_i32 {TAG}, s72, 1664525\ns_add_u32 {TAG}, {TAG}, 1013904223")

def x_voffs(k, dst, t):
    e = k.e
    e(f"v_lshrrev_b32 v{t}, 3, v1\nv_mul_u32_u24 v{t}, 1280, v{t}")
    e(f"v_and_b32 v{t+1}, 7, v1\nv_lshrrev_b32 v{t+2}, 4, v1\nv_xor_b32 v{t+1}, v{t+1}, v{t+2}")
    e(f"v_lshl_add_u32 v{dst}, v{t+1}, 4, v{t}\nv_xor_b32 v{dst+1}, 64, v{dst}")
def x_raddr(k, dst, t, base):
    e = k.e
    e(f"v_and_b32 v{t}, 31, v1\nv_bfe_u32 v{t+1}, v1, 1, 3\nv_lshrrev_b32 v{t+2}, 5, v1\nv_xor_b32 v{t+1}, v{t+1}, v{t+2}")
    e(f"v_lshlrev_b32 v{t}, 7, v{t}\nv_lshl_add_u32 v{t}, v{t+1}, 4, v{t}")
    for ks in range(4):
        e(f"v_xor_b32 v{t+1}, {ks*32}, v{t}\nv_add_u32 v{dst+ks}, {base}, v{t+1}")

def phase0(k):
    e = k.e
    e("v_and_b32 v3, 15, v1\nv_lshrrev_b32 v4, 4, v1")
    e("s_mul_i32 s12, s4, 20480\ns_mul_i32 s13, s3, 320\ns_add_u32 s12, s12, s13")
    e("v_mul_u32_u24 v5, 1280, v3\nv_lshl_add_u32 v5, v4, 4, v5")
    e("s_mul_i32 s14, s3, 6400\ns_mul_i32 s15, s3, 7168\ns_add_u32 s37, s14, 4096")
    e("s_waitcnt lgkmcnt(0)")
    srd_from(k, 16, PX, NBYTES['x'])
    X = 16
    for i in range(5):
        e(f"buffer_load_dwordx4 {vr(X+4*i,4)}, v5, s[16:19], s12 offen offset:{64*i}")
    tag_setup(k)
    e(f"s_cmp_eq_u32 s11, 0\ns_cselect_b32 s20, s{PWK}, s{PWV}\ns_cselect_b32 s21, s{PWK+1}, s{PWV+1}")
    e(f"s_mov_b32 s22, {hex(NBYTES['wk'])}\ns_mov_b32 s23, 0x20000\ns_mov_b32 m0, s15")
    for j in range(7):
        if j == 4: e("s_add_u32 m0, s15, 4096")
        e(f"buffer_load_dwordx4 v2, s[20:23], {'s14' if j < 4 else 's37'} offen offset:{(j%4)*1024} lds")
    srd_from(k, 28, PWS, XN_BYTES, XN_OFF)
    srd_from(k, 32, PWS, KV_BYTES, KV_OFF)
    e("v_mov_b32 v8, 0\nv_mov_b32 v9, 0\nv_mov_b32 v10, 0\nv_mov_b32 v11, 0")
    e("s_mov_b32 s38, 0x3f803f80")
    LST = 28672; RED = LST + 512
    e(f"s_lshl_b32 s39, s3, 7\ns_add_u32 s39, s39, {LST}")
    e("v_lshl_add_u32 v12, v3, 3, s39\nv_lshlrev_b32 v13, 3, v3")
    e("v_lshrrev_b32 v14, 2, v3\nv_lshl_add_u32 v14, v4, 3, v14\nv_mul_u32_u24 v14, 40, v14")
    e("v_and_b32 v15, 3, v1\nv_lshl_add_u32 v14, v15, 3, v14\nv_add_u32 v14, s15, v14")
    e(f"s_lshl_b32 s36, s4, 7\ns_add_u32 s36, s36, {STAT}")
    e("s_lshr_b32 s40, s4, 1\ns_mul_i32 s41, s40, 40960\ns_and_b32 s42, s4, 1")
    e("s_lshl_b32 s43, s42, 8\ns_add_u32 s41, s41, s43\ns_mul_i32 s43, s3, 10240\ns_add_u32 s41, s41, s43")
    e("v_lshlrev_b32 v5, 9, v4\nv_lshl_add_u32 v5, v3, 4, v5")
    e(f"s_lshl_b32 s39, s3, 11\ns_add_u32 s39, s39, {RED}\nv_add_u32 v92, s39, v2\ns_mul_i32 s39, s40, 3072")
    e(f"s_lshl_b32 s43, s4, 1\ns_add_u32 s43, s43, s11\ns_lshl_b32 s75, s43, 7\ns_add_u32 s75, s75, {XNF}\ns_lshl_b32 s43, s43, {KVS}\ns_add_u32 s43, s43, {KVF}")
    Lv, Lst = k.newlabel("v"), k.newlabel("st")
    e("v_lshl_add_u32 v7, s42, 4, v3\nv_and_b32 v15, 1, v4\nv_lshrrev_b32 v6, 1, v4\nv_mov_b32 v95, 0x7fffffff")
    e(f"s_mov_b64 s[24:25], 0\ns_cmp_lg_u32 s11, 0\ns_cbranch_scc1 {Lv}")
    e("v_lshl_add_u32 v93, v6, 5, v7\nv_lshlrev_b32 v93, 4, v93\nv_lshl_add_u32 v93, v15, 3, v93")
    e("v_lshlrev_b32 v94, 3, v7\nv_add_u32 v94, 1024, v94\nv_cmp_ne_u32 vcc, 0, v4")
    e(f"s_branch {Lst}")
    k.label(Lv)
    e("s_mul_i32 s26, s42, 768\ns_add_u32 s26, s26, 1536\ns_mov_b32 s24, 0x00100010\ns_mov_b32 s25, 0x00100010")
    e("v_mul_u32_u24 v93, 384, v15\nv_lshl_add_u32 v93, v3, 4, v93\nv_lshl_add_u32 v93, v6, 3, v93\nv_add_u32 v93, s26, v93")
    e("v_add_u32 v94, 256, v93\nv_cmp_lt_u32 vcc, 4, v3")
    k.label(Lst)
    e("v_cndmask_b32 v94, v94, v95, vcc\nv_mov_b32 v95, 0x3f803f80")
    tag_finish(k)
    for i in range(5):
        e(f"s_waitcnt vmcnt({11 - i})")
        for d in range(4*i, 4*i+4):
            a = 8 + (d & 1); q = 10 + (d & 1)
            e(f"v_dot2_f32_bf16 v{a}, v{X+d}, s38, v{a}")
            e(f"v_dot2_f32_bf16 v{q}, v{X+d}, v{X+d}, v{q}")
    bstamp(k, "xl")
    e("v_add_f32 v8, v8, v9\nv_add_f32 v9, v10, v11")
    for sw in ("v_permlane32_swap_b32", "v_permlane16_swap_b32"):
        e("v_mov_b32 v10, v8\nv_mov_b32 v11, v9")
        e(f"{sw} v8, v10\n{sw} v9, v11")
        e("v_add_f32 v8, v8, v10\nv_add_f32 v9, v9, v11")
    e("ds_write_b64 v12, v[8:9]")
    U = 96; W = 136
    for d in range(20):
        e(f"v_lshlrev_b32 v{U+2*d}, 16, v{X+d}\nv_and_b32 v{U+2*d+1}, 0xffff0000, v{X+d}")
        if d == 1:
            e("s_waitcnt lgkmcnt(0)\ns_barrier")
            for w in range(4): e(f"ds_read_b64 {vr(36+2*w,2)}, v13 offset:{LST+128*w}")
    e("s_waitcnt lgkmcnt(0) vmcnt(0)")
    for i in range(5):
        for tl in range(2):
            for u in range(2):
                e(f"ds_read_b64_tr_b16 {vr(W+8*i+4*tl+2*u,2)}, v14 offset:{i*1280 + u*160 + tl*32}")
    e("v_add_f32 v8, v36, v38\nv_add_f32 v9, v37, v39\nv_add_f32 v10, v40, v42\nv_add_f32 v11, v41, v43")
    e("v_add_f32 v8, v8, v10\nv_add_f32 v9, v9, v11")
    inv = hex(f32bits(1.0/640))
    e(f"v_mul_f32 v8, {inv}, v8\nv_mul_f32 v9, {inv}, v9")
    e("v_fma_f32 v9, -v8, v8, v9\nv_max_f32 v9, 0, v9")
    e("v_cvt_pk_bf16_f32 v10, v8, v9")
    e("v_lshlrev_b32 v8, 16, v10\nv_and_b32 v9, 0xffff0000, v10")
    e(f"v_add_f32 v9, {hex(f32bits(1e-5))}, v9")
    e("v_cvt_pk_bf16_f32 v9, v9, v9\nv_and_b32 v9, 0xffff0000, v9")
    e("v_sqrt_f32 v9, v9")
    e("v_cvt_pk_bf16_f32 v6, v8, v9")
    e(f"v_mov_b32 v7, {TAG}\nv_and_b32 v9, 0xffff0000, v6")
    Lns = k.newlabel("nost")
    e(f"s_lshl_b32 s26, s11, 2\ns_add_u32 s26, s26, s3\ns_cmp_lg_u32 s26, 7\ns_cbranch_scc1 {Lns}")
    e(f"s_mov_b64 exec, 0xffff\nbuffer_store_dwordx2 v[6:7], v13, {FL}, s36 offen {SC}\ns_mov_b64 exec, -1")
    k.label(Lns)
    e("v_rcp_f32 v10, v9")
    e(f"v_mul_f32 v10, {hex(f32bits(LOG2E))}, v10")
    e("v_mul_f32 v11, v8, v10")
    ACC = 44
    for d in range(20):
        u = U + 2*d
        e(f"v_fma_f32 v{u}, v{u}, v10, -v11\nv_fma_f32 v{u+1}, v{u+1}, v10, -v11")
        if d >= 1: e(f"v_cvt_pk_bf16_f32 v{X+d-1}, v{u-2}, v{u-1}")
    e(f"v_cvt_pk_bf16_f32 v{X+19}, v{U+38}, v{U+39}")
    Lmv, Lmd = k.newlabel("mv"), k.newlabel("md")
    e(f"s_waitcnt lgkmcnt(0)\ns_cmp_lg_u32 s11, 0\ns_cbranch_scc1 {Lmv}")
    def xst(i): return f"buffer_store_dwordx4 {vr(X+4*i,4)}, v5, s[28:31], s26 offen offset:{(i%2)*2048} {SC}"
    for m in range(2):
        if m: k.label(Lmv)
        for i in range(5):
            for tl in range(2):
                wf = vr(W+8*i+4*tl, 4); xf = vr(X+4*i, 4); acc = vr(ACC+4*tl, 4)
                a, b = (wf, xf) if m == 0 else (xf, wf)
                e(f"v_mfma_f32_16x16x32_bf16 {acc}, {a}, {b}, {'0' if i == 0 else acc}")
        if m == 0: e(f"s_branch {Lmd}")
    k.label(Lmd)
    bstamp(k, "xs")
    for tl in range(2):
        e(f"ds_write_b128 v92, {vr(ACC+4*tl,4)} offset:{tl*1024}")
    e("s_waitcnt lgkmcnt(0)\ns_barrier")
    Lx = k.newlabel("xst")
    e(f"s_cmp_lg_u32 s3, 0\ns_cbranch_scc1 {Lx}")
    R = 52
    for tl in range(2):
        for w in range(1, 4):
            e(f"ds_read_b128 {vr(R+16*tl+4*w,4)}, v92 offset:{w*2048 + tl*1024}")
    for tl in range(2):
        e(f"s_waitcnt lgkmcnt({3 - 3*tl})")
        r = R + 16*tl; c = ACC + 4*tl
        for j in range(4):
            e(f"v_add_f32 v{c+j}, v{c+j}, v{r+4+j}\nv_add_f32 v{r+8+j}, v{r+8+j}, v{r+12+j}\nv_add_f32 v{c+j}, v{c+j}, v{r+8+j}")
        e(f"v_cvt_pk_bf16_f32 v{8+2*tl}, v{c}, v{c+1}\nv_cvt_pk_bf16_f32 v{9+2*tl}, v{c+2}, v{c+3}")
        if tl: e("v_cndmask_b32 v10, v10, v95, s[24:25]\nv_cndmask_b32 v11, v11, v95, s[24:25]")
        e(f"buffer_store_dwordx2 {vr(8+2*tl,2)}, v{93+tl}, s[32:35], s39 offen {SC}")
    k.label(Lx)
    L1, L2 = k.newlabel("x1"), k.newlabel("x2")
    e(f"s_cmp_lg_u32 s11, 0\ns_cbranch_scc1 {L1}")
    e("s_mov_b32 s26, s41"); e(xst(0)); e(xst(1)); e("s_add_u32 s26, s41, 4096"); e(xst(2))
    e(f"s_branch {L2}")
    k.label(L1)
    e("s_add_u32 s26, s41, 4096"); e(xst(3)); e("s_add_u32 s26, s41, 8192"); e(xst(4))
    k.label(L2)
    bstamp(k, "xf")

def roleB(k):
    e = k.e
    SLOT = 20480
    GW, RA, RB = 216, 221, 224
    ACC = 32; FR = [176, 196]
    Lgu = k.newlabel("gu0"); Lpk = k.newlabel("pk")
    bstamp(k, "start")
    e("s_and_b32 s5, s2, 7\ns_lshr_b32 s6, s2, 3")
    def tile_ids():
        e("s_lshr_b32 s7, s5, 1\ns_lshl_b32 s7, s7, 2\ns_lshr_b32 s8, s6, 3\ns_add_u32 s7, s7, s8")
        e("s_and_b32 s9, s5, 1\ns_lshl_b32 s8, s9, 3\ns_and_b32 s10, s6, 7\ns_add_u32 s8, s8, s10\ns_lshl_b32 s11, s7, 1\ns_add_u32 s9, s9, s11")
    def gu_vsetup(t):
        e("s_and_b32 s11, s3, 2")
        for i in range(3):
            e(f"v_add_u32 v{t}, {64*i}, v1\nv_mul_u32_u24 v{t+1}, 5462, v{t}\nv_lshrrev_b32 v{t+1}, 16, v{t+1}")
            e(f"v_mul_u32_u24 v{t+2}, 12, v{t+1}\nv_sub_u32 v{t+2}, v{t}, v{t+2}\nv_xor_b32 v{t+2}, s11, v{t+2}")
            e(f"v_mul_u32_u24 v{t+1}, 3072, v{t+1}\nv_lshl_add_u32 v{GW+i}, v{t+2}, 4, v{t+1}")
    def gu_vsetup2(t):
        e(f"v_lshrrev_b32 v{t}, 5, v1\nv_bfe_u32 v{t+1}, v1, 2, 2\nv_lshl_add_u32 v{t+1}, v{t}, 3, v{t+1}\nv_mul_u32_u24 v{t+1}, 192, v{t+1}")
        e(f"v_and_b32 v{t+2}, 1, v1\nv_lshl_add_u32 v{t+1}, v{t+2}, 4, v{t+1}\nv_bfe_u32 v{t+2}, v1, 1, 1\nv_lshl_add_u32 v{t+1}, v{t+2}, 3, v{t+1}")
        e(f"v_bfe_u32 v{t+2}, v1, 4, 1\nv_mul_u32_u24 v{t+3}, 6144, v{t+2}\nv_add_u32 v{t+1}, v{t+1}, v{t+3}")
        e("s_lshr_b32 s11, s3, 1\ns_mul_i32 s11, s11, 3")
        for a in range(3):
            e(f"v_xor_b32 v{t+3}, s11, v{t+2}\nv_lshl_add_u32 v{RA+a}, v{t+3}, 5, v{t+1}\ns_add_u32 s11, s11, 1")
        e(f"s_and_b32 s11, s3, 1\ns_lshl_b32 s11, s11, 12\ns_add_u32 s11, s11, 12288\nv_add_u32 v{RB}, s11, v2")
        e(f"v_and_b32 v{RB+1}, 3, v1\nv_lshlrev_b32 v{RB+1}, 7, v{RB+1}")
    def zero_acc():
        for j in range(96): e(f"v_mov_b32 v{ACC+j}, 0")
    def gu_ssetup():
        e("s_lshr_b32 s38, s3, 1\ns_and_b32 s39, s3, 1\ns_mul_i32 s40, s38, 3")
        srd_from(k, 16, PWS, XN_BYTES, XN_OFF)
        e(f"s_cmp_eq_u32 s38, 0\ns_cselect_b32 s20, s{PWG}, s{PWU}\ns_cselect_b32 s21, s{PWG+1}, s{PWU+1}")
        e(f"s_mov_b32 s22, {hex(NBYTES['wg'])}\ns_mov_b32 s23, 0x20000")
        e("s_mul_i32 s12, s39, 49152\ns_mul_i32 s32, s8, 192\ns_add_u32 s12, s12, s32")
        e(f"s_lshl_b32 s32, s7, 2\ns_add_u32 s32, s32, s3\ns_mul_i32 s13, s32, 40960\ns_lshl_b32 s42, s32, 9\ns_add_u32 s42, s42, {XNF}")
        e("s_mul_i32 s14, s3, 3072\ns_lshl_b32 s15, s3, 11\ns_add_u32 s15, s15, 12288")
    def issueW(sl):
        return [[f"s_add_u32 m0, s14, {sl*SLOT}"],
                [f"buffer_load_dwordx4 v{GW}, s[20:23], s12 offen lds", "s_add_u32 m0, m0, 1024"],
                [f"buffer_load_dwordx4 v{GW+1}, s[20:23], s12 offen lds", "s_add_u32 m0, m0, 1024"],
                [f"buffer_load_dwordx4 v{GW+2}, s[20:23], s12 offen lds", f"s_add_u32 s12, s12, {32*3072}"]]
    def issueX(sl):
        return [[f"s_add_u32 m0, s15, {sl*SLOT}"],
                [f"buffer_load_dwordx4 v2, s[16:19], s13 offen {SC} lds"],
                [f"buffer_load_dwordx4 v2, s[16:19], s13 offen offset:1024 {SC} lds", "s_add_u32 s13, s13, 2048"]]
    xn_poll = [f"buffer_load_dword v16, v{RB+1}, {FL}, s42 offen {SC}"]
    e("s_lshl_b32 s4, s5, 4\ns_lshr_b32 s11, s6, 1\ns_add_u32 s4, s4, s11\ns_and_b32 s11, s6, 1")
    def pre():
        tile_ids(); gu_vsetup(232); gu_vsetup2(232)
    if CPF:
        Lc = k.newlabel("nocp"); Lh = k.newlabel("here")
        e(f"s_cmp_lg_u32 s6, 31\ns_cbranch_scc1 {Lc}")
        e("s_getpc_b64 s[34:35]")
        k.label(Lh)
        e(f"s_sub_u32 s34, s34, {Lh}-{k.name}\ns_subb_u32 s35, s35, 0")
        e(f"v_lshlrev_b32 v9, 7, v0\nv_min_u32 v9, {k.name}_end-{k.name}-4, v9")
        e("global_load_dword v255, v9, s[34:35]")
        k.label(Lc)
    phase0(k)
    pre()
    gu_ssetup()
    zero_acc()
    e("s_waitcnt vmcnt(2)")
    setflag(k, "s43", 10)
    Lw0 = k.newlabel("w0")
    e(f"s_waitcnt vmcnt(1)\ns_cmp_eq_u32 s3, 0\ns_cbranch_scc1 {Lw0}\ns_waitcnt vmcnt(0)")
    k.label(Lw0)
    e("s_barrier")
    setflag(k, "s75", 10)
    e(f"s_setprio {BP0}\ns_mov_b32 s11, {HUGE}")
    e(f"s_lshl_b32 s41, s2, 7\ns_add_u32 s41, s41, {QF}\nv_mov_b32 v31, 0")
    def go():
        if QH >= 0: spin(k, xn_poll + [f"buffer_load_dword v29, v31, {FL}, s41 offen {SC}"], [16, 29], 17, slp=BSL)
        else: spin(k, xn_poll, [16], 17, slp=BSL)
    e(f"s_cmp_lt_u32 s2, 136\ns_cbranch_scc1 {Lpk}")
    go()
    for c in range(4): emit(k, issueW(c)); emit(k, issueX(c))
    e(f"s_branch {Lgu}")
    k.label(Lpk)
    PKB = 3*SLOT; PD = 128
    e("s_mov_b32 s4, s2\ns_mul_i32 s33, s3, 320")
    for i in range(5):
        e(f"v_add_u32 v13, {64*i}, v1\nv_add_u32 v13, s33, v13\nv_mul_u32_u24 v{19+i}, 52429, v13\nv_lshrrev_b32 v{19+i}, 22, v{19+i}")
        e(f"v_mul_u32_u24 v14, 80, v{19+i}\nv_sub_u32 v14, v13, v14\nv_lshlrev_b32 v{24+i}, 4, v14")
    def pack_issue(first, lo=0):
        e("s_mul_i32 s32, s4, 241\ns_lshr_b32 s32, s32, 13\ns_mul_i32 s33, s32, 34\ns_sub_u32 s33, s4, s33")
        e("s_mul_i32 s34, s32, 384\ns_lshl_b32 s35, s33, 4\ns_add_u32 s34, s34, s35")
        e("s_sub_u32 s36, s33, 24\ns_sub_u32 s37, s33, 29\ns_cmp_ge_u32 s33, 29\ns_cselect_b32 s36, s37, s36\ns_cselect_b32 s37, 320, 0")
        e("s_mul_i32 s35, s32, 80\ns_add_u32 s35, s35, s37\ns_mul_i32 s37, s36, 20")
        e("s_cmp_eq_u32 s36, 4\ns_cselect_b32 s37, 16, s37\ns_cselect_b32 s43, 16, 0\ns_add_u32 s36, s35, s37")
        for i in range(5):
            e(f"v_lshrrev_b32 v13, 2, v{19+i}\nv_mul_u32_u24 v13, s43, v13\nv_add_u32 v13, v13, v{19+i}\nv_mul_u32_u24 v13, 1280, v13\nv_add_u32 v{3+i}, v13, v{24+i}")
        first()
        e(f"s_cmp_ge_u32 s33, 24\ns_cselect_b32 s34, s36, s34\ns_cselect_b32 s24, s{PWO}, s{PWD}\ns_cselect_b32 s25, s{PWO+1}, s{PWD+1}")
        e(f"s_cselect_b32 s26, {hex(NBYTES['wo'])}, s26\ns_mov_b32 s27, 0x20000\ns_mul_i32 s34, s34, 1280")
        e(f"s_mul_i32 s35, s3, 5120\ns_add_u32 m0, s35, {PKB+lo}")
        for i in range(5):
            e(f"buffer_load_dwordx4 v{3+i}, s[24:27], s34 offen lds")
            if i < 4: e("s_add_u32 m0, m0, 1024")
    def pack_finish(lo=0):
        for c in range(2):
            for a in range(3):
                for u in range(2):
                    ad, off = ("v10", a*64) if a < 2 else ("v11", 0)
                    e(f"ds_read_b64_tr_b16 {vr(PD+12*c+4*a+2*u,2)}, {ad} offset:{lo + c*160 + off + u*5120}")
        e(f"s_mul_i32 s5, s3, {2*136*2560}\ns_mul_i32 s6, s4, 2560\ns_add_u32 s5, s5, s6\ns_add_u32 s6, s5, {136*2560}")
        e("s_waitcnt lgkmcnt(0)")
    e("v_lshrrev_b32 v8, 5, v1\nv_bfe_u32 v9, v1, 2, 2\nv_lshl_add_u32 v9, v8, 3, v9\nv_mul_u32_u24 v9, 1280, v9")
    e(f"s_mul_i32 s32, s3, 320\ns_add_u32 s32, s32, {PKB}\nv_add_u32 v9, s32, v9")
    e("v_and_b32 v16, 1, v1\nv_bfe_u32 v17, v1, 1, 1\nv_bfe_u32 v18, v1, 4, 1")
    e("v_lshl_add_u32 v10, v16, 5, v9\nv_lshl_add_u32 v10, v17, 3, v10\nv_lshl_add_u32 v10, v18, 4, v10")
    e("v_lshl_add_u32 v11, v16, 4, v9\nv_lshl_add_u32 v11, v17, 3, v11\nv_add_u32 v11, 128, v11\nv_lshl_add_u32 v11, v18, 18, v11")
    e("v_and_b32 v12, 15, v1\nv_lshlrev_b32 v12, 4, v12\nv_lshl_add_u32 v12, v8, 8, v12\nv_lshl_add_u32 v12, v18, 30, v12")
    e(f"s_lshl_b32 s75, s4, 2\ns_add_u32 s75, s75, {PKF}")
    e(f"s_mov_b32 s26, {hex(NBYTES['wd'])}")
    pack_issue(go)
    for c in range(2): emit(k, issueW(c)); emit(k, issueX(c))
    e("s_waitcnt vmcnt(10)\ns_barrier")
    pack_finish()
    emit(k, issueW(2)); emit(k, issueX(2))
    e("s_barrier")
    emit(k, issueW(3)); emit(k, issueX(3))
    k.label(Lgu)
    bstamp(k, "p0")
    srd_from(k, 28, PWS, AF_BYTES, AF_OFF)
    def reads(fs, sl, ks):
        L = [f"ds_read_b128 {vr(FR[fs]+12,4)}, v{RB} offset:{sl*SLOT + ks*1024}"]
        for a in range(3):
            for u in range(2):
                L.append(f"ds_read_b64_tr_b16 {vr(FR[fs]+4*a+2*u,2)}, v{RA+a} offset:{sl*SLOT + (16*ks+4*u)*192}")
            if a == 0: L.append(f"ds_read_b128 {vr(FR[fs]+16,4)}, v{RB} offset:{sl*SLOT + 2048 + ks*1024}")
        return L
    def mfmas(fs):
        return [f"{MF} {vr(ACC+16*(2*a+b),16)}, {vr(FR[fs]+4*a,4)}, {vr(FR[fs]+12+4*b,4)}, {vr(ACC+16*(2*a+b),16)}" for a in range(3) for b in range(2)]
    e("s_mov_b32 s42, 0\nv_min_u32 v4, 33, v1\nv_lshlrev_b32 v4, 4, v4")
    e("s_waitcnt vmcnt(15)\ns_barrier")
    e(f"s_setprio {GP0}")
    bstamp(k, "gu0")
    if ONLY == "A":
        e("s_waitcnt vmcnt(0)"); stamp_dump(k, 0, 6, "s2", PWS); e("s_endpgm")
    emit(k, reads(0, 0, 0))
    srd_from(k, 24, PWS, WP_BYTES, WP_OFF)
    e(f"s_mul_i32 s11, s10, {4*34*2560}\ns_mul_i32 s43, s3, 5120\ns_add_u32 s11, s11, s43\ns_mov_b32 s35, {HUGE}")
    st_loads = [f"buffer_load_dwordx4 v[16:19], v4, {FL}, s36 offen {SC}"]
    def issueP(sl):
        L = [[f"s_add_u32 m0, s43, {sl*SLOT}", "s_add_u32 s33, s11, 4096"]]
        for i in range(4): L.append([f"buffer_load_dwordx4 v2, s[24:27], s11 offen offset:{i*1024} {SC} lds"])
        L[4].append("s_add_u32 m0, m0, 4096")
        L.append([f"buffer_load_dwordx4 v2, s[24:27], s33 offen {SC} lds", f"s_add_u32 s11, s11, {34*2560}"])
        return L
    L = k.newlabel("gu")
    def trip(last):
        for sl in range(4):
            e("s_waitcnt lgkmcnt(0)")
            rd = reads(1, sl, 1); mf = mfmas(0)
            sh = [rd[0:2], rd[2:4], rd[4:6], rd[6:8], [], []]
            if not last and sl == 1: sh[4] = ["s_cmp_eq_u32 s42, 3", f"s_cselect_b32 s36, {PKF}, s35"] + st_loads
            for i in range(6):
                e(mf[i]); emit(k, sh[i])
            if sl == 0 and not last:
                Ls = k.newlabel("nps")
                e(f"s_cmp_ge_u32 s2, 136\ns_cbranch_scc1 {Ls}\ns_cmp_lg_u32 s42, 1\ns_cbranch_scc1 {Ls}")
                for c in range(2):
                    for a in range(3):
                        e(f"buffer_store_dwordx4 {vr(PD+12*c+4*a,4)}, {'v2' if a < 2 else 'v12'}, s[24:27], s{5+c} offen offset:{a*1024} {SC}")
                k.label(Ls)
            if sl == 1 and not last:
                Ls = k.newlabel("npf")
                e(f"s_cmp_ge_u32 s2, 136\ns_cbranch_scc1 {Ls}\ns_cmp_lg_u32 s42, 2\ns_cbranch_scc1 {Ls}")
                setflag(k, "s75", 10)
                k.label(Ls)
            if sl == 2 and GSW >= 0 and not last:
                Lt = k.newlabel("gsw")
                e(f"s_cmp_lg_u32 s42, {GSW}\ns_cbranch_scc1 {Lt}\ns_setprio {GP1}")
                k.label(Lt)
            e("s_waitcnt vmcnt(10) lgkmcnt(0)\ns_barrier")
            rd = reads(0, (sl+1) % 4, 0) if not (last and sl == 3) else [[]]*8
            mf = mfmas(1)
            if not last:
                iw = issueW(sl); ix = issueX(sl)
                sh = [rd[0:2] + iw[0], rd[2:4] + iw[1], rd[4:6] + iw[2], rd[6:8] + iw[3] + ix[0], ix[1], ix[2]]
                if sl == 3: sh[5] = sh[5] + ["s_add_u32 s42, s42, 1", "s_cmp_lt_u32 s42, 4"]
            else:
                ip = issueP(sl)
                sh = [rd[0:2] + ip[0], rd[2:4] + ip[1], rd[4:6] + ip[2], rd[6:8] + ip[3], ip[4], ip[5]]
            for i in range(6):
                e(mf[i]); emit(k, sh[i])
    k.label(L, 6)
    trip(False)
    e(f"s_cbranch_scc1 {L}")
    Lok = k.newlabel("pkok")
    e(f"s_setprio 2\nv_xor_b32 v20, {TAG}, v16")
    for r in (17, 18, 19): e(f"v_xor_b32 v{r}, {TAG}, v{r}\nv_or_b32 v20, v20, v{r}")
    e(f"v_cmp_ne_u32 vcc, 0, v20\ns_cmp_eq_u64 vcc, 0\ns_cbranch_scc1 {Lok}")
    spin(k, st_loads, [16, 17, 18, 19], 20)
    k.label(Lok)
    e(f"s_setprio {GP0}")
    trip(True)
    e("s_setprio 2")
    e("v_lshrrev_b32 v8, 5, v1")
    e(f"s_mul_i32 s14, s3, {SLOT}")
    srd_from(k, 20, PWS, WP_BYTES, WP_OFF)
    srd_from(k, 16, PX, NBYTES['x'])
    e(f"s_lshl_b32 s12, s10, 2\ns_add_u32 s12, s12, s3\ns_mul_i32 s12, s12, {34*2560}\ns_add_u32 s12, s12, {4*5120}")
    e(f"s_lshl_b32 s32, s7, 1\ns_add_u32 s32, s32, s39\ns_mul_i32 s32, s32, 272\ns_mul_i32 s43, s8, 6\ns_add_u32 s32, s32, s43\ns_add_u32 s32, s32, s40\ns_add_u32 s32, s32, 40\ns_lshl_b32 s32, s32, 10")
    e(f"s_add_u32 s34, s32, {136*1024}\ns_mov_b32 s33, {hex(f32bits(LOG2E*LOG2E))}")
    e("s_waitcnt lgkmcnt(0)")
    bstamp(k, "gu1")
    def issueW2(sl):
        L = [[f"s_add_u32 m0, s14, {sl*5120}", "s_add_u32 s33, s12, 4096"]]
        for i in range(4): L.append([f"buffer_load_dwordx4 v2, s[20:23], s12 offen offset:{i*1024} {SC} lds"])
        L[4].append("s_add_u32 m0, m0, 4096")
        L.append([f"buffer_load_dwordx4 v2, s[20:23], s33 offen {SC} lds", "s_add_u32 s12, s12, 5120"])
        return L
    T = 176
    if PKS: e("v_mov_b32 v184, s33\nv_mov_b32 v185, s33")
    for a in range(3):
        for b in range(2):
            g = ACC + 16*(2*a+b); u = g + 8
            for j in range(8): e(f"v_exp_f32 v{T+j}, -v{g+j}")
            if PKS:
                for j in range(0, 8, 2): e(f"v_pk_mul_f32 {vr(g+j,2)}, {vr(g+j,2)}, {vr(u+j,2)}")
                for j in range(0, 8, 2): e(f"v_pk_fma_f32 {vr(T+j,2)}, {vr(T+j,2)}, v[184:185], v[184:185]")
            else:
                for j in range(8): e(f"v_mul_f32 v{g+j}, v{g+j}, v{u+j}")
                for j in range(8): e(f"v_fma_f32 v{T+j}, v{T+j}, s33, s33")
            for j in range(8): e(f"v_rcp_f32 v{T+j}, v{T+j}")
            if PKS:
                for j in range(0, 8, 2): e(f"v_pk_mul_f32 {vr(g+j,2)}, {vr(g+j,2)}, {vr(T+j,2)}")
            else:
                for j in range(8): e(f"v_mul_f32 v{g+j}, v{g+j}, v{T+j}")
            for j in range(4): e(f"v_cvt_pk_bf16_f32 v{u+j}, v{g+2*j}, v{g+2*j+1}")
            e(f"buffer_store_dwordx4 {vr(u,4)}, v2, s[28:31], {'s34' if b else 's32'} offen offset:{a*1024} {SC}")
    wq_ = []
    assert not wq_
    e("v_add_u32 v10, s14, v2\nv_and_b32 v11, 15, v1\nv_lshlrev_b32 v11, 4, v11\nv_lshl_add_u32 v11, v8, 8, v11\nv_bfe_u32 v9, v1, 4, 1")
    e("v_lshl_add_u32 v7, v9, 30, v11\nv_lshl_add_u32 v11, v9, 18, v11\nv_add_u32 v11, s14, v11")
    e(f"s_lshl_b32 s35, s7, 4\ns_add_u32 s36, s35, s8\ns_lshl_b32 s36, s36, 7\ns_add_u32 s36, s36, {HF}")
    e(f"s_mul_i32 s24, s9, {272*1024}\ns_mul_i32 s32, s3, {24*1024}\ns_add_u32 s26, s24, s32\ns_add_u32 s26, s26, {40*1024}\ns_add_u32 s27, s26, {136*1024}")
    e("v_and_b32 v14, 3, v1\nv_lshlrev_b32 v14, 7, v14\nv_and_b32 v6, 1, v1\nv_lshlrev_b32 v6, 7, v6")
    if WF: e("v_bfe_u32 v5, v1, 1, 2\nv_lshl_add_u32 v6, v5, 2, v6")
    e(f"s_lshl_b32 s32, s3, 2\ns_add_u32 s32, s32, s35\ns_lshl_b32 s32, s32, 7\ns_add_u32 s32, s32, {HF}")
    e("s_lshr_b32 s40, s3, 1\ns_and_b32 s41, s3, 1")
    e("s_lshl_b32 s34, s9, 1\ns_add_u32 s34, s34, s40\ns_mul_i32 s34, s34, 40960\ns_mul_i32 s33, s10, 160\ns_add_u32 s43, s34, s33")
    e("v_and_b32 v5, 31, v1\nv_mul_u32_u24 v5, 1280, v5")
    e("s_lshl_b32 s34, s41, 6\nv_lshl_add_u32 v12, v8, 5, v5\nv_add_u32 v12, s34, v12")
    e("s_lshl_b32 s34, s41, 3\ns_add_u32 s34, s34, 128\nv_lshl_add_u32 v13, v8, 4, v5\nv_add_u32 v13, s34, v13")
    e("s_mul_i32 s34, s40, 10240\ns_lshl_b32 s33, s41, 12\ns_add_u32 s33, s33, s34\nv_add_u32 v15, s33, v2")
    e("s_lshl_b32 s33, s41, 10\ns_add_u32 s33, s33, s34\ns_add_u32 s33, s33, 8192\nv_add_u32 v3, s33, v2")
    e(f"s_lshl_b32 s25, s9, 3\ns_add_u32 s25, s25, s3\ns_lshl_b32 s25, s25, 7\ns_add_u32 s25, s25, {OF}\nv_mov_b32 v6, 0")
    e(f"s_mul_i32 s33, s3, {10*1024}\ns_add_u32 s24, s24, s33")
    e("s_waitcnt vmcnt(0)\ns_barrier")
    setflag(k, "s36", 16, "B")
    hl = [f"buffer_load_dword v16, v14, {FL}, s32 offen {SC}"]
    XS = 232; G4 = [20, 244]
    e(f"s_add_u32 s34, s12, {24*2560}\ns_add_u32 s35, s12, {25*2560}")
    srd_from(k, 36, POUT, NBYTES['out'])
    spin(k, hl, [16], 17)
    e(f"s_setprio {TP}")
    XR = 128; FA = [208, 220]
    def issueX2(rs):
        L = []
        for ks in range(2):
            for b in range(2):
                L.append([f"buffer_load_dwordx4 {vr(XR+16*rs+8*ks+4*b,4)}, v2, s[28:31], s{26+b} offen offset:{ks*1024} {SC}"])
        L[3] += ["s_add_u32 s26, s26, 2048", "s_add_u32 s27, s27, 2048"]
        return L
    for g in range(4): emit(k, issueX2(g))
    def reads2(fs, sl, ks):
        return [f"ds_read_b128 {vr(FA[fs]+4*a,4)}, {'v10' if a < 2 else 'v11'} offset:{sl*5120 + ks*2560 + a*1024}" for a in range(3)]
    def mfmas2(fs, rs, ks, c0=False):
        return [f"{MF} {vr(ACC+16*(3*b+a),16)}, {vr(FA[fs]+4*a,4)}, {vr(XR+16*rs+8*ks+4*b,4)}, {'0' if c0 else vr(ACC+16*(3*b+a),16)}" for a in range(3) for b in range(2)]
    e(f"s_mov_b32 s42, 0\ns_setprio {DP}")
    emit(k, reads2(0, 0, 0))
    e("s_waitcnt vmcnt(14) lgkmcnt(0)")
    bstamp(k, "dn0")
    L = k.newlabel("dn"); Lm = k.newlabel("dnm")
    rd = reads2(1, 0, 1); mf = mfmas2(0, 0, 0, True)
    for i in range(6):
        e(mf[i]); emit(k, rd[i:i+1])
    e("s_waitcnt vmcnt(0)")
    for ks in range(2):
        for a in range(3):
            e(f"buffer_load_dwordx4 {vr(G4[ks]+4*a,4)}, {'v2' if a < 2 else 'v7'}, s[20:23], s{34+ks} offen offset:{a*1024} {SC}")
    e(f"buffer_load_dwordx4 {vr(XS,4)}, v12, s[16:19], s43 offen")
    e(f"buffer_load_dwordx4 {vr(XS+4,4)}, v12, s[16:19], s43 offen offset:16")
    e(f"buffer_load_dwordx2 {vr(XS+8,2)}, v13, s[16:19], s43 offen")
    e(f"s_branch {Lm}")
    k.label(L, 6)
    for sl in range(4):
        e("s_waitcnt lgkmcnt(0)")
        rd = reads2(1, sl, 1); mf = mfmas2(0, sl, 0)
        sh = [rd[0:1], rd[1:2], rd[2:3], [], [], []]
        if sl == 0: sh[3] = ["s_cmp_eq_u32 s42, 2", f"s_cselect_b32 s26, {HUGE}, s26", f"s_cselect_b32 s27, {HUGE}, s27"]
        for i in range(6):
            e(mf[i]); emit(k, sh[i])
        if sl == 0: k.label(Lm)
        e("s_waitcnt vmcnt(18) lgkmcnt(0)")
        rd = reads2(0, (sl+1) % 4, 0); mf = mfmas2(1, sl, 1)
        iw = issueW2(sl); ix = issueX2(sl)
        sh = [rd[0:1] + iw[0], rd[1:2] + iw[1], rd[2:3] + iw[2], iw[3] + iw[4], iw[5], ix[0] + ix[1] + ix[2] + ix[3]]
        if sl == 3: sh[5] = sh[5] + ["s_add_u32 s42, s42, 1", "s_cmp_lt_u32 s42, 3"]
        for i in range(6):
            e(mf[i]); emit(k, sh[i])
    e(f"s_cbranch_scc1 {L}")
    e("s_setprio 2")
    emit(k, reads2(1, 0, 1))
    bstamp(k, "dn1")
    def oload(b, t):
        return [f"s_add_u32 s26, s24, {b*136*1024 + t*1024}", f"buffer_load_dwordx4 {vr(XR+40*b+4*t,4)}, v2, s[28:31], s26 offen {SC}"]
    f2 = [f"buffer_load_dword v18, v6, {FL}, s25 offen offset:512 {SC}"]
    if ONLY != "B": spin(k, [f"buffer_load_dword v16, v6, {FL}, s25 offen {SC}"] + f2, [16], 17)
    else: e(f"s_waitcnt vmcnt(0)\nv_mov_b32 v18, {TAG}")
    for t in range(5):
        for b in range(2): emit(k, oload(b, t))
    seq = [(t, (0, 1)) for t in range(5)] + [(t, (0,)) for t in range(5, 10)] + [(t, (1,)) for t in range(5, 10)]
    lsteps = [t for t, _ in seq if t < 8]
    wr = [f"ds_write_b128 v10, {vr(ACC+4*q,4)} offset:{q*1024}" for q in range(10)]
    def late_loads():
        for b in range(2):
            for t2 in range(5, 10): emit(k, oload(b, t2))
    def steps(us, lds, n, younger):
        for u in us:
            t, bs = seq[u]
            vm = (8 - 2*u + younger) if u < 5 else (14 - u)
            if t < 8:
                last = max([i for i, x in enumerate(lds) if x == f"n{n}"], default=-1)
                lds = lds[last+1:]
                e(f"s_waitcnt vmcnt({vm}) lgkmcnt({min(15, len(lds))})")
                F = FA[n & 1]
            else:
                e(f"s_waitcnt vmcnt({vm})")
                F = G4[t-8]
            for a in range(3):
                for b in bs:
                    e(f"{MF} {vr(ACC+16*(3*b+a),16)}, {vr(F+4*a,4)}, {vr(XR+40*b+4*t,4)}, {vr(ACC+16*(3*b+a),16)}")
                    if u >= 11 and wr:
                        e(wr.pop(0)); lds.append("w")
            if t < 8:
                if n + 2 < len(lsteps):
                    t2 = lsteps[n+2]
                    emit(k, reads2(n & 1, t2 >> 1, t2 & 1)); lds += [f"n{n+2}"]*3
                n += 1
        return lds, n
    Lb, Lj = k.newlabel("both"), k.newlabel("join")
    e(f"v_cmp_ne_u32 vcc, {TAG}, v18\ns_cmp_eq_u64 vcc, 0\ns_cbranch_scc1 {Lb}")
    emit(k, f2)
    steps(range(5), ["n0"]*3 + ["n1"]*3, 0, 1)
    spin(k, f2, [18], 17, pre_issued=True)
    late_loads()
    e(f"s_branch {Lj}")
    k.label(Lb)
    late_loads()
    lds, n = steps(range(5), ["n0"]*3 + ["n1"]*3, 0, 10)
    k.label(Lj)
    bstamp(k, "of")
    steps(range(5, 15), lds, n, 0)
    assert not wr
    bstamp(k, "mm")
    for q in range(10):
        e(f"ds_write_b128 v10, {vr(ACC+48+4*q,4)} offset:{(10+q)*1024}")
    e("s_waitcnt lgkmcnt(0)\ns_barrier")
    R = 128
    for w in range(4):
        for q in range(4):
            e(f"ds_read_b128 {vr(R+20*w+4*q,4)}, v15 offset:{w*SLOT + q*1024}")
        e(f"ds_read_b128 {vr(R+20*w+16,4)}, v3 offset:{w*SLOT}")
    for j in range(10):
        e(f"v_lshlrev_b32 v{ACC+2*j}, 16, v{XS+j}\nv_and_b32 v{ACC+2*j+1}, 0xffff0000, v{XS+j}")
    for w in range(4):
        e(f"s_waitcnt lgkmcnt({15-5*w})")
        for j in range(0, 20, 2):
            e(f"v_pk_add_f32 {vr(ACC+j,2)}, {vr(ACC+j,2)}, {vr(R+20*w+j,2)}")
    for j in range(10):
        e(f"v_cvt_pk_bf16_f32 v{XS+j}, v{ACC+2*j}, v{ACC+2*j+1}")
    bstamp(k, "rd")
    e(f"buffer_store_dwordx4 {vr(XS,4)}, v12, s[36:39], s43 offen {OM}")
    e(f"buffer_store_dwordx4 {vr(XS+4,4)}, v12, s[36:39], s43 offen offset:16 {OM}")
    e(f"buffer_store_dwordx2 {vr(XS+8,2)}, v13, s[36:39], s43 offen {OM}")
    stamp_dump(k, 0, 9, "s2", PWS)
    e("s_endpgm")

def w160_voffs(k, dst, t):
    e = k.e
    for i in range(5):
        e(f"v_add_u32 v{t}, {64*i}, v1\nv_mul_u32_u24 v{t+1}, 6554, v{t}\nv_lshrrev_b32 v{t+1}, 16, v{t+1}")
        e(f"v_mul_u32_u24 v{t+2}, 10, v{t+1}\nv_sub_u32 v{t+2}, v{t}, v{t+2}")
        e(f"v_and_b32 v{t}, 24, v{t+1}\nv_bfe_u32 v{t+3}, v{t+1}, 1, 2\nv_add_u32 v{t}, v{t}, v{t+3}\nv_and_b32 v{t+3}, 1, v{t+1}\nv_lshl_add_u32 v{t}, v{t+3}, 2, v{t}")
        e(f"v_mul_u32_u24 v{t}, 1280, v{t}\nv_lshl_add_u32 v{dst+i}, v{t+2}, 4, v{t}")

def roleA(k, mid):
    e = k.e
    KVSLOT = 24576; KV0 = 8192
    QS = 20480; QX = 10240
    S0, S1 = 32, 48; SA = 64
    Q = [16, 24]; O = [144, 160]; P = [96, 104]; KVB = [112, 128]; KT = 176
    KL = lambda s: KVB[s]; KH = lambda s: KVB[s]+4; V0 = lambda s: KVB[s]+8; V1 = lambda s: KVB[s]+12
    AKL, AKH, AV, BKH, BV = 8, 9, 10, 11, 12
    WV = 16; XV = 21; RB = 24; ONES = 28
    FRG = 80
    AO2 = 241; RB2 = 224
    stamp(k, 0)
    e("s_bfe_u32 s8, s2, 0x20001\ns_lshl_b32 s8, s8, 3\ns_lshr_b32 s9, s2, 5\ns_add_u32 s8, s8, s9")
    e("s_and_b32 s9, s2, 1\ns_lshl_b32 s9, s9, 2\ns_bfe_u32 s32, s2, 0x20003\ns_add_u32 s9, s9, s32")
    e("s_add_u32 s11, s8, s9\ns_mul_i32 s11, s11, 3\ns_mul_i32 s32, s11, 205\ns_lshr_b32 s32, s32, 11\ns_mul_i32 s32, s32, 10\ns_sub_u32 s11, s11, s32")
    x_voffs(k, XV, 3)
    w160_voffs(k, WV, 3)
    Lw = k.newlabel("wrole")
    e(f"s_mul_i32 s12, s3, 40960\ns_mul_i32 s32, s9, 160\ns_add_u32 s12, s12, s32\ns_mov_b32 s13, {64*1280}")
    e("s_waitcnt lgkmcnt(0)")
    srd_from(k, 20, PWQ, NBYTES['wq'])
    e(f"s_mov_b64 s[18:19], -1\ns_cmp_lt_u32 s3, 2\ns_cbranch_scc1 {Lw}\ns_mov_b64 s[18:19], 1")
    for i in range(4): e(f"v_add_u32 v{WV+i}, {10240*i}, v{XV+(i&1)}")
    e(f"v_mov_b32 v{WV+4}, {HUGE}")
    e("s_lshl_b32 s33, s8, 1\ns_add_u32 s33, s33, s3\ns_sub_u32 s33, s33, 2\ns_mul_i32 s12, s33, 40960\ns_mov_b32 s13, 128")
    srd_from(k, 20, PX, NBYTES['x'])
    k.label(Lw)
    e("s_mul_i32 s34, s11, s13\ns_add_u32 s34, s34, s12\ns_mul_i32 s35, s13, 10\ns_add_u32 s35, s35, s12\ns_mul_i32 s14, s3, 5120")
    def st_issue(slot):
        L = [[f"s_add_u32 m0, s14, {slot*QS}"]]
        for i in range(5):
            g = [f"buffer_load_dwordx4 v{WV+i}, s[20:23], s34 offen lds"]
            if i < 4: g += ["s_add_u32 m0, m0, 1024"]
            else: g = ["s_mov_b64 exec, s[18:19]"] + g + ["s_mov_b64 exec, -1", "s_add_u32 s34, s34, s13", "s_cmp_eq_u32 s34, s35", "s_cselect_b32 s34, s12, s34"]
            L.append(g)
        return L
    if ADLY == 0:
        for sl in range(2): emit(k, st_issue(sl))
    mid()
    tag_setup(k)
    srd_from(k, 24, PWS, KV_BYTES, KV_OFF)
    srd_from(k, 28, PWS, AF_BYTES, AF_OFF)
    e("v_lshrrev_b32 v6, 5, v1")
    e("v_bfe_u32 v7, v1, 2, 2\nv_lshl_add_u32 v7, v6, 2, v7\nv_mul_u32_u24 v4, 320, v7")
    e("v_and_b32 v7, 1, v1\nv_lshlrev_b32 v7, 4, v7")
    e("v_bfe_u32 v8, v1, 1, 1\nv_lshl_add_u32 v7, v8, 3, v7")
    e("v_and_b32 v8, 16, v1\nv_cmp_ne_u32 vcc, 0, v8\nv_mov_b32 v8, 32\nv_cndmask_b32 v7, v7, v8, vcc")
    e("v_add_u32 v4, v4, v7\ns_mul_i32 s32, s3, 40\nv_add_u32 v4, s32, v4")
    e("v_and_b32 v8, 19, v1\nv_cmp_lt_u32 vcc, 16, v8\nv_mov_b32 v8, 0x40000\nv_cndmask_b32 v4, v4, v8, vcc")
    e("v_add_u32 v5, 40960, v4")
    x_raddr(k, RB, 7, str(QX))
    for j in range(4): e(f"v_mov_b32 v{ONES+j}, 0x3f803f80")
    e(f"v_and_b32 v7, 31, v1\nv_lshlrev_b32 v{BKH}, 3, v7\nv_add_u32 v{BKH}, 1024, v{BKH}\nv_lshl_add_u32 v{BKH}, v6, 18, v{BKH}")
    e("v_and_b32 v13, 19, v7\nv_bfe_u32 v14, v7, 2, 1\nv_lshl_add_u32 v13, v14, 3, v13\nv_bfe_u32 v14, v7, 3, 1\nv_lshl_add_u32 v13, v14, 2, v13")
    e(f"v_mul_u32_u24 v{BV}, 24, v6\nv_add_u32 v{BV}, v{BV}, v13")
    e("v_cmp_le_u32 vcc, 28, v7\nv_cndmask_b32 v13, 0, 1, vcc\nv_xor_b32 v13, v13, v6\nv_mul_u32_u24 v13, 24, v13\nv_add_u32 v13, 20, v13")
    e("v_and_b32 v15, 27, v7\nv_cmp_ne_u32 vcc, 24, v15\nv_mov_b32 v15, 0x4000\nv_cndmask_b32 v13, v13, v15, vcc")
    e(f"v_cmp_le_u32 vcc, 20, v7\nv_cndmask_b32 v{BV}, v{BV}, v13, vcc")
    e(f"v_lshlrev_b32 v{BV}, 4, v{BV}\nv_add_u32 v{BV}, 1536, v{BV}")
    c0 = KV0 + 2*KVSLOT
    e(f"v_add_u32 v{AKL}, {c0}, v2\nv_add_u32 v{AKH}, {c0}, v{BKH}\nv_add_u32 v{AV}, {c0}, v{BV}")
    e(f"s_lshr_b32 s32, s3, 1\ns_lshl_b32 s32, s32, 9\ns_and_b32 s33, s3, 1\ns_lshl_b32 s33, s33, 3\ns_add_u32 s32, s32, s33")
    e(f"v_lshl_add_u32 v{AO2}, v7, 4, s32\nv_lshl_add_u32 v{AO2}, v6, 30, v{AO2}")
    e(f"v_lshlrev_b32 v13, {KVS}, v1\nv_lshlrev_b32 v14, 3, v7")
    e(f"s_lshl_b32 s39, s8, 9\ns_add_u32 s39, s39, {STAT}\ns_lshl_b32 s38, s3, {KVS+6}\ns_add_u32 s38, s38, {KVF}\ns_mul_i32 s36, s3, 6144")
    for t in range(4): e(f"v_mov_b32 v{KT+8*t+6}, 0\nv_mov_b32 v{KT+8*t+7}, 0")
    for j in range(4): e(f"v_add_u32 v{RB2+j}, 40960, v{RB+j}")
    if ADLY == 2: tag_finish(k)
    if ADLY:
        for sl in range(2): emit(k, st_issue(sl))
    if ADLY != 2: tag_finish(k)
    stamp(k, 1)
    def kv_issue(chunk_soff, slot_base):
        L = []
        for half in range(2):
            L.append([f"s_add_u32 m0, s36, {slot_base + half*3072}", f"s_add_u32 s32, s36, {chunk_soff + half*3072}"])
            for j in range(3):
                L.append([f"buffer_load_dwordx4 v2, s[24:27], s32 offen offset:{j*1024} {SC} lds"])
        return L
    PL = 232
    kv_poll = [f"buffer_load_dword v{PL}, v13, {FL}, s38 offen {SC}"]
    pl_loads = [f"buffer_load_dwordx2 {vr(PL+2,2)}, v14, {FL}, s39 offen {SC}", f"buffer_load_dwordx2 {vr(PL+4,2)}, v14, {FL}, s39 offen offset:256 {SC}"]
    inits = []
    for j in range(8): inits += [(P[1]+j, "0"), (V0(1)+j, "0")]
    for s_ in range(2): inits += [(KH(s_)+2, "0x3f80"), (KH(s_)+3, "0")]
    for j in range(32): inits += [(O[0]+j, "0")]
    inits.sort()
    def hreads(h):
        sl = h % 4; F = FRG + 48*(h & 1); L = []
        so = (sl & 1) * QS; ta = "v5" if sl >= 2 else "v4"; rb = RB2 if sl >= 2 else RB
        for ks in range(4):
            for u in range(2): L.append(f"ds_read_b64_tr_b16 {vr(F+12*ks+2*u,2)}, {ta} offset:{so + ks*2560 + u*160}")
            for b in range(2): L.append(f"ds_read_b128 {vr(F+12*ks+4+4*b,4)}, v{rb+ks} offset:{so + b*5120}")
        return L
    e("s_waitcnt vmcnt(5)\ns_barrier")
    stamp(k, 2)
    emit(k, hreads(0))
    emit(k, st_issue(2))
    kt_loads = [["s_mov_b32 s33, 6144"]]
    for t in range(4):
        so, off = ("0", t*3072) if t < 2 else ("s33", (t-2)*3072)
        kt_loads.append([f"buffer_load_dwordx4 {vr(KT+8*t,4)}, v2, s[24:27], {so} offen offset:{off} {SC}",
                         f"buffer_load_dwordx2 {vr(KT+8*t+4,2)}, v{BKH}, s[24:27], {so} offen offset:{off} {SC}"])
    for h in range(10):
        F = FRG + 48*(h & 1)
        if h < PH:
            n = {0: 5, 7: 5, 8: 0}.get(h, 10) + (3 if h == PH - 1 else 0)
            e(f"s_waitcnt vmcnt({n}) lgkmcnt(0)")
        else:
            if h == PH: spin(k, pl_loads + kv_poll, [PL, PL+3, PL+5], 15, pre_issued=True, slp=KSL)
            e("s_waitcnt lgkmcnt(0)")
        if h < 9: e("s_barrier")
        if h == QH:
            e(f"s_lshl_b32 s32, s2, 7\ns_add_u32 s32, s32, {QF}")
            setflag(k, "s32", 242)
        rd = hreads(h+1) if h < 9 else []
        dm = st_issue(h % 4) if h < 6 else []
        if h == 0: dm = st_issue(3) + dm
        if h == PH - 2: dm = dm + [pl_loads + kv_poll]
        if h == PH: dm = kv_issue(0, KV0 + 2*KVSLOT)
        i = 0
        for ks in range(4):
            first = (h == 0 and ks == 0)
            for acc, bop in ((S0, F+12*ks+4), (S1, F+12*ks+8), (SA, ONES)):
                e(f"{MF} {vr(acc,16)}, {vr(F+12*ks,4)}, {vr(bop,4)}, {'0' if first else vr(acc,16)}")
                emit(k, rd[:2]); rd = rd[2:]
                if dm and (i >= 3 or h in (0, PH, 9)): emit(k, dm.pop(0))
                if h == 9:
                    m = 0
                    while inits and m < 3 and inits[0][0] < F + 12*ks:
                        r, v = inits.pop(0); e(f"v_mov_b32 v{r}, {v}"); m += 1
                i += 1
        emit(k, dm)
    stamp(k, 3)
    for r, v in inits: e(f"v_mov_b32 v{r}, {v}")
    for b in range(2):
        st = PL + 2 + 2*b
        e(f"v_lshlrev_b32 v{238+b}, 16, v{st}\nv_xor_b32 v{238+b}, 0x80000000, v{238+b}\nv_and_b32 v{st}, 0xffff0000, v{st}")
        e(f"v_rcp_f32 v{st}, v{st}\nv_mul_f32 v{st}, {hex(f32bits(QSCALE))}, v{st}")
    def qepi(b):
        L = []; a = S0 + 16*b
        for j in range(12): L.append(f"v_fmac_f32 v{a+j}, v{238+b}, v{SA+j}")
        for j in range(12): L.append(f"v_mul_f32 v{a+j}, v{PL+2+2*b}, v{a+j}")
        for j in range(6): L.append(f"v_cvt_pk_bf16_f32 v{Q[b]+j}, v{a+2*j}, v{a+2*j+1}")
        L += [f"v_mov_b32 v{Q[b]+6}, 0", f"v_mov_b32 v{Q[b]+7}, 0"]
        return L
    MX = [3, 5]
    sxr = lambda b, t: [[80, 208, 32, 64], [48, 80, 208, 64]][b][t]
    def mx(b, t):
        S = sxr(b, t)
        L = [f"v_max3_f32 v{MX[b]}, v{S}, v{S+1}, v{S+2}", f"v_max_f32 v{MX[b]}, v{MX[b]}, v{S+3}"] if t == 0 else []
        for j in range(4 if t == 0 else 0, 16, 2): L.append(f"v_max3_f32 v{MX[b]}, v{MX[b]}, v{S+j}, v{S+j+1}")
        return L
    def qk(b, t):
        S = sxr(b, t)
        return [f"{MF} {vr(S,16)}, {vr(KT+8*t,4)}, {vr(Q[b],4)}, 0", f"{MF} {vr(S,16)}, {vr(KT+8*t+4,4)}, {vr(Q[b]+4,4)}, {vr(S,16)}"]
    def fin(b, offs):
        L = [f"v_mov_b32 v15, v{MX[b]}", f"v_permlane32_swap_b32 v{MX[b]}, v15", f"v_max_f32 v{MX[b]}, v{MX[b]}, v15"]
        if offs: L.append(f"v_add_f32 v{MX[b]}, {hex(f32bits(offs))}, v{MX[b]}")
        L += [f"v_cvt_pk_bf16_f32 v{MX[b]}, -v{MX[b]}, 0", "v_cmp_ne_u32 vcc, 0, v6", f"v_cndmask_b32 v{Q[b]+6}, v{MX[b]}, 0, vcc"]
        return L
    def weave(mfs, vals, per, ex=None):
        for m in mfs:
            e(m)
            if ex: emit(k, ex.pop(0))
            for _ in range(per):
                if vals: e(vals.pop(0))
        for v in vals: e(v)
    e(f"s_mov_b32 s40, 0\ns_mov_b32 s41, {KV0}\ns_add_u32 s35, s36, {KV0}\ns_add_u32 s42, s35, {KVSLOT}\ns_add_u32 s43, s36, {2*KVSLOT}\ns_add_u32 s39, s35, {3*KVSLOT}")
    e("s_and_b32 s32, s9, 3\ns_mul_i32 s32, s32, 10\ns_mul_i32 s33, s8, 272\ns_add_u32 s32, s32, s33\ns_lshr_b32 s33, s9, 2\ns_mul_i32 s33, s33, 5\ns_add_u32 s32, s32, s33")
    e("s_add_u32 s16, s32, 4\ns_lshl_b32 s16, s16, 10\ns_add_u32 s12, s32, s3\ns_lshl_b32 s12, s12, 10")
    e(f"s_add_u32 s13, s12, {136*1024}\ns_add_u32 s17, s16, {136*1024}")
    e(f"s_lshl_b32 s14, s8, 3\ns_add_u32 s14, s14, s9\ns_lshl_b32 s14, s14, 7\ns_add_u32 s14, s14, {OF}")
    e("s_waitcnt vmcnt(0)\ns_barrier")
    for t in range(4):
        e(f"ds_read_b128 {vr(KT+8*t,4)}, v{AKL} offset:{t*3072}\nds_read_b64 {vr(KT+8*t+4,2)}, v{AKH} offset:{t*3072}")
    for s in range(2):
        e(f"ds_read_b128 {vr(KL(s),4)}, v{AKL} offset:{s*3072}\nds_read_b64 {vr(KH(s),2)}, v{AKH} offset:{s*3072}")
    e(f"ds_read_b128 {vr(V0(0),4)}, v{AV}\nds_read_b128 {vr(V1(0),4)}, v{AV} offset:768")
    emit(k, qepi(0))
    stamp(k, 4)
    stamp(k, 5)
    e("s_waitcnt lgkmcnt(6)")
    kv1 = kv_issue(KVSLOT, KV0)
    weave(qk(0, 0) + qk(0, 1) + qk(0, 2), qepi(1), 6, kv1)
    weave(qk(0, 3) + qk(1, 0), mx(0, 0) + mx(0, 1), 4, kv1)
    weave(qk(1, 1) + qk(1, 2), mx(0, 2) + mx(0, 3) + fin(0, OFFS), 6)
    e("s_waitcnt lgkmcnt(0)")
    weave(qk(1, 3) + [f"{MF} {vr(S0,16)}, {vr(KL(0),4)}, {vr(Q[0],4)}, 0", f"{MF} {vr(S0,16)}, {vr(KH(0),4)}, {vr(Q[0]+4,4)}, {vr(S0,16)}"],
          mx(1, 0) + [f"v_mov_b32 v{S1+12+j}, 0" for j in range(4)] + mx(1, 1) + mx(1, 2) + mx(1, 3) + fin(1, OFFS), 6)
    dma = lambda so, off: f"buffer_load_dwordx4 v2, s[24:27], {so} offen offset:{off} {SC} lds" if not NOKV else "s_nop 0"
    extra = {(1, 0): ["s_mov_b32 m0, s42"], (1, 1): ["s_add_u32 s38, s43, 4096"], (1, 3): ["s_waitcnt vmcnt(0)", "s_barrier"] if NOKV < 2 else [],
             (2, 3): [dma("s43", 0), dma("s43", 1024)], (3, 3): [dma("s43", 2048), dma("s43", 3072)],
             (4, 0): ["s_add_u32 m0, s42, 4096"], (4, 3): [dma("s38", 0), dma("s38", 1024)],
             (5, 0): [f"s_add_u32 s43, s43, {KVSLOT}"], (5, 1): ["s_add_u32 s40, s40, 1"], (5, 2): [f"s_add_u32 s37, s42, {KVSLOT}"],
             (6, 0): ["s_cmp_eq_u32 s37, s39"], (6, 1): ["s_cselect_b32 s37, s35, s37"],
             (7, 0): ["s_sub_u32 s41, s42, s36"], (7, 1): ["s_mov_b32 s42, s37"],
             (7, 2): ["s_cmp_lt_u32 s40, 8"]}
    e("s_setprio 1")
    stamp(k, 6)
    stamp(k, 7)
    Lloop = k.newlabel("att")
    k.label(Lloop, 6)
    def cv(S, Pb, g):
        return [f"v_cvt_pk_bf16_f32 v{Pb+2*g}, v{S+4*g}, v{S+4*g+1}", f"v_cvt_pk_bf16_f32 v{Pb+2*g+1}, v{S+4*g+2}, v{S+4*g+3}"]
    for jj in range(8):
        for blk in range(2):
            Sc, Sn = (S0, S1) if blk == 0 else (S1, S0)
            valu = []
            for g in range(4):
                for j in range(4): valu.append(f"v_exp_f32{E64} v{Sc+4*g+j}, v{Sc+4*g+j}")
                valu += cv(Sn, P[1-blk], 3) if g == 0 else cv(Sc, P[blk], g-1)
            ks = (jj + blk) & 1; vs = (jj - 1 + blk) & 1; nb = 1 - blk
            ko = ((jj + 2) % 8) * 3072; vo = ((jj + 1) % 8) * 3072
            mf = [[f"{MF} {vr(O[nb],16)}, {vr(V0(vs),4)}, {vr(P[nb],4)}, {vr(O[nb],16)}"],
                  [f"{MF} {vr(Sn,16)}, {vr(KL(ks),4)}, {vr(Q[nb],4)}, 0"],
                  [f"{MF} {vr(Sn,16)}, {vr(KH(ks),4)}, {vr(Q[nb]+4,4)}, {vr(Sn,16)}"],
                  [f"{MF} {vr(O[nb],16)}, {vr(V1(vs),4)}, {vr(P[nb]+4,4)}, {vr(O[nb],16)}"]]
            if blk == 0:
                mf[2].append("s_waitcnt lgkmcnt(0)")
                mf[3].append(f"ds_read_b128 {vr(KL(ks),4)}, v{AKL} offset:{ko}")
                mf[3].append(f"ds_read_b64 {vr(KH(ks),2)}, v{AKH} offset:{ko}")
            else:
                mf[3].append(f"ds_read_b128 {vr(V0(1-vs),4)}, v{AV} offset:{vo}")
                mf[3].append(f"ds_read_b128 {vr(V1(1-vs),4)}, v{AV} offset:{vo+768}")
                if jj == 5: valu.append(f"v_add_u32 v{AKL}, s41, v2"); valu.append(f"v_add_u32 v{AKH}, s41, v{BKH}")
                if jj == 6: valu.append(f"v_add_u32 v{AV}, s41, v{BV}")
                for m in range(4): mf[m] += extra.get((jj, m), [])
            for i, v in enumerate(valu):
                for m in range(4):
                    if PATTERN[m] == i: emit(k, mf[m])
                e(v)
    e(f"s_cbranch_scc1 {Lloop}")
    emit(k, cv(S1, P[1], 3))
    e(f"{MF} {vr(O[1],16)}, {vr(V0(1),4)}, {vr(P[1],4)}, {vr(O[1],16)}")
    e(f"{MF} {vr(O[1],16)}, {vr(V1(1),4)}, {vr(P[1]+4,4)}, {vr(O[1],16)}")
    stamp(k, 8)
    e("s_mov_b32 s40, 0\ns_setprio 3")
    Lout = k.newlabel("out"); Lslow = k.newlabel("slow"); Lpub = k.newlabel("pub")
    k.label(Lout)
    PK = 224; A0 = 208
    for b in range(2):
        e(f"v_rcp_f32 v{A0+b}, v{O[b]+12}")
        e(f"v_mul_f32 v{A0+b}, {hex(f32bits(1/LOG2E))}, v{A0+b}")
        for j in range(12): e(f"v_mul_f32 v{O[b]+j}, v{O[b]+j}, v{A0+b}")
        for j in range(6): e(f"v_cvt_pk_bf16_f32 v{PK+8*b+j}, v{O[b]+2*j}, v{O[b]+2*j+1}")
        e(f"buffer_store_dwordx4 {vr(PK+8*b,4)}, v2, s[28:31], s{12+b} offen {SC}")
        e(f"buffer_store_dwordx2 {vr(PK+8*b+4,2)}, v{AO2}, s[28:31], s{16+b} offen {SC}")
    e(f"v_mul_f32 v{A0+2}, 0, v{O[0]+12}\nv_mul_f32 v{A0+3}, 0, v{O[1]+12}")
    for j in range(12):
        for b in range(2): e(f"v_fma_f32 v{A0+2+b}, v{O[b]+j}, 0, v{A0+2+b}")
    e(f"v_cmp_u_f32 vcc, v{A0+2}, v{A0+3}")
    e(f"s_cmp_lg_u32 s40, 0\ns_cbranch_scc1 {Lpub}")
    e(f"s_cmp_lg_u64 vcc, 0\ns_cbranch_scc1 {Lslow}")
    k.label(Lpub)
    if WF:
        e(f"v_mov_b32 v16, {TAG}\ns_lshl_b32 s32, s3, 2\nv_mov_b32 v17, s32\ns_mov_b64 exec, 1\ns_waitcnt vmcnt(0)")
        e(f"buffer_store_dword v16, v17, {FL}, s14 offen {SC}\ns_mov_b64 exec, -1")
    else:
        e("s_waitcnt vmcnt(0)\ns_barrier")
        setflag(k, "s14", 16, "A")
    Lx = k.newlabel("axit")
    e(f"s_or_b32 s32, s2, s3\ns_cmp_lg_u32 s32, 0\ns_cbranch_scc1 {Lx}")
    e(f"v_lshlrev_b32 v13, 7, v1")
    ld = []
    for i in range(8): ld += [f"s_mov_b32 s38, {HF + 8192*i}", f"buffer_load_dword v{16+i}, v13, {FL}, s38 offen {SC}"]
    if not ONLY: spin(k, ld, list(range(16, 24)), 24)
    setflag(k, "0", 16)
    if LEAK:
        for i in range(8):
            e(f"s_mov_b32 s75, {HF + 8192*i}\nbuffer_load_dwordx2 {vr(32+2*i,2)}, v13, {FL}, s75 offen offset:8 {SC}")
        e("s_waitcnt vmcnt(0)")
        for i in range(16): e(f"v_subrev_u32 v{32+i}, s86, v{32+i}")
        for i in range(1, 8): e(f"v_min_i32 v32, v32, v{32+2*i}\nv_max_i32 v33, v33, v{33+2*i}")
        e("s_mov_b32 s40, 0x7fffffff\ns_mov_b32 s41, 0x80000000")
        for l in range(64):
            e(f"v_readlane_b32 s42, v32, {l}\nv_readlane_b32 s43, v33, {l}\ns_min_i32 s40, s40, s42\ns_max_i32 s41, s41, s43")
        e("s_sub_u32 s41, s41, s40\ns_mul_i32 s41, s41, 4\ns_add_u32 s41, s41, 10000\ns_add_u32 s40, s40, s86")
        Ls = k.newlabel("spin"); k.label(Ls)
        e("s_memrealtime s[42:43]\ns_waitcnt lgkmcnt(0)\ns_sub_u32 s42, s42, s40")
        e(f"s_cmp_lt_u32 s42, s41\ns_cbranch_scc1 {Ls}")
    k.label(Lx)
    stamp_dump(k, 1, 9, "s2", PWS)
    e("s_endpgm")
    k.label(Lslow)
    e("s_waitcnt vmcnt(0) lgkmcnt(0)")
    e(f"s_mov_b32 s40, 1\ns_mov_b32 s41, 0\nv_mov_b32 v{Q[0]+6}, 0\nv_mov_b32 v{Q[1]+6}, 0")
    e(f"v_mov_b32 v{MX[0]}, 0xff800000\nv_mov_b32 v{MX[1]}, 0xff800000")
    def kload():
        e(f"buffer_load_dwordx4 {vr(KL(0),4)}, v2, s[24:27], s41 offen {SC}")
        e(f"buffer_load_dwordx2 {vr(KH(0),2)}, v{BKH}, s[24:27], s41 offen {SC}")
    def qk2():
        for b in range(2):
            S = S0 + 16*b
            e(f"{MF} {vr(S,16)}, {vr(KL(0),4)}, {vr(Q[b],4)}, 0\n{MF} {vr(S,16)}, {vr(KH(0),4)}, {vr(Q[b]+4,4)}, {vr(S,16)}")
    L1 = k.newlabel("sl1"); k.label(L1)
    kload(); e("s_waitcnt vmcnt(0)"); qk2()
    for b in range(2):
        for j in range(0, 16, 2): e(f"v_max3_f32 v{MX[b]}, v{MX[b]}, v{S0+16*b+j}, v{S0+16*b+j+1}")
    e(f"s_add_u32 s41, s41, 3072\ns_cmp_lt_u32 s41, {KV_BYTES}\ns_cbranch_scc1 {L1}")
    for b in range(2): emit(k, fin(b, 0))
    for j in range(32): e(f"v_mov_b32 v{O[0]+j}, 0")
    e("s_mov_b32 s41, 0")
    L2 = k.newlabel("sl2"); k.label(L2)
    kload()
    e(f"buffer_load_dwordx4 {vr(V0(0),4)}, v{BV}, s[24:27], s41 offen {SC}")
    e(f"buffer_load_dwordx4 {vr(V1(0),4)}, v{BV}, s[24:27], s41 offen offset:768 {SC}")
    e("s_waitcnt vmcnt(0)"); qk2()
    for b in range(2):
        S = S0 + 16*b
        for j in range(16): e(f"v_exp_f32 v{S+j}, v{S+j}")
        for g in range(4): emit(k, cv(S, P[b], g))
        e(f"{MF} {vr(O[b],16)}, {vr(V0(0),4)}, {vr(P[b],4)}, {vr(O[b],16)}")
        e(f"{MF} {vr(O[b],16)}, {vr(V1(0),4)}, {vr(P[b]+4,4)}, {vr(O[b],16)}")
    e(f"s_add_u32 s41, s41, 3072\ns_cmp_lt_u32 s41, {KV_BYTES}\ns_cbranch_scc1 {L2}")
    e("s_nop 12")
    e(f"s_branch {Lout}")

def gen_mega(name="parallel_sum__grouped_kv_mqa__swiglu_ffn__prompt_kernel"):
    k = Kernel(name); e = k.e
    LA = k.newlabel("roleA"); LB = k.newlabel("roleB")
    e("s_load_dwordx16 s[48:63], s[0:1], 0\ns_load_dwordx8 s[64:71], s[0:1], 64")
    e("v_and_b32 v1, 63, v0\nv_lshrrev_b32 v2, 6, v0\nv_readfirstlane_b32 s3, v2\nv_lshlrev_b32 v2, 4, v1")
    Lgo = k.newlabel("go")
    e(f"s_cmp_lt_u32 s2, 256\ns_cbranch_scc1 {LB}\ns_cmp_lt_u32 s2, 512\ns_cbranch_scc1 {Lgo}\ns_endpgm")
    def body_b():
        k.label(LB)
        e("s_setprio 3")
        roleB(k)
    if HEAD:
        k.label(Lgo)
        if ONLY == "B": e("s_endpgm")
        e(f"s_sub_u32 s2, s2, 256\ns_setprio {AP0}")
        def mid():
            e(f"s_branch {LA}")
            body_b()
            k.label(LA, 6)
        roleA(k, mid)
    else:
        body_b()
        k.label(Lgo, 6)
        if ONLY == "B": e("s_endpgm")
        e(f"s_sub_u32 s2, s2, 256\ns_setprio {AP0}")
        roleA(k, lambda: None)
    k.label(f"{k.name}_end")
    k.lds = 81920; k.grid = 512; k.block = 256
    return k

if __name__ == "__main__":
    import sys
    from build import emit as emit_file
    emit_file([gen_mega()], sys.argv[1] if len(sys.argv) > 1 else "parallel_sum__grouped_kv_mqa__swiglu_ffn__prompt.s")
```

```python
from asmgen import *
from common import KA, NBYTES, f32bits, srd_from, stamp, stamp_dump, STAMPS
import math, os

MF = "v_mfma_f32_32x32x16_bf16"
LOG2E = math.log2(math.e)
QSCALE = (20 ** -0.5) * float(os.environ.get("QEPS", 1.0))
env = lambda n, d: type(d)(os.environ.get(n, d))
OFFS = env('OFFS', 96.0)
PATTERN = [int(x) for x in env('APAT', '2,6,9,13').split(',')]
BST = env("BST", 0); ONLY = env("ONLY", "")
P0B = env("P0B", 14); PKD = env("PKD", 0); ADLY = env("ADLY", 2); E64 = env("E64", ""); TP = env("TP", 0); QH = env("QH", 3); DI = env("DI", 3); ROT = env("ROT", 1); OM = env("OM", ""); HEAD = env("HEAD", 1); PKS = env("PKS", 1); WF = env("WF", 0); KVS = env("KVS", 2); PH = env("PH", 7); LATE = env("LATE", 0); NOKV = env("NOKV", 0); KSL = env("KSL", 4); BSL = env("BSL", 8); BP0 = env("BP0", 0); GP0 = env("GP0", 0); GP1 = env("GP1", 2); GSW = env("GSW", -1); CPF = env("CPF", 1); DP = env("DP", 0); AP0 = env("AP0", 2)
STAT = 0x1000; PKF = 0x800; HF = 0x9000; OF = 0x11000; KVF = 0xE80000; XNF = 0xE88000; QF = 0xE90000; FL_BYTES = 0xE98000
KV_OFF = 0x20000;  KV_BYTES = 64*3072
WP_OFF = 0x50000;  WP_BYTES = 8*136*2560
AF_OFF = 0x300000; AF_BYTES = 64*136*1024
XN_OFF = 0xC00000; XN_BYTES = 64*40*1024
PX, PWQ, PWK, PWV, PWO, PWG, PWU, PWD, POUT, PWS = 48, 50, 52, 54, 56, 60, 62, 64, 66, 70
TAG = "s73"; BUD = "s74"; FLS = 44; SC = "sc1"
FL = f"s[{FLS}:{FLS+3}]"
HUGE = "0x7ff00000"

def bstamp(k, name):
    m0 = dict(start=0, xl=1, xs=2, xf=3, p0=4, gu0=5, gu1=6, dn0=7, dn1=8)
    m1 = dict(start=0, p0=1, gu0=2, gu1=3, dn0=4, dn1=5, of=6, mm=7, rd=8)
    m = m1 if BST else m0
    if name in m: stamp(k, m[name])

def emit(k, lst):
    for x in lst:
        if isinstance(x, list): emit(k, x)
        else: k.e(x)

def spin(k, loads, regs, vt, pre_issued=False, slp=1):
    e = k.e
    Lp = k.newlabel("poll"); Ld = k.newlabel("pdone"); Lc = k.newlabel("pchk")
    if pre_issued: e(f"s_branch {Lc}")
    k.label(Lp)
    emit(k, loads)
    k.label(Lc)
    e("s_waitcnt vmcnt(0)")
    e(f"v_xor_b32 v{vt}, {TAG}, v{regs[0]}")
    for r in regs[1:]:
        e(f"v_xor_b32 v{r}, {TAG}, v{r}\nv_or_b32 v{vt}, v{vt}, v{r}")
    e(f"v_cmp_ne_u32 vcc, 0, v{vt}")
    e(f"s_cmp_eq_u64 vcc, 0\ns_cbranch_scc1 {Ld}")
    e(f"s_sub_u32 {BUD}, {BUD}, 1\ns_cbranch_scc1 {Ld}")
    e(f"s_sleep {slp}\ns_branch {Lp}")
    k.label(Ld)

LEAK = os.environ.get("LEAK")
def setflag(k, soffs, vt, leak=None):
    e = k.e
    L = k.newlabel("nofl")
    e(f"s_cmp_lg_u32 s3, 0\ns_cbranch_scc1 {L}")
    if LEAK and leak is not None:
        role, idx = LEAK[0], int(LEAK[1:])
        sel = f"s{86+idx}" if role == leak else "s86"
        e(f"v_mov_b32 v{vt}, s86\nv_mov_b32 v{vt+1}, {sel}\nv_mov_b32 v{vt+2}, 0\ns_mov_b64 exec, 1")
        e(f"buffer_store_dwordx2 {vr(vt,2)}, v{vt+2}, {FL}, {soffs} offen offset:8 {SC}")
        e("s_waitcnt vmcnt(0)\ns_mov_b64 exec, -1")
    e(f"v_mov_b32 v{vt}, {TAG}\nv_mov_b32 v{vt+1}, 0\ns_mov_b64 exec, 1")
    for so in (soffs if isinstance(soffs, list) else [soffs]):
        e(f"buffer_store_dword v{vt}, v{vt+1}, {FL}, {so} offen {SC}")
    e("s_mov_b64 exec, -1")
    k.label(L)

def tag_setup(k):
    k.e(f"s_load_dword s72, s[{PWS}:{PWS+1}], 0")
    srd_from(k, FLS, PWS, FL_BYTES)
    k.e(f"s_mov_b32 {BUD}, 200000")
def tag_finish(k):
    k.e(f"s_waitcnt lgkmcnt(0)\ns_mul_i32 {TAG}, s72, 1664525\ns_add_u32 {TAG}, {TAG}, 1013904223")

def x_voffs(k, dst, t):
    e = k.e
    e(f"v_lshrrev_b32 v{t}, 3, v1\nv_mul_u32_u24 v{t}, 1280, v{t}")
    e(f"v_and_b32 v{t+1}, 7, v1\nv_lshrrev_b32 v{t+2}, 4, v1\nv_xor_b32 v{t+1}, v{t+1}, v{t+2}")
    e(f"v_lshl_add_u32 v{dst}, v{t+1}, 4, v{t}\nv_xor_b32 v{dst+1}, 64, v{dst}")
def x_raddr(k, dst, t, base):
    e = k.e
    e(f"v_and_b32 v{t}, 31, v1\nv_bfe_u32 v{t+1}, v1, 1, 3\nv_lshrrev_b32 v{t+2}, 5, v1\nv_xor_b32 v{t+1}, v{t+1}, v{t+2}")
    e(f"v_lshlrev_b32 v{t}, 7, v{t}\nv_lshl_add_u32 v{t}, v{t+1}, 4, v{t}")
    for ks in range(4):
        e(f"v_xor_b32 v{t+1}, {ks*32}, v{t}\nv_add_u32 v{dst+ks}, {base}, v{t+1}")

def phase0(k):
    e = k.e
    e("v_and_b32 v3, 15, v1\nv_lshrrev_b32 v4, 4, v1")
    e("s_mul_i32 s12, s4, 20480\ns_mul_i32 s13, s3, 320\ns_add_u32 s12, s12, s13")
    e("v_mul_u32_u24 v5, 1280, v3\nv_lshl_add_u32 v5, v4, 4, v5")
    e("s_mul_i32 s14, s3, 6400\ns_mul_i32 s15, s3, 7168\ns_add_u32 s37, s14, 4096")
    e("s_waitcnt lgkmcnt(0)")
    srd_from(k, 16, PX, NBYTES['x'])
    X = 16
    for i in range(5):
        e(f"buffer_load_dwordx4 {vr(X+4*i,4)}, v5, s[16:19], s12 offen offset:{64*i}")
    tag_setup(k)
    e(f"s_cmp_eq_u32 s11, 0\ns_cselect_b32 s20, s{PWK}, s{PWV}\ns_cselect_b32 s21, s{PWK+1}, s{PWV+1}")
    e(f"s_mov_b32 s22, {hex(NBYTES['wk'])}\ns_mov_b32 s23, 0x20000\ns_mov_b32 m0, s15")
    for j in range(7):
        if j == 4: e("s_add_u32 m0, s15, 4096")
        e(f"buffer_load_dwordx4 v2, s[20:23], {'s14' if j < 4 else 's37'} offen offset:{(j%4)*1024} lds")
    srd_from(k, 28, PWS, XN_BYTES, XN_OFF)
    srd_from(k, 32, PWS, KV_BYTES, KV_OFF)
    e("v_mov_b32 v8, 0\nv_mov_b32 v9, 0\nv_mov_b32 v10, 0\nv_mov_b32 v11, 0")
    e("s_mov_b32 s38, 0x3f803f80")
    LST = 28672; RED = LST + 512
    e(f"s_lshl_b32 s39, s3, 7\ns_add_u32 s39, s39, {LST}")
    e("v_lshl_add_u32 v12, v3, 3, s39\nv_lshlrev_b32 v13, 3, v3")
    e("v_lshrrev_b32 v14, 2, v3\nv_lshl_add_u32 v14, v4, 3, v14\nv_mul_u32_u24 v14, 40, v14")
    e("v_and_b32 v15, 3, v1\nv_lshl_add_u32 v14, v15, 3, v14\nv_add_u32 v14, s15, v14")
    e(f"s_lshl_b32 s36, s4, 7\ns_add_u32 s36, s36, {STAT}")
    e("s_lshr_b32 s40, s4, 1\ns_mul_i32 s41, s40, 40960\ns_and_b32 s42, s4, 1")
    e("s_lshl_b32 s43, s42, 8\ns_add_u32 s41, s41, s43\ns_mul_i32 s43, s3, 10240\ns_add_u32 s41, s41, s43")
    e("v_lshlrev_b32 v5, 9, v4\nv_lshl_add_u32 v5, v3, 4, v5")
    e(f"s_lshl_b32 s39, s3, 11\ns_add_u32 s39, s39, {RED}\nv_add_u32 v92, s39, v2\ns_mul_i32 s39, s40, 3072")
    e(f"s_lshl_b32 s43, s4, 1\ns_add_u32 s43, s43, s11\ns_lshl_b32 s75, s43, 7\ns_add_u32 s75, s75, {XNF}\ns_lshl_b32 s43, s43, {KVS}\ns_add_u32 s43, s43, {KVF}")
    Lv, Lst = k.newlabel("v"), k.newlabel("st")
    e("v_lshl_add_u32 v7, s42, 4, v3\nv_and_b32 v15, 1, v4\nv_lshrrev_b32 v6, 1, v4\nv_mov_b32 v95, 0x7fffffff")
    e(f"s_mov_b64 s[24:25], 0\ns_cmp_lg_u32 s11, 0\ns_cbranch_scc1 {Lv}")
    e("v_lshl_add_u32 v93, v6, 5, v7\nv_lshlrev_b32 v93, 4, v93\nv_lshl_add_u32 v93, v15, 3, v93")
    e("v_lshlrev_b32 v94, 3, v7\nv_add_u32 v94, 1024, v94\nv_cmp_ne_u32 vcc, 0, v4")
    e(f"s_branch {Lst}")
    k.label(Lv)
    e("s_mul_i32 s26, s42, 768\ns_add_u32 s26, s26, 1536\ns_mov_b32 s24, 0x00100010\ns_mov_b32 s25, 0x00100010")
    e("v_mul_u32_u24 v93, 384, v15\nv_lshl_add_u32 v93, v3, 4, v93\nv_lshl_add_u32 v93, v6, 3, v93\nv_add_u32 v93, s26, v93")
    e("v_add_u32 v94, 256, v93\nv_cmp_lt_u32 vcc, 4, v3")
    k.label(Lst)
    e("v_cndmask_b32 v94, v94, v95, vcc\nv_mov_b32 v95, 0x3f803f80")
    tag_finish(k)
    for i in range(5):
        e(f"s_waitcnt vmcnt({11 - i})")
        for d in range(4*i, 4*i+4):
            a = 8 + (d & 1); q = 10 + (d & 1)
            e(f"v_dot2_f32_bf16 v{a}, v{X+d}, s38, v{a}")
            e(f"v_dot2_f32_bf16 v{q}, v{X+d}, v{X+d}, v{q}")
    bstamp(k, "xl")
    e("v_add_f32 v8, v8, v9\nv_add_f32 v9, v10, v11")
    for sw in ("v_permlane32_swap_b32", "v_permlane16_swap_b32"):
        e("v_mov_b32 v10, v8\nv_mov_b32 v11, v9")
        e(f"{sw} v8, v10\n{sw} v9, v11")
        e("v_add_f32 v8, v8, v10\nv_add_f32 v9, v9, v11")
    e("ds_write_b64 v12, v[8:9]")
    U = 96; W = 136
    for d in range(20):
        e(f"v_lshlrev_b32 v{U+2*d}, 16, v{X+d}\nv_and_b32 v{U+2*d+1}, 0xffff0000, v{X+d}")
        if d == 1:
            e("s_waitcnt lgkmcnt(0)\ns_barrier")
            for w in range(4): e(f"ds_read_b64 {vr(36+2*w,2)}, v13 offset:{LST+128*w}")
    e("s_waitcnt lgkmcnt(0) vmcnt(0)")
    for i in range(5):
        for tl in range(2):
            for u in range(2):
                e(f"ds_read_b64_tr_b16 {vr(W+8*i+4*tl+2*u,2)}, v14 offset:{i*1280 + u*160 + tl*32}")
    e("v_add_f32 v8, v36, v38\nv_add_f32 v9, v37, v39\nv_add_f32 v10, v40, v42\nv_add_f32 v11, v41, v43")
    e("v_add_f32 v8, v8, v10\nv_add_f32 v9, v9, v11")
    inv = hex(f32bits(1.0/640))
    e(f"v_mul_f32 v8, {inv}, v8\nv_mul_f32 v9, {inv}, v9")
    e("v_fma_f32 v9, -v8, v8, v9\nv_max_f32 v9, 0, v9")
    e("v_cvt_pk_bf16_f32 v10, v8, v9")
    e("v_lshlrev_b32 v8, 16, v10\nv_and_b32 v9, 0xffff0000, v10")
    e(f"v_add_f32 v9, {hex(f32bits(1e-5))}, v9")
    e("v_cvt_pk_bf16_f32 v9, v9, v9\nv_and_b32 v9, 0xffff0000, v9")
    e("v_sqrt_f32 v9, v9")
    e("v_cvt_pk_bf16_f32 v6, v8, v9")
    e(f"v_mov_b32 v7, {TAG}\nv_and_b32 v9, 0xffff0000, v6")
    Lns = k.newlabel("nost")
    e(f"s_lshl_b32 s26, s11, 2\ns_add_u32 s26, s26, s3\ns_cmp_lg_u32 s26, 7\ns_cbranch_scc1 {Lns}")
    e(f"s_mov_b64 exec, 0xffff\nbuffer_store_dwordx2 v[6:7], v13, {FL}, s36 offen {SC}\ns_mov_b64 exec, -1")
    k.label(Lns)
    e("v_rcp_f32 v10, v9")
    e(f"v_mul_f32 v10, {hex(f32bits(LOG2E))}, v10")
    e("v_mul_f32 v11, v8, v10")
    ACC = 44
    for d in range(20):
        u = U + 2*d
        e(f"v_fma_f32 v{u}, v{u}, v10, -v11\nv_fma_f32 v{u+1}, v{u+1}, v10, -v11")
        if d >= 1: e(f"v_cvt_pk_bf16_f32 v{X+d-1}, v{u-2}, v{u-1}")
    e(f"v_cvt_pk_bf16_f32 v{X+19}, v{U+38}, v{U+39}")
    Lmv, Lmd = k.newlabel("mv"), k.newlabel("md")
    e(f"s_waitcnt lgkmcnt(0)\ns_cmp_lg_u32 s11, 0\ns_cbranch_scc1 {Lmv}")
    def xst(i): return f"buffer_store_dwordx4 {vr(X+4*i,4)}, v5, s[28:31], s26 offen offset:{(i%2)*2048} {SC}"
    for m in range(2):
        if m: k.label(Lmv)
        for i in range(5):
            for tl in range(2):
                wf = vr(W+8*i+4*tl, 4); xf = vr(X+4*i, 4); acc = vr(ACC+4*tl, 4)
                a, b = (wf, xf) if m == 0 else (xf, wf)
                e(f"v_mfma_f32_16x16x32_bf16 {acc}, {a}, {b}, {'0' if i == 0 else acc}")
        if m == 0: e(f"s_branch {Lmd}")
    k.label(Lmd)
    bstamp(k, "xs")
    for tl in range(2):
        e(f"ds_write_b128 v92, {vr(ACC+4*tl,4)} offset:{tl*1024}")
    e("s_waitcnt lgkmcnt(0)\ns_barrier")
    Lx = k.newlabel("xst")
    e(f"s_cmp_lg_u32 s3, 0\ns_cbranch_scc1 {Lx}")
    R = 52
    for tl in range(2):
        for w in range(1, 4):
            e(f"ds_read_b128 {vr(R+16*tl+4*w,4)}, v92 offset:{w*2048 + tl*1024}")
    for tl in range(2):
        e(f"s_waitcnt lgkmcnt({3 - 3*tl})")
        r = R + 16*tl; c = ACC + 4*tl
        for j in range(4):
            e(f"v_add_f32 v{c+j}, v{c+j}, v{r+4+j}\nv_add_f32 v{r+8+j}, v{r+8+j}, v{r+12+j}\nv_add_f32 v{c+j}, v{c+j}, v{r+8+j}")
        e(f"v_cvt_pk_bf16_f32 v{8+2*tl}, v{c}, v{c+1}\nv_cvt_pk_bf16_f32 v{9+2*tl}, v{c+2}, v{c+3}")
        if tl: e("v_cndmask_b32 v10, v10, v95, s[24:25]\nv_cndmask_b32 v11, v11, v95, s[24:25]")
        e(f"buffer_store_dwordx2 {vr(8+2*tl,2)}, v{93+tl}, s[32:35], s39 offen {SC}")
    k.label(Lx)
    L1, L2 = k.newlabel("x1"), k.newlabel("x2")
    e(f"s_cmp_lg_u32 s11, 0\ns_cbranch_scc1 {L1}")
    e("s_mov_b32 s26, s41"); e(xst(0)); e(xst(1)); e("s_add_u32 s26, s41, 4096"); e(xst(2))
    e(f"s_branch {L2}")
    k.label(L1)
    e("s_add_u32 s26, s41, 4096"); e(xst(3)); e("s_add_u32 s26, s41, 8192"); e(xst(4))
    k.label(L2)
    bstamp(k, "xf")

def roleB(k):
    e = k.e
    SLOT = 20480
    GW, RA, RB = 216, 221, 224
    ACC = 32; FR = [176, 196]
    Lgu = k.newlabel("gu0"); Lpk = k.newlabel("pk")
    bstamp(k, "start")
    e("s_and_b32 s5, s2, 7\ns_lshr_b32 s6, s2, 3")
    def tile_ids():
        e("s_lshr_b32 s7, s5, 1\ns_lshl_b32 s7, s7, 2\ns_lshr_b32 s8, s6, 3\ns_add_u32 s7, s7, s8")
        e("s_and_b32 s9, s5, 1\ns_lshl_b32 s8, s9, 3\ns_and_b32 s10, s6, 7\ns_add_u32 s8, s8, s10\ns_lshl_b32 s11, s7, 1\ns_add_u32 s9, s9, s11")
    def gu_vsetup(t):
        e("s_and_b32 s11, s3, 2")
        for i in range(3):
            e(f"v_add_u32 v{t}, {64*i}, v1\nv_mul_u32_u24 v{t+1}, 5462, v{t}\nv_lshrrev_b32 v{t+1}, 16, v{t+1}")
            e(f"v_mul_u32_u24 v{t+2}, 12, v{t+1}\nv_sub_u32 v{t+2}, v{t}, v{t+2}\nv_xor_b32 v{t+2}, s11, v{t+2}")
            e(f"v_mul_u32_u24 v{t+1}, 3072, v{t+1}\nv_lshl_add_u32 v{GW+i}, v{t+2}, 4, v{t+1}")
    def gu_vsetup2(t):
        e(f"v_lshrrev_b32 v{t}, 5, v1\nv_bfe_u32 v{t+1}, v1, 2, 2\nv_lshl_add_u32 v{t+1}, v{t}, 3, v{t+1}\nv_mul_u32_u24 v{t+1}, 192, v{t+1}")
        e(f"v_and_b32 v{t+2}, 1, v1\nv_lshl_add_u32 v{t+1}, v{t+2}, 4, v{t+1}\nv_bfe_u32 v{t+2}, v1, 1, 1\nv_lshl_add_u32 v{t+1}, v{t+2}, 3, v{t+1}")
        e(f"v_bfe_u32 v{t+2}, v1, 4, 1\nv_mul_u32_u24 v{t+3}, 6144, v{t+2}\nv_add_u32 v{t+1}, v{t+1}, v{t+3}")
        e("s_lshr_b32 s11, s3, 1\ns_mul_i32 s11, s11, 3")
        for a in range(3):
            e(f"v_xor_b32 v{t+3}, s11, v{t+2}\nv_lshl_add_u32 v{RA+a}, v{t+3}, 5, v{t+1}\ns_add_u32 s11, s11, 1")
        e(f"s_and_b32 s11, s3, 1\ns_lshl_b32 s11, s11, 12\ns_add_u32 s11, s11, 12288\nv_add_u32 v{RB}, s11, v2")
        e(f"v_and_b32 v{RB+1}, 3, v1\nv_lshlrev_b32 v{RB+1}, 7, v{RB+1}")
    def zero_acc():
        for j in range(96): e(f"v_mov_b32 v{ACC+j}, 0")
    def gu_ssetup():
        e("s_lshr_b32 s38, s3, 1\ns_and_b32 s39, s3, 1\ns_mul_i32 s40, s38, 3")
        srd_from(k, 16, PWS, XN_BYTES, XN_OFF)
        e(f"s_cmp_eq_u32 s38, 0\ns_cselect_b32 s20, s{PWG}, s{PWU}\ns_cselect_b32 s21, s{PWG+1}, s{PWU+1}")
        e(f"s_mov_b32 s22, {hex(NBYTES['wg'])}\ns_mov_b32 s23, 0x20000")
        e("s_mul_i32 s12, s39, 49152\ns_mul_i32 s32, s8, 192\ns_add_u32 s12, s12, s32")
        e(f"s_lshl_b32 s32, s7, 2\ns_add_u32 s32, s32, s3\ns_mul_i32 s13, s32, 40960\ns_lshl_b32 s42, s32, 9\ns_add_u32 s42, s42, {XNF}")
        e("s_mul_i32 s14, s3, 3072\ns_lshl_b32 s15, s3, 11\ns_add_u32 s15, s15, 12288")
    def issueW(sl):
        return [[f"s_add_u32 m0, s14, {sl*SLOT}"],
                [f"buffer_load_dwordx4 v{GW}, s[20:23], s12 offen lds", "s_add_u32 m0, m0, 1024"],
                [f"buffer_load_dwordx4 v{GW+1}, s[20:23], s12 offen lds", "s_add_u32 m0, m0, 1024"],
                [f"buffer_load_dwordx4 v{GW+2}, s[20:23], s12 offen lds", f"s_add_u32 s12, s12, {32*3072}"]]
    def issueX(sl):
        return [[f"s_add_u32 m0, s15, {sl*SLOT}"],
                [f"buffer_load_dwordx4 v2, s[16:19], s13 offen {SC} lds"],
                [f"buffer_load_dwordx4 v2, s[16:19], s13 offen offset:1024 {SC} lds", "s_add_u32 s13, s13, 2048"]]
    xn_poll = [f"buffer_load_dword v16, v{RB+1}, {FL}, s42 offen {SC}"]
    e("s_lshl_b32 s4, s5, 4\ns_lshr_b32 s11, s6, 1\ns_add_u32 s4, s4, s11\ns_and_b32 s11, s6, 1")
    def pre():
        tile_ids(); gu_vsetup(232); gu_vsetup2(232)
    if CPF:
        Lc = k.newlabel("nocp"); Lh = k.newlabel("here")
        e(f"s_cmp_lg_u32 s6, 31\ns_cbranch_scc1 {Lc}")
        e("s_getpc_b64 s[34:35]")
        k.label(Lh)
        e(f"s_sub_u32 s34, s34, {Lh}-{k.name}\ns_subb_u32 s35, s35, 0")
        e(f"v_lshlrev_b32 v9, 7, v0\nv_min_u32 v9, {k.name}_end-{k.name}-4, v9")
        e("global_load_dword v255, v9, s[34:35]")
        k.label(Lc)
    phase0(k)
    pre()
    gu_ssetup()
    zero_acc()
    e("s_waitcnt vmcnt(2)")
    setflag(k, "s43", 10)
    Lw0 = k.newlabel("w0")
    e(f"s_waitcnt vmcnt(1)\ns_cmp_eq_u32 s3, 0\ns_cbranch_scc1 {Lw0}\ns_waitcnt vmcnt(0)")
    k.label(Lw0)
    e("s_barrier")
    setflag(k, "s75", 10)
    e(f"s_setprio {BP0}\ns_mov_b32 s11, {HUGE}")
    e(f"s_lshl_b32 s41, s2, 7\ns_add_u32 s41, s41, {QF}\nv_mov_b32 v31, 0")
    def go():
        if QH >= 0: spin(k, xn_poll + [f"buffer_load_dword v29, v31, {FL}, s41 offen {SC}"], [16, 29], 17, slp=BSL)
        else: spin(k, xn_poll, [16], 17, slp=BSL)
    e(f"s_cmp_lt_u32 s2, 136\ns_cbranch_scc1 {Lpk}")
    go()
    for c in range(4): emit(k, issueW(c)); emit(k, issueX(c))
    e(f"s_branch {Lgu}")
    k.label(Lpk)
    PKB = 3*SLOT; PD = 128
    e("s_mov_b32 s4, s2\ns_mul_i32 s33, s3, 320")
    for i in range(5):
        e(f"v_add_u32 v13, {64*i}, v1\nv_add_u32 v13, s33, v13\nv_mul_u32_u24 v{19+i}, 52429, v13\nv_lshrrev_b32 v{19+i}, 22, v{19+i}")
        e(f"v_mul_u32_u24 v14, 80, v{19+i}\nv_sub_u32 v14, v13, v14\nv_lshlrev_b32 v{24+i}, 4, v14")
    def pack_issue(first, lo=0):
        e("s_mul_i32 s32, s4, 241\ns_lshr_b32 s32, s32, 13\ns_mul_i32 s33, s32, 34\ns_sub_u32 s33, s4, s33")
        e("s_mul_i32 s34, s32, 384\ns_lshl_b32 s35, s33, 4\ns_add_u32 s34, s34, s35")
        e("s_sub_u32 s36, s33, 24\ns_sub_u32 s37, s33, 29\ns_cmp_ge_u32 s33, 29\ns_cselect_b32 s36, s37, s36\ns_cselect_b32 s37, 320, 0")
        e("s_mul_i32 s35, s32, 80\ns_add_u32 s35, s35, s37\ns_mul_i32 s37, s36, 20")
        e("s_cmp_eq_u32 s36, 4\ns_cselect_b32 s37, 16, s37\ns_cselect_b32 s43, 16, 0\ns_add_u32 s36, s35, s37")
        for i in range(5):
            e(f"v_lshrrev_b32 v13, 2, v{19+i}\nv_mul_u32_u24 v13, s43, v13\nv_add_u32 v13, v13, v{19+i}\nv_mul_u32_u24 v13, 1280, v13\nv_add_u32 v{3+i}, v13, v{24+i}")
        first()
        e(f"s_cmp_ge_u32 s33, 24\ns_cselect_b32 s34, s36, s34\ns_cselect_b32 s24, s{PWO}, s{PWD}\ns_cselect_b32 s25, s{PWO+1}, s{PWD+1}")
        e(f"s_cselect_b32 s26, {hex(NBYTES['wo'])}, s26\ns_mov_b32 s27, 0x20000\ns_mul_i32 s34, s34, 1280")
        e(f"s_mul_i32 s35, s3, 5120\ns_add_u32 m0, s35, {PKB+lo}")
        for i in range(5):
            e(f"buffer_load_dwordx4 v{3+i}, s[24:27], s34 offen lds")
            if i < 4: e("s_add_u32 m0, m0, 1024")
    def pack_finish(lo=0):
        for c in range(2):
            for a in range(3):
                for u in range(2):
                    ad, off = ("v10", a*64) if a < 2 else ("v11", 0)
                    e(f"ds_read_b64_tr_b16 {vr(PD+12*c+4*a+2*u,2)}, {ad} offset:{lo + c*160 + off + u*5120}")
        e(f"s_mul_i32 s5, s3, {2*136*2560}\ns_mul_i32 s6, s4, 2560\ns_add_u32 s5, s5, s6\ns_add_u32 s6, s5, {136*2560}")
        e("s_waitcnt lgkmcnt(0)")
    e("v_lshrrev_b32 v8, 5, v1\nv_bfe_u32 v9, v1, 2, 2\nv_lshl_add_u32 v9, v8, 3, v9\nv_mul_u32_u24 v9, 1280, v9")
    e(f"s_mul_i32 s32, s3, 320\ns_add_u32 s32, s32, {PKB}\nv_add_u32 v9, s32, v9")
    e("v_and_b32 v16, 1, v1\nv_bfe_u32 v17, v1, 1, 1\nv_bfe_u32 v18, v1, 4, 1")
    e("v_lshl_add_u32 v10, v16, 5, v9\nv_lshl_add_u32 v10, v17, 3, v10\nv_lshl_add_u32 v10, v18, 4, v10")
    e("v_lshl_add_u32 v11, v16, 4, v9\nv_lshl_add_u32 v11, v17, 3, v11\nv_add_u32 v11, 128, v11\nv_lshl_add_u32 v11, v18, 18, v11")
    e("v_and_b32 v12, 15, v1\nv_lshlrev_b32 v12, 4, v12\nv_lshl_add_u32 v12, v8, 8, v12\nv_lshl_add_u32 v12, v18, 30, v12")
    e(f"s_lshl_b32 s75, s4, 2\ns_add_u32 s75, s75, {PKF}")
    e(f"s_mov_b32 s26, {hex(NBYTES['wd'])}")
    pack_issue(go)
    for c in range(2): emit(k, issueW(c)); emit(k, issueX(c))
    e("s_waitcnt vmcnt(10)\ns_barrier")
    pack_finish()
    emit(k, issueW(2)); emit(k, issueX(2))
    e("s_barrier")
    emit(k, issueW(3)); emit(k, issueX(3))
    k.label(Lgu)
    bstamp(k, "p0")
    srd_from(k, 28, PWS, AF_BYTES, AF_OFF)
    def reads(fs, sl, ks):
        L = [f"ds_read_b128 {vr(FR[fs]+12,4)}, v{RB} offset:{sl*SLOT + ks*1024}"]
        for a in range(3):
            for u in range(2):
                L.append(f"ds_read_b64_tr_b16 {vr(FR[fs]+4*a+2*u,2)}, v{RA+a} offset:{sl*SLOT + (16*ks+4*u)*192}")
            if a == 0: L.append(f"ds_read_b128 {vr(FR[fs]+16,4)}, v{RB} offset:{sl*SLOT + 2048 + ks*1024}")
        return L
    def mfmas(fs):
        return [f"{MF} {vr(ACC+16*(2*a+b),16)}, {vr(FR[fs]+4*a,4)}, {vr(FR[fs]+12+4*b,4)}, {vr(ACC+16*(2*a+b),16)}" for a in range(3) for b in range(2)]
    e("s_mov_b32 s42, 0\nv_min_u32 v4, 33, v1\nv_lshlrev_b32 v4, 4, v4")
    e("s_waitcnt vmcnt(15)\ns_barrier")
    e(f"s_setprio {GP0}")
    bstamp(k, "gu0")
    if ONLY == "A":
        e("s_waitcnt vmcnt(0)"); stamp_dump(k, 0, 6, "s2", PWS); e("s_endpgm")
    emit(k, reads(0, 0, 0))
    srd_from(k, 24, PWS, WP_BYTES, WP_OFF)
    e(f"s_mul_i32 s11, s10, {4*34*2560}\ns_mul_i32 s43, s3, 5120\ns_add_u32 s11, s11, s43\ns_mov_b32 s35, {HUGE}")
    st_loads = [f"buffer_load_dwordx4 v[16:19], v4, {FL}, s36 offen {SC}"]
    def issueP(sl):
        L = [[f"s_add_u32 m0, s43, {sl*SLOT}", "s_add_u32 s33, s11, 4096"]]
        for i in range(4): L.append([f"buffer_load_dwordx4 v2, s[24:27], s11 offen offset:{i*1024} {SC} lds"])
        L[4].append("s_add_u32 m0, m0, 4096")
        L.append([f"buffer_load_dwordx4 v2, s[24:27], s33 offen {SC} lds", f"s_add_u32 s11, s11, {34*2560}"])
        return L
    L = k.newlabel("gu")
    def trip(last):
        for sl in range(4):
            e("s_waitcnt lgkmcnt(0)")
            rd = reads(1, sl, 1); mf = mfmas(0)
            sh = [rd[0:2], rd[2:4], rd[4:6], rd[6:8], [], []]
            if not last and sl == 1: sh[4] = ["s_cmp_eq_u32 s42, 3", f"s_cselect_b32 s36, {PKF}, s35"] + st_loads
            for i in range(6):
                e(mf[i]); emit(k, sh[i])
            if sl == 0 and not last:
                Ls = k.newlabel("nps")
                e(f"s_cmp_ge_u32 s2, 136\ns_cbranch_scc1 {Ls}\ns_cmp_lg_u32 s42, 1\ns_cbranch_scc1 {Ls}")
                for c in range(2):
                    for a in range(3):
                        e(f"buffer_store_dwordx4 {vr(PD+12*c+4*a,4)}, {'v2' if a < 2 else 'v12'}, s[24:27], s{5+c} offen offset:{a*1024} {SC}")
                k.label(Ls)
            if sl == 1 and not last:
                Ls = k.newlabel("npf")
                e(f"s_cmp_ge_u32 s2, 136\ns_cbranch_scc1 {Ls}\ns_cmp_lg_u32 s42, 2\ns_cbranch_scc1 {Ls}")
                setflag(k, "s75", 10)
                k.label(Ls)
            if sl == 2 and GSW >= 0 and not last:
                Lt = k.newlabel("gsw")
                e(f"s_cmp_lg_u32 s42, {GSW}\ns_cbranch_scc1 {Lt}\ns_setprio {GP1}")
                k.label(Lt)
            e("s_waitcnt vmcnt(10) lgkmcnt(0)\ns_barrier")
            rd = reads(0, (sl+1) % 4, 0) if not (last and sl == 3) else [[]]*8
            mf = mfmas(1)
            if not last:
                iw = issueW(sl); ix = issueX(sl)
                sh = [rd[0:2] + iw[0], rd[2:4] + iw[1], rd[4:6] + iw[2], rd[6:8] + iw[3] + ix[0], ix[1], ix[2]]
                if sl == 3: sh[5] = sh[5] + ["s_add_u32 s42, s42, 1", "s_cmp_lt_u32 s42, 4"]
            else:
                ip = issueP(sl)
                sh = [rd[0:2] + ip[0], rd[2:4] + ip[1], rd[4:6] + ip[2], rd[6:8] + ip[3], ip[4], ip[5]]
            for i in range(6):
                e(mf[i]); emit(k, sh[i])
    k.label(L, 6)
    trip(False)
    e(f"s_cbranch_scc1 {L}")
    Lok = k.newlabel("pkok")
    e(f"s_setprio 2\nv_xor_b32 v20, {TAG}, v16")
    for r in (17, 18, 19): e(f"v_xor_b32 v{r}, {TAG}, v{r}\nv_or_b32 v20, v20, v{r}")
    e(f"v_cmp_ne_u32 vcc, 0, v20\ns_cmp_eq_u64 vcc, 0\ns_cbranch_scc1 {Lok}")
    spin(k, st_loads, [16, 17, 18, 19], 20)
    k.label(Lok)
    e(f"s_setprio {GP0}")
    trip(True)
    e("s_setprio 2")
    e("v_lshrrev_b32 v8, 5, v1")
    e(f"s_mul_i32 s14, s3, {SLOT}")
    srd_from(k, 20, PWS, WP_BYTES, WP_OFF)
    srd_from(k, 16, PX, NBYTES['x'])
    e(f"s_lshl_b32 s12, s10, 2\ns_add_u32 s12, s12, s3\ns_mul_i32 s12, s12, {34*2560}\ns_add_u32 s12, s12, {4*5120}")
    e(f"s_lshl_b32 s32, s7, 1\ns_add_u32 s32, s32, s39\ns_mul_i32 s32, s32, 272\ns_mul_i32 s43, s8, 6\ns_add_u32 s32, s32, s43\ns_add_u32 s32, s32, s40\ns_add_u32 s32, s32, 40\ns_lshl_b32 s32, s32, 10")
    e(f"s_add_u32 s34, s32, {136*1024}\ns_mov_b32 s33, {hex(f32bits(LOG2E*LOG2E))}")
    e("s_waitcnt lgkmcnt(0)")
    bstamp(k, "gu1")
    def issueW2(sl):
        L = [[f"s_add_u32 m0, s14, {sl*5120}", "s_add_u32 s33, s12, 4096"]]
        for i in range(4): L.append([f"buffer_load_dwordx4 v2, s[20:23], s12 offen offset:{i*1024} {SC} lds"])
        L[4].append("s_add_u32 m0, m0, 4096")
        L.append([f"buffer_load_dwordx4 v2, s[20:23], s33 offen {SC} lds", "s_add_u32 s12, s12, 5120"])
        return L
    T = 176
    if PKS: e("v_mov_b32 v184, s33\nv_mov_b32 v185, s33")
    for a in range(3):
        for b in range(2):
            g = ACC + 16*(2*a+b); u = g + 8
            for j in range(8): e(f"v_exp_f32 v{T+j}, -v{g+j}")
            if PKS:
                for j in range(0, 8, 2): e(f"v_pk_mul_f32 {vr(g+j,2)}, {vr(g+j,2)}, {vr(u+j,2)}")
                for j in range(0, 8, 2): e(f"v_pk_fma_f32 {vr(T+j,2)}, {vr(T+j,2)}, v[184:185], v[184:185]")
            else:
                for j in range(8): e(f"v_mul_f32 v{g+j}, v{g+j}, v{u+j}")
                for j in range(8): e(f"v_fma_f32 v{T+j}, v{T+j}, s33, s33")
            for j in range(8): e(f"v_rcp_f32 v{T+j}, v{T+j}")
            if PKS:
                for j in range(0, 8, 2): e(f"v_pk_mul_f32 {vr(g+j,2)}, {vr(g+j,2)}, {vr(T+j,2)}")
            else:
                for j in range(8): e(f"v_mul_f32 v{g+j}, v{g+j}, v{T+j}")
            for j in range(4): e(f"v_cvt_pk_bf16_f32 v{u+j}, v{g+2*j}, v{g+2*j+1}")
            e(f"buffer_store_dwordx4 {vr(u,4)}, v2, s[28:31], {'s34' if b else 's32'} offen offset:{a*1024} {SC}")
    wq_ = []
    assert not wq_
    e("v_add_u32 v10, s14, v2\nv_and_b32 v11, 15, v1\nv_lshlrev_b32 v11, 4, v11\nv_lshl_add_u32 v11, v8, 8, v11\nv_bfe_u32 v9, v1, 4, 1")
    e("v_lshl_add_u32 v7, v9, 30, v11\nv_lshl_add_u32 v11, v9, 18, v11\nv_add_u32 v11, s14, v11")
    e(f"s_lshl_b32 s35, s7, 4\ns_add_u32 s36, s35, s8\ns_lshl_b32 s36, s36, 7\ns_add_u32 s36, s36, {HF}")
    e(f"s_mul_i32 s24, s9, {272*1024}\ns_mul_i32 s32, s3, {24*1024}\ns_add_u32 s26, s24, s32\ns_add_u32 s26, s26, {40*1024}\ns_add_u32 s27, s26, {136*1024}")
    e("v_and_b32 v14, 3, v1\nv_lshlrev_b32 v14, 7, v14\nv_and_b32 v6, 1, v1\nv_lshlrev_b32 v6, 7, v6")
    if WF: e("v_bfe_u32 v5, v1, 1, 2\nv_lshl_add_u32 v6, v5, 2, v6")
    e(f"s_lshl_b32 s32, s3, 2\ns_add_u32 s32, s32, s35\ns_lshl_b32 s32, s32, 7\ns_add_u32 s32, s32, {HF}")
    e("s_lshr_b32 s40, s3, 1\ns_and_b32 s41, s3, 1")
    e("s_lshl_b32 s34, s9, 1\ns_add_u32 s34, s34, s40\ns_mul_i32 s34, s34, 40960\ns_mul_i32 s33, s10, 160\ns_add_u32 s43, s34, s33")
    e("v_and_b32 v5, 31, v1\nv_mul_u32_u24 v5, 1280, v5")
    e("s_lshl_b32 s34, s41, 6\nv_lshl_add_u32 v12, v8, 5, v5\nv_add_u32 v12, s34, v12")
    e("s_lshl_b32 s34, s41, 3\ns_add_u32 s34, s34, 128\nv_lshl_add_u32 v13, v8, 4, v5\nv_add_u32 v13, s34, v13")
    e("s_mul_i32 s34, s40, 10240\ns_lshl_b32 s33, s41, 12\ns_add_u32 s33, s33, s34\nv_add_u32 v15, s33, v2")
    e("s_lshl_b32 s33, s41, 10\ns_add_u32 s33, s33, s34\ns_add_u32 s33, s33, 8192\nv_add_u32 v3, s33, v2")
    e(f"s_lshl_b32 s25, s9, 3\ns_add_u32 s25, s25, s3\ns_lshl_b32 s25, s25, 7\ns_add_u32 s25, s25, {OF}\nv_mov_b32 v6, 0")
    e(f"s_mul_i32 s33, s3, {10*1024}\ns_add_u32 s24, s24, s33")
    e("s_waitcnt vmcnt(0)\ns_barrier")
    setflag(k, "s36", 16, "B")
    hl = [f"buffer_load_dword v16, v14, {FL}, s32 offen {SC}"]
    XS = 232; G4 = [20, 244]
    e(f"s_add_u32 s34, s12, {24*2560}\ns_add_u32 s35, s12, {25*2560}")
    srd_from(k, 36, POUT, NBYTES['out'])
    spin(k, hl, [16], 17)
    e(f"s_setprio {TP}")
    XR = 128; FA = [208, 220]
    def issueX2(rs):
        L = []
        for ks in range(2):
            for b in range(2):
                L.append([f"buffer_load_dwordx4 {vr(XR+16*rs+8*ks+4*b,4)}, v2, s[28:31], s{26+b} offen offset:{ks*1024} {SC}"])
        L[3] += ["s_add_u32 s26, s26, 2048", "s_add_u32 s27, s27, 2048"]
        return L
    for g in range(4): emit(k, issueX2(g))
    def reads2(fs, sl, ks):
        return [f"ds_read_b128 {vr(FA[fs]+4*a,4)}, {'v10' if a < 2 else 'v11'} offset:{sl*5120 + ks*2560 + a*1024}" for a in range(3)]
    def mfmas2(fs, rs, ks, c0=False):
        return [f"{MF} {vr(ACC+16*(3*b+a),16)}, {vr(FA[fs]+4*a,4)}, {vr(XR+16*rs+8*ks+4*b,4)}, {'0' if c0 else vr(ACC+16*(3*b+a),16)}" for a in range(3) for b in range(2)]
    e(f"s_mov_b32 s42, 0\ns_setprio {DP}")
    emit(k, reads2(0, 0, 0))
    e("s_waitcnt vmcnt(14) lgkmcnt(0)")
    bstamp(k, "dn0")
    L = k.newlabel("dn"); Lm = k.newlabel("dnm")
    rd = reads2(1, 0, 1); mf = mfmas2(0, 0, 0, True)
    for i in range(6):
        e(mf[i]); emit(k, rd[i:i+1])
    e("s_waitcnt vmcnt(0)")
    for ks in range(2):
        for a in range(3):
            e(f"buffer_load_dwordx4 {vr(G4[ks]+4*a,4)}, {'v2' if a < 2 else 'v7'}, s[20:23], s{34+ks} offen offset:{a*1024} {SC}")
    e(f"buffer_load_dwordx4 {vr(XS,4)}, v12, s[16:19], s43 offen")
    e(f"buffer_load_dwordx4 {vr(XS+4,4)}, v12, s[16:19], s43 offen offset:16")
    e(f"buffer_load_dwordx2 {vr(XS+8,2)}, v13, s[16:19], s43 offen")
    e(f"s_branch {Lm}")
    k.label(L, 6)
    for sl in range(4):
        e("s_waitcnt lgkmcnt(0)")
        rd = reads2(1, sl, 1); mf = mfmas2(0, sl, 0)
        sh = [rd[0:1], rd[1:2], rd[2:3], [], [], []]
        if sl == 0: sh[3] = ["s_cmp_eq_u32 s42, 2", f"s_cselect_b32 s26, {HUGE}, s26", f"s_cselect_b32 s27, {HUGE}, s27"]
        for i in range(6):
            e(mf[i]); emit(k, sh[i])
        if sl == 0: k.label(Lm)
        e("s_waitcnt vmcnt(18) lgkmcnt(0)")
        rd = reads2(0, (sl+1) % 4, 0); mf = mfmas2(1, sl, 1)
        iw = issueW2(sl); ix = issueX2(sl)
        sh = [rd[0:1] + iw[0], rd[1:2] + iw[1], rd[2:3] + iw[2], iw[3] + iw[4], iw[5], ix[0] + ix[1] + ix[2] + ix[3]]
        if sl == 3: sh[5] = sh[5] + ["s_add_u32 s42, s42, 1", "s_cmp_lt_u32 s42, 3"]
        for i in range(6):
            e(mf[i]); emit(k, sh[i])
    e(f"s_cbranch_scc1 {L}")
    e("s_setprio 2")
    emit(k, reads2(1, 0, 1))
    bstamp(k, "dn1")
    def oload(b, t):
        return [f"s_add_u32 s26, s24, {b*136*1024 + t*1024}", f"buffer_load_dwordx4 {vr(XR+40*b+4*t,4)}, v2, s[28:31], s26 offen {SC}"]
    f2 = [f"buffer_load_dword v18, v6, {FL}, s25 offen offset:512 {SC}"]
    if ONLY != "B": spin(k, [f"buffer_load_dword v16, v6, {FL}, s25 offen {SC}"] + f2, [16], 17)
    else: e(f"s_waitcnt vmcnt(0)\nv_mov_b32 v18, {TAG}")
    for t in range(5):
        for b in range(2): emit(k, oload(b, t))
    seq = [(t, (0, 1)) for t in range(5)] + [(t, (0,)) for t in range(5, 10)] + [(t, (1,)) for t in range(5, 10)]
    lsteps = [t for t, _ in seq if t < 8]
    wr = [f"ds_write_b128 v10, {vr(ACC+4*q,4)} offset:{q*1024}" for q in range(10)]
    def late_loads():
        for b in range(2):
            for t2 in range(5, 10): emit(k, oload(b, t2))
    def steps(us, lds, n, younger):
        for u in us:
            t, bs = seq[u]
            vm = (8 - 2*u + younger) if u < 5 else (14 - u)
            if t < 8:
                last = max([i for i, x in enumerate(lds) if x == f"n{n}"], default=-1)
                lds = lds[last+1:]
                e(f"s_waitcnt vmcnt({vm}) lgkmcnt({min(15, len(lds))})")
                F = FA[n & 1]
            else:
                e(f"s_waitcnt vmcnt({vm})")
                F = G4[t-8]
            for a in range(3):
                for b in bs:
                    e(f"{MF} {vr(ACC+16*(3*b+a),16)}, {vr(F+4*a,4)}, {vr(XR+40*b+4*t,4)}, {vr(ACC+16*(3*b+a),16)}")
                    if u >= 11 and wr:
                        e(wr.pop(0)); lds.append("w")
            if t < 8:
                if n + 2 < len(lsteps):
                    t2 = lsteps[n+2]
                    emit(k, reads2(n & 1, t2 >> 1, t2 & 1)); lds += [f"n{n+2}"]*3
                n += 1
        return lds, n
    Lb, Lj = k.newlabel("both"), k.newlabel("join")
    e(f"v_cmp_ne_u32 vcc, {TAG}, v18\ns_cmp_eq_u64 vcc, 0\ns_cbranch_scc1 {Lb}")
    emit(k, f2)
    steps(range(5), ["n0"]*3 + ["n1"]*3, 0, 1)
    spin(k, f2, [18], 17, pre_issued=True)
    late_loads()
    e(f"s_branch {Lj}")
    k.label(Lb)
    late_loads()
    lds, n = steps(range(5), ["n0"]*3 + ["n1"]*3, 0, 10)
    k.label(Lj)
    bstamp(k, "of")
    steps(range(5, 15), lds, n, 0)
    assert not wr
    bstamp(k, "mm")
    for q in range(10):
        e(f"ds_write_b128 v10, {vr(ACC+48+4*q,4)} offset:{(10+q)*1024}")
    e("s_waitcnt lgkmcnt(0)\ns_barrier")
    R = 128
    for w in range(4):
        for q in range(4):
            e(f"ds_read_b128 {vr(R+20*w+4*q,4)}, v15 offset:{w*SLOT + q*1024}")
        e(f"ds_read_b128 {vr(R+20*w+16,4)}, v3 offset:{w*SLOT}")
    for j in range(10):
        e(f"v_lshlrev_b32 v{ACC+2*j}, 16, v{XS+j}\nv_and_b32 v{ACC+2*j+1}, 0xffff0000, v{XS+j}")
    for w in range(4):
        e(f"s_waitcnt lgkmcnt({15-5*w})")
        for j in range(0, 20, 2):
            e(f"v_pk_add_f32 {vr(ACC+j,2)}, {vr(ACC+j,2)}, {vr(R+20*w+j,2)}")
    for j in range(10):
        e(f"v_cvt_pk_bf16_f32 v{XS+j}, v{ACC+2*j}, v{ACC+2*j+1}")
    bstamp(k, "rd")
    e(f"buffer_store_dwordx4 {vr(XS,4)}, v12, s[36:39], s43 offen {OM}")
    e(f"buffer_store_dwordx4 {vr(XS+4,4)}, v12, s[36:39], s43 offen offset:16 {OM}")
    e(f"buffer_store_dwordx2 {vr(XS+8,2)}, v13, s[36:39], s43 offen {OM}")
    stamp_dump(k, 0, 9, "s2", PWS)
    e("s_endpgm")

def w160_voffs(k, dst, t):
    e = k.e
    for i in range(5):
        e(f"v_add_u32 v{t}, {64*i}, v1\nv_mul_u32_u24 v{t+1}, 6554, v{t}\nv_lshrrev_b32 v{t+1}, 16, v{t+1}")
        e(f"v_mul_u32_u24 v{t+2}, 10, v{t+1}\nv_sub_u32 v{t+2}, v{t}, v{t+2}")
        e(f"v_and_b32 v{t}, 24, v{t+1}\nv_bfe_u32 v{t+3}, v{t+1}, 1, 2\nv_add_u32 v{t}, v{t}, v{t+3}\nv_and_b32 v{t+3}, 1, v{t+1}\nv_lshl_add_u32 v{t}, v{t+3}, 2, v{t}")
        e(f"v_mul_u32_u24 v{t}, 1280, v{t}\nv_lshl_add_u32 v{dst+i}, v{t+2}, 4, v{t}")

def roleA(k, mid):
    e = k.e
    AST = env("AST", 0)
    import common
    def stamp(k, i, q=False):
        if AST and not q and 2 < i < 7: return
        if q and not AST: return
        common.stamp(k, i)
    KVSLOT = 24576; KV0 = 8192
    QS = 20480; QX = 10240
    S0, S1 = 32, 48; SA = 64
    Q = [16, 24]; O = [144, 160]; P = [96, 104]; KVB = [112, 128]; KT = 176
    KL = lambda s: KVB[s]; KH = lambda s: KVB[s]+4; V0 = lambda s: KVB[s]+8; V1 = lambda s: KVB[s]+12
    AKL, AKH, AV, BKH, BV = 8, 9, 10, 11, 12
    WV = 16; XV = 21; RB = 24; ONES = 28
    FRG = 80
    AO2 = 241; RB2 = 224
    stamp(k, 0)
    e("s_bfe_u32 s8, s2, 0x20001\ns_lshl_b32 s8, s8, 3\ns_lshr_b32 s9, s2, 5\ns_add_u32 s8, s8, s9")
    e("s_and_b32 s9, s2, 1\ns_lshl_b32 s9, s9, 2\ns_bfe_u32 s32, s2, 0x20003\ns_add_u32 s9, s9, s32")
    e("s_add_u32 s11, s8, s9\ns_mul_i32 s11, s11, 3\ns_mul_i32 s32, s11, 205\ns_lshr_b32 s32, s32, 11\ns_mul_i32 s32, s32, 10\ns_sub_u32 s11, s11, s32")
    if ROT == 0: e("s_mov_b32 s11, 0")
    if ROT == 2: e("s_and_b32 s11, s11, 1")
    if ROT == 3: e("s_bfe_u32 s11, s2, 0x20001\ns_lshl_b32 s11, s11, 1")
    x_voffs(k, XV, 3)
    w160_voffs(k, WV, 3)
    def essential():
        e("v_lshrrev_b32 v6, 5, v1")
        e("v_bfe_u32 v7, v1, 2, 2\nv_lshl_add_u32 v7, v6, 2, v7\nv_mul_u32_u24 v4, 320, v7")
        e("v_and_b32 v7, 1, v1\nv_lshlrev_b32 v7, 4, v7")
        e("v_bfe_u32 v8, v1, 1, 1\nv_lshl_add_u32 v7, v8, 3, v7")
        e("v_and_b32 v8, 16, v1\nv_cmp_ne_u32 vcc, 0, v8\nv_mov_b32 v8, 32\nv_cndmask_b32 v7, v7, v8, vcc")
        e("v_add_u32 v4, v4, v7\ns_mul_i32 s32, s3, 40\nv_add_u32 v4, s32, v4")
        e("v_and_b32 v8, 19, v1\nv_cmp_lt_u32 vcc, 16, v8\nv_mov_b32 v8, 0x40000\nv_cndmask_b32 v4, v4, v8, vcc")
        e("v_add_u32 v5, 40960, v4")
        x_raddr(k, RB, 7, str(QX))
        for j in range(4): e(f"v_mov_b32 v{ONES+j}, 0x3f803f80")
        for j in range(4): e(f"v_add_u32 v{RB2+j}, 40960, v{RB+j}")
    if ADLY == 3: essential()
    Lw = k.newlabel("wrole")
    e(f"s_mul_i32 s12, s3, 40960\ns_mul_i32 s32, s9, 160\ns_add_u32 s12, s12, s32\ns_mov_b32 s13, {64*1280}")
    e("s_waitcnt lgkmcnt(0)")
    srd_from(k, 20, PWQ, NBYTES['wq'])
    e(f"s_mov_b64 s[18:19], -1\ns_cmp_lt_u32 s3, 2\ns_cbranch_scc1 {Lw}\ns_mov_b64 s[18:19], 1")
    for i in range(4): e(f"v_add_u32 v{WV+i}, {10240*i}, v{XV+(i&1)}")
    e(f"v_mov_b32 v{WV+4}, {HUGE}")
    e("s_lshl_b32 s33, s8, 1\ns_add_u32 s33, s33, s3\ns_sub_u32 s33, s33, 2\ns_mul_i32 s12, s33, 40960\ns_mov_b32 s13, 128")
    srd_from(k, 20, PX, NBYTES['x'])
    k.label(Lw)
    e("s_mul_i32 s34, s11, s13\ns_add_u32 s34, s34, s12\ns_mul_i32 s35, s13, 10\ns_add_u32 s35, s35, s12\ns_mul_i32 s14, s3, 5120")
    def st_issue(slot):
        L = [[f"s_add_u32 m0, s14, {slot*QS}"]]
        for i in range(5):
            g = [f"buffer_load_dwordx4 v{WV+i}, s[20:23], s34 offen lds"]
            if i < 4: g += ["s_add_u32 m0, m0, 1024"]
            else: g = ["s_mov_b64 exec, s[18:19]"] + g + ["s_mov_b64 exec, -1", "s_add_u32 s34, s34, s13", "s_cmp_eq_u32 s34, s35", "s_cselect_b32 s34, s12, s34"]
            L.append(g)
        return L
    if ADLY == 0: emit(k, st_issue(0))
    if ADLY == 3:
        emit(k, st_issue(0)); tag_setup(k); emit(k, st_issue(1))
    mid()
    mark = len(k.items)
    if ADLY != 3: tag_setup(k)
    srd_from(k, 24, PWS, KV_BYTES, KV_OFF)
    srd_from(k, 28, PWS, AF_BYTES, AF_OFF)
    if ADLY != 3: essential()
    e(f"v_and_b32 v7, 31, v1\nv_lshlrev_b32 v{BKH}, 3, v7\nv_add_u32 v{BKH}, 1024, v{BKH}\nv_lshl_add_u32 v{BKH}, v6, 18, v{BKH}")
    e("v_and_b32 v13, 19, v7\nv_bfe_u32 v14, v7, 2, 1\nv_lshl_add_u32 v13, v14, 3, v13\nv_bfe_u32 v14, v7, 3, 1\nv_lshl_add_u32 v13, v14, 2, v13")
    e(f"v_mul_u32_u24 v{BV}, 24, v6\nv_add_u32 v{BV}, v{BV}, v13")
    e("v_cmp_le_u32 vcc, 28, v7\nv_cndmask_b32 v13, 0, 1, vcc\nv_xor_b32 v13, v13, v6\nv_mul_u32_u24 v13, 24, v13\nv_add_u32 v13, 20, v13")
    e("v_and_b32 v15, 27, v7\nv_cmp_ne_u32 vcc, 24, v15\nv_mov_b32 v15, 0x4000\nv_cndmask_b32 v13, v13, v15, vcc")
    e(f"v_cmp_le_u32 vcc, 20, v7\nv_cndmask_b32 v{BV}, v{BV}, v13, vcc")
    e(f"v_lshlrev_b32 v{BV}, 4, v{BV}\nv_add_u32 v{BV}, 1536, v{BV}")
    c0 = KV0 + 2*KVSLOT
    e(f"v_add_u32 v{AKL}, {c0}, v2\nv_add_u32 v{AKH}, {c0}, v{BKH}\nv_add_u32 v{AV}, {c0}, v{BV}")
    e(f"s_lshr_b32 s32, s3, 1\ns_lshl_b32 s32, s32, 9\ns_and_b32 s33, s3, 1\ns_lshl_b32 s33, s33, 3\ns_add_u32 s32, s32, s33")
    e(f"v_lshl_add_u32 v{AO2}, v7, 4, s32\nv_lshl_add_u32 v{AO2}, v6, 30, v{AO2}")
    e(f"v_lshlrev_b32 v13, {KVS}, v1\nv_lshlrev_b32 v14, 3, v7")
    e(f"s_lshl_b32 s39, s8, 9\ns_add_u32 s39, s39, {STAT}\ns_lshl_b32 s38, s3, {KVS+6}\ns_add_u32 s38, s38, {KVF}\ns_mul_i32 s36, s3, 6144")
    for t in range(4): e(f"v_mov_b32 v{KT+8*t+6}, 0\nv_mov_b32 v{KT+8*t+7}, 0")
    if ADLY == 0:
        setup = k.items[mark:]; del k.items[mark:]
        groups = st_issue(1) + st_issue(2) + st_issue(3)
        per = -(-len(setup) // len(groups))
        for g in groups:
            take = per
            while take < len(setup) and setup[take].op.startswith(("s_addc", "s_cselect")): take += 1
            k.items += setup[:take]; setup = setup[take:]
            emit(k, g)
        k.items += setup
    late = []
    if ADLY == 3:
        late = k.items[mark:]; del k.items[mark:]
    if ADLY == 2: tag_finish(k)
    if ADLY in (1, 2):
        for sl in range(2): emit(k, st_issue(sl))
    if ADLY != 2: tag_finish(k)
    stamp(k, 1)
    def kv_issue(chunk_soff, slot_base):
        L = []
        for half in range(2):
            L.append([f"s_add_u32 m0, s36, {slot_base + half*3072}", f"s_add_u32 s32, s36, {chunk_soff + half*3072}"])
            for j in range(3):
                L.append([f"buffer_load_dwordx4 v2, s[24:27], s32 offen offset:{j*1024} {SC} lds"])
        return L
    PL = 232
    kv_poll = [f"buffer_load_dword v{PL}, v13, {FL}, s38 offen {SC}"]
    pl_loads = [f"buffer_load_dwordx2 {vr(PL+2,2)}, v14, {FL}, s39 offen {SC}", f"buffer_load_dwordx2 {vr(PL+4,2)}, v14, {FL}, s39 offen offset:256 {SC}"]
    inits = []
    for j in range(8): inits += [(P[1]+j, "0"), (V0(1)+j, "0")]
    for s_ in range(2): inits += [(KH(s_)+2, "0x3f80"), (KH(s_)+3, "0")]
    for j in range(32): inits += [(O[0]+j, "0")]
    inits.sort()
    def hreads(h):
        sl = h % 4; F = FRG + 48*(h & 1); L = []
        so = (sl & 1) * QS; ta = "v5" if sl >= 2 else "v4"; rb = RB2 if sl >= 2 else RB
        for ks in range(4):
            for u in range(2): L.append(f"ds_read_b64_tr_b16 {vr(F+12*ks+2*u,2)}, {ta} offset:{so + ks*2560 + u*160}")
            for b in range(2): L.append(f"ds_read_b128 {vr(F+12*ks+4+4*b,4)}, v{rb+ks} offset:{so + b*5120}")
        return L
    e(f"s_waitcnt vmcnt({5 if ADLY else 15})\ns_barrier")
    stamp(k, 2)
    emit(k, hreads(0))
    if ADLY: emit(k, st_issue(2))
    kt_loads = [["s_mov_b32 s33, 6144"]]
    for t in range(4):
        so, off = ("0", t*3072) if t < 2 else ("s33", (t-2)*3072)
        kt_loads.append([f"buffer_load_dwordx4 {vr(KT+8*t,4)}, v2, s[24:27], {so} offen offset:{off} {SC}",
                         f"buffer_load_dwordx2 {vr(KT+8*t+4,2)}, v{BKH}, s[24:27], {so} offen offset:{off} {SC}"])
    for h in range(10):
        F = FRG + 48*(h & 1)
        if h < PH:
            n = {0: 5 if ADLY else 10, 7: 5, 8: 0}.get(h, 10) + (3 if h == PH - 1 else 0)
            e(f"s_waitcnt vmcnt({n}) lgkmcnt(0)")
        else:
            if h == PH: spin(k, pl_loads + kv_poll, [PL, PL+3, PL+5], 15, pre_issued=True, slp=KSL)
            e("s_waitcnt lgkmcnt(0)")
        if h < 9: e("s_barrier")
        if h in (2, 4, 6, 8): stamp(k, 2 + h//2, True)
        if h == QH:
            e(f"s_lshl_b32 s37, s2, 7\ns_add_u32 s37, s37, {QF}")
            setflag(k, "s37", 242)
        rd = hreads(h+1) if h < 9 else []
        dm = st_issue(h % 4) if h < 6 else []
        if h == 0 and ADLY: dm = st_issue(3) + dm
        if h == PH - 2:
            assert not late
            dm = dm + [pl_loads + kv_poll]
        if h == PH: dm = kv_issue(0, KV0 + 2*KVSLOT)
        i = 0
        for ks in range(4):
            first = (h == 0 and ks == 0)
            for acc, bop in ((S0, F+12*ks+4), (S1, F+12*ks+8), (SA, ONES)):
                e(f"{MF} {vr(acc,16)}, {vr(F+12*ks,4)}, {vr(bop,4)}, {'0' if first else vr(acc,16)}")
                emit(k, rd[:2]); rd = rd[2:]
                if dm and (i >= DI or h in (0, PH, 9)): emit(k, dm.pop(0))
                if h >= 1 and late:
                    take = 3
                    while take < len(late) and late[take].op.startswith(("s_addc", "s_cselect")): take += 1
                    k.items += late[:take]; late = late[take:]
                if h == 9:
                    m = 0
                    while inits and m < 3 and inits[0][0] < F + 12*ks:
                        r, v = inits.pop(0); e(f"v_mov_b32 v{r}, {v}"); m += 1
                i += 1
        emit(k, dm)
    stamp(k, 3)
    for r, v in inits: e(f"v_mov_b32 v{r}, {v}")
    for b in range(2):
        st = PL + 2 + 2*b
        e(f"v_lshlrev_b32 v{238+b}, 16, v{st}\nv_xor_b32 v{238+b}, 0x80000000, v{238+b}\nv_and_b32 v{st}, 0xffff0000, v{st}")
        e(f"v_rcp_f32 v{st}, v{st}\nv_mul_f32 v{st}, {hex(f32bits(QSCALE))}, v{st}")
    def qepi(b):
        L = []; a = S0 + 16*b
        for j in range(12): L.append(f"v_fmac_f32 v{a+j}, v{238+b}, v{SA+j}")
        for j in range(12): L.append(f"v_mul_f32 v{a+j}, v{PL+2+2*b}, v{a+j}")
        for j in range(6): L.append(f"v_cvt_pk_bf16_f32 v{Q[b]+j}, v{a+2*j}, v{a+2*j+1}")
        L += [f"v_mov_b32 v{Q[b]+6}, 0", f"v_mov_b32 v{Q[b]+7}, 0"]
        return L
    MX = [3, 5]
    sxr = lambda b, t: [[80, 208, 32, 64], [48, 80, 208, 64]][b][t]
    def mx(b, t):
        S = sxr(b, t)
        L = [f"v_max3_f32 v{MX[b]}, v{S}, v{S+1}, v{S+2}", f"v_max_f32 v{MX[b]}, v{MX[b]}, v{S+3}"] if t == 0 else []
        for j in range(4 if t == 0 else 0, 16, 2): L.append(f"v_max3_f32 v{MX[b]}, v{MX[b]}, v{S+j}, v{S+j+1}")
        return L
    def qk(b, t):
        S = sxr(b, t)
        return [f"{MF} {vr(S,16)}, {vr(KT+8*t,4)}, {vr(Q[b],4)}, 0", f"{MF} {vr(S,16)}, {vr(KT+8*t+4,4)}, {vr(Q[b]+4,4)}, {vr(S,16)}"]
    def fin(b, offs):
        L = [f"v_mov_b32 v15, v{MX[b]}", f"v_permlane32_swap_b32 v{MX[b]}, v15", f"v_max_f32 v{MX[b]}, v{MX[b]}, v15"]
        if offs: L.append(f"v_add_f32 v{MX[b]}, {hex(f32bits(offs))}, v{MX[b]}")
        L += [f"v_cvt_pk_bf16_f32 v{MX[b]}, -v{MX[b]}, 0", "v_cmp_ne_u32 vcc, 0, v6", f"v_cndmask_b32 v{Q[b]+6}, v{MX[b]}, 0, vcc"]
        return L
    def weave(mfs, vals, per, ex=None):
        for m in mfs:
            e(m)
            if ex: emit(k, ex.pop(0))
            for _ in range(per):
                if vals: e(vals.pop(0))
        for v in vals: e(v)
    e(f"s_mov_b32 s40, 0\ns_mov_b32 s41, {KV0}\ns_add_u32 s35, s36, {KV0}\ns_add_u32 s42, s35, {KVSLOT}\ns_add_u32 s43, s36, {2*KVSLOT}\ns_add_u32 s39, s35, {3*KVSLOT}")
    e("s_and_b32 s32, s9, 3\ns_mul_i32 s32, s32, 10\ns_mul_i32 s33, s8, 272\ns_add_u32 s32, s32, s33\ns_lshr_b32 s33, s9, 2\ns_mul_i32 s33, s33, 5\ns_add_u32 s32, s32, s33")
    e("s_add_u32 s16, s32, 4\ns_lshl_b32 s16, s16, 10\ns_add_u32 s12, s32, s3\ns_lshl_b32 s12, s12, 10")
    e(f"s_add_u32 s13, s12, {136*1024}\ns_add_u32 s17, s16, {136*1024}")
    e(f"s_lshl_b32 s14, s8, 3\ns_add_u32 s14, s14, s9\ns_lshl_b32 s14, s14, 7\ns_add_u32 s14, s14, {OF}")
    e("s_waitcnt vmcnt(0)\ns_barrier")
    for t in range(4):
        e(f"ds_read_b128 {vr(KT+8*t,4)}, v{AKL} offset:{t*3072}\nds_read_b64 {vr(KT+8*t+4,2)}, v{AKH} offset:{t*3072}")
    for s in range(2):
        e(f"ds_read_b128 {vr(KL(s),4)}, v{AKL} offset:{s*3072}\nds_read_b64 {vr(KH(s),2)}, v{AKH} offset:{s*3072}")
    e(f"ds_read_b128 {vr(V0(0),4)}, v{AV}\nds_read_b128 {vr(V1(0),4)}, v{AV} offset:768")
    emit(k, qepi(0))
    stamp(k, 4)
    stamp(k, 5)
    e("s_waitcnt lgkmcnt(6)")
    kv1 = kv_issue(KVSLOT, KV0)
    weave(qk(0, 0) + qk(0, 1) + qk(0, 2), qepi(1), 6, kv1)
    weave(qk(0, 3) + qk(1, 0), mx(0, 0) + mx(0, 1), 4, kv1)
    weave(qk(1, 1) + qk(1, 2), mx(0, 2) + mx(0, 3) + fin(0, OFFS), 6)
    e("s_waitcnt lgkmcnt(0)")
    weave(qk(1, 3) + [f"{MF} {vr(S0,16)}, {vr(KL(0),4)}, {vr(Q[0],4)}, 0", f"{MF} {vr(S0,16)}, {vr(KH(0),4)}, {vr(Q[0]+4,4)}, {vr(S0,16)}"],
          mx(1, 0) + [f"v_mov_b32 v{S1+12+j}, 0" for j in range(4)] + mx(1, 1) + mx(1, 2) + mx(1, 3) + fin(1, OFFS), 6)
    dma = lambda so, off: f"buffer_load_dwordx4 v2, s[24:27], {so} offen offset:{off} {SC} lds" if not NOKV else "s_nop 0"
    extra = {(1, 0): ["s_mov_b32 m0, s42"], (1, 1): ["s_add_u32 s38, s43, 4096"], (1, 3): ["s_waitcnt vmcnt(0)", "s_barrier"] if NOKV < 2 else [],
             (2, 3): [dma("s43", 0), dma("s43", 1024)], (3, 3): [dma("s43", 2048), dma("s43", 3072)],
             (4, 0): ["s_add_u32 m0, s42, 4096"], (4, 3): [dma("s38", 0), dma("s38", 1024)],
             (5, 0): [f"s_add_u32 s43, s43, {KVSLOT}"], (5, 1): ["s_add_u32 s40, s40, 1"], (5, 2): [f"s_add_u32 s37, s42, {KVSLOT}"],
             (6, 0): ["s_cmp_eq_u32 s37, s39"], (6, 1): ["s_cselect_b32 s37, s35, s37"],
             (7, 0): ["s_sub_u32 s41, s42, s36"], (7, 1): ["s_mov_b32 s42, s37"],
             (7, 2): ["s_cmp_lt_u32 s40, 8"]}
    e("s_setprio 1")
    stamp(k, 6)
    stamp(k, 7)
    Lloop = k.newlabel("att")
    k.label(Lloop, 6)
    def cv(S, Pb, g):
        return [f"v_cvt_pk_bf16_f32 v{Pb+2*g}, v{S+4*g}, v{S+4*g+1}", f"v_cvt_pk_bf16_f32 v{Pb+2*g+1}, v{S+4*g+2}, v{S+4*g+3}"]
    for jj in range(8):
        for blk in range(2):
            Sc, Sn = (S0, S1) if blk == 0 else (S1, S0)
            valu = []
            for g in range(4):
                for j in range(4): valu.append(f"v_exp_f32{E64} v{Sc+4*g+j}, v{Sc+4*g+j}")
                valu += cv(Sn, P[1-blk], 3) if g == 0 else cv(Sc, P[blk], g-1)
            ks = (jj + blk) & 1; vs = (jj - 1 + blk) & 1; nb = 1 - blk
            ko = ((jj + 2) % 8) * 3072; vo = ((jj + 1) % 8) * 3072
            mf = [[f"{MF} {vr(O[nb],16)}, {vr(V0(vs),4)}, {vr(P[nb],4)}, {vr(O[nb],16)}"],
                  [f"{MF} {vr(Sn,16)}, {vr(KL(ks),4)}, {vr(Q[nb],4)}, 0"],
                  [f"{MF} {vr(Sn,16)}, {vr(KH(ks),4)}, {vr(Q[nb]+4,4)}, {vr(Sn,16)}"],
                  [f"{MF} {vr(O[nb],16)}, {vr(V1(vs),4)}, {vr(P[nb]+4,4)}, {vr(O[nb],16)}"]]
            if blk == 0:
                mf[2].append("s_waitcnt lgkmcnt(0)")
                mf[3].append(f"ds_read_b128 {vr(KL(ks),4)}, v{AKL} offset:{ko}")
                mf[3].append(f"ds_read_b64 {vr(KH(ks),2)}, v{AKH} offset:{ko}")
            else:
                mf[3].append(f"ds_read_b128 {vr(V0(1-vs),4)}, v{AV} offset:{vo}")
                mf[3].append(f"ds_read_b128 {vr(V1(1-vs),4)}, v{AV} offset:{vo+768}")
                if jj == 5: valu.append(f"v_add_u32 v{AKL}, s41, v2"); valu.append(f"v_add_u32 v{AKH}, s41, v{BKH}")
                if jj == 6: valu.append(f"v_add_u32 v{AV}, s41, v{BV}")
                for m in range(4): mf[m] += extra.get((jj, m), [])
            for i, v in enumerate(valu):
                for m in range(4):
                    if PATTERN[m] == i: emit(k, mf[m])
                e(v)
    e(f"s_cbranch_scc1 {Lloop}")
    emit(k, cv(S1, P[1], 3))
    e(f"{MF} {vr(O[1],16)}, {vr(V0(1),4)}, {vr(P[1],4)}, {vr(O[1],16)}")
    e(f"{MF} {vr(O[1],16)}, {vr(V1(1),4)}, {vr(P[1]+4,4)}, {vr(O[1],16)}")
    stamp(k, 8)
    e("s_mov_b32 s40, 0\ns_setprio 3")
    Lout = k.newlabel("out"); Lslow = k.newlabel("slow"); Lpub = k.newlabel("pub")
    k.label(Lout)
    PK = 224; A0 = 208
    for b in range(2):
        e(f"v_rcp_f32 v{A0+b}, v{O[b]+12}")
        e(f"v_mul_f32 v{A0+b}, {hex(f32bits(1/LOG2E))}, v{A0+b}")
        for j in range(12): e(f"v_mul_f32 v{O[b]+j}, v{O[b]+j}, v{A0+b}")
        for j in range(6): e(f"v_cvt_pk_bf16_f32 v{PK+8*b+j}, v{O[b]+2*j}, v{O[b]+2*j+1}")
        e(f"buffer_store_dwordx4 {vr(PK+8*b,4)}, v2, s[28:31], s{12+b} offen {SC}")
        e(f"buffer_store_dwordx2 {vr(PK+8*b+4,2)}, v{AO2}, s[28:31], s{16+b} offen {SC}")
    e(f"v_mul_f32 v{A0+2}, 0, v{O[0]+12}\nv_mul_f32 v{A0+3}, 0, v{O[1]+12}")
    for j in range(12):
        for b in range(2): e(f"v_fma_f32 v{A0+2+b}, v{O[b]+j}, 0, v{A0+2+b}")
    e(f"v_cmp_u_f32 vcc, v{A0+2}, v{A0+3}")
    e(f"s_cmp_lg_u32 s40, 0\ns_cbranch_scc1 {Lpub}")
    e(f"s_cmp_lg_u64 vcc, 0\ns_cbranch_scc1 {Lslow}")
    k.label(Lpub)
    if WF:
        e(f"v_mov_b32 v16, {TAG}\ns_lshl_b32 s32, s3, 2\nv_mov_b32 v17, s32\ns_mov_b64 exec, 1\ns_waitcnt vmcnt(0)")
        e(f"buffer_store_dword v16, v17, {FL}, s14 offen {SC}\ns_mov_b64 exec, -1")
    else:
        e("s_waitcnt vmcnt(0)\ns_barrier")
        setflag(k, "s14", 16, "A")
    Lx = k.newlabel("axit")
    e(f"s_or_b32 s32, s2, s3\ns_cmp_lg_u32 s32, 0\ns_cbranch_scc1 {Lx}")
    e(f"v_lshlrev_b32 v13, 7, v1")
    ld = []
    for i in range(8): ld += [f"s_mov_b32 s38, {HF + 8192*i}", f"buffer_load_dword v{16+i}, v13, {FL}, s38 offen {SC}"]
    if not ONLY: spin(k, ld, list(range(16, 24)), 24)
    setflag(k, "0", 16)
    if LEAK:
        for i in range(8):
            e(f"s_mov_b32 s75, {HF + 8192*i}\nbuffer_load_dwordx2 {vr(32+2*i,2)}, v13, {FL}, s75 offen offset:8 {SC}")
        e("s_waitcnt vmcnt(0)")
        for i in range(16): e(f"v_subrev_u32 v{32+i}, s86, v{32+i}")
        for i in range(1, 8): e(f"v_min_i32 v32, v32, v{32+2*i}\nv_max_i32 v33, v33, v{33+2*i}")
        e("s_mov_b32 s40, 0x7fffffff\ns_mov_b32 s41, 0x80000000")
        for l in range(64):
            e(f"v_readlane_b32 s42, v32, {l}\nv_readlane_b32 s43, v33, {l}\ns_min_i32 s40, s40, s42\ns_max_i32 s41, s41, s43")
        e("s_sub_u32 s41, s41, s40\ns_mul_i32 s41, s41, 4\ns_add_u32 s41, s41, 10000\ns_add_u32 s40, s40, s86")
        Ls = k.newlabel("spin"); k.label(Ls)
        e("s_memrealtime s[42:43]\ns_waitcnt lgkmcnt(0)\ns_sub_u32 s42, s42, s40")
        e(f"s_cmp_lt_u32 s42, s41\ns_cbranch_scc1 {Ls}")
    k.label(Lx)
    stamp_dump(k, 1, 9, "s2", PWS)
    e("s_endpgm")
    k.label(Lslow)
    e("s_waitcnt vmcnt(0) lgkmcnt(0)")
    e(f"s_mov_b32 s40, 1\ns_mov_b32 s41, 0\nv_mov_b32 v{Q[0]+6}, 0\nv_mov_b32 v{Q[1]+6}, 0")
    e(f"v_mov_b32 v{MX[0]}, 0xff800000\nv_mov_b32 v{MX[1]}, 0xff800000")
    def kload():
        e(f"buffer_load_dwordx4 {vr(KL(0),4)}, v2, s[24:27], s41 offen {SC}")
        e(f"buffer_load_dwordx2 {vr(KH(0),2)}, v{BKH}, s[24:27], s41 offen {SC}")
    def qk2():
        for b in range(2):
            S = S0 + 16*b
            e(f"{MF} {vr(S,16)}, {vr(KL(0),4)}, {vr(Q[b],4)}, 0\n{MF} {vr(S,16)}, {vr(KH(0),4)}, {vr(Q[b]+4,4)}, {vr(S,16)}")
    L1 = k.newlabel("sl1"); k.label(L1)
    kload(); e("s_waitcnt vmcnt(0)"); qk2()
    for b in range(2):
        for j in range(0, 16, 2): e(f"v_max3_f32 v{MX[b]}, v{MX[b]}, v{S0+16*b+j}, v{S0+16*b+j+1}")
    e(f"s_add_u32 s41, s41, 3072\ns_cmp_lt_u32 s41, {KV_BYTES}\ns_cbranch_scc1 {L1}")
    for b in range(2): emit(k, fin(b, 0))
    for j in range(32): e(f"v_mov_b32 v{O[0]+j}, 0")
    e("s_mov_b32 s41, 0")
    L2 = k.newlabel("sl2"); k.label(L2)
    kload()
    e(f"buffer_load_dwordx4 {vr(V0(0),4)}, v{BV}, s[24:27], s41 offen {SC}")
    e(f"buffer_load_dwordx4 {vr(V1(0),4)}, v{BV}, s[24:27], s41 offen offset:768 {SC}")
    e("s_waitcnt vmcnt(0)"); qk2()
    for b in range(2):
        S = S0 + 16*b
        for j in range(16): e(f"v_exp_f32 v{S+j}, v{S+j}")
        for g in range(4): emit(k, cv(S, P[b], g))
        e(f"{MF} {vr(O[b],16)}, {vr(V0(0),4)}, {vr(P[b],4)}, {vr(O[b],16)}")
        e(f"{MF} {vr(O[b],16)}, {vr(V1(0),4)}, {vr(P[b]+4,4)}, {vr(O[b],16)}")
    e(f"s_add_u32 s41, s41, 3072\ns_cmp_lt_u32 s41, {KV_BYTES}\ns_cbranch_scc1 {L2}")
    e("s_nop 12")
    e(f"s_branch {Lout}")

def gen_mega(name="parallel_sum__grouped_kv_mqa__swiglu_ffn__prompt_kernel"):
    k = Kernel(name); e = k.e
    LA = k.newlabel("roleA"); LB = k.newlabel("roleB")
    e("s_load_dwordx16 s[48:63], s[0:1], 0\ns_load_dwordx8 s[64:71], s[0:1], 64")
    e("v_and_b32 v1, 63, v0\nv_lshrrev_b32 v2, 6, v0\nv_readfirstlane_b32 s3, v2\nv_lshlrev_b32 v2, 4, v1")
    Lgo = k.newlabel("go")
    e(f"s_cmp_lt_u32 s2, 256\ns_cbranch_scc1 {LB}\ns_cmp_lt_u32 s2, 512\ns_cbranch_scc1 {Lgo}\ns_endpgm")
    def body_b():
        k.label(LB)
        e("s_setprio 3")
        roleB(k)
    if HEAD:
        k.label(Lgo)
        if ONLY == "B": e("s_endpgm")
        e(f"s_sub_u32 s2, s2, 256\ns_setprio {AP0}")
        def mid():
            e(f"s_branch {LA}")
            body_b()
            k.label(LA, 6)
        roleA(k, mid)
    else:
        body_b()
        k.label(Lgo, 6)
        if ONLY == "B": e("s_endpgm")
        e(f"s_sub_u32 s2, s2, 256\ns_setprio {AP0}")
        roleA(k, lambda: None)
    k.label(f"{k.name}_end")
    k.lds = 81920; k.grid = 512; k.block = 256
    return k

if __name__ == "__main__":
    import sys
    from build import emit as emit_file
    emit_file([gen_mega()], sys.argv[1] if len(sys.argv) > 1 else "parallel_sum__grouped_kv_mqa__swiglu_ffn__prompt.s")
```

```python
from asmgen import *
from common import KA, NBYTES, f32bits, srd_from, stamp, stamp_dump, STAMPS
import math, os

MF = "v_mfma_f32_32x32x16_bf16"
LOG2E = math.log2(math.e)
QSCALE = (20 ** -0.5) * float(os.environ.get("QEPS", 1.0))
env = lambda n, d: type(d)(os.environ.get(n, d))
OFFS = env('OFFS', 96.0)
PATTERN = [int(x) for x in env('APAT', '2,6,9,13').split(',')]
BST = env("BST", 0); ONLY = env("ONLY", "")
P0B = env("P0B", 14); PKD = env("PKD", 0); ADLY = env("ADLY", 0); E64 = env("E64", ""); TP = env("TP", 0); QH = env("QH", 4); DI = env("DI", 0); ROT = env("ROT", 1); OM = env("OM", ""); HEAD = env("HEAD", 1); PKS = env("PKS", 1); WF = env("WF", 0); KVS = env("KVS", 2); PH = env("PH", 7); LATE = env("LATE", 0); NOKV = env("NOKV", 0); KSL = env("KSL", 4); BSL = env("BSL", 2); BP0 = env("BP0", 0); GP0 = env("GP0", 0); GP1 = env("GP1", 2); GSW = env("GSW", -1); CPF = env("CPF", 1); DP = env("DP", 0); AP0 = env("AP0", 2)
STAT = 0x1000; PKF = 0x800; HF = 0x9000; OF = 0x11000; KVF = 0xE80000; XNF = 0xE88000; QF = 0xE90000; FL_BYTES = 0xE98000
KV_OFF = 0x20000;  KV_BYTES = 64*3072
WP_OFF = 0x50000;  WP_BYTES = 8*136*2560
AF_OFF = 0x300000; AF_BYTES = 64*136*1024
XN_OFF = 0xC00000; XN_BYTES = 64*40*1024
PX, PWQ, PWK, PWV, PWO, PWG, PWU, PWD, POUT, PWS = 48, 50, 52, 54, 56, 60, 62, 64, 66, 70
TAG = "s73"; BUD = "s74"; FLS = 44; SC = "sc1"
FL = f"s[{FLS}:{FLS+3}]"
HUGE = "0x7ff00000"

def bstamp(k, name):
    m0 = dict(start=0, xl=1, xs=2, xf=3, p0=4, gu0=5, gu1=6, dn0=7, dn1=8)
    m1 = dict(start=0, p0=1, gu0=2, gu1=3, dn0=4, dn1=5, of=6, mm=7, rd=8)
    m = m1 if BST else m0
    if name in m: stamp(k, m[name])

def emit(k, lst):
    for x in lst:
        if isinstance(x, list): emit(k, x)
        else: k.e(x)

def spin(k, loads, regs, vt, pre_issued=False, slp=1):
    e = k.e
    Lp = k.newlabel("poll"); Ld = k.newlabel("pdone"); Lc = k.newlabel("pchk")
    if pre_issued: e(f"s_branch {Lc}")
    k.label(Lp)
    emit(k, loads)
    k.label(Lc)
    e("s_waitcnt vmcnt(0)")
    e(f"v_xor_b32 v{vt}, {TAG}, v{regs[0]}")
    for r in regs[1:]:
        e(f"v_xor_b32 v{r}, {TAG}, v{r}\nv_or_b32 v{vt}, v{vt}, v{r}")
    e(f"v_cmp_ne_u32 vcc, 0, v{vt}")
    e(f"s_cmp_eq_u64 vcc, 0\ns_cbranch_scc1 {Ld}")
    e(f"s_sub_u32 {BUD}, {BUD}, 1\ns_cbranch_scc1 {Ld}")
    e(f"s_sleep {slp}\ns_branch {Lp}")
    k.label(Ld)

LEAK = os.environ.get("LEAK")
def setflag(k, soffs, vt, leak=None):
    e = k.e
    L = k.newlabel("nofl")
    e(f"s_cmp_lg_u32 s3, 0\ns_cbranch_scc1 {L}")
    if LEAK and leak is not None:
        role, idx = LEAK[0], int(LEAK[1:])
        sel = f"s{86+idx}" if role == leak else "s86"
        e(f"v_mov_b32 v{vt}, s86\nv_mov_b32 v{vt+1}, {sel}\nv_mov_b32 v{vt+2}, 0\ns_mov_b64 exec, 1")
        e(f"buffer_store_dwordx2 {vr(vt,2)}, v{vt+2}, {FL}, {soffs} offen offset:8 {SC}")
        e("s_waitcnt vmcnt(0)\ns_mov_b64 exec, -1")
    e(f"v_mov_b32 v{vt}, {TAG}\nv_mov_b32 v{vt+1}, 0\ns_mov_b64 exec, 1")
    for so in (soffs if isinstance(soffs, list) else [soffs]):
        e(f"buffer_store_dword v{vt}, v{vt+1}, {FL}, {so} offen {SC}")
    e("s_mov_b64 exec, -1")
    k.label(L)

def tag_setup(k):
    k.e(f"s_load_dword s72, s[{PWS}:{PWS+1}], 0")
    srd_from(k, FLS, PWS, FL_BYTES)
    k.e(f"s_mov_b32 {BUD}, 200000")
def tag_finish(k):
    k.e(f"s_waitcnt lgkmcnt(0)\ns_mul_i32 {TAG}, s72, 1664525\ns_add_u32 {TAG}, {TAG}, 1013904223")

def x_voffs(k, dst, t):
    e = k.e
    e(f"v_lshrrev_b32 v{t}, 3, v1\nv_mul_u32_u24 v{t}, 1280, v{t}")
    e(f"v_and_b32 v{t+1}, 7, v1\nv_lshrrev_b32 v{t+2}, 4, v1\nv_xor_b32 v{t+1}, v{t+1}, v{t+2}")
    e(f"v_lshl_add_u32 v{dst}, v{t+1}, 4, v{t}\nv_xor_b32 v{dst+1}, 64, v{dst}")
def x_raddr(k, dst, t, base):
    e = k.e
    e(f"v_and_b32 v{t}, 31, v1\nv_bfe_u32 v{t+1}, v1, 1, 3\nv_lshrrev_b32 v{t+2}, 5, v1\nv_xor_b32 v{t+1}, v{t+1}, v{t+2}")
    e(f"v_lshlrev_b32 v{t}, 7, v{t}\nv_lshl_add_u32 v{t}, v{t+1}, 4, v{t}")
    for ks in range(4):
        e(f"v_xor_b32 v{t+1}, {ks*32}, v{t}\nv_add_u32 v{dst+ks}, {base}, v{t+1}")

def phase0(k):
    e = k.e
    e("v_and_b32 v3, 15, v1\nv_lshrrev_b32 v4, 4, v1")
    e("s_mul_i32 s12, s4, 20480\ns_mul_i32 s13, s3, 320\ns_add_u32 s12, s12, s13")
    e("v_mul_u32_u24 v5, 1280, v3\nv_lshl_add_u32 v5, v4, 4, v5")
    e("s_mul_i32 s14, s3, 6400\ns_mul_i32 s15, s3, 7168\ns_add_u32 s37, s14, 4096")
    e("s_waitcnt lgkmcnt(0)")
    srd_from(k, 16, PX, NBYTES['x'])
    X = 16
    for i in range(5):
        e(f"buffer_load_dwordx4 {vr(X+4*i,4)}, v5, s[16:19], s12 offen offset:{64*i}")
    tag_setup(k)
    e(f"s_cmp_eq_u32 s11, 0\ns_cselect_b32 s20, s{PWK}, s{PWV}\ns_cselect_b32 s21, s{PWK+1}, s{PWV+1}")
    e(f"s_mov_b32 s22, {hex(NBYTES['wk'])}\ns_mov_b32 s23, 0x20000\ns_mov_b32 m0, s15")
    for j in range(7):
        if j == 4: e("s_add_u32 m0, s15, 4096")
        e(f"buffer_load_dwordx4 v2, s[20:23], {'s14' if j < 4 else 's37'} offen offset:{(j%4)*1024} lds")
    srd_from(k, 28, PWS, XN_BYTES, XN_OFF)
    srd_from(k, 32, PWS, KV_BYTES, KV_OFF)
    e("v_mov_b32 v8, 0\nv_mov_b32 v9, 0\nv_mov_b32 v10, 0\nv_mov_b32 v11, 0")
    e("s_mov_b32 s38, 0x3f803f80")
    LST = 28672; RED = LST + 512
    e(f"s_lshl_b32 s39, s3, 7\ns_add_u32 s39, s39, {LST}")
    e("v_lshl_add_u32 v12, v3, 3, s39\nv_lshlrev_b32 v13, 3, v3")
    e("v_lshrrev_b32 v14, 2, v3\nv_lshl_add_u32 v14, v4, 3, v14\nv_mul_u32_u24 v14, 40, v14")
    e("v_and_b32 v15, 3, v1\nv_lshl_add_u32 v14, v15, 3, v14\nv_add_u32 v14, s15, v14")
    e(f"s_lshl_b32 s36, s4, 7\ns_add_u32 s36, s36, {STAT}")
    e("s_lshr_b32 s40, s4, 1\ns_mul_i32 s41, s40, 40960\ns_and_b32 s42, s4, 1")
    e("s_lshl_b32 s43, s42, 8\ns_add_u32 s41, s41, s43\ns_mul_i32 s43, s3, 10240\ns_add_u32 s41, s41, s43")
    e("v_lshlrev_b32 v5, 9, v4\nv_lshl_add_u32 v5, v3, 4, v5")
    e(f"s_lshl_b32 s39, s3, 11\ns_add_u32 s39, s39, {RED}\nv_add_u32 v92, s39, v2\ns_mul_i32 s39, s40, 3072")
    e(f"s_lshl_b32 s43, s4, 1\ns_add_u32 s43, s43, s11\ns_lshl_b32 s75, s43, 7\ns_add_u32 s75, s75, {XNF}\ns_lshl_b32 s43, s43, {KVS}\ns_add_u32 s43, s43, {KVF}")
    Lv, Lst = k.newlabel("v"), k.newlabel("st")
    e("v_lshl_add_u32 v7, s42, 4, v3\nv_and_b32 v15, 1, v4\nv_lshrrev_b32 v6, 1, v4\nv_mov_b32 v95, 0x7fffffff")
    e(f"s_mov_b64 s[24:25], 0\ns_cmp_lg_u32 s11, 0\ns_cbranch_scc1 {Lv}")
    e("v_lshl_add_u32 v93, v6, 5, v7\nv_lshlrev_b32 v93, 4, v93\nv_lshl_add_u32 v93, v15, 3, v93")
    e("v_lshlrev_b32 v94, 3, v7\nv_add_u32 v94, 1024, v94\nv_cmp_ne_u32 vcc, 0, v4")
    e(f"s_branch {Lst}")
    k.label(Lv)
    e("s_mul_i32 s26, s42, 768\ns_add_u32 s26, s26, 1536\ns_mov_b32 s24, 0x00100010\ns_mov_b32 s25, 0x00100010")
    e("v_mul_u32_u24 v93, 384, v15\nv_lshl_add_u32 v93, v3, 4, v93\nv_lshl_add_u32 v93, v6, 3, v93\nv_add_u32 v93, s26, v93")
    e("v_add_u32 v94, 256, v93\nv_cmp_lt_u32 vcc, 4, v3")
    k.label(Lst)
    e("v_cndmask_b32 v94, v94, v95, vcc\nv_mov_b32 v95, 0x3f803f80")
    tag_finish(k)
    for i in range(5):
        e(f"s_waitcnt vmcnt({11 - i})")
        for d in range(4*i, 4*i+4):
            a = 8 + (d & 1); q = 10 + (d & 1)
            e(f"v_dot2_f32_bf16 v{a}, v{X+d}, s38, v{a}")
            e(f"v_dot2_f32_bf16 v{q}, v{X+d}, v{X+d}, v{q}")
    bstamp(k, "xl")
    e("v_add_f32 v8, v8, v9\nv_add_f32 v9, v10, v11")
    for sw in ("v_permlane32_swap_b32", "v_permlane16_swap_b32"):
        e("v_mov_b32 v10, v8\nv_mov_b32 v11, v9")
        e(f"{sw} v8, v10\n{sw} v9, v11")
        e("v_add_f32 v8, v8, v10\nv_add_f32 v9, v9, v11")
    e("ds_write_b64 v12, v[8:9]")
    U = 96; W = 136
    for d in range(20):
        e(f"v_lshlrev_b32 v{U+2*d}, 16, v{X+d}\nv_and_b32 v{U+2*d+1}, 0xffff0000, v{X+d}")
        if d == 1:
            e("s_waitcnt lgkmcnt(0)\ns_barrier")
            for w in range(4): e(f"ds_read_b64 {vr(36+2*w,2)}, v13 offset:{LST+128*w}")
    e("s_waitcnt lgkmcnt(0) vmcnt(0)")
    for i in range(5):
        for tl in range(2):
            for u in range(2):
                e(f"ds_read_b64_tr_b16 {vr(W+8*i+4*tl+2*u,2)}, v14 offset:{i*1280 + u*160 + tl*32}")
    e("v_add_f32 v8, v36, v38\nv_add_f32 v9, v37, v39\nv_add_f32 v10, v40, v42\nv_add_f32 v11, v41, v43")
    e("v_add_f32 v8, v8, v10\nv_add_f32 v9, v9, v11")
    inv = hex(f32bits(1.0/640))
    e(f"v_mul_f32 v8, {inv}, v8\nv_mul_f32 v9, {inv}, v9")
    e("v_fma_f32 v9, -v8, v8, v9\nv_max_f32 v9, 0, v9")
    e("v_cvt_pk_bf16_f32 v10, v8, v9")
    e("v_lshlrev_b32 v8, 16, v10\nv_and_b32 v9, 0xffff0000, v10")
    e(f"v_add_f32 v9, {hex(f32bits(1e-5))}, v9")
    e("v_cvt_pk_bf16_f32 v9, v9, v9\nv_and_b32 v9, 0xffff0000, v9")
    e("v_sqrt_f32 v9, v9")
    e("v_cvt_pk_bf16_f32 v6, v8, v9")
    e(f"v_mov_b32 v7, {TAG}\nv_and_b32 v9, 0xffff0000, v6")
    Lns = k.newlabel("nost")
    e(f"s_lshl_b32 s26, s11, 2\ns_add_u32 s26, s26, s3\ns_cmp_lg_u32 s26, 7\ns_cbranch_scc1 {Lns}")
    e(f"s_mov_b64 exec, 0xffff\nbuffer_store_dwordx2 v[6:7], v13, {FL}, s36 offen {SC}\ns_mov_b64 exec, -1")
    k.label(Lns)
    e("v_rcp_f32 v10, v9")
    e(f"v_mul_f32 v10, {hex(f32bits(LOG2E))}, v10")
    e("v_mul_f32 v11, v8, v10")
    ACC = 44
    for d in range(20):
        u = U + 2*d
        e(f"v_fma_f32 v{u}, v{u}, v10, -v11\nv_fma_f32 v{u+1}, v{u+1}, v10, -v11")
        if d >= 1: e(f"v_cvt_pk_bf16_f32 v{X+d-1}, v{u-2}, v{u-1}")
    e(f"v_cvt_pk_bf16_f32 v{X+19}, v{U+38}, v{U+39}")
    Lmv, Lmd = k.newlabel("mv"), k.newlabel("md")
    e(f"s_waitcnt lgkmcnt(0)\ns_cmp_lg_u32 s11, 0\ns_cbranch_scc1 {Lmv}")
    def xst(i): return f"buffer_store_dwordx4 {vr(X+4*i,4)}, v5, s[28:31], s26 offen offset:{(i%2)*2048} {SC}"
    for m in range(2):
        if m: k.label(Lmv)
        for i in range(5):
            for tl in range(2):
                wf = vr(W+8*i+4*tl, 4); xf = vr(X+4*i, 4); acc = vr(ACC+4*tl, 4)
                a, b = (wf, xf) if m == 0 else (xf, wf)
                e(f"v_mfma_f32_16x16x32_bf16 {acc}, {a}, {b}, {'0' if i == 0 else acc}")
        if m == 0: e(f"s_branch {Lmd}")
    k.label(Lmd)
    bstamp(k, "xs")
    for tl in range(2):
        e(f"ds_write_b128 v92, {vr(ACC+4*tl,4)} offset:{tl*1024}")
    e("s_waitcnt lgkmcnt(0)\ns_barrier")
    Lx = k.newlabel("xst")
    e(f"s_cmp_lg_u32 s3, 0\ns_cbranch_scc1 {Lx}")
    R = 52
    for tl in range(2):
        for w in range(1, 4):
            e(f"ds_read_b128 {vr(R+16*tl+4*w,4)}, v92 offset:{w*2048 + tl*1024}")
    for tl in range(2):
        e(f"s_waitcnt lgkmcnt({3 - 3*tl})")
        r = R + 16*tl; c = ACC + 4*tl
        for j in range(4):
            e(f"v_add_f32 v{c+j}, v{c+j}, v{r+4+j}\nv_add_f32 v{r+8+j}, v{r+8+j}, v{r+12+j}\nv_add_f32 v{c+j}, v{c+j}, v{r+8+j}")
        e(f"v_cvt_pk_bf16_f32 v{8+2*tl}, v{c}, v{c+1}\nv_cvt_pk_bf16_f32 v{9+2*tl}, v{c+2}, v{c+3}")
        if tl: e("v_cndmask_b32 v10, v10, v95, s[24:25]\nv_cndmask_b32 v11, v11, v95, s[24:25]")
        e(f"buffer_store_dwordx2 {vr(8+2*tl,2)}, v{93+tl}, s[32:35], s39 offen {SC}")
    k.label(Lx)
    L1, L2 = k.newlabel("x1"), k.newlabel("x2")
    e(f"s_cmp_lg_u32 s11, 0\ns_cbranch_scc1 {L1}")
    e("s_mov_b32 s26, s41"); e(xst(0)); e(xst(1)); e("s_add_u32 s26, s41, 4096"); e(xst(2))
    e(f"s_branch {L2}")
    k.label(L1)
    e("s_add_u32 s26, s41, 4096"); e(xst(3)); e("s_add_u32 s26, s41, 8192"); e(xst(4))
    k.label(L2)
    bstamp(k, "xf")

def roleB(k):
    e = k.e
    SLOT = 20480
    GW, RA, RB = 216, 221, 224
    ACC = 32; FR = [176, 196]
    Lgu = k.newlabel("gu0"); Lpk = k.newlabel("pk")
    bstamp(k, "start")
    e("s_and_b32 s5, s2, 7\ns_lshr_b32 s6, s2, 3")
    def tile_ids():
        e("s_lshr_b32 s7, s5, 1\ns_lshl_b32 s7, s7, 2\ns_lshr_b32 s8, s6, 3\ns_add_u32 s7, s7, s8")
        e("s_and_b32 s9, s5, 1\ns_lshl_b32 s8, s9, 3\ns_and_b32 s10, s6, 7\ns_add_u32 s8, s8, s10\ns_lshl_b32 s11, s7, 1\ns_add_u32 s9, s9, s11")
    def gu_vsetup(t):
        e("s_and_b32 s11, s3, 2")
        for i in range(3):
            e(f"v_add_u32 v{t}, {64*i}, v1\nv_mul_u32_u24 v{t+1}, 5462, v{t}\nv_lshrrev_b32 v{t+1}, 16, v{t+1}")
            e(f"v_mul_u32_u24 v{t+2}, 12, v{t+1}\nv_sub_u32 v{t+2}, v{t}, v{t+2}\nv_xor_b32 v{t+2}, s11, v{t+2}")
            e(f"v_mul_u32_u24 v{t+1}, 3072, v{t+1}\nv_lshl_add_u32 v{GW+i}, v{t+2}, 4, v{t+1}")
    def gu_vsetup2(t):
        e(f"v_lshrrev_b32 v{t}, 5, v1\nv_bfe_u32 v{t+1}, v1, 2, 2\nv_lshl_add_u32 v{t+1}, v{t}, 3, v{t+1}\nv_mul_u32_u24 v{t+1}, 192, v{t+1}")
        e(f"v_and_b32 v{t+2}, 1, v1\nv_lshl_add_u32 v{t+1}, v{t+2}, 4, v{t+1}\nv_bfe_u32 v{t+2}, v1, 1, 1\nv_lshl_add_u32 v{t+1}, v{t+2}, 3, v{t+1}")
        e(f"v_bfe_u32 v{t+2}, v1, 4, 1\nv_mul_u32_u24 v{t+3}, 6144, v{t+2}\nv_add_u32 v{t+1}, v{t+1}, v{t+3}")
        e("s_lshr_b32 s11, s3, 1\ns_mul_i32 s11, s11, 3")
        for a in range(3):
            e(f"v_xor_b32 v{t+3}, s11, v{t+2}\nv_lshl_add_u32 v{RA+a}, v{t+3}, 5, v{t+1}\ns_add_u32 s11, s11, 1")
        e(f"s_and_b32 s11, s3, 1\ns_lshl_b32 s11, s11, 12\ns_add_u32 s11, s11, 12288\nv_add_u32 v{RB}, s11, v2")
        e(f"v_and_b32 v{RB+1}, 3, v1\nv_lshlrev_b32 v{RB+1}, 7, v{RB+1}")
    def zero_acc():
        for j in range(96): e(f"v_mov_b32 v{ACC+j}, 0")
    def gu_ssetup():
        e("s_lshr_b32 s38, s3, 1\ns_and_b32 s39, s3, 1\ns_mul_i32 s40, s38, 3")
        srd_from(k, 16, PWS, XN_BYTES, XN_OFF)
        e(f"s_cmp_eq_u32 s38, 0\ns_cselect_b32 s20, s{PWG}, s{PWU}\ns_cselect_b32 s21, s{PWG+1}, s{PWU+1}")
        e(f"s_mov_b32 s22, {hex(NBYTES['wg'])}\ns_mov_b32 s23, 0x20000")
        e("s_mul_i32 s12, s39, 49152\ns_mul_i32 s32, s8, 192\ns_add_u32 s12, s12, s32")
        e(f"s_lshl_b32 s32, s7, 2\ns_add_u32 s32, s32, s3\ns_mul_i32 s13, s32, 40960\ns_lshl_b32 s42, s32, 9\ns_add_u32 s42, s42, {XNF}")
        e("s_mul_i32 s14, s3, 3072\ns_lshl_b32 s15, s3, 11\ns_add_u32 s15, s15, 12288")
    def issueW(sl):
        return [[f"s_add_u32 m0, s14, {sl*SLOT}"],
                [f"buffer_load_dwordx4 v{GW}, s[20:23], s12 offen lds", "s_add_u32 m0, m0, 1024"],
                [f"buffer_load_dwordx4 v{GW+1}, s[20:23], s12 offen lds", "s_add_u32 m0, m0, 1024"],
                [f"buffer_load_dwordx4 v{GW+2}, s[20:23], s12 offen lds", f"s_add_u32 s12, s12, {32*3072}"]]
    def issueX(sl):
        return [[f"s_add_u32 m0, s15, {sl*SLOT}"],
                [f"buffer_load_dwordx4 v2, s[16:19], s13 offen {SC} lds"],
                [f"buffer_load_dwordx4 v2, s[16:19], s13 offen offset:1024 {SC} lds", "s_add_u32 s13, s13, 2048"]]
    xn_poll = [f"buffer_load_dword v16, v{RB+1}, {FL}, s42 offen {SC}"]
    e("s_lshl_b32 s4, s5, 4\ns_lshr_b32 s11, s6, 1\ns_add_u32 s4, s4, s11\ns_and_b32 s11, s6, 1")
    def pre():
        tile_ids(); gu_vsetup(232); gu_vsetup2(232)
    if CPF:
        Lc = k.newlabel("nocp"); Lh = k.newlabel("here")
        e(f"s_cmp_lg_u32 s6, 31\ns_cbranch_scc1 {Lc}")
        e("s_getpc_b64 s[34:35]")
        k.label(Lh)
        e(f"s_sub_u32 s34, s34, {Lh}-{k.name}\ns_subb_u32 s35, s35, 0")
        e(f"v_lshlrev_b32 v9, 7, v0\nv_min_u32 v9, {k.name}_end-{k.name}-4, v9")
        e("global_load_dword v255, v9, s[34:35]")
        k.label(Lc)
    phase0(k)
    pre()
    gu_ssetup()
    e("s_waitcnt vmcnt(2)")
    setflag(k, "s43", 10)
    Lw0 = k.newlabel("w0")
    e(f"s_waitcnt vmcnt(1)\ns_cmp_eq_u32 s3, 0\ns_cbranch_scc1 {Lw0}\ns_waitcnt vmcnt(0)")
    k.label(Lw0)
    e("s_barrier")
    setflag(k, "s75", 10)
    e(f"s_setprio {BP0}\ns_mov_b32 s11, {HUGE}")
    e(f"s_lshl_b32 s41, s2, 7\ns_add_u32 s41, s41, {QF}\nv_mov_b32 v31, 0")
    def go():
        if QH >= 0: spin(k, xn_poll + [f"buffer_load_dword v29, v31, {FL}, s41 offen {SC}"], [16, 29], 17, slp=BSL)
        else: spin(k, xn_poll, [16], 17, slp=BSL)
    e(f"s_cmp_lt_u32 s2, 136\ns_cbranch_scc1 {Lpk}")
    go()
    for c in range(2): emit(k, issueW(c)); emit(k, issueX(c))
    e(f"s_branch {Lgu}")
    k.label(Lpk)
    PKB = 3*SLOT; PD = 128
    e("s_mov_b32 s4, s2\ns_mul_i32 s33, s3, 320")
    for i in range(5):
        e(f"v_add_u32 v13, {64*i}, v1\nv_add_u32 v13, s33, v13\nv_mul_u32_u24 v{19+i}, 52429, v13\nv_lshrrev_b32 v{19+i}, 22, v{19+i}")
        e(f"v_mul_u32_u24 v14, 80, v{19+i}\nv_sub_u32 v14, v13, v14\nv_lshlrev_b32 v{24+i}, 4, v14")
    def pack_issue(first, lo=0):
        e("s_mul_i32 s32, s4, 241\ns_lshr_b32 s32, s32, 13\ns_mul_i32 s33, s32, 34\ns_sub_u32 s33, s4, s33")
        e("s_mul_i32 s34, s32, 384\ns_lshl_b32 s35, s33, 4\ns_add_u32 s34, s34, s35")
        e("s_sub_u32 s36, s33, 24\ns_sub_u32 s37, s33, 29\ns_cmp_ge_u32 s33, 29\ns_cselect_b32 s36, s37, s36\ns_cselect_b32 s37, 320, 0")
        e("s_mul_i32 s35, s32, 80\ns_add_u32 s35, s35, s37\ns_mul_i32 s37, s36, 20")
        e("s_cmp_eq_u32 s36, 4\ns_cselect_b32 s37, 16, s37\ns_cselect_b32 s43, 16, 0\ns_add_u32 s36, s35, s37")
        for i in range(5):
            e(f"v_lshrrev_b32 v13, 2, v{19+i}\nv_mul_u32_u24 v13, s43, v13\nv_add_u32 v13, v13, v{19+i}\nv_mul_u32_u24 v13, 1280, v13\nv_add_u32 v{3+i}, v13, v{24+i}")
        first()
        e(f"s_cmp_ge_u32 s33, 24\ns_cselect_b32 s34, s36, s34\ns_cselect_b32 s24, s{PWO}, s{PWD}\ns_cselect_b32 s25, s{PWO+1}, s{PWD+1}")
        e(f"s_cselect_b32 s26, {hex(NBYTES['wo'])}, s26\ns_mov_b32 s27, 0x20000\ns_mul_i32 s34, s34, 1280")
        e(f"s_mul_i32 s35, s3, 5120\ns_add_u32 m0, s35, {PKB+lo}")
        for i in range(5):
            e(f"buffer_load_dwordx4 v{3+i}, s[24:27], s34 offen lds")
            if i < 4: e("s_add_u32 m0, m0, 1024")
    def pack_finish(lo=0):
        for c in range(2):
            for a in range(3):
                for u in range(2):
                    ad, off = ("v10", a*64) if a < 2 else ("v11", 0)
                    e(f"ds_read_b64_tr_b16 {vr(PD+12*c+4*a+2*u,2)}, {ad} offset:{lo + c*160 + off + u*5120}")
        e(f"s_mul_i32 s5, s3, {2*136*2560}\ns_mul_i32 s6, s4, 2560\ns_add_u32 s5, s5, s6\ns_add_u32 s6, s5, {136*2560}")
        e("s_waitcnt lgkmcnt(0)")
    e("v_lshrrev_b32 v8, 5, v1\nv_bfe_u32 v9, v1, 2, 2\nv_lshl_add_u32 v9, v8, 3, v9\nv_mul_u32_u24 v9, 1280, v9")
    e(f"s_mul_i32 s32, s3, 320\ns_add_u32 s32, s32, {PKB}\nv_add_u32 v9, s32, v9")
    e("v_and_b32 v16, 1, v1\nv_bfe_u32 v17, v1, 1, 1\nv_bfe_u32 v18, v1, 4, 1")
    e("v_lshl_add_u32 v10, v16, 5, v9\nv_lshl_add_u32 v10, v17, 3, v10\nv_lshl_add_u32 v10, v18, 4, v10")
    e("v_lshl_add_u32 v11, v16, 4, v9\nv_lshl_add_u32 v11, v17, 3, v11\nv_add_u32 v11, 128, v11\nv_lshl_add_u32 v11, v18, 18, v11")
    e("v_and_b32 v12, 15, v1\nv_lshlrev_b32 v12, 4, v12\nv_lshl_add_u32 v12, v8, 8, v12\nv_lshl_add_u32 v12, v18, 30, v12")
    e(f"s_lshl_b32 s75, s4, 2\ns_add_u32 s75, s75, {PKF}")
    e(f"s_mov_b32 s26, {hex(NBYTES['wd'])}")
    pack_issue(go)
    for c in range(2): emit(k, issueW(c)); emit(k, issueX(c))
    e("s_waitcnt vmcnt(10)\ns_barrier")
    pack_finish()
    k.label(Lgu)
    bstamp(k, "p0")
    srd_from(k, 28, PWS, AF_BYTES, AF_OFF)
    def reads(fs, sl, ks):
        L = [f"ds_read_b128 {vr(FR[fs]+12,4)}, v{RB} offset:{sl*SLOT + ks*1024}"]
        for a in range(3):
            for u in range(2):
                L.append(f"ds_read_b64_tr_b16 {vr(FR[fs]+4*a+2*u,2)}, v{RA+a} offset:{sl*SLOT + (16*ks+4*u)*192}")
            if a == 0: L.append(f"ds_read_b128 {vr(FR[fs]+16,4)}, v{RB} offset:{sl*SLOT + 2048 + ks*1024}")
        return L
    def mfmas(fs, c0=False):
        return [f"{MF} {vr(ACC+16*(2*a+b),16)}, {vr(FR[fs]+4*a,4)}, {vr(FR[fs]+12+4*b,4)}, {'0' if c0 else vr(ACC+16*(2*a+b),16)}" for a in range(3) for b in range(2)]
    e("s_mov_b32 s42, 0\nv_min_u32 v4, 33, v1\nv_lshlrev_b32 v4, 4, v4")
    e("s_waitcnt vmcnt(5)\ns_barrier")
    e(f"s_setprio {GP0}")
    bstamp(k, "gu0")
    if ONLY == "A":
        e("s_waitcnt vmcnt(0)"); stamp_dump(k, 0, 6, "s2", PWS); e("s_endpgm")
    emit(k, reads(0, 0, 0))
    srd_from(k, 24, PWS, WP_BYTES, WP_OFF)
    e(f"s_mul_i32 s11, s10, {4*34*2560}\ns_mul_i32 s43, s3, 5120\ns_add_u32 s11, s11, s43\ns_mov_b32 s35, {HUGE}")
    st_loads = [f"buffer_load_dwordx4 v[16:19], v4, {FL}, s36 offen {SC}"]
    def issueP(sl):
        L = [[f"s_add_u32 m0, s43, {sl*SLOT}", "s_add_u32 s33, s11, 4096"]]
        for i in range(4): L.append([f"buffer_load_dwordx4 v2, s[24:27], s11 offen offset:{i*1024} {SC} lds"])
        L[4].append("s_add_u32 m0, m0, 4096")
        L.append([f"buffer_load_dwordx4 v2, s[24:27], s33 offen {SC} lds", f"s_add_u32 s11, s11, {34*2560}"])
        return L
    L = k.newlabel("gu")
    def trip(last):
        for sl in range(4):
            e("s_waitcnt lgkmcnt(0)")
            rd = reads(1, sl, 1); mf = mfmas(0)
            sh = [rd[0:2], rd[2:4], rd[4:6], rd[6:8], [], []]
            if not last and sl == 1: sh[4] = ["s_cmp_eq_u32 s42, 3", f"s_cselect_b32 s36, {PKF}, s35"] + st_loads
            for i in range(6):
                e(mf[i]); emit(k, sh[i])
            if sl == 0 and not last:
                Ls = k.newlabel("nps")
                e(f"s_cmp_ge_u32 s2, 136\ns_cbranch_scc1 {Ls}\ns_cmp_lg_u32 s42, 1\ns_cbranch_scc1 {Ls}")
                for c in range(2):
                    for a in range(3):
                        e(f"buffer_store_dwordx4 {vr(PD+12*c+4*a,4)}, {'v2' if a < 2 else 'v12'}, s[24:27], s{5+c} offen offset:{a*1024} {SC}")
                k.label(Ls)
            if sl == 1 and not last:
                Ls = k.newlabel("npf")
                e(f"s_cmp_ge_u32 s2, 136\ns_cbranch_scc1 {Ls}\ns_cmp_lg_u32 s42, 2\ns_cbranch_scc1 {Ls}")
                setflag(k, "s75", 10)
                k.label(Ls)
            if sl == 2 and GSW >= 0 and not last:
                Lt = k.newlabel("gsw")
                e(f"s_cmp_lg_u32 s42, {GSW}\ns_cbranch_scc1 {Lt}\ns_setprio {GP1}")
                k.label(Lt)
            if sl == 0 and not last: k.label(Lgm)
            e("s_waitcnt vmcnt(10) lgkmcnt(0)\ns_barrier")
            rd = reads(0, (sl+1) % 4, 0) if not (last and sl == 3) else [[]]*8
            mf = mfmas(1)
            if not last:
                iw = issueW(sl); ix = issueX(sl)
                sh = [rd[0:2] + iw[0], rd[2:4] + iw[1], rd[4:6] + iw[2], rd[6:8] + iw[3] + ix[0], ix[1], ix[2]]
                if sl == 3: sh[5] = sh[5] + ["s_add_u32 s42, s42, 1", "s_cmp_lt_u32 s42, 4"]
            else:
                ip = issueP(sl)
                sh = [rd[0:2] + ip[0], rd[2:4] + ip[1], rd[4:6] + ip[2], rd[6:8] + ip[3], ip[4], ip[5]]
            for i in range(6):
                e(mf[i]); emit(k, sh[i])
    Lgm = k.newlabel("gum")
    dq = issueW(2) + issueX(2) + issueW(3) + issueX(3)
    emit(k, dq[:4]); dq = dq[4:]
    e("s_waitcnt lgkmcnt(0)")
    rd = reads(1, 0, 1); mf = mfmas(0, True)
    for i in range(6):
        e(mf[i]); emit(k, rd[2*i:2*i+2]); emit(k, dq[:2]); dq = dq[2:]
    emit(k, dq)
    e(f"s_branch {Lgm}")
    k.label(L, 6)
    trip(False)
    e(f"s_cbranch_scc1 {L}")
    Lok = k.newlabel("pkok")
    e(f"s_setprio 2\nv_xor_b32 v20, {TAG}, v16")
    for r in (17, 18, 19): e(f"v_xor_b32 v{r}, {TAG}, v{r}\nv_or_b32 v20, v20, v{r}")
    e(f"v_cmp_ne_u32 vcc, 0, v20\ns_cmp_eq_u64 vcc, 0\ns_cbranch_scc1 {Lok}")
    spin(k, st_loads, [16, 17, 18, 19], 20)
    k.label(Lok)
    e(f"s_setprio {GP0}")
    trip(True)
    e("s_setprio 2")
    e("v_lshrrev_b32 v8, 5, v1")
    e(f"s_mul_i32 s14, s3, {SLOT}")
    srd_from(k, 20, PWS, WP_BYTES, WP_OFF)
    srd_from(k, 16, PX, NBYTES['x'])
    e(f"s_lshl_b32 s12, s10, 2\ns_add_u32 s12, s12, s3\ns_mul_i32 s12, s12, {34*2560}\ns_add_u32 s12, s12, {4*5120}")
    e(f"s_lshl_b32 s32, s7, 1\ns_add_u32 s32, s32, s39\ns_mul_i32 s32, s32, 272\ns_mul_i32 s43, s8, 6\ns_add_u32 s32, s32, s43\ns_add_u32 s32, s32, s40\ns_add_u32 s32, s32, 40\ns_lshl_b32 s32, s32, 10")
    e(f"s_add_u32 s34, s32, {136*1024}\ns_mov_b32 s33, {hex(f32bits(LOG2E*LOG2E))}")
    e("s_waitcnt lgkmcnt(0)")
    bstamp(k, "gu1")
    def issueW2(sl):
        L = [[f"s_add_u32 m0, s14, {sl*5120}", "s_add_u32 s33, s12, 4096"]]
        for i in range(4): L.append([f"buffer_load_dwordx4 v2, s[20:23], s12 offen offset:{i*1024} {SC} lds"])
        L[4].append("s_add_u32 m0, m0, 4096")
        L.append([f"buffer_load_dwordx4 v2, s[20:23], s33 offen {SC} lds", "s_add_u32 s12, s12, 5120"])
        return L
    T = 176
    if PKS: e("v_mov_b32 v184, s33\nv_mov_b32 v185, s33")
    for a in range(3):
        for b in range(2):
            g = ACC + 16*(2*a+b); u = g + 8
            for j in range(8): e(f"v_exp_f32 v{T+j}, -v{g+j}")
            if PKS:
                for j in range(0, 8, 2): e(f"v_pk_mul_f32 {vr(g+j,2)}, {vr(g+j,2)}, {vr(u+j,2)}")
                for j in range(0, 8, 2): e(f"v_pk_fma_f32 {vr(T+j,2)}, {vr(T+j,2)}, v[184:185], v[184:185]")
            else:
                for j in range(8): e(f"v_mul_f32 v{g+j}, v{g+j}, v{u+j}")
                for j in range(8): e(f"v_fma_f32 v{T+j}, v{T+j}, s33, s33")
            for j in range(8): e(f"v_rcp_f32 v{T+j}, v{T+j}")
            if PKS:
                for j in range(0, 8, 2): e(f"v_pk_mul_f32 {vr(g+j,2)}, {vr(g+j,2)}, {vr(T+j,2)}")
            else:
                for j in range(8): e(f"v_mul_f32 v{g+j}, v{g+j}, v{T+j}")
            for j in range(4): e(f"v_cvt_pk_bf16_f32 v{u+j}, v{g+2*j}, v{g+2*j+1}")
            e(f"buffer_store_dwordx4 {vr(u,4)}, v2, s[28:31], {'s34' if b else 's32'} offen offset:{a*1024} {SC}")
    wq_ = []
    assert not wq_
    e("v_add_u32 v10, s14, v2\nv_and_b32 v11, 15, v1\nv_lshlrev_b32 v11, 4, v11\nv_lshl_add_u32 v11, v8, 8, v11\nv_bfe_u32 v9, v1, 4, 1")
    e("v_lshl_add_u32 v7, v9, 30, v11\nv_lshl_add_u32 v11, v9, 18, v11\nv_add_u32 v11, s14, v11")
    e(f"s_lshl_b32 s35, s7, 4\ns_add_u32 s36, s35, s8\ns_lshl_b32 s36, s36, 7\ns_add_u32 s36, s36, {HF}")
    e(f"s_mul_i32 s24, s9, {272*1024}\ns_mul_i32 s32, s3, {24*1024}\ns_add_u32 s26, s24, s32\ns_add_u32 s26, s26, {40*1024}\ns_add_u32 s27, s26, {136*1024}")
    e("v_and_b32 v14, 3, v1\nv_lshlrev_b32 v14, 7, v14\nv_and_b32 v6, 1, v1\nv_lshlrev_b32 v6, 7, v6")
    if WF: e("v_bfe_u32 v5, v1, 1, 2\nv_lshl_add_u32 v6, v5, 2, v6")
    e(f"s_lshl_b32 s32, s3, 2\ns_add_u32 s32, s32, s35\ns_lshl_b32 s32, s32, 7\ns_add_u32 s32, s32, {HF}")
    e("s_lshr_b32 s40, s3, 1\ns_and_b32 s41, s3, 1")
    e("s_lshl_b32 s34, s9, 1\ns_add_u32 s34, s34, s40\ns_mul_i32 s34, s34, 40960\ns_mul_i32 s33, s10, 160\ns_add_u32 s43, s34, s33")
    e("v_and_b32 v5, 31, v1\nv_mul_u32_u24 v5, 1280, v5")
    e("s_lshl_b32 s34, s41, 6\nv_lshl_add_u32 v12, v8, 5, v5\nv_add_u32 v12, s34, v12")
    e("s_lshl_b32 s34, s41, 3\ns_add_u32 s34, s34, 128\nv_lshl_add_u32 v13, v8, 4, v5\nv_add_u32 v13, s34, v13")
    e("s_mul_i32 s34, s40, 10240\ns_lshl_b32 s33, s41, 12\ns_add_u32 s33, s33, s34\nv_add_u32 v15, s33, v2")
    e("s_lshl_b32 s33, s41, 10\ns_add_u32 s33, s33, s34\ns_add_u32 s33, s33, 8192\nv_add_u32 v3, s33, v2")
    e(f"s_lshl_b32 s25, s9, 3\ns_add_u32 s25, s25, s3\ns_lshl_b32 s25, s25, 7\ns_add_u32 s25, s25, {OF}\nv_mov_b32 v6, 0")
    e(f"s_mul_i32 s33, s3, {10*1024}\ns_add_u32 s24, s24, s33")
    e("s_waitcnt vmcnt(0)\ns_barrier")
    setflag(k, "s36", 16, "B")
    hl = [f"buffer_load_dword v16, v14, {FL}, s32 offen {SC}"]
    XS = 232; G4 = [20, 244]
    e(f"s_add_u32 s34, s12, {24*2560}\ns_add_u32 s35, s12, {25*2560}")
    srd_from(k, 36, POUT, NBYTES['out'])
    spin(k, hl, [16], 17)
    e(f"s_setprio {TP}")
    XR = 128; FA = [208, 220]
    def issueX2(rs):
        L = []
        for ks in range(2):
            for b in range(2):
                L.append([f"buffer_load_dwordx4 {vr(XR+16*rs+8*ks+4*b,4)}, v2, s[28:31], s{26+b} offen offset:{ks*1024} {SC}"])
        L[3] += ["s_add_u32 s26, s26, 2048", "s_add_u32 s27, s27, 2048"]
        return L
    for g in range(4): emit(k, issueX2(g))
    def reads2(fs, sl, ks):
        return [f"ds_read_b128 {vr(FA[fs]+4*a,4)}, {'v10' if a < 2 else 'v11'} offset:{sl*5120 + ks*2560 + a*1024}" for a in range(3)]
    def mfmas2(fs, rs, ks, c0=False):
        return [f"{MF} {vr(ACC+16*(3*b+a),16)}, {vr(FA[fs]+4*a,4)}, {vr(XR+16*rs+8*ks+4*b,4)}, {'0' if c0 else vr(ACC+16*(3*b+a),16)}" for a in range(3) for b in range(2)]
    e(f"s_mov_b32 s42, 0\ns_setprio {DP}")
    emit(k, reads2(0, 0, 0))
    e("s_waitcnt vmcnt(14) lgkmcnt(0)")
    bstamp(k, "dn0")
    L = k.newlabel("dn"); Lm = k.newlabel("dnm")
    rd = reads2(1, 0, 1); mf = mfmas2(0, 0, 0, True)
    for i in range(6):
        e(mf[i]); emit(k, rd[i:i+1])
    e("s_waitcnt vmcnt(0)")
    for ks in range(2):
        for a in range(3):
            e(f"buffer_load_dwordx4 {vr(G4[ks]+4*a,4)}, {'v2' if a < 2 else 'v7'}, s[20:23], s{34+ks} offen offset:{a*1024} {SC}")
    e(f"buffer_load_dwordx4 {vr(XS,4)}, v12, s[16:19], s43 offen")
    e(f"buffer_load_dwordx4 {vr(XS+4,4)}, v12, s[16:19], s43 offen offset:16")
    e(f"buffer_load_dwordx2 {vr(XS+8,2)}, v13, s[16:19], s43 offen")
    e(f"s_branch {Lm}")
    k.label(L, 6)
    for sl in range(4):
        e("s_waitcnt lgkmcnt(0)")
        rd = reads2(1, sl, 1); mf = mfmas2(0, sl, 0)
        sh = [rd[0:1], rd[1:2], rd[2:3], [], [], []]
        if sl == 0: sh[3] = ["s_cmp_eq_u32 s42, 2", f"s_cselect_b32 s26, {HUGE}, s26", f"s_cselect_b32 s27, {HUGE}, s27"]
        for i in range(6):
            e(mf[i]); emit(k, sh[i])
        if sl == 0: k.label(Lm)
        e("s_waitcnt vmcnt(18) lgkmcnt(0)")
        rd = reads2(0, (sl+1) % 4, 0); mf = mfmas2(1, sl, 1)
        iw = issueW2(sl); ix = issueX2(sl)
        sh = [rd[0:1] + iw[0], rd[1:2] + iw[1], rd[2:3] + iw[2], iw[3] + iw[4], iw[5], ix[0] + ix[1] + ix[2] + ix[3]]
        if sl == 3: sh[5] = sh[5] + ["s_add_u32 s42, s42, 1", "s_cmp_lt_u32 s42, 3"]
        for i in range(6):
            e(mf[i]); emit(k, sh[i])
    e(f"s_cbranch_scc1 {L}")
    e("s_setprio 2")
    emit(k, reads2(1, 0, 1))
    bstamp(k, "dn1")
    def oload(b, t):
        return [f"s_add_u32 s26, s24, {b*136*1024 + t*1024}", f"buffer_load_dwordx4 {vr(XR+40*b+4*t,4)}, v2, s[28:31], s26 offen {SC}"]
    f2 = [f"buffer_load_dword v18, v6, {FL}, s25 offen offset:512 {SC}"]
    if ONLY != "B": spin(k, [f"buffer_load_dword v16, v6, {FL}, s25 offen {SC}"] + f2, [16], 17)
    else: e(f"s_waitcnt vmcnt(0)\nv_mov_b32 v18, {TAG}")
    for t in range(5):
        for b in range(2): emit(k, oload(b, t))
    seq = [(t, (0, 1)) for t in range(5)] + [(t, (0,)) for t in range(5, 10)] + [(t, (1,)) for t in range(5, 10)]
    lsteps = [t for t, _ in seq if t < 8]
    wr = [f"ds_write_b128 v10, {vr(ACC+4*q,4)} offset:{q*1024}" for q in range(10)]
    def late_loads():
        for b in range(2):
            for t2 in range(5, 10): emit(k, oload(b, t2))
    def steps(us, lds, n, younger):
        for u in us:
            t, bs = seq[u]
            vm = (8 - 2*u + younger) if u < 5 else (14 - u)
            if t < 8:
                last = max([i for i, x in enumerate(lds) if x == f"n{n}"], default=-1)
                lds = lds[last+1:]
                e(f"s_waitcnt vmcnt({vm}) lgkmcnt({min(15, len(lds))})")
                F = FA[n & 1]
            else:
                e(f"s_waitcnt vmcnt({vm})")
                F = G4[t-8]
            for a in range(3):
                for b in bs:
                    e(f"{MF} {vr(ACC+16*(3*b+a),16)}, {vr(F+4*a,4)}, {vr(XR+40*b+4*t,4)}, {vr(ACC+16*(3*b+a),16)}")
                    if u >= 11 and wr:
                        e(wr.pop(0)); lds.append("w")
            if t < 8:
                if n + 2 < len(lsteps):
                    t2 = lsteps[n+2]
                    emit(k, reads2(n & 1, t2 >> 1, t2 & 1)); lds += [f"n{n+2}"]*3
                n += 1
        return lds, n
    Lb, Lj = k.newlabel("both"), k.newlabel("join")
    e(f"v_cmp_ne_u32 vcc, {TAG}, v18\ns_cmp_eq_u64 vcc, 0\ns_cbranch_scc1 {Lb}")
    emit(k, f2)
    steps(range(5), ["n0"]*3 + ["n1"]*3, 0, 1)
    spin(k, f2, [18], 17, pre_issued=True)
    late_loads()
    e(f"s_branch {Lj}")
    k.label(Lb)
    late_loads()
    lds, n = steps(range(5), ["n0"]*3 + ["n1"]*3, 0, 10)
    k.label(Lj)
    bstamp(k, "of")
    steps(range(5, 15), lds, n, 0)
    assert not wr
    bstamp(k, "mm")
    for q in range(10):
        e(f"ds_write_b128 v10, {vr(ACC+48+4*q,4)} offset:{(10+q)*1024}")
    e("s_waitcnt lgkmcnt(0)\ns_barrier")
    R = 128
    for w in range(4):
        for q in range(4):
            e(f"ds_read_b128 {vr(R+20*w+4*q,4)}, v15 offset:{w*SLOT + q*1024}")
        e(f"ds_read_b128 {vr(R+20*w+16,4)}, v3 offset:{w*SLOT}")
    for j in range(10):
        e(f"v_lshlrev_b32 v{ACC+2*j}, 16, v{XS+j}\nv_and_b32 v{ACC+2*j+1}, 0xffff0000, v{XS+j}")
    for w in range(4):
        e(f"s_waitcnt lgkmcnt({15-5*w})")
        for j in range(0, 20, 2):
            e(f"v_pk_add_f32 {vr(ACC+j,2)}, {vr(ACC+j,2)}, {vr(R+20*w+j,2)}")
    for j in range(10):
        e(f"v_cvt_pk_bf16_f32 v{XS+j}, v{ACC+2*j}, v{ACC+2*j+1}")
    bstamp(k, "rd")
    e(f"buffer_store_dwordx4 {vr(XS,4)}, v12, s[36:39], s43 offen {OM}")
    e(f"buffer_store_dwordx4 {vr(XS+4,4)}, v12, s[36:39], s43 offen offset:16 {OM}")
    e(f"buffer_store_dwordx2 {vr(XS+8,2)}, v13, s[36:39], s43 offen {OM}")
    stamp_dump(k, 0, 9, "s2", PWS)
    e("s_endpgm")

def w160_voffs(k, dst, t):
    e = k.e
    for i in range(5):
        e(f"v_add_u32 v{t}, {64*i}, v1\nv_mul_u32_u24 v{t+1}, 6554, v{t}\nv_lshrrev_b32 v{t+1}, 16, v{t+1}")
        e(f"v_mul_u32_u24 v{t+2}, 10, v{t+1}\nv_sub_u32 v{t+2}, v{t}, v{t+2}")
        e(f"v_and_b32 v{t}, 24, v{t+1}\nv_bfe_u32 v{t+3}, v{t+1}, 1, 2\nv_add_u32 v{t}, v{t}, v{t+3}\nv_and_b32 v{t+3}, 1, v{t+1}\nv_lshl_add_u32 v{t}, v{t+3}, 2, v{t}")
        e(f"v_mul_u32_u24 v{t}, 1280, v{t}\nv_lshl_add_u32 v{dst+i}, v{t+2}, 4, v{t}")

def roleA(k, mid):
    e = k.e
    AST = env("AST", 0)
    import common
    def stamp(k, i, q=False):
        if AST and not q and 2 < i < 7: return
        if q and not AST: return
        common.stamp(k, i)
    KVSLOT = 24576; KV0 = 8192
    QS = 20480; QX = 10240
    S0, S1 = 32, 48; SA = 64
    Q = [16, 24]; O = [144, 160]; P = [96, 104]; KVB = [112, 128]; KT = 176
    KL = lambda s: KVB[s]; KH = lambda s: KVB[s]+4; V0 = lambda s: KVB[s]+8; V1 = lambda s: KVB[s]+12
    AKL, AKH, AV, BKH, BV = 8, 9, 10, 11, 12
    WV = 16; XV = 21; RB = 24; ONES = 28
    FRG = 80
    AO2 = 241; RB2 = 224
    stamp(k, 0)
    e("s_bfe_u32 s8, s2, 0x20001\ns_lshl_b32 s8, s8, 3\ns_lshr_b32 s9, s2, 5\ns_add_u32 s8, s8, s9")
    e("s_and_b32 s9, s2, 1\ns_lshl_b32 s9, s9, 2\ns_bfe_u32 s32, s2, 0x20003\ns_add_u32 s9, s9, s32")
    e("s_add_u32 s11, s8, s9\ns_mul_i32 s11, s11, 3\ns_mul_i32 s32, s11, 205\ns_lshr_b32 s32, s32, 11\ns_mul_i32 s32, s32, 10\ns_sub_u32 s11, s11, s32")
    if ROT == 0: e("s_mov_b32 s11, 0")
    if ROT == 2: e("s_and_b32 s11, s11, 1")
    if ROT == 3: e("s_bfe_u32 s11, s2, 0x20001\ns_lshl_b32 s11, s11, 1")
    x_voffs(k, XV, 3)
    w160_voffs(k, WV, 3)
    def essential():
        e("v_lshrrev_b32 v6, 5, v1")
        e("v_bfe_u32 v7, v1, 2, 2\nv_lshl_add_u32 v7, v6, 2, v7\nv_mul_u32_u24 v4, 320, v7")
        e("v_and_b32 v7, 1, v1\nv_lshlrev_b32 v7, 4, v7")
        e("v_bfe_u32 v8, v1, 1, 1\nv_lshl_add_u32 v7, v8, 3, v7")
        e("v_and_b32 v8, 16, v1\nv_cmp_ne_u32 vcc, 0, v8\nv_mov_b32 v8, 32\nv_cndmask_b32 v7, v7, v8, vcc")
        e("v_add_u32 v4, v4, v7\ns_mul_i32 s32, s3, 40\nv_add_u32 v4, s32, v4")
        e("v_and_b32 v8, 19, v1\nv_cmp_lt_u32 vcc, 16, v8\nv_mov_b32 v8, 0x40000\nv_cndmask_b32 v4, v4, v8, vcc")
        e("v_add_u32 v5, 40960, v4")
        x_raddr(k, RB, 7, str(QX))
        for j in range(4): e(f"v_mov_b32 v{ONES+j}, 0x3f803f80")
        for j in range(4): e(f"v_add_u32 v{RB2+j}, 40960, v{RB+j}")
    if ADLY == 3: essential()
    Lw = k.newlabel("wrole")
    e(f"s_mul_i32 s12, s3, 40960\ns_mul_i32 s32, s9, 160\ns_add_u32 s12, s12, s32\ns_mov_b32 s13, {64*1280}")
    e("s_waitcnt lgkmcnt(0)")
    srd_from(k, 20, PWQ, NBYTES['wq'])
    e(f"s_mov_b64 s[18:19], -1\ns_cmp_lt_u32 s3, 2\ns_cbranch_scc1 {Lw}\ns_mov_b64 s[18:19], 1")
    for i in range(4): e(f"v_add_u32 v{WV+i}, {10240*i}, v{XV+(i&1)}")
    e(f"v_mov_b32 v{WV+4}, {HUGE}")
    e("s_lshl_b32 s33, s8, 1\ns_add_u32 s33, s33, s3\ns_sub_u32 s33, s33, 2\ns_mul_i32 s12, s33, 40960\ns_mov_b32 s13, 128")
    srd_from(k, 20, PX, NBYTES['x'])
    k.label(Lw)
    e("s_mul_i32 s34, s11, s13\ns_add_u32 s34, s34, s12\ns_mul_i32 s35, s13, 10\ns_add_u32 s35, s35, s12\ns_mul_i32 s14, s3, 5120")
    def st_issue(slot):
        L = [[f"s_add_u32 m0, s14, {slot*QS}"]]
        for i in range(5):
            g = [f"buffer_load_dwordx4 v{WV+i}, s[20:23], s34 offen lds"]
            if i < 4: g += ["s_add_u32 m0, m0, 1024"]
            else: g = ["s_mov_b64 exec, s[18:19]"] + g + ["s_mov_b64 exec, -1", "s_add_u32 s34, s34, s13", "s_cmp_eq_u32 s34, s35", "s_cselect_b32 s34, s12, s34"]
            L.append(g)
        return L
    if ADLY == 0: emit(k, st_issue(0))
    if ADLY == 3:
        emit(k, st_issue(0)); tag_setup(k); emit(k, st_issue(1))
    mid()
    mark = len(k.items)
    if ADLY != 3: tag_setup(k)
    srd_from(k, 24, PWS, KV_BYTES, KV_OFF)
    srd_from(k, 28, PWS, AF_BYTES, AF_OFF)
    if ADLY != 3: essential()
    e(f"v_and_b32 v7, 31, v1\nv_lshlrev_b32 v{BKH}, 3, v7\nv_add_u32 v{BKH}, 1024, v{BKH}\nv_lshl_add_u32 v{BKH}, v6, 18, v{BKH}")
    e("v_and_b32 v13, 19, v7\nv_bfe_u32 v14, v7, 2, 1\nv_lshl_add_u32 v13, v14, 3, v13\nv_bfe_u32 v14, v7, 3, 1\nv_lshl_add_u32 v13, v14, 2, v13")
    e(f"v_mul_u32_u24 v{BV}, 24, v6\nv_add_u32 v{BV}, v{BV}, v13")
    e("v_cmp_le_u32 vcc, 28, v7\nv_cndmask_b32 v13, 0, 1, vcc\nv_xor_b32 v13, v13, v6\nv_mul_u32_u24 v13, 24, v13\nv_add_u32 v13, 20, v13")
    e("v_and_b32 v15, 27, v7\nv_cmp_ne_u32 vcc, 24, v15\nv_mov_b32 v15, 0x4000\nv_cndmask_b32 v13, v13, v15, vcc")
    e(f"v_cmp_le_u32 vcc, 20, v7\nv_cndmask_b32 v{BV}, v{BV}, v13, vcc")
    e(f"v_lshlrev_b32 v{BV}, 4, v{BV}\nv_add_u32 v{BV}, 1536, v{BV}")
    c0 = KV0 + 2*KVSLOT
    e(f"v_add_u32 v{AKL}, {c0}, v2\nv_add_u32 v{AKH}, {c0}, v{BKH}\nv_add_u32 v{AV}, {c0}, v{BV}")
    e(f"s_lshr_b32 s32, s3, 1\ns_lshl_b32 s32, s32, 9\ns_and_b32 s33, s3, 1\ns_lshl_b32 s33, s33, 3\ns_add_u32 s32, s32, s33")
    e(f"v_lshl_add_u32 v{AO2}, v7, 4, s32\nv_lshl_add_u32 v{AO2}, v6, 30, v{AO2}")
    e(f"v_lshlrev_b32 v13, {KVS}, v1\nv_lshlrev_b32 v14, 3, v7")
    e(f"s_lshl_b32 s39, s8, 9\ns_add_u32 s39, s39, {STAT}\ns_lshl_b32 s38, s3, {KVS+6}\ns_add_u32 s38, s38, {KVF}\ns_mul_i32 s36, s3, 6144")
    for t in range(4): e(f"v_mov_b32 v{KT+8*t+6}, 0\nv_mov_b32 v{KT+8*t+7}, 0")
    if ADLY == 0:
        setup = k.items[mark:]; del k.items[mark:]
        groups = st_issue(1) + st_issue(2) + st_issue(3)
        per = -(-len(setup) // len(groups))
        for g in groups:
            take = per
            while take < len(setup) and setup[take].op.startswith(("s_addc", "s_cselect")): take += 1
            k.items += setup[:take]; setup = setup[take:]
            emit(k, g)
        k.items += setup
    late = []
    if ADLY == 3:
        late = k.items[mark:]; del k.items[mark:]
    if ADLY == 2: tag_finish(k)
    if ADLY in (1, 2):
        for sl in range(2): emit(k, st_issue(sl))
    if ADLY != 2: tag_finish(k)
    stamp(k, 1)
    def kv_issue(chunk_soff, slot_base):
        L = []
        for half in range(2):
            L.append([f"s_add_u32 m0, s36, {slot_base + half*3072}", f"s_add_u32 s32, s36, {chunk_soff + half*3072}"])
            for j in range(3):
                L.append([f"buffer_load_dwordx4 v2, s[24:27], s32 offen offset:{j*1024} {SC} lds"])
        return L
    PL = 232
    kv_poll = [f"buffer_load_dword v{PL}, v13, {FL}, s38 offen {SC}"]
    pl_loads = [f"buffer_load_dwordx2 {vr(PL+2,2)}, v14, {FL}, s39 offen {SC}", f"buffer_load_dwordx2 {vr(PL+4,2)}, v14, {FL}, s39 offen offset:256 {SC}"]
    inits = []
    for j in range(8): inits += [(P[1]+j, "0"), (V0(1)+j, "0")]
    for s_ in range(2): inits += [(KH(s_)+2, "0x3f80"), (KH(s_)+3, "0")]
    for j in range(32): inits += [(O[0]+j, "0")]
    inits.sort()
    def hreads(h):
        sl = h % 4; F = FRG + 48*(h & 1); L = []
        so = (sl & 1) * QS; ta = "v5" if sl >= 2 else "v4"; rb = RB2 if sl >= 2 else RB
        for ks in range(4):
            for u in range(2): L.append(f"ds_read_b64_tr_b16 {vr(F+12*ks+2*u,2)}, {ta} offset:{so + ks*2560 + u*160}")
            for b in range(2): L.append(f"ds_read_b128 {vr(F+12*ks+4+4*b,4)}, v{rb+ks} offset:{so + b*5120}")
        return L
    e(f"s_waitcnt vmcnt({5 if ADLY else 15})\ns_barrier")
    stamp(k, 2)
    emit(k, hreads(0))
    if ADLY: emit(k, st_issue(2))
    kt_loads = [["s_mov_b32 s33, 6144"]]
    for t in range(4):
        so, off = ("0", t*3072) if t < 2 else ("s33", (t-2)*3072)
        kt_loads.append([f"buffer_load_dwordx4 {vr(KT+8*t,4)}, v2, s[24:27], {so} offen offset:{off} {SC}",
                         f"buffer_load_dwordx2 {vr(KT+8*t+4,2)}, v{BKH}, s[24:27], {so} offen offset:{off} {SC}"])
    for h in range(10):
        F = FRG + 48*(h & 1)
        if h < PH:
            n = {0: 5 if ADLY else 10, 7: 5, 8: 0}.get(h, 10) + (3 if h == PH - 1 else 0)
            e(f"s_waitcnt vmcnt({n}) lgkmcnt(0)")
        else:
            if h == PH: spin(k, pl_loads + kv_poll, [PL, PL+3, PL+5], 15, pre_issued=True, slp=KSL)
            e("s_waitcnt lgkmcnt(0)")
        if h < 9: e("s_barrier")
        if h in (2, 4, 6, 8): stamp(k, 2 + h//2, True)
        if h == QH:
            e(f"s_lshl_b32 s37, s2, 7\ns_add_u32 s37, s37, {QF}")
            setflag(k, "s37", 242)
        rd = hreads(h+1) if h < 9 else []
        dm = st_issue(h % 4) if h < 6 else []
        if h == 0 and ADLY: dm = st_issue(3) + dm
        if h == PH - 2:
            assert not late
            dm = dm + [pl_loads + kv_poll]
        if h == PH: dm = kv_issue(0, KV0 + 2*KVSLOT)
        i = 0
        for ks in range(4):
            first = (h == 0 and ks == 0)
            for acc, bop in ((S0, F+12*ks+4), (S1, F+12*ks+8), (SA, ONES)):
                e(f"{MF} {vr(acc,16)}, {vr(F+12*ks,4)}, {vr(bop,4)}, {'0' if first else vr(acc,16)}")
                emit(k, rd[:2]); rd = rd[2:]
                if dm and (i >= DI or h in (0, PH, 9)): emit(k, dm.pop(0))
                if h >= 1 and late:
                    take = 3
                    while take < len(late) and late[take].op.startswith(("s_addc", "s_cselect")): take += 1
                    k.items += late[:take]; late = late[take:]
                if h == 9:
                    m = 0
                    while inits and m < 3 and inits[0][0] < F + 12*ks:
                        r, v = inits.pop(0); e(f"v_mov_b32 v{r}, {v}"); m += 1
                i += 1
        emit(k, dm)
    stamp(k, 3)
    for r, v in inits: e(f"v_mov_b32 v{r}, {v}")
    for b in range(2):
        st = PL + 2 + 2*b
        e(f"v_lshlrev_b32 v{238+b}, 16, v{st}\nv_xor_b32 v{238+b}, 0x80000000, v{238+b}\nv_and_b32 v{st}, 0xffff0000, v{st}")
        e(f"v_rcp_f32 v{st}, v{st}\nv_mul_f32 v{st}, {hex(f32bits(QSCALE))}, v{st}")
    def qepi(b):
        L = []; a = S0 + 16*b
        for j in range(12): L.append(f"v_fmac_f32 v{a+j}, v{238+b}, v{SA+j}")
        for j in range(12): L.append(f"v_mul_f32 v{a+j}, v{PL+2+2*b}, v{a+j}")
        for j in range(6): L.append(f"v_cvt_pk_bf16_f32 v{Q[b]+j}, v{a+2*j}, v{a+2*j+1}")
        L += [f"v_mov_b32 v{Q[b]+6}, 0", f"v_mov_b32 v{Q[b]+7}, 0"]
        return L
    MX = [3, 5]
    sxr = lambda b, t: [[80, 208, 32, 64], [48, 80, 208, 64]][b][t]
    def mx(b, t):
        S = sxr(b, t)
        L = [f"v_max3_f32 v{MX[b]}, v{S}, v{S+1}, v{S+2}", f"v_max_f32 v{MX[b]}, v{MX[b]}, v{S+3}"] if t == 0 else []
        for j in range(4 if t == 0 else 0, 16, 2): L.append(f"v_max3_f32 v{MX[b]}, v{MX[b]}, v{S+j}, v{S+j+1}")
        return L
    def qk(b, t):
        S = sxr(b, t)
        return [f"{MF} {vr(S,16)}, {vr(KT+8*t,4)}, {vr(Q[b],4)}, 0", f"{MF} {vr(S,16)}, {vr(KT+8*t+4,4)}, {vr(Q[b]+4,4)}, {vr(S,16)}"]
    def fin(b, offs):
        L = [f"v_mov_b32 v15, v{MX[b]}", f"v_permlane32_swap_b32 v{MX[b]}, v15", f"v_max_f32 v{MX[b]}, v{MX[b]}, v15"]
        if offs: L.append(f"v_add_f32 v{MX[b]}, {hex(f32bits(offs))}, v{MX[b]}")
        L += [f"v_cvt_pk_bf16_f32 v{MX[b]}, -v{MX[b]}, 0", "v_cmp_ne_u32 vcc, 0, v6", f"v_cndmask_b32 v{Q[b]+6}, v{MX[b]}, 0, vcc"]
        return L
    def weave(mfs, vals, per, ex=None):
        for m in mfs:
            e(m)
            if ex: emit(k, ex.pop(0))
            for _ in range(per):
                if vals: e(vals.pop(0))
        for v in vals: e(v)
    e(f"s_mov_b32 s40, 0\ns_mov_b32 s41, {KV0}\ns_add_u32 s35, s36, {KV0}\ns_add_u32 s42, s35, {KVSLOT}\ns_add_u32 s43, s36, {2*KVSLOT}\ns_add_u32 s39, s35, {3*KVSLOT}")
    e("s_and_b32 s32, s9, 3\ns_mul_i32 s32, s32, 10\ns_mul_i32 s33, s8, 272\ns_add_u32 s32, s32, s33\ns_lshr_b32 s33, s9, 2\ns_mul_i32 s33, s33, 5\ns_add_u32 s32, s32, s33")
    e("s_add_u32 s16, s32, 4\ns_lshl_b32 s16, s16, 10\ns_add_u32 s12, s32, s3\ns_lshl_b32 s12, s12, 10")
    e(f"s_add_u32 s13, s12, {136*1024}\ns_add_u32 s17, s16, {136*1024}")
    e(f"s_lshl_b32 s14, s8, 3\ns_add_u32 s14, s14, s9\ns_lshl_b32 s14, s14, 7\ns_add_u32 s14, s14, {OF}")
    e("s_waitcnt vmcnt(0)\ns_barrier")
    for t in range(4):
        e(f"ds_read_b128 {vr(KT+8*t,4)}, v{AKL} offset:{t*3072}\nds_read_b64 {vr(KT+8*t+4,2)}, v{AKH} offset:{t*3072}")
    for s in range(2):
        e(f"ds_read_b128 {vr(KL(s),4)}, v{AKL} offset:{s*3072}\nds_read_b64 {vr(KH(s),2)}, v{AKH} offset:{s*3072}")
    e(f"ds_read_b128 {vr(V0(0),4)}, v{AV}\nds_read_b128 {vr(V1(0),4)}, v{AV} offset:768")
    emit(k, qepi(0))
    stamp(k, 4)
    stamp(k, 5)
    e("s_waitcnt lgkmcnt(6)")
    kv1 = kv_issue(KVSLOT, KV0)
    weave(qk(0, 0) + qk(0, 1) + qk(0, 2), qepi(1), 6, kv1)
    weave(qk(0, 3) + qk(1, 0), mx(0, 0) + mx(0, 1), 4, kv1)
    weave(qk(1, 1) + qk(1, 2), mx(0, 2) + mx(0, 3) + fin(0, OFFS), 6)
    e("s_waitcnt lgkmcnt(0)")
    weave(qk(1, 3) + [f"{MF} {vr(S0,16)}, {vr(KL(0),4)}, {vr(Q[0],4)}, 0", f"{MF} {vr(S0,16)}, {vr(KH(0),4)}, {vr(Q[0]+4,4)}, {vr(S0,16)}"],
          mx(1, 0) + [f"v_mov_b32 v{S1+12+j}, 0" for j in range(4)] + mx(1, 1) + mx(1, 2) + mx(1, 3) + fin(1, OFFS), 6)
    dma = lambda so, off: f"buffer_load_dwordx4 v2, s[24:27], {so} offen offset:{off} {SC} lds" if not NOKV else "s_nop 0"
    extra = {(1, 0): ["s_mov_b32 m0, s42"], (1, 1): ["s_add_u32 s38, s43, 4096"], (1, 3): ["s_waitcnt vmcnt(0)", "s_barrier"] if NOKV < 2 else [],
             (2, 3): [dma("s43", 0), dma("s43", 1024)], (3, 3): [dma("s43", 2048), dma("s43", 3072)],
             (4, 0): ["s_add_u32 m0, s42, 4096"], (4, 3): [dma("s38", 0), dma("s38", 1024)],
             (5, 0): [f"s_add_u32 s43, s43, {KVSLOT}"], (5, 1): ["s_add_u32 s40, s40, 1"], (5, 2): [f"s_add_u32 s37, s42, {KVSLOT}"],
             (6, 0): ["s_cmp_eq_u32 s37, s39"], (6, 1): ["s_cselect_b32 s37, s35, s37"],
             (7, 0): ["s_sub_u32 s41, s42, s36"], (7, 1): ["s_mov_b32 s42, s37"],
             (7, 2): ["s_cmp_lt_u32 s40, 8"]}
    e("s_setprio 1")
    stamp(k, 6)
    stamp(k, 7)
    Lloop = k.newlabel("att")
    k.label(Lloop, 6)
    def cv(S, Pb, g):
        return [f"v_cvt_pk_bf16_f32 v{Pb+2*g}, v{S+4*g}, v{S+4*g+1}", f"v_cvt_pk_bf16_f32 v{Pb+2*g+1}, v{S+4*g+2}, v{S+4*g+3}"]
    for jj in range(8):
        for blk in range(2):
            Sc, Sn = (S0, S1) if blk == 0 else (S1, S0)
            valu = []
            for g in range(4):
                for j in range(4): valu.append(f"v_exp_f32{E64} v{Sc+4*g+j}, v{Sc+4*g+j}")
                valu += cv(Sn, P[1-blk], 3) if g == 0 else cv(Sc, P[blk], g-1)
            ks = (jj + blk) & 1; vs = (jj - 1 + blk) & 1; nb = 1 - blk
            ko = ((jj + 2) % 8) * 3072; vo = ((jj + 1) % 8) * 3072
            mf = [[f"{MF} {vr(O[nb],16)}, {vr(V0(vs),4)}, {vr(P[nb],4)}, {vr(O[nb],16)}"],
                  [f"{MF} {vr(Sn,16)}, {vr(KL(ks),4)}, {vr(Q[nb],4)}, 0"],
                  [f"{MF} {vr(Sn,16)}, {vr(KH(ks),4)}, {vr(Q[nb]+4,4)}, {vr(Sn,16)}"],
                  [f"{MF} {vr(O[nb],16)}, {vr(V1(vs),4)}, {vr(P[nb]+4,4)}, {vr(O[nb],16)}"]]
            if blk == 0:
                mf[2].append("s_waitcnt lgkmcnt(0)")
                mf[3].append(f"ds_read_b128 {vr(KL(ks),4)}, v{AKL} offset:{ko}")
                mf[3].append(f"ds_read_b64 {vr(KH(ks),2)}, v{AKH} offset:{ko}")
            else:
                mf[3].append(f"ds_read_b128 {vr(V0(1-vs),4)}, v{AV} offset:{vo}")
                mf[3].append(f"ds_read_b128 {vr(V1(1-vs),4)}, v{AV} offset:{vo+768}")
                if jj == 5: valu.append(f"v_add_u32 v{AKL}, s41, v2"); valu.append(f"v_add_u32 v{AKH}, s41, v{BKH}")
                if jj == 6: valu.append(f"v_add_u32 v{AV}, s41, v{BV}")
                for m in range(4): mf[m] += extra.get((jj, m), [])
            for i, v in enumerate(valu):
                for m in range(4):
                    if PATTERN[m] == i: emit(k, mf[m])
                e(v)
    e(f"s_cbranch_scc1 {Lloop}")
    emit(k, cv(S1, P[1], 3))
    e(f"{MF} {vr(O[1],16)}, {vr(V0(1),4)}, {vr(P[1],4)}, {vr(O[1],16)}")
    e(f"{MF} {vr(O[1],16)}, {vr(V1(1),4)}, {vr(P[1]+4,4)}, {vr(O[1],16)}")
    stamp(k, 8)
    e("s_mov_b32 s40, 0\ns_setprio 3")
    Lout = k.newlabel("out"); Lslow = k.newlabel("slow"); Lpub = k.newlabel("pub")
    k.label(Lout)
    PK = 224; A0 = 208
    for b in range(2):
        e(f"v_rcp_f32 v{A0+b}, v{O[b]+12}")
        e(f"v_mul_f32 v{A0+b}, {hex(f32bits(1/LOG2E))}, v{A0+b}")
        for j in range(12): e(f"v_mul_f32 v{O[b]+j}, v{O[b]+j}, v{A0+b}")
        for j in range(6): e(f"v_cvt_pk_bf16_f32 v{PK+8*b+j}, v{O[b]+2*j}, v{O[b]+2*j+1}")
        e(f"buffer_store_dwordx4 {vr(PK+8*b,4)}, v2, s[28:31], s{12+b} offen {SC}")
        e(f"buffer_store_dwordx2 {vr(PK+8*b+4,2)}, v{AO2}, s[28:31], s{16+b} offen {SC}")
    e(f"v_mul_f32 v{A0+2}, 0, v{O[0]+12}\nv_mul_f32 v{A0+3}, 0, v{O[1]+12}")
    for j in range(12):
        for b in range(2): e(f"v_fma_f32 v{A0+2+b}, v{O[b]+j}, 0, v{A0+2+b}")
    e(f"v_cmp_u_f32 vcc, v{A0+2}, v{A0+3}")
    e(f"s_cmp_lg_u32 s40, 0\ns_cbranch_scc1 {Lpub}")
    e(f"s_cmp_lg_u64 vcc, 0\ns_cbranch_scc1 {Lslow}")
    k.label(Lpub)
    if WF:
        e(f"v_mov_b32 v16, {TAG}\ns_lshl_b32 s32, s3, 2\nv_mov_b32 v17, s32\ns_mov_b64 exec, 1\ns_waitcnt vmcnt(0)")
        e(f"buffer_store_dword v16, v17, {FL}, s14 offen {SC}\ns_mov_b64 exec, -1")
    else:
        e("s_waitcnt vmcnt(0)\ns_barrier")
        if LEAK == "A9":
            e("s_getreg_b32 s95, hwreg(HW_REG_XCC_ID)\ns_and_b32 s95, s95, 15\ns_and_b32 s94, s2, 7\ns_cmp_eq_u32 s95, s94\ns_cselect_b32 s95, 0, 1000\ns_add_u32 s95, s95, s86")
        setflag(k, "s14", 16, "A")
    Lx = k.newlabel("axit")
    e(f"s_or_b32 s32, s2, s3\ns_cmp_lg_u32 s32, 0\ns_cbranch_scc1 {Lx}")
    e(f"v_lshlrev_b32 v13, 7, v1")
    ld = []
    for i in range(8): ld += [f"s_mov_b32 s38, {HF + 8192*i}", f"buffer_load_dword v{16+i}, v13, {FL}, s38 offen {SC}"]
    if not ONLY: spin(k, ld, list(range(16, 24)), 24)
    setflag(k, "0", 16)
    if LEAK:
        for i in range(8):
            e(f"s_mov_b32 s75, {HF + 8192*i}\nbuffer_load_dwordx2 {vr(32+2*i,2)}, v13, {FL}, s75 offen offset:8 {SC}")
        e("s_waitcnt vmcnt(0)")
        for i in range(16): e(f"v_subrev_u32 v{32+i}, s86, v{32+i}")
        for i in range(1, 8): e(f"v_min_i32 v32, v32, v{32+2*i}\nv_max_i32 v33, v33, v{33+2*i}")
        e("s_mov_b32 s40, 0x7fffffff\ns_mov_b32 s41, 0x80000000")
        for l in range(64):
            e(f"v_readlane_b32 s42, v32, {l}\nv_readlane_b32 s43, v33, {l}\ns_min_i32 s40, s40, s42\ns_max_i32 s41, s41, s43")
        e("s_sub_u32 s41, s41, s40\ns_mul_i32 s41, s41, 4\ns_add_u32 s41, s41, 10000\ns_add_u32 s40, s40, s86")
        Ls = k.newlabel("spin"); k.label(Ls)
        e("s_memrealtime s[42:43]\ns_waitcnt lgkmcnt(0)\ns_sub_u32 s42, s42, s40")
        e(f"s_cmp_lt_u32 s42, s41\ns_cbranch_scc1 {Ls}")
    k.label(Lx)
    stamp_dump(k, 1, 9, "s2", PWS)
    e("s_endpgm")
    k.label(Lslow)
    e("s_waitcnt vmcnt(0) lgkmcnt(0)")
    e(f"s_mov_b32 s40, 1\ns_mov_b32 s41, 0\nv_mov_b32 v{Q[0]+6}, 0\nv_mov_b32 v{Q[1]+6}, 0")
    e(f"v_mov_b32 v{MX[0]}, 0xff800000\nv_mov_b32 v{MX[1]}, 0xff800000")
    def kload():
        e(f"buffer_load_dwordx4 {vr(KL(0),4)}, v2, s[24:27], s41 offen {SC}")
        e(f"buffer_load_dwordx2 {vr(KH(0),2)}, v{BKH}, s[24:27], s41 offen {SC}")
    def qk2():
        for b in range(2):
            S = S0 + 16*b
            e(f"{MF} {vr(S,16)}, {vr(KL(0),4)}, {vr(Q[b],4)}, 0\n{MF} {vr(S,16)}, {vr(KH(0),4)}, {vr(Q[b]+4,4)}, {vr(S,16)}")
    L1 = k.newlabel("sl1"); k.label(L1)
    kload(); e("s_waitcnt vmcnt(0)"); qk2()
    for b in range(2):
        for j in range(0, 16, 2): e(f"v_max3_f32 v{MX[b]}, v{MX[b]}, v{S0+16*b+j}, v{S0+16*b+j+1}")
    e(f"s_add_u32 s41, s41, 3072\ns_cmp_lt_u32 s41, {KV_BYTES}\ns_cbranch_scc1 {L1}")
    for b in range(2): emit(k, fin(b, 0))
    for j in range(32): e(f"v_mov_b32 v{O[0]+j}, 0")
    e("s_mov_b32 s41, 0")
    L2 = k.newlabel("sl2"); k.label(L2)
    kload()
    e(f"buffer_load_dwordx4 {vr(V0(0),4)}, v{BV}, s[24:27], s41 offen {SC}")
    e(f"buffer_load_dwordx4 {vr(V1(0),4)}, v{BV}, s[24:27], s41 offen offset:768 {SC}")
    e("s_waitcnt vmcnt(0)"); qk2()
    for b in range(2):
        S = S0 + 16*b
        for j in range(16): e(f"v_exp_f32 v{S+j}, v{S+j}")
        for g in range(4): emit(k, cv(S, P[b], g))
        e(f"{MF} {vr(O[b],16)}, {vr(V0(0),4)}, {vr(P[b],4)}, {vr(O[b],16)}")
        e(f"{MF} {vr(O[b],16)}, {vr(V1(0),4)}, {vr(P[b]+4,4)}, {vr(O[b],16)}")
    e(f"s_add_u32 s41, s41, 3072\ns_cmp_lt_u32 s41, {KV_BYTES}\ns_cbranch_scc1 {L2}")
    e("s_nop 12")
    e(f"s_branch {Lout}")

def gen_mega(name="parallel_sum__grouped_kv_mqa__swiglu_ffn__prompt_kernel"):
    k = Kernel(name); e = k.e
    LA = k.newlabel("roleA"); LB = k.newlabel("roleB")
    e("s_load_dwordx16 s[48:63], s[0:1], 0\ns_load_dwordx8 s[64:71], s[0:1], 64")
    e("v_and_b32 v1, 63, v0\nv_lshrrev_b32 v2, 6, v0\nv_readfirstlane_b32 s3, v2\nv_lshlrev_b32 v2, 4, v1")
    Lgo = k.newlabel("go")
    e(f"s_cmp_lt_u32 s2, 256\ns_cbranch_scc1 {LB}\ns_cmp_lt_u32 s2, 512\ns_cbranch_scc1 {Lgo}\ns_endpgm")
    def body_b():
        k.label(LB)
        e("s_setprio 3")
        roleB(k)
    if HEAD:
        k.label(Lgo)
        if ONLY == "B": e("s_endpgm")
        e(f"s_sub_u32 s2, s2, 256\ns_setprio {AP0}")
        def mid():
            e(f"s_branch {LA}")
            body_b()
            k.label(LA, 6)
        roleA(k, mid)
    else:
        body_b()
        k.label(Lgo, 6)
        if ONLY == "B": e("s_endpgm")
        e(f"s_sub_u32 s2, s2, 256\ns_setprio {AP0}")
        roleA(k, lambda: None)
    k.label(f"{k.name}_end")
    k.lds = 81920; k.grid = 512; k.block = 256
    return k

if __name__ == "__main__":
    import sys
    from build import emit as emit_file
    emit_file([gen_mega()], sys.argv[1] if len(sys.argv) > 1 else "parallel_sum__grouped_kv_mqa__swiglu_ffn__prompt.s")
```

```python
from asmgen import *
from common import KA, NBYTES, f32bits, srd_from, stamp, stamp_dump, STAMPS
import math, os

MF = "v_mfma_f32_32x32x16_bf16"
LOG2E = math.log2(math.e)
QSCALE = (20 ** -0.5) * float(os.environ.get("QEPS", 1.0))
env = lambda n, d: type(d)(os.environ.get(n, d))
OFFS = env('OFFS', 96.0)
PATTERN = [int(x) for x in env('APAT', '2,6,9,13').split(',')]
BST = env("BST", 0); ONLY = env("ONLY", "")
P0B = env("P0B", 14); PKD = env("PKD", 0); ADLY = env("ADLY", 0); E64 = env("E64", ""); TP = env("TP", 0); QH = env("QH", 4); DI = env("DI", 0); PKE = env("PKE", 1); ROT = env("ROT", 1); OM = env("OM", ""); HEAD = env("HEAD", 1); PKS = env("PKS", 1); WF = env("WF", 0); KVS = env("KVS", 2); PH = env("PH", 7); LATE = env("LATE", 0); NOKV = env("NOKV", 0); KSL = env("KSL", 4); BSL = env("BSL", 2); BP0 = env("BP0", 0); GP0 = env("GP0", 0); GP1 = env("GP1", 2); GSW = env("GSW", -1); CPF = env("CPF", 1); DP = env("DP", 0); AP0 = env("AP0", 2)
STAT = 0x1000; PKF = 0x800; HF = 0x9000; OF = 0x11000; KVF = 0xE80000; XNF = 0xE88000; QF = 0xE90000; FL_BYTES = 0xE98000
KV_OFF = 0x20000;  KV_BYTES = 64*3072
WP_OFF = 0x50000;  WP_BYTES = 8*136*2560
AF_OFF = 0x300000; AF_BYTES = 64*136*1024
XN_OFF = 0xC00000; XN_BYTES = 64*40*1024
PX, PWQ, PWK, PWV, PWO, PWG, PWU, PWD, POUT, PWS = 48, 50, 52, 54, 56, 60, 62, 64, 66, 70
TAG = "s73"; BUD = "s74"; FLS = 44; SC = "sc1"
FL = f"s[{FLS}:{FLS+3}]"
HUGE = "0x7ff00000"

def bstamp(k, name):
    m0 = dict(start=0, xl=1, xs=2, xf=3, p0=4, gu0=5, gu1=6, dn0=7, dn1=8)
    m1 = dict(start=0, p0=1, gu0=2, gu1=3, dn0=4, dn1=5, of=6, mm=7, rd=8)
    m = m1 if BST else m0
    if name in m: stamp(k, m[name])

def emit(k, lst):
    for x in lst:
        if isinstance(x, list): emit(k, x)
        else: k.e(x)

def spin(k, loads, regs, vt, pre_issued=False, slp=1):
    e = k.e
    Lp = k.newlabel("poll"); Ld = k.newlabel("pdone"); Lc = k.newlabel("pchk")
    if pre_issued: e(f"s_branch {Lc}")
    k.label(Lp)
    emit(k, loads)
    k.label(Lc)
    e("s_waitcnt vmcnt(0)")
    e(f"v_xor_b32 v{vt}, {TAG}, v{regs[0]}")
    for r in regs[1:]:
        e(f"v_xor_b32 v{r}, {TAG}, v{r}\nv_or_b32 v{vt}, v{vt}, v{r}")
    e(f"v_cmp_ne_u32 vcc, 0, v{vt}")
    e(f"s_cmp_eq_u64 vcc, 0\ns_cbranch_scc1 {Ld}")
    e(f"s_sub_u32 {BUD}, {BUD}, 1\ns_cbranch_scc1 {Ld}")
    e(f"s_sleep {slp}\ns_branch {Lp}")
    k.label(Ld)

LEAK = os.environ.get("LEAK")
def setflag(k, soffs, vt, leak=None):
    e = k.e
    L = k.newlabel("nofl")
    e(f"s_cmp_lg_u32 s3, 0\ns_cbranch_scc1 {L}")
    if LEAK and leak is not None:
        role, idx = LEAK[0], int(LEAK[1:])
        sel = f"s{86+idx}" if role == leak else "s86"
        e(f"v_mov_b32 v{vt}, s86\nv_mov_b32 v{vt+1}, {sel}\nv_mov_b32 v{vt+2}, 0\ns_mov_b64 exec, 1")
        e(f"buffer_store_dwordx2 {vr(vt,2)}, v{vt+2}, {FL}, {soffs} offen offset:8 {SC}")
        e("s_waitcnt vmcnt(0)\ns_mov_b64 exec, -1")
    e(f"v_mov_b32 v{vt}, {TAG}\nv_mov_b32 v{vt+1}, 0\ns_mov_b64 exec, 1")
    for so in (soffs if isinstance(soffs, list) else [soffs]):
        e(f"buffer_store_dword v{vt}, v{vt+1}, {FL}, {so} offen {SC}")
    e("s_mov_b64 exec, -1")
    k.label(L)

def tag_setup(k):
    k.e(f"s_load_dword s72, s[{PWS}:{PWS+1}], 0")
    srd_from(k, FLS, PWS, FL_BYTES)
    k.e(f"s_mov_b32 {BUD}, 200000")
def tag_finish(k):
    k.e(f"s_waitcnt lgkmcnt(0)\ns_mul_i32 {TAG}, s72, 1664525\ns_add_u32 {TAG}, {TAG}, 1013904223")

def x_voffs(k, dst, t):
    e = k.e
    e(f"v_lshrrev_b32 v{t}, 3, v1\nv_mul_u32_u24 v{t}, 1280, v{t}")
    e(f"v_and_b32 v{t+1}, 7, v1\nv_lshrrev_b32 v{t+2}, 4, v1\nv_xor_b32 v{t+1}, v{t+1}, v{t+2}")
    e(f"v_lshl_add_u32 v{dst}, v{t+1}, 4, v{t}\nv_xor_b32 v{dst+1}, 64, v{dst}")
def x_raddr(k, dst, t, base):
    e = k.e
    e(f"v_and_b32 v{t}, 31, v1\nv_bfe_u32 v{t+1}, v1, 1, 3\nv_lshrrev_b32 v{t+2}, 5, v1\nv_xor_b32 v{t+1}, v{t+1}, v{t+2}")
    e(f"v_lshlrev_b32 v{t}, 7, v{t}\nv_lshl_add_u32 v{t}, v{t+1}, 4, v{t}")
    for ks in range(4):
        e(f"v_xor_b32 v{t+1}, {ks*32}, v{t}\nv_add_u32 v{dst+ks}, {base}, v{t+1}")

def phase0(k):
    e = k.e
    e("v_and_b32 v3, 15, v1\nv_lshrrev_b32 v4, 4, v1")
    e("s_mul_i32 s12, s4, 20480\ns_mul_i32 s13, s3, 320\ns_add_u32 s12, s12, s13")
    e("v_mul_u32_u24 v5, 1280, v3\nv_lshl_add_u32 v5, v4, 4, v5")
    e("s_mul_i32 s14, s3, 6400\ns_mul_i32 s15, s3, 7168\ns_add_u32 s37, s14, 4096")
    e("s_waitcnt lgkmcnt(0)")
    srd_from(k, 16, PX, NBYTES['x'])
    X = 16
    for i in range(5):
        e(f"buffer_load_dwordx4 {vr(X+4*i,4)}, v5, s[16:19], s12 offen offset:{64*i}")
    tag_setup(k)
    e(f"s_cmp_eq_u32 s11, 0\ns_cselect_b32 s20, s{PWK}, s{PWV}\ns_cselect_b32 s21, s{PWK+1}, s{PWV+1}")
    e(f"s_mov_b32 s22, {hex(NBYTES['wk'])}\ns_mov_b32 s23, 0x20000\ns_mov_b32 m0, s15")
    for j in range(7):
        if j == 4: e("s_add_u32 m0, s15, 4096")
        e(f"buffer_load_dwordx4 v2, s[20:23], {'s14' if j < 4 else 's37'} offen offset:{(j%4)*1024} lds")
    srd_from(k, 28, PWS, XN_BYTES, XN_OFF)
    srd_from(k, 32, PWS, KV_BYTES, KV_OFF)
    e("v_mov_b32 v8, 0\nv_mov_b32 v9, 0\nv_mov_b32 v10, 0\nv_mov_b32 v11, 0")
    e("s_mov_b32 s38, 0x3f803f80")
    LST = 28672; RED = LST + 512
    e(f"s_lshl_b32 s39, s3, 7\ns_add_u32 s39, s39, {LST}")
    e("v_lshl_add_u32 v12, v3, 3, s39\nv_lshlrev_b32 v13, 3, v3")
    e("v_lshrrev_b32 v14, 2, v3\nv_lshl_add_u32 v14, v4, 3, v14\nv_mul_u32_u24 v14, 40, v14")
    e("v_and_b32 v15, 3, v1\nv_lshl_add_u32 v14, v15, 3, v14\nv_add_u32 v14, s15, v14")
    e(f"s_lshl_b32 s36, s4, 7\ns_add_u32 s36, s36, {STAT}")
    e("s_lshr_b32 s40, s4, 1\ns_mul_i32 s41, s40, 40960\ns_and_b32 s42, s4, 1")
    e("s_lshl_b32 s43, s42, 8\ns_add_u32 s41, s41, s43\ns_mul_i32 s43, s3, 10240\ns_add_u32 s41, s41, s43")
    e("v_lshlrev_b32 v5, 9, v4\nv_lshl_add_u32 v5, v3, 4, v5")
    e(f"s_lshl_b32 s39, s3, 11\ns_add_u32 s39, s39, {RED}\nv_add_u32 v92, s39, v2\ns_mul_i32 s39, s40, 3072")
    e(f"s_lshl_b32 s43, s4, 1\ns_add_u32 s43, s43, s11\ns_lshl_b32 s75, s43, 7\ns_add_u32 s75, s75, {XNF}\ns_lshl_b32 s43, s43, {KVS}\ns_add_u32 s43, s43, {KVF}")
    Lv, Lst = k.newlabel("v"), k.newlabel("st")
    e("v_lshl_add_u32 v7, s42, 4, v3\nv_and_b32 v15, 1, v4\nv_lshrrev_b32 v6, 1, v4\nv_mov_b32 v95, 0x7fffffff")
    e(f"s_mov_b64 s[24:25], 0\ns_cmp_lg_u32 s11, 0\ns_cbranch_scc1 {Lv}")
    e("v_lshl_add_u32 v93, v6, 5, v7\nv_lshlrev_b32 v93, 4, v93\nv_lshl_add_u32 v93, v15, 3, v93")
    e("v_lshlrev_b32 v94, 3, v7\nv_add_u32 v94, 1024, v94\nv_cmp_ne_u32 vcc, 0, v4")
    e(f"s_branch {Lst}")
    k.label(Lv)
    e("s_mul_i32 s26, s42, 768\ns_add_u32 s26, s26, 1536\ns_mov_b32 s24, 0x00100010\ns_mov_b32 s25, 0x00100010")
    e("v_mul_u32_u24 v93, 384, v15\nv_lshl_add_u32 v93, v3, 4, v93\nv_lshl_add_u32 v93, v6, 3, v93\nv_add_u32 v93, s26, v93")
    e("v_add_u32 v94, 256, v93\nv_cmp_lt_u32 vcc, 4, v3")
    k.label(Lst)
    e("v_cndmask_b32 v94, v94, v95, vcc\nv_mov_b32 v95, 0x3f803f80")
    tag_finish(k)
    for i in range(5):
        e(f"s_waitcnt vmcnt({11 - i})")
        for d in range(4*i, 4*i+4):
            a = 8 + (d & 1); q = 10 + (d & 1)
            e(f"v_dot2_f32_bf16 v{a}, v{X+d}, s38, v{a}")
            e(f"v_dot2_f32_bf16 v{q}, v{X+d}, v{X+d}, v{q}")
    bstamp(k, "xl")
    e("v_add_f32 v8, v8, v9\nv_add_f32 v9, v10, v11")
    for sw in ("v_permlane32_swap_b32", "v_permlane16_swap_b32"):
        e("v_mov_b32 v10, v8\nv_mov_b32 v11, v9")
        e(f"{sw} v8, v10\n{sw} v9, v11")
        e("v_add_f32 v8, v8, v10\nv_add_f32 v9, v9, v11")
    e("ds_write_b64 v12, v[8:9]")
    U = 96; W = 136
    for d in range(20):
        e(f"v_lshlrev_b32 v{U+2*d}, 16, v{X+d}\nv_and_b32 v{U+2*d+1}, 0xffff0000, v{X+d}")
        if d == 1:
            e("s_waitcnt lgkmcnt(0)\ns_barrier")
            for w in range(4): e(f"ds_read_b64 {vr(36+2*w,2)}, v13 offset:{LST+128*w}")
    e("s_waitcnt lgkmcnt(0) vmcnt(0)")
    for i in range(5):
        for tl in range(2):
            for u in range(2):
                e(f"ds_read_b64_tr_b16 {vr(W+8*i+4*tl+2*u,2)}, v14 offset:{i*1280 + u*160 + tl*32}")
    e("v_add_f32 v8, v36, v38\nv_add_f32 v9, v37, v39\nv_add_f32 v10, v40, v42\nv_add_f32 v11, v41, v43")
    e("v_add_f32 v8, v8, v10\nv_add_f32 v9, v9, v11")
    inv = hex(f32bits(1.0/640))
    e(f"v_mul_f32 v8, {inv}, v8\nv_mul_f32 v9, {inv}, v9")
    e("v_fma_f32 v9, -v8, v8, v9\nv_max_f32 v9, 0, v9")
    e("v_cvt_pk_bf16_f32 v10, v8, v9")
    e("v_lshlrev_b32 v8, 16, v10\nv_and_b32 v9, 0xffff0000, v10")
    e(f"v_add_f32 v9, {hex(f32bits(1e-5))}, v9")
    e("v_cvt_pk_bf16_f32 v9, v9, v9\nv_and_b32 v9, 0xffff0000, v9")
    e("v_sqrt_f32 v9, v9")
    e("v_cvt_pk_bf16_f32 v6, v8, v9")
    e(f"v_mov_b32 v7, {TAG}\nv_and_b32 v9, 0xffff0000, v6")
    Lns = k.newlabel("nost")
    e(f"s_lshl_b32 s26, s11, 2\ns_add_u32 s26, s26, s3\ns_cmp_lg_u32 s26, 7\ns_cbranch_scc1 {Lns}")
    e(f"s_mov_b64 exec, 0xffff\nbuffer_store_dwordx2 v[6:7], v13, {FL}, s36 offen {SC}\ns_mov_b64 exec, -1")
    k.label(Lns)
    e("v_rcp_f32 v10, v9")
    e(f"v_mul_f32 v10, {hex(f32bits(LOG2E))}, v10")
    e("v_mul_f32 v11, v8, v10")
    ACC = 44
    for d in range(20):
        u = U + 2*d
        e(f"v_fma_f32 v{u}, v{u}, v10, -v11\nv_fma_f32 v{u+1}, v{u+1}, v10, -v11")
        if d >= 1: e(f"v_cvt_pk_bf16_f32 v{X+d-1}, v{u-2}, v{u-1}")
    e(f"v_cvt_pk_bf16_f32 v{X+19}, v{U+38}, v{U+39}")
    Lmv, Lmd = k.newlabel("mv"), k.newlabel("md")
    e(f"s_waitcnt lgkmcnt(0)\ns_cmp_lg_u32 s11, 0\ns_cbranch_scc1 {Lmv}")
    def xst(i): return f"buffer_store_dwordx4 {vr(X+4*i,4)}, v5, s[28:31], s26 offen offset:{(i%2)*2048} {SC}"
    for m in range(2):
        if m: k.label(Lmv)
        for i in range(5):
            for tl in range(2):
                wf = vr(W+8*i+4*tl, 4); xf = vr(X+4*i, 4); acc = vr(ACC+4*tl, 4)
                a, b = (wf, xf) if m == 0 else (xf, wf)
                e(f"v_mfma_f32_16x16x32_bf16 {acc}, {a}, {b}, {'0' if i == 0 else acc}")
        if m == 0: e(f"s_branch {Lmd}")
    k.label(Lmd)
    bstamp(k, "xs")
    for tl in range(2):
        e(f"ds_write_b128 v92, {vr(ACC+4*tl,4)} offset:{tl*1024}")
    e("s_waitcnt lgkmcnt(0)\ns_barrier")
    Lx = k.newlabel("xst")
    e(f"s_cmp_lg_u32 s3, 0\ns_cbranch_scc1 {Lx}")
    R = 52
    for tl in range(2):
        for w in range(1, 4):
            e(f"ds_read_b128 {vr(R+16*tl+4*w,4)}, v92 offset:{w*2048 + tl*1024}")
    for tl in range(2):
        e(f"s_waitcnt lgkmcnt({3 - 3*tl})")
        r = R + 16*tl; c = ACC + 4*tl
        for j in range(4):
            e(f"v_add_f32 v{c+j}, v{c+j}, v{r+4+j}\nv_add_f32 v{r+8+j}, v{r+8+j}, v{r+12+j}\nv_add_f32 v{c+j}, v{c+j}, v{r+8+j}")
        e(f"v_cvt_pk_bf16_f32 v{8+2*tl}, v{c}, v{c+1}\nv_cvt_pk_bf16_f32 v{9+2*tl}, v{c+2}, v{c+3}")
        if tl: e("v_cndmask_b32 v10, v10, v95, s[24:25]\nv_cndmask_b32 v11, v11, v95, s[24:25]")
        e(f"buffer_store_dwordx2 {vr(8+2*tl,2)}, v{93+tl}, s[32:35], s39 offen {SC}")
    k.label(Lx)
    L1, L2 = k.newlabel("x1"), k.newlabel("x2")
    e(f"s_cmp_lg_u32 s11, 0\ns_cbranch_scc1 {L1}")
    e("s_mov_b32 s26, s41"); e(xst(0)); e(xst(1)); e("s_add_u32 s26, s41, 4096"); e(xst(2))
    e(f"s_branch {L2}")
    k.label(L1)
    e("s_add_u32 s26, s41, 4096"); e(xst(3)); e("s_add_u32 s26, s41, 8192"); e(xst(4))
    k.label(L2)
    bstamp(k, "xf")

def roleB(k):
    e = k.e
    SLOT = 20480
    GW, RA, RB = 216, 221, 224
    ACC = 32; FR = [176, 196]
    Lgu = k.newlabel("gu0"); Lpk = k.newlabel("pk")
    bstamp(k, "start")
    e("s_and_b32 s5, s2, 7\ns_lshr_b32 s6, s2, 3")
    def tile_ids():
        e("s_lshr_b32 s7, s5, 1\ns_lshl_b32 s7, s7, 2\ns_lshr_b32 s8, s6, 3\ns_add_u32 s7, s7, s8")
        e("s_and_b32 s9, s5, 1\ns_lshl_b32 s8, s9, 3\ns_and_b32 s10, s6, 7\ns_add_u32 s8, s8, s10\ns_lshl_b32 s11, s7, 1\ns_add_u32 s9, s9, s11")
    def gu_vsetup(t):
        e("s_and_b32 s11, s3, 2")
        for i in range(3):
            e(f"v_add_u32 v{t}, {64*i}, v1\nv_mul_u32_u24 v{t+1}, 5462, v{t}\nv_lshrrev_b32 v{t+1}, 16, v{t+1}")
            e(f"v_mul_u32_u24 v{t+2}, 12, v{t+1}\nv_sub_u32 v{t+2}, v{t}, v{t+2}\nv_xor_b32 v{t+2}, s11, v{t+2}")
            e(f"v_mul_u32_u24 v{t+1}, 3072, v{t+1}\nv_lshl_add_u32 v{GW+i}, v{t+2}, 4, v{t+1}")
    def gu_vsetup2(t):
        e(f"v_lshrrev_b32 v{t}, 5, v1\nv_bfe_u32 v{t+1}, v1, 2, 2\nv_lshl_add_u32 v{t+1}, v{t}, 3, v{t+1}\nv_mul_u32_u24 v{t+1}, 192, v{t+1}")
        e(f"v_and_b32 v{t+2}, 1, v1\nv_lshl_add_u32 v{t+1}, v{t+2}, 4, v{t+1}\nv_bfe_u32 v{t+2}, v1, 1, 1\nv_lshl_add_u32 v{t+1}, v{t+2}, 3, v{t+1}")
        e(f"v_bfe_u32 v{t+2}, v1, 4, 1\nv_mul_u32_u24 v{t+3}, 6144, v{t+2}\nv_add_u32 v{t+1}, v{t+1}, v{t+3}")
        e("s_lshr_b32 s11, s3, 1\ns_mul_i32 s11, s11, 3")
        for a in range(3):
            e(f"v_xor_b32 v{t+3}, s11, v{t+2}\nv_lshl_add_u32 v{RA+a}, v{t+3}, 5, v{t+1}\ns_add_u32 s11, s11, 1")
        e(f"s_and_b32 s11, s3, 1\ns_lshl_b32 s11, s11, 12\ns_add_u32 s11, s11, 12288\nv_add_u32 v{RB}, s11, v2")
        e(f"v_and_b32 v{RB+1}, 3, v1\nv_lshlrev_b32 v{RB+1}, 7, v{RB+1}")
    def zero_acc():
        for j in range(96): e(f"v_mov_b32 v{ACC+j}, 0")
    def gu_ssetup():
        e("s_lshr_b32 s38, s3, 1\ns_and_b32 s39, s3, 1\ns_mul_i32 s40, s38, 3")
        srd_from(k, 16, PWS, XN_BYTES, XN_OFF)
        e(f"s_cmp_eq_u32 s38, 0\ns_cselect_b32 s20, s{PWG}, s{PWU}\ns_cselect_b32 s21, s{PWG+1}, s{PWU+1}")
        e(f"s_mov_b32 s22, {hex(NBYTES['wg'])}\ns_mov_b32 s23, 0x20000")
        e("s_mul_i32 s12, s39, 49152\ns_mul_i32 s32, s8, 192\ns_add_u32 s12, s12, s32")
        e(f"s_lshl_b32 s32, s7, 2\ns_add_u32 s32, s32, s3\ns_mul_i32 s13, s32, 40960\ns_lshl_b32 s42, s32, 9\ns_add_u32 s42, s42, {XNF}")
        e("s_mul_i32 s14, s3, 3072\ns_lshl_b32 s15, s3, 11\ns_add_u32 s15, s15, 12288")
    def issueW(sl):
        return [[f"s_add_u32 m0, s14, {sl*SLOT}"],
                [f"buffer_load_dwordx4 v{GW}, s[20:23], s12 offen lds", "s_add_u32 m0, m0, 1024"],
                [f"buffer_load_dwordx4 v{GW+1}, s[20:23], s12 offen lds", "s_add_u32 m0, m0, 1024"],
                [f"buffer_load_dwordx4 v{GW+2}, s[20:23], s12 offen lds", f"s_add_u32 s12, s12, {32*3072}"]]
    def issueX(sl):
        return [[f"s_add_u32 m0, s15, {sl*SLOT}"],
                [f"buffer_load_dwordx4 v2, s[16:19], s13 offen {SC} lds"],
                [f"buffer_load_dwordx4 v2, s[16:19], s13 offen offset:1024 {SC} lds", "s_add_u32 s13, s13, 2048"]]
    xn_poll = [f"buffer_load_dword v16, v{RB+1}, {FL}, s42 offen {SC}"]
    e("s_lshl_b32 s4, s5, 4\ns_lshr_b32 s11, s6, 1\ns_add_u32 s4, s4, s11\ns_and_b32 s11, s6, 1")
    def pre():
        tile_ids(); gu_vsetup(232); gu_vsetup2(232)
    if CPF:
        Lc = k.newlabel("nocp"); Lh = k.newlabel("here")
        e(f"s_cmp_lg_u32 s6, 31\ns_cbranch_scc1 {Lc}")
        e("s_getpc_b64 s[34:35]")
        k.label(Lh)
        e(f"s_sub_u32 s34, s34, {Lh}-{k.name}\ns_subb_u32 s35, s35, 0")
        e(f"v_lshlrev_b32 v9, 7, v0\nv_min_u32 v9, {k.name}_end-{k.name}-4, v9")
        e("global_load_dword v255, v9, s[34:35]")
        k.label(Lc)
    phase0(k)
    pre()
    gu_ssetup()
    e("s_waitcnt vmcnt(2)")
    setflag(k, "s43", 10)
    Lw0 = k.newlabel("w0")
    e(f"s_waitcnt vmcnt(1)\ns_cmp_eq_u32 s3, 0\ns_cbranch_scc1 {Lw0}\ns_waitcnt vmcnt(0)")
    k.label(Lw0)
    e("s_barrier")
    setflag(k, "s75", 10)
    e(f"s_setprio {BP0}\ns_mov_b32 s11, {HUGE}")
    e(f"s_lshl_b32 s41, s2, 7\ns_add_u32 s41, s41, {QF}\nv_mov_b32 v31, 0")
    def go():
        if QH >= 0: spin(k, xn_poll + [f"buffer_load_dword v29, v31, {FL}, s41 offen {SC}"], [16, 29], 17, slp=BSL)
        else: spin(k, xn_poll, [16], 17, slp=BSL)
    if PKE: e("s_lshr_b32 s4, s2, 1\ns_and_b32 s32, s2, 1\ns_lshl_b32 s32, s32, 7\ns_add_u32 s4, s4, s32")
    else: e("s_mov_b32 s4, s2")
    e(f"s_cmp_lt_u32 s4, 136\ns_cbranch_scc1 {Lpk}")
    go()
    for c in range(2): emit(k, issueW(c)); emit(k, issueX(c))
    e(f"s_branch {Lgu}")
    k.label(Lpk)
    PKB = 3*SLOT; PD = 128
    e("s_mul_i32 s33, s3, 320")
    for i in range(5):
        e(f"v_add_u32 v13, {64*i}, v1\nv_add_u32 v13, s33, v13\nv_mul_u32_u24 v{19+i}, 52429, v13\nv_lshrrev_b32 v{19+i}, 22, v{19+i}")
        e(f"v_mul_u32_u24 v14, 80, v{19+i}\nv_sub_u32 v14, v13, v14\nv_lshlrev_b32 v{24+i}, 4, v14")
    def pack_issue(first, lo=0):
        e("s_mul_i32 s32, s4, 241\ns_lshr_b32 s32, s32, 13\ns_mul_i32 s33, s32, 34\ns_sub_u32 s33, s4, s33")
        e("s_mul_i32 s34, s32, 384\ns_lshl_b32 s35, s33, 4\ns_add_u32 s34, s34, s35")
        e("s_sub_u32 s36, s33, 24\ns_sub_u32 s37, s33, 29\ns_cmp_ge_u32 s33, 29\ns_cselect_b32 s36, s37, s36\ns_cselect_b32 s37, 320, 0")
        e("s_mul_i32 s35, s32, 80\ns_add_u32 s35, s35, s37\ns_mul_i32 s37, s36, 20")
        e("s_cmp_eq_u32 s36, 4\ns_cselect_b32 s37, 16, s37\ns_cselect_b32 s43, 16, 0\ns_add_u32 s36, s35, s37")
        for i in range(5):
            e(f"v_lshrrev_b32 v13, 2, v{19+i}\nv_mul_u32_u24 v13, s43, v13\nv_add_u32 v13, v13, v{19+i}\nv_mul_u32_u24 v13, 1280, v13\nv_add_u32 v{3+i}, v13, v{24+i}")
        first()
        e(f"s_cmp_ge_u32 s33, 24\ns_cselect_b32 s34, s36, s34\ns_cselect_b32 s24, s{PWO}, s{PWD}\ns_cselect_b32 s25, s{PWO+1}, s{PWD+1}")
        e(f"s_cselect_b32 s26, {hex(NBYTES['wo'])}, s26\ns_mov_b32 s27, 0x20000\ns_mul_i32 s34, s34, 1280")
        e(f"s_mul_i32 s35, s3, 5120\ns_add_u32 m0, s35, {PKB+lo}")
        for i in range(5):
            e(f"buffer_load_dwordx4 v{3+i}, s[24:27], s34 offen lds")
            if i < 4: e("s_add_u32 m0, m0, 1024")
    def pack_finish(lo=0):
        for c in range(2):
            for a in range(3):
                for u in range(2):
                    ad, off = ("v10", a*64) if a < 2 else ("v11", 0)
                    e(f"ds_read_b64_tr_b16 {vr(PD+12*c+4*a+2*u,2)}, {ad} offset:{lo + c*160 + off + u*5120}")
        e(f"s_mul_i32 s5, s3, {2*136*2560}\ns_mul_i32 s6, s4, 2560\ns_add_u32 s5, s5, s6\ns_add_u32 s6, s5, {136*2560}")
        e("s_waitcnt lgkmcnt(0)")
    e("v_lshrrev_b32 v8, 5, v1\nv_bfe_u32 v9, v1, 2, 2\nv_lshl_add_u32 v9, v8, 3, v9\nv_mul_u32_u24 v9, 1280, v9")
    e(f"s_mul_i32 s32, s3, 320\ns_add_u32 s32, s32, {PKB}\nv_add_u32 v9, s32, v9")
    e("v_and_b32 v16, 1, v1\nv_bfe_u32 v17, v1, 1, 1\nv_bfe_u32 v18, v1, 4, 1")
    e("v_lshl_add_u32 v10, v16, 5, v9\nv_lshl_add_u32 v10, v17, 3, v10\nv_lshl_add_u32 v10, v18, 4, v10")
    e("v_lshl_add_u32 v11, v16, 4, v9\nv_lshl_add_u32 v11, v17, 3, v11\nv_add_u32 v11, 128, v11\nv_lshl_add_u32 v11, v18, 18, v11")
    e("v_and_b32 v12, 15, v1\nv_lshlrev_b32 v12, 4, v12\nv_lshl_add_u32 v12, v8, 8, v12\nv_lshl_add_u32 v12, v18, 30, v12")
    e(f"s_lshl_b32 s75, s4, 2\ns_add_u32 s75, s75, {PKF}")
    e(f"s_mov_b32 s26, {hex(NBYTES['wd'])}")
    pack_issue(go)
    for c in range(2): emit(k, issueW(c)); emit(k, issueX(c))
    e("s_waitcnt vmcnt(10)\ns_barrier")
    pack_finish()
    k.label(Lgu)
    bstamp(k, "p0")
    srd_from(k, 28, PWS, AF_BYTES, AF_OFF)
    def reads(fs, sl, ks):
        L = [f"ds_read_b128 {vr(FR[fs]+12,4)}, v{RB} offset:{sl*SLOT + ks*1024}"]
        for a in range(3):
            for u in range(2):
                L.append(f"ds_read_b64_tr_b16 {vr(FR[fs]+4*a+2*u,2)}, v{RA+a} offset:{sl*SLOT + (16*ks+4*u)*192}")
            if a == 0: L.append(f"ds_read_b128 {vr(FR[fs]+16,4)}, v{RB} offset:{sl*SLOT + 2048 + ks*1024}")
        return L
    def mfmas(fs, c0=False):
        return [f"{MF} {vr(ACC+16*(2*a+b),16)}, {vr(FR[fs]+4*a,4)}, {vr(FR[fs]+12+4*b,4)}, {'0' if c0 else vr(ACC+16*(2*a+b),16)}" for a in range(3) for b in range(2)]
    e("s_mov_b32 s42, 0\nv_min_u32 v4, 33, v1\nv_lshlrev_b32 v4, 4, v4")
    e("s_waitcnt vmcnt(5)\ns_barrier")
    e(f"s_setprio {GP0}")
    bstamp(k, "gu0")
    if ONLY == "A":
        e("s_waitcnt vmcnt(0)"); stamp_dump(k, 0, 6, "s2", PWS); e("s_endpgm")
    emit(k, reads(0, 0, 0))
    srd_from(k, 24, PWS, WP_BYTES, WP_OFF)
    e(f"s_mul_i32 s11, s10, {4*34*2560}\ns_mul_i32 s43, s3, 5120\ns_add_u32 s11, s11, s43\ns_mov_b32 s35, {HUGE}")
    st_loads = [f"buffer_load_dwordx4 v[16:19], v4, {FL}, s36 offen {SC}"]
    def issueP(sl):
        L = [[f"s_add_u32 m0, s43, {sl*SLOT}", "s_add_u32 s33, s11, 4096"]]
        for i in range(4): L.append([f"buffer_load_dwordx4 v2, s[24:27], s11 offen offset:{i*1024} {SC} lds"])
        L[4].append("s_add_u32 m0, m0, 4096")
        L.append([f"buffer_load_dwordx4 v2, s[24:27], s33 offen {SC} lds", f"s_add_u32 s11, s11, {34*2560}"])
        return L
    L = k.newlabel("gu")
    def trip(last):
        for sl in range(4):
            e("s_waitcnt lgkmcnt(0)")
            rd = reads(1, sl, 1); mf = mfmas(0)
            sh = [rd[0:2], rd[2:4], rd[4:6], rd[6:8], [], []]
            if not last and sl == 1: sh[4] = ["s_cmp_eq_u32 s42, 3", f"s_cselect_b32 s36, {PKF}, s35"] + st_loads
            for i in range(6):
                e(mf[i]); emit(k, sh[i])
            if sl == 0 and not last:
                Ls = k.newlabel("nps")
                e(f"s_cmp_ge_u32 s4, 136\ns_cbranch_scc1 {Ls}\ns_cmp_lg_u32 s42, 1\ns_cbranch_scc1 {Ls}")
                for c in range(2):
                    for a in range(3):
                        e(f"buffer_store_dwordx4 {vr(PD+12*c+4*a,4)}, {'v2' if a < 2 else 'v12'}, s[24:27], s{5+c} offen offset:{a*1024} {SC}")
                k.label(Ls)
            if sl == 1 and not last:
                Ls = k.newlabel("npf")
                e(f"s_cmp_ge_u32 s4, 136\ns_cbranch_scc1 {Ls}\ns_cmp_lg_u32 s42, 2\ns_cbranch_scc1 {Ls}")
                setflag(k, "s75", 10)
                k.label(Ls)
            if sl == 2 and GSW >= 0 and not last:
                Lt = k.newlabel("gsw")
                e(f"s_cmp_lg_u32 s42, {GSW}\ns_cbranch_scc1 {Lt}\ns_setprio {GP1}")
                k.label(Lt)
            if sl == 0 and not last: k.label(Lgm)
            e("s_waitcnt vmcnt(10) lgkmcnt(0)\ns_barrier")
            rd = reads(0, (sl+1) % 4, 0) if not (last and sl == 3) else [[]]*8
            mf = mfmas(1)
            if not last:
                iw = issueW(sl); ix = issueX(sl)
                sh = [rd[0:2] + iw[0], rd[2:4] + iw[1], rd[4:6] + iw[2], rd[6:8] + iw[3] + ix[0], ix[1], ix[2]]
                if sl == 3: sh[5] = sh[5] + ["s_add_u32 s42, s42, 1", "s_cmp_lt_u32 s42, 4"]
            else:
                ip = issueP(sl)
                sh = [rd[0:2] + ip[0], rd[2:4] + ip[1], rd[4:6] + ip[2], rd[6:8] + ip[3], ip[4], ip[5]]
            for i in range(6):
                e(mf[i]); emit(k, sh[i])
    Lgm = k.newlabel("gum")
    dq = issueW(2) + issueX(2) + issueW(3) + issueX(3)
    emit(k, dq[:4]); dq = dq[4:]
    e("s_waitcnt lgkmcnt(0)")
    rd = reads(1, 0, 1); mf = mfmas(0, True)
    for i in range(6):
        e(mf[i]); emit(k, rd[2*i:2*i+2]); emit(k, dq[:2]); dq = dq[2:]
    emit(k, dq)
    e(f"s_branch {Lgm}")
    k.label(L, 6)
    trip(False)
    e(f"s_cbranch_scc1 {L}")
    Lok = k.newlabel("pkok")
    e(f"s_setprio 2\nv_xor_b32 v20, {TAG}, v16")
    for r in (17, 18, 19): e(f"v_xor_b32 v{r}, {TAG}, v{r}\nv_or_b32 v20, v20, v{r}")
    e(f"v_cmp_ne_u32 vcc, 0, v20\ns_cmp_eq_u64 vcc, 0\ns_cbranch_scc1 {Lok}")
    spin(k, st_loads, [16, 17, 18, 19], 20)
    k.label(Lok)
    e(f"s_setprio {GP0}")
    trip(True)
    e("s_setprio 2")
    e("v_lshrrev_b32 v8, 5, v1")
    e(f"s_mul_i32 s14, s3, {SLOT}")
    srd_from(k, 20, PWS, WP_BYTES, WP_OFF)
    srd_from(k, 16, PX, NBYTES['x'])
    e(f"s_lshl_b32 s12, s10, 2\ns_add_u32 s12, s12, s3\ns_mul_i32 s12, s12, {34*2560}\ns_add_u32 s12, s12, {4*5120}")
    e(f"s_lshl_b32 s32, s7, 1\ns_add_u32 s32, s32, s39\ns_mul_i32 s32, s32, 272\ns_mul_i32 s43, s8, 6\ns_add_u32 s32, s32, s43\ns_add_u32 s32, s32, s40\ns_add_u32 s32, s32, 40\ns_lshl_b32 s32, s32, 10")
    e(f"s_add_u32 s34, s32, {136*1024}\ns_mov_b32 s33, {hex(f32bits(LOG2E*LOG2E))}")
    e("s_waitcnt lgkmcnt(0)")
    bstamp(k, "gu1")
    def issueW2(sl):
        L = [[f"s_add_u32 m0, s14, {sl*5120}", "s_add_u32 s33, s12, 4096"]]
        for i in range(4): L.append([f"buffer_load_dwordx4 v2, s[20:23], s12 offen offset:{i*1024} {SC} lds"])
        L[4].append("s_add_u32 m0, m0, 4096")
        L.append([f"buffer_load_dwordx4 v2, s[20:23], s33 offen {SC} lds", "s_add_u32 s12, s12, 5120"])
        return L
    T = 176
    if PKS: e("v_mov_b32 v184, s33\nv_mov_b32 v185, s33")
    for a in range(3):
        for b in range(2):
            g = ACC + 16*(2*a+b); u = g + 8
            for j in range(8): e(f"v_exp_f32 v{T+j}, -v{g+j}")
            if PKS:
                for j in range(0, 8, 2): e(f"v_pk_mul_f32 {vr(g+j,2)}, {vr(g+j,2)}, {vr(u+j,2)}")
                for j in range(0, 8, 2): e(f"v_pk_fma_f32 {vr(T+j,2)}, {vr(T+j,2)}, v[184:185], v[184:185]")
            else:
                for j in range(8): e(f"v_mul_f32 v{g+j}, v{g+j}, v{u+j}")
                for j in range(8): e(f"v_fma_f32 v{T+j}, v{T+j}, s33, s33")
            for j in range(8): e(f"v_rcp_f32 v{T+j}, v{T+j}")
            if PKS:
                for j in range(0, 8, 2): e(f"v_pk_mul_f32 {vr(g+j,2)}, {vr(g+j,2)}, {vr(T+j,2)}")
            else:
                for j in range(8): e(f"v_mul_f32 v{g+j}, v{g+j}, v{T+j}")
            for j in range(4): e(f"v_cvt_pk_bf16_f32 v{u+j}, v{g+2*j}, v{g+2*j+1}")
            e(f"buffer_store_dwordx4 {vr(u,4)}, v2, s[28:31], {'s34' if b else 's32'} offen offset:{a*1024} {SC}")
    wq_ = []
    assert not wq_
    e("v_add_u32 v10, s14, v2\nv_and_b32 v11, 15, v1\nv_lshlrev_b32 v11, 4, v11\nv_lshl_add_u32 v11, v8, 8, v11\nv_bfe_u32 v9, v1, 4, 1")
    e("v_lshl_add_u32 v7, v9, 30, v11\nv_lshl_add_u32 v11, v9, 18, v11\nv_add_u32 v11, s14, v11")
    e(f"s_lshl_b32 s35, s7, 4\ns_add_u32 s36, s35, s8\ns_lshl_b32 s36, s36, 7\ns_add_u32 s36, s36, {HF}")
    e(f"s_mul_i32 s24, s9, {272*1024}\ns_mul_i32 s32, s3, {24*1024}\ns_add_u32 s26, s24, s32\ns_add_u32 s26, s26, {40*1024}\ns_add_u32 s27, s26, {136*1024}")
    e("v_and_b32 v14, 3, v1\nv_lshlrev_b32 v14, 7, v14\nv_and_b32 v6, 1, v1\nv_lshlrev_b32 v6, 7, v6")
    if WF: e("v_bfe_u32 v5, v1, 1, 2\nv_lshl_add_u32 v6, v5, 2, v6")
    e(f"s_lshl_b32 s32, s3, 2\ns_add_u32 s32, s32, s35\ns_lshl_b32 s32, s32, 7\ns_add_u32 s32, s32, {HF}")
    e("s_lshr_b32 s40, s3, 1\ns_and_b32 s41, s3, 1")
    e("s_lshl_b32 s34, s9, 1\ns_add_u32 s34, s34, s40\ns_mul_i32 s34, s34, 40960\ns_mul_i32 s33, s10, 160\ns_add_u32 s43, s34, s33")
    e("v_and_b32 v5, 31, v1\nv_mul_u32_u24 v5, 1280, v5")
    e("s_lshl_b32 s34, s41, 6\nv_lshl_add_u32 v12, v8, 5, v5\nv_add_u32 v12, s34, v12")
    e("s_lshl_b32 s34, s41, 3\ns_add_u32 s34, s34, 128\nv_lshl_add_u32 v13, v8, 4, v5\nv_add_u32 v13, s34, v13")
    e("s_mul_i32 s34, s40, 10240\ns_lshl_b32 s33, s41, 12\ns_add_u32 s33, s33, s34\nv_add_u32 v15, s33, v2")
    e("s_lshl_b32 s33, s41, 10\ns_add_u32 s33, s33, s34\ns_add_u32 s33, s33, 8192\nv_add_u32 v3, s33, v2")
    e(f"s_lshl_b32 s25, s9, 3\ns_add_u32 s25, s25, s3\ns_lshl_b32 s25, s25, 7\ns_add_u32 s25, s25, {OF}\nv_mov_b32 v6, 0")
    e(f"s_mul_i32 s33, s3, {10*1024}\ns_add_u32 s24, s24, s33")
    e("s_waitcnt vmcnt(0)\ns_barrier")
    setflag(k, "s36", 16, "B")
    hl = [f"buffer_load_dword v16, v14, {FL}, s32 offen {SC}"]
    XS = 232; G4 = [20, 244]
    e(f"s_add_u32 s34, s12, {24*2560}\ns_add_u32 s35, s12, {25*2560}")
    srd_from(k, 36, POUT, NBYTES['out'])
    spin(k, hl, [16], 17)
    e(f"s_setprio {TP}")
    XR = 128; FA = [208, 220]
    def issueX2(rs):
        L = []
        for ks in range(2):
            for b in range(2):
                L.append([f"buffer_load_dwordx4 {vr(XR+16*rs+8*ks+4*b,4)}, v2, s[28:31], s{26+b} offen offset:{ks*1024} {SC}"])
        L[3] += ["s_add_u32 s26, s26, 2048", "s_add_u32 s27, s27, 2048"]
        return L
    for g in range(4): emit(k, issueX2(g))
    def reads2(fs, sl, ks):
        return [f"ds_read_b128 {vr(FA[fs]+4*a,4)}, {'v10' if a < 2 else 'v11'} offset:{sl*5120 + ks*2560 + a*1024}" for a in range(3)]
    def mfmas2(fs, rs, ks, c0=False):
        return [f"{MF} {vr(ACC+16*(3*b+a),16)}, {vr(FA[fs]+4*a,4)}, {vr(XR+16*rs+8*ks+4*b,4)}, {'0' if c0 else vr(ACC+16*(3*b+a),16)}" for a in range(3) for b in range(2)]
    e(f"s_mov_b32 s42, 0\ns_setprio {DP}")
    emit(k, reads2(0, 0, 0))
    e("s_waitcnt vmcnt(14) lgkmcnt(0)")
    bstamp(k, "dn0")
    L = k.newlabel("dn"); Lm = k.newlabel("dnm")
    rd = reads2(1, 0, 1); mf = mfmas2(0, 0, 0, True)
    for i in range(6):
        e(mf[i]); emit(k, rd[i:i+1])
    e("s_waitcnt vmcnt(0)")
    for ks in range(2):
        for a in range(3):
            e(f"buffer_load_dwordx4 {vr(G4[ks]+4*a,4)}, {'v2' if a < 2 else 'v7'}, s[20:23], s{34+ks} offen offset:{a*1024} {SC}")
    e(f"buffer_load_dwordx4 {vr(XS,4)}, v12, s[16:19], s43 offen")
    e(f"buffer_load_dwordx4 {vr(XS+4,4)}, v12, s[16:19], s43 offen offset:16")
    e(f"buffer_load_dwordx2 {vr(XS+8,2)}, v13, s[16:19], s43 offen")
    e(f"s_branch {Lm}")
    k.label(L, 6)
    for sl in range(4):
        e("s_waitcnt lgkmcnt(0)")
        rd = reads2(1, sl, 1); mf = mfmas2(0, sl, 0)
        sh = [rd[0:1], rd[1:2], rd[2:3], [], [], []]
        if sl == 0: sh[3] = ["s_cmp_eq_u32 s42, 2", f"s_cselect_b32 s26, {HUGE}, s26", f"s_cselect_b32 s27, {HUGE}, s27"]
        for i in range(6):
            e(mf[i]); emit(k, sh[i])
        if sl == 0: k.label(Lm)
        e("s_waitcnt vmcnt(18) lgkmcnt(0)")
        rd = reads2(0, (sl+1) % 4, 0); mf = mfmas2(1, sl, 1)
        iw = issueW2(sl); ix = issueX2(sl)
        sh = [rd[0:1] + iw[0], rd[1:2] + iw[1], rd[2:3] + iw[2], iw[3] + iw[4], iw[5], ix[0] + ix[1] + ix[2] + ix[3]]
        if sl == 3: sh[5] = sh[5] + ["s_add_u32 s42, s42, 1", "s_cmp_lt_u32 s42, 3"]
        for i in range(6):
            e(mf[i]); emit(k, sh[i])
    e(f"s_cbranch_scc1 {L}")
    e("s_setprio 2")
    emit(k, reads2(1, 0, 1))
    bstamp(k, "dn1")
    def oload(b, t):
        return [f"s_add_u32 s26, s24, {b*136*1024 + t*1024}", f"buffer_load_dwordx4 {vr(XR+40*b+4*t,4)}, v2, s[28:31], s26 offen {SC}"]
    f2 = [f"buffer_load_dword v18, v6, {FL}, s25 offen offset:512 {SC}"]
    if ONLY != "B": spin(k, [f"buffer_load_dword v16, v6, {FL}, s25 offen {SC}"] + f2, [16], 17)
    else: e(f"s_waitcnt vmcnt(0)\nv_mov_b32 v18, {TAG}")
    for t in range(5):
        for b in range(2): emit(k, oload(b, t))
    seq = [(t, (0, 1)) for t in range(5)] + [(t, (0,)) for t in range(5, 10)] + [(t, (1,)) for t in range(5, 10)]
    lsteps = [t for t, _ in seq if t < 8]
    wr = [f"ds_write_b128 v10, {vr(ACC+4*q,4)} offset:{q*1024}" for q in range(10)]
    def late_loads():
        for b in range(2):
            for t2 in range(5, 10): emit(k, oload(b, t2))
    def steps(us, lds, n, younger):
        for u in us:
            t, bs = seq[u]
            vm = (8 - 2*u + younger) if u < 5 else (14 - u)
            if t < 8:
                last = max([i for i, x in enumerate(lds) if x == f"n{n}"], default=-1)
                lds = lds[last+1:]
                e(f"s_waitcnt vmcnt({vm}) lgkmcnt({min(15, len(lds))})")
                F = FA[n & 1]
            else:
                e(f"s_waitcnt vmcnt({vm})")
                F = G4[t-8]
            for a in range(3):
                for b in bs:
                    e(f"{MF} {vr(ACC+16*(3*b+a),16)}, {vr(F+4*a,4)}, {vr(XR+40*b+4*t,4)}, {vr(ACC+16*(3*b+a),16)}")
                    if u >= 11 and wr:
                        e(wr.pop(0)); lds.append("w")
            if t < 8:
                if n + 2 < len(lsteps):
                    t2 = lsteps[n+2]
                    emit(k, reads2(n & 1, t2 >> 1, t2 & 1)); lds += [f"n{n+2}"]*3
                n += 1
        return lds, n
    Lb, Lj = k.newlabel("both"), k.newlabel("join")
    e(f"v_cmp_ne_u32 vcc, {TAG}, v18\ns_cmp_eq_u64 vcc, 0\ns_cbranch_scc1 {Lb}")
    emit(k, f2)
    steps(range(5), ["n0"]*3 + ["n1"]*3, 0, 1)
    spin(k, f2, [18], 17, pre_issued=True)
    late_loads()
    e(f"s_branch {Lj}")
    k.label(Lb)
    late_loads()
    lds, n = steps(range(5), ["n0"]*3 + ["n1"]*3, 0, 10)
    k.label(Lj)
    bstamp(k, "of")
    steps(range(5, 15), lds, n, 0)
    assert not wr
    bstamp(k, "mm")
    for q in range(10):
        e(f"ds_write_b128 v10, {vr(ACC+48+4*q,4)} offset:{(10+q)*1024}")
    e("s_waitcnt lgkmcnt(0)\ns_barrier")
    R = 128
    for w in range(4):
        for q in range(4):
            e(f"ds_read_b128 {vr(R+20*w+4*q,4)}, v15 offset:{w*SLOT + q*1024}")
        e(f"ds_read_b128 {vr(R+20*w+16,4)}, v3 offset:{w*SLOT}")
    for j in range(10):
        e(f"v_lshlrev_b32 v{ACC+2*j}, 16, v{XS+j}\nv_and_b32 v{ACC+2*j+1}, 0xffff0000, v{XS+j}")
    for w in range(4):
        e(f"s_waitcnt lgkmcnt({15-5*w})")
        for j in range(0, 20, 2):
            e(f"v_pk_add_f32 {vr(ACC+j,2)}, {vr(ACC+j,2)}, {vr(R+20*w+j,2)}")
    for j in range(10):
        e(f"v_cvt_pk_bf16_f32 v{XS+j}, v{ACC+2*j}, v{ACC+2*j+1}")
    bstamp(k, "rd")
    e(f"buffer_store_dwordx4 {vr(XS,4)}, v12, s[36:39], s43 offen {OM}")
    e(f"buffer_store_dwordx4 {vr(XS+4,4)}, v12, s[36:39], s43 offen offset:16 {OM}")
    e(f"buffer_store_dwordx2 {vr(XS+8,2)}, v13, s[36:39], s43 offen {OM}")
    stamp_dump(k, 0, 9, "s2", PWS)
    e("s_endpgm")

def w160_voffs(k, dst, t):
    e = k.e
    for i in range(5):
        e(f"v_add_u32 v{t}, {64*i}, v1\nv_mul_u32_u24 v{t+1}, 6554, v{t}\nv_lshrrev_b32 v{t+1}, 16, v{t+1}")
        e(f"v_mul_u32_u24 v{t+2}, 10, v{t+1}\nv_sub_u32 v{t+2}, v{t}, v{t+2}")
        e(f"v_and_b32 v{t}, 24, v{t+1}\nv_bfe_u32 v{t+3}, v{t+1}, 1, 2\nv_add_u32 v{t}, v{t}, v{t+3}\nv_and_b32 v{t+3}, 1, v{t+1}\nv_lshl_add_u32 v{t}, v{t+3}, 2, v{t}")
        e(f"v_mul_u32_u24 v{t}, 1280, v{t}\nv_lshl_add_u32 v{dst+i}, v{t+2}, 4, v{t}")

def roleA(k, mid):
    e = k.e
    AST = env("AST", 0)
    import common
    def stamp(k, i, q=False):
        if AST and not q and 2 < i < 7: return
        if q and not AST: return
        common.stamp(k, i)
    KVSLOT = 24576; KV0 = 8192
    QS = 20480; QX = 10240
    S0, S1 = 32, 48; SA = 64
    Q = [16, 24]; O = [144, 160]; P = [96, 104]; KVB = [112, 128]; KT = 176
    KL = lambda s: KVB[s]; KH = lambda s: KVB[s]+4; V0 = lambda s: KVB[s]+8; V1 = lambda s: KVB[s]+12
    AKL, AKH, AV, BKH, BV = 8, 9, 10, 11, 12
    WV = 16; XV = 21; RB = 24; ONES = 28
    FRG = 80
    AO2 = 241; RB2 = 224
    stamp(k, 0)
    e("s_bfe_u32 s8, s2, 0x20001\ns_lshl_b32 s8, s8, 3\ns_lshr_b32 s9, s2, 5\ns_add_u32 s8, s8, s9")
    e("s_and_b32 s9, s2, 1\ns_lshl_b32 s9, s9, 2\ns_bfe_u32 s32, s2, 0x20003\ns_add_u32 s9, s9, s32")
    e("s_add_u32 s11, s8, s9\ns_mul_i32 s11, s11, 3\ns_mul_i32 s32, s11, 205\ns_lshr_b32 s32, s32, 11\ns_mul_i32 s32, s32, 10\ns_sub_u32 s11, s11, s32")
    if ROT == 0: e("s_mov_b32 s11, 0")
    if ROT == 2: e("s_and_b32 s11, s11, 1")
    if ROT == 3: e("s_bfe_u32 s11, s2, 0x20001\ns_lshl_b32 s11, s11, 1")
    x_voffs(k, XV, 3)
    w160_voffs(k, WV, 3)
    def essential():
        e("v_lshrrev_b32 v6, 5, v1")
        e("v_bfe_u32 v7, v1, 2, 2\nv_lshl_add_u32 v7, v6, 2, v7\nv_mul_u32_u24 v4, 320, v7")
        e("v_and_b32 v7, 1, v1\nv_lshlrev_b32 v7, 4, v7")
        e("v_bfe_u32 v8, v1, 1, 1\nv_lshl_add_u32 v7, v8, 3, v7")
        e("v_and_b32 v8, 16, v1\nv_cmp_ne_u32 vcc, 0, v8\nv_mov_b32 v8, 32\nv_cndmask_b32 v7, v7, v8, vcc")
        e("v_add_u32 v4, v4, v7\ns_mul_i32 s32, s3, 40\nv_add_u32 v4, s32, v4")
        e("v_and_b32 v8, 19, v1\nv_cmp_lt_u32 vcc, 16, v8\nv_mov_b32 v8, 0x40000\nv_cndmask_b32 v4, v4, v8, vcc")
        e("v_add_u32 v5, 40960, v4")
        x_raddr(k, RB, 7, str(QX))
        for j in range(4): e(f"v_mov_b32 v{ONES+j}, 0x3f803f80")
        for j in range(4): e(f"v_add_u32 v{RB2+j}, 40960, v{RB+j}")
    if ADLY == 3: essential()
    Lw = k.newlabel("wrole")
    e(f"s_mul_i32 s12, s3, 40960\ns_mul_i32 s32, s9, 160\ns_add_u32 s12, s12, s32\ns_mov_b32 s13, {64*1280}")
    e("s_waitcnt lgkmcnt(0)")
    srd_from(k, 20, PWQ, NBYTES['wq'])
    e(f"s_mov_b64 s[18:19], -1\ns_cmp_lt_u32 s3, 2\ns_cbranch_scc1 {Lw}\ns_mov_b64 s[18:19], 1")
    for i in range(4): e(f"v_add_u32 v{WV+i}, {10240*i}, v{XV+(i&1)}")
    e(f"v_mov_b32 v{WV+4}, {HUGE}")
    e("s_lshl_b32 s33, s8, 1\ns_add_u32 s33, s33, s3\ns_sub_u32 s33, s33, 2\ns_mul_i32 s12, s33, 40960\ns_mov_b32 s13, 128")
    srd_from(k, 20, PX, NBYTES['x'])
    k.label(Lw)
    e("s_mul_i32 s34, s11, s13\ns_add_u32 s34, s34, s12\ns_mul_i32 s35, s13, 10\ns_add_u32 s35, s35, s12\ns_mul_i32 s14, s3, 5120")
    def st_issue(slot):
        L = [[f"s_add_u32 m0, s14, {slot*QS}"]]
        for i in range(5):
            g = [f"buffer_load_dwordx4 v{WV+i}, s[20:23], s34 offen lds"]
            if i < 4: g += ["s_add_u32 m0, m0, 1024"]
            else: g = ["s_mov_b64 exec, s[18:19]"] + g + ["s_mov_b64 exec, -1", "s_add_u32 s34, s34, s13", "s_cmp_eq_u32 s34, s35", "s_cselect_b32 s34, s12, s34"]
            L.append(g)
        return L
    if ADLY == 0: emit(k, st_issue(0))
    if ADLY == 3:
        emit(k, st_issue(0)); tag_setup(k); emit(k, st_issue(1))
    mid()
    mark = len(k.items)
    if ADLY != 3: tag_setup(k)
    srd_from(k, 24, PWS, KV_BYTES, KV_OFF)
    srd_from(k, 28, PWS, AF_BYTES, AF_OFF)
    if ADLY != 3: essential()
    e(f"v_and_b32 v7, 31, v1\nv_lshlrev_b32 v{BKH}, 3, v7\nv_add_u32 v{BKH}, 1024, v{BKH}\nv_lshl_add_u32 v{BKH}, v6, 18, v{BKH}")
    e("v_and_b32 v13, 19, v7\nv_bfe_u32 v14, v7, 2, 1\nv_lshl_add_u32 v13, v14, 3, v13\nv_bfe_u32 v14, v7, 3, 1\nv_lshl_add_u32 v13, v14, 2, v13")
    e(f"v_mul_u32_u24 v{BV}, 24, v6\nv_add_u32 v{BV}, v{BV}, v13")
    e("v_cmp_le_u32 vcc, 28, v7\nv_cndmask_b32 v13, 0, 1, vcc\nv_xor_b32 v13, v13, v6\nv_mul_u32_u24 v13, 24, v13\nv_add_u32 v13, 20, v13")
    e("v_and_b32 v15, 27, v7\nv_cmp_ne_u32 vcc, 24, v15\nv_mov_b32 v15, 0x4000\nv_cndmask_b32 v13, v13, v15, vcc")
    e(f"v_cmp_le_u32 vcc, 20, v7\nv_cndmask_b32 v{BV}, v{BV}, v13, vcc")
    e(f"v_lshlrev_b32 v{BV}, 4, v{BV}\nv_add_u32 v{BV}, 1536, v{BV}")
    c0 = KV0 + 2*KVSLOT
    e(f"v_add_u32 v{AKL}, {c0}, v2\nv_add_u32 v{AKH}, {c0}, v{BKH}\nv_add_u32 v{AV}, {c0}, v{BV}")
    e(f"s_lshr_b32 s32, s3, 1\ns_lshl_b32 s32, s32, 9\ns_and_b32 s33, s3, 1\ns_lshl_b32 s33, s33, 3\ns_add_u32 s32, s32, s33")
    e(f"v_lshl_add_u32 v{AO2}, v7, 4, s32\nv_lshl_add_u32 v{AO2}, v6, 30, v{AO2}")
    e(f"v_lshlrev_b32 v13, {KVS}, v1\nv_lshlrev_b32 v14, 3, v7")
    e(f"s_lshl_b32 s39, s8, 9\ns_add_u32 s39, s39, {STAT}\ns_lshl_b32 s38, s3, {KVS+6}\ns_add_u32 s38, s38, {KVF}\ns_mul_i32 s36, s3, 6144")
    for t in range(4): e(f"v_mov_b32 v{KT+8*t+6}, 0\nv_mov_b32 v{KT+8*t+7}, 0")
    if ADLY == 0:
        setup = k.items[mark:]; del k.items[mark:]
        groups = st_issue(1) + st_issue(2) + st_issue(3)
        per = -(-len(setup) // len(groups))
        for g in groups:
            take = per
            while take < len(setup) and setup[take].op.startswith(("s_addc", "s_cselect")): take += 1
            k.items += setup[:take]; setup = setup[take:]
            emit(k, g)
        k.items += setup
    late = []
    if ADLY == 3:
        late = k.items[mark:]; del k.items[mark:]
    if ADLY == 2: tag_finish(k)
    if ADLY in (1, 2):
        for sl in range(2): emit(k, st_issue(sl))
    if ADLY != 2: tag_finish(k)
    stamp(k, 1)
    def kv_issue(chunk_soff, slot_base):
        L = []
        for half in range(2):
            L.append([f"s_add_u32 m0, s36, {slot_base + half*3072}", f"s_add_u32 s32, s36, {chunk_soff + half*3072}"])
            for j in range(3):
                L.append([f"buffer_load_dwordx4 v2, s[24:27], s32 offen offset:{j*1024} {SC} lds"])
        return L
    PL = 232
    kv_poll = [f"buffer_load_dword v{PL}, v13, {FL}, s38 offen {SC}"]
    pl_loads = [f"buffer_load_dwordx2 {vr(PL+2,2)}, v14, {FL}, s39 offen {SC}", f"buffer_load_dwordx2 {vr(PL+4,2)}, v14, {FL}, s39 offen offset:256 {SC}"]
    inits = []
    for j in range(8): inits += [(P[1]+j, "0"), (V0(1)+j, "0")]
    for s_ in range(2): inits += [(KH(s_)+2, "0x3f80"), (KH(s_)+3, "0")]
    for j in range(32): inits += [(O[0]+j, "0")]
    inits.sort()
    def hreads(h):
        sl = h % 4; F = FRG + 48*(h & 1); L = []
        so = (sl & 1) * QS; ta = "v5" if sl >= 2 else "v4"; rb = RB2 if sl >= 2 else RB
        for ks in range(4):
            for u in range(2): L.append(f"ds_read_b64_tr_b16 {vr(F+12*ks+2*u,2)}, {ta} offset:{so + ks*2560 + u*160}")
            for b in range(2): L.append(f"ds_read_b128 {vr(F+12*ks+4+4*b,4)}, v{rb+ks} offset:{so + b*5120}")
        return L
    e(f"s_waitcnt vmcnt({5 if ADLY else 15})\ns_barrier")
    stamp(k, 2)
    emit(k, hreads(0))
    if ADLY: emit(k, st_issue(2))
    kt_loads = [["s_mov_b32 s33, 6144"]]
    for t in range(4):
        so, off = ("0", t*3072) if t < 2 else ("s33", (t-2)*3072)
        kt_loads.append([f"buffer_load_dwordx4 {vr(KT+8*t,4)}, v2, s[24:27], {so} offen offset:{off} {SC}",
                         f"buffer_load_dwordx2 {vr(KT+8*t+4,2)}, v{BKH}, s[24:27], {so} offen offset:{off} {SC}"])
    for h in range(10):
        F = FRG + 48*(h & 1)
        if h < PH:
            n = {0: 5 if ADLY else 10, 7: 5, 8: 0}.get(h, 10) + (3 if h == PH - 1 else 0)
            e(f"s_waitcnt vmcnt({n}) lgkmcnt(0)")
        else:
            if h == PH: spin(k, pl_loads + kv_poll, [PL, PL+3, PL+5], 15, pre_issued=True, slp=KSL)
            e("s_waitcnt lgkmcnt(0)")
        if h < 9: e("s_barrier")
        if h in (2, 4, 6, 8): stamp(k, 2 + h//2, True)
        if h == QH:
            e(f"s_lshl_b32 s37, s2, 7\ns_add_u32 s37, s37, {QF}")
            setflag(k, "s37", 242)
        rd = hreads(h+1) if h < 9 else []
        dm = st_issue(h % 4) if h < 6 else []
        if h == 0 and ADLY: dm = st_issue(3) + dm
        if h == PH - 2:
            assert not late
            dm = dm + [pl_loads + kv_poll]
        if h == PH: dm = kv_issue(0, KV0 + 2*KVSLOT)
        i = 0
        for ks in range(4):
            first = (h == 0 and ks == 0)
            for acc, bop in ((S0, F+12*ks+4), (S1, F+12*ks+8), (SA, ONES)):
                e(f"{MF} {vr(acc,16)}, {vr(F+12*ks,4)}, {vr(bop,4)}, {'0' if first else vr(acc,16)}")
                emit(k, rd[:2]); rd = rd[2:]
                if dm and (i >= DI or h in (0, PH, 9)): emit(k, dm.pop(0))
                if h >= 1 and late:
                    take = 3
                    while take < len(late) and late[take].op.startswith(("s_addc", "s_cselect")): take += 1
                    k.items += late[:take]; late = late[take:]
                if h == 9:
                    m = 0
                    while inits and m < 3 and inits[0][0] < F + 12*ks:
                        r, v = inits.pop(0); e(f"v_mov_b32 v{r}, {v}"); m += 1
                i += 1
        emit(k, dm)
    stamp(k, 3)
    for r, v in inits: e(f"v_mov_b32 v{r}, {v}")
    for b in range(2):
        st = PL + 2 + 2*b
        e(f"v_lshlrev_b32 v{238+b}, 16, v{st}\nv_xor_b32 v{238+b}, 0x80000000, v{238+b}\nv_and_b32 v{st}, 0xffff0000, v{st}")
        e(f"v_rcp_f32 v{st}, v{st}\nv_mul_f32 v{st}, {hex(f32bits(QSCALE))}, v{st}")
    def qepi(b):
        L = []; a = S0 + 16*b
        for j in range(12): L.append(f"v_fmac_f32 v{a+j}, v{238+b}, v{SA+j}")
        for j in range(12): L.append(f"v_mul_f32 v{a+j}, v{PL+2+2*b}, v{a+j}")
        for j in range(6): L.append(f"v_cvt_pk_bf16_f32 v{Q[b]+j}, v{a+2*j}, v{a+2*j+1}")
        L += [f"v_mov_b32 v{Q[b]+6}, 0", f"v_mov_b32 v{Q[b]+7}, 0"]
        return L
    MX = [3, 5]
    sxr = lambda b, t: [[80, 208, 32, 64], [48, 80, 208, 64]][b][t]
    def mx(b, t):
        S = sxr(b, t)
        L = [f"v_max3_f32 v{MX[b]}, v{S}, v{S+1}, v{S+2}", f"v_max_f32 v{MX[b]}, v{MX[b]}, v{S+3}"] if t == 0 else []
        for j in range(4 if t == 0 else 0, 16, 2): L.append(f"v_max3_f32 v{MX[b]}, v{MX[b]}, v{S+j}, v{S+j+1}")
        return L
    def qk(b, t):
        S = sxr(b, t)
        return [f"{MF} {vr(S,16)}, {vr(KT+8*t,4)}, {vr(Q[b],4)}, 0", f"{MF} {vr(S,16)}, {vr(KT+8*t+4,4)}, {vr(Q[b]+4,4)}, {vr(S,16)}"]
    def fin(b, offs):
        L = [f"v_mov_b32 v15, v{MX[b]}", f"v_permlane32_swap_b32 v{MX[b]}, v15", f"v_max_f32 v{MX[b]}, v{MX[b]}, v15"]
        if offs: L.append(f"v_add_f32 v{MX[b]}, {hex(f32bits(offs))}, v{MX[b]}")
        L += [f"v_cvt_pk_bf16_f32 v{MX[b]}, -v{MX[b]}, 0", "v_cmp_ne_u32 vcc, 0, v6", f"v_cndmask_b32 v{Q[b]+6}, v{MX[b]}, 0, vcc"]
        return L
    def weave(mfs, vals, per, ex=None):
        for m in mfs:
            e(m)
            if ex: emit(k, ex.pop(0))
            for _ in range(per):
                if vals: e(vals.pop(0))
        for v in vals: e(v)
    e(f"s_mov_b32 s40, 0\ns_mov_b32 s41, {KV0}\ns_add_u32 s35, s36, {KV0}\ns_add_u32 s42, s35, {KVSLOT}\ns_add_u32 s43, s36, {2*KVSLOT}\ns_add_u32 s39, s35, {3*KVSLOT}")
    e("s_and_b32 s32, s9, 3\ns_mul_i32 s32, s32, 10\ns_mul_i32 s33, s8, 272\ns_add_u32 s32, s32, s33\ns_lshr_b32 s33, s9, 2\ns_mul_i32 s33, s33, 5\ns_add_u32 s32, s32, s33")
    e("s_add_u32 s16, s32, 4\ns_lshl_b32 s16, s16, 10\ns_add_u32 s12, s32, s3\ns_lshl_b32 s12, s12, 10")
    e(f"s_add_u32 s13, s12, {136*1024}\ns_add_u32 s17, s16, {136*1024}")
    e(f"s_lshl_b32 s14, s8, 3\ns_add_u32 s14, s14, s9\ns_lshl_b32 s14, s14, 7\ns_add_u32 s14, s14, {OF}")
    e("s_waitcnt vmcnt(0)\ns_barrier")
    for t in range(4):
        e(f"ds_read_b128 {vr(KT+8*t,4)}, v{AKL} offset:{t*3072}\nds_read_b64 {vr(KT+8*t+4,2)}, v{AKH} offset:{t*3072}")
    for s in range(2):
        e(f"ds_read_b128 {vr(KL(s),4)}, v{AKL} offset:{s*3072}\nds_read_b64 {vr(KH(s),2)}, v{AKH} offset:{s*3072}")
    e(f"ds_read_b128 {vr(V0(0),4)}, v{AV}\nds_read_b128 {vr(V1(0),4)}, v{AV} offset:768")
    emit(k, qepi(0))
    stamp(k, 4)
    stamp(k, 5)
    e("s_waitcnt lgkmcnt(6)")
    kv1 = kv_issue(KVSLOT, KV0)
    weave(qk(0, 0) + qk(0, 1) + qk(0, 2), qepi(1), 6, kv1)
    weave(qk(0, 3) + qk(1, 0), mx(0, 0) + mx(0, 1), 4, kv1)
    weave(qk(1, 1) + qk(1, 2), mx(0, 2) + mx(0, 3) + fin(0, OFFS), 6)
    e("s_waitcnt lgkmcnt(0)")
    weave(qk(1, 3) + [f"{MF} {vr(S0,16)}, {vr(KL(0),4)}, {vr(Q[0],4)}, 0", f"{MF} {vr(S0,16)}, {vr(KH(0),4)}, {vr(Q[0]+4,4)}, {vr(S0,16)}"],
          mx(1, 0) + [f"v_mov_b32 v{S1+12+j}, 0" for j in range(4)] + mx(1, 1) + mx(1, 2) + mx(1, 3) + fin(1, OFFS), 6)
    dma = lambda so, off: f"buffer_load_dwordx4 v2, s[24:27], {so} offen offset:{off} {SC} lds" if not NOKV else "s_nop 0"
    extra = {(1, 0): ["s_mov_b32 m0, s42"], (1, 1): ["s_add_u32 s38, s43, 4096"], (1, 3): ["s_waitcnt vmcnt(0)", "s_barrier"] if NOKV < 2 else [],
             (2, 3): [dma("s43", 0), dma("s43", 1024)], (3, 3): [dma("s43", 2048), dma("s43", 3072)],
             (4, 0): ["s_add_u32 m0, s42, 4096"], (4, 3): [dma("s38", 0), dma("s38", 1024)],
             (5, 0): [f"s_add_u32 s43, s43, {KVSLOT}"], (5, 1): ["s_add_u32 s40, s40, 1"], (5, 2): [f"s_add_u32 s37, s42, {KVSLOT}"],
             (6, 0): ["s_cmp_eq_u32 s37, s39"], (6, 1): ["s_cselect_b32 s37, s35, s37"],
             (7, 0): ["s_sub_u32 s41, s42, s36"], (7, 1): ["s_mov_b32 s42, s37"],
             (7, 2): ["s_cmp_lt_u32 s40, 8"]}
    e("s_setprio 1")
    stamp(k, 6)
    stamp(k, 7)
    Lloop = k.newlabel("att")
    k.label(Lloop, 6)
    def cv(S, Pb, g):
        return [f"v_cvt_pk_bf16_f32 v{Pb+2*g}, v{S+4*g}, v{S+4*g+1}", f"v_cvt_pk_bf16_f32 v{Pb+2*g+1}, v{S+4*g+2}, v{S+4*g+3}"]
    for jj in range(8):
        for blk in range(2):
            Sc, Sn = (S0, S1) if blk == 0 else (S1, S0)
            valu = []
            for g in range(4):
                for j in range(4): valu.append(f"v_exp_f32{E64} v{Sc+4*g+j}, v{Sc+4*g+j}")
                valu += cv(Sn, P[1-blk], 3) if g == 0 else cv(Sc, P[blk], g-1)
            ks = (jj + blk) & 1; vs = (jj - 1 + blk) & 1; nb = 1 - blk
            ko = ((jj + 2) % 8) * 3072; vo = ((jj + 1) % 8) * 3072
            mf = [[f"{MF} {vr(O[nb],16)}, {vr(V0(vs),4)}, {vr(P[nb],4)}, {vr(O[nb],16)}"],
                  [f"{MF} {vr(Sn,16)}, {vr(KL(ks),4)}, {vr(Q[nb],4)}, 0"],
                  [f"{MF} {vr(Sn,16)}, {vr(KH(ks),4)}, {vr(Q[nb]+4,4)}, {vr(Sn,16)}"],
                  [f"{MF} {vr(O[nb],16)}, {vr(V1(vs),4)}, {vr(P[nb]+4,4)}, {vr(O[nb],16)}"]]
            if blk == 0:
                mf[2].append("s_waitcnt lgkmcnt(0)")
                mf[3].append(f"ds_read_b128 {vr(KL(ks),4)}, v{AKL} offset:{ko}")
                mf[3].append(f"ds_read_b64 {vr(KH(ks),2)}, v{AKH} offset:{ko}")
            else:
                mf[3].append(f"ds_read_b128 {vr(V0(1-vs),4)}, v{AV} offset:{vo}")
                mf[3].append(f"ds_read_b128 {vr(V1(1-vs),4)}, v{AV} offset:{vo+768}")
                if jj == 5: valu.append(f"v_add_u32 v{AKL}, s41, v2"); valu.append(f"v_add_u32 v{AKH}, s41, v{BKH}")
                if jj == 6: valu.append(f"v_add_u32 v{AV}, s41, v{BV}")
                for m in range(4): mf[m] += extra.get((jj, m), [])
            for i, v in enumerate(valu):
                for m in range(4):
                    if PATTERN[m] == i: emit(k, mf[m])
                e(v)
    e(f"s_cbranch_scc1 {Lloop}")
    emit(k, cv(S1, P[1], 3))
    e(f"{MF} {vr(O[1],16)}, {vr(V0(1),4)}, {vr(P[1],4)}, {vr(O[1],16)}")
    e(f"{MF} {vr(O[1],16)}, {vr(V1(1),4)}, {vr(P[1]+4,4)}, {vr(O[1],16)}")
    stamp(k, 8)
    e("s_mov_b32 s40, 0\ns_setprio 3")
    Lout = k.newlabel("out"); Lslow = k.newlabel("slow"); Lpub = k.newlabel("pub")
    k.label(Lout)
    PK = 224; A0 = 208
    for b in range(2):
        e(f"v_rcp_f32 v{A0+b}, v{O[b]+12}")
        e(f"v_mul_f32 v{A0+b}, {hex(f32bits(1/LOG2E))}, v{A0+b}")
        for j in range(12): e(f"v_mul_f32 v{O[b]+j}, v{O[b]+j}, v{A0+b}")
        for j in range(6): e(f"v_cvt_pk_bf16_f32 v{PK+8*b+j}, v{O[b]+2*j}, v{O[b]+2*j+1}")
        e(f"buffer_store_dwordx4 {vr(PK+8*b,4)}, v2, s[28:31], s{12+b} offen {SC}")
        e(f"buffer_store_dwordx2 {vr(PK+8*b+4,2)}, v{AO2}, s[28:31], s{16+b} offen {SC}")
    e(f"v_mul_f32 v{A0+2}, 0, v{O[0]+12}\nv_mul_f32 v{A0+3}, 0, v{O[1]+12}")
    for j in range(12):
        for b in range(2): e(f"v_fma_f32 v{A0+2+b}, v{O[b]+j}, 0, v{A0+2+b}")
    e(f"v_cmp_u_f32 vcc, v{A0+2}, v{A0+3}")
    e(f"s_cmp_lg_u32 s40, 0\ns_cbranch_scc1 {Lpub}")
    e(f"s_cmp_lg_u64 vcc, 0\ns_cbranch_scc1 {Lslow}")
    k.label(Lpub)
    if WF:
        e(f"v_mov_b32 v16, {TAG}\ns_lshl_b32 s32, s3, 2\nv_mov_b32 v17, s32\ns_mov_b64 exec, 1\ns_waitcnt vmcnt(0)")
        e(f"buffer_store_dword v16, v17, {FL}, s14 offen {SC}\ns_mov_b64 exec, -1")
    else:
        e("s_waitcnt vmcnt(0)\ns_barrier")
        if LEAK == "A9":
            e("s_getreg_b32 s95, hwreg(HW_REG_XCC_ID)\ns_and_b32 s95, s95, 15\ns_and_b32 s94, s2, 7\ns_cmp_eq_u32 s95, s94\ns_cselect_b32 s95, 0, 1000\ns_add_u32 s95, s95, s86")
        setflag(k, "s14", 16, "A")
    Lx = k.newlabel("axit")
    e(f"s_or_b32 s32, s2, s3\ns_cmp_lg_u32 s32, 0\ns_cbranch_scc1 {Lx}")
    e(f"v_lshlrev_b32 v13, 7, v1")
    ld = []
    for i in range(8): ld += [f"s_mov_b32 s38, {HF + 8192*i}", f"buffer_load_dword v{16+i}, v13, {FL}, s38 offen {SC}"]
    if not ONLY: spin(k, ld, list(range(16, 24)), 24)
    setflag(k, "0", 16)
    if LEAK:
        for i in range(8):
            e(f"s_mov_b32 s75, {HF + 8192*i}\nbuffer_load_dwordx2 {vr(32+2*i,2)}, v13, {FL}, s75 offen offset:8 {SC}")
        e("s_waitcnt vmcnt(0)")
        for i in range(16): e(f"v_subrev_u32 v{32+i}, s86, v{32+i}")
        for i in range(1, 8): e(f"v_min_i32 v32, v32, v{32+2*i}\nv_max_i32 v33, v33, v{33+2*i}")
        e("s_mov_b32 s40, 0x7fffffff\ns_mov_b32 s41, 0x80000000")
        for l in range(64):
            e(f"v_readlane_b32 s42, v32, {l}\nv_readlane_b32 s43, v33, {l}\ns_min_i32 s40, s40, s42\ns_max_i32 s41, s41, s43")
        e("s_sub_u32 s41, s41, s40\ns_mul_i32 s41, s41, 4\ns_add_u32 s41, s41, 10000\ns_add_u32 s40, s40, s86")
        Ls = k.newlabel("spin"); k.label(Ls)
        e("s_memrealtime s[42:43]\ns_waitcnt lgkmcnt(0)\ns_sub_u32 s42, s42, s40")
        e(f"s_cmp_lt_u32 s42, s41\ns_cbranch_scc1 {Ls}")
    k.label(Lx)
    stamp_dump(k, 1, 9, "s2", PWS)
    e("s_endpgm")
    k.label(Lslow)
    e("s_waitcnt vmcnt(0) lgkmcnt(0)")
    e(f"s_mov_b32 s40, 1\ns_mov_b32 s41, 0\nv_mov_b32 v{Q[0]+6}, 0\nv_mov_b32 v{Q[1]+6}, 0")
    e(f"v_mov_b32 v{MX[0]}, 0xff800000\nv_mov_b32 v{MX[1]}, 0xff800000")
    def kload():
        e(f"buffer_load_dwordx4 {vr(KL(0),4)}, v2, s[24:27], s41 offen {SC}")
        e(f"buffer_load_dwordx2 {vr(KH(0),2)}, v{BKH}, s[24:27], s41 offen {SC}")
    def qk2():
        for b in range(2):
            S = S0 + 16*b
            e(f"{MF} {vr(S,16)}, {vr(KL(0),4)}, {vr(Q[b],4)}, 0\n{MF} {vr(S,16)}, {vr(KH(0),4)}, {vr(Q[b]+4,4)}, {vr(S,16)}")
    L1 = k.newlabel("sl1"); k.label(L1)
    kload(); e("s_waitcnt vmcnt(0)"); qk2()
    for b in range(2):
        for j in range(0, 16, 2): e(f"v_max3_f32 v{MX[b]}, v{MX[b]}, v{S0+16*b+j}, v{S0+16*b+j+1}")
    e(f"s_add_u32 s41, s41, 3072\ns_cmp_lt_u32 s41, {KV_BYTES}\ns_cbranch_scc1 {L1}")
    for b in range(2): emit(k, fin(b, 0))
    for j in range(32): e(f"v_mov_b32 v{O[0]+j}, 0")
    e("s_mov_b32 s41, 0")
    L2 = k.newlabel("sl2"); k.label(L2)
    kload()
    e(f"buffer_load_dwordx4 {vr(V0(0),4)}, v{BV}, s[24:27], s41 offen {SC}")
    e(f"buffer_load_dwordx4 {vr(V1(0),4)}, v{BV}, s[24:27], s41 offen offset:768 {SC}")
    e("s_waitcnt vmcnt(0)"); qk2()
    for b in range(2):
        S = S0 + 16*b
        for j in range(16): e(f"v_exp_f32 v{S+j}, v{S+j}")
        for g in range(4): emit(k, cv(S, P[b], g))
        e(f"{MF} {vr(O[b],16)}, {vr(V0(0),4)}, {vr(P[b],4)}, {vr(O[b],16)}")
        e(f"{MF} {vr(O[b],16)}, {vr(V1(0),4)}, {vr(P[b]+4,4)}, {vr(O[b],16)}")
    e(f"s_add_u32 s41, s41, 3072\ns_cmp_lt_u32 s41, {KV_BYTES}\ns_cbranch_scc1 {L2}")
    e("s_nop 12")
    e(f"s_branch {Lout}")

def gen_mega(name="parallel_sum__grouped_kv_mqa__swiglu_ffn__prompt_kernel"):
    k = Kernel(name); e = k.e
    LA = k.newlabel("roleA"); LB = k.newlabel("roleB")
    e("s_load_dwordx16 s[48:63], s[0:1], 0\ns_load_dwordx8 s[64:71], s[0:1], 64")
    e("v_and_b32 v1, 63, v0\nv_lshrrev_b32 v2, 6, v0\nv_readfirstlane_b32 s3, v2\nv_lshlrev_b32 v2, 4, v1")
    Lgo = k.newlabel("go")
    e(f"s_cmp_lt_u32 s2, 256\ns_cbranch_scc1 {LB}\ns_cmp_lt_u32 s2, 512\ns_cbranch_scc1 {Lgo}\ns_endpgm")
    def body_b():
        k.label(LB)
        e("s_setprio 3")
        roleB(k)
    if HEAD:
        k.label(Lgo)
        if ONLY == "B": e("s_endpgm")
        e(f"s_sub_u32 s2, s2, 256\ns_setprio {AP0}")
        def mid():
            e(f"s_branch {LA}")
            body_b()
            k.label(LA, 6)
        roleA(k, mid)
    else:
        body_b()
        k.label(Lgo, 6)
        if ONLY == "B": e("s_endpgm")
        e(f"s_sub_u32 s2, s2, 256\ns_setprio {AP0}")
        roleA(k, lambda: None)
    k.label(f"{k.name}_end")
    k.lds = 81920; k.grid = 512; k.block = 256
    return k

if __name__ == "__main__":
    import sys
    from build import emit as emit_file
    emit_file([gen_mega()], sys.argv[1] if len(sys.argv) > 1 else "parallel_sum__grouped_kv_mqa__swiglu_ffn__prompt.s")
```

```python
from asmgen import *
from common import KA, NBYTES, f32bits, srd_from, stamp, stamp_dump, STAMPS
import math, os

MF = "v_mfma_f32_32x32x16_bf16"
LOG2E = math.log2(math.e)
QSCALE = (20 ** -0.5) * float(os.environ.get("QEPS", 1.0))
env = lambda n, d: type(d)(os.environ.get(n, d))
OFFS = env('OFFS', 96.0)
PATTERN = [int(x) for x in env('APAT', '2,6,9,13').split(',')]
BST = env("BST", 0); ONLY = env("ONLY", "")
P0B = env("P0B", 14); PKD = env("PKD", 0); ADLY = env("ADLY", 0); E64 = env("E64", ""); TP = env("TP", 0); QH = env("QH", 4); DI = env("DI", 0); SENT = env("SENT", 0); PKE = env("PKE", 1); ROT = env("ROT", 1); OM = env("OM", ""); HEAD = env("HEAD", 1); PKS = env("PKS", 1); WF = env("WF", 0); KVS = env("KVS", 2); PH = env("PH", 7); LATE = env("LATE", 0); NOKV = env("NOKV", 0); KSL = env("KSL", 4); BSL = env("BSL", 2); BP0 = env("BP0", 0); GP0 = env("GP0", 0); GP1 = env("GP1", 2); GSW = env("GSW", -1); CPF = env("CPF", 1); DP = env("DP", 0); AP0 = env("AP0", 2)
STAT = 0x1000; PKF = 0x800; HF = 0x9000; OF = 0x11000; KVF = 0xE80000; XNF = 0xE88000; QF = 0xE90000; FL_BYTES = 0xE98000
KV_OFF = 0x20000;  KV_BYTES = 64*3072
WP_OFF = 0x50000;  WP_BYTES = 8*136*2560
AF_OFF = 0x300000; AF_BYTES = 64*136*1024
XN_OFF = 0xC00000; XN_BYTES = 64*40*1024
PX, PWQ, PWK, PWV, PWO, PWG, PWU, PWD, POUT, PWS = 48, 50, 52, 54, 56, 60, 62, 64, 66, 70
TAG = "s73"; BUD = "s74"; FLS = 44; SC = "sc1"
FL = f"s[{FLS}:{FLS+3}]"
HUGE = "0x7ff00000"

def bstamp(k, name):
    m0 = dict(start=0, xl=1, xs=2, xf=3, p0=4, gu0=5, gu1=6, dn0=7, dn1=8)
    m1 = dict(start=0, p0=1, gu0=2, gu1=3, dn0=4, dn1=5, of=6, mm=7, rd=8)
    m = m1 if BST else m0
    if name in m: stamp(k, m[name])

def emit(k, lst):
    for x in lst:
        if isinstance(x, list): emit(k, x)
        else: k.e(x)

def spin(k, loads, regs, vt, pre_issued=False, slp=1):
    e = k.e
    Lp = k.newlabel("poll"); Ld = k.newlabel("pdone"); Lc = k.newlabel("pchk")
    if pre_issued: e(f"s_branch {Lc}")
    k.label(Lp)
    emit(k, loads)
    k.label(Lc)
    e("s_waitcnt vmcnt(0)")
    e(f"v_xor_b32 v{vt}, {TAG}, v{regs[0]}")
    for r in regs[1:]:
        e(f"v_xor_b32 v{r}, {TAG}, v{r}\nv_or_b32 v{vt}, v{vt}, v{r}")
    e(f"v_cmp_ne_u32 vcc, 0, v{vt}")
    e(f"s_cmp_eq_u64 vcc, 0\ns_cbranch_scc1 {Ld}")
    e(f"s_cmp_eq_u32 {BUD}, 0\ns_cbranch_scc1 {Ld}\ns_sub_u32 {BUD}, {BUD}, 1")
    e(f"s_sleep {slp}\ns_branch {Lp}")
    k.label(Ld)

LEAK = os.environ.get("LEAK")
def setflag(k, soffs, vt, leak=None):
    e = k.e
    L = k.newlabel("nofl")
    e(f"s_cmp_lg_u32 s3, 0\ns_cbranch_scc1 {L}")
    if LEAK and leak is not None:
        role, idx = LEAK[0], int(LEAK[1:])
        sel = f"s{86+idx}" if role == leak else "s86"
        e(f"v_mov_b32 v{vt}, s86\nv_mov_b32 v{vt+1}, {sel}\nv_mov_b32 v{vt+2}, 0\ns_mov_b64 exec, 1")
        e(f"buffer_store_dwordx2 {vr(vt,2)}, v{vt+2}, {FL}, {soffs} offen offset:8 {SC}")
        e("s_waitcnt vmcnt(0)\ns_mov_b64 exec, -1")
    e(f"v_mov_b32 v{vt}, {TAG}\nv_mov_b32 v{vt+1}, 0\ns_mov_b64 exec, 1")
    for so in (soffs if isinstance(soffs, list) else [soffs]):
        e(f"buffer_store_dword v{vt}, v{vt+1}, {FL}, {so} offen {SC}")
    e("s_mov_b64 exec, -1")
    k.label(L)

def tag_setup(k):
    k.e(f"s_load_dword s72, s[{PWS}:{PWS+1}], 0")
    srd_from(k, FLS, PWS, FL_BYTES)
    k.e(f"s_mov_b32 {BUD}, 200000")
def tag_finish(k):
    k.e(f"s_waitcnt lgkmcnt(0)\ns_mul_i32 {TAG}, s72, 1664525\ns_add_u32 {TAG}, {TAG}, 1013904223")

def x_voffs(k, dst, t):
    e = k.e
    e(f"v_lshrrev_b32 v{t}, 3, v1\nv_mul_u32_u24 v{t}, 1280, v{t}")
    e(f"v_and_b32 v{t+1}, 7, v1\nv_lshrrev_b32 v{t+2}, 4, v1\nv_xor_b32 v{t+1}, v{t+1}, v{t+2}")
    e(f"v_lshl_add_u32 v{dst}, v{t+1}, 4, v{t}\nv_xor_b32 v{dst+1}, 64, v{dst}")
def x_raddr(k, dst, t, base):
    e = k.e
    e(f"v_and_b32 v{t}, 31, v1\nv_bfe_u32 v{t+1}, v1, 1, 3\nv_lshrrev_b32 v{t+2}, 5, v1\nv_xor_b32 v{t+1}, v{t+1}, v{t+2}")
    e(f"v_lshlrev_b32 v{t}, 7, v{t}\nv_lshl_add_u32 v{t}, v{t+1}, 4, v{t}")
    for ks in range(4):
        e(f"v_xor_b32 v{t+1}, {ks*32}, v{t}\nv_add_u32 v{dst+ks}, {base}, v{t+1}")

def phase0(k):
    e = k.e
    e("v_and_b32 v3, 15, v1\nv_lshrrev_b32 v4, 4, v1")
    e("s_mul_i32 s12, s4, 20480\ns_mul_i32 s13, s3, 320\ns_add_u32 s12, s12, s13")
    e("v_mul_u32_u24 v5, 1280, v3\nv_lshl_add_u32 v5, v4, 4, v5")
    e("s_mul_i32 s14, s3, 6400\ns_mul_i32 s15, s3, 7168\ns_add_u32 s37, s14, 4096")
    e("s_waitcnt lgkmcnt(0)")
    srd_from(k, 16, PX, NBYTES['x'])
    X = 16
    for i in range(5):
        e(f"buffer_load_dwordx4 {vr(X+4*i,4)}, v5, s[16:19], s12 offen offset:{64*i}")
    tag_setup(k)
    e(f"s_cmp_eq_u32 s11, 0\ns_cselect_b32 s20, s{PWK}, s{PWV}\ns_cselect_b32 s21, s{PWK+1}, s{PWV+1}")
    e(f"s_mov_b32 s22, {hex(NBYTES['wk'])}\ns_mov_b32 s23, 0x20000\ns_mov_b32 m0, s15")
    for j in range(7):
        if j == 4: e("s_add_u32 m0, s15, 4096")
        e(f"buffer_load_dwordx4 v2, s[20:23], {'s14' if j < 4 else 's37'} offen offset:{(j%4)*1024} lds")
    srd_from(k, 28, PWS, XN_BYTES, XN_OFF)
    srd_from(k, 32, PWS, KV_BYTES, KV_OFF)
    e("v_mov_b32 v8, 0\nv_mov_b32 v9, 0\nv_mov_b32 v10, 0\nv_mov_b32 v11, 0")
    e("s_mov_b32 s38, 0x3f803f80")
    LST = 28672; RED = LST + 512
    e(f"s_lshl_b32 s39, s3, 7\ns_add_u32 s39, s39, {LST}")
    e("v_lshl_add_u32 v12, v3, 3, s39\nv_lshlrev_b32 v13, 3, v3")
    e("v_lshrrev_b32 v14, 2, v3\nv_lshl_add_u32 v14, v4, 3, v14\nv_mul_u32_u24 v14, 40, v14")
    e("v_and_b32 v15, 3, v1\nv_lshl_add_u32 v14, v15, 3, v14\nv_add_u32 v14, s15, v14")
    e(f"s_lshl_b32 s36, s4, 7\ns_add_u32 s36, s36, {STAT}")
    e("s_lshr_b32 s40, s4, 1\ns_mul_i32 s41, s40, 40960\ns_and_b32 s42, s4, 1")
    e("s_lshl_b32 s43, s42, 8\ns_add_u32 s41, s41, s43\ns_mul_i32 s43, s3, 10240\ns_add_u32 s41, s41, s43")
    e("v_lshlrev_b32 v5, 9, v4\nv_lshl_add_u32 v5, v3, 4, v5")
    e(f"s_lshl_b32 s39, s3, 11\ns_add_u32 s39, s39, {RED}\nv_add_u32 v92, s39, v2\ns_mul_i32 s39, s40, 3072")
    e(f"s_lshl_b32 s43, s4, 1\ns_add_u32 s43, s43, s11\ns_lshl_b32 s75, s43, 7\ns_add_u32 s75, s75, {XNF}\ns_lshl_b32 s43, s43, {KVS}\ns_add_u32 s43, s43, {KVF}")
    Lv, Lst = k.newlabel("v"), k.newlabel("st")
    e("v_lshl_add_u32 v7, s42, 4, v3\nv_and_b32 v15, 1, v4\nv_lshrrev_b32 v6, 1, v4\nv_mov_b32 v95, 0x7fffffff")
    e(f"s_mov_b64 s[24:25], 0\ns_cmp_lg_u32 s11, 0\ns_cbranch_scc1 {Lv}")
    e("v_lshl_add_u32 v93, v6, 5, v7\nv_lshlrev_b32 v93, 4, v93\nv_lshl_add_u32 v93, v15, 3, v93")
    e("v_lshlrev_b32 v94, 3, v7\nv_add_u32 v94, 1024, v94\nv_cmp_ne_u32 vcc, 0, v4")
    e(f"s_branch {Lst}")
    k.label(Lv)
    e("s_mul_i32 s26, s42, 768\ns_add_u32 s26, s26, 1536\ns_mov_b32 s24, 0x00100010\ns_mov_b32 s25, 0x00100010")
    e("v_mul_u32_u24 v93, 384, v15\nv_lshl_add_u32 v93, v3, 4, v93\nv_lshl_add_u32 v93, v6, 3, v93\nv_add_u32 v93, s26, v93")
    e("v_add_u32 v94, 256, v93\nv_cmp_lt_u32 vcc, 4, v3")
    k.label(Lst)
    e("v_cndmask_b32 v94, v94, v95, vcc\nv_mov_b32 v95, 0x3f803f80")
    tag_finish(k)
    for i in range(5):
        e(f"s_waitcnt vmcnt({11 - i})")
        for d in range(4*i, 4*i+4):
            a = 8 + (d & 1); q = 10 + (d & 1)
            e(f"v_dot2_f32_bf16 v{a}, v{X+d}, s38, v{a}")
            e(f"v_dot2_f32_bf16 v{q}, v{X+d}, v{X+d}, v{q}")
    bstamp(k, "xl")
    e("v_add_f32 v8, v8, v9\nv_add_f32 v9, v10, v11")
    for sw in ("v_permlane32_swap_b32", "v_permlane16_swap_b32"):
        e("v_mov_b32 v10, v8\nv_mov_b32 v11, v9")
        e(f"{sw} v8, v10\n{sw} v9, v11")
        e("v_add_f32 v8, v8, v10\nv_add_f32 v9, v9, v11")
    e("ds_write_b64 v12, v[8:9]")
    U = 96; W = 136
    for d in range(20):
        e(f"v_lshlrev_b32 v{U+2*d}, 16, v{X+d}\nv_and_b32 v{U+2*d+1}, 0xffff0000, v{X+d}")
        if d == 1:
            e("s_waitcnt lgkmcnt(0)\ns_barrier")
            for w in range(4): e(f"ds_read_b64 {vr(36+2*w,2)}, v13 offset:{LST+128*w}")
    e("s_waitcnt lgkmcnt(0) vmcnt(0)")
    for i in range(5):
        for tl in range(2):
            for u in range(2):
                e(f"ds_read_b64_tr_b16 {vr(W+8*i+4*tl+2*u,2)}, v14 offset:{i*1280 + u*160 + tl*32}")
    e("v_add_f32 v8, v36, v38\nv_add_f32 v9, v37, v39\nv_add_f32 v10, v40, v42\nv_add_f32 v11, v41, v43")
    e("v_add_f32 v8, v8, v10\nv_add_f32 v9, v9, v11")
    inv = hex(f32bits(1.0/640))
    e(f"v_mul_f32 v8, {inv}, v8\nv_mul_f32 v9, {inv}, v9")
    e("v_fma_f32 v9, -v8, v8, v9\nv_max_f32 v9, 0, v9")
    e("v_cvt_pk_bf16_f32 v10, v8, v9")
    e("v_lshlrev_b32 v8, 16, v10\nv_and_b32 v9, 0xffff0000, v10")
    e(f"v_add_f32 v9, {hex(f32bits(1e-5))}, v9")
    e("v_cvt_pk_bf16_f32 v9, v9, v9\nv_and_b32 v9, 0xffff0000, v9")
    e("v_sqrt_f32 v9, v9")
    e("v_cvt_pk_bf16_f32 v6, v8, v9")
    e(f"v_mov_b32 v7, {TAG}\nv_and_b32 v9, 0xffff0000, v6")
    Lns = k.newlabel("nost")
    e(f"s_lshl_b32 s26, s11, 2\ns_add_u32 s26, s26, s3\ns_cmp_lg_u32 s26, 7\ns_cbranch_scc1 {Lns}")
    e(f"s_mov_b64 exec, 0xffff\nbuffer_store_dwordx2 v[6:7], v13, {FL}, s36 offen {SC}\ns_mov_b64 exec, -1")
    k.label(Lns)
    e("v_rcp_f32 v10, v9")
    e(f"v_mul_f32 v10, {hex(f32bits(LOG2E))}, v10")
    e("v_mul_f32 v11, v8, v10")
    ACC = 44
    for d in range(20):
        u = U + 2*d
        e(f"v_fma_f32 v{u}, v{u}, v10, -v11\nv_fma_f32 v{u+1}, v{u+1}, v10, -v11")
        if d >= 1: e(f"v_cvt_pk_bf16_f32 v{X+d-1}, v{u-2}, v{u-1}")
    e(f"v_cvt_pk_bf16_f32 v{X+19}, v{U+38}, v{U+39}")
    Lmv, Lmd = k.newlabel("mv"), k.newlabel("md")
    e(f"s_waitcnt lgkmcnt(0)\ns_cmp_lg_u32 s11, 0\ns_cbranch_scc1 {Lmv}")
    def xst(i): return f"buffer_store_dwordx4 {vr(X+4*i,4)}, v5, s[28:31], s26 offen offset:{(i%2)*2048} {SC}"
    for m in range(2):
        if m: k.label(Lmv)
        for i in range(5):
            for tl in range(2):
                wf = vr(W+8*i+4*tl, 4); xf = vr(X+4*i, 4); acc = vr(ACC+4*tl, 4)
                a, b = (wf, xf) if m == 0 else (xf, wf)
                e(f"v_mfma_f32_16x16x32_bf16 {acc}, {a}, {b}, {'0' if i == 0 else acc}")
        if m == 0: e(f"s_branch {Lmd}")
    k.label(Lmd)
    bstamp(k, "xs")
    for tl in range(2):
        e(f"ds_write_b128 v92, {vr(ACC+4*tl,4)} offset:{tl*1024}")
    e("s_waitcnt lgkmcnt(0)\ns_barrier")
    Lx = k.newlabel("xst")
    e(f"s_cmp_lg_u32 s3, 0\ns_cbranch_scc1 {Lx}")
    R = 52
    for tl in range(2):
        for w in range(1, 4):
            e(f"ds_read_b128 {vr(R+16*tl+4*w,4)}, v92 offset:{w*2048 + tl*1024}")
    for tl in range(2):
        e(f"s_waitcnt lgkmcnt({3 - 3*tl})")
        r = R + 16*tl; c = ACC + 4*tl
        for j in range(4):
            e(f"v_add_f32 v{c+j}, v{c+j}, v{r+4+j}\nv_add_f32 v{r+8+j}, v{r+8+j}, v{r+12+j}\nv_add_f32 v{c+j}, v{c+j}, v{r+8+j}")
        e(f"v_cvt_pk_bf16_f32 v{8+2*tl}, v{c}, v{c+1}\nv_cvt_pk_bf16_f32 v{9+2*tl}, v{c+2}, v{c+3}")
        if tl: e("v_cndmask_b32 v10, v10, v95, s[24:25]\nv_cndmask_b32 v11, v11, v95, s[24:25]")
        e(f"buffer_store_dwordx2 {vr(8+2*tl,2)}, v{93+tl}, s[32:35], s39 offen {SC}")
    k.label(Lx)
    L1, L2 = k.newlabel("x1"), k.newlabel("x2")
    e(f"s_cmp_lg_u32 s11, 0\ns_cbranch_scc1 {L1}")
    e("s_mov_b32 s26, s41"); e(xst(0)); e(xst(1)); e("s_add_u32 s26, s41, 4096"); e(xst(2))
    e(f"s_branch {L2}")
    k.label(L1)
    e("s_add_u32 s26, s41, 4096"); e(xst(3)); e("s_add_u32 s26, s41, 8192"); e(xst(4))
    k.label(L2)
    bstamp(k, "xf")

def roleB(k):
    e = k.e
    SLOT = 20480
    GW, RA, RB = 216, 221, 224
    ACC = 32; FR = [176, 196]
    Lgu = k.newlabel("gu0"); Lpk = k.newlabel("pk")
    bstamp(k, "start")
    e("s_and_b32 s5, s2, 7\ns_lshr_b32 s6, s2, 3")
    def tile_ids():
        e("s_lshr_b32 s7, s5, 1\ns_lshl_b32 s7, s7, 2\ns_lshr_b32 s8, s6, 3\ns_add_u32 s7, s7, s8")
        e("s_and_b32 s9, s5, 1\ns_lshl_b32 s8, s9, 3\ns_and_b32 s10, s6, 7\ns_add_u32 s8, s8, s10\ns_lshl_b32 s11, s7, 1\ns_add_u32 s9, s9, s11")
    def gu_vsetup(t):
        e("s_and_b32 s11, s3, 2")
        for i in range(3):
            e(f"v_add_u32 v{t}, {64*i}, v1\nv_mul_u32_u24 v{t+1}, 5462, v{t}\nv_lshrrev_b32 v{t+1}, 16, v{t+1}")
            e(f"v_mul_u32_u24 v{t+2}, 12, v{t+1}\nv_sub_u32 v{t+2}, v{t}, v{t+2}\nv_xor_b32 v{t+2}, s11, v{t+2}")
            e(f"v_mul_u32_u24 v{t+1}, 3072, v{t+1}\nv_lshl_add_u32 v{GW+i}, v{t+2}, 4, v{t+1}")
    def gu_vsetup2(t):
        e(f"v_lshrrev_b32 v{t}, 5, v1\nv_bfe_u32 v{t+1}, v1, 2, 2\nv_lshl_add_u32 v{t+1}, v{t}, 3, v{t+1}\nv_mul_u32_u24 v{t+1}, 192, v{t+1}")
        e(f"v_and_b32 v{t+2}, 1, v1\nv_lshl_add_u32 v{t+1}, v{t+2}, 4, v{t+1}\nv_bfe_u32 v{t+2}, v1, 1, 1\nv_lshl_add_u32 v{t+1}, v{t+2}, 3, v{t+1}")
        e(f"v_bfe_u32 v{t+2}, v1, 4, 1\nv_mul_u32_u24 v{t+3}, 6144, v{t+2}\nv_add_u32 v{t+1}, v{t+1}, v{t+3}")
        e("s_lshr_b32 s11, s3, 1\ns_mul_i32 s11, s11, 3")
        for a in range(3):
            e(f"v_xor_b32 v{t+3}, s11, v{t+2}\nv_lshl_add_u32 v{RA+a}, v{t+3}, 5, v{t+1}\ns_add_u32 s11, s11, 1")
        e(f"s_and_b32 s11, s3, 1\ns_lshl_b32 s11, s11, 12\ns_add_u32 s11, s11, 12288\nv_add_u32 v{RB}, s11, v2")
        e(f"v_and_b32 v{RB+1}, 3, v1\nv_lshlrev_b32 v{RB+1}, 7, v{RB+1}")
    def zero_acc():
        for j in range(96): e(f"v_mov_b32 v{ACC+j}, 0")
    def gu_ssetup():
        e("s_lshr_b32 s38, s3, 1\ns_and_b32 s39, s3, 1\ns_mul_i32 s40, s38, 3")
        srd_from(k, 16, PWS, XN_BYTES, XN_OFF)
        e(f"s_cmp_eq_u32 s38, 0\ns_cselect_b32 s20, s{PWG}, s{PWU}\ns_cselect_b32 s21, s{PWG+1}, s{PWU+1}")
        e(f"s_mov_b32 s22, {hex(NBYTES['wg'])}\ns_mov_b32 s23, 0x20000")
        e("s_mul_i32 s12, s39, 49152\ns_mul_i32 s32, s8, 192\ns_add_u32 s12, s12, s32")
        e(f"s_lshl_b32 s32, s7, 2\ns_add_u32 s32, s32, s3\ns_mul_i32 s13, s32, 40960\ns_lshl_b32 s42, s32, 9\ns_add_u32 s42, s42, {XNF}")
        e("s_mul_i32 s14, s3, 3072\ns_lshl_b32 s15, s3, 11\ns_add_u32 s15, s15, 12288")
    def issueW(sl):
        return [[f"s_add_u32 m0, s14, {sl*SLOT}"],
                [f"buffer_load_dwordx4 v{GW}, s[20:23], s12 offen lds", "s_add_u32 m0, m0, 1024"],
                [f"buffer_load_dwordx4 v{GW+1}, s[20:23], s12 offen lds", "s_add_u32 m0, m0, 1024"],
                [f"buffer_load_dwordx4 v{GW+2}, s[20:23], s12 offen lds", f"s_add_u32 s12, s12, {32*3072}"]]
    def issueX(sl):
        return [[f"s_add_u32 m0, s15, {sl*SLOT}"],
                [f"buffer_load_dwordx4 v2, s[16:19], s13 offen {SC} lds"],
                [f"buffer_load_dwordx4 v2, s[16:19], s13 offen offset:1024 {SC} lds", "s_add_u32 s13, s13, 2048"]]
    xn_poll = [f"buffer_load_dword v16, v{RB+1}, {FL}, s42 offen {SC}"]
    e("s_lshl_b32 s4, s5, 4\ns_lshr_b32 s11, s6, 1\ns_add_u32 s4, s4, s11\ns_and_b32 s11, s6, 1")
    def pre():
        tile_ids(); gu_vsetup(232); gu_vsetup2(232)
    if CPF:
        Lc = k.newlabel("nocp"); Lh = k.newlabel("here")
        e(f"s_cmp_lg_u32 s6, 31\ns_cbranch_scc1 {Lc}")
        e("s_getpc_b64 s[34:35]")
        k.label(Lh)
        e(f"s_sub_u32 s34, s34, {Lh}-{k.name}\ns_subb_u32 s35, s35, 0")
        e(f"v_lshlrev_b32 v9, 7, v0\nv_min_u32 v9, {k.name}_end-{k.name}-4, v9")
        e("global_load_dword v255, v9, s[34:35]")
        k.label(Lc)
    phase0(k)
    pre()
    gu_ssetup()
    e("s_waitcnt vmcnt(2)")
    setflag(k, "s43", 10)
    Lw0 = k.newlabel("w0")
    e(f"s_waitcnt vmcnt(1)\ns_cmp_eq_u32 s3, 0\ns_cbranch_scc1 {Lw0}\ns_waitcnt vmcnt(0)")
    k.label(Lw0)
    e("s_barrier")
    setflag(k, "s75", 10)
    e(f"s_setprio {BP0}\ns_mov_b32 s11, {HUGE}")
    e(f"s_lshl_b32 s41, s2, 7\ns_add_u32 s41, s41, {QF}\nv_mov_b32 v31, 0")
    def go():
        if QH >= 0: spin(k, xn_poll + [f"buffer_load_dword v29, v31, {FL}, s41 offen {SC}"], [16, 29], 17, slp=BSL)
        else: spin(k, xn_poll, [16], 17, slp=BSL)
    if PKE: e("s_lshr_b32 s4, s2, 1\ns_and_b32 s32, s2, 1\ns_lshl_b32 s32, s32, 7\ns_add_u32 s4, s4, s32")
    else: e("s_mov_b32 s4, s2")
    e(f"s_cmp_lt_u32 s4, 136\ns_cbranch_scc1 {Lpk}")
    go()
    for c in range(2): emit(k, issueW(c)); emit(k, issueX(c))
    e(f"s_branch {Lgu}")
    k.label(Lpk)
    PKB = 3*SLOT; PD = 128
    e("s_mul_i32 s33, s3, 320")
    for i in range(5):
        e(f"v_add_u32 v13, {64*i}, v1\nv_add_u32 v13, s33, v13\nv_mul_u32_u24 v{19+i}, 52429, v13\nv_lshrrev_b32 v{19+i}, 22, v{19+i}")
        e(f"v_mul_u32_u24 v14, 80, v{19+i}\nv_sub_u32 v14, v13, v14\nv_lshlrev_b32 v{24+i}, 4, v14")
    def pack_issue(first, lo=0):
        e("s_mul_i32 s32, s4, 241\ns_lshr_b32 s32, s32, 13\ns_mul_i32 s33, s32, 34\ns_sub_u32 s33, s4, s33")
        e("s_mul_i32 s34, s32, 384\ns_lshl_b32 s35, s33, 4\ns_add_u32 s34, s34, s35")
        e("s_sub_u32 s36, s33, 24\ns_sub_u32 s37, s33, 29\ns_cmp_ge_u32 s33, 29\ns_cselect_b32 s36, s37, s36\ns_cselect_b32 s37, 320, 0")
        e("s_mul_i32 s35, s32, 80\ns_add_u32 s35, s35, s37\ns_mul_i32 s37, s36, 20")
        e("s_cmp_eq_u32 s36, 4\ns_cselect_b32 s37, 16, s37\ns_cselect_b32 s43, 16, 0\ns_add_u32 s36, s35, s37")
        for i in range(5):
            e(f"v_lshrrev_b32 v13, 2, v{19+i}\nv_mul_u32_u24 v13, s43, v13\nv_add_u32 v13, v13, v{19+i}\nv_mul_u32_u24 v13, 1280, v13\nv_add_u32 v{3+i}, v13, v{24+i}")
        first()
        e(f"s_cmp_ge_u32 s33, 24\ns_cselect_b32 s34, s36, s34\ns_cselect_b32 s24, s{PWO}, s{PWD}\ns_cselect_b32 s25, s{PWO+1}, s{PWD+1}")
        e(f"s_cselect_b32 s26, {hex(NBYTES['wo'])}, s26\ns_mov_b32 s27, 0x20000\ns_mul_i32 s34, s34, 1280")
        e(f"s_mul_i32 s35, s3, 5120\ns_add_u32 m0, s35, {PKB+lo}")
        for i in range(5):
            e(f"buffer_load_dwordx4 v{3+i}, s[24:27], s34 offen lds")
            if i < 4: e("s_add_u32 m0, m0, 1024")
    def pack_finish(lo=0):
        for c in range(2):
            for a in range(3):
                for u in range(2):
                    ad, off = ("v10", a*64) if a < 2 else ("v11", 0)
                    e(f"ds_read_b64_tr_b16 {vr(PD+12*c+4*a+2*u,2)}, {ad} offset:{lo + c*160 + off + u*5120}")
        e(f"s_mul_i32 s5, s3, {2*136*2560}\ns_mul_i32 s6, s4, 2560\ns_add_u32 s5, s5, s6\ns_add_u32 s6, s5, {136*2560}")
        e("s_waitcnt lgkmcnt(0)")
    e("v_lshrrev_b32 v8, 5, v1\nv_bfe_u32 v9, v1, 2, 2\nv_lshl_add_u32 v9, v8, 3, v9\nv_mul_u32_u24 v9, 1280, v9")
    e(f"s_mul_i32 s32, s3, 320\ns_add_u32 s32, s32, {PKB}\nv_add_u32 v9, s32, v9")
    e("v_and_b32 v16, 1, v1\nv_bfe_u32 v17, v1, 1, 1\nv_bfe_u32 v18, v1, 4, 1")
    e("v_lshl_add_u32 v10, v16, 5, v9\nv_lshl_add_u32 v10, v17, 3, v10\nv_lshl_add_u32 v10, v18, 4, v10")
    e("v_lshl_add_u32 v11, v16, 4, v9\nv_lshl_add_u32 v11, v17, 3, v11\nv_add_u32 v11, 128, v11\nv_lshl_add_u32 v11, v18, 18, v11")
    e("v_and_b32 v12, 15, v1\nv_lshlrev_b32 v12, 4, v12\nv_lshl_add_u32 v12, v8, 8, v12\nv_lshl_add_u32 v12, v18, 30, v12")
    e(f"s_lshl_b32 s75, s4, 2\ns_add_u32 s75, s75, {PKF}")
    e(f"s_mov_b32 s26, {hex(NBYTES['wd'])}")
    pack_issue(go)
    for c in range(2): emit(k, issueW(c)); emit(k, issueX(c))
    e("s_waitcnt vmcnt(10)\ns_barrier")
    pack_finish()
    k.label(Lgu)
    bstamp(k, "p0")
    srd_from(k, 28, PWS, AF_BYTES, AF_OFF)
    def reads(fs, sl, ks):
        L = [f"ds_read_b128 {vr(FR[fs]+12,4)}, v{RB} offset:{sl*SLOT + ks*1024}"]
        for a in range(3):
            for u in range(2):
                L.append(f"ds_read_b64_tr_b16 {vr(FR[fs]+4*a+2*u,2)}, v{RA+a} offset:{sl*SLOT + (16*ks+4*u)*192}")
            if a == 0: L.append(f"ds_read_b128 {vr(FR[fs]+16,4)}, v{RB} offset:{sl*SLOT + 2048 + ks*1024}")
        return L
    def mfmas(fs, c0=False):
        return [f"{MF} {vr(ACC+16*(2*a+b),16)}, {vr(FR[fs]+4*a,4)}, {vr(FR[fs]+12+4*b,4)}, {'0' if c0 else vr(ACC+16*(2*a+b),16)}" for a in range(3) for b in range(2)]
    e("s_mov_b32 s42, 0\nv_min_u32 v4, 33, v1\nv_lshlrev_b32 v4, 4, v4")
    e("s_waitcnt vmcnt(5)\ns_barrier")
    e(f"s_setprio {GP0}")
    bstamp(k, "gu0")
    if ONLY == "A":
        e("s_waitcnt vmcnt(0)"); stamp_dump(k, 0, 6, "s2", PWS); e("s_endpgm")
    emit(k, reads(0, 0, 0))
    srd_from(k, 24, PWS, WP_BYTES, WP_OFF)
    e(f"s_mul_i32 s11, s10, {4*34*2560}\ns_mul_i32 s43, s3, 5120\ns_add_u32 s11, s11, s43\ns_mov_b32 s35, {HUGE}")
    st_loads = [f"buffer_load_dwordx4 v[16:19], v4, {FL}, s36 offen {SC}"]
    def issueP(sl):
        L = [[f"s_add_u32 m0, s43, {sl*SLOT}", "s_add_u32 s33, s11, 4096"]]
        for i in range(4): L.append([f"buffer_load_dwordx4 v2, s[24:27], s11 offen offset:{i*1024} {SC} lds"])
        L[4].append("s_add_u32 m0, m0, 4096")
        L.append([f"buffer_load_dwordx4 v2, s[24:27], s33 offen {SC} lds", f"s_add_u32 s11, s11, {34*2560}"])
        return L
    L = k.newlabel("gu")
    def trip(last):
        for sl in range(4):
            e("s_waitcnt lgkmcnt(0)")
            rd = reads(1, sl, 1); mf = mfmas(0)
            sh = [rd[0:2], rd[2:4], rd[4:6], rd[6:8], [], []]
            if not last and sl == 1: sh[4] = ["s_cmp_eq_u32 s42, 3", f"s_cselect_b32 s36, {PKF}, s35"] + st_loads
            for i in range(6):
                e(mf[i]); emit(k, sh[i])
            if sl == 0 and not last:
                Ls = k.newlabel("nps")
                e(f"s_cmp_ge_u32 s4, 136\ns_cbranch_scc1 {Ls}\ns_cmp_lg_u32 s42, 1\ns_cbranch_scc1 {Ls}")
                for c in range(2):
                    for a in range(3):
                        e(f"buffer_store_dwordx4 {vr(PD+12*c+4*a,4)}, {'v2' if a < 2 else 'v12'}, s[24:27], s{5+c} offen offset:{a*1024} {SC}")
                k.label(Ls)
            if sl == 1 and not last:
                Ls = k.newlabel("npf")
                e(f"s_cmp_ge_u32 s4, 136\ns_cbranch_scc1 {Ls}\ns_cmp_lg_u32 s42, 2\ns_cbranch_scc1 {Ls}")
                setflag(k, "s75", 10)
                k.label(Ls)
            if sl == 2 and GSW >= 0 and not last:
                Lt = k.newlabel("gsw")
                e(f"s_cmp_lg_u32 s42, {GSW}\ns_cbranch_scc1 {Lt}\ns_setprio {GP1}")
                k.label(Lt)
            if sl == 0 and not last: k.label(Lgm)
            e("s_waitcnt vmcnt(10) lgkmcnt(0)\ns_barrier")
            rd = reads(0, (sl+1) % 4, 0) if not (last and sl == 3) else [[]]*8
            mf = mfmas(1)
            if not last:
                iw = issueW(sl); ix = issueX(sl)
                sh = [rd[0:2] + iw[0], rd[2:4] + iw[1], rd[4:6] + iw[2], rd[6:8] + iw[3] + ix[0], ix[1], ix[2]]
                if sl == 3: sh[5] = sh[5] + ["s_add_u32 s42, s42, 1", "s_cmp_lt_u32 s42, 4"]
            else:
                ip = issueP(sl)
                sh = [rd[0:2] + ip[0], rd[2:4] + ip[1], rd[4:6] + ip[2], rd[6:8] + ip[3], ip[4], ip[5]]
            for i in range(6):
                e(mf[i]); emit(k, sh[i])
    Lgm = k.newlabel("gum")
    dq = issueW(2) + issueX(2) + issueW(3) + issueX(3)
    emit(k, dq[:4]); dq = dq[4:]
    e("s_waitcnt lgkmcnt(0)")
    rd = reads(1, 0, 1); mf = mfmas(0, True)
    for i in range(6):
        e(mf[i]); emit(k, rd[2*i:2*i+2]); emit(k, dq[:2]); dq = dq[2:]
    emit(k, dq)
    e(f"s_branch {Lgm}")
    k.label(L, 6)
    trip(False)
    e(f"s_cbranch_scc1 {L}")
    Lok = k.newlabel("pkok")
    e(f"s_setprio 2\nv_xor_b32 v20, {TAG}, v16")
    for r in (17, 18, 19): e(f"v_xor_b32 v{r}, {TAG}, v{r}\nv_or_b32 v20, v20, v{r}")
    e(f"v_cmp_ne_u32 vcc, 0, v20\ns_cmp_eq_u64 vcc, 0\ns_cbranch_scc1 {Lok}")
    spin(k, st_loads, [16, 17, 18, 19], 20)
    k.label(Lok)
    e(f"s_setprio {GP0}")
    trip(True)
    e("s_setprio 2")
    e("v_lshrrev_b32 v8, 5, v1")
    e(f"s_mul_i32 s14, s3, {SLOT}")
    srd_from(k, 20, PWS, WP_BYTES, WP_OFF)
    srd_from(k, 16, PX, NBYTES['x'])
    e(f"s_lshl_b32 s12, s10, 2\ns_add_u32 s12, s12, s3\ns_mul_i32 s12, s12, {34*2560}\ns_add_u32 s12, s12, {4*5120}")
    e(f"s_lshl_b32 s32, s7, 1\ns_add_u32 s32, s32, s39\ns_mul_i32 s32, s32, 272\ns_mul_i32 s43, s8, 6\ns_add_u32 s32, s32, s43\ns_add_u32 s32, s32, s40\ns_add_u32 s32, s32, 40\ns_lshl_b32 s32, s32, 10")
    e(f"s_add_u32 s34, s32, {136*1024}\ns_mov_b32 s33, {hex(f32bits(LOG2E*LOG2E))}")
    e("s_waitcnt lgkmcnt(0)")
    bstamp(k, "gu1")
    def issueW2(sl):
        L = [[f"s_add_u32 m0, s14, {sl*5120}", "s_add_u32 s33, s12, 4096"]]
        for i in range(4): L.append([f"buffer_load_dwordx4 v2, s[20:23], s12 offen offset:{i*1024} {SC} lds"])
        L[4].append("s_add_u32 m0, m0, 4096")
        L.append([f"buffer_load_dwordx4 v2, s[20:23], s33 offen {SC} lds", "s_add_u32 s12, s12, 5120"])
        return L
    T = 176
    if PKS: e("v_mov_b32 v184, s33\nv_mov_b32 v185, s33")
    for a in range(3):
        for b in range(2):
            g = ACC + 16*(2*a+b); u = g + 8
            for j in range(8): e(f"v_exp_f32 v{T+j}, -v{g+j}")
            if PKS:
                for j in range(0, 8, 2): e(f"v_pk_mul_f32 {vr(g+j,2)}, {vr(g+j,2)}, {vr(u+j,2)}")
                for j in range(0, 8, 2): e(f"v_pk_fma_f32 {vr(T+j,2)}, {vr(T+j,2)}, v[184:185], v[184:185]")
            else:
                for j in range(8): e(f"v_mul_f32 v{g+j}, v{g+j}, v{u+j}")
                for j in range(8): e(f"v_fma_f32 v{T+j}, v{T+j}, s33, s33")
            for j in range(8): e(f"v_rcp_f32 v{T+j}, v{T+j}")
            if PKS:
                for j in range(0, 8, 2): e(f"v_pk_mul_f32 {vr(g+j,2)}, {vr(g+j,2)}, {vr(T+j,2)}")
            else:
                for j in range(8): e(f"v_mul_f32 v{g+j}, v{g+j}, v{T+j}")
            for j in range(4): e(f"v_cvt_pk_bf16_f32 v{u+j}, v{g+2*j}, v{g+2*j+1}")
            e(f"buffer_store_dwordx4 {vr(u,4)}, v2, s[28:31], {'s34' if b else 's32'} offen offset:{a*1024} {SC}")
    wq_ = []
    assert not wq_
    e("v_add_u32 v10, s14, v2\nv_and_b32 v11, 15, v1\nv_lshlrev_b32 v11, 4, v11\nv_lshl_add_u32 v11, v8, 8, v11\nv_bfe_u32 v9, v1, 4, 1")
    e("v_lshl_add_u32 v7, v9, 30, v11\nv_lshl_add_u32 v11, v9, 18, v11\nv_add_u32 v11, s14, v11")
    e(f"s_lshl_b32 s35, s7, 4\ns_add_u32 s36, s35, s8\ns_lshl_b32 s36, s36, 7\ns_add_u32 s36, s36, {HF}")
    e(f"s_mul_i32 s24, s9, {272*1024}\ns_mul_i32 s32, s3, {24*1024}\ns_add_u32 s26, s24, s32\ns_add_u32 s26, s26, {40*1024}\ns_add_u32 s27, s26, {136*1024}")
    e("v_and_b32 v14, 3, v1\nv_lshlrev_b32 v14, 7, v14\nv_and_b32 v6, 1, v1\nv_lshlrev_b32 v6, 7, v6")
    if WF: e("v_bfe_u32 v5, v1, 1, 2\nv_lshl_add_u32 v6, v5, 2, v6")
    e(f"s_lshl_b32 s32, s3, 2\ns_add_u32 s32, s32, s35\ns_lshl_b32 s32, s32, 7\ns_add_u32 s32, s32, {HF}")
    e("s_lshr_b32 s40, s3, 1\ns_and_b32 s41, s3, 1")
    e("s_lshl_b32 s34, s9, 1\ns_add_u32 s34, s34, s40\ns_mul_i32 s34, s34, 40960\ns_mul_i32 s33, s10, 160\ns_add_u32 s43, s34, s33")
    e("v_and_b32 v5, 31, v1\nv_mul_u32_u24 v5, 1280, v5")
    e("s_lshl_b32 s34, s41, 6\nv_lshl_add_u32 v12, v8, 5, v5\nv_add_u32 v12, s34, v12")
    e("s_lshl_b32 s34, s41, 3\ns_add_u32 s34, s34, 128\nv_lshl_add_u32 v13, v8, 4, v5\nv_add_u32 v13, s34, v13")
    e("s_mul_i32 s34, s40, 10240\ns_lshl_b32 s33, s41, 12\ns_add_u32 s33, s33, s34\nv_add_u32 v15, s33, v2")
    e("s_lshl_b32 s33, s41, 10\ns_add_u32 s33, s33, s34\ns_add_u32 s33, s33, 8192\nv_add_u32 v3, s33, v2")
    e(f"s_lshl_b32 s25, s9, 3\ns_add_u32 s25, s25, s3\ns_lshl_b32 s25, s25, 7\ns_add_u32 s25, s25, {OF}\nv_mov_b32 v6, 0")
    e(f"s_mul_i32 s33, s3, {10*1024}\ns_add_u32 s24, s24, s33")
    e("s_waitcnt vmcnt(0)\ns_barrier")
    setflag(k, "s36", 16, "B")
    hl = [f"buffer_load_dword v16, v14, {FL}, s32 offen {SC}"]
    XS = 232; G4 = [20, 244]
    e(f"s_add_u32 s34, s12, {24*2560}\ns_add_u32 s35, s12, {25*2560}")
    srd_from(k, 36, POUT, NBYTES['out'])
    if SENT and ONLY != "B":
        spin(k, hl + [f"buffer_load_dword v18, v6, {FL}, s25 offen {SC}", f"buffer_load_dword v19, v6, {FL}, s25 offen offset:512 {SC}"], [16, 18, 19], 17)
    else: spin(k, hl, [16], 17)
    e(f"s_setprio {TP}")
    XR = 128; FA = [208, 220]
    def issueX2(rs):
        L = []
        for ks in range(2):
            for b in range(2):
                L.append([f"buffer_load_dwordx4 {vr(XR+16*rs+8*ks+4*b,4)}, v2, s[28:31], s{26+b} offen offset:{ks*1024} {SC}"])
        L[3] += ["s_add_u32 s26, s26, 2048", "s_add_u32 s27, s27, 2048"]
        return L
    for g in range(4): emit(k, issueX2(g))
    def reads2(fs, sl, ks):
        return [f"ds_read_b128 {vr(FA[fs]+4*a,4)}, {'v10' if a < 2 else 'v11'} offset:{sl*5120 + ks*2560 + a*1024}" for a in range(3)]
    def mfmas2(fs, rs, ks, c0=False):
        return [f"{MF} {vr(ACC+16*(3*b+a),16)}, {vr(FA[fs]+4*a,4)}, {vr(XR+16*rs+8*ks+4*b,4)}, {'0' if c0 else vr(ACC+16*(3*b+a),16)}" for a in range(3) for b in range(2)]
    e(f"s_mov_b32 s42, 0\ns_setprio {DP}")
    emit(k, reads2(0, 0, 0))
    e("s_waitcnt vmcnt(14) lgkmcnt(0)")
    bstamp(k, "dn0")
    L = k.newlabel("dn"); Lm = k.newlabel("dnm")
    rd = reads2(1, 0, 1); mf = mfmas2(0, 0, 0, True)
    for i in range(6):
        e(mf[i]); emit(k, rd[i:i+1])
    e("s_waitcnt vmcnt(0)")
    for ks in range(2):
        for a in range(3):
            e(f"buffer_load_dwordx4 {vr(G4[ks]+4*a,4)}, {'v2' if a < 2 else 'v7'}, s[20:23], s{34+ks} offen offset:{a*1024} {SC}")
    e(f"buffer_load_dwordx4 {vr(XS,4)}, v12, s[16:19], s43 offen")
    e(f"buffer_load_dwordx4 {vr(XS+4,4)}, v12, s[16:19], s43 offen offset:16")
    e(f"buffer_load_dwordx2 {vr(XS+8,2)}, v13, s[16:19], s43 offen")
    e(f"s_branch {Lm}")
    k.label(L, 6)
    for sl in range(4):
        e("s_waitcnt lgkmcnt(0)")
        rd = reads2(1, sl, 1); mf = mfmas2(0, sl, 0)
        sh = [rd[0:1], rd[1:2], rd[2:3], [], [], []]
        if sl == 0: sh[3] = ["s_cmp_eq_u32 s42, 2", f"s_cselect_b32 s26, {HUGE}, s26", f"s_cselect_b32 s27, {HUGE}, s27"]
        for i in range(6):
            e(mf[i]); emit(k, sh[i])
        if sl == 0: k.label(Lm)
        e("s_waitcnt vmcnt(18) lgkmcnt(0)")
        rd = reads2(0, (sl+1) % 4, 0); mf = mfmas2(1, sl, 1)
        iw = issueW2(sl); ix = issueX2(sl)
        sh = [rd[0:1] + iw[0], rd[1:2] + iw[1], rd[2:3] + iw[2], iw[3] + iw[4], iw[5], ix[0] + ix[1] + ix[2] + ix[3]]
        if sl == 3: sh[5] = sh[5] + ["s_add_u32 s42, s42, 1", "s_cmp_lt_u32 s42, 3"]
        for i in range(6):
            e(mf[i]); emit(k, sh[i])
    e(f"s_cbranch_scc1 {L}")
    e("s_setprio 2")
    emit(k, reads2(1, 0, 1))
    bstamp(k, "dn1")
    def oload(b, t):
        return [f"s_add_u32 s26, s24, {b*136*1024 + t*1024}", f"buffer_load_dwordx4 {vr(XR+40*b+4*t,4)}, v2, s[28:31], s26 offen {SC}"]
    f2 = [f"buffer_load_dword v18, v6, {FL}, s25 offen offset:512 {SC}"]
    def early_loads():
        for t in range(5):
            for b in range(2): emit(k, oload(b, t))
    if not SENT:
        if ONLY != "B": spin(k, [f"buffer_load_dword v16, v6, {FL}, s25 offen {SC}"] + f2, [16], 17)
        else: e(f"s_waitcnt vmcnt(0)\nv_mov_b32 v18, {TAG}")
        early_loads()
    seq = [(t, (0, 1)) for t in range(5)] + [(t, (0,)) for t in range(5, 10)] + [(t, (1,)) for t in range(5, 10)]
    lsteps = [t for t, _ in seq if t < 8]
    wr = [f"ds_write_b128 v10, {vr(ACC+4*q,4)} offset:{q*1024}" for q in range(10)]
    def late_loads():
        for b in range(2):
            for t2 in range(5, 10): emit(k, oload(b, t2))
    def steps(us, lds, n, younger):
        for u in us:
            t, bs = seq[u]
            vm = (8 - 2*u + younger) if u < 5 else (14 - u)
            if t < 8:
                last = max([i for i, x in enumerate(lds) if x == f"n{n}"], default=-1)
                lds = lds[last+1:]
                e(f"s_waitcnt vmcnt({vm}) lgkmcnt({min(15, len(lds))})")
                F = FA[n & 1]
            else:
                e(f"s_waitcnt vmcnt({vm})")
                F = G4[t-8]
            for a in range(3):
                for b in bs:
                    e(f"{MF} {vr(ACC+16*(3*b+a),16)}, {vr(F+4*a,4)}, {vr(XR+40*b+4*t,4)}, {vr(ACC+16*(3*b+a),16)}")
                    if u >= 11 and wr:
                        e(wr.pop(0)); lds.append("w")
            if t < 8:
                if n + 2 < len(lsteps):
                    t2 = lsteps[n+2]
                    emit(k, reads2(n & 1, t2 >> 1, t2 & 1)); lds += [f"n{n+2}"]*3
                n += 1
        return lds, n
    if not SENT:
        Lb, Lj = k.newlabel("both"), k.newlabel("join")
        e(f"v_cmp_ne_u32 vcc, {TAG}, v18\ns_cmp_eq_u64 vcc, 0\ns_cbranch_scc1 {Lb}")
        emit(k, f2)
        steps(range(5), ["n0"]*3 + ["n1"]*3, 0, 1)
        spin(k, f2, [18], 17, pre_issued=True)
        late_loads()
        e(f"s_branch {Lj}")
        k.label(Lb)
        late_loads()
        lds, n = steps(range(5), ["n0"]*3 + ["n1"]*3, 0, 10)
        k.label(Lj)
        bstamp(k, "of")
        steps(range(5, 15), lds, n, 0)
    else:
        def dpoll(loads, t0, first_wait):
            Lp, Lc, Ld = k.newlabel("dp"), k.newlabel("dc"), k.newlabel("dd")
            e(f"s_waitcnt vmcnt({first_wait})\ns_branch {Lc}")
            k.label(Lp)
            loads()
            e("s_waitcnt vmcnt(0)")
            k.label(Lc)
            for b in range(2):
                r = XR + 40*b + 4*t0
                e(f"v_max_u32 v{16+b}, v{r}, v{r+1}")
                for j in range(2, 20, 2): e(f"v_max3_u32 v{16+b}, v{16+b}, v{r+j}, v{r+j+1}")
            e(f"v_max_u32 v16, v16, v17\nv_cmp_eq_u32 vcc, -1, v16\ns_cmp_eq_u64 vcc, 0\ns_cbranch_scc1 {Ld}")
            e(f"s_cmp_eq_u32 {BUD}, 0\ns_cbranch_scc1 {Ld}\ns_sub_u32 {BUD}, {BUD}, 1\ns_branch {Lp}")
            k.label(Ld)
        early_loads(); late_loads()
        dpoll(early_loads, 0, 10)
        lds, n = steps(range(5), ["n0"]*3 + ["n1"]*3, 0, 50)
        dpoll(late_loads, 5, 0)
        bstamp(k, "of")
        steps(range(5, 15), lds, n, 0)
    assert not wr
    bstamp(k, "mm")
    for q in range(10):
        e(f"ds_write_b128 v10, {vr(ACC+48+4*q,4)} offset:{(10+q)*1024}")
    e("s_waitcnt lgkmcnt(0)\ns_barrier")
    R = 128
    for w in range(4):
        for q in range(4):
            e(f"ds_read_b128 {vr(R+20*w+4*q,4)}, v15 offset:{w*SLOT + q*1024}")
        e(f"ds_read_b128 {vr(R+20*w+16,4)}, v3 offset:{w*SLOT}")
    for j in range(10):
        e(f"v_lshlrev_b32 v{ACC+2*j}, 16, v{XS+j}\nv_and_b32 v{ACC+2*j+1}, 0xffff0000, v{XS+j}")
    for w in range(4):
        e(f"s_waitcnt lgkmcnt({15-5*w})")
        for j in range(0, 20, 2):
            e(f"v_pk_add_f32 {vr(ACC+j,2)}, {vr(ACC+j,2)}, {vr(R+20*w+j,2)}")
    for j in range(10):
        e(f"v_cvt_pk_bf16_f32 v{XS+j}, v{ACC+2*j}, v{ACC+2*j+1}")
    bstamp(k, "rd")
    e(f"buffer_store_dwordx4 {vr(XS,4)}, v12, s[36:39], s43 offen {OM}")
    e(f"buffer_store_dwordx4 {vr(XS+4,4)}, v12, s[36:39], s43 offen offset:16 {OM}")
    e(f"buffer_store_dwordx2 {vr(XS+8,2)}, v13, s[36:39], s43 offen {OM}")
    stamp_dump(k, 0, 9, "s2", PWS)
    e("s_endpgm")

def w160_voffs(k, dst, t):
    e = k.e
    for i in range(5):
        e(f"v_add_u32 v{t}, {64*i}, v1\nv_mul_u32_u24 v{t+1}, 6554, v{t}\nv_lshrrev_b32 v{t+1}, 16, v{t+1}")
        e(f"v_mul_u32_u24 v{t+2}, 10, v{t+1}\nv_sub_u32 v{t+2}, v{t}, v{t+2}")
        e(f"v_and_b32 v{t}, 24, v{t+1}\nv_bfe_u32 v{t+3}, v{t+1}, 1, 2\nv_add_u32 v{t}, v{t}, v{t+3}\nv_and_b32 v{t+3}, 1, v{t+1}\nv_lshl_add_u32 v{t}, v{t+3}, 2, v{t}")
        e(f"v_mul_u32_u24 v{t}, 1280, v{t}\nv_lshl_add_u32 v{dst+i}, v{t+2}, 4, v{t}")

def roleA(k, mid):
    e = k.e
    AST = env("AST", 0)
    import common
    def stamp(k, i, q=False):
        if AST and not q and 2 < i < 7: return
        if q and not AST: return
        common.stamp(k, i)
    KVSLOT = 24576; KV0 = 8192
    QS = 20480; QX = 10240
    S0, S1 = 32, 48; SA = 64
    Q = [16, 24]; O = [144, 160]; P = [96, 104]; KVB = [112, 128]; KT = 176
    KL = lambda s: KVB[s]; KH = lambda s: KVB[s]+4; V0 = lambda s: KVB[s]+8; V1 = lambda s: KVB[s]+12
    AKL, AKH, AV, BKH, BV = 8, 9, 10, 11, 12
    WV = 16; XV = 21; RB = 24; ONES = 28
    FRG = 80
    AO2 = 241; RB2 = 224
    stamp(k, 0)
    e("s_bfe_u32 s8, s2, 0x20001\ns_lshl_b32 s8, s8, 3\ns_lshr_b32 s9, s2, 5\ns_add_u32 s8, s8, s9")
    e("s_and_b32 s9, s2, 1\ns_lshl_b32 s9, s9, 2\ns_bfe_u32 s32, s2, 0x20003\ns_add_u32 s9, s9, s32")
    e("s_add_u32 s11, s8, s9\ns_mul_i32 s11, s11, 3\ns_mul_i32 s32, s11, 205\ns_lshr_b32 s32, s32, 11\ns_mul_i32 s32, s32, 10\ns_sub_u32 s11, s11, s32")
    if ROT == 0: e("s_mov_b32 s11, 0")
    if ROT == 2: e("s_and_b32 s11, s11, 1")
    if ROT == 3: e("s_bfe_u32 s11, s2, 0x20001\ns_lshl_b32 s11, s11, 1")
    x_voffs(k, XV, 3)
    w160_voffs(k, WV, 3)
    def essential():
        e("v_lshrrev_b32 v6, 5, v1")
        e("v_bfe_u32 v7, v1, 2, 2\nv_lshl_add_u32 v7, v6, 2, v7\nv_mul_u32_u24 v4, 320, v7")
        e("v_and_b32 v7, 1, v1\nv_lshlrev_b32 v7, 4, v7")
        e("v_bfe_u32 v8, v1, 1, 1\nv_lshl_add_u32 v7, v8, 3, v7")
        e("v_and_b32 v8, 16, v1\nv_cmp_ne_u32 vcc, 0, v8\nv_mov_b32 v8, 32\nv_cndmask_b32 v7, v7, v8, vcc")
        e("v_add_u32 v4, v4, v7\ns_mul_i32 s32, s3, 40\nv_add_u32 v4, s32, v4")
        e("v_and_b32 v8, 19, v1\nv_cmp_lt_u32 vcc, 16, v8\nv_mov_b32 v8, 0x40000\nv_cndmask_b32 v4, v4, v8, vcc")
        e("v_add_u32 v5, 40960, v4")
        x_raddr(k, RB, 7, str(QX))
        for j in range(4): e(f"v_mov_b32 v{ONES+j}, 0x3f803f80")
        for j in range(4): e(f"v_add_u32 v{RB2+j}, 40960, v{RB+j}")
    if ADLY == 3: essential()
    Lw = k.newlabel("wrole")
    e(f"s_mul_i32 s12, s3, 40960\ns_mul_i32 s32, s9, 160\ns_add_u32 s12, s12, s32\ns_mov_b32 s13, {64*1280}")
    e("s_waitcnt lgkmcnt(0)")
    srd_from(k, 20, PWQ, NBYTES['wq'])
    e(f"s_mov_b64 s[18:19], -1\ns_cmp_lt_u32 s3, 2\ns_cbranch_scc1 {Lw}\ns_mov_b64 s[18:19], 1")
    for i in range(4): e(f"v_add_u32 v{WV+i}, {10240*i}, v{XV+(i&1)}")
    e(f"v_mov_b32 v{WV+4}, {HUGE}")
    e("s_lshl_b32 s33, s8, 1\ns_add_u32 s33, s33, s3\ns_sub_u32 s33, s33, 2\ns_mul_i32 s12, s33, 40960\ns_mov_b32 s13, 128")
    srd_from(k, 20, PX, NBYTES['x'])
    k.label(Lw)
    e("s_mul_i32 s34, s11, s13\ns_add_u32 s34, s34, s12\ns_mul_i32 s35, s13, 10\ns_add_u32 s35, s35, s12\ns_mul_i32 s14, s3, 5120")
    def st_issue(slot):
        L = [[f"s_add_u32 m0, s14, {slot*QS}"]]
        for i in range(5):
            g = [f"buffer_load_dwordx4 v{WV+i}, s[20:23], s34 offen lds"]
            if i < 4: g += ["s_add_u32 m0, m0, 1024"]
            else: g = ["s_mov_b64 exec, s[18:19]"] + g + ["s_mov_b64 exec, -1", "s_add_u32 s34, s34, s13", "s_cmp_eq_u32 s34, s35", "s_cselect_b32 s34, s12, s34"]
            L.append(g)
        return L
    if ADLY == 0: emit(k, st_issue(0))
    if ADLY == 3:
        emit(k, st_issue(0)); tag_setup(k); emit(k, st_issue(1))
    mid()
    mark = len(k.items)
    if ADLY != 3: tag_setup(k)
    srd_from(k, 24, PWS, KV_BYTES, KV_OFF)
    srd_from(k, 28, PWS, AF_BYTES, AF_OFF)
    if ADLY != 3: essential()
    e(f"v_and_b32 v7, 31, v1\nv_lshlrev_b32 v{BKH}, 3, v7\nv_add_u32 v{BKH}, 1024, v{BKH}\nv_lshl_add_u32 v{BKH}, v6, 18, v{BKH}")
    e("v_and_b32 v13, 19, v7\nv_bfe_u32 v14, v7, 2, 1\nv_lshl_add_u32 v13, v14, 3, v13\nv_bfe_u32 v14, v7, 3, 1\nv_lshl_add_u32 v13, v14, 2, v13")
    e(f"v_mul_u32_u24 v{BV}, 24, v6\nv_add_u32 v{BV}, v{BV}, v13")
    e("v_cmp_le_u32 vcc, 28, v7\nv_cndmask_b32 v13, 0, 1, vcc\nv_xor_b32 v13, v13, v6\nv_mul_u32_u24 v13, 24, v13\nv_add_u32 v13, 20, v13")
    e("v_and_b32 v15, 27, v7\nv_cmp_ne_u32 vcc, 24, v15\nv_mov_b32 v15, 0x4000\nv_cndmask_b32 v13, v13, v15, vcc")
    e(f"v_cmp_le_u32 vcc, 20, v7\nv_cndmask_b32 v{BV}, v{BV}, v13, vcc")
    e(f"v_lshlrev_b32 v{BV}, 4, v{BV}\nv_add_u32 v{BV}, 1536, v{BV}")
    c0 = KV0 + 2*KVSLOT
    e(f"v_add_u32 v{AKL}, {c0}, v2\nv_add_u32 v{AKH}, {c0}, v{BKH}\nv_add_u32 v{AV}, {c0}, v{BV}")
    e(f"s_lshr_b32 s32, s3, 1\ns_lshl_b32 s32, s32, 9\ns_and_b32 s33, s3, 1\ns_lshl_b32 s33, s33, 3\ns_add_u32 s32, s32, s33")
    e(f"v_lshl_add_u32 v{AO2}, v7, 4, s32\nv_lshl_add_u32 v{AO2}, v6, 30, v{AO2}")
    e(f"v_lshlrev_b32 v13, {KVS}, v1\nv_lshlrev_b32 v14, 3, v7")
    e(f"s_lshl_b32 s39, s8, 9\ns_add_u32 s39, s39, {STAT}\ns_lshl_b32 s38, s3, {KVS+6}\ns_add_u32 s38, s38, {KVF}\ns_mul_i32 s36, s3, 6144")
    for t in range(4): e(f"v_mov_b32 v{KT+8*t+6}, 0\nv_mov_b32 v{KT+8*t+7}, 0")
    if ADLY == 0:
        setup = k.items[mark:]; del k.items[mark:]
        groups = st_issue(1) + st_issue(2) + st_issue(3)
        per = -(-len(setup) // len(groups))
        for g in groups:
            take = per
            while take < len(setup) and setup[take].op.startswith(("s_addc", "s_cselect")): take += 1
            k.items += setup[:take]; setup = setup[take:]
            emit(k, g)
        k.items += setup
    late = []
    if ADLY == 3:
        late = k.items[mark:]; del k.items[mark:]
    if ADLY == 2: tag_finish(k)
    if ADLY in (1, 2):
        for sl in range(2): emit(k, st_issue(sl))
    if ADLY != 2: tag_finish(k)
    stamp(k, 1)
    def kv_issue(chunk_soff, slot_base):
        L = []
        for half in range(2):
            L.append([f"s_add_u32 m0, s36, {slot_base + half*3072}", f"s_add_u32 s32, s36, {chunk_soff + half*3072}"])
            for j in range(3):
                L.append([f"buffer_load_dwordx4 v2, s[24:27], s32 offen offset:{j*1024} {SC} lds"])
        return L
    PL = 232
    kv_poll = [f"buffer_load_dword v{PL}, v13, {FL}, s38 offen {SC}"]
    pl_loads = [f"buffer_load_dwordx2 {vr(PL+2,2)}, v14, {FL}, s39 offen {SC}", f"buffer_load_dwordx2 {vr(PL+4,2)}, v14, {FL}, s39 offen offset:256 {SC}"]
    inits = []
    for j in range(8): inits += [(P[1]+j, "0"), (V0(1)+j, "0")]
    for s_ in range(2): inits += [(KH(s_)+2, "0x3f80"), (KH(s_)+3, "0")]
    for j in range(32): inits += [(O[0]+j, "0")]
    inits.sort()
    def hreads(h):
        sl = h % 4; F = FRG + 48*(h & 1); L = []
        so = (sl & 1) * QS; ta = "v5" if sl >= 2 else "v4"; rb = RB2 if sl >= 2 else RB
        for ks in range(4):
            for u in range(2): L.append(f"ds_read_b64_tr_b16 {vr(F+12*ks+2*u,2)}, {ta} offset:{so + ks*2560 + u*160}")
            for b in range(2): L.append(f"ds_read_b128 {vr(F+12*ks+4+4*b,4)}, v{rb+ks} offset:{so + b*5120}")
        return L
    e(f"s_waitcnt vmcnt({5 if ADLY else 15})\ns_barrier")
    stamp(k, 2)
    emit(k, hreads(0))
    if ADLY: emit(k, st_issue(2))
    kt_loads = [["s_mov_b32 s33, 6144"]]
    for t in range(4):
        so, off = ("0", t*3072) if t < 2 else ("s33", (t-2)*3072)
        kt_loads.append([f"buffer_load_dwordx4 {vr(KT+8*t,4)}, v2, s[24:27], {so} offen offset:{off} {SC}",
                         f"buffer_load_dwordx2 {vr(KT+8*t+4,2)}, v{BKH}, s[24:27], {so} offen offset:{off} {SC}"])
    mark2 = len(k.items)
    for b in range(2):
        st = PL + 2 + 2*b
        e(f"v_lshlrev_b32 v{238+b}, 16, v{st}\nv_xor_b32 v{238+b}, 0x80000000, v{238+b}\nv_and_b32 v{st}, 0xffff0000, v{st}")
        e(f"v_rcp_f32 v{st}, v{st}\nv_mul_f32 v{st}, {hex(f32bits(QSCALE))}, v{st}")
    e(f"s_mov_b32 s40, 0\ns_mov_b32 s41, {KV0}\ns_add_u32 s35, s36, {KV0}\ns_add_u32 s42, s35, {KVSLOT}\ns_add_u32 s43, s36, {2*KVSLOT}\ns_add_u32 s39, s35, {3*KVSLOT}")
    e("s_and_b32 s32, s9, 3\ns_mul_i32 s32, s32, 10\ns_mul_i32 s33, s8, 272\ns_add_u32 s32, s32, s33\ns_lshr_b32 s33, s9, 2\ns_mul_i32 s33, s33, 5\ns_add_u32 s32, s32, s33")
    e("s_add_u32 s16, s32, 4\ns_lshl_b32 s16, s16, 10\ns_add_u32 s12, s32, s3\ns_lshl_b32 s12, s12, 10")
    e(f"s_add_u32 s13, s12, {136*1024}\ns_add_u32 s17, s16, {136*1024}")
    e(f"s_lshl_b32 s14, s8, 3\ns_add_u32 s14, s14, s9\ns_lshl_b32 s14, s14, 7\ns_add_u32 s14, s14, {OF}")
    fill = k.items[mark2:]; del k.items[mark2:]
    first_reads = []
    for t in range(4): first_reads += [f"ds_read_b128 {vr(KT+8*t,4)}, v{AKL} offset:{t*3072}", f"ds_read_b64 {vr(KT+8*t+4,2)}, v{AKH} offset:{t*3072}"]
    first_reads += [f"ds_read_b128 {vr(V0(0),4)}, v{AV}", f"ds_read_b128 {vr(V1(0),4)}, v{AV} offset:768"]
    for s_ in range(2): first_reads += [f"ds_read_b128 {vr(KL(s_),4)}, v{AKL} offset:{s_*3072}", f"ds_read_b64 {vr(KH(s_),2)}, v{AKH} offset:{s_*3072}"]
    for h in range(10):
        F = FRG + 48*(h & 1)
        if h < PH:
            n = {0: 5 if ADLY else 10, 7: 5, 8: 0}.get(h, 10) + (3 if h == PH - 1 else 0)
            e(f"s_waitcnt vmcnt({n}) lgkmcnt(0)")
        else:
            if h == PH: spin(k, pl_loads + kv_poll, [PL, PL+3, PL+5], 15, pre_issued=True, slp=KSL)
            e("s_waitcnt lgkmcnt(0)" + (" vmcnt(0)" if h == 9 else ""))
        e("s_barrier")
        if h in (2, 4, 6, 8): stamp(k, 2 + h//2, True)
        if h == QH:
            e(f"s_lshl_b32 s37, s2, 7\ns_add_u32 s37, s37, {QF}")
            setflag(k, "s37", 242)
        rd = hreads(h+1) if h < 9 else first_reads
        dm = st_issue(h % 4) if h < 6 else []
        if h == 0 and ADLY: dm = st_issue(3) + dm
        if h == PH - 2:
            assert not late
            dm = dm + [pl_loads + kv_poll]
        if h == PH: dm = kv_issue(0, KV0 + 2*KVSLOT)
        i = 0
        for ks in range(4):
            first = (h == 0 and ks == 0)
            for acc, bop in ((S0, F+12*ks+4), (S1, F+12*ks+8), (SA, ONES)):
                e(f"{MF} {vr(acc,16)}, {vr(F+12*ks,4)}, {vr(bop,4)}, {'0' if first else vr(acc,16)}")
                emit(k, rd[:2]); rd = rd[2:]
                if dm and (i >= DI or h in (0, PH, 9)): emit(k, dm.pop(0))
                if h >= 1 and late:
                    take = 3
                    while take < len(late) and late[take].op.startswith(("s_addc", "s_cselect")): take += 1
                    k.items += late[:take]; late = late[take:]
                if h == 8:
                    k.items += fill[:3]; fill = fill[3:]
                if h == 9:
                    m = 0
                    while inits and m < 4 and inits[0][0] < F + 12*ks:
                        r, v = inits.pop(0); e(f"v_mov_b32 v{r}, {v}"); m += 1
                i += 1
        emit(k, dm)
    assert not fill
    stamp(k, 3)
    rest = [f"v_mov_b32 v{r}, {v}" for r, v in inits]
    def qepi(b):
        L = []; a = S0 + 16*b
        for j in range(12): L.append(f"v_fmac_f32 v{a+j}, v{238+b}, v{SA+j}")
        for j in range(12): L.append(f"v_mul_f32 v{a+j}, v{PL+2+2*b}, v{a+j}")
        for j in range(6): L.append(f"v_cvt_pk_bf16_f32 v{Q[b]+j}, v{a+2*j}, v{a+2*j+1}")
        L += [f"v_mov_b32 v{Q[b]+6}, 0", f"v_mov_b32 v{Q[b]+7}, 0"]
        return L
    MX = [3, 5]
    sxr = lambda b, t: [[80, 208, 32, 64], [48, 80, 208, 64]][b][t]
    def mx(b, t):
        S = sxr(b, t)
        L = [f"v_max3_f32 v{MX[b]}, v{S}, v{S+1}, v{S+2}", f"v_max_f32 v{MX[b]}, v{MX[b]}, v{S+3}"] if t == 0 else []
        for j in range(4 if t == 0 else 0, 16, 2): L.append(f"v_max3_f32 v{MX[b]}, v{MX[b]}, v{S+j}, v{S+j+1}")
        return L
    def qk(b, t):
        S = sxr(b, t)
        return [f"{MF} {vr(S,16)}, {vr(KT+8*t,4)}, {vr(Q[b],4)}, 0", f"{MF} {vr(S,16)}, {vr(KT+8*t+4,4)}, {vr(Q[b]+4,4)}, {vr(S,16)}"]
    def fin(b, offs):
        L = [f"v_mov_b32 v15, v{MX[b]}", f"v_permlane32_swap_b32 v{MX[b]}, v15", f"v_max_f32 v{MX[b]}, v{MX[b]}, v15"]
        if offs: L.append(f"v_add_f32 v{MX[b]}, {hex(f32bits(offs))}, v{MX[b]}")
        L += [f"v_cvt_pk_bf16_f32 v{MX[b]}, -v{MX[b]}, 0", "v_cmp_ne_u32 vcc, 0, v6", f"v_cndmask_b32 v{Q[b]+6}, v{MX[b]}, 0, vcc"]
        return L
    def weave(mfs, vals, per, ex=None):
        for m in mfs:
            e(m)
            if ex: emit(k, ex.pop(0))
            for _ in range(per):
                if vals: e(vals.pop(0))
        for v in vals: e(v)
    emit(k, rest[:8]); rest = rest[8:]
    emit(k, qepi(0))
    stamp(k, 4)
    stamp(k, 5)
    e("s_waitcnt lgkmcnt(0)")
    kv1 = kv_issue(KVSLOT, KV0)
    weave(qk(0, 0) + qk(0, 1) + qk(0, 2), qepi(1), 6, kv1)
    weave(qk(0, 3) + qk(1, 0), mx(0, 0) + mx(0, 1) + rest, 6, kv1)
    weave(qk(1, 1) + qk(1, 2), mx(0, 2) + mx(0, 3) + fin(0, OFFS), 6)
    e("s_waitcnt lgkmcnt(0)")
    weave(qk(1, 3) + [f"{MF} {vr(S0,16)}, {vr(KL(0),4)}, {vr(Q[0],4)}, 0", f"{MF} {vr(S0,16)}, {vr(KH(0),4)}, {vr(Q[0]+4,4)}, {vr(S0,16)}"],
          mx(1, 0) + [f"v_mov_b32 v{S1+12+j}, 0" for j in range(4)] + mx(1, 1) + mx(1, 2) + mx(1, 3) + fin(1, OFFS), 6)
    dma = lambda so, off: f"buffer_load_dwordx4 v2, s[24:27], {so} offen offset:{off} {SC} lds" if not NOKV else "s_nop 0"
    extra = {(1, 0): ["s_mov_b32 m0, s42"], (1, 1): ["s_add_u32 s38, s43, 4096"], (1, 3): ["s_waitcnt vmcnt(0)", "s_barrier"] if NOKV < 2 else [],
             (2, 3): [dma("s43", 0), dma("s43", 1024)], (3, 3): [dma("s43", 2048), dma("s43", 3072)],
             (4, 0): ["s_add_u32 m0, s42, 4096"], (4, 3): [dma("s38", 0), dma("s38", 1024)],
             (5, 0): [f"s_add_u32 s43, s43, {KVSLOT}"], (5, 1): ["s_add_u32 s40, s40, 1"], (5, 2): [f"s_add_u32 s37, s42, {KVSLOT}"],
             (6, 0): ["s_cmp_eq_u32 s37, s39"], (6, 1): ["s_cselect_b32 s37, s35, s37"],
             (7, 0): ["s_sub_u32 s41, s42, s36"], (7, 1): ["s_mov_b32 s42, s37"],
             (7, 2): ["s_bitcmp0_b32 s4, s40"]}
    e(f"s_mov_b32 s4, {0x102 if SENT else 0x100}")
    if SENT:
        for j in range(4): e(f"v_mov_b32 v{244+j}, -1")
        for b in range(2):
            e(f"buffer_store_dwordx4 v[244:247], v2, s[28:31], s{12+b} offen {SC}")
            e(f"buffer_store_dwordx2 v[244:245], v{AO2}, s[28:31], s{16+b} offen {SC}")
    e("s_setprio 1")
    stamp(k, 6)
    stamp(k, 7)
    Lloop = k.newlabel("att")
    k.label(Lloop, 6)
    def cv(S, Pb, g):
        return [f"v_cvt_pk_bf16_f32 v{Pb+2*g}, v{S+4*g}, v{S+4*g+1}", f"v_cvt_pk_bf16_f32 v{Pb+2*g+1}, v{S+4*g+2}, v{S+4*g+3}"]
    for jj in range(8):
        for blk in range(2):
            Sc, Sn = (S0, S1) if blk == 0 else (S1, S0)
            valu = []
            for g in range(4):
                for j in range(4): valu.append(f"v_exp_f32{E64} v{Sc+4*g+j}, v{Sc+4*g+j}")
                valu += cv(Sn, P[1-blk], 3) if g == 0 else cv(Sc, P[blk], g-1)
            ks = (jj + blk) & 1; vs = (jj - 1 + blk) & 1; nb = 1 - blk
            ko = ((jj + 2) % 8) * 3072; vo = ((jj + 1) % 8) * 3072
            mf = [[f"{MF} {vr(O[nb],16)}, {vr(V0(vs),4)}, {vr(P[nb],4)}, {vr(O[nb],16)}"],
                  [f"{MF} {vr(Sn,16)}, {vr(KL(ks),4)}, {vr(Q[nb],4)}, 0"],
                  [f"{MF} {vr(Sn,16)}, {vr(KH(ks),4)}, {vr(Q[nb]+4,4)}, {vr(Sn,16)}"],
                  [f"{MF} {vr(O[nb],16)}, {vr(V1(vs),4)}, {vr(P[nb]+4,4)}, {vr(O[nb],16)}"]]
            if blk == 0:
                mf[2].append("s_waitcnt lgkmcnt(0)")
                mf[3].append(f"ds_read_b128 {vr(KL(ks),4)}, v{AKL} offset:{ko}")
                mf[3].append(f"ds_read_b64 {vr(KH(ks),2)}, v{AKH} offset:{ko}")
            else:
                mf[3].append(f"ds_read_b128 {vr(V0(1-vs),4)}, v{AV} offset:{vo}")
                mf[3].append(f"ds_read_b128 {vr(V1(1-vs),4)}, v{AV} offset:{vo+768}")
                if jj == 5: valu.append(f"v_add_u32 v{AKL}, s41, v2"); valu.append(f"v_add_u32 v{AKH}, s41, v{BKH}")
                if jj == 6: valu.append(f"v_add_u32 v{AV}, s41, v{BV}")
                for m in range(4): mf[m] += extra.get((jj, m), [])
            for i, v in enumerate(valu):
                for m in range(4):
                    if PATTERN[m] == i: emit(k, mf[m])
                e(v)
    e(f"s_cbranch_scc1 {Lloop}")
    if SENT:
        Lexit = k.newlabel("aexit")
        e(f"s_cmp_eq_u32 s40, 8\ns_cbranch_scc1 {Lexit}")
        setflag(k, "s14", 242)
        e(f"s_branch {Lloop}")
        k.label(Lexit)
    emit(k, cv(S1, P[1], 3))
    e(f"{MF} {vr(O[1],16)}, {vr(V0(1),4)}, {vr(P[1],4)}, {vr(O[1],16)}")
    e(f"{MF} {vr(O[1],16)}, {vr(V1(1),4)}, {vr(P[1]+4,4)}, {vr(O[1],16)}")
    stamp(k, 8)
    e("s_mov_b32 s40, 0\ns_setprio 3")
    Lout = k.newlabel("out"); Lslow = k.newlabel("slow"); Lpub = k.newlabel("pub")
    k.label(Lout)
    PK = 224; A0 = 208
    def ostore():
        for b in range(2):
            e(f"v_rcp_f32 v{A0+b}, v{O[b]+12}")
            e(f"v_mul_f32 v{A0+b}, {hex(f32bits(1/LOG2E))}, v{A0+b}")
            for j in range(12): e(f"v_mul_f32 v{O[b]+j}, v{O[b]+j}, v{A0+b}")
            for j in range(6): e(f"v_cvt_pk_bf16_f32 v{PK+8*b+j}, v{O[b]+2*j}, v{O[b]+2*j+1}")
            if SENT:
                for j in range(6): e(f"v_min_u32 v{PK+8*b+j}, -2, v{PK+8*b+j}")
            e(f"buffer_store_dwordx4 {vr(PK+8*b,4)}, v2, s[28:31], s{12+b} offen {SC}")
            e(f"buffer_store_dwordx2 {vr(PK+8*b+4,2)}, v{AO2}, s[28:31], s{16+b} offen {SC}")
    if not SENT: ostore()
    for b in range(2):
        e(f"v_mul_f32 v{A0+2+2*b}, 0, v{O[b]+12}\nv_mul_f32 v{A0+3+2*b}, 0, v{O[b]}")
        for j in range(1, 12): e(f"v_fma_f32 v{A0+2+2*b+(j&1)}, v{O[b]+j}, 0, v{A0+2+2*b+(j&1)}")
    e(f"v_add_f32 v{A0+2}, v{A0+2}, v{A0+4}\nv_add_f32 v{A0+3}, v{A0+3}, v{A0+5}")
    e(f"v_cmp_u_f32 vcc, v{A0+2}, v{A0+3}")
    e(f"s_cmp_lg_u32 s40, 0\ns_cbranch_scc1 {Lpub}")
    e(f"s_cmp_lg_u64 vcc, 0\ns_cbranch_scc1 {Lslow}")
    k.label(Lpub)
    if SENT: ostore()
    elif WF:
        e(f"v_mov_b32 v16, {TAG}\ns_lshl_b32 s32, s3, 2\nv_mov_b32 v17, s32\ns_mov_b64 exec, 1\ns_waitcnt vmcnt(0)")
        e(f"buffer_store_dword v16, v17, {FL}, s14 offen {SC}\ns_mov_b64 exec, -1")
    else:
        e("s_waitcnt vmcnt(0)\ns_barrier")
        if LEAK == "A9":
            e("s_getreg_b32 s95, hwreg(HW_REG_XCC_ID)\ns_and_b32 s95, s95, 15\ns_and_b32 s94, s2, 7\ns_cmp_eq_u32 s95, s94\ns_cselect_b32 s95, 0, 1000\ns_add_u32 s95, s95, s86")
        setflag(k, "s14", 16, "A")
    Lx = k.newlabel("axit")
    e(f"s_or_b32 s32, s2, s3\ns_cmp_lg_u32 s32, 0\ns_cbranch_scc1 {Lx}")
    e(f"v_lshlrev_b32 v13, 7, v1")
    ld = []
    for i in range(8): ld += [f"s_mov_b32 s38, {HF + 8192*i}", f"buffer_load_dword v{16+i}, v13, {FL}, s38 offen {SC}"]
    if not ONLY: spin(k, ld, list(range(16, 24)), 24)
    setflag(k, "0", 16)
    if LEAK:
        for i in range(8):
            e(f"s_mov_b32 s75, {HF + 8192*i}\nbuffer_load_dwordx2 {vr(32+2*i,2)}, v13, {FL}, s75 offen offset:8 {SC}")
        e("s_waitcnt vmcnt(0)")
        for i in range(16): e(f"v_subrev_u32 v{32+i}, s86, v{32+i}")
        for i in range(1, 8): e(f"v_min_i32 v32, v32, v{32+2*i}\nv_max_i32 v33, v33, v{33+2*i}")
        e("s_mov_b32 s40, 0x7fffffff\ns_mov_b32 s41, 0x80000000")
        for l in range(64):
            e(f"v_readlane_b32 s42, v32, {l}\nv_readlane_b32 s43, v33, {l}\ns_min_i32 s40, s40, s42\ns_max_i32 s41, s41, s43")
        e("s_sub_u32 s41, s41, s40\ns_mul_i32 s41, s41, 4\ns_add_u32 s41, s41, 10000\ns_add_u32 s40, s40, s86")
        Ls = k.newlabel("spin"); k.label(Ls)
        e("s_memrealtime s[42:43]\ns_waitcnt lgkmcnt(0)\ns_sub_u32 s42, s42, s40")
        e(f"s_cmp_lt_u32 s42, s41\ns_cbranch_scc1 {Ls}")
    k.label(Lx)
    stamp_dump(k, 1, 9, "s2", PWS)
    e("s_endpgm")
    k.label(Lslow)
    e("s_waitcnt vmcnt(0) lgkmcnt(0)")
    e(f"s_mov_b32 s40, 1\ns_mov_b32 s41, 0\nv_mov_b32 v{Q[0]+6}, 0\nv_mov_b32 v{Q[1]+6}, 0")
    e(f"v_mov_b32 v{MX[0]}, 0xff800000\nv_mov_b32 v{MX[1]}, 0xff800000")
    def kload():
        e(f"buffer_load_dwordx4 {vr(KL(0),4)}, v2, s[24:27], s41 offen {SC}")
        e(f"buffer_load_dwordx2 {vr(KH(0),2)}, v{BKH}, s[24:27], s41 offen {SC}")
    def qk2():
        for b in range(2):
            S = S0 + 16*b
            e(f"{MF} {vr(S,16)}, {vr(KL(0),4)}, {vr(Q[b],4)}, 0\n{MF} {vr(S,16)}, {vr(KH(0),4)}, {vr(Q[b]+4,4)}, {vr(S,16)}")
    L1 = k.newlabel("sl1"); k.label(L1)
    kload(); e("s_waitcnt vmcnt(0)"); qk2()
    for b in range(2):
        for j in range(0, 16, 2): e(f"v_max3_f32 v{MX[b]}, v{MX[b]}, v{S0+16*b+j}, v{S0+16*b+j+1}")
    e(f"s_add_u32 s41, s41, 3072\ns_cmp_lt_u32 s41, {KV_BYTES}\ns_cbranch_scc1 {L1}")
    for b in range(2): emit(k, fin(b, 0))
    for j in range(32): e(f"v_mov_b32 v{O[0]+j}, 0")
    e("s_mov_b32 s41, 0")
    L2 = k.newlabel("sl2"); k.label(L2)
    kload()
    e(f"buffer_load_dwordx4 {vr(V0(0),4)}, v{BV}, s[24:27], s41 offen {SC}")
    e(f"buffer_load_dwordx4 {vr(V1(0),4)}, v{BV}, s[24:27], s41 offen offset:768 {SC}")
    e("s_waitcnt vmcnt(0)"); qk2()
    for b in range(2):
        S = S0 + 16*b
        for j in range(16): e(f"v_exp_f32 v{S+j}, v{S+j}")
        for g in range(4): emit(k, cv(S, P[b], g))
        e(f"{MF} {vr(O[b],16)}, {vr(V0(0),4)}, {vr(P[b],4)}, {vr(O[b],16)}")
        e(f"{MF} {vr(O[b],16)}, {vr(V1(0),4)}, {vr(P[b]+4,4)}, {vr(O[b],16)}")
    e(f"s_add_u32 s41, s41, 3072\ns_cmp_lt_u32 s41, {KV_BYTES}\ns_cbranch_scc1 {L2}")
    e("s_nop 12")
    e(f"s_branch {Lout}")

def gen_mega(name="parallel_sum__grouped_kv_mqa__swiglu_ffn__prompt_kernel"):
    k = Kernel(name); e = k.e
    LA = k.newlabel("roleA"); LB = k.newlabel("roleB")
    e("s_load_dwordx16 s[48:63], s[0:1], 0\ns_load_dwordx8 s[64:71], s[0:1], 64")
    e("v_and_b32 v1, 63, v0\nv_lshrrev_b32 v2, 6, v0\nv_readfirstlane_b32 s3, v2\nv_lshlrev_b32 v2, 4, v1")
    Lgo = k.newlabel("go")
    e(f"s_cmp_lt_u32 s2, 256\ns_cbranch_scc1 {LB}\ns_cmp_lt_u32 s2, 512\ns_cbranch_scc1 {Lgo}\ns_endpgm")
    def body_b():
        k.label(LB)
        e("s_setprio 3")
        roleB(k)
    if HEAD:
        k.label(Lgo)
        if ONLY == "B": e("s_endpgm")
        e(f"s_sub_u32 s2, s2, 256\ns_setprio {AP0}")
        def mid():
            e(f"s_branch {LA}")
            body_b()
            k.label(LA, 6)
        roleA(k, mid)
    else:
        body_b()
        k.label(Lgo, 6)
        if ONLY == "B": e("s_endpgm")
        e(f"s_sub_u32 s2, s2, 256\ns_setprio {AP0}")
        roleA(k, lambda: None)
    k.label(f"{k.name}_end")
    k.lds = 81920; k.grid = 512; k.block = 256
    return k

if __name__ == "__main__":
    import sys
    from build import emit as emit_file
    emit_file([gen_mega()], sys.argv[1] if len(sys.argv) > 1 else "parallel_sum__grouped_kv_mqa__swiglu_ffn__prompt.s")
```

```python
from asmgen import *
from common import KA, NBYTES, f32bits, srd_from, stamp, stamp_dump, STAMPS
import math, os

MF = "v_mfma_f32_32x32x16_bf16"
LOG2E = math.log2(math.e)
QSCALE = (20 ** -0.5) * float(os.environ.get("QEPS", 1.0))
env = lambda n, d: type(d)(os.environ.get(n, d))
OFFS = env('OFFS', 96.0)
PATTERN = [int(x) for x in env('APAT', '2,6,9,13').split(',')]
BST = env("BST", 0); ONLY = env("ONLY", "")
P0B = env("P0B", 14); PKD = env("PKD", 0); ADLY = env("ADLY", 0); E64 = env("E64", ""); TP = env("TP", 0); QH = env("QH", 4); DI = env("DI", 0); TCH = env("TCH", 0); KV1 = env("KV1", 0); WSB = env("WSB", 0) << 20; SENT = env("SENT", 0); PKE = env("PKE", 1); ROT = env("ROT", 1); OM = env("OM", ""); HEAD = env("HEAD", 1); PKS = env("PKS", 1); WF = env("WF", 0); KVS = env("KVS", 2); PH = env("PH", 7); LATE = env("LATE", 0); NOKV = env("NOKV", 0); KSL = env("KSL", 4); BSL = env("BSL", 2); BP0 = env("BP0", 0); GP0 = env("GP0", 0); GP1 = env("GP1", 2); GSW = env("GSW", -1); CPF = env("CPF", 1); DP = env("DP", 0); AP0 = env("AP0", 2)
STAT = 0x1000; PKF = 0x800; HF = 0x9000; OF = 0x11000; KVF = 0xE80000; XNF = 0xE88000; QF = 0xE90000; FL_BYTES = 0xE98000
KV_OFF = 0x20000;  KV_BYTES = 64*3072
WP_OFF = 0x50000;  WP_BYTES = 8*136*2560
AF_OFF = 0x300000; AF_BYTES = 64*136*1024
XN_OFF = 0xC00000; XN_BYTES = 64*40*1024
PX, PWQ, PWK, PWV, PWO, PWG, PWU, PWD, POUT, PWS = 48, 50, 52, 54, 56, 60, 62, 64, 66, 70
TAG = "s73"; BUD = "s74"; FLS = 44; SC = "sc1"
FL = f"s[{FLS}:{FLS+3}]"
HUGE = "0x7ff00000"

def bstamp(k, name):
    m0 = dict(start=0, xl=1, xs=2, xf=3, p0=4, gu0=5, gu1=6, dn0=7, dn1=8)
    m1 = dict(start=0, p0=1, gu0=2, gu1=3, dn0=4, dn1=5, of=6, mm=7, rd=8)
    m = m1 if BST else m0
    if name in m: stamp(k, m[name])

def emit(k, lst):
    for x in lst:
        if isinstance(x, list): emit(k, x)
        else: k.e(x)

def spin(k, loads, regs, vt, pre_issued=False, slp=1):
    e = k.e
    Lp = k.newlabel("poll"); Ld = k.newlabel("pdone"); Lc = k.newlabel("pchk")
    if pre_issued: e(f"s_branch {Lc}")
    k.label(Lp)
    emit(k, loads)
    k.label(Lc)
    e("s_waitcnt vmcnt(0)")
    e(f"v_xor_b32 v{vt}, {TAG}, v{regs[0]}")
    for r in regs[1:]:
        e(f"v_xor_b32 v{r}, {TAG}, v{r}\nv_or_b32 v{vt}, v{vt}, v{r}")
    e(f"v_cmp_ne_u32 vcc, 0, v{vt}")
    e(f"s_cmp_eq_u64 vcc, 0\ns_cbranch_scc1 {Ld}")
    e(f"s_cmp_eq_u32 {BUD}, 0\ns_cbranch_scc1 {Ld}\ns_sub_u32 {BUD}, {BUD}, 1")
    e(f"s_sleep {slp}\ns_branch {Lp}")
    k.label(Ld)

LEAK = os.environ.get("LEAK")
def setflag(k, soffs, vt, leak=None):
    e = k.e
    L = k.newlabel("nofl")
    e(f"s_cmp_lg_u32 s3, 0\ns_cbranch_scc1 {L}")
    if LEAK and leak is not None:
        role, idx = LEAK[0], int(LEAK[1:])
        sel = f"s{86+idx}" if role == leak else "s86"
        e(f"v_mov_b32 v{vt}, s86\nv_mov_b32 v{vt+1}, {sel}\nv_mov_b32 v{vt+2}, 0\ns_mov_b64 exec, 1")
        e(f"buffer_store_dwordx2 {vr(vt,2)}, v{vt+2}, {FL}, {soffs} offen offset:8 {SC}")
        e("s_waitcnt vmcnt(0)\ns_mov_b64 exec, -1")
    e(f"v_mov_b32 v{vt}, {TAG}\nv_mov_b32 v{vt+1}, 0\ns_mov_b64 exec, 1")
    for so in (soffs if isinstance(soffs, list) else [soffs]):
        e(f"buffer_store_dword v{vt}, v{vt+1}, {FL}, {so} offen {SC}")
    e("s_mov_b64 exec, -1")
    k.label(L)

def tag_setup(k):
    if WSB: k.e(f"s_add_u32 s{PWS}, s{PWS}, {hex(WSB)}\ns_addc_u32 s{PWS+1}, s{PWS+1}, 0")
    k.e(f"s_load_dword s72, s[{PWS}:{PWS+1}], 0")
    srd_from(k, FLS, PWS, FL_BYTES)
    k.e(f"s_mov_b32 {BUD}, 200000")
def tag_finish(k):
    k.e(f"s_waitcnt lgkmcnt(0)\ns_mul_i32 {TAG}, s72, 1664525\ns_add_u32 {TAG}, {TAG}, 1013904223")

def x_voffs(k, dst, t):
    e = k.e
    e(f"v_lshrrev_b32 v{t}, 3, v1\nv_mul_u32_u24 v{t}, 1280, v{t}")
    e(f"v_and_b32 v{t+1}, 7, v1\nv_lshrrev_b32 v{t+2}, 4, v1\nv_xor_b32 v{t+1}, v{t+1}, v{t+2}")
    e(f"v_lshl_add_u32 v{dst}, v{t+1}, 4, v{t}\nv_xor_b32 v{dst+1}, 64, v{dst}")
def x_raddr(k, dst, t, base):
    e = k.e
    e(f"v_and_b32 v{t}, 31, v1\nv_bfe_u32 v{t+1}, v1, 1, 3\nv_lshrrev_b32 v{t+2}, 5, v1\nv_xor_b32 v{t+1}, v{t+1}, v{t+2}")
    e(f"v_lshlrev_b32 v{t}, 7, v{t}\nv_lshl_add_u32 v{t}, v{t+1}, 4, v{t}")
    for ks in range(4):
        e(f"v_xor_b32 v{t+1}, {ks*32}, v{t}\nv_add_u32 v{dst+ks}, {base}, v{t+1}")

def phase0(k):
    e = k.e
    e("v_and_b32 v3, 15, v1\nv_lshrrev_b32 v4, 4, v1")
    e("s_mul_i32 s12, s4, 20480\ns_mul_i32 s13, s3, 320\ns_add_u32 s12, s12, s13")
    e("v_mul_u32_u24 v5, 1280, v3\nv_lshl_add_u32 v5, v4, 4, v5")
    e("s_mul_i32 s14, s3, 6400\ns_mul_i32 s15, s3, 7168\ns_add_u32 s37, s14, 4096")
    e("s_waitcnt lgkmcnt(0)")
    srd_from(k, 16, PX, NBYTES['x'])
    X = 16
    for i in range(5):
        e(f"buffer_load_dwordx4 {vr(X+4*i,4)}, v5, s[16:19], s12 offen offset:{64*i}")
    tag_setup(k)
    e(f"s_cmp_eq_u32 s11, 0\ns_cselect_b32 s20, s{PWK}, s{PWV}\ns_cselect_b32 s21, s{PWK+1}, s{PWV+1}")
    e(f"s_mov_b32 s22, {hex(NBYTES['wk'])}\ns_mov_b32 s23, 0x20000\ns_mov_b32 m0, s15")
    for j in range(7):
        if j == 4: e("s_add_u32 m0, s15, 4096")
        e(f"buffer_load_dwordx4 v2, s[20:23], {'s14' if j < 4 else 's37'} offen offset:{(j%4)*1024} lds")
    srd_from(k, 28, PWS, XN_BYTES, XN_OFF)
    srd_from(k, 32, PWS, KV_BYTES, KV_OFF)
    e("v_mov_b32 v8, 0\nv_mov_b32 v9, 0\nv_mov_b32 v10, 0\nv_mov_b32 v11, 0")
    e("s_mov_b32 s38, 0x3f803f80")
    LST = 28672; RED = LST + 512
    e(f"s_lshl_b32 s39, s3, 7\ns_add_u32 s39, s39, {LST}")
    e("v_lshl_add_u32 v12, v3, 3, s39\nv_lshlrev_b32 v13, 3, v3")
    e("v_lshrrev_b32 v14, 2, v3\nv_lshl_add_u32 v14, v4, 3, v14\nv_mul_u32_u24 v14, 40, v14")
    e("v_and_b32 v15, 3, v1\nv_lshl_add_u32 v14, v15, 3, v14\nv_add_u32 v14, s15, v14")
    e(f"s_lshl_b32 s36, s4, 7\ns_add_u32 s36, s36, {STAT}")
    e("s_lshr_b32 s40, s4, 1\ns_mul_i32 s41, s40, 40960\ns_and_b32 s42, s4, 1")
    e("s_lshl_b32 s43, s42, 8\ns_add_u32 s41, s41, s43\ns_mul_i32 s43, s3, 10240\ns_add_u32 s41, s41, s43")
    e("v_lshlrev_b32 v5, 9, v4\nv_lshl_add_u32 v5, v3, 4, v5")
    e(f"s_lshl_b32 s39, s3, 11\ns_add_u32 s39, s39, {RED}\nv_add_u32 v92, s39, v2\ns_mul_i32 s39, s40, 3072")
    e(f"s_lshl_b32 s43, s4, 1\ns_add_u32 s43, s43, s11\ns_lshl_b32 s75, s43, 7\ns_add_u32 s75, s75, {XNF}\ns_lshl_b32 s43, s43, {KVS}\ns_add_u32 s43, s43, {KVF}")
    Lv, Lst = k.newlabel("v"), k.newlabel("st")
    e("v_lshl_add_u32 v7, s42, 4, v3\nv_and_b32 v15, 1, v4\nv_lshrrev_b32 v6, 1, v4\nv_mov_b32 v95, 0x7fffffff")
    e(f"s_mov_b64 s[24:25], 0\ns_cmp_lg_u32 s11, 0\ns_cbranch_scc1 {Lv}")
    e("v_lshl_add_u32 v93, v6, 5, v7\nv_lshlrev_b32 v93, 4, v93\nv_lshl_add_u32 v93, v15, 3, v93")
    e("v_lshlrev_b32 v94, 3, v7\nv_add_u32 v94, 1024, v94\nv_cmp_ne_u32 vcc, 0, v4")
    e(f"s_branch {Lst}")
    k.label(Lv)
    e("s_mul_i32 s26, s42, 768\ns_add_u32 s26, s26, 1536\ns_mov_b32 s24, 0x00100010\ns_mov_b32 s25, 0x00100010")
    e("v_mul_u32_u24 v93, 384, v15\nv_lshl_add_u32 v93, v3, 4, v93\nv_lshl_add_u32 v93, v6, 3, v93\nv_add_u32 v93, s26, v93")
    e("v_add_u32 v94, 256, v93\nv_cmp_lt_u32 vcc, 4, v3")
    k.label(Lst)
    e("v_cndmask_b32 v94, v94, v95, vcc\nv_mov_b32 v95, 0x3f803f80")
    tag_finish(k)
    for i in range(5):
        e(f"s_waitcnt vmcnt({11 - i})")
        for d in range(4*i, 4*i+4):
            a = 8 + (d & 1); q = 10 + (d & 1)
            e(f"v_dot2_f32_bf16 v{a}, v{X+d}, s38, v{a}")
            e(f"v_dot2_f32_bf16 v{q}, v{X+d}, v{X+d}, v{q}")
    bstamp(k, "xl")
    e("v_add_f32 v8, v8, v9\nv_add_f32 v9, v10, v11")
    for sw in ("v_permlane32_swap_b32", "v_permlane16_swap_b32"):
        e("v_mov_b32 v10, v8\nv_mov_b32 v11, v9")
        e(f"{sw} v8, v10\n{sw} v9, v11")
        e("v_add_f32 v8, v8, v10\nv_add_f32 v9, v9, v11")
    e("ds_write_b64 v12, v[8:9]")
    U = 96; W = 136
    for d in range(20):
        e(f"v_lshlrev_b32 v{U+2*d}, 16, v{X+d}\nv_and_b32 v{U+2*d+1}, 0xffff0000, v{X+d}")
        if d == 1:
            e("s_waitcnt lgkmcnt(0)\ns_barrier")
            for w in range(4): e(f"ds_read_b64 {vr(36+2*w,2)}, v13 offset:{LST+128*w}")
    e("s_waitcnt lgkmcnt(0) vmcnt(0)")
    for i in range(5):
        for tl in range(2):
            for u in range(2):
                e(f"ds_read_b64_tr_b16 {vr(W+8*i+4*tl+2*u,2)}, v14 offset:{i*1280 + u*160 + tl*32}")
    e("v_add_f32 v8, v36, v38\nv_add_f32 v9, v37, v39\nv_add_f32 v10, v40, v42\nv_add_f32 v11, v41, v43")
    e("v_add_f32 v8, v8, v10\nv_add_f32 v9, v9, v11")
    inv = hex(f32bits(1.0/640))
    e(f"v_mul_f32 v8, {inv}, v8\nv_mul_f32 v9, {inv}, v9")
    e("v_fma_f32 v9, -v8, v8, v9\nv_max_f32 v9, 0, v9")
    e("v_cvt_pk_bf16_f32 v10, v8, v9")
    e("v_lshlrev_b32 v8, 16, v10\nv_and_b32 v9, 0xffff0000, v10")
    e(f"v_add_f32 v9, {hex(f32bits(1e-5))}, v9")
    e("v_cvt_pk_bf16_f32 v9, v9, v9\nv_and_b32 v9, 0xffff0000, v9")
    e("v_sqrt_f32 v9, v9")
    e("v_cvt_pk_bf16_f32 v6, v8, v9")
    e(f"v_mov_b32 v7, {TAG}\nv_and_b32 v9, 0xffff0000, v6")
    Lns = k.newlabel("nost")
    e(f"s_lshl_b32 s26, s11, 2\ns_add_u32 s26, s26, s3\ns_cmp_lg_u32 s26, 7\ns_cbranch_scc1 {Lns}")
    e(f"s_mov_b64 exec, 0xffff\nbuffer_store_dwordx2 v[6:7], v13, {FL}, s36 offen {SC}\ns_mov_b64 exec, -1")
    k.label(Lns)
    e("v_rcp_f32 v10, v9")
    e(f"v_mul_f32 v10, {hex(f32bits(LOG2E))}, v10")
    e("v_mul_f32 v11, v8, v10")
    ACC = 44
    for d in range(20):
        u = U + 2*d
        e(f"v_fma_f32 v{u}, v{u}, v10, -v11\nv_fma_f32 v{u+1}, v{u+1}, v10, -v11")
        if d >= 1: e(f"v_cvt_pk_bf16_f32 v{X+d-1}, v{u-2}, v{u-1}")
    e(f"v_cvt_pk_bf16_f32 v{X+19}, v{U+38}, v{U+39}")
    Lmv, Lmd = k.newlabel("mv"), k.newlabel("md")
    e(f"s_waitcnt lgkmcnt(0)\ns_cmp_lg_u32 s11, 0\ns_cbranch_scc1 {Lmv}")
    def xst(i): return f"buffer_store_dwordx4 {vr(X+4*i,4)}, v5, s[28:31], s26 offen offset:{(i%2)*2048} {SC}"
    for m in range(2):
        if m: k.label(Lmv)
        for i in range(5):
            for tl in range(2):
                wf = vr(W+8*i+4*tl, 4); xf = vr(X+4*i, 4); acc = vr(ACC+4*tl, 4)
                a, b = (wf, xf) if m == 0 else (xf, wf)
                e(f"v_mfma_f32_16x16x32_bf16 {acc}, {a}, {b}, {'0' if i == 0 else acc}")
        if m == 0: e(f"s_branch {Lmd}")
    k.label(Lmd)
    bstamp(k, "xs")
    for tl in range(2):
        e(f"ds_write_b128 v92, {vr(ACC+4*tl,4)} offset:{tl*1024}")
    e("s_waitcnt lgkmcnt(0)\ns_barrier")
    Lx = k.newlabel("xst")
    e(f"s_cmp_lg_u32 s3, 0\ns_cbranch_scc1 {Lx}")
    R = 52
    for tl in range(2):
        for w in range(1, 4):
            e(f"ds_read_b128 {vr(R+16*tl+4*w,4)}, v92 offset:{w*2048 + tl*1024}")
    for tl in range(2):
        e(f"s_waitcnt lgkmcnt({3 - 3*tl})")
        r = R + 16*tl; c = ACC + 4*tl
        for j in range(4):
            e(f"v_add_f32 v{c+j}, v{c+j}, v{r+4+j}\nv_add_f32 v{r+8+j}, v{r+8+j}, v{r+12+j}\nv_add_f32 v{c+j}, v{c+j}, v{r+8+j}")
        e(f"v_cvt_pk_bf16_f32 v{8+2*tl}, v{c}, v{c+1}\nv_cvt_pk_bf16_f32 v{9+2*tl}, v{c+2}, v{c+3}")
        if tl: e("v_cndmask_b32 v10, v10, v95, s[24:25]\nv_cndmask_b32 v11, v11, v95, s[24:25]")
        e(f"buffer_store_dwordx2 {vr(8+2*tl,2)}, v{93+tl}, s[32:35], s39 offen {SC}")
    k.label(Lx)
    L1, L2 = k.newlabel("x1"), k.newlabel("x2")
    e(f"s_cmp_lg_u32 s11, 0\ns_cbranch_scc1 {L1}")
    e("s_mov_b32 s26, s41"); e(xst(0)); e(xst(1)); e("s_add_u32 s26, s41, 4096"); e(xst(2))
    e(f"s_branch {L2}")
    k.label(L1)
    e("s_add_u32 s26, s41, 4096"); e(xst(3)); e("s_add_u32 s26, s41, 8192"); e(xst(4))
    k.label(L2)
    bstamp(k, "xf")

def roleB(k):
    e = k.e
    SLOT = 20480
    GW, RA, RB = 216, 221, 224
    ACC = 32; FR = [176, 196]
    Lgu = k.newlabel("gu0"); Lpk = k.newlabel("pk")
    bstamp(k, "start")
    e("s_and_b32 s5, s2, 7\ns_lshr_b32 s6, s2, 3")
    def tile_ids():
        e("s_lshr_b32 s7, s5, 1\ns_lshl_b32 s7, s7, 2\ns_lshr_b32 s8, s6, 3\ns_add_u32 s7, s7, s8")
        e("s_and_b32 s9, s5, 1\ns_lshl_b32 s8, s9, 3\ns_and_b32 s10, s6, 7\ns_add_u32 s8, s8, s10\ns_lshl_b32 s11, s7, 1\ns_add_u32 s9, s9, s11")
    def gu_vsetup(t):
        e("s_and_b32 s11, s3, 2")
        for i in range(3):
            e(f"v_add_u32 v{t}, {64*i}, v1\nv_mul_u32_u24 v{t+1}, 5462, v{t}\nv_lshrrev_b32 v{t+1}, 16, v{t+1}")
            e(f"v_mul_u32_u24 v{t+2}, 12, v{t+1}\nv_sub_u32 v{t+2}, v{t}, v{t+2}\nv_xor_b32 v{t+2}, s11, v{t+2}")
            e(f"v_mul_u32_u24 v{t+1}, 3072, v{t+1}\nv_lshl_add_u32 v{GW+i}, v{t+2}, 4, v{t+1}")
    def gu_vsetup2(t):
        e(f"v_lshrrev_b32 v{t}, 5, v1\nv_bfe_u32 v{t+1}, v1, 2, 2\nv_lshl_add_u32 v{t+1}, v{t}, 3, v{t+1}\nv_mul_u32_u24 v{t+1}, 192, v{t+1}")
        e(f"v_and_b32 v{t+2}, 1, v1\nv_lshl_add_u32 v{t+1}, v{t+2}, 4, v{t+1}\nv_bfe_u32 v{t+2}, v1, 1, 1\nv_lshl_add_u32 v{t+1}, v{t+2}, 3, v{t+1}")
        e(f"v_bfe_u32 v{t+2}, v1, 4, 1\nv_mul_u32_u24 v{t+3}, 6144, v{t+2}\nv_add_u32 v{t+1}, v{t+1}, v{t+3}")
        e("s_lshr_b32 s11, s3, 1\ns_mul_i32 s11, s11, 3")
        for a in range(3):
            e(f"v_xor_b32 v{t+3}, s11, v{t+2}\nv_lshl_add_u32 v{RA+a}, v{t+3}, 5, v{t+1}\ns_add_u32 s11, s11, 1")
        e(f"s_and_b32 s11, s3, 1\ns_lshl_b32 s11, s11, 12\ns_add_u32 s11, s11, 12288\nv_add_u32 v{RB}, s11, v2")
        e(f"v_and_b32 v{RB+1}, 3, v1\nv_lshlrev_b32 v{RB+1}, 7, v{RB+1}")
    def zero_acc():
        for j in range(96): e(f"v_mov_b32 v{ACC+j}, 0")
    def gu_ssetup():
        e("s_lshr_b32 s38, s3, 1\ns_and_b32 s39, s3, 1\ns_mul_i32 s40, s38, 3")
        srd_from(k, 16, PWS, XN_BYTES, XN_OFF)
        e(f"s_cmp_eq_u32 s38, 0\ns_cselect_b32 s20, s{PWG}, s{PWU}\ns_cselect_b32 s21, s{PWG+1}, s{PWU+1}")
        e(f"s_mov_b32 s22, {hex(NBYTES['wg'])}\ns_mov_b32 s23, 0x20000")
        e("s_mul_i32 s12, s39, 49152\ns_mul_i32 s32, s8, 192\ns_add_u32 s12, s12, s32")
        e(f"s_lshl_b32 s32, s7, 2\ns_add_u32 s32, s32, s3\ns_mul_i32 s13, s32, 40960\ns_lshl_b32 s42, s32, 9\ns_add_u32 s42, s42, {XNF}")
        e("s_mul_i32 s14, s3, 3072\ns_lshl_b32 s15, s3, 11\ns_add_u32 s15, s15, 12288")
    def issueW(sl):
        return [[f"s_add_u32 m0, s14, {sl*SLOT}"],
                [f"buffer_load_dwordx4 v{GW}, s[20:23], s12 offen lds", "s_add_u32 m0, m0, 1024"],
                [f"buffer_load_dwordx4 v{GW+1}, s[20:23], s12 offen lds", "s_add_u32 m0, m0, 1024"],
                [f"buffer_load_dwordx4 v{GW+2}, s[20:23], s12 offen lds", f"s_add_u32 s12, s12, {32*3072}"]]
    def issueX(sl):
        return [[f"s_add_u32 m0, s15, {sl*SLOT}"],
                [f"buffer_load_dwordx4 v2, s[16:19], s13 offen {SC} lds"],
                [f"buffer_load_dwordx4 v2, s[16:19], s13 offen offset:1024 {SC} lds", "s_add_u32 s13, s13, 2048"]]
    xn_poll = [f"buffer_load_dword v16, v{RB+1}, {FL}, s42 offen {SC}"]
    e("s_lshl_b32 s4, s5, 4\ns_lshr_b32 s11, s6, 1\ns_add_u32 s4, s4, s11\ns_and_b32 s11, s6, 1")
    def pre():
        tile_ids(); gu_vsetup(232); gu_vsetup2(232)
    if CPF:
        Lc = k.newlabel("nocp"); Lh = k.newlabel("here")
        e(f"s_cmp_lg_u32 s6, 31\ns_cbranch_scc1 {Lc}")
        e("s_getpc_b64 s[34:35]")
        k.label(Lh)
        e(f"s_sub_u32 s34, s34, {Lh}-{k.name}\ns_subb_u32 s35, s35, 0")
        e(f"v_lshlrev_b32 v9, 7, v0\nv_min_u32 v9, {k.name}_end-{k.name}-4, v9")
        e("global_load_dword v255, v9, s[34:35]")
        k.label(Lc)
    phase0(k)
    pre()
    gu_ssetup()
    e("s_waitcnt vmcnt(2)")
    setflag(k, "s43", 10)
    Lw0 = k.newlabel("w0")
    e(f"s_waitcnt vmcnt(1)\ns_cmp_eq_u32 s3, 0\ns_cbranch_scc1 {Lw0}\ns_waitcnt vmcnt(0)")
    k.label(Lw0)
    e("s_barrier")
    setflag(k, "s75", 10)
    e(f"s_setprio {BP0}\ns_mov_b32 s11, {HUGE}")
    if TCH:
        Lt = k.newlabel("notch")
        e(f"s_cmp_ge_u32 s2, 240\ns_cbranch_scc1 {Lt}\ns_bitcmp1_b32 s3, 0\ns_cbranch_scc1 {Lt}")
        e(f"s_lshl_b32 s41, s2, 13\nv_lshlrev_b32 v30, 7, v1\nbuffer_load_dword v29, v30, s[20:23], s41 offen")
        k.label(Lt)
    e(f"s_lshl_b32 s41, s2, 7\ns_add_u32 s41, s41, {QF}\nv_mov_b32 v31, 0")
    def go():
        if QH >= 0: spin(k, xn_poll + [f"buffer_load_dword v29, v31, {FL}, s41 offen {SC}"], [16, 29], 17, slp=BSL)
        else: spin(k, xn_poll, [16], 17, slp=BSL)
    if PKE: e("s_lshr_b32 s4, s2, 1\ns_and_b32 s32, s2, 1\ns_lshl_b32 s32, s32, 7\ns_add_u32 s4, s4, s32")
    else: e("s_mov_b32 s4, s2")
    e(f"s_cmp_lt_u32 s4, 136\ns_cbranch_scc1 {Lpk}")
    go()
    for c in range(2): emit(k, issueW(c)); emit(k, issueX(c))
    e(f"s_branch {Lgu}")
    k.label(Lpk)
    PKB = 3*SLOT; PD = 128
    e("s_mul_i32 s33, s3, 320")
    for i in range(5):
        e(f"v_add_u32 v13, {64*i}, v1\nv_add_u32 v13, s33, v13\nv_mul_u32_u24 v{19+i}, 52429, v13\nv_lshrrev_b32 v{19+i}, 22, v{19+i}")
        e(f"v_mul_u32_u24 v14, 80, v{19+i}\nv_sub_u32 v14, v13, v14\nv_lshlrev_b32 v{24+i}, 4, v14")
    def pack_issue(first, lo=0):
        e("s_mul_i32 s32, s4, 241\ns_lshr_b32 s32, s32, 13\ns_mul_i32 s33, s32, 34\ns_sub_u32 s33, s4, s33")
        e("s_mul_i32 s34, s32, 384\ns_lshl_b32 s35, s33, 4\ns_add_u32 s34, s34, s35")
        e("s_sub_u32 s36, s33, 24\ns_sub_u32 s37, s33, 29\ns_cmp_ge_u32 s33, 29\ns_cselect_b32 s36, s37, s36\ns_cselect_b32 s37, 320, 0")
        e("s_mul_i32 s35, s32, 80\ns_add_u32 s35, s35, s37\ns_mul_i32 s37, s36, 20")
        e("s_cmp_eq_u32 s36, 4\ns_cselect_b32 s37, 16, s37\ns_cselect_b32 s43, 16, 0\ns_add_u32 s36, s35, s37")
        for i in range(5):
            e(f"v_lshrrev_b32 v13, 2, v{19+i}\nv_mul_u32_u24 v13, s43, v13\nv_add_u32 v13, v13, v{19+i}\nv_mul_u32_u24 v13, 1280, v13\nv_add_u32 v{3+i}, v13, v{24+i}")
        first()
        e(f"s_cmp_ge_u32 s33, 24\ns_cselect_b32 s34, s36, s34\ns_cselect_b32 s24, s{PWO}, s{PWD}\ns_cselect_b32 s25, s{PWO+1}, s{PWD+1}")
        e(f"s_cselect_b32 s26, {hex(NBYTES['wo'])}, s26\ns_mov_b32 s27, 0x20000\ns_mul_i32 s34, s34, 1280")
        e(f"s_mul_i32 s35, s3, 5120\ns_add_u32 m0, s35, {PKB+lo}")
        for i in range(5):
            e(f"buffer_load_dwordx4 v{3+i}, s[24:27], s34 offen lds")
            if i < 4: e("s_add_u32 m0, m0, 1024")
    def pack_finish(lo=0):
        for c in range(2):
            for a in range(3):
                for u in range(2):
                    ad, off = ("v10", a*64) if a < 2 else ("v11", 0)
                    e(f"ds_read_b64_tr_b16 {vr(PD+12*c+4*a+2*u,2)}, {ad} offset:{lo + c*160 + off + u*5120}")
        e(f"s_mul_i32 s5, s3, {2*136*2560}\ns_mul_i32 s6, s4, 2560\ns_add_u32 s5, s5, s6\ns_add_u32 s6, s5, {136*2560}")
        e("s_waitcnt lgkmcnt(0)")
    e("v_lshrrev_b32 v8, 5, v1\nv_bfe_u32 v9, v1, 2, 2\nv_lshl_add_u32 v9, v8, 3, v9\nv_mul_u32_u24 v9, 1280, v9")
    e(f"s_mul_i32 s32, s3, 320\ns_add_u32 s32, s32, {PKB}\nv_add_u32 v9, s32, v9")
    e("v_and_b32 v16, 1, v1\nv_bfe_u32 v17, v1, 1, 1\nv_bfe_u32 v18, v1, 4, 1")
    e("v_lshl_add_u32 v10, v16, 5, v9\nv_lshl_add_u32 v10, v17, 3, v10\nv_lshl_add_u32 v10, v18, 4, v10")
    e("v_lshl_add_u32 v11, v16, 4, v9\nv_lshl_add_u32 v11, v17, 3, v11\nv_add_u32 v11, 128, v11\nv_lshl_add_u32 v11, v18, 18, v11")
    e("v_and_b32 v12, 15, v1\nv_lshlrev_b32 v12, 4, v12\nv_lshl_add_u32 v12, v8, 8, v12\nv_lshl_add_u32 v12, v18, 30, v12")
    e(f"s_lshl_b32 s75, s4, 2\ns_add_u32 s75, s75, {PKF}")
    e(f"s_mov_b32 s26, {hex(NBYTES['wd'])}")
    pack_issue(go)
    for c in range(2): emit(k, issueW(c)); emit(k, issueX(c))
    e("s_waitcnt vmcnt(10)\ns_barrier")
    pack_finish()
    k.label(Lgu)
    bstamp(k, "p0")
    srd_from(k, 28, PWS, AF_BYTES, AF_OFF)
    def reads(fs, sl, ks):
        L = [f"ds_read_b128 {vr(FR[fs]+12,4)}, v{RB} offset:{sl*SLOT + ks*1024}"]
        for a in range(3):
            for u in range(2):
                L.append(f"ds_read_b64_tr_b16 {vr(FR[fs]+4*a+2*u,2)}, v{RA+a} offset:{sl*SLOT + (16*ks+4*u)*192}")
            if a == 0: L.append(f"ds_read_b128 {vr(FR[fs]+16,4)}, v{RB} offset:{sl*SLOT + 2048 + ks*1024}")
        return L
    def mfmas(fs, c0=False):
        return [f"{MF} {vr(ACC+16*(2*a+b),16)}, {vr(FR[fs]+4*a,4)}, {vr(FR[fs]+12+4*b,4)}, {'0' if c0 else vr(ACC+16*(2*a+b),16)}" for a in range(3) for b in range(2)]
    e("s_mov_b32 s42, 0\nv_min_u32 v4, 33, v1\nv_lshlrev_b32 v4, 4, v4")
    e("s_waitcnt vmcnt(5)\ns_barrier")
    e(f"s_setprio {GP0}")
    bstamp(k, "gu0")
    if ONLY == "A":
        e("s_waitcnt vmcnt(0)"); stamp_dump(k, 0, 6, "s2", PWS); e("s_endpgm")
    emit(k, reads(0, 0, 0))
    srd_from(k, 24, PWS, WP_BYTES, WP_OFF)
    e(f"s_mul_i32 s11, s10, {4*34*2560}\ns_mul_i32 s43, s3, 5120\ns_add_u32 s11, s11, s43\ns_mov_b32 s35, {HUGE}")
    st_loads = [f"buffer_load_dwordx4 v[16:19], v4, {FL}, s36 offen {SC}"]
    def issueP(sl):
        L = [[f"s_add_u32 m0, s43, {sl*SLOT}", "s_add_u32 s33, s11, 4096"]]
        for i in range(4): L.append([f"buffer_load_dwordx4 v2, s[24:27], s11 offen offset:{i*1024} {SC} lds"])
        L[4].append("s_add_u32 m0, m0, 4096")
        L.append([f"buffer_load_dwordx4 v2, s[24:27], s33 offen {SC} lds", f"s_add_u32 s11, s11, {34*2560}"])
        return L
    L = k.newlabel("gu")
    def trip(last):
        for sl in range(4):
            e("s_waitcnt lgkmcnt(0)")
            rd = reads(1, sl, 1); mf = mfmas(0)
            sh = [rd[0:2], rd[2:4], rd[4:6], rd[6:8], [], []]
            if not last and sl == 1: sh[4] = ["s_cmp_eq_u32 s42, 3", f"s_cselect_b32 s36, {PKF}, s35"] + st_loads
            for i in range(6):
                e(mf[i]); emit(k, sh[i])
            if sl == 0 and not last:
                Ls = k.newlabel("nps")
                e(f"s_cmp_ge_u32 s4, 136\ns_cbranch_scc1 {Ls}\ns_cmp_lg_u32 s42, 1\ns_cbranch_scc1 {Ls}")
                for c in range(2):
                    for a in range(3):
                        e(f"buffer_store_dwordx4 {vr(PD+12*c+4*a,4)}, {'v2' if a < 2 else 'v12'}, s[24:27], s{5+c} offen offset:{a*1024} {SC}")
                k.label(Ls)
            if sl == 1 and not last:
                Ls = k.newlabel("npf")
                e(f"s_cmp_ge_u32 s4, 136\ns_cbranch_scc1 {Ls}\ns_cmp_lg_u32 s42, 2\ns_cbranch_scc1 {Ls}")
                setflag(k, "s75", 10)
                k.label(Ls)
            if sl == 2 and GSW >= 0 and not last:
                Lt = k.newlabel("gsw")
                e(f"s_cmp_lg_u32 s42, {GSW}\ns_cbranch_scc1 {Lt}\ns_setprio {GP1}")
                k.label(Lt)
            if sl == 0 and not last: k.label(Lgm)
            e("s_waitcnt vmcnt(10) lgkmcnt(0)\ns_barrier")
            rd = reads(0, (sl+1) % 4, 0) if not (last and sl == 3) else [[]]*8
            mf = mfmas(1)
            if not last:
                iw = issueW(sl); ix = issueX(sl)
                sh = [rd[0:2] + iw[0], rd[2:4] + iw[1], rd[4:6] + iw[2], rd[6:8] + iw[3] + ix[0], ix[1], ix[2]]
                if sl == 3: sh[5] = sh[5] + ["s_add_u32 s42, s42, 1", "s_cmp_lt_u32 s42, 4"]
            else:
                ip = issueP(sl)
                sh = [rd[0:2] + ip[0], rd[2:4] + ip[1], rd[4:6] + ip[2], rd[6:8] + ip[3], ip[4], ip[5]]
            for i in range(6):
                e(mf[i]); emit(k, sh[i])
    Lgm = k.newlabel("gum")
    dq = issueW(2) + issueX(2) + issueW(3) + issueX(3)
    emit(k, dq[:4]); dq = dq[4:]
    e("s_waitcnt lgkmcnt(0)")
    rd = reads(1, 0, 1); mf = mfmas(0, True)
    for i in range(6):
        e(mf[i]); emit(k, rd[2*i:2*i+2]); emit(k, dq[:2]); dq = dq[2:]
    emit(k, dq)
    e(f"s_branch {Lgm}")
    k.label(L, 6)
    trip(False)
    e(f"s_cbranch_scc1 {L}")
    Lok = k.newlabel("pkok")
    e(f"s_setprio 2\nv_xor_b32 v20, {TAG}, v16")
    for r in (17, 18, 19): e(f"v_xor_b32 v{r}, {TAG}, v{r}\nv_or_b32 v20, v20, v{r}")
    e(f"v_cmp_ne_u32 vcc, 0, v20\ns_cmp_eq_u64 vcc, 0\ns_cbranch_scc1 {Lok}")
    spin(k, st_loads, [16, 17, 18, 19], 20)
    k.label(Lok)
    e(f"s_setprio {GP0}")
    trip(True)
    e("s_setprio 2")
    e("v_lshrrev_b32 v8, 5, v1")
    e(f"s_mul_i32 s14, s3, {SLOT}")
    srd_from(k, 20, PWS, WP_BYTES, WP_OFF)
    srd_from(k, 16, PX, NBYTES['x'])
    e(f"s_lshl_b32 s12, s10, 2\ns_add_u32 s12, s12, s3\ns_mul_i32 s12, s12, {34*2560}\ns_add_u32 s12, s12, {4*5120}")
    e(f"s_lshl_b32 s32, s7, 1\ns_add_u32 s32, s32, s39\ns_mul_i32 s32, s32, 272\ns_mul_i32 s43, s8, 6\ns_add_u32 s32, s32, s43\ns_add_u32 s32, s32, s40\ns_add_u32 s32, s32, 40\ns_lshl_b32 s32, s32, 10")
    e(f"s_add_u32 s34, s32, {136*1024}\ns_mov_b32 s33, {hex(f32bits(LOG2E*LOG2E))}")
    e("s_waitcnt lgkmcnt(0)")
    bstamp(k, "gu1")
    def issueW2(sl):
        L = [[f"s_add_u32 m0, s14, {sl*5120}", "s_add_u32 s33, s12, 4096"]]
        for i in range(4): L.append([f"buffer_load_dwordx4 v2, s[20:23], s12 offen offset:{i*1024} {SC} lds"])
        L[4].append("s_add_u32 m0, m0, 4096")
        L.append([f"buffer_load_dwordx4 v2, s[20:23], s33 offen {SC} lds", "s_add_u32 s12, s12, 5120"])
        return L
    T = 176
    if PKS: e("v_mov_b32 v184, s33\nv_mov_b32 v185, s33")
    for a in range(3):
        for b in range(2):
            g = ACC + 16*(2*a+b); u = g + 8
            for j in range(8): e(f"v_exp_f32 v{T+j}, -v{g+j}")
            if PKS:
                for j in range(0, 8, 2): e(f"v_pk_mul_f32 {vr(g+j,2)}, {vr(g+j,2)}, {vr(u+j,2)}")
                for j in range(0, 8, 2): e(f"v_pk_fma_f32 {vr(T+j,2)}, {vr(T+j,2)}, v[184:185], v[184:185]")
            else:
                for j in range(8): e(f"v_mul_f32 v{g+j}, v{g+j}, v{u+j}")
                for j in range(8): e(f"v_fma_f32 v{T+j}, v{T+j}, s33, s33")
            for j in range(8): e(f"v_rcp_f32 v{T+j}, v{T+j}")
            if PKS:
                for j in range(0, 8, 2): e(f"v_pk_mul_f32 {vr(g+j,2)}, {vr(g+j,2)}, {vr(T+j,2)}")
            else:
                for j in range(8): e(f"v_mul_f32 v{g+j}, v{g+j}, v{T+j}")
            for j in range(4): e(f"v_cvt_pk_bf16_f32 v{u+j}, v{g+2*j}, v{g+2*j+1}")
            e(f"buffer_store_dwordx4 {vr(u,4)}, v2, s[28:31], {'s34' if b else 's32'} offen offset:{a*1024} {SC}")
    wq_ = []
    assert not wq_
    e("v_add_u32 v10, s14, v2\nv_and_b32 v11, 15, v1\nv_lshlrev_b32 v11, 4, v11\nv_lshl_add_u32 v11, v8, 8, v11\nv_bfe_u32 v9, v1, 4, 1")
    e("v_lshl_add_u32 v7, v9, 30, v11\nv_lshl_add_u32 v11, v9, 18, v11\nv_add_u32 v11, s14, v11")
    e(f"s_lshl_b32 s35, s7, 4\ns_add_u32 s36, s35, s8\ns_lshl_b32 s36, s36, 7\ns_add_u32 s36, s36, {HF}")
    e(f"s_mul_i32 s24, s9, {272*1024}\ns_mul_i32 s32, s3, {24*1024}\ns_add_u32 s26, s24, s32\ns_add_u32 s26, s26, {40*1024}\ns_add_u32 s27, s26, {136*1024}")
    e("v_and_b32 v14, 3, v1\nv_lshlrev_b32 v14, 7, v14\nv_and_b32 v6, 1, v1\nv_lshlrev_b32 v6, 7, v6")
    if WF: e("v_bfe_u32 v5, v1, 1, 2\nv_lshl_add_u32 v6, v5, 2, v6")
    e(f"s_lshl_b32 s32, s3, 2\ns_add_u32 s32, s32, s35\ns_lshl_b32 s32, s32, 7\ns_add_u32 s32, s32, {HF}")
    e("s_lshr_b32 s40, s3, 1\ns_and_b32 s41, s3, 1")
    e("s_lshl_b32 s34, s9, 1\ns_add_u32 s34, s34, s40\ns_mul_i32 s34, s34, 40960\ns_mul_i32 s33, s10, 160\ns_add_u32 s43, s34, s33")
    e("v_and_b32 v5, 31, v1\nv_mul_u32_u24 v5, 1280, v5")
    e("s_lshl_b32 s34, s41, 6\nv_lshl_add_u32 v12, v8, 5, v5\nv_add_u32 v12, s34, v12")
    e("s_lshl_b32 s34, s41, 3\ns_add_u32 s34, s34, 128\nv_lshl_add_u32 v13, v8, 4, v5\nv_add_u32 v13, s34, v13")
    e("s_mul_i32 s34, s40, 10240\ns_lshl_b32 s33, s41, 12\ns_add_u32 s33, s33, s34\nv_add_u32 v15, s33, v2")
    e("s_lshl_b32 s33, s41, 10\ns_add_u32 s33, s33, s34\ns_add_u32 s33, s33, 8192\nv_add_u32 v3, s33, v2")
    e(f"s_lshl_b32 s25, s9, 3\ns_add_u32 s25, s25, s3\ns_lshl_b32 s25, s25, 7\ns_add_u32 s25, s25, {OF}\nv_mov_b32 v6, 0")
    e(f"s_mul_i32 s33, s3, {10*1024}\ns_add_u32 s24, s24, s33")
    e("s_waitcnt vmcnt(0)\ns_barrier")
    setflag(k, "s36", 16, "B")
    hl = [f"buffer_load_dword v16, v14, {FL}, s32 offen {SC}"]
    XS = 232; G4 = [20, 244]
    e(f"s_add_u32 s34, s12, {24*2560}\ns_add_u32 s35, s12, {25*2560}")
    srd_from(k, 36, POUT, NBYTES['out'])
    if SENT and ONLY != "B":
        spin(k, hl + [f"buffer_load_dword v18, v6, {FL}, s25 offen {SC}", f"buffer_load_dword v19, v6, {FL}, s25 offen offset:512 {SC}"], [16, 18, 19], 17)
    else: spin(k, hl, [16], 17)
    e(f"s_setprio {TP}")
    XR = 128; FA = [208, 220]
    def issueX2(rs):
        L = []
        for ks in range(2):
            for b in range(2):
                L.append([f"buffer_load_dwordx4 {vr(XR+16*rs+8*ks+4*b,4)}, v2, s[28:31], s{26+b} offen offset:{ks*1024} {SC}"])
        L[3] += ["s_add_u32 s26, s26, 2048", "s_add_u32 s27, s27, 2048"]
        return L
    for g in range(4): emit(k, issueX2(g))
    def reads2(fs, sl, ks):
        return [f"ds_read_b128 {vr(FA[fs]+4*a,4)}, {'v10' if a < 2 else 'v11'} offset:{sl*5120 + ks*2560 + a*1024}" for a in range(3)]
    def mfmas2(fs, rs, ks, c0=False):
        return [f"{MF} {vr(ACC+16*(3*b+a),16)}, {vr(FA[fs]+4*a,4)}, {vr(XR+16*rs+8*ks+4*b,4)}, {'0' if c0 else vr(ACC+16*(3*b+a),16)}" for a in range(3) for b in range(2)]
    e(f"s_mov_b32 s42, 0\ns_setprio {DP}")
    emit(k, reads2(0, 0, 0))
    e("s_waitcnt vmcnt(14) lgkmcnt(0)")
    bstamp(k, "dn0")
    L = k.newlabel("dn"); Lm = k.newlabel("dnm")
    rd = reads2(1, 0, 1); mf = mfmas2(0, 0, 0, True)
    for i in range(6):
        e(mf[i]); emit(k, rd[i:i+1])
    e("s_waitcnt vmcnt(0)")
    for ks in range(2):
        for a in range(3):
            e(f"buffer_load_dwordx4 {vr(G4[ks]+4*a,4)}, {'v2' if a < 2 else 'v7'}, s[20:23], s{34+ks} offen offset:{a*1024} {SC}")
    e(f"buffer_load_dwordx4 {vr(XS,4)}, v12, s[16:19], s43 offen")
    e(f"buffer_load_dwordx4 {vr(XS+4,4)}, v12, s[16:19], s43 offen offset:16")
    e(f"buffer_load_dwordx2 {vr(XS+8,2)}, v13, s[16:19], s43 offen")
    e(f"s_branch {Lm}")
    k.label(L, 6)
    for sl in range(4):
        e("s_waitcnt lgkmcnt(0)")
        rd = reads2(1, sl, 1); mf = mfmas2(0, sl, 0)
        sh = [rd[0:1], rd[1:2], rd[2:3], [], [], []]
        if sl == 0: sh[3] = ["s_cmp_eq_u32 s42, 2", f"s_cselect_b32 s26, {HUGE}, s26", f"s_cselect_b32 s27, {HUGE}, s27"]
        for i in range(6):
            e(mf[i]); emit(k, sh[i])
        if sl == 0: k.label(Lm)
        e("s_waitcnt vmcnt(18) lgkmcnt(0)")
        rd = reads2(0, (sl+1) % 4, 0); mf = mfmas2(1, sl, 1)
        iw = issueW2(sl); ix = issueX2(sl)
        sh = [rd[0:1] + iw[0], rd[1:2] + iw[1], rd[2:3] + iw[2], iw[3] + iw[4], iw[5], ix[0] + ix[1] + ix[2] + ix[3]]
        if sl == 3: sh[5] = sh[5] + ["s_add_u32 s42, s42, 1", "s_cmp_lt_u32 s42, 3"]
        for i in range(6):
            e(mf[i]); emit(k, sh[i])
    e(f"s_cbranch_scc1 {L}")
    e("s_setprio 2")
    emit(k, reads2(1, 0, 1))
    bstamp(k, "dn1")
    def oload(b, t):
        return [f"s_add_u32 s26, s24, {b*136*1024 + t*1024}", f"buffer_load_dwordx4 {vr(XR+40*b+4*t,4)}, v2, s[28:31], s26 offen {SC}"]
    f2 = [f"buffer_load_dword v18, v6, {FL}, s25 offen offset:512 {SC}"]
    def early_loads():
        for t in range(5):
            for b in range(2): emit(k, oload(b, t))
    if not SENT:
        if ONLY != "B": spin(k, [f"buffer_load_dword v16, v6, {FL}, s25 offen {SC}"] + f2, [16], 17)
        else: e(f"s_waitcnt vmcnt(0)\nv_mov_b32 v18, {TAG}")
        early_loads()
    seq = [(t, (0, 1)) for t in range(5)] + [(t, (0,)) for t in range(5, 10)] + [(t, (1,)) for t in range(5, 10)]
    lsteps = [t for t, _ in seq if t < 8]
    wr = [f"ds_write_b128 v10, {vr(ACC+4*q,4)} offset:{q*1024}" for q in range(10)]
    def late_loads():
        for b in range(2):
            for t2 in range(5, 10): emit(k, oload(b, t2))
    def steps(us, lds, n, younger):
        for u in us:
            t, bs = seq[u]
            vm = (8 - 2*u + younger) if u < 5 else (14 - u)
            if t < 8:
                last = max([i for i, x in enumerate(lds) if x == f"n{n}"], default=-1)
                lds = lds[last+1:]
                e(f"s_waitcnt vmcnt({vm}) lgkmcnt({min(15, len(lds))})")
                F = FA[n & 1]
            else:
                e(f"s_waitcnt vmcnt({vm})")
                F = G4[t-8]
            for a in range(3):
                for b in bs:
                    e(f"{MF} {vr(ACC+16*(3*b+a),16)}, {vr(F+4*a,4)}, {vr(XR+40*b+4*t,4)}, {vr(ACC+16*(3*b+a),16)}")
                    if u >= 11 and wr:
                        e(wr.pop(0)); lds.append("w")
            if t < 8:
                if n + 2 < len(lsteps):
                    t2 = lsteps[n+2]
                    emit(k, reads2(n & 1, t2 >> 1, t2 & 1)); lds += [f"n{n+2}"]*3
                n += 1
        return lds, n
    if not SENT:
        Lb, Lj = k.newlabel("both"), k.newlabel("join")
        e(f"v_cmp_ne_u32 vcc, {TAG}, v18\ns_cmp_eq_u64 vcc, 0\ns_cbranch_scc1 {Lb}")
        emit(k, f2)
        steps(range(5), ["n0"]*3 + ["n1"]*3, 0, 1)
        spin(k, f2, [18], 17, pre_issued=True)
        late_loads()
        e(f"s_branch {Lj}")
        k.label(Lb)
        late_loads()
        lds, n = steps(range(5), ["n0"]*3 + ["n1"]*3, 0, 10)
        k.label(Lj)
        bstamp(k, "of")
        steps(range(5, 15), lds, n, 0)
    else:
        def dpoll(loads, t0, first_wait):
            Lp, Lc, Ld = k.newlabel("dp"), k.newlabel("dc"), k.newlabel("dd")
            e(f"s_waitcnt vmcnt({first_wait})\ns_branch {Lc}")
            k.label(Lp)
            loads()
            e("s_waitcnt vmcnt(0)")
            k.label(Lc)
            for b in range(2):
                r = XR + 40*b + 4*t0
                e(f"v_max_u32 v{16+b}, v{r}, v{r+1}")
                for j in range(2, 20, 2): e(f"v_max3_u32 v{16+b}, v{16+b}, v{r+j}, v{r+j+1}")
            e(f"v_max_u32 v16, v16, v17\nv_cmp_eq_u32 vcc, -1, v16\ns_cmp_eq_u64 vcc, 0\ns_cbranch_scc1 {Ld}")
            e(f"s_cmp_eq_u32 {BUD}, 0\ns_cbranch_scc1 {Ld}\ns_sub_u32 {BUD}, {BUD}, 1\ns_branch {Lp}")
            k.label(Ld)
        early_loads(); late_loads()
        dpoll(early_loads, 0, 10)
        lds, n = steps(range(5), ["n0"]*3 + ["n1"]*3, 0, 50)
        dpoll(late_loads, 5, 0)
        bstamp(k, "of")
        steps(range(5, 15), lds, n, 0)
    assert not wr
    bstamp(k, "mm")
    for q in range(10):
        e(f"ds_write_b128 v10, {vr(ACC+48+4*q,4)} offset:{(10+q)*1024}")
    e("s_waitcnt lgkmcnt(0)\ns_barrier")
    R = 128
    for w in range(4):
        for q in range(4):
            e(f"ds_read_b128 {vr(R+20*w+4*q,4)}, v15 offset:{w*SLOT + q*1024}")
        e(f"ds_read_b128 {vr(R+20*w+16,4)}, v3 offset:{w*SLOT}")
    for j in range(10):
        e(f"v_lshlrev_b32 v{ACC+2*j}, 16, v{XS+j}\nv_and_b32 v{ACC+2*j+1}, 0xffff0000, v{XS+j}")
    for w in range(4):
        e(f"s_waitcnt lgkmcnt({15-5*w})")
        for j in range(0, 20, 2):
            e(f"v_pk_add_f32 {vr(ACC+j,2)}, {vr(ACC+j,2)}, {vr(R+20*w+j,2)}")
    for j in range(10):
        e(f"v_cvt_pk_bf16_f32 v{XS+j}, v{ACC+2*j}, v{ACC+2*j+1}")
    bstamp(k, "rd")
    e(f"buffer_store_dwordx4 {vr(XS,4)}, v12, s[36:39], s43 offen {OM}")
    e(f"buffer_store_dwordx4 {vr(XS+4,4)}, v12, s[36:39], s43 offen offset:16 {OM}")
    e(f"buffer_store_dwordx2 {vr(XS+8,2)}, v13, s[36:39], s43 offen {OM}")
    stamp_dump(k, 0, 9, "s2", PWS)
    e("s_endpgm")

def w160_voffs(k, dst, t):
    e = k.e
    for i in range(5):
        e(f"v_add_u32 v{t}, {64*i}, v1\nv_mul_u32_u24 v{t+1}, 6554, v{t}\nv_lshrrev_b32 v{t+1}, 16, v{t+1}")
        e(f"v_mul_u32_u24 v{t+2}, 10, v{t+1}\nv_sub_u32 v{t+2}, v{t}, v{t+2}")
        e(f"v_and_b32 v{t}, 24, v{t+1}\nv_bfe_u32 v{t+3}, v{t+1}, 1, 2\nv_add_u32 v{t}, v{t}, v{t+3}\nv_and_b32 v{t+3}, 1, v{t+1}\nv_lshl_add_u32 v{t}, v{t+3}, 2, v{t}")
        e(f"v_mul_u32_u24 v{t}, 1280, v{t}\nv_lshl_add_u32 v{dst+i}, v{t+2}, 4, v{t}")

def roleA(k, mid):
    e = k.e
    AST = env("AST", 0)
    import common
    def stamp(k, i, q=False):
        if AST and not q and 2 < i < 7: return
        if q and not AST: return
        common.stamp(k, i)
    KVSLOT = 24576; KV0 = 8192
    QS = 20480; QX = 10240
    S0, S1 = 32, 48; SA = 64
    Q = [16, 24]; O = [144, 160]; P = [96, 104]; KVB = [112, 128]; KT = 176
    KL = lambda s: KVB[s]; KH = lambda s: KVB[s]+4; V0 = lambda s: KVB[s]+8; V1 = lambda s: KVB[s]+12
    AKL, AKH, AV, BKH, BV = 8, 9, 10, 11, 12
    WV = 16; XV = 21; RB = 24; ONES = 28
    FRG = 80
    AO2 = 241; RB2 = 224
    stamp(k, 0)
    e("s_bfe_u32 s8, s2, 0x20001\ns_lshl_b32 s8, s8, 3\ns_lshr_b32 s9, s2, 5\ns_add_u32 s8, s8, s9")
    e("s_and_b32 s9, s2, 1\ns_lshl_b32 s9, s9, 2\ns_bfe_u32 s32, s2, 0x20003\ns_add_u32 s9, s9, s32")
    e("s_add_u32 s11, s8, s9\ns_mul_i32 s11, s11, 3\ns_mul_i32 s32, s11, 205\ns_lshr_b32 s32, s32, 11\ns_mul_i32 s32, s32, 10\ns_sub_u32 s11, s11, s32")
    if ROT == 0: e("s_mov_b32 s11, 0")
    if ROT == 2: e("s_and_b32 s11, s11, 1")
    if ROT == 3: e("s_bfe_u32 s11, s2, 0x20001\ns_lshl_b32 s11, s11, 1")
    x_voffs(k, XV, 3)
    w160_voffs(k, WV, 3)
    def essential():
        e("v_lshrrev_b32 v6, 5, v1")
        e("v_bfe_u32 v7, v1, 2, 2\nv_lshl_add_u32 v7, v6, 2, v7\nv_mul_u32_u24 v4, 320, v7")
        e("v_and_b32 v7, 1, v1\nv_lshlrev_b32 v7, 4, v7")
        e("v_bfe_u32 v8, v1, 1, 1\nv_lshl_add_u32 v7, v8, 3, v7")
        e("v_and_b32 v8, 16, v1\nv_cmp_ne_u32 vcc, 0, v8\nv_mov_b32 v8, 32\nv_cndmask_b32 v7, v7, v8, vcc")
        e("v_add_u32 v4, v4, v7\ns_mul_i32 s32, s3, 40\nv_add_u32 v4, s32, v4")
        e("v_and_b32 v8, 19, v1\nv_cmp_lt_u32 vcc, 16, v8\nv_mov_b32 v8, 0x40000\nv_cndmask_b32 v4, v4, v8, vcc")
        e("v_add_u32 v5, 40960, v4")
        x_raddr(k, RB, 7, str(QX))
        for j in range(4): e(f"v_mov_b32 v{ONES+j}, 0x3f803f80")
        for j in range(4): e(f"v_add_u32 v{RB2+j}, 40960, v{RB+j}")
    if ADLY == 3: essential()
    Lw = k.newlabel("wrole")
    e(f"s_mul_i32 s12, s3, 40960\ns_mul_i32 s32, s9, 160\ns_add_u32 s12, s12, s32\ns_mov_b32 s13, {64*1280}")
    e("s_waitcnt lgkmcnt(0)")
    srd_from(k, 20, PWQ, NBYTES['wq'])
    e(f"s_mov_b64 s[18:19], -1\ns_cmp_lt_u32 s3, 2\ns_cbranch_scc1 {Lw}\ns_mov_b64 s[18:19], 1")
    for i in range(4): e(f"v_add_u32 v{WV+i}, {10240*i}, v{XV+(i&1)}")
    e(f"v_mov_b32 v{WV+4}, {HUGE}")
    e("s_lshl_b32 s33, s8, 1\ns_add_u32 s33, s33, s3\ns_sub_u32 s33, s33, 2\ns_mul_i32 s12, s33, 40960\ns_mov_b32 s13, 128")
    srd_from(k, 20, PX, NBYTES['x'])
    k.label(Lw)
    e("s_mul_i32 s34, s11, s13\ns_add_u32 s34, s34, s12\ns_mul_i32 s35, s13, 10\ns_add_u32 s35, s35, s12\ns_mul_i32 s14, s3, 5120")
    def st_issue(slot):
        L = [[f"s_add_u32 m0, s14, {slot*QS}"]]
        for i in range(5):
            g = [f"buffer_load_dwordx4 v{WV+i}, s[20:23], s34 offen lds"]
            if i < 4: g += ["s_add_u32 m0, m0, 1024"]
            else: g = ["s_mov_b64 exec, s[18:19]"] + g + ["s_mov_b64 exec, -1", "s_add_u32 s34, s34, s13", "s_cmp_eq_u32 s34, s35", "s_cselect_b32 s34, s12, s34"]
            L.append(g)
        return L
    if ADLY == 0: emit(k, st_issue(0))
    if ADLY == 3:
        emit(k, st_issue(0)); tag_setup(k); emit(k, st_issue(1))
    mid()
    mark = len(k.items)
    if ADLY != 3: tag_setup(k)
    srd_from(k, 24, PWS, KV_BYTES, KV_OFF)
    srd_from(k, 28, PWS, AF_BYTES, AF_OFF)
    if ADLY != 3: essential()
    e(f"v_and_b32 v7, 31, v1\nv_lshlrev_b32 v{BKH}, 3, v7\nv_add_u32 v{BKH}, 1024, v{BKH}\nv_lshl_add_u32 v{BKH}, v6, 18, v{BKH}")
    e("v_and_b32 v13, 19, v7\nv_bfe_u32 v14, v7, 2, 1\nv_lshl_add_u32 v13, v14, 3, v13\nv_bfe_u32 v14, v7, 3, 1\nv_lshl_add_u32 v13, v14, 2, v13")
    e(f"v_mul_u32_u24 v{BV}, 24, v6\nv_add_u32 v{BV}, v{BV}, v13")
    e("v_cmp_le_u32 vcc, 28, v7\nv_cndmask_b32 v13, 0, 1, vcc\nv_xor_b32 v13, v13, v6\nv_mul_u32_u24 v13, 24, v13\nv_add_u32 v13, 20, v13")
    e("v_and_b32 v15, 27, v7\nv_cmp_ne_u32 vcc, 24, v15\nv_mov_b32 v15, 0x4000\nv_cndmask_b32 v13, v13, v15, vcc")
    e(f"v_cmp_le_u32 vcc, 20, v7\nv_cndmask_b32 v{BV}, v{BV}, v13, vcc")
    e(f"v_lshlrev_b32 v{BV}, 4, v{BV}\nv_add_u32 v{BV}, 1536, v{BV}")
    c0 = KV0 + 2*KVSLOT
    e(f"v_add_u32 v{AKL}, {c0}, v2\nv_add_u32 v{AKH}, {c0}, v{BKH}\nv_add_u32 v{AV}, {c0}, v{BV}")
    e(f"s_lshr_b32 s32, s3, 1\ns_lshl_b32 s32, s32, 9\ns_and_b32 s33, s3, 1\ns_lshl_b32 s33, s33, 3\ns_add_u32 s32, s32, s33")
    e(f"v_lshl_add_u32 v{AO2}, v7, 4, s32\nv_lshl_add_u32 v{AO2}, v6, 30, v{AO2}")
    e(f"v_lshlrev_b32 v13, {KVS}, v1\nv_lshlrev_b32 v14, 3, v7")
    e(f"s_lshl_b32 s39, s8, 9\ns_add_u32 s39, s39, {STAT}\ns_lshl_b32 s38, s3, {KVS+6}\ns_add_u32 s38, s38, {KVF}\ns_mul_i32 s36, s3, 6144")
    for t in range(4): e(f"v_mov_b32 v{KT+8*t+6}, 0\nv_mov_b32 v{KT+8*t+7}, 0")
    if ADLY == 0:
        setup = k.items[mark:]; del k.items[mark:]
        groups = st_issue(1) + st_issue(2) + st_issue(3)
        per = -(-len(setup) // len(groups))
        for g in groups:
            take = per
            while take < len(setup) and setup[take].op.startswith(("s_addc", "s_cselect")): take += 1
            k.items += setup[:take]; setup = setup[take:]
            emit(k, g)
        k.items += setup
    late = []
    if ADLY == 3:
        late = k.items[mark:]; del k.items[mark:]
    if ADLY == 2: tag_finish(k)
    if ADLY in (1, 2):
        for sl in range(2): emit(k, st_issue(sl))
    if ADLY != 2: tag_finish(k)
    stamp(k, 1)
    def kv_issue(chunk_soff, slot_base):
        L = []
        for half in range(2):
            L.append([f"s_add_u32 m0, s36, {slot_base + half*3072}", f"s_add_u32 s32, s36, {chunk_soff + half*3072}"])
            for j in range(3):
                L.append([f"buffer_load_dwordx4 v2, s[24:27], s32 offen offset:{j*1024} {SC} lds"])
        return L
    PL = 232
    kv_poll = [f"buffer_load_dword v{PL}, v13, {FL}, s38 offen {SC}"]
    pl_loads = [f"buffer_load_dwordx2 {vr(PL+2,2)}, v14, {FL}, s39 offen {SC}", f"buffer_load_dwordx2 {vr(PL+4,2)}, v14, {FL}, s39 offen offset:256 {SC}"]
    inits = []
    for j in range(8): inits += [(P[1]+j, "0"), (V0(1)+j, "0")]
    for s_ in range(2): inits += [(KH(s_)+2, "0x3f803f80"), (KH(s_)+3, "0")]
    for j in range(32): inits += [(O[0]+j, "0")]
    inits.sort()
    def hreads(h):
        sl = h % 4; F = FRG + 48*(h & 1); L = []
        so = (sl & 1) * QS; ta = "v5" if sl >= 2 else "v4"; rb = RB2 if sl >= 2 else RB
        for ks in range(4):
            for u in range(2): L.append(f"ds_read_b64_tr_b16 {vr(F+12*ks+2*u,2)}, {ta} offset:{so + ks*2560 + u*160}")
            for b in range(2): L.append(f"ds_read_b128 {vr(F+12*ks+4+4*b,4)}, v{rb+ks} offset:{so + b*5120}")
        return L
    e(f"s_waitcnt vmcnt({5 if ADLY else 15})\ns_barrier")
    stamp(k, 2)
    emit(k, hreads(0))
    if ADLY: emit(k, st_issue(2))
    kt_loads = [["s_mov_b32 s33, 6144"]]
    for t in range(4):
        so, off = ("0", t*3072) if t < 2 else ("s33", (t-2)*3072)
        kt_loads.append([f"buffer_load_dwordx4 {vr(KT+8*t,4)}, v2, s[24:27], {so} offen offset:{off} {SC}",
                         f"buffer_load_dwordx2 {vr(KT+8*t+4,2)}, v{BKH}, s[24:27], {so} offen offset:{off} {SC}"])
    mark2 = len(k.items)
    for b in range(2):
        st = PL + 2 + 2*b
        e(f"v_lshlrev_b32 v{238+b}, 16, v{st}\nv_xor_b32 v{238+b}, 0x80000000, v{238+b}\nv_and_b32 v{st}, 0xffff0000, v{st}")
        e(f"v_rcp_f32 v{st}, v{st}\nv_mul_f32 v{st}, {hex(f32bits(QSCALE))}, v{st}")
    e(f"s_mov_b32 s40, 0\ns_mov_b32 s41, {KV0}\ns_add_u32 s35, s36, {KV0}\ns_add_u32 s42, s35, {KVSLOT}\ns_add_u32 s43, s36, {2*KVSLOT}\ns_add_u32 s39, s35, {3*KVSLOT}")
    e("s_and_b32 s32, s9, 3\ns_mul_i32 s32, s32, 10\ns_mul_i32 s33, s8, 272\ns_add_u32 s32, s32, s33\ns_lshr_b32 s33, s9, 2\ns_mul_i32 s33, s33, 5\ns_add_u32 s32, s32, s33")
    e("s_add_u32 s16, s32, 4\ns_lshl_b32 s16, s16, 10\ns_add_u32 s12, s32, s3\ns_lshl_b32 s12, s12, 10")
    e(f"s_add_u32 s13, s12, {136*1024}\ns_add_u32 s17, s16, {136*1024}")
    e(f"s_lshl_b32 s14, s8, 3\ns_add_u32 s14, s14, s9\ns_lshl_b32 s14, s14, 7\ns_add_u32 s14, s14, {OF}")
    fill = k.items[mark2:]; del k.items[mark2:]
    first_reads = []
    for t in range(4): first_reads += [f"ds_read_b128 {vr(KT+8*t,4)}, v{AKL} offset:{t*3072}", f"ds_read_b64 {vr(KT+8*t+4,2)}, v{AKH} offset:{t*3072}"]
    first_reads += [f"ds_read_b128 {vr(V0(0),4)}, v{AV}", f"ds_read_b128 {vr(V1(0),4)}, v{AV} offset:768"]
    for s_ in range(2): first_reads += [f"ds_read_b128 {vr(KL(s_),4)}, v{AKL} offset:{s_*3072}", f"ds_read_b64 {vr(KH(s_),2)}, v{AKH} offset:{s_*3072}"]
    for h in range(10):
        F = FRG + 48*(h & 1)
        if h < PH:
            n = {0: 5 if ADLY else 10, 7: 5, 8: 0}.get(h, 10) + (3 if h == PH - 1 else 0)
            e(f"s_waitcnt vmcnt({n}) lgkmcnt(0)")
        else:
            if h == PH: spin(k, pl_loads + kv_poll, [PL, PL+3, PL+5], 15, pre_issued=True, slp=KSL)
            e("s_waitcnt lgkmcnt(0)" + (" vmcnt(0)" if h == 9 else ""))
        e("s_barrier")
        if h in (2, 4, 6, 8): stamp(k, 2 + h//2, True)
        if h == QH:
            e(f"s_lshl_b32 s37, s2, 7\ns_add_u32 s37, s37, {QF}")
            setflag(k, "s37", 242)
        rd = hreads(h+1) if h < 9 else first_reads
        dm = st_issue(h % 4) if h < 6 else []
        if h == 0 and ADLY: dm = st_issue(3) + dm
        if h == PH - 2:
            assert not late
            dm = dm + [pl_loads + kv_poll]
        if h == PH: dm = kv_issue(0, KV0 + 2*KVSLOT)
        if h == 9 and KV1: dm = kv_issue(KVSLOT, KV0)
        i = 0
        for ks in range(4):
            first = (h == 0 and ks == 0)
            for acc, bop in ((S0, F+12*ks+4), (S1, F+12*ks+8), (SA, ONES)):
                e(f"{MF} {vr(acc,16)}, {vr(F+12*ks,4)}, {vr(bop,4)}, {'0' if first else vr(acc,16)}")
                emit(k, rd[:2]); rd = rd[2:]
                if dm and (i >= DI or h in (0, PH, 9)): emit(k, dm.pop(0))
                if h >= 1 and late:
                    take = 3
                    while take < len(late) and late[take].op.startswith(("s_addc", "s_cselect")): take += 1
                    k.items += late[:take]; late = late[take:]
                if h == 8:
                    k.items += fill[:3]; fill = fill[3:]
                if h == 9:
                    m = 0
                    while inits and m < 4 and inits[0][0] < F + 12*ks:
                        r, v = inits.pop(0); e(f"v_mov_b32 v{r}, {v}"); m += 1
                i += 1
        emit(k, dm)
    assert not fill
    stamp(k, 3)
    rest = [f"v_mov_b32 v{r}, {v}" for r, v in inits]
    def qepi(b):
        L = []; a = S0 + 16*b
        for j in range(12): L.append(f"v_fmac_f32 v{a+j}, v{238+b}, v{SA+j}")
        for j in range(12): L.append(f"v_mul_f32 v{a+j}, v{PL+2+2*b}, v{a+j}")
        for j in range(6): L.append(f"v_cvt_pk_bf16_f32 v{Q[b]+j}, v{a+2*j}, v{a+2*j+1}")
        L += [f"v_mov_b32 v{Q[b]+6}, 0", f"v_mov_b32 v{Q[b]+7}, 0"]
        return L
    MX = [3, 5]
    sxr = lambda b, t: [[80, 208, 32, 64], [48, 80, 208, 64]][b][t]
    def mx(b, t):
        S = sxr(b, t)
        L = [f"v_max3_f32 v{MX[b]}, v{S}, v{S+1}, v{S+2}", f"v_max_f32 v{MX[b]}, v{MX[b]}, v{S+3}"] if t == 0 else []
        for j in range(4 if t == 0 else 0, 16, 2): L.append(f"v_max3_f32 v{MX[b]}, v{MX[b]}, v{S+j}, v{S+j+1}")
        return L
    def qk(b, t):
        S = sxr(b, t)
        return [f"{MF} {vr(S,16)}, {vr(KT+8*t,4)}, {vr(Q[b],4)}, 0", f"{MF} {vr(S,16)}, {vr(KT+8*t+4,4)}, {vr(Q[b]+4,4)}, {vr(S,16)}"]
    def fin(b, offs):
        L = [f"v_mov_b32 v15, v{MX[b]}", f"v_permlane32_swap_b32 v{MX[b]}, v15", f"v_max_f32 v{MX[b]}, v{MX[b]}, v15"]
        if offs: L.append(f"v_add_f32 v{MX[b]}, {hex(f32bits(offs))}, v{MX[b]}")
        L += [f"v_cvt_pk_bf16_f32 v15, 0, -v{MX[b]}", "v_cmp_ne_u32 vcc, 0, v6", f"v_sub_f32 v{MX[b]}, -v{MX[b]}, v15",
              f"v_cvt_pk_bf16_f32 v{MX[b]}, v{MX[b]}, v15", f"v_cndmask_b32 v{Q[b]+6}, v{MX[b]}, 0, vcc"]
        return L
    def weave(mfs, vals, per, ex=None):
        for m in mfs:
            e(m)
            if ex: emit(k, ex.pop(0))
            for _ in range(per):
                if vals: e(vals.pop(0))
        for v in vals: e(v)
    emit(k, rest[:8]); rest = rest[8:]
    emit(k, qepi(0))
    stamp(k, 4)
    stamp(k, 5)
    e("s_waitcnt lgkmcnt(0)")
    kv1 = kv_issue(KVSLOT, KV0) if not KV1 else []
    weave(qk(0, 0) + qk(0, 1) + qk(0, 2), qepi(1), 6, kv1)
    weave(qk(0, 3) + qk(1, 0), mx(0, 0) + mx(0, 1) + rest, 6, kv1)
    weave(qk(1, 1) + qk(1, 2), mx(0, 2) + mx(0, 3) + fin(0, OFFS), 6)
    e("s_waitcnt lgkmcnt(0)")
    weave(qk(1, 3) + [f"{MF} {vr(S0,16)}, {vr(KL(0),4)}, {vr(Q[0],4)}, 0", f"{MF} {vr(S0,16)}, {vr(KH(0),4)}, {vr(Q[0]+4,4)}, {vr(S0,16)}"],
          mx(1, 0) + [f"v_mov_b32 v{S1+12+j}, 0" for j in range(4)] + mx(1, 1) + mx(1, 2) + mx(1, 3) + fin(1, OFFS), 6)
    dma = lambda so, off: f"buffer_load_dwordx4 v2, s[24:27], {so} offen offset:{off} {SC} lds" if not NOKV else "s_nop 0"
    extra = {(1, 0): ["s_mov_b32 m0, s42"], (1, 1): ["s_add_u32 s38, s43, 4096"], (1, 3): ["s_waitcnt vmcnt(0)", "s_barrier"] if NOKV < 2 else [],
             (2, 3): [dma("s43", 0), dma("s43", 1024)], (3, 3): [dma("s43", 2048), dma("s43", 3072)],
             (4, 0): ["s_add_u32 m0, s42, 4096"], (4, 3): [dma("s38", 0), dma("s38", 1024)],
             (5, 0): [f"s_add_u32 s43, s43, {KVSLOT}"], (5, 1): ["s_add_u32 s40, s40, 1"], (5, 2): [f"s_add_u32 s37, s42, {KVSLOT}"],
             (6, 0): ["s_cmp_eq_u32 s37, s39"], (6, 1): ["s_cselect_b32 s37, s35, s37"],
             (7, 0): ["s_sub_u32 s41, s42, s36"], (7, 1): ["s_mov_b32 s42, s37"],
             (7, 2): ["s_bitcmp0_b32 s4, s40"]}
    e(f"s_mov_b32 s4, {0x102 if SENT else 0x100}")
    if SENT:
        for j in range(4): e(f"v_mov_b32 v{244+j}, -1")
        for b in range(2):
            e(f"buffer_store_dwordx4 v[244:247], v2, s[28:31], s{12+b} offen {SC}")
            e(f"buffer_store_dwordx2 v[244:245], v{AO2}, s[28:31], s{16+b} offen {SC}")
    e("s_setprio 1")
    stamp(k, 6)
    stamp(k, 7)
    Lloop = k.newlabel("att")
    k.label(Lloop, 6)
    def cv(S, Pb, g):
        return [f"v_cvt_pk_bf16_f32 v{Pb+2*g}, v{S+4*g}, v{S+4*g+1}", f"v_cvt_pk_bf16_f32 v{Pb+2*g+1}, v{S+4*g+2}, v{S+4*g+3}"]
    for jj in range(8):
        for blk in range(2):
            Sc, Sn = (S0, S1) if blk == 0 else (S1, S0)
            valu = []
            for g in range(4):
                for j in range(4): valu.append(f"v_exp_f32{E64} v{Sc+4*g+j}, v{Sc+4*g+j}")
                valu += cv(Sn, P[1-blk], 3) if g == 0 else cv(Sc, P[blk], g-1)
            ks = (jj + blk) & 1; vs = (jj - 1 + blk) & 1; nb = 1 - blk
            ko = ((jj + 2) % 8) * 3072; vo = ((jj + 1) % 8) * 3072
            mf = [[f"{MF} {vr(O[nb],16)}, {vr(V0(vs),4)}, {vr(P[nb],4)}, {vr(O[nb],16)}"],
                  [f"{MF} {vr(Sn,16)}, {vr(KL(ks),4)}, {vr(Q[nb],4)}, 0"],
                  [f"{MF} {vr(Sn,16)}, {vr(KH(ks),4)}, {vr(Q[nb]+4,4)}, {vr(Sn,16)}"],
                  [f"{MF} {vr(O[nb],16)}, {vr(V1(vs),4)}, {vr(P[nb]+4,4)}, {vr(O[nb],16)}"]]
            if blk == 0:
                mf[2].append("s_waitcnt lgkmcnt(0)")
                mf[3].append(f"ds_read_b128 {vr(KL(ks),4)}, v{AKL} offset:{ko}")
                mf[3].append(f"ds_read_b64 {vr(KH(ks),2)}, v{AKH} offset:{ko}")
            else:
                mf[3].append(f"ds_read_b128 {vr(V0(1-vs),4)}, v{AV} offset:{vo}")
                mf[3].append(f"ds_read_b128 {vr(V1(1-vs),4)}, v{AV} offset:{vo+768}")
                if jj == 5: valu.append(f"v_add_u32 v{AKL}, s41, v2"); valu.append(f"v_add_u32 v{AKH}, s41, v{BKH}")
                if jj == 6: valu.append(f"v_add_u32 v{AV}, s41, v{BV}")
                for m in range(4): mf[m] += extra.get((jj, m), [])
            for i, v in enumerate(valu):
                for m in range(4):
                    if PATTERN[m] == i: emit(k, mf[m])
                e(v)
    e(f"s_cbranch_scc1 {Lloop}")
    if SENT:
        Lexit = k.newlabel("aexit")
        e(f"s_cmp_eq_u32 s40, 8\ns_cbranch_scc1 {Lexit}")
        setflag(k, "s14", 242)
        e(f"s_branch {Lloop}")
        k.label(Lexit)
    emit(k, cv(S1, P[1], 3))
    e(f"{MF} {vr(O[1],16)}, {vr(V0(1),4)}, {vr(P[1],4)}, {vr(O[1],16)}")
    e(f"{MF} {vr(O[1],16)}, {vr(V1(1),4)}, {vr(P[1]+4,4)}, {vr(O[1],16)}")
    stamp(k, 8)
    e("s_mov_b32 s40, 0\ns_setprio 3")
    Lout = k.newlabel("out"); Lslow = k.newlabel("slow"); Lpub = k.newlabel("pub")
    k.label(Lout)
    PK = 224; A0 = 208
    def ostore():
        for b in range(2):
            e(f"v_rcp_f32 v{A0+b}, v{O[b]+12}")
            e(f"v_mul_f32 v{A0+b}, {hex(f32bits(1/LOG2E))}, v{A0+b}")
            for j in range(12): e(f"v_mul_f32 v{O[b]+j}, v{O[b]+j}, v{A0+b}")
            for j in range(6): e(f"v_cvt_pk_bf16_f32 v{PK+8*b+j}, v{O[b]+2*j}, v{O[b]+2*j+1}")
            if SENT:
                for j in range(6): e(f"v_min_u32 v{PK+8*b+j}, -2, v{PK+8*b+j}")
            e(f"buffer_store_dwordx4 {vr(PK+8*b,4)}, v2, s[28:31], s{12+b} offen {SC}")
            e(f"buffer_store_dwordx2 {vr(PK+8*b+4,2)}, v{AO2}, s[28:31], s{16+b} offen {SC}")
    if not SENT: ostore()
    for b in range(2):
        e(f"v_mul_f32 v{A0+2+2*b}, 0, v{O[b]+12}\nv_mul_f32 v{A0+3+2*b}, 0, v{O[b]}")
        for j in range(1, 12): e(f"v_fma_f32 v{A0+2+2*b+(j&1)}, v{O[b]+j}, 0, v{A0+2+2*b+(j&1)}")
    e(f"v_add_f32 v{A0+2}, v{A0+2}, v{A0+4}\nv_add_f32 v{A0+3}, v{A0+3}, v{A0+5}")
    e(f"v_cmp_u_f32 vcc, v{A0+2}, v{A0+3}")
    e(f"s_cmp_lg_u32 s40, 0\ns_cbranch_scc1 {Lpub}")
    e(f"s_cmp_lg_u64 vcc, 0\ns_cbranch_scc1 {Lslow}")
    k.label(Lpub)
    if SENT: ostore()
    elif WF:
        e(f"v_mov_b32 v16, {TAG}\ns_lshl_b32 s32, s3, 2\nv_mov_b32 v17, s32\ns_mov_b64 exec, 1\ns_waitcnt vmcnt(0)")
        e(f"buffer_store_dword v16, v17, {FL}, s14 offen {SC}\ns_mov_b64 exec, -1")
    else:
        e("s_waitcnt vmcnt(0)\ns_barrier")
        if LEAK == "A9":
            e("s_getreg_b32 s95, hwreg(HW_REG_XCC_ID)\ns_and_b32 s95, s95, 15\ns_and_b32 s94, s2, 7\ns_cmp_eq_u32 s95, s94\ns_cselect_b32 s95, 0, 1000\ns_add_u32 s95, s95, s86")
        setflag(k, "s14", 16, "A")
    Lx = k.newlabel("axit")
    e(f"s_or_b32 s32, s2, s3\ns_cmp_lg_u32 s32, 0\ns_cbranch_scc1 {Lx}")
    e(f"v_lshlrev_b32 v13, 7, v1")
    ld = []
    for i in range(8): ld += [f"s_mov_b32 s38, {HF + 8192*i}", f"buffer_load_dword v{16+i}, v13, {FL}, s38 offen {SC}"]
    if not ONLY: spin(k, ld, list(range(16, 24)), 24)
    setflag(k, "0", 16)
    if LEAK:
        for i in range(8):
            e(f"s_mov_b32 s75, {HF + 8192*i}\nbuffer_load_dwordx2 {vr(32+2*i,2)}, v13, {FL}, s75 offen offset:8 {SC}")
        e("s_waitcnt vmcnt(0)")
        for i in range(16): e(f"v_subrev_u32 v{32+i}, s86, v{32+i}")
        for i in range(1, 8): e(f"v_min_i32 v32, v32, v{32+2*i}\nv_max_i32 v33, v33, v{33+2*i}")
        e("s_mov_b32 s40, 0x7fffffff\ns_mov_b32 s41, 0x80000000")
        for l in range(64):
            e(f"v_readlane_b32 s42, v32, {l}\nv_readlane_b32 s43, v33, {l}\ns_min_i32 s40, s40, s42\ns_max_i32 s41, s41, s43")
        e("s_sub_u32 s41, s41, s40\ns_mul_i32 s41, s41, 4\ns_add_u32 s41, s41, 10000\ns_add_u32 s40, s40, s86")
        Ls = k.newlabel("spin"); k.label(Ls)
        e("s_memrealtime s[42:43]\ns_waitcnt lgkmcnt(0)\ns_sub_u32 s42, s42, s40")
        e(f"s_cmp_lt_u32 s42, s41\ns_cbranch_scc1 {Ls}")
    k.label(Lx)
    stamp_dump(k, 1, 9, "s2", PWS)
    e("s_endpgm")
    k.label(Lslow)
    e("s_waitcnt vmcnt(0) lgkmcnt(0)")
    e(f"s_mov_b32 s40, 1\ns_mov_b32 s41, 0\nv_mov_b32 v{Q[0]+6}, 0\nv_mov_b32 v{Q[1]+6}, 0")
    e(f"v_mov_b32 v{MX[0]}, 0xff800000\nv_mov_b32 v{MX[1]}, 0xff800000")
    def kload():
        e(f"buffer_load_dwordx4 {vr(KL(0),4)}, v2, s[24:27], s41 offen {SC}")
        e(f"buffer_load_dwordx2 {vr(KH(0),2)}, v{BKH}, s[24:27], s41 offen {SC}")
    def qk2():
        for b in range(2):
            S = S0 + 16*b
            e(f"{MF} {vr(S,16)}, {vr(KL(0),4)}, {vr(Q[b],4)}, 0\n{MF} {vr(S,16)}, {vr(KH(0),4)}, {vr(Q[b]+4,4)}, {vr(S,16)}")
    L1 = k.newlabel("sl1"); k.label(L1)
    kload(); e("s_waitcnt vmcnt(0)"); qk2()
    for b in range(2):
        for j in range(0, 16, 2): e(f"v_max3_f32 v{MX[b]}, v{MX[b]}, v{S0+16*b+j}, v{S0+16*b+j+1}")
    e(f"s_add_u32 s41, s41, 3072\ns_cmp_lt_u32 s41, {KV_BYTES}\ns_cbranch_scc1 {L1}")
    for b in range(2): emit(k, fin(b, 0))
    for j in range(32): e(f"v_mov_b32 v{O[0]+j}, 0")
    e("s_mov_b32 s41, 0")
    L2 = k.newlabel("sl2"); k.label(L2)
    kload()
    e(f"buffer_load_dwordx4 {vr(V0(0),4)}, v{BV}, s[24:27], s41 offen {SC}")
    e(f"buffer_load_dwordx4 {vr(V1(0),4)}, v{BV}, s[24:27], s41 offen offset:768 {SC}")
    e("s_waitcnt vmcnt(0)"); qk2()
    for b in range(2):
        S = S0 + 16*b
        for j in range(16): e(f"v_exp_f32 v{S+j}, v{S+j}")
        for g in range(4): emit(k, cv(S, P[b], g))
        e(f"{MF} {vr(O[b],16)}, {vr(V0(0),4)}, {vr(P[b],4)}, {vr(O[b],16)}")
        e(f"{MF} {vr(O[b],16)}, {vr(V1(0),4)}, {vr(P[b]+4,4)}, {vr(O[b],16)}")
    e(f"s_add_u32 s41, s41, 3072\ns_cmp_lt_u32 s41, {KV_BYTES}\ns_cbranch_scc1 {L2}")
    e("s_nop 12")
    e(f"s_branch {Lout}")

def gen_mega(name="parallel_sum__grouped_kv_mqa__swiglu_ffn__prompt_kernel"):
    k = Kernel(name); e = k.e
    LA = k.newlabel("roleA"); LB = k.newlabel("roleB")
    e("s_load_dwordx16 s[48:63], s[0:1], 0\ns_load_dwordx8 s[64:71], s[0:1], 64")
    e("v_and_b32 v1, 63, v0\nv_lshrrev_b32 v2, 6, v0\nv_readfirstlane_b32 s3, v2\nv_lshlrev_b32 v2, 4, v1")
    Lgo = k.newlabel("go")
    e(f"s_cmp_lt_u32 s2, 256\ns_cbranch_scc1 {LB}\ns_cmp_lt_u32 s2, 512\ns_cbranch_scc1 {Lgo}\ns_endpgm")
    def body_b():
        k.label(LB)
        e("s_setprio 3")
        roleB(k)
    if HEAD:
        k.label(Lgo)
        if ONLY == "B": e("s_endpgm")
        e(f"s_sub_u32 s2, s2, 256\ns_setprio {AP0}")
        def mid():
            e(f"s_branch {LA}")
            body_b()
            k.label(LA, 6)
        roleA(k, mid)
    else:
        body_b()
        k.label(Lgo, 6)
        if ONLY == "B": e("s_endpgm")
        e(f"s_sub_u32 s2, s2, 256\ns_setprio {AP0}")
        roleA(k, lambda: None)
    k.label(f"{k.name}_end")
    k.lds = 81920; k.grid = 512; k.block = 256
    return k

if __name__ == "__main__":
    import sys
    from build import emit as emit_file
    emit_file([gen_mega()], sys.argv[1] if len(sys.argv) > 1 else "parallel_sum__grouped_kv_mqa__swiglu_ffn__prompt.s")
```
